```python
import torch

def _softmax(x, axis=-1):
    return torch.softmax(x, dim=axis)

def _gelu(x):
    return torch.nn.functional.gelu(x, approximate='tanh')

def _silu(x):
    return torch.nn.functional.silu(x)

def _sigmoid(x):
    return torch.sigmoid(x)

def _layernorm(x, axis=-1, eps=1e-05):
    m = x.mean(dim=axis, keepdim=True)
    v = x.var(dim=axis, keepdim=True, unbiased=False)
    return (x - m) / torch.sqrt(v + eps)

def _scatter_add(tgt, idx, src, axis=0):
    return tgt.clone().index_add_(axis, idx, src)

def _segment_sum(src, seg, n):
    out = torch.zeros((n,) + src.shape[1:], dtype=src.dtype)
    return out.index_add_(0, seg, src)

def _pad(x, pw):
    flat = tuple((v for pair in reversed(pw) for v in pair))
    return torch.nn.functional.pad(x, flat)
kernel_name = 'standalone__conformer_family_e_branchformer__speech'

def setup_inputs():

    _w = lambda a: (lambda t: t.to(torch.bfloat16) if t.is_floating_point() else t)(torch.as_tensor(a))
    B, T, D, K = (2, 4000, 512, 31)
    return {'x': _w((lambda *s: torch.randn(*s, dtype=torch.bfloat16) * 0.05)(B, T, D)), 'w_qkv': _w((lambda *s: torch.randn(*s, dtype=torch.bfloat16) * 0.05)(D, 3 * D)), 'w_att_out': _w((lambda *s: torch.randn(*s, dtype=torch.bfloat16) * 0.05)(D, D)), 'w_mlp_in': _w((lambda *s: torch.randn(*s, dtype=torch.bfloat16) * 0.05)(D, 2 * D)), 'dw_csgu': _w((lambda *s: torch.randn(*s, dtype=torch.bfloat16) * 0.05)(K, D)), 'w_mlp_out': _w((lambda *s: torch.randn(*s, dtype=torch.bfloat16) * 0.05)(D, D)), 'dw_merge': _w((lambda *s: torch.randn(*s, dtype=torch.bfloat16) * 0.05)(K, 2 * D)), 'w_merge': _w((lambda *s: torch.randn(*s, dtype=torch.bfloat16) * 0.05)(2 * D, D))}

def reference(x, w_qkv, w_att_out, w_mlp_in, dw_csgu, w_mlp_out, dw_merge, w_merge):
    B, T, D = x.shape
    K = dw_csgu.shape[0]
    pad = K // 2
    xa = _layernorm(x, axis=-1)
    qkv = torch.einsum('btd,de->bte', xa, w_qkv)
    q, k, v = (qkv[..., :D].clone(), qkv[..., D:2 * D].clone(), qkv[..., 2 * D:].clone())
    scores = torch.einsum('btd,bsd->bts', q, k) * D ** (-0.5)
    p = _softmax(scores, axis=-1)
    attn = torch.einsum('bts,bsd->btd', p, v)
    glob = torch.einsum('btd,de->bte', attn, w_att_out)
    xc = _layernorm(x, axis=-1)
    h = _gelu(torch.einsum('btd,de->bte', xc, w_mlp_in))
    u, g = (h[..., :D].clone(), h[..., D:].clone())
    g = _layernorm(g, axis=-1)
    gp = _pad(g, ((0, 0), (pad, pad), (0, 0)))
    gc = torch.zeros_like(g)
    for i in range(K):
        gc = gc + gp[:, i:i + T, :] * dw_csgu[i][None, None, :]
    loc = torch.einsum('btd,de->bte', u * gc, w_mlp_out)
    m = torch.concatenate([glob, loc], axis=-1)
    mp = _pad(m, ((0, 0), (pad, pad), (0, 0)))
    mc = torch.zeros_like(m)
    for i in range(K):
        mc = mc + mp[:, i:i + T, :] * dw_merge[i][None, None, :]
    m = m + mc
    return x + torch.einsum('btc,cd->btd', m, w_merge)
```

```python
import re

TRANS = ('v_exp_f32', 'v_log_f32', 'v_rcp_f32', 'v_rsq_f32', 'v_sqrt_f32', 'v_sin_f32', 'v_cos_f32', 'v_rcp_iflag_f32')

def split_ops(s):
    ops, depth, cur = [], 0, ''
    for ch in s:
        if ch in '[(':
            depth += 1
        if ch in '])':
            depth -= 1
        if ch == ',' and depth == 0:
            ops.append(cur.strip()); cur = ''
        else:
            cur += ch
    if cur.strip():
        ops.append(cur.strip())
    return ops

_reg_re = re.compile(r'^-?\|?(?:abs\()?([vas])(?:(\d+)|\[(\d+):(\d+)\])\)?\|?$')

def regs_of(tok):
    tok = tok.split()[0] if tok.split() else ''
    if tok in ('vcc',):
        return {('s', 106), ('s', 107)}
    if tok == 'vcc_lo':
        return {('s', 106)}
    if tok == 'vcc_hi':
        return {('s', 107)}
    if tok == 'exec':
        return {('s', 126), ('s', 127)}
    if tok == 'm0':
        return {('s', 124)}
    m = _reg_re.match(tok)
    if not m:
        return set()
    f = m.group(1)
    if m.group(2) is not None:
        return {(f, int(m.group(2)))}
    return {(f, i) for i in range(int(m.group(3)), int(m.group(4)) + 1)}

class Ins:
    __slots__ = ('text', 'mn', 'ops', 'kind', 'w', 'r', 'srcC', 'srcAB', 'passes', 'states', 'lds_dma', 'wide_store', 'sdata')
    def __init__(self, text):
        self.text = text
        t = text.split(';')[0].strip()
        parts = t.split(None, 1)
        self.mn = parts[0]
        self.ops = split_ops(parts[1]) if len(parts) > 1 else []
        self.w = set(); self.r = set(); self.srcC = set(); self.srcAB = set(); self.passes = 0
        self.states = 1; self.lds_dma = False; self.wide_store = False; self.sdata = set()
        mn, ops = self.mn, self.ops
        R = regs_of
        if mn.startswith('v_mfma'):
            self.kind = 'mfma'
            self.w = R(ops[0]); self.srcAB = R(ops[1]) | R(ops[2]); self.srcC = R(ops[3])
            self.r = self.srcAB | self.srcC
            self.passes = 8 if '32x32x16' in mn else (4 if '16x16x32' in mn else 16)
        elif mn.startswith('v_'):
            self.kind = 'valu'
            base = mn.replace('_e32', '').replace('_e64', '').replace('_dpp', '').replace('_sdwa', '')
            if base.startswith('v_cmpx'):
                self.w = R(ops[0]) | R('exec')
                for o in ops[1:]: self.r |= R(o)
            elif base.startswith('v_cmp'):
                self.w = R(ops[0])
                for o in ops[1:]: self.r |= R(o)
            elif base in ('v_add_co_u32', 'v_sub_co_u32', 'v_subrev_co_u32', 'v_addc_co_u32', 'v_subb_co_u32', 'v_mad_u64_u32', 'v_div_scale_f32'):
                self.w = R(ops[0]) | R(ops[1])
                for o in ops[2:]: self.r |= R(o)
            elif base.startswith('v_permlane') or base == 'v_swap_b32':
                self.w = R(ops[0]) | R(ops[1]); self.r = set(self.w)
            elif base == 'v_nop':
                pass
            else:
                self.w = R(ops[0])
                for o in ops[1:]: self.r |= R(o)
                if base in ('v_fmac_f32', 'v_dot2c_f32_bf16', 'v_pk_fmac_f16', 'v_writelane_b32') or '_dpp' in mn or '_sdwa' in mn:
                    self.r |= self.w
                if base == 'v_cndmask_b32' and len(ops) == 3:
                    self.r |= R('vcc')
        elif mn.startswith('ds_'):
            self.kind = 'ds'
            if mn.startswith('ds_read') or mn.startswith('ds_bpermute') or mn.startswith('ds_permute') or mn.startswith('ds_swizzle'):
                self.w = R(ops[0])
                for o in ops[1:]: self.r |= R(o)
            else:
                for o in ops: self.r |= R(o)
        elif mn.startswith('buffer_') or mn.startswith('global_') or mn.startswith('flat_'):
            self.kind = 'vmem'
            words = t.split()
            if mn.startswith('buffer_wbl2') or mn.startswith('buffer_inv'):
                pass
            elif 'lds' in words or '_lds_' in mn:
                self.lds_dma = True
                for o in ops: self.r |= R(o)
                self.r |= R('m0')
            elif '_load' in mn:
                self.w = R(ops[0])
                for o in ops[1:]: self.r |= R(o)
                if 'd16' in mn: self.r |= self.w
            elif '_store' in mn:
                for o in ops: self.r |= R(o)
                data = ops[0] if mn.startswith('buffer_') else ops[1]
                if 'x3' in mn or 'x4' in mn:
                    self.wide_store = True; self.sdata = R(data)
            else:
                for o in ops: self.r |= R(o)
                if 'sc0' in words:
                    self.w = R(ops[0])
        elif mn.startswith('s_'):
            self.kind = 'salu'
            if mn == 's_nop':
                self.states = int(ops[0], 0) + 1
            elif mn.startswith('s_cmp') or mn.startswith('s_cbranch') or mn in ('s_branch', 's_barrier', 's_waitcnt', 's_endpgm', 's_setprio', 's_sleep') or mn.startswith('s_bitcmp'):
                for o in ops: self.r |= R(o)
            elif mn.endswith('saveexec_b64'):
                self.w = R(ops[0]) | R('exec'); self.r = R(ops[1]) | R('exec')
            else:
                self.w = R(ops[0]) if ops else set()
                for o in ops[1:]: self.r |= R(o)
                if mn in ('s_addk_i32', 's_mulk_i32'): self.r |= self.w
        else:
            self.kind = 'other'

def required_states(p, c):
    need = 0
    vr = lambda s: {x for x in s if x[0] in 'va'}
    sr = lambda s: {x for x in s if x[0] == 's'}
    if p.kind == 'mfma':
        tb = {2: (2, 4, 5, 5, 1), 4: (0, 6, 8, 8, 3), 8: (0, 10, 12, 12, 7), 16: (0, 18, 20, 20, 15)}[p.passes]
        if c.kind == 'mfma':
            if p.w & c.srcC:
                if p.w == c.srcC and p.passes == c.passes:
                    need = max(need, tb[0])
                else:
                    need = max(need, tb[1])
            if p.w & c.srcAB:
                need = max(need, tb[2])
            if (p.w & c.w) and not (p.w == c.srcC):
                need = max(need, tb[1])
        elif c.kind in ('valu', 'vmem', 'ds'):
            if p.w & (c.r | c.w):
                need = max(need, tb[3])
            if c.kind == 'valu' and (p.srcC & c.w):
                need = max(need, tb[4])
            if c.kind in ('vmem', 'ds') and (p.srcC & c.w):
                need = max(need, tb[4])
    elif p.kind == 'valu':
        pv, ps = vr(p.w), sr(p.w)
        base = p.mn.replace('_e32', '').replace('_e64', '')
        if c.kind == 'mfma':
            if pv & c.r: need = max(need, 2)
            if ('s', 126) in p.w: need = max(need, 4)
        if c.kind == 'valu':
            cb = c.mn.replace('_e32', '').replace('_e64', '')
            if base in TRANS and (pv & c.r) :
                need = max(need, 1)
            if cb.startswith('v_permlane') and (pv & c.r): need = max(need, 2)
            if '_dpp' in c.mn and (pv & c.r): need = max(need, 2)
            if '_dpp' in c.mn and ('s', 126) in p.w: need = max(need, 5)
            if cb in ('v_readfirstlane_b32', 'v_readlane_b32') and (pv & c.r): need = max(need, 1)
            if ps & c.r:
                need = max(need, 2)
                if cb in ('v_readlane_b32', 'v_writelane_b32', 'v_div_fmas_f32'): need = max(need, 4)
            if ('s', 126) in p.w and cb in ('v_readfirstlane_b32', 'v_readlane_b32', 'v_writelane_b32'): need = max(need, 4)
            if ('s', 126) in p.w and cb.startswith('v_permlane'): need = max(need, 4)
            if ('_sdwa' in p.mn or 'op_sel' in p.text and not p.mn.startswith('v_pk')) and (pv & (c.r | c.w)): need = max(need, 1)
            if p.mn.startswith('v_dot') and (pv & (c.r | c.w)):
                if not (c.mn == p.mn and not (pv & (regs_of(c.ops[1]) | regs_of(c.ops[2])))):
                    need = max(need, 3)
        if c.kind == 'vmem' and (ps & c.r): need = max(need, 5)
        if c.kind == 'salu' and (ps & c.r) and not c.mn.startswith('s_cbranch'): need = max(need, 1)
    elif p.kind == 'salu':
        if ('s', 124) in p.w and (c.lds_dma or c.mn.endswith('addtid_b32')): need = max(need, 1)
    elif p.kind == 'vmem':
        if p.wide_store and (p.sdata & c.w):
            need = max(need, 2 if c.kind == 'valu' else 1)
    return need

MAXLOOK = 22

class Asm:
    def __init__(self):
        self.lines = []
        self.hist = []
        self.auto_nops = []
        self.all_ins = []
        self.record = None
    def raw(self, s):
        self.lines.append(s)
    def comment(self, s):
        self.lines.append('    ; ' + s)
    def label(self, name, reset=False):
        self.lines.append(name + ':')
        if self.record is not None: self.record.append(('label', name))
        if reset:
            self.hist = []
    def _need(self, ins):
        dist = 0; pad = 0
        for p in reversed(self.hist):
            req = required_states(p, ins)
            if req > dist:
                pad = max(pad, req - dist)
            dist += p.states
            if dist > MAXLOOK: break
        return pad
    def e(self, text):
        ins = Ins(text)
        pad = self._need(ins)
        while pad > 0:
            n = min(pad, 16)
            nop = Ins('s_nop %d' % (n - 1))
            self.lines.append(' s_nop %d' % (n - 1))
            self.hist.append(nop); self.auto_nops.append((len(self.lines), n, text))
            if self.record is not None: self.record.append(('ins', nop))
            pad -= n
        self.lines.append(' ' + text)
        self.hist.append(ins)
        if len(self.hist) > 64: self.hist = self.hist[-40:]
        if self.record is not None: self.record.append(('ins', ins))
        return ins
    def text(self):
        return '\n'.join(self.lines) + '\n'

def check_seq(seq):
    out = []
    for i, c in enumerate(seq):
        dist = 0
        for j in range(i - 1, -1, -1):
            p = seq[j]
            req = required_states(p, c)
            if req > dist:
                out.append((j, i, req, dist, p.text, c.text))
            dist += p.states
            if dist > MAXLOOK: break
    return out

def vr(base, n=1, f='v'):
    return '%s%d' % (f, base) if n == 1 else '%s[%d:%d]' % (f, base, base + n - 1)
def ar(base, n=1):
    return vr(base, n, 'a')
def sr(base, n=1):
    return vr(base, n, 's')

def kernel_begin(a, name):
    a.raw('.globl %s' % name)
    a.raw('.p2align 8')
    a.raw('.type %s,@function' % name)
    a.label(name, reset=True)

def kernel_desc(name, vgpr, sgpr, accum):
    return '\n'.join([
        '.amdhsa_kernel %s' % name,
        '  .amdhsa_next_free_vgpr %d' % vgpr,
        '  .amdhsa_next_free_sgpr %d' % sgpr,
        '  .amdhsa_accum_offset %d' % accum,
        '  .amdhsa_group_segment_fixed_size 0',
        '  .amdhsa_kernarg_size 88',
        '  .amdhsa_user_sgpr_count 2',
        '  .amdhsa_user_sgpr_kernarg_segment_ptr 1',
        '  .amdhsa_system_sgpr_workgroup_id_x 1',
        '.end_amdhsa_kernel', ''])
```

```python
import copy
from asmlib import *
from layout import *

class LdsQ:
    def __init__(self):
        self.n = 0; self.done = 0; self.where = {}; self.pending = set()
    def issue(self, regs, check=True):
        self.n += 1
        for r in regs:
            if check: assert r not in self.pending, ('ring WAR', r)
            self.where[r] = self.n; self.pending.add(r)
    def consume(self, r):
        self.pending.discard(r); self.pending.discard(r + 1000)
    def need(self, regs):
        return max([self.where.get(r, 0) for r in regs] + [0])
    def wait_for(self, a, idx):
        if idx <= self.done: return
        N = min(self.n - idx, 15)
        a.e('s_waitcnt lgkmcnt(%d)' % N)
        self.done = self.n - N
    def drained(self):
        self.done = self.n
    def state(self):
        return (self.n - self.done, sorted((self.n - v, k) for k, v in self.where.items() if v > self.done), sorted(self.pending))

MF = 'v_mfma_f32_16x16x32_bf16'

def stamp_begin(a):
    a.e('s_load_dwordx2 s[64:65], s[0:1], 72')
    a.e('s_memtime s[66:67]')
    a.e('s_memrealtime s[72:73]')
def stamp_mid(a, reg):
    a.e('s_memtime s[78:79]')
    a.e('s_waitcnt lgkmcnt(0)')
    a.e('s_sub_u32 s%d, s78, s66' % reg)
def stamp_end(a, sWave, endlabel):
    a.e('s_waitcnt vmcnt(0)')
    a.e('s_memtime s[68:69]')
    a.e('s_memrealtime s[74:75]')
    a.e('s_waitcnt lgkmcnt(0)')
    a.e('s_sub_u32 s68, s68, s66')
    a.e('s_sub_u32 s74, s74, s72')
    a.e('s_and_b32 s70, s%d, 3' % sWave)
    a.e('s_cmp_eq_u32 s70, 1')
    a.e('s_cselect_b32 s68, s74, s68')
    a.e('s_cmp_eq_u32 s70, 2')
    a.e('s_cselect_b32 s68, s76, s68')
    a.e('s_cmp_eq_u32 s70, 3')
    a.e('s_cselect_b32 s68, s77, s68')
    a.e('s_cmp_lt_u32 s2, 16')
    a.e('s_cbranch_scc0 %s' % endlabel)
    a.e('s_cmp_lt_u32 s%d, 4' % sWave)
    a.e('s_cbranch_scc0 %s' % endlabel)
    a.e('s_lshl_b32 s69, s2, 4')
    a.e('s_lshl_b32 s70, s70, 2')
    a.e('s_add_u32 s69, s69, s70')
    a.e('v_mov_b32 v0, s68')
    a.e('v_mov_b32 v1, s69')
    a.e('global_store_dword v1, v0, s[64:65]')

def gen_attn(a, name='attn_kernel', cfg=None):
    cfg = cfg or {}
    DV = cfg.get('DV', 9)
    DK = cfg.get('DK', 7)
    BARPOS = cfg.get('BARPOS', 31 - DV + 4)
    WG = cfg.get('WAITGROUP', 4)
    DMA_SLOTS = cfg.get('DMA_SLOTS', [2, 6, 10, 14, 18, 22, 26, 30])
    NO_DMA = cfg.get('NO_DMA', False)
    NO_SM = cfg.get('NO_SM', False)
    STAMP = cfg.get('STAMP', False)
    S = [0, 16]; P = 32; RING = 40; NR = 16
    NEGM = 104
    vK = [112, 113]; vV = [114, 115]
    vD0, vD1, vL0, vL1, vMx, vT0, vT1, vLane16 = 116, 117, 118, 119, 120, 121, 122, 123
    vL = [vL0, vL1]
    def Sreg(b, kt, qs): return S[b] + (kt * 2 + qs) * 4
    def Obase(dt, qs): return (dt * 2 + qs) * 4
    def Oreg(dt, qs):
        o = Obase(dt, qs)
        return vr(128 + o, 4) if o < 128 else ar(o, 4)
    def Qreg(ks, qs): return ar((ks * 2 + qs) * 4, 4)
    sSRD = 8; sWave = 12; sM0 = 13; sDma = 14; sQ = 15; sI = 16; sN2 = 17; sValid = 18; sOut = 19; sMl = 20; sT0 = 21; sT1 = 22; sT2 = 23
    srd = sr(sSRD, 4)

    kernel_begin(a, name)
    a.e('s_cmp_ge_u32 s2, 256')
    a.e('s_cbranch_scc1 %s_end' % name)
    a.e('s_load_dwordx2 s[4:5], s[0:1], 80')
    if STAMP: stamp_begin(a)
    a.e('v_lshrrev_b32 v1, 6, v0')
    a.e('v_and_b32 v2, 63, v0')
    a.e('v_readfirstlane_b32 s%d, v1' % sWave)
    a.e('v_lshlrev_b32 v%d, 4, v2' % vLane16)
    a.e('s_and_b32 s%d, s2, 7' % sT0)
    a.e('s_lshr_b32 s%d, s2, 3' % sT1)
    a.e('s_and_b32 s%d, s%d, 3' % (sT2, sT1))
    a.e('s_lshr_b32 s%d, s%d, 2' % (sT1, sT1))
    a.e('s_and_b32 s24, s%d, 3' % sT0)
    a.e('s_lshl_b32 s24, s24, 3')
    a.e('s_add_u32 s24, s24, s%d' % sT1)
    a.e('s_lshl_b32 s24, s24, 2')
    a.e('s_add_u32 s24, s24, s%d' % sWave)
    a.e('s_cmp_lt_u32 s24, 125')
    a.e('s_cselect_b32 s%d, 1, 0' % sValid)
    a.e('s_min_u32 s24, s24, 124')
    a.e('s_lshr_b32 s25, s%d, 2' % sT0)
    a.e('s_mul_i32 s25, s25, 125')
    a.e('s_add_u32 s24, s24, s25')
    a.e('s_lshl_b32 s%d, s24, 15' % sQ)
    a.e('s_mul_i32 s26, s%d, 250' % sT2)
    a.e('s_add_u32 s26, s26, s24')
    a.e('s_lshl_b32 s%d, s26, 15' % sOut)
    a.e('s_add_u32 s%d, s%d, %d' % (sOut, sOut, OP_OFF))
    a.e('s_lshl_b32 s%d, s26, 8' % sMl)
    a.e('s_add_u32 s%d, s%d, %d' % (sMl, sMl, ML_OFF))
    a.e('s_add_u32 s%d, s%d, %d' % (sQ, sQ, QF_OFF))
    a.e('s_mul_i32 s27, s%d, 31' % sT2)
    a.e('s_min_u32 s28, s%d, 1' % sT2)
    a.e('s_add_u32 s27, s27, s28')
    a.e('s_add_u32 s27, s27, s25')
    a.e('s_lshl_b32 s%d, s27, 15' % sDma)
    if XF_OFF: a.e('s_add_u32 s%d, s%d, %d' % (sDma, sDma, XF_OFF))
    a.e('s_sub_u32 s%d, 31, s28' % sN2)
    a.e('s_lshl_b32 s%d, s%d, 13' % (sM0, sWave))
    a.e('v_add_u32 v%d, s%d, v%d' % (vD0, sM0, vLane16))
    a.e('v_add_u32 v%d, 0x1000, v%d' % (vD1, vD0))
    a.e('s_waitcnt lgkmcnt(0)')
    a.e('s_mov_b32 s%d, s4' % sSRD)
    a.e('s_and_b32 s%d, s5, 0xffff' % (sSRD + 1))
    a.e('s_mov_b32 s%d, %d' % (sSRD + 2, WS_BYTES))
    a.e('s_mov_b32 s%d, 0x00020000' % (sSRD + 3))

    def dma_piece(stage, j):
        out = []
        if j % 4 == 0:
            out.append('s_add_u32 m0, s%d, %d' % (sM0, stage * 32768 + (j // 4) * 4096))
        out.append('buffer_load_dwordx4 v%d, %s, s%d offen offset:%d lds' % (vD0 if j < 4 else vD1, srd, sDma, (j % 4) * 1024))
        if j == 7:
            out.append('s_add_u32 s%d, s%d, 0x8000' % (sDma, sDma))
        return out
    def dma_tile(stage):
        for j in range(8):
            for t in dma_piece(stage, j): a.e(t)

    dma_tile(0)
    for f in range(32):
        if f and f % 4 == 0:
            a.e('s_add_u32 s%d, s%d, 0x1000' % (sQ, sQ))
        a.e('buffer_load_dwordx4 %s, v%d, %s, s%d offen offset:%d' % (ar(4 * f, 4), vLane16, srd, sQ, (f % 4) * 1024))
    dma_tile(1)
    dma_tile(2)
    a.e('v_lshrrev_b32 v3, 4, v2')
    a.e('v_and_b32 v4, 15, v2')
    a.e('v_and_b32 v5, 1, v3')
    a.e('v_mul_u32_u24 v5, 12, v5')
    a.e('v_xor_b32 v5, v4, v5')
    a.e('v_lshlrev_b32 v5, 4, v5')
    a.e('v_lshl_add_u32 v%d, v3, 9, v5' % vK[0])
    a.e('v_add_u32 v%d, 0x10000, v%d' % (vK[1], vK[0]))
    a.e('v_lshrrev_b32 v4, 2, v2')
    a.e('v_bfe_u32 v5, v2, 1, 1')
    a.e('v_and_b32 v6, 1, v2')
    a.e('v_mul_u32_u24 v7, 12, v5')
    a.e('v_xor_b32 v4, v4, v7')
    a.e('v_lshlrev_b32 v4, 4, v4')
    a.e('v_lshl_add_u32 v4, v5, 9, v4')
    a.e('v_lshl_add_u32 v%d, v6, 3, v4' % vV[0])
    a.e('v_add_u32 v%d, 0x10000, v%d' % (vV[1], vV[0]))
    for r in range(128, 256):
        a.e('v_mov_b32 v%d, 0' % r)
    for r in range(128, 256):
        a.e('v_accvgpr_write_b32 a%d, 0' % r)
    a.e('v_mov_b32 v%d, 0' % vL0)
    a.e('v_mov_b32 v%d, 0' % vL1)
    a.e('s_mov_b32 s%d, 0' % sI)

    q = LdsQ()
    def ring(n): return RING + 4 * ((n % 64) % NR)
    def kread(stage, n):
        reg = ring(n); ks, kt = n // 2, n % 2
        return [('ds', 'ds_read_b128 %s, v%d offset:%d' % (vr(reg, 4), vK[stage >> 1], (stage & 1) * 32768 + ks * 2048 + kt * 256), [reg])]
    def vread(stage, dt):
        reg = ring(32 + dt)
        off = (stage & 1) * 32768 + dt * 1024
        return [('ds', 'ds_read_b64_tr_b16 %s, v%d offset:%d' % (vr(reg, 2), vV[stage >> 1], off), [reg + 1000]),
                ('ds', 'ds_read_b64_tr_b16 %s, v%d offset:%d' % (vr(reg + 2, 2), vV[stage >> 1], off + 256), [reg])]
    chk = [True]
    def emit_item(it):
        if isinstance(it, tuple):
            a.e(it[1]); q.issue(it[2], chk[0])
        else:
            a.e(it)

    a.e('s_waitcnt vmcnt(48)')
    a.e('s_barrier')
    PD = 8
    for n in range(PD):
        for it in kread(0, n): emit_item(it)
    for n in range(32):
        ks, kt = n // 2, n % 2
        if n + PD < 32:
            for it in kread(0, n + PD): emit_item(it)
        if kt == 0:
            a.e('s_waitcnt vmcnt(%d)' % (16 + 30 - 2 * ks))
        q.wait_for(a, q.need([ring(n)]))
        for qs in range(2):
            a.e('%s %s, %s, %s, %s' % (MF, vr(Sreg(0, kt, qs), 4), vr(ring(n), 4), Qreg(ks, qs), '0' if ks == 0 else vr(Sreg(0, kt, qs), 4)))
        q.consume(ring(n))
    a.e('s_waitcnt vmcnt(8)')
    a.e('s_barrier')

    n_tail = cfg.get('NTAIL', 8)
    for n in range(n_tail):
        for it in kread(1, n): emit_item(it)

    def head_wait():
        idx = max(q.need([ring(k2)]) for k2 in range(WG))
        assert idx > q.done
        q.wait_for(a, idx)
    def rowmax(b, qs, dst, tmp):
        r0, r1 = Sreg(b, 0, qs), Sreg(b, 1, qs)
        a.e('v_max3_f32 v%d, v%d, v%d, v%d' % (dst, r0, r0 + 1, r0 + 2))
        a.e('v_max3_f32 v%d, v%d, v%d, v%d' % (dst, dst, r0 + 3, r1))
        a.e('v_max3_f32 v%d, v%d, v%d, v%d' % (dst, dst, r1 + 1, r1 + 2))
        a.e('v_max_f32 v%d, v%d, v%d' % (dst, dst, r1 + 3))
        a.e('v_mov_b32 v%d, v%d' % (tmp, dst))
        a.e('v_permlane16_swap_b32 v%d, v%d' % (tmp, dst))
        a.e('v_max_f32 v%d, v%d, v%d' % (dst, dst, tmp))
        a.e('v_mov_b32 v%d, v%d' % (tmp, dst))
        a.e('v_permlane32_swap_b32 v%d, v%d' % (tmp, dst))
        a.e('v_max_f32 v%d, v%d, v%d' % (dst, dst, tmp))
    for qs in range(2):
        rowmax(0, qs, vMx, vT0)
        for kt in range(2):
            for r in range(4):
                a.e('v_sub_f32 v%d, v%d, v%d' % (Sreg(0, kt, qs) + r, Sreg(0, kt, qs) + r, vMx))
        for r in range(4):
            a.e('v_sub_f32 v%d, 0, v%d' % (NEGM + 4 * qs + r, vMx))

    def softmax_items(b):
        items = []
        for qs in range(2):
            for kt in range(2):
                for pr in range(2):
                    r0 = Sreg(b, kt, qs) + 2 * pr; r1 = r0 + 1
                    items.append('v_exp_f32 v%d, v%d' % (r0, r0))
                    items.append('v_exp_f32 v%d, v%d' % (r1, r1))
                    items.append('v_add_f32 v%d, v%d, v%d' % (vL[qs], vL[qs], r0))
                    items.append('v_cvt_pk_bf16_f32 v%d, v%d, v%d' % (P + 4 * qs + 2 * kt + pr, r0, r1))
                    items.append('v_add_f32 v%d, v%d, v%d' % (vL[qs], vL[qs], r1))
        return items

    LAT = cfg.get('LAT', 8)
    EARLY = cfg.get('EARLY', 22)
    BARG = cfg.get('BARG', 112)
    def body(u, final=False):
        bc, bn = u % 2, (u + 1) % 2
        stK, stV = (u + 1) % 4, u
        mf = [None] * 128
        need = [None] * 64
        for n in range(32):
            if final: break
            ks, kt = n // 2, n % 2
            for qs in range(2):
                mf[2 * n + qs] = '%s %s, %s, %s, %s' % (MF, vr(Sreg(bn, kt, qs), 4), vr(ring(n), 4), Qreg(ks, qs), vr(NEGM + 4 * qs, 4) if ks == 0 else vr(Sreg(bn, kt, qs), 4))
            need[n] = ring(n)
        for dt in range(32):
            for qs in range(2):
                mf[64 + 2 * dt + qs] = '%s %s, %s, %s, %s' % (MF, Oreg(dt, qs), vr(ring(32 + dt), 4), vr(P + 4 * qs, 4), Oreg(dt, qs))
            need[32 + dt] = ring(32 + dt)
        pre = [[] for _ in range(129)]
        if final:
            sm = [] if NO_SM else softmax_items(bc)
            for dt in range(32):
                its = vread(stV, dt)
                sl = 32 + dt - 9
                pre[2 * sl] += [its[0]]; pre[2 * sl + 1] += [its[1]]
            for j, it in enumerate(sm):
                pre[2 * (32 - 9) + (j * 18) // len(sm)].append(it)
            waits = set(range(64, 128, 4))
        else:
            cap = [2] * 128
            def wgap(k):
                g = 2 * (k - k % WG)
                return g
            waits = set(wgap(k) for k in range(WG, 64) if not (BARG <= wgap(k) < 128))
            for g in waits: cap[g] -= 1
            cap[BARG] -= 2; pre[BARG].append(('bar',))
            cap[0] -= 1 if u == 1 else 2
            cap[127] -= 1
            pre[125].append('s_add_u32 s%d, s%d, 1' % (sI, sI)); cap[125] -= 1
            if u in (1, 2):
                pre[126].append('s_cmp_eq_u32 s%d, s%d' % (sI, sN2)); cap[126] -= 1
            ds = []
            def ring_ok(k):
                return 2 * (k - NR) + 2
            for n in range(n_tail, 32):
                for it in kread(stK, n): ds.append((it, max(0, wgap(n) - EARLY, ring_ok(n)), wgap(n) - LAT))
            for dt in range(32):
                k = 32 + dt
                w = min(wgap(k), BARG)
                for it in vread(stV, dt): ds.append((it, max(w - EARLY, ring_ok(k)), w - LAT))
            for n in range(n_tail):
                for it in kread((u + 2) % 4, n): ds.append((it, max(BARG + 1, ring_ok(64 + n)), 124))
            dl = [d[2] for d in ds]
            for x in range(len(ds) - 2, -1, -1):
                dl[x] = min(dl[x], dl[x + 1] - 1)
            sm = [] if NO_SM else [(it, 2 if it.startswith('v_exp') else 1, 1) for it in softmax_items(bc)]
            Sn = S[bn]
            mx = ['v_max3_f32 v%d, v%d, v%d, v%d' % (vMx, Sn, Sn + 1, Sn + 2)]
            for r in range(3, 15, 2):
                mx.append('v_max3_f32 v%d, v%d, v%d, v%d' % (vMx, vMx, Sn + r, Sn + r + 1))
            mx.append('v_max_f32 v%d, v%d, v%d' % (vMx, vMx, Sn + 15))
            mx.append('v_cmp_lt_f32 vcc, 0x41000000, v%d' % vMx)
            sm += [(it, 1, cfg.get('MX_START', 70)) for it in mx]
            dm = []
            if not NO_DMA:
                g0, gs = cfg.get('DMA_START', 66), cfg.get('DMA_STEP', 5)
                for j in range(8):
                    for x, it in enumerate(dma_piece((u + 3) % 4, j)):
                        dm.append((it, g0 + gs * j + (-1 if it.startswith('s_add_u32 m0') else 0)))
            di = si = mi = 0
            last_m0 = -9
            for g in range(128):
                used_ds = False
                while cap[g] > 0:
                    ds_ready = di < len(ds) and ds[di][1] <= g and not used_ds
                    ds_urgent = ds_ready and dl[di] <= g + cfg.get('URG', 0)
                    sm_ready = si < len(sm) and sm[si][2] <= g and sm[si][1] <= cap[g]
                    dm_ready = mi < len(dm) and dm[mi][1] <= g and not (dm[mi][0].startswith('buffer') and (last_m0 == g or (used_ds and cfg.get('DMA_EXCL'))))
                    if ds_urgent:
                        pre[g].append(ds[di][0]); di += 1; cap[g] -= 1; used_ds = True
                    elif sm_ready and sm[si][1] == 2:
                        pre[g].append(sm[si][0]); cap[g] -= 2; si += 1
                    elif dm_ready:
                        if dm[mi][0].startswith('s_add_u32 m0'): last_m0 = g
                        if dm[mi][0].startswith('buffer') and cfg.get('DMA_EXCL'): used_ds = True
                        pre[g].append(dm[mi][0]); mi += 1; cap[g] -= 1
                    elif ds_ready:
                        pre[g].append(ds[di][0]); di += 1; cap[g] -= 1; used_ds = True
                    elif sm_ready:
                        pre[g].append(sm[si][0]); cap[g] -= 1; si += 1
                    else:
                        break
                if g == 62: assert NO_SM or si >= 40, ('softmax not finished in phase A', si)
                if g == BARG - 1: assert mi == len(dm), 'dma not finished'
                if di < len(ds): assert ds[di][2] + 4 > g, ('ds late', di, g, ds[di])
            assert di == len(ds) and si == len(sm), (di, len(ds), si, len(sm))
            if u == 0 and cfg.get('SHOW'):
                for g in range(128):
                    print(g, 'W' if g in waits else ' ', [ (x[1] if len(x) > 1 else 'BAR').split()[0] if isinstance(x, tuple) else x.split()[0] for x in pre[g]])
        for pos in range(128):
            k = pos // 2
            for it in pre[pos]:
                if isinstance(it, tuple) and it[0] == 'bar':
                    a.e('s_waitcnt vmcnt(%d) lgkmcnt(0)' % (0 if NO_DMA else 8)); q.drained()
                    a.e('s_barrier')
                else:
                    emit_item(it)
            if mf[pos] is None: continue
            if pos == 127 and not final:
                head_wait()
            if pos in waits:
                idx = 0
                for k2 in range(k, min(64, k + (2 if final else WG))):
                    assert need[k2] in q.pending, ('not issued', k2, pos)
                    idx = max(idx, q.need([need[k2]]))
                q.wait_for(a, idx)
            assert q.need([need[k]]) <= q.done and need[k] in q.pending, ('uncovered', pos)
            a.e(mf[pos])
            if pos % 2 == 1: q.consume(need[k])

    def rare(u):
        bn = (u + 1) % 2
        a.label('%s_rare%d' % (name, u), reset=True)
        a.e('s_nop 15')
        for qs in range(2):
            rowmax(bn, qs, vMx, vT0)
            a.e('v_max_f32 v%d, 0, v%d' % (vMx, vMx))
            a.e('v_sub_f32 v%d, 0, v%d' % (vT0, vMx))
            a.e('v_exp_f32 v%d, v%d' % (vT0, vT0))
            for kt in range(2):
                for r in range(4):
                    a.e('v_sub_f32 v%d, v%d, v%d' % (Sreg(bn, kt, qs) + r, Sreg(bn, kt, qs) + r, vMx))
            for r in range(4):
                a.e('v_sub_f32 v%d, v%d, v%d' % (NEGM + 4 * qs + r, NEGM + 4 * qs + r, vMx))
            a.e('v_mul_f32 v%d, v%d, v%d' % (vL[qs], vL[qs], vT0))
            for dt in range(32):
                o = Obase(dt, qs)
                if o < 128:
                    for j in range(4): a.e('v_mul_f32 v%d, v%d, v%d' % (128 + o + j, 128 + o + j, vT0))
                else:
                    for j in range(4): a.e('v_accvgpr_read_b32 v%d, a%d' % (P + j, o + j))
                    for j in range(4): a.e('v_mul_f32 v%d, v%d, v%d' % (P + j, P + j, vT0))
                    for j in range(4): a.e('v_accvgpr_write_b32 a%d, v%d' % (o + j, P + j))
        a.e('s_nop 3')
        a.e('s_branch %s_back%d' % (name, u))

    head_wait()
    if STAMP: stamp_mid(a, 76)
    a.raw('.p2align 6')
    a.label('%s_loop' % name)
    a.record = []
    qstate0 = q.state()
    saved = {}
    for u in range(4):
        body(u)
        a.e('s_cbranch_vccnz %s_rare%d' % (name, u))
        a.label('%s_back%d' % (name, u))
        if u in (1, 2):
            a.e('s_cbranch_scc1 %s_final%d' % (name, u + 1))
            saved[u + 1] = (copy.deepcopy(q), list(a.hist))
        assert q.state() == qstate0, (q.state(), qstate0)
    a.e('s_branch %s_loop' % name)
    rec = [x[1] for x in a.record if x[0] == 'ins']
    a.record = None
    viol = check_seq(rec + rec[:40])
    assert not viol, viol
    loop_len = len(rec)

    for u in (2, 3):
        a.label('%s_final%d' % (name, u))
        q.__dict__.update(saved[u][0].__dict__); a.hist = saved[u][1]
        q.pending = set()
        body(u, final=True)
        if u == 2:
            a.e('s_branch %s_epi' % name)
    a.label('%s_epi' % name)
    if STAMP: stamp_mid(a, 77)
    a.e('s_waitcnt vmcnt(0)')
    a.e('s_cmp_eq_u32 s%d, 0' % sValid)
    a.e('s_cbranch_scc1 %s_end' % name)
    a.e('s_nop 15')
    for qs in range(2):
        l = vL[qs]
        a.e('v_mov_b32 v%d, v%d' % (vT0, l))
        a.e('v_permlane16_swap_b32 v%d, v%d' % (vT0, l))
        a.e('v_add_f32 v%d, v%d, v%d' % (l, l, vT0))
        a.e('v_mov_b32 v%d, v%d' % (vT0, l))
        a.e('v_permlane32_swap_b32 v%d, v%d' % (vT0, l))
        a.e('v_add_f32 v%d, v%d, v%d' % (l, l, vT0))
    a.e('v_cmp_gt_u32 vcc, 0x100, v%d' % vLane16)
    a.e('v_cndmask_b32 v0, v%d, v%d, vcc' % (NEGM + 4, NEGM))
    a.e('v_cndmask_b32 v1, v%d, v%d, vcc' % (vL1, vL0))
    a.e('v_sub_f32 v0, 0, v0')
    a.e('v_lshrrev_b32 v2, 1, v%d' % vLane16)
    a.e('s_mov_b64 exec, 0xffffffff')
    a.e('buffer_store_dwordx2 v[0:1], v2, %s, s%d offen' % (srd, sMl))
    a.e('s_mov_b64 exec, -1')
    t = 0
    for D in range(16):
        for qs in range(2):
            f = D * 2 + qs
            tmp = RING + 4 * (t % 8); t += 1
            srcs = []
            for e in range(2):
                o = Obase(2 * D + e, qs)
                if o < 128:
                    srcs.append(128 + o)
                else:
                    s_ = 8 + 8 * (f % 3) + 4 * e
                    for j in range(4): a.e('v_accvgpr_read_b32 v%d, a%d' % (s_ + j, o + j))
                    srcs.append(s_)
            for e in range(2):
                for j in range(2):
                    a.e('v_cvt_pk_bf16_f32 v%d, v%d, v%d' % (tmp + 2 * e + j, srcs[e] + 2 * j, srcs[e] + 2 * j + 1))
            if f and f % 4 == 0:
                a.e('s_add_u32 s%d, s%d, 0x1000' % (sOut, sOut))
            a.e('buffer_store_dwordx4 %s, v%d, %s, s%d offen offset:%d' % (vr(tmp, 4), vLane16, srd, sOut, (f % 4) * 1024))
    if STAMP: stamp_end(a, sWave, '%s_end' % name)
    a.label('%s_end' % name)
    a.e('s_endpgm')
    for u in range(4):
        rare(u)
    return dict(name=name, vgpr=512, sgpr=80, accum=256, grid=256, block=256, lds=131072, loop_len=loop_len)
```

```python
import sys, json
from asmlib import *
from layout import *

HEADER = """; Kernarg layout for this problem (88 bytes, ptrs only, base s[0:1]):
"""

def build(kernels):
    a = Asm()
    infos = []
    for f, kw in kernels:
        r = f(a, **kw)
        if r is not None: infos.append(r)
    out = HEADER
    for k in infos:
        for _ in range(k.get('repeat', 1)):
            out += '; @launch kernel=%s grid=(%d,1,1) block=(%d,1,1) lds=%d\n' % (k['name'], k['grid'], k['block'], k['lds'])
    out += '.amdgcn_target "amdgcn-amd-amdhsa--gfx950"\n.text\n'
    out += a.text()
    out += '.section .rodata,"a"\n'
    for k in infos:
        out += '.p2align 6\n' + kernel_desc(k['name'], k['vgpr'], k['sgpr'], k['accum'])
    return out, infos, a
```

```python
from asmlib import *
from layout import *
MF = 'v_mfma_f32_16x16x32_bf16'

def make_srd(a, d, ptr, nbytes):
    a.e('s_mov_b32 s%d, s%d' % (d, ptr))
    a.e('s_and_b32 s%d, s%d, 0xffff' % (d + 1, ptr + 1))
    a.e('s_mov_b32 s%d, %d' % (d + 2, nbytes))
    a.e('s_mov_b32 s%d, 0x00020000' % (d + 3))

class VmQ:
    def __init__(self): self.n = 0; self.done = 0; self.where = {}
    def issue(self, key=None):
        self.n += 1
        if key is not None: self.where[key] = self.n
    def wait(self, a, key):
        idx = self.where[key]
        if idx <= self.done: return
        N = min(self.n - idx, 63)
        a.e('s_waitcnt vmcnt(%d)' % N); self.done = self.n - N
    def wait_all(self, a):
        if self.done < self.n:
            a.e('s_waitcnt vmcnt(0)'); self.done = self.n

class LgQ(VmQ):
    def wait(self, a, key):
        idx = self.where[key]
        if idx <= self.done: return
        N = min(self.n - idx, 15)
        a.e('s_waitcnt lgkmcnt(%d)' % N); self.done = self.n - N
    def wait_all(self, a):
        if self.done < self.n:
            a.e('s_waitcnt lgkmcnt(0)'); self.done = self.n

def quad_reduce(a, op, reg, tmp):
    a.e('v_mov_b32 v%d, v%d' % (tmp, reg))
    a.e('v_permlane16_swap_b32 v%d, v%d' % (tmp, reg))
    a.e('%s v%d, v%d, v%d' % (op, reg, reg, tmp))
    a.e('v_mov_b32 v%d, v%d' % (tmp, reg))
    a.e('v_permlane32_swap_b32 v%d, v%d' % (tmp, reg))
    a.e('%s v%d, v%d, v%d' % (op, reg, reg, tmp))

import struct
def f2u(x): return struct.unpack('<I', struct.pack('<f', x))[0]
def fhex(x): return '0x%08x' % f2u(x)
```

```python
from common import *
from prep import chan_combine
from attn16 import stamp_begin, stamp_mid, stamp_end

def gen_conv(a, name, mode, cfg=None):
    cfg = cfg or {}
    STAMP = cfg.get('STAMP', False)
    R = 32
    NIN = R + 30
    C = 512 if mode == 'g' else 1024
    pitch = 2 * C
    nwg = 250 * (C // 512)
    W = 0
    ACC = 64
    IN = 128
    UR = 192
    T = 224
    vOff, vLds = T, T + 1
    VAL = T + 2
    STP = T + 6
    sWave = 3
    kernel_begin(a, name)
    a.e('s_cmp_ge_u32 s2, %d' % nwg)
    a.e('s_cbranch_scc1 %s_end' % name)
    a.e('s_load_dwordx2 s[4:5], s[0:1], 80')
    a.e('s_load_dwordx2 s[6:7], s[0:1], %d' % (32 if mode == 'g' else 48))
    if STAMP: stamp_begin(a)
    a.e('v_lshrrev_b32 v1, 6, v0')
    a.e('v_and_b32 v%d, 63, v0' % (T + 20))
    a.e('v_readfirstlane_b32 s%d, v1' % sWave)
    a.e('v_lshlrev_b32 v%d, 2, v0' % vOff)
    if mode == 'm':
        a.e('s_lshr_b32 s24, s2, 1')
        a.e('s_and_b32 s25, s2, 1')
        a.e('s_lshl_b32 s25, s25, 10')
        a.e('v_add_u32 v%d, s25, v%d' % (vOff, vOff))
    else:
        a.e('s_mov_b32 s24, s2')
    a.e('s_cmp_eq_u32 s24, 0');   a.e('s_cselect_b32 s26, 0, %d' % WS_BYTES)
    a.e('s_cmp_eq_u32 s24, 125'); a.e('s_cselect_b32 s26, 0, s26')
    a.e('s_cmp_eq_u32 s24, 124'); a.e('s_cselect_b32 s27, 0, %d' % WS_BYTES)
    a.e('s_cmp_eq_u32 s24, 249'); a.e('s_cselect_b32 s27, 0, s27')
    a.e('s_waitcnt lgkmcnt(0)')
    make_srd(a, 8, 4, WS_BYTES)
    make_srd(a, 12, 4, 0); a.e('s_mov_b32 s14, s26')
    make_srd(a, 16, 4, 0); a.e('s_mov_b32 s18, s27')
    make_srd(a, 20, 6, 31 * pitch)
    vq = VmQ()
    src = G_OFF if mode == 'g' else M_OFF
    if mode == 'g':
        a.e('s_lshl_b32 s28, s24, 11')
        a.e('s_add_u32 s28, s28, %d' % (GST_OFF - 15 * 64))
        a.e('v_lshlrev_b32 v%d, 6, v%d' % (T + 21, T + 20))
        for p in range(4):
            a.e('buffer_load_dwordx4 %s, v%d, s[8:11], s28 offen offset:%d' % (vr(ACC + 4 * p, 4), T + 21, 16 * p))
            vq.issue('st')
    per = 4096 // pitch
    a.e('s_mov_b32 s28, 0')
    for i in range(31):
        if i and i % per == 0: a.e('s_add_u32 s28, s28, 4096')
        a.e('buffer_load_dword v%d, v%d, s[20:23], s28 offen offset:%d' % (UR + i, vOff, (i % per) * pitch))
        vq.issue('w')
    a.e('s_mul_i32 s29, s24, %d' % (32 * pitch))
    a.e('s_add_u32 s28, s29, %d' % (src - 15 * pitch))
    def inload(j):
        if j and j % per == 0: a.e('s_add_u32 s28, s28, 4096')
        srd = 's[12:15]' if j < 15 else ('s[16:19]' if j >= 15 + R else 's[8:11]')
        a.e('buffer_load_dword v%d, v%d, %s, s28 offen offset:%d' % (IN + j, vOff, srd, (j % per) * pitch))
        vq.issue(('in', j))
    nfirst = 26
    for j in range(nfirst): inload(j)
    if mode == 'g':
        vq.wait(a, 'st')
        chan_combine(a, ACC, 8, 64, VAL, VAL + 1, VAL + 2)
        a.e('s_cmp_eq_u32 s26, 0'); a.e('s_cselect_b32 s30, 15, 0')
        a.e('s_cmp_eq_u32 s27, 0'); a.e('s_cselect_b32 s31, %d, 64' % (15 + R))
        a.e('v_cmp_le_u32 vcc, s30, v%d' % (T + 20))
        a.e('v_cmp_gt_u32 s[36:37], s31, v%d' % (T + 20))
        a.e('s_and_b64 vcc, vcc, s[36:37]')
        a.e('v_cndmask_b32 v%d, 0, v%d, vcc' % (VAL, VAL))
        a.e('v_cndmask_b32 v%d, 0, v%d, vcc' % (VAL + 1, VAL + 1))
        a.e('s_lshl_b32 s30, s%d, 9' % sWave)
        a.e('v_lshlrev_b32 v%d, 3, v%d' % (T + 21, T + 20))
        a.e('v_add_u32 v%d, s30, v%d' % (T + 21, T + 21))
        a.e('ds_write_b64 v%d, %s' % (T + 21, vr(VAL, 2)))
        a.e('v_mov_b32 v%d, s30' % vLds)
        a.e('s_waitcnt lgkmcnt(0)')
    vq.wait(a, 'w')
    for i in range(31):
        a.e('v_lshlrev_b32 v%d, 16, v%d' % (W + 2 * i, UR + i))
        a.e('v_and_b32 v%d, 0xffff0000, v%d' % (W + 2 * i + 1, UR + i))
    if mode == 'm':
        a.e('v_add_f32 v%d, 1.0, v%d' % (W + 30, W + 30))
        a.e('v_add_f32 v%d, 1.0, v%d' % (W + 31, W + 31))
    for j in range(nfirst, NIN): inload(j)
    if mode == 'g':
        a.e('s_add_u32 s28, s29, %d' % U_OFF)
    lq = LgQ()
    def stread(j):
        if mode == 'g' and j < NIN:
            a.e('ds_read_b64 %s, v%d offset:%d' % (vr(STP + 2 * (j % 4), 2), vLds, 8 * j)); lq.issue(j)
    for j in range(3): stread(j)
    dst = UG_OFF if mode == 'g' else MC_OFF
    a.e('s_add_u32 s30, s29, %d' % dst)
    for j in range(NIN):
        if mode == 'g' and j < R:
            if j and j % per == 0: a.e('s_add_u32 s28, s28, 4096')
            a.e('buffer_load_dword v%d, v%d, s[8:11], s28 offen offset:%d' % (UR + j, vOff, (j % per) * pitch))
            vq.issue(('u', j))
        vq.wait(a, ('in', j))
        v = VAL + 2 * (j % 2)
        a.e('v_lshlrev_b32 v%d, 16, v%d' % (v, IN + j))
        a.e('v_and_b32 v%d, 0xffff0000, v%d' % (v + 1, IN + j))
        if mode == 'g':
            lq.wait(a, j)
            st = vr(STP + 2 * (j % 4), 2)
            a.e('v_pk_fma_f32 %s, %s, %s, %s op_sel:[0,0,1] op_sel_hi:[1,0,1]' % (vr(v, 2), vr(v, 2), st, st))
            stread(j + 3)
        for o in range(max(0, j - 30), min(R - 1, j) + 1):
            tap = j - o
            if tap == 0:
                a.e('v_pk_mul_f32 %s, %s, %s' % (vr(ACC + 2 * o, 2), vr(W, 2), vr(v, 2)))
            else:
                a.e('v_pk_fma_f32 %s, %s, %s, %s' % (vr(ACC + 2 * o, 2), vr(W + 2 * tap, 2), vr(v, 2), vr(ACC + 2 * o, 2)))
        o = j - 30
        if o >= 0:
            r = ACC + 2 * o
            if mode == 'g':
                vq.wait(a, ('u', o))
                t = T + 16
                a.e('v_lshlrev_b32 v%d, 16, v%d' % (t, UR + o))
                a.e('v_and_b32 v%d, 0xffff0000, v%d' % (t + 1, UR + o))
                a.e('v_pk_mul_f32 %s, %s, %s' % (vr(r, 2), vr(r, 2), vr(t, 2)))
            a.e('v_cvt_pk_bf16_f32 v%d, v%d, v%d' % (r, r, r + 1))
            if o and o % per == 0: a.e('s_add_u32 s30, s30, 4096')
            a.e('buffer_store_dword v%d, v%d, s[8:11], s30 offen offset:%d' % (r, vOff, (o % per) * pitch))
            vq.issue()
    if STAMP:
        a.e('s_mov_b32 s76, 0'); a.e('s_mov_b32 s77, 0')
        stamp_end(a, sWave, '%s_end' % name)
    a.label('%s_end' % name)
    a.e('s_endpgm')
    return dict(name=name, vgpr=248, sgpr=80, accum=248, grid=nwg, block=256, lds=2048 if mode == 'g' else 0)
```

```python
import math
from common import *
from attn16 import stamp_begin, stamp_mid, stamp_end

def gen_gemm(a, name, mode, cfg=None):
    cfg = cfg or {}
    STAMP = cfg.get('STAMP', False)
    KS = 32 if mode == 'g3' else 16
    NTW = {'g1': 12, 'g2': 8, 'g3': 4}[mode]
    NW = KS * NTW
    RW = cfg.get('RW', 48)
    PW = cfg.get('PW', 40)
    TB = 4 * RW
    ACC = 0
    T0 = 16 * NTW
    if mode == 'g2': T0 = 208
    vLane16, vSrc, vQ4, vI, vRow = T0, T0 + 1, T0 + 2, T0 + 3, T0 + 4
    TMP = T0 + 8
    sWave, sT, sCG, sW, sA, sB, sC = 3, 6, 7, 12, 13, 14, 15
    ws = 's[8:11]'
    def acc(t, ts): return ACC + (t * 4 + ts) * 4

    kernel_begin(a, name)
    a.e('s_cmp_ge_u32 s2, 250')
    a.e('s_cbranch_scc1 %s_end' % name)
    a.e('s_load_dwordx2 s[4:5], s[0:1], 80')
    if mode == 'g3':
        a.e('s_load_dwordx2 s[16:17], s[0:1], 0')
        a.e('s_load_dwordx2 s[18:19], s[0:1], 64')
    if STAMP: stamp_begin(a)
    a.e('v_lshrrev_b32 v1, 6, v0')
    a.e('v_and_b32 v2, 63, v0')
    a.e('v_readfirstlane_b32 s%d, v1' % sWave)
    a.e('v_lshlrev_b32 v%d, 4, v2' % vLane16)
    a.e('v_lshrrev_b32 v%d, 4, v2' % vQ4)
    a.e('v_and_b32 v%d, 15, v2' % vI)
    a.e('s_cmp_ge_u32 s2, 125')
    a.e('s_cselect_b32 s%d, 1, 0' % sCG)
    a.e('s_mul_i32 s%d, s%d, 125' % (sT, sCG))
    a.e('s_sub_u32 s%d, s2, s%d' % (sT, sT))
    a.e('s_lshl_b32 s%d, s%d, 2' % (sW, sCG))
    a.e('s_add_u32 s%d, s%d, s%d' % (sW, sW, sWave))
    a.e('s_mov_b32 s46, s%d' % sW)
    a.e('s_mul_i32 s%d, s%d, %d' % (sW, sW, NW * 1024))
    a.e('s_add_u32 s%d, s%d, %d' % (sW, sW, {'g1': W1_OFF, 'g2': W2_OFF, 'g3': W3_OFF}[mode]))
    a.e('s_waitcnt lgkmcnt(0)')
    make_srd(a, 8, 4, WS_BYTES)
    vq = VmQ()
    wn = [0]
    def wload():
        n = wn[0]
        if n >= NW: return
        if n and n % 4 == 0: a.e('s_add_u32 s%d, s%d, 0x1000' % (sW, sW))
        a.e('buffer_load_dwordx4 %s, v%d, %s, s%d offen offset:%d' % (ar(4 * (n % RW), 4), vLane16, ws, sW, (n % 4) * 1024))
        vq.issue(('w', n)); wn[0] += 1

    def dma_tokens(kstride, tstride_list):
        a.e('s_mul_i32 s%d, s%d, %d' % (sB, sWave, KS * 1024))
        for k in range(KS // 4):
            for ts in range(4):
                a.e('s_add_u32 m0, s%d, %d' % (sB, (k * 4 + ts) * 1024))
                a.e('s_add_u32 s%d, s%d, %d' % (sC, sA, k * kstride + tstride_list[ts]))
                a.e('buffer_load_dwordx4 v%d, %s, s%d offen lds' % (vSrc, ws, sC))
                vq.issue('tok')
    def rowadr(dst, pitch):
        a.e('v_mul_u32_u24 v%d, %d, v%d' % (dst, pitch, vI))
        a.e('v_lshl_add_u32 v%d, v%d, 4, v%d' % (dst, vQ4, dst))

    if mode == 'g1':
        a.e('v_and_b32 v%d, 1, v%d' % (vSrc, vQ4))
        a.e('v_mul_u32_u24 v%d, 12, v%d' % (vSrc, vSrc))
        a.e('v_xor_b32 v%d, v%d, v%d' % (vSrc, vSrc, vI))
        a.e('v_lshlrev_b32 v%d, 4, v%d' % (vSrc, vSrc))
        a.e('v_lshl_add_u32 v%d, v%d, 9, v%d' % (vSrc, vQ4, vSrc))
        a.e('s_lshl_b32 s%d, s%d, 16' % (sA, sT))
        a.e('s_lshl_b32 s%d, s%d, 13' % (sB, sWave))
        a.e('s_add_u32 s%d, s%d, s%d' % (sA, sA, sB))
        if XF_OFF: a.e('s_add_u32 s%d, s%d, %d' % (sA, sA, XF_OFF))
        dma_tokens(2048, [0, 256, 32768, 32768 + 256])
        rowadr(vRow, 1024)
        for _ in range(PW): wload()
        vq.wait(a, 'tok')
    elif mode == 'g3':
        rowadr(vSrc, 2048)
        a.e('s_lshl_b32 s%d, s%d, 17' % (sA, sT))
        a.e('s_lshl_b32 s%d, s%d, 9' % (sB, sWave))
        a.e('s_add_u32 s%d, s%d, s%d' % (sA, sA, sB))
        a.e('s_add_u32 s%d, s%d, %d' % (sA, sA, MC_OFF))
        dma_tokens(64, [ts * 16 * 2048 for ts in range(4)])
        rowadr(vRow, 1024)
        make_srd(a, 20, 16, 8192000)
        make_srd(a, 24, 18, 8192000)
        for _ in range(min(PW, 30)): wload()
        vq.wait(a, 'tok')
    else:
        rowadr(vRow, 2048)
        a.e('s_cmp_eq_u32 s%d, 0' % sCG)
        a.e('s_cbranch_scc1 %s_glob' % name)
        rowadr(vSrc, 1024)
        a.e('s_lshl_b32 s%d, s%d, 16' % (sA, sT))
        a.e('s_lshl_b32 s%d, s%d, 8' % (sB, sWave))
        a.e('s_add_u32 s%d, s%d, s%d' % (sA, sA, sB))
        a.e('s_add_u32 s%d, s%d, %d' % (sA, sA, UG_OFF))
        dma_tokens(64, [ts * 16 * 1024 for ts in range(4)])
        sv = (wn[0], dict(vq.__dict__))
        PW2 = PW
        for _ in range(PW2): wload()
        vq.wait(a, 'tok')
        a.e('s_branch %s_main' % name)
        end_state = (wn[0], vq.n - vq.done)
        a.label('%s_glob' % name, reset=True)
        wn[0] = 0; vq.__init__()
        MLR = 160
        a.e('v_lshlrev_b32 v%d, 3, v%d' % (vSrc, vI))
        a.e('s_lshl_b32 s%d, s%d, 9' % (sA, sT))
        a.e('s_add_u32 s%d, s%d, %d' % (sA, sA, ML_OFF))
        for s in range(4):
            for ts in range(4):
                a.e('buffer_load_dwordx2 %s, v%d, %s, s%d offen offset:%d' % (vr(MLR + (ts * 4 + s) * 2, 2), vSrc, ws, sA, ts * 128))
                vq.issue('ml')
            if s < 3: a.e('s_add_u32 s%d, s%d, 64000' % (sA, sA))
        a.e('s_lshl_b32 s%d, s%d, 16' % (sA, sT))
        a.e('s_lshl_b32 s%d, s%d, 13' % (sB, sWave))
        a.e('s_add_u32 s%d, s%d, s%d' % (sA, sA, sB))
        a.e('s_add_u32 s%d, s%d, %d' % (sA, sA, OP_OFF))
        def preg(ts, k, s): return ((ts % 2) * 16 + k * 4 + s) * 4
        def pload(ts):
            for k in range(4):
                for s in range(4):
                    off = s * 250 * 32768 + (ts >> 1) * 32768 + k * 2048 + (ts & 1) * 1024
                    a.e('s_add_u32 s%d, s%d, %d' % (sC, sA, off))
                    a.e('buffer_load_dwordx4 %s, v%d, %s, s%d offen' % (vr(preg(ts, k, s), 4), vLane16, ws, sC))
                    vq.issue(('p', ts, k))
        pload(0); pload(1)
        vq.wait(a, 'ml')
        WT = 192
        for ts in range(4):
            m = [MLR + (ts * 4 + s) * 2 for s in range(4)]
            t = TMP
            a.e('v_max3_f32 v%d, v%d, v%d, v%d' % (t, m[0], m[1], m[2]))
            a.e('v_max_f32 v%d, v%d, v%d' % (t, t, m[3]))
            for s in range(4):
                a.e('v_sub_f32 v%d, v%d, v%d' % (WT + ts * 4 + s, m[s], t))
            for s in range(4):
                a.e('v_exp_f32 v%d, v%d' % (WT + ts * 4 + s, WT + ts * 4 + s))
            a.e('v_mul_f32 v%d, v%d, v%d' % (t, WT + ts * 4, m[0] + 1))
            for s in range(1, 4):
                a.e('v_fmac_f32 v%d, v%d, v%d' % (t, WT + ts * 4 + s, m[s] + 1))
            a.e('v_rcp_f32 v%d, v%d' % (t, t))
            for s in range(4):
                a.e('v_mul_f32 v%d, v%d, v%d' % (WT + ts * 4 + s, WT + ts * 4 + s, t))
        a.e('s_lshl_b32 s%d, s%d, 14' % (sB, sWave))
        a.e('v_add_u32 v%d, s%d, v%d' % (vSrc, sB, vLane16))
        CA, CU = 128, 136
        for ts in range(4):
            for k in range(4):
                vq.wait(a, ('p', ts, k))
                for s in range(4):
                    p = preg(ts, k, s); w = WT + ts * 4 + s
                    wp = vr(w & ~1, 2); sel = w & 1
                    for d in range(4):
                        a.e('v_lshlrev_b32 v%d, 16, v%d' % (CU + 2 * d, p + d))
                        a.e('v_and_b32 v%d, 0xffff0000, v%d' % (CU + 2 * d + 1, p + d))
                    for d in range(4):
                        if s == 0:
                            a.e('v_pk_mul_f32 %s, %s, %s op_sel:[0,%d] op_sel_hi:[1,%d]' % (vr(CA + 2 * d, 2), vr(CU + 2 * d, 2), wp, sel, sel))
                        else:
                            a.e('v_pk_fma_f32 %s, %s, %s, %s op_sel:[0,%d,0] op_sel_hi:[1,%d,1]' % (vr(CA + 2 * d, 2), vr(CU + 2 * d, 2), wp, vr(CA + 2 * d, 2), sel, sel))
                o = 144 + 4 * k
                for d in range(4):
                    a.e('v_cvt_pk_bf16_f32 v%d, v%d, v%d' % (o + d, CA + 2 * d, CA + 2 * d + 1))
                a.e('ds_write_b128 v%d, %s offset:%d' % (vSrc, vr(o, 4), (k * 4 + ts) * 1024))
            if ts < 2: pload(ts + 2)
            if ts == 1:
                for _ in range(PW2 - 12): wload()
            if ts == 2:
                for _ in range(12): wload()
        a.e('s_waitcnt lgkmcnt(0)')
        assert wn[0] == end_state[0]
        vq.done = vq.n - end_state[1]
        a.label('%s_main' % name, reset=True)
    a.e('s_barrier')
    if STAMP: stamp_mid(a, 76)

    lq = LgQ()
    vL2 = T0 + 5
    a.e('v_add_u32 v%d, 0x10000, v%d' % (vL2, vLane16))
    def tread(ks, ts):
        off = (ks * 4 + ts) * 1024
        a.e('ds_read_b128 %s, v%d offset:%d' % (ar(TB + ((ks % 2) * 4 + ts) * 4, 4), vLane16 if off < 65536 else vL2, off % 65536))
        lq.issue((ks, ts))
    for ts in range(4): tread(0, ts)
    XR = 128
    for ks in range(KS):
        lq.wait(a, (ks, 3))
        cnt = 0
        for t in range(NTW):
            n = ks * NTW + t
            if t % 4 == 0:
                vq.wait(a, ('w', min(n + 3, NW - 1)))
            order = range(4) if t % 2 == 0 else range(3, -1, -1)
            for ts in order:
                a.e('%s %s, %s, %s, %s' % (MF, vr(acc(t, ts), 4), ar(4 * (n % RW), 4), ar(TB + ((ks % 2) * 4 + ts) * 4, 4), '0' if ks == 0 else vr(acc(t, ts), 4)))
                cnt += 1
                if cnt in (2, 4, 6, 8) and ks + 1 < KS: tread(ks + 1, cnt // 2 - 1)
            while wn[0] < NW and wn[0] <= n + PW and wn[0] - RW < n + 1 and vq.n - vq.done < 60:
                wload()
                break
        if mode == 'g3' and ks == KS - 6:
            a.e('s_lshl_b32 s%d, s%d, 16' % (sA, sT))
            a.e('s_lshl_b32 s%d, s46, 7' % sB)
            a.e('s_add_u32 s%d, s%d, s%d' % (sA, sA, sB))
            for ts in range(4):
                a.e('s_add_u32 s%d, s%d, %d' % (sC, sA, ts * 16384))
                for dd in range(2):
                    a.e('buffer_load_dwordx4 %s, v%d, s[20:23], s%d offen offset:%d' % (vr(XR + (ts * 2 + dd) * 4, 4), vRow, sC, dd * 64))
                    vq.issue(('x', ts, dd))
    assert wn[0] == NW
    if STAMP: stamp_mid(a, 77)

    PK = TMP
    if PK % 2: PK += 1
    pk = [0]
    def pack(t0, ts):
        o = PK + 4 * (pk[0] % 4); pk[0] += 1
        for e in range(2):
            for j in range(2):
                r = acc(t0 + e, ts) + 2 * j
                a.e('v_cvt_pk_bf16_f32 v%d, v%d, v%d' % (o + 2 * e + j, r, r + 1))
        return o
    if mode == 'g2':
        a.e('s_lshl_b32 s%d, s%d, 17' % (sA, sT))
        a.e('s_lshl_b32 s%d, s46, 8' % sB)
        a.e('s_add_u32 s%d, s%d, s%d' % (sA, sA, sB))
        a.e('s_add_u32 s%d, s%d, %d' % (sA, sA, M_OFF))
        for ts in range(4):
            for dd in range(4):
                o = pack(2 * dd, ts)
                a.e('buffer_store_dwordx4 %s, v%d, %s, s%d offen offset:%d' % (vr(o, 4), vRow, ws, sA, dd * 64))
            if ts < 3: a.e('s_add_u32 s%d, s%d, 0x8000' % (sA, sA))
    elif mode == 'g3':
        U = PK + 16
        for ts in range(4):
            a.e('s_add_u32 s%d, s%d, %d' % (sC, sA, ts * 16384))
            for dd in range(2):
                vq.wait(a, ('x', ts, dd))
                x = XR + (ts * 2 + dd) * 4
                for e in range(2):
                    for j in range(2):
                        r = acc(2 * dd + e, ts) + 2 * j
                        a.e('v_lshlrev_b32 v%d, 16, v%d' % (U, x + 2 * e + j))
                        a.e('v_and_b32 v%d, 0xffff0000, v%d' % (U + 1, x + 2 * e + j))
                        a.e('v_add_f32 v%d, v%d, v%d' % (r, r, U))
                        a.e('v_add_f32 v%d, v%d, v%d' % (r + 1, r + 1, U + 1))
                o = pack(2 * dd, ts)
                a.e('buffer_store_dwordx4 %s, v%d, s[24:27], s%d offen offset:%d' % (vr(o, 4), vRow, sC, dd * 64))
                vq.issue()
    else:
        a.e('s_lshl_b32 s%d, s%d, 16' % (sA, sT))
        a.e('s_lshl_b32 s%d, s46, 12' % sB)
        a.e('s_add_u32 s%d, s%d, s%d' % (sB, sA, sB))
        a.e('s_add_u32 s%d, s%d, %d' % (sB, sB, QF_OFF))
        a.e('s_add_u32 s%d, s%d, 0x8000' % (sC, sB))
        for ts in range(4):
            for dd in range(2):
                o = pack(2 * dd, ts)
                a.e('buffer_store_dwordx4 %s, v%d, %s, s%d offen offset:%d' % (vr(o, 4), vLane16, ws, sB if ts < 2 else sC, dd * 2048 + (ts & 1) * 1024))
        c1 = -2.0 * math.log2(math.e) * math.sqrt(2.0 / math.pi); c2 = c1 * 0.044715
        a.e('s_mov_b32 s40, %s' % fhex(c2))
        G = PK + 16
        a.e('v_mov_b32 v%d, %s' % (G + 8, fhex(c1)))
        def gelu8(regs):
            for j, r in enumerate(regs): a.e('v_mul_f32 v%d, v%d, v%d' % (G + j, r, r))
            for j, r in enumerate(regs): a.e('v_fma_f32 v%d, v%d, s40, v%d' % (G + j, G + j, G + 8))
            for j, r in enumerate(regs): a.e('v_mul_f32 v%d, v%d, v%d' % (G + j, G + j, r))
            for j, r in enumerate(regs): a.e('v_exp_f32 v%d, v%d' % (G + j, G + j))
            for j, r in enumerate(regs): a.e('v_add_f32 v%d, 1.0, v%d' % (G + j, G + j))
            for j, r in enumerate(regs): a.e('v_rcp_f32 v%d, v%d' % (G + j, G + j))
            for j, r in enumerate(regs): a.e('v_mul_f32 v%d, v%d, v%d' % (r, r, G + j))
        a.e('s_lshl_b32 s%d, s46, 7' % sB)
        a.e('s_add_u32 s%d, s%d, s%d' % (sA, sA, sB))
        a.e('s_lshl_b32 s41, s%d, 12' % sT)
        a.e('s_lshl_b32 s%d, s46, 3' % sB)
        a.e('s_add_u32 s41, s41, s%d' % sB)
        a.e('s_add_u32 s41, s41, %d' % GST_OFF)
        vSt = G + 9
        a.e('v_lshlrev_b32 v%d, 6, v%d' % (vSt, vI))
        ST = G + 10
        assert ST % 2 == 0
        for part, off in ((1, U_OFF), (2, G_OFF)):
            for ts in range(4):
                a.e('s_add_u32 s%d, s%d, %d' % (sC, sA, off + ts * 16384))
                allr = []
                for dd in range(2):
                    regs = [acc(4 * part + 2 * dd + e, ts) + j for e in range(2) for j in range(4)]
                    allr += regs
                    gelu8(regs)
                    o = pack(4 * part + 2 * dd, ts)
                    a.e('buffer_store_dwordx4 %s, v%d, %s, s%d offen offset:%d' % (vr(o, 4), vRow, ws, sC, dd * 64))
                if part == 2:
                    a.e('v_add_f32 v%d, v%d, v%d' % (ST, allr[0], allr[1]))
                    for r in allr[2:]: a.e('v_add_f32 v%d, v%d, v%d' % (ST, ST, r))
                    quad_reduce(a, 'v_add_f32', ST, ST + 2)
                    a.e('v_mul_f32 v%d, %s, v%d' % (ST, fhex(1.0 / 64), ST))
                    for j, r in enumerate(allr):
                        a.e('v_sub_f32 v%d, v%d, v%d' % (r, r, ST))
                    a.e('v_mul_f32 v%d, v%d, v%d' % (ST + 1, allr[0], allr[0]))
                    for r in allr[1:]: a.e('v_fmac_f32 v%d, v%d, v%d' % (ST + 1, r, r))
                    quad_reduce(a, 'v_add_f32', ST + 1, ST + 2)
                    a.e('s_mov_b64 exec, 0xffff')
                    a.e('buffer_store_dwordx2 %s, v%d, %s, s41 offen offset:%d' % (vr(ST, 2), vSt, ws, ts * 1024))
                    a.e('s_mov_b64 exec, -1')
    if STAMP: stamp_end(a, sWave, '%s_end' % name)
    a.label('%s_end' % name)
    a.e('s_endpgm')
    return dict(name=name, vgpr=256 + TB + 32, sgpr=80, accum=256, grid=250, block=256, lds=KS * 4096)
```

```python
MB = 1 << 20
WS_BYTES = 268435456
XF_OFF = 0
QF_OFF = 8 * MB
U_OFF = 16 * MB
G_OFF = 24 * MB
UG_OFF = 32 * MB
OP_OFF = 40 * MB
ML_OFF = 72 * MB
GST_OFF = 73 * MB
M_OFF = 76 * MB
MC_OFF = 92 * MB
W1_OFF = 108 * MB
W2_OFF = 110 * MB
W3_OFF = 112 * MB
```

```python
import math
from common import *

N_LN, N_M, N_VO, N_RL = 250, 128, 64, 80

def nperm_lane(a, dst, vi, e_sgpr_or_const):
    pass

def gen_prep(a, name='prep_kernel', cfg=None):
    cfg = cfg or {}
    total = N_LN + N_M + N_VO + N_RL
    kernel_begin(a, name)
    a.e('s_cmp_ge_u32 s2, %d' % total)
    a.e('s_cbranch_scc1 %s_end' % name)
    a.e('s_load_dwordx16 s[16:31], s[0:1], 0')
    a.e('s_load_dwordx2 s[4:5], s[0:1], 80')
    a.e('v_lshrrev_b32 v1, 6, v0')
    a.e('v_and_b32 v2, 63, v0')
    a.e('v_readfirstlane_b32 s3, v1')
    a.e('v_lshlrev_b32 v3, 4, v2')
    a.e('v_lshrrev_b32 v4, 4, v2')
    a.e('v_and_b32 v5, 15, v2')
    a.e('s_waitcnt lgkmcnt(0)')
    make_srd(a, 8, 4, WS_BYTES)
    ws = 's[8:11]'
    a.e('s_cmp_lt_u32 s2, %d' % N_M)
    a.e('s_cbranch_scc1 %s_m' % name)
    a.e('s_cmp_lt_u32 s2, %d' % (N_M + N_VO))
    a.e('s_cbranch_scc1 %s_vo' % name)
    a.e('s_cmp_lt_u32 s2, %d' % (N_M + N_VO + N_RL))
    a.e('s_cbranch_scc1 %s_rl' % name)

    a.e('s_sub_u32 s6, s2, %d' % (N_M + N_VO + N_RL))
    make_srd(a, 12, 16, 8192000)
    a.e('v_lshrrev_b32 v6, 5, v2')
    a.e('v_mul_u32_u24 v7, 12, v6')
    a.e('v_and_b32 v8, 31, v2')
    a.e('v_xor_b32 v7, v7, v8')
    a.e('v_lshlrev_b32 v8, 10, v7')
    a.e('v_lshl_add_u32 v8, v6, 4, v8')
    a.e('s_lshl_b32 s7, s6, 15')
    a.e('s_lshl_b32 s32, s3, 8')
    a.e('s_add_u32 s33, s7, s32')
    for j in range(8):
        a.e('buffer_load_dwordx4 %s, v8, s[12:15], s33 offen offset:%d' % (vr(16 + 4 * j, 4), 32 * j))
    a.e('s_lshl_b32 s34, s3, 9')
    a.e('v_lshlrev_b32 v9, 3, v7')
    a.e('v_lshl_add_u32 v10, v6, 8, v9')
    a.e('v_add_u32 v10, s34, v10')
    X = 64
    for j in range(8):
        a.e('s_waitcnt vmcnt(%d)' % (7 - j))
        for d in range(4):
            a.e('v_lshlrev_b32 v%d, 16, v%d' % (X + 8 * j + 2 * d, 16 + 4 * j + d))
            a.e('v_and_b32 v%d, 0xffff0000, v%d' % (X + 8 * j + 2 * d + 1, 16 + 4 * j + d))
    a.e('v_pk_add_f32 v[12:13], %s, %s' % (vr(X, 2), vr(X + 2, 2)))
    a.e('v_pk_add_f32 v[14:15], %s, %s' % (vr(X + 4, 2), vr(X + 6, 2)))
    for p in range(4, 32, 2):
        a.e('v_pk_add_f32 v[12:13], v[12:13], %s' % vr(X + 2 * p, 2))
        a.e('v_pk_add_f32 v[14:15], v[14:15], %s' % vr(X + 2 * p + 2, 2))
    a.e('v_pk_add_f32 v[12:13], v[12:13], v[14:15]')
    a.e('v_add_f32 v12, v12, v13')
    a.e('v_mul_f32 v12, %s, v12' % fhex(1.0 / 64))
    a.e('v_sub_f32 v16, 0, v12')
    a.e('v_mov_b32 v17, v16')
    a.e('v_mov_b32 v14, 0'); a.e('v_mov_b32 v15, 0'); a.e('v_mov_b32 v22, 0'); a.e('v_mov_b32 v23, 0')
    for p in range(0, 32, 2):
        a.e('v_pk_add_f32 v[18:19], %s, v[16:17]' % vr(X + 2 * p, 2))
        a.e('v_pk_add_f32 v[20:21], %s, v[16:17]' % vr(X + 2 * p + 2, 2))
        a.e('v_pk_fma_f32 v[14:15], v[18:19], v[18:19], v[14:15]')
        a.e('v_pk_fma_f32 v[22:23], v[20:21], v[20:21], v[22:23]')
    a.e('v_pk_add_f32 v[14:15], v[14:15], v[22:23]')
    a.e('v_add_f32 v13, v14, v15')
    a.e('ds_write_b64 v10, v[12:13]')
    a.e('s_waitcnt lgkmcnt(0)')
    a.e('s_barrier')
    for p in range(8):
        a.e('ds_read_b64 %s, v9 offset:%d' % (vr(16 + 2 * p, 2), 256 * p))
    a.e('s_waitcnt lgkmcnt(0)')
    chan_combine(a, 16, 8, 64, 12, 13, 14)
    a.e('s_lshl_b32 s32, s3, 13')
    a.e('s_add_u32 s33, s7, s32')
    if XF_OFF: a.e('s_add_u32 s33, s33, %d' % XF_OFF)
    a.e('s_add_u32 s35, s33, 0x1000')
    for j in range(8):
        for d in range(4):
            r = X + 8 * j + 2 * d
            a.e('v_pk_fma_f32 %s, %s, v[12:13], v[12:13] op_sel:[0,0,1] op_sel_hi:[1,0,1]' % (vr(r, 2), vr(r, 2)))
        for d in range(4):
            r = X + 8 * j + 2 * d
            a.e('v_cvt_pk_bf16_f32 v%d, v%d, v%d' % (32 + 4 * j + d, r, r + 1))
        a.e('buffer_store_dwordx4 %s, v3, %s, s%d offen offset:%d' % (vr(32 + 4 * j, 4), ws, 33 if j < 4 else 35, (j % 4) * 1024))
    a.e('s_endpgm')

    def lane_np(dst):
        a.e('v_lshrrev_b32 v%d, 2, v5' % dst)
        a.e('v_lshlrev_b32 v%d, 3, v%d' % (dst, dst))
        a.e('v_and_b32 v15, 3, v5')
        a.e('v_add_u32 v%d, v%d, v15' % (dst, dst))

    a.label('%s_m' % name, reset=True)
    make_srd(a, 12, 18, 512 * 1536 * 2)
    a.e('s_lshl_b32 s6, s2, 2')
    a.e('s_add_u32 s6, s6, s3')
    a.e('s_lshr_b32 s32, s6, 5')
    a.e('s_and_b32 s33, s6, 31')
    lane_np(6)
    a.e('v_mul_u32_u24 v6, 3072, v6')
    a.e('v_lshl_add_u32 v6, v4, 4, v6')
    a.e('s_mul_i32 s34, s32, %d' % (32 * 3072))
    a.e('s_add_u32 s35, s34, %d' % (4 * 3072))
    a.e('s_lshr_b32 s36, s33, 1')
    a.e('s_lshl_b32 s36, s36, 3')
    a.e('s_and_b32 s37, s33, 1')
    a.e('s_add_u32 s36, s36, s37')
    a.e('s_mul_i32 s36, s36, %d' % (4 * 3072))
    a.e('s_add_u32 s36, s36, 1024')
    for kk in range(16):
        for x, sreg in enumerate((34, 35, 36)):
            a.e('buffer_load_dwordx4 %s, v6, s[12:15], s%d offen offset:%d' % (vr(32 + 12 * kk + 4 * x, 4), sreg, 64 * kk))
    for kk in range(16):
        a.e('s_waitcnt vmcnt(%d)' % (45 - 3 * kk))
        for e in range(2):
            a.e('%s %s, %s, %s, %s' % (MF, vr(16 + 4 * e, 4), vr(32 + 12 * kk + 4 * e, 4), vr(32 + 12 * kk + 8, 4), '0' if kk == 0 else vr(16 + 4 * e, 4)))
    a.e('s_lshr_b32 s34, s33, 2')
    a.e('s_lshl_b32 s34, s34, 4')
    a.e('s_add_u32 s34, s34, s32')
    a.e('s_mul_i32 s34, s34, 12')
    a.e('s_and_b32 s35, s33, 3')
    a.e('s_add_u32 s34, s34, s35')
    a.e('s_lshl_b32 s34, s34, 10')
    a.e('s_add_u32 s34, s34, %d' % W1_OFF)
    a.e('s_mov_b32 s38, %s' % fhex(512 ** -0.5 * math.log2(math.e)))
    for r in range(8):
        a.e('v_mul_f32 v%d, s38, v%d' % (16 + r, 16 + r))
    for d in range(4):
        a.e('v_cvt_pk_bf16_f32 v%d, v%d, v%d' % (24 + d, 16 + 2 * d, 17 + 2 * d))
    a.e('buffer_store_dwordx4 v[24:27], v3, %s, s34 offen' % ws)
    a.e('s_endpgm')

    def load_strip():
        a.e('v_lshrrev_b32 v7, 2, v2')
        a.e('v_mul_lo_u32 v7, v7, s42')
        a.e('v_and_b32 v8, 3, v2')
        a.e('v_lshl_add_u32 v7, v8, 4, v7')
        a.e('s_lshl_b32 s41, s42, 4')
        a.e('s_lshl_b32 s43, s3, 3')
        a.e('s_mul_i32 s43, s43, s41')
        a.e('s_add_u32 s40, s40, s43')
        a.e('s_lshl_b32 s44, s3, 13')
        for j in range(8):
            a.e('s_add_u32 m0, s44, %d' % (1024 * j))
            a.e('buffer_load_dwordx4 v7, s[12:15], s40 offen lds')
            if j < 7: a.e('s_add_u32 s40, s40, s41')
        a.e('v_bfe_u32 v8, v2, 2, 2')
        a.e('v_lshl_add_u32 v8, v4, 3, v8')
        a.e('v_lshlrev_b32 v8, 6, v8')
        a.e('v_and_b32 v9, 3, v2')
        a.e('v_lshl_add_u32 v8, v9, 4, v8')

    a.label('%s_vo' % name, reset=True)
    a.e('s_sub_u32 s6, s2, %d' % N_M)
    a.e('s_lshr_b32 s33, s6, 2')
    a.e('s_and_b32 s32, s6, 3')
    a.e('s_lshl_b32 s32, s32, 2')
    a.e('s_add_u32 s32, s32, s3')
    make_srd(a, 12, 20, 512 * 512 * 2)
    a.e('s_lshl_b32 s40, s33, 6')
    a.e('s_mov_b32 s42, 1024')
    load_strip()
    make_srd(a, 48, 18, 512 * 1536 * 2)
    a.e('v_mul_u32_u24 v6, 3072, v5')
    a.e('v_lshl_add_u32 v6, v4, 4, v6')
    a.e('s_mul_i32 s34, s32, %d' % (32 * 3072))
    a.e('s_add_u32 s34, s34, 2048')
    a.e('s_add_u32 s35, s34, %d' % (16 * 3072))
    for kk in range(16):
        for e in range(2):
            a.e('buffer_load_dwordx4 %s, v6, s[48:51], s%d offen offset:%d' % (vr(64 + 8 * kk + 4 * e, 4), 34 + e, 64 * kk))
    a.e('s_waitcnt vmcnt(32)')
    a.e('s_barrier')
    for kk in range(16):
        b = 32 + 8 * (kk % 2)
        for o in range(2):
            a.e('ds_read_b64_tr_b16 %s, v8 offset:%d' % (vr(b + 4 * o, 2), kk * 2048 + 8 * o))
            a.e('ds_read_b64_tr_b16 %s, v8 offset:%d' % (vr(b + 4 * o + 2, 2), kk * 2048 + 8 * o + 256))
        a.e('s_waitcnt vmcnt(%d) lgkmcnt(0)' % (30 - 2 * kk))
        for o in range(2):
            for e in range(2):
                acc = vr(16 + 8 * o + 4 * e, 4)
                a.e('%s %s, %s, %s, %s' % (MF, acc, vr(64 + 8 * kk + 4 * e, 4), vr(b + 4 * o, 4), '0' if kk == 0 else acc))
    a.e('s_lshr_b32 s34, s33, 2')
    a.e('s_lshl_b32 s34, s34, 4')
    a.e('s_add_u32 s34, s34, s32')
    a.e('s_lshl_b32 s34, s34, 3')
    a.e('s_and_b32 s35, s33, 3')
    a.e('s_lshl_b32 s35, s35, 1')
    a.e('s_add_u32 s34, s34, s35')
    a.e('s_lshl_b32 s34, s34, 10')
    a.e('s_add_u32 s34, s34, %d' % W2_OFF)
    a.e('s_nop 7')
    for o in range(2):
        for d in range(4):
            a.e('v_cvt_pk_bf16_f32 v%d, v%d, v%d' % (48 + 4 * o + d, 16 + 8 * o + 2 * d, 17 + 8 * o + 2 * d))
        a.e('buffer_store_dwordx4 %s, v3, %s, s34 offen offset:%d' % (vr(48 + 4 * o, 4), ws, 1024 * o))
    a.e('s_endpgm')

    a.label('%s_rl' % name, reset=True)
    a.e('s_sub_u32 s6, s2, %d' % (N_M + N_VO))
    a.e('s_cmp_lt_u32 s6, 32')
    a.e('s_cbranch_scc1 %s_rl_mi' % name)
    a.e('s_cmp_lt_u32 s6, 48')
    a.e('s_cbranch_scc1 %s_rl_mo' % name)
    a.e('s_sub_u32 s6, s6, 48')
    a.e('s_lshr_b32 s36, s6, 4')
    a.e('s_and_b32 s33, s6, 15')
    make_srd(a, 12, 30, 1024 * 512 * 2)
    a.e('s_lshl_b32 s40, s33, 6')
    a.e('s_lshl_b32 s37, s36, 19')
    a.e('s_add_u32 s40, s40, s37')
    a.e('s_mov_b32 s42, 1024')
    a.e('s_lshr_b32 s34, s33, 1')
    a.e('s_lshl_b32 s34, s34, 5')
    a.e('s_lshl_b32 s37, s36, 4')
    a.e('s_add_u32 s34, s34, s37')
    a.e('s_lshl_b32 s34, s34, 2')
    a.e('s_and_b32 s37, s33, 1')
    a.e('s_lshl_b32 s37, s37, 1')
    a.e('s_add_u32 s34, s34, s37')
    a.e('s_lshl_b32 s34, s34, 10')
    a.e('s_add_u32 s34, s34, %d' % W3_OFF)
    a.e('s_mov_b32 s35, 4096')
    a.e('s_branch %s_rl_go' % name)
    a.label('%s_rl_mo' % name, reset=True)
    a.e('s_sub_u32 s33, s6, 32')
    make_srd(a, 12, 26, 512 * 512 * 2)
    a.e('s_lshl_b32 s40, s33, 6')
    a.e('s_mov_b32 s42, 1024')
    a.e('s_lshr_b32 s34, s33, 2')
    a.e('s_lshl_b32 s34, s34, 7')
    a.e('s_and_b32 s37, s33, 3')
    a.e('s_lshl_b32 s37, s37, 1')
    a.e('s_add_u32 s34, s34, s37')
    a.e('s_lshl_b32 s34, s34, 10')
    a.e('s_add_u32 s34, s34, %d' % (W2_OFF + 512 * 1024))
    a.e('s_mov_b32 s35, 8192')
    a.e('s_branch %s_rl_go' % name)
    a.label('%s_rl_mi' % name, reset=True)
    make_srd(a, 12, 22, 512 * 1024 * 2)
    a.e('s_lshl_b32 s40, s6, 6')
    a.e('s_mov_b32 s42, 2048')
    a.e('s_and_b32 s33, s6, 15')
    a.e('s_lshr_b32 s34, s33, 1')
    a.e('s_mul_i32 s34, s34, 192')
    a.e('s_lshr_b32 s37, s6, 4')
    a.e('s_lshl_b32 s37, s37, 2')
    a.e('s_add_u32 s34, s34, s37')
    a.e('s_and_b32 s37, s33, 1')
    a.e('s_lshl_b32 s37, s37, 1')
    a.e('s_add_u32 s34, s34, s37')
    a.e('s_add_u32 s34, s34, 4')
    a.e('s_lshl_b32 s34, s34, 10')
    a.e('s_add_u32 s34, s34, %d' % W1_OFF)
    a.e('s_mov_b32 s35, 12288')
    a.label('%s_rl_go' % name, reset=True)
    load_strip()
    a.e('v_add_u32 v8, s44, v8')
    a.e('s_lshl_b32 s37, s3, 2')
    a.e('s_mul_i32 s37, s37, s35')
    a.e('s_add_u32 s34, s34, s37')
    a.e('s_waitcnt vmcnt(0)')
    for k4 in range(4):
        for o in range(2):
            b = 16 + 8 * k4 + 4 * o
            a.e('ds_read_b64_tr_b16 %s, v8 offset:%d' % (vr(b, 2), k4 * 2048 + 8 * o))
            a.e('ds_read_b64_tr_b16 %s, v8 offset:%d' % (vr(b + 2, 2), k4 * 2048 + 8 * o + 256))
    for k4 in range(4):
        a.e('s_waitcnt lgkmcnt(%d)' % (12 - 4 * k4))
        for o in range(2):
            a.e('buffer_store_dwordx4 %s, v3, %s, s34 offen offset:%d' % (vr(16 + 8 * k4 + 4 * o, 4), ws, 1024 * o))
        if k4 < 3: a.e('s_add_u32 s34, s34, s35')
    a.label('%s_end' % name)
    a.e('s_endpgm')
    return dict(name=name, vgpr=224, sgpr=56, accum=224, grid=total, block=256, lds=32768)

def chan_combine(a, P, n, cnt, oA, oB, tmp):
    a.e('v_add_f32 v%d, v%d, v%d' % (oB, P, P + 2))
    a.e('v_add_f32 v%d, v%d, v%d' % (oA, P + 1, P + 3))
    for i in range(2, n):
        a.e('v_add_f32 v%d, v%d, v%d' % (oB, oB, P + 2 * i))
        a.e('v_add_f32 v%d, v%d, v%d' % (oA, oA, P + 2 * i + 1))
    a.e('v_mul_f32 v%d, %s, v%d' % (oB, fhex(1.0 / n), oB))
    a.e('v_mov_b32 v%d, 0' % (tmp + 1))
    for i in range(n):
        a.e('v_sub_f32 v%d, v%d, v%d' % (tmp, P + 2 * i, oB))
        a.e('v_fmac_f32 v%d, v%d, v%d' % (tmp + 1, tmp, tmp))
    a.e('v_mul_f32 v%d, %s, v%d' % (tmp + 1, fhex(float(cnt)), tmp + 1))
    a.e('v_add_f32 v%d, v%d, v%d' % (oA, oA, tmp + 1))
    a.e('v_mul_f32 v%d, %s, v%d' % (oA, fhex(1.0 / (n * cnt)), oA))
    a.e('v_add_f32 v%d, %s, v%d' % (oA, fhex(1e-5), oA))
    a.e('v_rsq_f32 v%d, v%d' % (oA, oA))
    a.e('v_mul_f32 v%d, v%d, v%d' % (oB, oB, oA))
    a.e('v_sub_f32 v%d, 0, v%d' % (oB, oB))
```

```python
import sys, json
from build import *
from prep import gen_prep
from gemm import gen_gemm
from conv import gen_conv
from attn16 import gen_attn
cfg = json.loads(sys.argv[2]) if len(sys.argv) > 2 else {}
ks = [(gen_prep, dict(cfg=cfg)),
      (gen_gemm, dict(name='gemm1_kernel', mode='g1', cfg=cfg)),
      (gen_conv, dict(name='convg_kernel', mode='g', cfg=cfg)),
      (gen_attn, dict(cfg=cfg)),
      (gen_gemm, dict(name='gemm2_kernel', mode='g2', cfg=cfg)),
      (gen_conv, dict(name='convm_kernel', mode='m', cfg=cfg)),
      (gen_gemm, dict(name='gemm3_kernel', mode='g3', cfg=cfg))]
out, infos, a = build(ks)
open(sys.argv[1], 'w').write(out)
for i in infos: print(i)
print('auto nops:', len(a.auto_nops), 'bytes', len(out))
```

```python
import re

TRANS = ('v_exp_f32', 'v_log_f32', 'v_rcp_f32', 'v_rsq_f32', 'v_sqrt_f32', 'v_sin_f32', 'v_cos_f32', 'v_rcp_iflag_f32')

def split_ops(s):
    ops, depth, cur = [], 0, ''
    for ch in s:
        if ch in '[(':
            depth += 1
        if ch in '])':
            depth -= 1
        if ch == ',' and depth == 0:
            ops.append(cur.strip()); cur = ''
        else:
            cur += ch
    if cur.strip():
        ops.append(cur.strip())
    return ops

_reg_re = re.compile(r'^-?\|?(?:abs\()?([vas])(?:(\d+)|\[(\d+):(\d+)\])\)?\|?$')

def regs_of(tok):
    tok = tok.split()[0] if tok.split() else ''
    if tok in ('vcc',):
        return {('s', 106), ('s', 107)}
    if tok == 'vcc_lo':
        return {('s', 106)}
    if tok == 'vcc_hi':
        return {('s', 107)}
    if tok == 'exec':
        return {('s', 126), ('s', 127)}
    if tok == 'm0':
        return {('s', 124)}
    m = _reg_re.match(tok)
    if not m:
        return set()
    f = m.group(1)
    if m.group(2) is not None:
        return {(f, int(m.group(2)))}
    return {(f, i) for i in range(int(m.group(3)), int(m.group(4)) + 1)}

class Ins:
    __slots__ = ('text', 'mn', 'ops', 'kind', 'w', 'r', 'srcC', 'srcAB', 'passes', 'states', 'lds_dma', 'wide_store', 'sdata')
    def __init__(self, text):
        self.text = text
        t = text.split(';')[0].strip()
        parts = t.split(None, 1)
        self.mn = parts[0]
        self.ops = split_ops(parts[1]) if len(parts) > 1 else []
        self.w = set(); self.r = set(); self.srcC = set(); self.srcAB = set(); self.passes = 0
        self.states = 1; self.lds_dma = False; self.wide_store = False; self.sdata = set()
        mn, ops = self.mn, self.ops
        R = regs_of
        if mn.startswith('v_mfma'):
            self.kind = 'mfma'
            self.w = R(ops[0]); self.srcAB = R(ops[1]) | R(ops[2]); self.srcC = R(ops[3])
            self.r = self.srcAB | self.srcC
            self.passes = 8 if '32x32x16' in mn else (4 if '16x16x32' in mn else 16)
        elif mn.startswith('v_'):
            self.kind = 'valu'
            base = mn.replace('_e32', '').replace('_e64', '').replace('_dpp', '').replace('_sdwa', '')
            if base.startswith('v_cmpx'):
                self.w = R(ops[0]) | R('exec')
                for o in ops[1:]: self.r |= R(o)
            elif base.startswith('v_cmp'):
                self.w = R(ops[0])
                for o in ops[1:]: self.r |= R(o)
            elif base in ('v_add_co_u32', 'v_sub_co_u32', 'v_subrev_co_u32', 'v_addc_co_u32', 'v_subb_co_u32', 'v_mad_u64_u32', 'v_div_scale_f32'):
                self.w = R(ops[0]) | R(ops[1])
                for o in ops[2:]: self.r |= R(o)
            elif base.startswith('v_permlane') or base == 'v_swap_b32':
                self.w = R(ops[0]) | R(ops[1]); self.r = set(self.w)
            elif base == 'v_nop':
                pass
            else:
                self.w = R(ops[0])
                for o in ops[1:]: self.r |= R(o)
                if base in ('v_fmac_f32', 'v_dot2c_f32_bf16', 'v_pk_fmac_f16', 'v_writelane_b32') or '_dpp' in mn or '_sdwa' in mn:
                    self.r |= self.w
                if base == 'v_cndmask_b32' and len(ops) == 3:
                    self.r |= R('vcc')
        elif mn.startswith('ds_'):
            self.kind = 'ds'
            if mn.startswith('ds_read') or mn.startswith('ds_bpermute') or mn.startswith('ds_permute') or mn.startswith('ds_swizzle'):
                self.w = R(ops[0])
                for o in ops[1:]: self.r |= R(o)
            else:
                for o in ops: self.r |= R(o)
        elif mn.startswith('buffer_') or mn.startswith('global_') or mn.startswith('flat_'):
            self.kind = 'vmem'
            words = t.split()
            if mn.startswith('buffer_wbl2') or mn.startswith('buffer_inv'):
                pass
            elif 'lds' in words or '_lds_' in mn:
                self.lds_dma = True
                for o in ops: self.r |= R(o)
                self.r |= R('m0')
            elif '_load' in mn:
                self.w = R(ops[0])
                for o in ops[1:]: self.r |= R(o)
                if 'd16' in mn: self.r |= self.w
            elif '_store' in mn:
                for o in ops: self.r |= R(o)
                data = ops[0] if mn.startswith('buffer_') else ops[1]
                if 'x3' in mn or 'x4' in mn:
                    self.wide_store = True; self.sdata = R(data)
            else:
                for o in ops: self.r |= R(o)
                if 'sc0' in words:
                    self.w = R(ops[0])
        elif mn.startswith('s_'):
            self.kind = 'salu'
            if mn == 's_nop':
                self.states = int(ops[0], 0) + 1
            elif mn.startswith('s_cmp') or mn.startswith('s_cbranch') or mn in ('s_branch', 's_barrier', 's_waitcnt', 's_endpgm', 's_setprio', 's_sleep') or mn.startswith('s_bitcmp'):
                for o in ops: self.r |= R(o)
            elif mn.endswith('saveexec_b64'):
                self.w = R(ops[0]) | R('exec'); self.r = R(ops[1]) | R('exec')
            else:
                self.w = R(ops[0]) if ops else set()
                for o in ops[1:]: self.r |= R(o)
                if mn in ('s_addk_i32', 's_mulk_i32'): self.r |= self.w
        else:
            self.kind = 'other'

def required_states(p, c):
    need = 0
    vr = lambda s: {x for x in s if x[0] in 'va'}
    sr = lambda s: {x for x in s if x[0] == 's'}
    if p.kind == 'mfma':
        tb = {2: (2, 4, 5, 5, 1), 4: (0, 6, 8, 8, 3), 8: (0, 10, 12, 12, 7), 16: (0, 18, 20, 20, 15)}[p.passes]
        if c.kind == 'mfma':
            if p.w & c.srcC:
                if p.w == c.srcC and p.passes == c.passes:
                    need = max(need, tb[0])
                else:
                    need = max(need, tb[1])
            if p.w & c.srcAB:
                need = max(need, tb[2])
            if (p.w & c.w) and not (p.w == c.srcC):
                need = max(need, tb[1])
        elif c.kind in ('valu', 'vmem', 'ds'):
            if p.w & (c.r | c.w):
                need = max(need, tb[3])
            if c.kind == 'valu' and (p.srcC & c.w):
                need = max(need, tb[4])
            if c.kind in ('vmem', 'ds') and (p.srcC & c.w):
                need = max(need, tb[4])
    elif p.kind == 'valu':
        pv, ps = vr(p.w), sr(p.w)
        base = p.mn.replace('_e32', '').replace('_e64', '')
        if c.kind == 'mfma':
            if pv & c.r: need = max(need, 2)
            if ('s', 126) in p.w: need = max(need, 4)
        if c.kind == 'valu':
            cb = c.mn.replace('_e32', '').replace('_e64', '')
            if base in TRANS and (pv & c.r) :
                need = max(need, 1)
            if cb.startswith('v_permlane') and (pv & c.r): need = max(need, 2)
            if '_dpp' in c.mn and (pv & c.r): need = max(need, 2)
            if '_dpp' in c.mn and ('s', 126) in p.w: need = max(need, 5)
            if cb in ('v_readfirstlane_b32', 'v_readlane_b32') and (pv & c.r): need = max(need, 1)
            if ps & c.r:
                need = max(need, 2)
                if cb in ('v_readlane_b32', 'v_writelane_b32', 'v_div_fmas_f32'): need = max(need, 4)
            if ('s', 126) in p.w and cb in ('v_readfirstlane_b32', 'v_readlane_b32', 'v_writelane_b32'): need = max(need, 4)
            if ('s', 126) in p.w and cb.startswith('v_permlane'): need = max(need, 4)
            if ('_sdwa' in p.mn or 'op_sel' in p.text and not p.mn.startswith('v_pk')) and (pv & (c.r | c.w)): need = max(need, 1)
            if p.mn.startswith('v_dot') and (pv & (c.r | c.w)):
                if not (c.mn == p.mn and not (pv & (regs_of(c.ops[1]) | regs_of(c.ops[2])))):
                    need = max(need, 3)
        if c.kind == 'vmem' and (ps & c.r): need = max(need, 5)
        if c.kind == 'salu' and (ps & c.r) and not c.mn.startswith('s_cbranch'): need = max(need, 1)
    elif p.kind == 'salu':
        if ('s', 124) in p.w and (c.lds_dma or c.mn.endswith('addtid_b32')): need = max(need, 1)
    elif p.kind == 'vmem':
        if p.wide_store and (p.sdata & c.w):
            need = max(need, 2 if c.kind == 'valu' else 1)
    return need

MAXLOOK = 22

VOP12 = set("""v_mov_b32 v_add_u32 v_sub_u32 v_subrev_u32 v_lshlrev_b32 v_lshrrev_b32 v_ashrrev_i32 v_and_b32 v_or_b32 v_xor_b32 v_mul_u32_u24
v_min_u32 v_max_u32 v_cndmask_b32 v_add_f32 v_sub_f32 v_subrev_f32 v_mul_f32 v_fmac_f32 v_min_f32 v_max_f32 v_rcp_f32 v_rsq_f32 v_sqrt_f32 v_exp_f32 v_log_f32
v_readfirstlane_b32 v_permlane32_swap_b32 v_permlane16_swap_b32 v_accvgpr_mov_b32 v_nop v_dot2c_f32_bf16 v_cvt_f32_u32 v_cvt_u32_f32 v_not_b32""".split())
NOPROMO = set('v_readfirstlane_b32 v_permlane32_swap_b32 v_permlane16_swap_b32 v_accvgpr_mov_b32 v_nop v_fmac_f32 v_dot2c_f32_bf16 v_cndmask_b32'.split())
_INLINE_F = {'0.5', '-0.5', '1.0', '-1.0', '2.0', '-2.0', '4.0', '-4.0'}
_INLINE_HEX = {0x3f000000, 0xbf000000, 0x3f800000, 0xbf800000, 0x40000000, 0xc0000000, 0x40800000, 0xc0800000, 0x3e22f983}
def is_literal(tok):
    tok = tok.strip()
    if not tok or regs_of(tok) or tok in _INLINE_F or tok in ('vcc', 'exec', 'm0', 'off', 'scc'): return False
    try:
        v = int(tok, 0)
    except ValueError:
        return not tok.startswith('hwreg') and not tok.startswith('vmcnt') and not tok.startswith('lgkmcnt')
    if -16 <= v <= 64: return False
    if (v & 0xffffffff) in _INLINE_HEX or (v & 0xffffffff) >= 0xfffffff0: return False
    return True
def ins_size(ins):
    mn = ins.mn
    if ins.kind in ('mfma', 'ds', 'vmem'): return 8, False
    if ins.kind == 'valu':
        if mn.endswith('_e64') or '_dpp' in mn or '_sdwa' in mn: return 8, False
        base = mn.replace('_e32', '')
        if base.startswith('v_cmp'):
            if ins.ops[0] != 'vcc': return 8, False
            lit = any(is_literal(o) for o in ins.ops[1:])
            if not lit and not ins.ops[2].startswith('v'): return 8, False
            return (8, False) if lit else (4, True)
        if base in VOP12:
            if base == 'v_cndmask_b32' and ins.ops[-1] != 'vcc': return 8, False
            if any(is_literal(o) for o in ins.ops[1:]): return 8, False
            if len(ins.ops) >= 3 and not ins.ops[2].startswith('v'): return 8, False
            if any(o.startswith('-v') or o.startswith('|') or o.startswith('abs') for o in ins.ops): return 8, False
            return 4, (base not in NOPROMO and not mn.endswith('_e32'))
        return 8, False
    if ins.kind == 'salu':
        if mn.startswith('s_load') or mn.startswith('s_mem') or mn.startswith('s_buffer') or mn.startswith('s_atomic'): return 8, False
        if mn in ('s_nop', 's_waitcnt', 's_barrier', 's_endpgm', 's_branch', 's_setprio', 's_sleep') or mn.startswith('s_cbranch') or mn.endswith('k_i32') or mn.startswith('s_getreg'): return 4, False
        if mn == 's_mov_b64' and ins.ops[1].startswith('0x'): return 8, False
        return (8 if any(is_literal(o) for o in ins.ops) else 4), False
    return 4, False

class Asm:
    def __init__(self):
        self.lines = []
        self.hist = []
        self.auto_nops = []
        self.all_ins = []
        self.record = None
        self.clock = 0; self.mfree = 0; self.store_mod = ' sc1'
        self.off = 0; self.run4 = []; self.align = True; self.dense = False; self.sizes = []
    def raw(self, s):
        self.lines.append(s)
        if s.startswith('.p2align'): self.off = 0; self.run4 = []
    def comment(self, s):
        self.lines.append('    ; ' + s)
    def label(self, name, reset=False):
        self.lines.append(name + ':')
        if self.record is not None: self.record.append(('label', name))
        if reset:
            self.hist = []
    def _need(self, ins):
        dist = 0; pad = 0
        for p in reversed(self.hist):
            req = required_states(p, ins)
            if req > dist:
                pad = max(pad, req - dist)
            dist += p.states
            if dist > MAXLOOK: break
        return pad
    def _tick(self, ins):
        if ins.kind == 'mfma':
            t = max(self.clock, self.mfree)
            self.mfree = t + 4 * ins.passes; self.clock = t + 8
        elif ins.mn.startswith('v_pk_') or ins.mn.startswith('v_dot'):
            self.clock = max(self.clock, self.mfree) + 4
        elif ins.mn.replace('_e32', '') in TRANS:
            self.clock += 8
        else:
            self.clock += 4 * ins.states
    def e(self, text):
        if text.startswith('buffer_store_dword') and self.store_mod: text += self.store_mod
        ins = Ins(text)
        self._tick(ins)
        pad = self._need(ins)
        while pad > 0:
            n = min(pad, 16)
            nop = Ins('s_nop %d' % (n - 1))
            self.lines.append(' s_nop %d' % (n - 1)); self.off += 4; self.sizes.append(4)
            self.hist.append(nop); self.auto_nops.append((len(self.lines), n, text))
            if self.record is not None: self.record.append(('ins', nop))
            pad -= n
        sz, promo = ins_size(ins)
        if self.align and sz == 8 and self.off % 8 == 4:
            if self.run4:
                li, si = self.run4.pop()
                t = self.lines[li].split(None, 1)
                self.lines[li] = ' ' + t[0] + '_e64 ' + t[1]; self.off += 4; self.sizes[si] = 8
            elif self.dense:
                nop = Ins('s_nop 0')
                self.lines.append(' s_nop 0'); self.off += 4; self.sizes.append(4); self.hist.append(nop)
                if self.record is not None: self.record.append(('ins', nop))
        if sz == 8: self.run4 = []
        elif promo: self.run4.append((len(self.lines), len(self.sizes)))
        self.off += sz; self.sizes.append(sz)
        self.lines.append(' ' + text)
        self.hist.append(ins)
        if len(self.hist) > 64: self.hist = self.hist[-40:]
        if self.record is not None: self.record.append(('ins', ins))
        return ins
    def text(self):
        return '\n'.join(self.lines) + '\n'

def check_seq(seq):
    out = []
    for i, c in enumerate(seq):
        dist = 0
        for j in range(i - 1, -1, -1):
            p = seq[j]
            req = required_states(p, c)
            if req > dist:
                out.append((j, i, req, dist, p.text, c.text))
            dist += p.states
            if dist > MAXLOOK: break
    return out

def vr(base, n=1, f='v'):
    return '%s%d' % (f, base) if n == 1 else '%s[%d:%d]' % (f, base, base + n - 1)
def ar(base, n=1):
    return vr(base, n, 'a')
def sr(base, n=1):
    return vr(base, n, 's')

def kernel_begin(a, name):
    a.raw('.globl %s' % name)
    a.raw('.p2align 8')
    a.raw('.type %s,@function' % name)
    a.label(name, reset=True)

def kernel_desc(name, vgpr, sgpr, accum):
    return '\n'.join([
        '.amdhsa_kernel %s' % name,
        '  .amdhsa_next_free_vgpr %d' % vgpr,
        '  .amdhsa_next_free_sgpr %d' % sgpr,
        '  .amdhsa_accum_offset %d' % accum,
        '  .amdhsa_group_segment_fixed_size 0',
        '  .amdhsa_kernarg_size 88',
        '  .amdhsa_user_sgpr_count 2',
        '  .amdhsa_user_sgpr_kernarg_segment_ptr 1',
        '  .amdhsa_system_sgpr_workgroup_id_x 1',
        '.end_amdhsa_kernel', ''])
```

```python
import copy
from asmlib import *
from layout import *

class LdsQ:
    def __init__(self):
        self.n = 0; self.done = 0; self.where = {}; self.pending = set()
    def issue(self, regs, check=True):
        self.n += 1
        for r in regs:
            if check: assert r not in self.pending, ('ring WAR', r)
            self.where[r] = self.n; self.pending.add(r)
    def consume(self, r):
        self.pending.discard(r); self.pending.discard(r + 1000)
    def need(self, regs):
        return max([self.where.get(r, 0) for r in regs] + [0])
    def wait_for(self, a, idx):
        if idx <= self.done: return
        N = min(self.n - idx, 15)
        a.e('s_waitcnt lgkmcnt(%d)' % N)
        self.done = self.n - N
    def drained(self):
        self.done = self.n
    def state(self):
        return (self.n - self.done, sorted((self.n - v, k) for k, v in self.where.items() if v > self.done), sorted(self.pending))

MF = 'v_mfma_f32_16x16x32_bf16'

KIDX = [0]
MIDR = {76: 80, 77: 81, 0: 80, 1: 81, 2: 82, 3: 83, 4: 84}
def stamp_begin(a):
    a.e('s_memrealtime s[66:67]')
    a.e('s_memtime s[72:73]')
    for r in range(80, 85): a.e('s_mov_b32 s%d, 0' % r)
    KIDX[0] += 1
def stamp_mid(a, reg):
    a.e('s_memrealtime s[78:79]')
    a.e('s_waitcnt lgkmcnt(0)')
    a.e('s_mov_b32 s%d, s78' % MIDR[reg])
def stamp_end(a, sWave, endlabel=None, nw=4):
    a.e('s_waitcnt vmcnt(0)')
    a.e('s_memrealtime s[68:69]')
    a.e('s_memtime s[74:75]')
    a.e('s_waitcnt lgkmcnt(0)')
    a.e('s_sub_u32 s74, s74, s72')
    a.e('s_getreg_b32 s71, hwreg(HW_REG_XCC_ID)')
    a.e('s_and_b32 s71, s71, 15')
    a.e('s_lshl_b32 s71, s71, 28')
    a.e('s_or_b32 s74, s74, s71')
    a.e('s_mul_i32 s70, s2, %d' % nw)
    a.e('s_add_u32 s70, s70, s%d' % sWave)
    a.e('s_lshl_b32 s70, s70, 5')
    a.e('s_add_u32 s70, s70, %d' % (TRACE_OFF + (KIDX[0] - 1) * TRACE_STRIDE))
    a.e('s_mov_b64 exec, 1')
    a.e('v_mov_b32 v0, s66'); a.e('v_mov_b32 v1, s68'); a.e('v_mov_b32 v2, s74'); a.e('v_mov_b32 v3, s80')
    a.e('v_mov_b32 v4, s81'); a.e('v_mov_b32 v5, s82'); a.e('v_mov_b32 v6, s83'); a.e('v_mov_b32 v7, s84')
    a.e('v_mov_b32 v8, s70')
    a.e('global_store_dwordx4 v8, v[0:3], s[4:5]')
    a.e('global_store_dwordx4 v8, v[4:7], s[4:5] offset:16')

def gen_attn(a, name='attn_kernel', cfg=None):
    cfg = cfg or {}
    DV = cfg.get('DV', 9)
    DK = cfg.get('DK', 7)
    BARPOS = cfg.get('BARPOS', 31 - DV + 4)
    WG = cfg.get('WAITGROUP', 4)
    DMA_SLOTS = cfg.get('DMA_SLOTS', [2, 6, 10, 14, 18, 22, 26, 30])
    NO_DMA = cfg.get('NO_DMA', False)
    NO_SM = cfg.get('NO_SM', False)
    STAMP = cfg.get('STAMP', False)
    S = [0, 16]; P = 32; RING = 40; NR = 16
    NEGM = 104
    vK = [112, 113]; vV = [114, 115]
    vD0, vD1, vL0, vL1, vMx, vT0, vT1, vLane16 = 116, 117, 118, 119, 120, 121, 122, 123
    vL = [vL0, vL1]
    def Sreg(b, kt, qs): return S[b] + (kt * 2 + qs) * 4
    def Obase(dt, qs): return (dt * 2 + qs) * 4
    def Oreg(dt, qs):
        o = Obase(dt, qs)
        return vr(128 + o, 4) if o < 128 else ar(o, 4)
    def Qreg(ks, qs): return ar((ks * 2 + qs) * 4, 4)
    sSRD = 8; sWave = 12; sM0 = 13; sDma = 14; sQ = 15; sI = 16; sN2 = 17; sValid = 18; sOut = 19; sMl = 20; sT0 = 21; sT1 = 22; sT2 = 23
    srd = sr(sSRD, 4)

    kernel_begin(a, name)
    a.e('s_cmp_ge_u32 s2, 256')
    a.e('s_cbranch_scc1 %s_end' % name)
    a.e('s_load_dwordx2 s[4:5], s[0:1], 80')
    if STAMP: stamp_begin(a)
    if cfg.get('CPF', 1):
        from common import code_prefetch
        code_prefetch(a, name, 124, 125, 1)
    a.e('v_lshrrev_b32 v1, 6, v0')
    a.e('v_and_b32 v2, 63, v0')
    a.e('v_readfirstlane_b32 s%d, v1' % sWave)
    a.e('v_lshlrev_b32 v%d, 4, v2' % vLane16)
    a.e('s_and_b32 s%d, s2, 7' % sT0)
    a.e('s_lshr_b32 s%d, s2, 3' % sT1)
    a.e('s_and_b32 s%d, s%d, 3' % (sT2, sT1))
    a.e('s_lshr_b32 s%d, s%d, 2' % (sT1, sT1))
    a.e('s_and_b32 s24, s%d, 3' % sT0)
    a.e('s_lshl_b32 s24, s24, 3')
    a.e('s_add_u32 s24, s24, s%d' % sT1)
    a.e('s_lshl_b32 s24, s24, 2')
    a.e('s_add_u32 s24, s24, s%d' % sWave)
    a.e('s_cmp_lt_u32 s24, 125')
    a.e('s_cselect_b32 s%d, 1, 0' % sValid)
    a.e('s_min_u32 s24, s24, 124')
    a.e('s_lshr_b32 s25, s%d, 2' % sT0)
    a.e('s_mul_i32 s25, s25, 125')
    a.e('s_add_u32 s24, s24, s25')
    a.e('s_lshl_b32 s%d, s24, 15' % sQ)
    a.e('s_mul_i32 s26, s%d, 250' % sT2)
    a.e('s_add_u32 s26, s26, s24')
    a.e('s_lshl_b32 s%d, s26, 15' % sOut)
    a.e('s_add_u32 s%d, s%d, %d' % (sOut, sOut, OP_OFF))
    a.e('s_lshl_b32 s%d, s26, 8' % sMl)
    a.e('s_add_u32 s%d, s%d, %d' % (sMl, sMl, ML_OFF))
    a.e('s_add_u32 s%d, s%d, %d' % (sQ, sQ, QF_OFF))
    a.e('s_mul_i32 s27, s%d, 31' % sT2)
    a.e('s_min_u32 s28, s%d, 1' % sT2)
    a.e('s_add_u32 s27, s27, s28')
    a.e('s_add_u32 s27, s27, s25')
    a.e('s_lshl_b32 s%d, s27, 15' % sDma)
    if XF_OFF: a.e('s_add_u32 s%d, s%d, %d' % (sDma, sDma, XF_OFF))
    a.e('s_sub_u32 s%d, 31, s28' % sN2)
    a.e('s_lshl_b32 s%d, s%d, 13' % (sM0, sWave))
    a.e('v_add_u32 v%d, s%d, v%d' % (vD0, sM0, vLane16))
    a.e('v_add_u32 v%d, 0x1000, v%d' % (vD1, vD0))
    sG, sRd0, sRd1 = 29, 30, 31
    a.e('s_and_b32 s%d, s%d, 3' % (sG, sT0))
    a.e('s_lshl_b32 s%d, s%d, 5' % (sG, sG))
    a.e('s_lshr_b32 s34, s2, 3')
    a.e('s_add_u32 s%d, s%d, s34' % (sG, sG))
    a.e('s_add_u32 s%d, s%d, s25' % (sG, sG))
    a.e('s_lshl_b32 s%d, s%d, 15' % (sG, sG))
    a.e('s_add_u32 s35, s%d, %d' % (sG, U_OFF))
    a.e('s_add_u32 s%d, s%d, %d' % (sG, sG, G_OFF))
    a.e('s_sub_u32 s%d, s%d, 3' % (sRd0, sN2))
    a.e('s_sub_u32 s%d, s%d, 2' % (sRd1, sN2))
    a.e('v_lshrrev_b32 v3, 4, v2')
    a.e('v_and_b32 v4, 15, v2')
    a.e('v_and_b32 v5, 1, v3')
    a.e('v_mul_u32_u24 v5, 12, v5')
    a.e('v_xor_b32 v5, v4, v5')
    a.e('v_lshlrev_b32 v5, 4, v5')
    a.e('v_lshl_add_u32 v%d, v3, 9, v5' % vK[0])
    a.e('v_add_u32 v%d, 0x10000, v%d' % (vK[1], vK[0]))
    a.e('v_lshrrev_b32 v4, 2, v2')
    a.e('v_bfe_u32 v5, v2, 1, 1')
    a.e('v_and_b32 v6, 1, v2')
    a.e('v_mul_u32_u24 v7, 12, v5')
    a.e('v_xor_b32 v4, v4, v7')
    a.e('v_lshlrev_b32 v4, 4, v4')
    a.e('v_lshl_add_u32 v4, v5, 9, v4')
    a.e('v_lshl_add_u32 v%d, v6, 3, v4' % vV[0])
    a.e('v_add_u32 v%d, 0x10000, v%d' % (vV[1], vV[0]))
    a.e('v_lshlrev_b32 v126, 7, v2')
    a.e('v_lshlrev_b32 v127, 7, v0')
    zl = ['v_mov_b32 v%d, 0' % r for r in range(128, 256)] + ['v_accvgpr_write_b32 a%d, 0' % r for r in range(128, 256)]
    def zero(n):
        for _ in range(n):
            if zl: a.e(zl.pop(0))
    zero(cfg.get('AT_Z0', 64))
    a.e('s_waitcnt lgkmcnt(0)')
    a.e('s_mov_b32 s%d, s4' % sSRD)
    a.e('s_and_b32 s%d, s5, 0xffff' % (sSRD + 1))
    a.e('s_mov_b32 s%d, %d' % (sSRD + 2, WS_BYTES))
    a.e('s_mov_b32 s%d, 0x00020000' % (sSRD + 3))

    def dma_piece(stage, j, redirect=False):
        out = []
        if j % 4 == 0:
            out.append('s_add_u32 m0, s%d, %d' % (sM0, stage * 32768 + (j // 4) * 4096))
        out.append('buffer_load_dwordx4 v%d, %s, s%d offen offset:%d lds' % (vD0 if j < 4 else vD1, srd, sDma, (j % 4) * 1024))
        if j == 7:
            out.append('s_add_u32 s%d, s%d, 0x8000' % (sDma, sDma))
            if redirect and cfg.get('AT_REDIR', 1):
                out.append('s_cmp_eq_u32 s%d, s%d' % (sI, sRd0))
                out.append('s_cselect_b32 s%d, s%d, s%d' % (sDma, sG, sDma))
                out.append('s_cmp_eq_u32 s%d, s%d' % (sI, sRd1))
                out.append('s_cselect_b32 s%d, s35, s%d' % (sDma, sDma))
        return out
    def dma_tile(stage, z=0):
        for j in range(8):
            for t in dma_piece(stage, j): a.e(t)
            zero(z)

    if cfg.get('AT_QT', 0):
        a.e('s_lshl_b32 s34, s%d, 13' % sT2)
        a.e('s_add_u32 s34, s34, s%d' % sQ)
        a.e('buffer_load_dword v125, v126, %s, s34 offen' % srd)
    dma_tile(0)
    for f in range(32):
        if f and f % 4 == 0:
            a.e('s_add_u32 s%d, s%d, 0x1000' % (sQ, sQ))
        a.e('buffer_load_dwordx4 %s, v%d, %s, s%d offen offset:%d' % (ar(4 * f, 4), vLane16, srd, sQ, (f % 4) * 1024))
        zero(6)
    zero(1000)
    a.e('v_mov_b32 v%d, 0' % vL0)
    a.e('v_mov_b32 v%d, 0' % vL1)
    a.e('s_mov_b32 s%d, 0' % sI)

    q = LdsQ()
    def ring(n): return RING + 4 * ((n % 64) % NR)
    def kread(stage, n):
        reg = ring(n); ks, kt = n // 2, n % 2
        return [('ds', 'ds_read_b128 %s, v%d offset:%d' % (vr(reg, 4), vK[stage >> 1], (stage & 1) * 32768 + ks * 2048 + kt * 256), [reg])]
    def vread(stage, dt):
        reg = ring(32 + dt)
        off = (stage & 1) * 32768 + dt * 1024
        return [('ds', 'ds_read_b64_tr_b16 %s, v%d offset:%d' % (vr(reg, 2), vV[stage >> 1], off), [reg + 1000]),
                ('ds', 'ds_read_b64_tr_b16 %s, v%d offset:%d' % (vr(reg + 2, 2), vV[stage >> 1], off + 256), [reg])]
    chk = [True]
    def emit_item(it):
        if isinstance(it, tuple):
            a.e(it[1]); q.issue(it[2], chk[0])
        else:
            a.e(it)

    a.e('s_waitcnt vmcnt(32)')
    a.e('s_barrier')
    PD = 8
    for n in range(PD):
        for it in kread(0, n): emit_item(it)
    late = [dma_piece(1, j) for j in range(8)] + [dma_piece(2, j) for j in range(8)]
    nl = 0
    for n in range(32):
        ks, kt = n // 2, n % 2
        if n + PD < 32:
            for it in kread(0, n + PD): emit_item(it)
        if kt == 0:
            a.e('s_waitcnt vmcnt(%d)' % (nl + 30 - 2 * ks))
        q.wait_for(a, q.need([ring(n)]))
        for qs in range(2):
            a.e('%s %s, %s, %s, %s' % (MF, vr(Sreg(0, kt, qs), 4), vr(ring(n), 4), Qreg(ks, qs), '0' if ks == 0 else vr(Sreg(0, kt, qs), 4)))
        q.consume(ring(n))
        if (n < 8 or n % 2 == 1) and late:
            for t in late.pop(0): a.e(t)
            nl += 1
    assert not late
    a.e('s_waitcnt vmcnt(8)')
    a.e('s_barrier')

    n_tail = cfg.get('NTAIL', 8)
    for n in range(n_tail):
        for it in kread(1, n): emit_item(it)

    def head_wait():
        idx = max(q.need([ring(k2)]) for k2 in range(WG))
        assert idx > q.done
        q.wait_for(a, idx)
    def rowmax(b, qs, dst, tmp):
        r0, r1 = Sreg(b, 0, qs), Sreg(b, 1, qs)
        a.e('v_max3_f32 v%d, v%d, v%d, v%d' % (dst, r0, r0 + 1, r0 + 2))
        a.e('v_max3_f32 v%d, v%d, v%d, v%d' % (dst, dst, r0 + 3, r1))
        a.e('v_max3_f32 v%d, v%d, v%d, v%d' % (dst, dst, r1 + 1, r1 + 2))
        a.e('v_max_f32 v%d, v%d, v%d' % (dst, dst, r1 + 3))
        a.e('v_mov_b32 v%d, v%d' % (tmp, dst))
        a.e('v_permlane16_swap_b32 v%d, v%d' % (tmp, dst))
        a.e('v_max_f32 v%d, v%d, v%d' % (dst, dst, tmp))
        a.e('v_mov_b32 v%d, v%d' % (tmp, dst))
        a.e('v_permlane32_swap_b32 v%d, v%d' % (tmp, dst))
        a.e('v_max_f32 v%d, v%d, v%d' % (dst, dst, tmp))
    for qs in range(2):
        rowmax(0, qs, vMx, vT0)
        for kt in range(2):
            for r in range(4):
                a.e('v_sub_f32 v%d, v%d, v%d' % (Sreg(0, kt, qs) + r, Sreg(0, kt, qs) + r, vMx))
        for r in range(4):
            a.e('v_sub_f32 v%d, 0, v%d' % (NEGM + 4 * qs + r, vMx))

    def softmax_items(b):
        items = []
        for qs in range(2):
            for kt in range(2):
                for pr in range(2):
                    r0 = Sreg(b, kt, qs) + 2 * pr; r1 = r0 + 1
                    items.append('v_exp_f32 v%d, v%d' % (r0, r0))
                    items.append('v_exp_f32 v%d, v%d' % (r1, r1))
                    items.append('v_add_f32 v%d, v%d, v%d' % (vL[qs], vL[qs], r0))
                    items.append('v_cvt_pk_bf16_f32 v%d, v%d, v%d' % (P + 4 * qs + 2 * kt + pr, r0, r1))
                    items.append('v_add_f32 v%d, v%d, v%d' % (vL[qs], vL[qs], r1))
        return items

    LAT = cfg.get('LAT', 8)
    EARLY = cfg.get('EARLY', 22)
    BARG = cfg.get('BARG', 112)
    def body(u, final=False):
        bc, bn = u % 2, (u + 1) % 2
        stK, stV = (u + 1) % 4, u
        mf = [None] * 128
        need = [None] * 64
        for n in range(32):
            if final: break
            ks, kt = n // 2, n % 2
            for qs in range(2):
                mf[2 * n + qs] = '%s %s, %s, %s, %s' % (MF, vr(Sreg(bn, kt, qs), 4), vr(ring(n), 4), Qreg(ks, qs), vr(NEGM + 4 * qs, 4) if ks == 0 else vr(Sreg(bn, kt, qs), 4))
            need[n] = ring(n)
        for dt in range(32):
            for qs in range(2):
                mf[64 + 2 * dt + qs] = '%s %s, %s, %s, %s' % (MF, Oreg(dt, qs), vr(ring(32 + dt), 4), vr(P + 4 * qs, 4), Oreg(dt, qs))
            need[32 + dt] = ring(32 + dt)
        pre = [[] for _ in range(129)]
        if final:
            sm = [] if NO_SM else softmax_items(bc)
            for dt in range(32):
                its = vread(stV, dt)
                sl = 32 + dt - 9
                pre[2 * sl] += [its[0]]; pre[2 * sl + 1] += [its[1]]
            for j, it in enumerate(sm):
                pre[2 * (32 - 9) + (j * 18) // len(sm)].append(it)
            waits = set(range(64, 128, 4))
        else:
            cap = [2] * 128
            def wgap(k):
                g = 2 * (k - k % WG)
                return g
            waits = set(wgap(k) for k in range(WG, 64) if not (BARG <= wgap(k) < 128))
            for g in waits: cap[g] -= 1
            cap[BARG] -= 2; pre[BARG].append(('bar',))
            cap[0] -= 1 if u == 1 else 2
            cap[127] -= 1
            pre[125].append('s_add_u32 s%d, s%d, 1' % (sI, sI)); cap[125] -= 1
            if u in (1, 2):
                pre[126].append('s_cmp_eq_u32 s%d, s%d' % (sI, sN2)); cap[126] -= 1
            ds = []
            def ring_ok(k):
                return 2 * (k - NR) + 2
            for n in range(n_tail, 32):
                for it in kread(stK, n): ds.append((it, max(0, wgap(n) - EARLY, ring_ok(n)), wgap(n) - LAT))
            for dt in range(32):
                k = 32 + dt
                w = min(wgap(k), BARG)
                for it in vread(stV, dt): ds.append((it, max(w - EARLY, ring_ok(k)), w - LAT))
            for n in range(n_tail):
                for it in kread((u + 2) % 4, n): ds.append((it, max(BARG + 1, ring_ok(64 + n)), 124))
            dl = [d[2] for d in ds]
            for x in range(len(ds) - 2, -1, -1):
                dl[x] = min(dl[x], dl[x + 1] - 1)
            sm = [] if NO_SM else [(it, 2 if it.startswith('v_exp') else 1, 1) for it in softmax_items(bc)]
            Sn = S[bn]
            mx = ['v_max3_f32 v%d, v%d, v%d, v%d' % (vMx, Sn, Sn + 1, Sn + 2)]
            for r in range(3, 15, 2):
                mx.append('v_max3_f32 v%d, v%d, v%d, v%d' % (vMx, vMx, Sn + r, Sn + r + 1))
            mx.append('v_max_f32 v%d, v%d, v%d' % (vMx, vMx, Sn + 15))
            mx.append('v_cmp_lt_f32 vcc, 0x41000000, v%d' % vMx)
            sm += [(it, 1, cfg.get('MX_START', 70)) for it in mx]
            dm = []
            if not NO_DMA:
                g0, gs = cfg.get('DMA_START', 66), cfg.get('DMA_STEP', 5)
                for j in range(8):
                    for x, it in enumerate(dma_piece((u + 3) % 4, j, True)):
                        dm.append((it, g0 + gs * j + (-1 if it.startswith('s_add_u32 m0') else 0)))
            di = si = mi = 0
            last_m0 = -9
            for g in range(128):
                used_ds = False
                while cap[g] > 0:
                    ds_ready = di < len(ds) and ds[di][1] <= g and not used_ds
                    ds_urgent = ds_ready and dl[di] <= g + cfg.get('URG', 0)
                    sm_ready = si < len(sm) and sm[si][2] <= g and sm[si][1] <= cap[g]
                    dm_ready = mi < len(dm) and dm[mi][1] <= g and not (dm[mi][0].startswith('buffer') and (last_m0 == g or (used_ds and cfg.get('DMA_EXCL'))))
                    if ds_urgent:
                        pre[g].append(ds[di][0]); di += 1; cap[g] -= 1; used_ds = True
                    elif sm_ready and sm[si][1] == 2:
                        pre[g].append(sm[si][0]); cap[g] -= 2; si += 1
                    elif dm_ready:
                        if dm[mi][0].startswith('s_add_u32 m0'): last_m0 = g
                        if dm[mi][0].startswith('buffer') and cfg.get('DMA_EXCL'): used_ds = True
                        pre[g].append(dm[mi][0]); mi += 1; cap[g] -= 1
                    elif ds_ready:
                        pre[g].append(ds[di][0]); di += 1; cap[g] -= 1; used_ds = True
                    elif sm_ready:
                        pre[g].append(sm[si][0]); cap[g] -= 1; si += 1
                    else:
                        break
                if g == 62: assert NO_SM or si >= 40, ('softmax not finished in phase A', si)
                if g == BARG - 1: assert mi == len(dm), 'dma not finished'
                if di < len(ds): assert ds[di][2] + 4 > g, ('ds late', di, g, ds[di])
            assert di == len(ds) and si == len(sm), (di, len(ds), si, len(sm))
            if u == 0 and cfg.get('SHOW'):
                for g in range(128):
                    print(g, 'W' if g in waits else ' ', [ (x[1] if len(x) > 1 else 'BAR').split()[0] if isinstance(x, tuple) else x.split()[0] for x in pre[g]])
        for pos in range(128):
            k = pos // 2
            for it in pre[pos]:
                if isinstance(it, tuple) and it[0] == 'bar':
                    a.e('s_waitcnt vmcnt(%d) lgkmcnt(0)' % (0 if NO_DMA else 8)); q.drained()
                    a.e('s_barrier')
                else:
                    emit_item(it)
            if mf[pos] is None: continue
            if pos == 127 and not final:
                head_wait()
            if pos in waits:
                idx = 0
                for k2 in range(k, min(64, k + (2 if final else WG))):
                    assert need[k2] in q.pending, ('not issued', k2, pos)
                    idx = max(idx, q.need([need[k2]]))
                q.wait_for(a, idx)
            assert q.need([need[k]]) <= q.done and need[k] in q.pending, ('uncovered', pos)
            a.e(mf[pos])
            if pos % 2 == 1: q.consume(need[k])

    def rare(u):
        bn = (u + 1) % 2
        a.label('%s_rare%d' % (name, u), reset=True)
        a.e('s_nop 15')
        for qs in range(2):
            rowmax(bn, qs, vMx, vT0)
            a.e('v_max_f32 v%d, 0, v%d' % (vMx, vMx))
            a.e('v_sub_f32 v%d, 0, v%d' % (vT0, vMx))
            a.e('v_exp_f32 v%d, v%d' % (vT0, vT0))
            for kt in range(2):
                for r in range(4):
                    a.e('v_sub_f32 v%d, v%d, v%d' % (Sreg(bn, kt, qs) + r, Sreg(bn, kt, qs) + r, vMx))
            for r in range(4):
                a.e('v_sub_f32 v%d, v%d, v%d' % (NEGM + 4 * qs + r, NEGM + 4 * qs + r, vMx))
            a.e('v_mul_f32 v%d, v%d, v%d' % (vL[qs], vL[qs], vT0))
            for dt in range(32):
                o = Obase(dt, qs)
                if o < 128:
                    for j in range(4): a.e('v_mul_f32 v%d, v%d, v%d' % (128 + o + j, 128 + o + j, vT0))
                else:
                    for j in range(4): a.e('v_accvgpr_read_b32 v%d, a%d' % (P + j, o + j))
                    for j in range(4): a.e('v_mul_f32 v%d, v%d, v%d' % (P + j, P + j, vT0))
                    for j in range(4): a.e('v_accvgpr_write_b32 a%d, v%d' % (o + j, P + j))
        a.e('s_nop 3')
        a.e('s_branch %s_back%d' % (name, u))

    head_wait()
    if STAMP: stamp_mid(a, 76)
    a.raw('.p2align 6')
    a.label('%s_loop' % name)
    a.record = []
    qstate0 = q.state()
    saved = {}
    for u in range(4):
        body(u)
        a.e('s_cbranch_vccnz %s_rare%d' % (name, u))
        a.label('%s_back%d' % (name, u))
        if u in (1, 2):
            a.e('s_cbranch_scc1 %s_final%d' % (name, u + 1))
            saved[u + 1] = (copy.deepcopy(q), list(a.hist))
        assert q.state() == qstate0, (q.state(), qstate0)
    a.e('s_branch %s_loop' % name)
    rec = [x[1] for x in a.record if x[0] == 'ins']
    a.record = None
    viol = check_seq(rec + rec[:40])
    assert not viol, viol
    loop_len = len(rec)

    for u in (2, 3):
        a.label('%s_final%d' % (name, u))
        q.__dict__.update(saved[u][0].__dict__); a.hist = saved[u][1]
        q.pending = set()
        if cfg.get('AT_TOUCH', 1):
            a.e('s_lshr_b32 s34, s2, 3')
            a.e('s_lshl_b32 s34, s34, 15')
            a.e('s_add_u32 s34, s34, %d' % W2_OFF)
            a.e('buffer_load_dword v125, v127, %s, s34 offen' % srd)
            a.e('s_mov_b32 s34, %d' % DWC_OFF)
            a.e('buffer_load_dword v125, v127, %s, s34 offen' % srd)
            a.e('s_getpc_b64 s[60:61]')
            lbl = '%s_np%d' % (name, u)
            a.label(lbl)
            a.e('s_add_u32 s60, s60, mid_kernel-%s' % lbl)
            a.e('s_addc_u32 s61, s61, 0')
            a.e('global_load_dword v125, v127, s[60:61]')
            a.e('v_add_u32 v124, 0x8000, v127')
            a.e('global_load_dword v125, v124, s[60:61]')
        body(u, final=True)
        if u == 2:
            a.e('s_branch %s_epi' % name)
    a.label('%s_epi' % name)
    if STAMP: stamp_mid(a, 77)
    a.e('s_cmp_eq_u32 s%d, 0' % sValid)
    a.e('s_cbranch_scc1 %s_end' % name)
    a.e('s_nop 15')
    for qs in range(2):
        l = vL[qs]
        a.e('v_mov_b32 v%d, v%d' % (vT0, l))
        a.e('v_permlane16_swap_b32 v%d, v%d' % (vT0, l))
        a.e('v_add_f32 v%d, v%d, v%d' % (l, l, vT0))
        a.e('v_mov_b32 v%d, v%d' % (vT0, l))
        a.e('v_permlane32_swap_b32 v%d, v%d' % (vT0, l))
        a.e('v_add_f32 v%d, v%d, v%d' % (l, l, vT0))
    a.e('v_cmp_gt_u32 vcc, 0x100, v%d' % vLane16)
    a.e('v_cndmask_b32 v0, v%d, v%d, vcc' % (NEGM + 4, NEGM))
    a.e('v_cndmask_b32 v1, v%d, v%d, vcc' % (vL1, vL0))
    a.e('v_sub_f32 v0, 0, v0')
    a.e('v_lshrrev_b32 v2, 1, v%d' % vLane16)
    a.e('s_mov_b64 exec, 0xffffffff')
    a.e('buffer_store_dwordx2 v[0:1], v2, %s, s%d offen' % (srd, sMl))
    a.e('s_mov_b64 exec, -1')
    t = 0
    for D in range(16):
        for qs in range(2):
            f = D * 2 + qs
            tmp = RING + 4 * (t % 8); t += 1
            srcs = []
            for e in range(2):
                o = Obase(2 * D + e, qs)
                if o < 128:
                    srcs.append(128 + o)
                else:
                    s_ = 8 + 8 * (f % 3) + 4 * e
                    for j in range(4): a.e('v_accvgpr_read_b32 v%d, a%d' % (s_ + j, o + j))
                    srcs.append(s_)
            for e in range(2):
                for j in range(2):
                    a.e('v_cvt_pk_bf16_f32 v%d, v%d, v%d' % (tmp + 2 * e + j, srcs[e] + 2 * j, srcs[e] + 2 * j + 1))
            if f and f % 4 == 0:
                a.e('s_add_u32 s%d, s%d, 0x1000' % (sOut, sOut))
            a.e('buffer_store_dwordx4 %s, v%d, %s, s%d offen offset:%d' % (vr(tmp, 4), vLane16, srd, sOut, (f % 4) * 1024))
    if STAMP: stamp_end(a, sWave, '%s_end' % name)
    a.label('%s_end' % name)
    a.e('s_endpgm')
    for u in range(4):
        rare(u)
    return dict(name=name, vgpr=512, sgpr=96, accum=256, grid=256, block=256, lds=131072, loop_len=loop_len)
```

```python
from asmlib import *
from layout import *
MF = 'v_mfma_f32_16x16x32_bf16'

def make_srd(a, d, ptr, nbytes):
    a.e('s_mov_b32 s%d, s%d' % (d, ptr))
    a.e('s_and_b32 s%d, s%d, 0xffff' % (d + 1, ptr + 1))
    a.e('s_mov_b32 s%d, %d' % (d + 2, nbytes))
    a.e('s_mov_b32 s%d, 0x00020000' % (d + 3))

class VmQ:
    def __init__(self): self.n = 0; self.done = 0; self.where = {}
    def issue(self, key=None):
        self.n += 1
        if key is not None: self.where[key] = self.n
    def wait(self, a, key):
        idx = self.where[key]
        if idx <= self.done: return
        N = min(self.n - idx, 63)
        a.e('s_waitcnt vmcnt(%d)' % N); self.done = self.n - N
    def wait_all(self, a):
        if self.done < self.n:
            a.e('s_waitcnt vmcnt(0)'); self.done = self.n

class LgQ(VmQ):
    def wait(self, a, key):
        idx = self.where[key]
        if idx <= self.done: return
        N = min(self.n - idx, 15)
        a.e('s_waitcnt lgkmcnt(%d)' % N); self.done = self.n - N
    def wait_all(self, a):
        if self.done < self.n:
            a.e('s_waitcnt lgkmcnt(0)'); self.done = self.n

def quad_reduce(a, op, reg, tmp):
    a.e('v_mov_b32 v%d, v%d' % (tmp, reg))
    a.e('v_permlane16_swap_b32 v%d, v%d' % (tmp, reg))
    a.e('%s v%d, v%d, v%d' % (op, reg, reg, tmp))
    a.e('v_mov_b32 v%d, v%d' % (tmp, reg))
    a.e('v_permlane32_swap_b32 v%d, v%d' % (tmp, reg))
    a.e('%s v%d, v%d, v%d' % (op, reg, reg, tmp))

import struct
def f2u(x): return struct.unpack('<I', struct.pack('<f', x))[0]
def fhex(x): return '0x%08x' % f2u(x)

def code_prefetch(a, name, vtmp, vdst, n, sp=60, start=None, end=None, back=True, part_sgpr=None):
    start = start or name; end = end or (name + '_end')
    a.e('s_getpc_b64 s[%d:%d]' % (sp, sp + 1))
    lbl = '%s_pf%d' % (name, len(a.lines))
    a.label(lbl)
    a.e('s_add_u32 s%d, s%d, %s-%s' % (sp, sp, start, lbl))
    a.e('s_addc_u32 s%d, s%d, %s' % (sp + 1, sp + 1, '-1' if back else '0'))
    a.e('v_lshlrev_b32 v%d, 7, v0' % vtmp)
    if part_sgpr is not None: a.e('v_add_u32 v%d, s%d, v%d' % (vtmp, part_sgpr, vtmp))
    for k in range(n):
        if k: a.e('v_add_u32 v%d, 0x8000, v%d' % (vtmp, vtmp))
        a.e('v_min_u32 v%d, %s-%s, v%d' % (vdst, end, start, vtmp))
        a.e('global_load_dword v%d, v%d, s[%d:%d]' % (vdst, vdst, sp, sp + 1))
        vdst += 1
    return n

def l2_touch(a, srd, base, nbytes, vtmp, vdst, stmp, vq=None, gran=128, base_sgpr=None, nparts=32, part_expr=None):
    per = 256 * gran
    sh = {128: 7, 64: 6}[gran]
    if part_expr is None:
        a.e('s_lshr_b32 s%d, s2, 3' % stmp)
    else:
        part_expr(stmp)
    a.e('s_mul_i32 s%d, s%d, %d' % (stmp, stmp, per))
    if base_sgpr is not None: a.e('s_add_u32 s%d, s%d, s%d' % (stmp, stmp, base_sgpr))
    a.e('s_add_u32 s%d, s%d, %d' % (stmp, stmp, base))
    a.e('v_lshlrev_b32 v%d, %d, v0' % (vtmp, sh))
    n = (nbytes + per * nparts - 1) // (per * nparts)
    for k in range(n):
        if k: a.e('s_add_u32 s%d, s%d, %d' % (stmp, stmp, per * nparts))
        a.e('buffer_load_dword v%d, v%d, %s, s%d offen' % (vdst, vtmp, srd, stmp))
        if vq is not None: vq.issue()

class Stream:
    def __init__(self, a, vq, pace):
        self.a = a; self.vq = vq; self.pace = pace; self.q = []; self.last = -10**9; self.issued = set()
    def add(self, pre, ins, key, ready=None, cost=1.0):
        self.q.append((pre, ins, key, ready, cost))
    def _issue(self):
        pre, ins, key, ready, cost = self.q.pop(0)
        for p in pre: self.a.e(p)
        self.a.e(ins); self.vq.issue(key); self.issued.add(key)
        self.last = max(self.last + self.pace, self.a.clock - self.pace // 2) + (cost - 1.0) * self.pace
    def tick(self):
        if self.q and self.a.clock - self.last >= self.pace and (self.q[0][3] is None or self.q[0][3]()):
            self._issue(); return True
        return False
    def force(self, key):
        while key not in self.issued:
            assert self.q[0][3] is None or self.q[0][3](), ('stream blocked', self.q[0][2], key)
            self._issue()
    def burst(self, n):
        for _ in range(n):
            if self.q and (self.q[0][3] is None or self.q[0][3]()): self._issue()
    def wait(self, key):
        self.force(key); self.vq.wait(self.a, key)
```

```python
from common import *

def conv_addr_regs(a, AD, vLane, sKs0, NTS, tmp):
    t0, t1 = tmp, tmp + 1
    a.e('v_lshrrev_b32 v%d, 4, v%d' % (t0, vLane))
    a.e('v_mul_u32_u24 v%d, %d, v%d' % (AD, NTS * 1024, t0))
    a.e('v_bfe_u32 v%d, v%d, 2, 2' % (t1, vLane))
    a.e('v_lshl_add_u32 v%d, v%d, 8, v%d' % (AD, t1, AD))
    a.e('v_and_b32 v%d, 3, v%d' % (t0, vLane))
    a.e('v_lshl_add_u32 v%d, v%d, 2, v%d' % (AD, t0, AD))
    a.e('v_add_u32 v%d, s%d, v%d' % (AD, sKs0, AD))
    a.e('v_bfe_u32 v%d, v%d, 2, 3' % (t1, vLane))
    for i in range(7, -1, -1):
        a.e('v_xor_b32 v%d, %d, v%d' % (t0, i, t1))
        a.e('v_lshl_add_u32 v%d, v%d, 4, v%d' % (AD + i, t0, AD))

def tok_read_regs(a, R0, R1, vLane, tmp):
    a.e('v_lshrrev_b32 v%d, 4, v%d' % (tmp, vLane))
    a.e('v_xor_b32 v%d, v%d, v%d' % (R0, tmp, vLane))
    a.e('v_lshlrev_b32 v%d, 4, v%d' % (R0, R0))
    a.e('v_xor_b32 v%d, 64, v%d' % (R1, R0))

def conv_unpack_w(a, CW, RAW, center_one):
    a.e('s_mov_b32 s90, 0xffff0000')
    for i in range(31):
        a.e('v_lshlrev_b32 v%d, 16, v%d' % (CW + 2 * i, RAW + i))
        a.e('v_and_b32 v%d, s90, v%d' % (CW + 2 * i + 1, RAW + i))
    if center_one:
        a.e('v_add_f32 v%d, 1.0, v%d' % (CW + 30, CW + 30))
        a.e('v_add_f32 v%d, 1.0, v%d' % (CW + 31, CW + 31))

def conv_body(a, R, CW, CACC, INR, VAL, vIn, AD, lq, mul_u=None, piece_wait=None, hook=None, tick=None):
    NROW = R + 32
    a.dense = True
    def rd(pair):
        if 2 * pair >= NROW: return
        if piece_wait and (2 * pair) % 4 == 0: piece_wait((2 * pair) // 4)
        a.e('ds_read2st64_b32 %s, v%d offset0:%d offset1:%d' % (vr(INR + 2 * (pair % 4), 2), vIn, 2 * pair, 2 * pair + 1))
        lq.issue(('in', pair))
    def oaddr(o):
        i = o & 15; ts = o >> 4
        return AD + (i & 7), ts * 1024 + (i & 8) * 16
    def urd(o):
        if mul_u is None or o >= R or o < 0: return
        ad, off = oaddr(o)
        a.e('ds_read_b32 v%d, v%d offset:%d' % (mul_u[0] + o % 4, ad, off)); lq.issue(('u', o))
    for p in range(3): rd(p)
    for row in range(1, R + 31):
        j = row - 1
        if row % 2 == 0: rd(row // 2 + 2)
        if row == 1: pass
        urd(j - 30 + 2)
        lq.wait(a, ('in', row // 2))
        v = VAL + 2 * (row % 2)
        raw = INR + 2 * ((row // 2) % 4) + (row % 2)
        a.e('v_lshlrev_b32 v%d, 16, v%d' % (v, raw))
        a.e('v_and_b32 v%d, s90, v%d' % (v + 1, raw))
        for o in range(max(0, j - 30), min(R - 1, j) + 1):
            tap = j - o
            acc = vr(CACC + 2 * (o % 32), 2)
            if tap == 0:
                a.e('v_pk_mul_f32 %s, %s, %s' % (acc, vr(CW, 2), vr(v, 2)))
            else:
                a.e('v_pk_fma_f32 %s, %s, %s, %s' % (acc, vr(CW + 2 * tap, 2), vr(v, 2), acc))
            if tick and tap % 2 == 1: tick()
        o = j - 30
        if o >= 0:
            r = CACC + 2 * (o % 32)
            if mul_u is not None:
                lq.wait(a, ('u', o))
                ur, ut = mul_u[0] + o % 4, mul_u[1]
                a.e('v_lshlrev_b32 v%d, 16, v%d' % (ut, ur))
                a.e('v_and_b32 v%d, s90, v%d' % (ut + 1, ur))
                a.e('v_pk_mul_f32 %s, %s, %s' % (vr(r, 2), vr(r, 2), vr(ut, 2)))
            a.e('v_cvt_pk_bf16_f32 v%d, v%d, v%d' % (r, r, r + 1))
            ad, off = oaddr(o)
            a.e('ds_write_b32 v%d, v%d offset:%d' % (ad, r, off)); lq.issue()
        if hook: hook(row)
    a.dense = False
```

```python
import math
from common import *
from prep import chan_combine
from attn16 import stamp_begin, stamp_mid, stamp_end

def gen_in(a, name='in_kernel', cfg=None):
    cfg = cfg or {}
    STAMP = cfg.get('STAMP', False)
    RW = 56; PW = cfg.get('IN_PW', 52); NW = 192; TB = 4 * RW
    QA = 128
    vLane, vLane16, vK, vRow, vI, vQ4, vX, vSw, vSr, TMP = 192, 193, 194, 195, 196, 197, 198, 199, 200, 202
    sWave, sT, sCG, sW, sA, sB, sC = 3, 6, 7, 12, 13, 14, 15
    STL = 65536
    ws = 's[8:11]'
    def acc(t, ts): return (t * 4 + ts) * 4

    kernel_begin(a, name)
    a.e('s_and_b32 s20, s2, 7')
    a.e('s_lshr_b32 s21, s2, 4')
    a.e('s_lshl_b32 s%d, s20, 4' % sT)
    a.e('s_add_u32 s%d, s%d, s21' % (sT, sT))
    a.e('s_cmp_ge_u32 s2, 256')
    a.e('s_cbranch_scc1 %s_end' % name)
    a.e('s_cmp_ge_u32 s%d, 125' % sT)
    a.e('s_cbranch_scc1 %s_end' % name)
    a.e('s_load_dwordx2 s[4:5], s[0:1], 80')
    a.e('s_load_dwordx2 s[16:17], s[0:1], 0')
    if STAMP: stamp_begin(a)
    if cfg.get('CPF', 1): code_prefetch(a, name, 250, 251, 1)
    a.e('s_bfe_u32 s%d, s2, 0x10003' % sCG)
    a.e('v_lshrrev_b32 v1, 6, v0')
    a.e('v_and_b32 v%d, 63, v0' % vLane)
    a.e('v_readfirstlane_b32 s%d, v1' % sWave)
    a.e('v_lshlrev_b32 v%d, 4, v%d' % (vLane16, vLane))
    a.e('v_lshrrev_b32 v%d, 4, v%d' % (vQ4, vLane))
    a.e('v_and_b32 v%d, 15, v%d' % (vI, vLane))
    a.e('v_lshrrev_b32 v6, 5, v%d' % vLane)
    a.e('v_mul_u32_u24 v7, 12, v6')
    a.e('v_and_b32 v8, 31, v%d' % vLane)
    a.e('v_xor_b32 v7, v7, v8')
    a.e('v_lshlrev_b32 v%d, 10, v7' % vX)
    a.e('v_lshl_add_u32 v%d, v6, 4, v%d' % (vX, vX))
    a.e('s_lshl_b32 s%d, s%d, 9' % (sB, sWave))
    a.e('s_add_u32 s%d, s%d, %d' % (sB, sB, STL))
    a.e('v_lshlrev_b32 v%d, 3, v7' % vSr)
    a.e('v_lshl_add_u32 v%d, v6, 8, v%d' % (vSw, vSr))
    a.e('v_add_u32 v%d, s%d, v%d' % (vSw, sB, vSw))
    a.e('v_add_u32 v%d, %d, v%d' % (vSr, STL, vSr))
    a.e('s_lshl_b32 s%d, s%d, 16' % (sA, sT))
    a.e('s_lshl_b32 s%d, s%d, 8' % (sB, sWave))
    a.e('s_add_u32 s%d, s%d, s%d' % (sB, sA, sB))
    a.e('s_add_u32 s%d, s%d, 0x8000' % (sC, sB))
    a.e('s_lshl_b32 s%d, s%d, 2' % (sW, sCG))
    a.e('s_add_u32 s%d, s%d, s%d' % (sW, sW, sWave))
    a.e('s_mov_b32 s46, s%d' % sW)
    a.e('s_mul_i32 s%d, s%d, %d' % (sW, sW, NW * 1024))
    a.e('s_add_u32 s%d, s%d, %d' % (sW, sW, W1_OFF))
    a.e('s_waitcnt lgkmcnt(0)')
    make_srd(a, 8, 4, WS_BYTES)
    make_srd(a, 20, 16, 8192000)
    vq = VmQ()
    RAWX = 128
    for b2 in range(2):
        for j in range(8):
            a.e('buffer_load_dwordx4 %s, v%d, s[20:23], s%d offen offset:%d' % (vr(RAWX + 32 * b2 + 4 * j, 4), vX, sB if b2 == 0 else sC, 32 * j))
            vq.issue(('x', b2, j))
    st = Stream(a, vq, cfg.get('IN_PACE', 72))
    state = dict(cons=-1)
    for n in range(NW):
        pre = ['s_add_u32 s%d, s%d, 0x1000' % (sW, sW)] if (n and n % 4 == 0) else []
        st.add(pre, 'buffer_load_dwordx4 %s, v%d, %s, s%d offen offset:%d' % (ar(4 * (n % RW), 4), vLane16, ws, sW, (n % 4) * 1024), ('w', n),
               (lambda nn: (lambda: nn < RW or state['cons'] >= nn - RW))(n))
    st.burst(cfg.get('IN_W0', 8))
    a.e('s_mov_b32 s90, 0xffff0000')
    LNT = cfg.get('IN_LNTICK', 1)
    a.e('v_and_b32 v%d, 1, v%d' % (vK, vQ4))
    a.e('v_mul_u32_u24 v%d, 12, v%d' % (vK, vK))
    a.e('v_xor_b32 v%d, v%d, v%d' % (vK, vK, vI))
    a.e('v_lshlrev_b32 v%d, 4, v%d' % (vK, vK))
    a.e('v_lshl_add_u32 v%d, v%d, 9, v%d' % (vK, vQ4, vK))
    a.e('v_lshlrev_b32 v%d, 10, v%d' % (vRow, vI))
    a.e('v_lshl_add_u32 v%d, v%d, 4, v%d' % (vRow, vQ4, vRow))
    T = TMP
    a.dense = True
    for b2 in range(2):
        X = 64 * b2
        for j in range(8):
            vq.wait(a, ('x', b2, j))
            for d in range(4):
                a.e('v_lshlrev_b32 v%d, 16, v%d' % (X + 8 * j + 2 * d, RAWX + 32 * b2 + 4 * j + d))
                a.e('v_and_b32 v%d, s90, v%d' % (X + 8 * j + 2 * d + 1, RAWX + 32 * b2 + 4 * j + d))
            if LNT: st.tick()
        p0, p1, nm, d0, d1, q0, q1 = [vr(T + 2 * i, 2) for i in range(7)]
        a.e('v_pk_add_f32 %s, %s, %s' % (p0, vr(X, 2), vr(X + 2, 2)))
        a.e('v_pk_add_f32 %s, %s, %s' % (p1, vr(X + 4, 2), vr(X + 6, 2)))
        for p in range(4, 32, 2):
            a.e('v_pk_add_f32 %s, %s, %s' % (p0, p0, vr(X + 2 * p, 2)))
            a.e('v_pk_add_f32 %s, %s, %s' % (p1, p1, vr(X + 2 * p + 2, 2)))
        a.e('v_pk_add_f32 %s, %s, %s' % (p0, p0, p1))
        a.e('v_add_f32 v%d, v%d, v%d' % (T, T, T + 1))
        a.e('v_mul_f32 v%d, %s, v%d' % (T, fhex(1.0 / 64), T))
        a.e('v_sub_f32 v%d, 0, v%d' % (T + 4, T))
        a.e('v_sub_f32 v%d, 0, v%d' % (T + 5, T))
        for p in range(0, 32, 2):
            a.e('v_pk_add_f32 %s, %s, %s' % (d0, vr(X + 2 * p, 2), nm))
            a.e('v_pk_add_f32 %s, %s, %s' % (d1, vr(X + 2 * p + 2, 2), nm))
            if p == 0:
                a.e('v_pk_mul_f32 %s, %s, %s' % (q0, d0, d0)); a.e('v_pk_mul_f32 %s, %s, %s' % (q1, d1, d1))
            else:
                a.e('v_pk_fma_f32 %s, %s, %s, %s' % (q0, d0, d0, q0)); a.e('v_pk_fma_f32 %s, %s, %s, %s' % (q1, d1, d1, q1))
            if LNT: st.tick()
        a.e('v_pk_add_f32 %s, %s, %s' % (q0, q0, q1))
        a.e('v_add_f32 v%d, v%d, v%d' % (T + 1, T + 10, T + 11))
        a.e('ds_write_b64 v%d, %s offset:%d' % (vSw, vr(T, 2), 2048 * b2))
    a.e('s_waitcnt lgkmcnt(0)')
    a.e('s_barrier')
    if STAMP: stamp_mid(a, 4)
    SP = T + 16
    for b2 in range(2):
        for p in range(8):
            a.e('ds_read_b64 %s, v%d offset:%d' % (vr(SP + 16 * b2 + 2 * p, 2), vSr, 2048 * b2 + 256 * p))
    a.e('s_lshl_b32 s%d, s%d, 13' % (sB, sWave))
    a.e('v_add_u32 v%d, s%d, v%d' % (vX, sB, vLane16))
    a.e('s_add_u32 s%d, s%d, s%d' % (sB, sB, sA))
    a.e('s_lshl_b32 s%d, s%d, 15' % (sC, sCG))
    a.e('s_add_u32 s%d, s%d, s%d' % (sB, sB, sC))
    if XF_OFF: a.e('s_add_u32 s%d, s%d, %d' % (sB, sB, XF_OFF))
    a.e('s_add_u32 s%d, s%d, 0x1000' % (sC, sB))
    for b2 in range(2):
        a.e('s_waitcnt lgkmcnt(%d)' % (8 if b2 == 0 else 8))
        X = 64 * b2
        chan_combine(a, SP + 16 * b2, 8, 64, T, T + 1, T + 2)
        for j in range(8):
            for d in range(4):
                r = X + 8 * j + 2 * d
                a.e('v_pk_fma_f32 %s, %s, %s, %s op_sel:[0,0,1] op_sel_hi:[1,0,1]' % (vr(r, 2), vr(r, 2), vr(T, 2), vr(T, 2)))
            for d in range(4):
                r = X + 8 * j + 2 * d
                a.e('v_cvt_pk_bf16_f32 v%d, v%d, v%d' % (RAWX + 32 * b2 + 4 * j + d, r, r + 1))
            a.e('ds_write_b128 v%d, %s offset:%d' % (vX, vr(RAWX + 32 * b2 + 4 * j, 4), 32768 * b2 + 1024 * j))
            if LNT: st.tick()
    a.dense = False
    a.e('s_mov_b32 s48, s%d' % sB); a.e('s_mov_b32 s49, s%d' % sC)
    a.e('s_waitcnt lgkmcnt(0)')
    a.e('s_barrier')
    if STAMP: stamp_mid(a, 76)

    def gemm(t0, nt, n0):
        lq = LgQ()
        def tread(ks, ts):
            a.e('ds_read_b128 %s, v%d offset:%d' % (ar(TB + ((ks % 2) * 4 + ts) * 4, 4), vK, (ts >> 1) * 32768 + ks * 2048 + (ts & 1) * 256))
            lq.issue((ks, ts))
        for ts in range(4): tread(0, ts)
        for ks in range(16):
            lq.wait(a, (ks, 3))
            cnt = 0
            for t in range(nt):
                n = n0 + ks * nt + t
                if t % 4 == 0: st.wait(('w', n + 3))
                for ts in (range(4) if t % 2 == 0 else range(3, -1, -1)):
                    a.e('%s %s, %s, %s, %s' % (MF, vr(acc(t0 + t, ts), 4), ar(4 * (n % RW), 4), ar(TB + ((ks % 2) * 4 + ts) * 4, 4), '0' if ks == 0 else vr(acc(t0 + t, ts), 4)))
                    cnt += 1
                    if cnt in (2, 5, 7, 10) and ks + 1 < 16: tread(ks + 1, (2, 5, 7, 10).index(cnt))
                    if cnt % 4 == 3: st.burst(1)
                state['cons'] = n
    gemm(0, 8, 0)
    st.burst(cfg.get('IN_B2', 0))
    a.e('s_cmp_eq_u32 s%d, 0' % sCG)
    a.e('s_cbranch_scc0 %s_xs1' % name)
    for b2 in range(2):
        if b2 == 1: a.label('%s_xs1' % name)
        for j in range(8):
            a.e('buffer_store_dwordx4 %s, v%d, %s, s%d offen offset:%d' % (vr(RAWX + 32 * b2 + 4 * j, 4), vLane16, ws, 48 if j < 4 else 49, (j % 4) * 1024))
            if b2 == 0: vq.issue()
        if b2 == 0: a.e('s_branch %s_xs2' % name)
    a.label('%s_xs2' % name)
    a.dense = True
    if STAMP: stamp_mid(a, 77)
    c1 = -2.0 * math.log2(math.e) * math.sqrt(2.0 / math.pi); c2 = c1 * 0.044715
    C1, C2, ONE, G = T, T + 2, T + 4, T + 6
    for r, v in ((C1, c1), (C2, c2), (ONE, 1.0)):
        a.e('v_mov_b32 v%d, %s' % (r, fhex(v))); a.e('v_mov_b32 v%d, %s' % (r + 1, fhex(v)))
    def gelu8(prs):
        g = [vr(G + 2 * j, 2) for j in range(4)]
        x = [vr(r, 2) for r in prs]
        for j in range(4): a.e('v_pk_mul_f32 %s, %s, %s' % (g[j], x[j], x[j]))
        for j in range(4): a.e('v_pk_fma_f32 %s, %s, %s, %s' % (g[j], g[j], vr(C2, 2), vr(C1, 2)))
        for j in range(4): a.e('v_pk_mul_f32 %s, %s, %s' % (g[j], g[j], x[j]))
        for j in range(8): a.e('v_exp_f32 v%d, v%d' % (G + j, G + j))
        for j in range(4): a.e('v_pk_add_f32 %s, %s, %s' % (g[j], g[j], vr(ONE, 2)))
        for j in range(8): a.e('v_rcp_f32 v%d, v%d' % (G + j, G + j))
        for j in range(4): a.e('v_pk_mul_f32 %s, %s, %s' % (x[j], x[j], g[j]))
    def pairs(dd, ts): return [acc(2 * dd + e, ts) + 2 * j for e in range(2) for j in range(2)]
    PK = T + 16
    pk = [0]
    def pack(prs):
        o = PK + 4 * (pk[0] % 4); pk[0] += 1
        for j, r in enumerate(prs): a.e('v_cvt_pk_bf16_f32 v%d, v%d, v%d' % (o + j, r, r + 1))
        return o
    a.e('s_lshl_b32 s%d, s%d, 8' % (sB, sWave))
    a.e('s_add_u32 s47, s%d, s%d' % (sA, sB))
    a.e('s_cmp_eq_u32 s%d, 0' % sCG)
    a.e('s_cbranch_scc1 %s_g' % name)
    hist0 = list(a.hist)
    for ts in range(4):
        a.e('s_add_u32 s%d, s47, %d' % (sC, U_OFF + ts * 16384))
        for dd in range(4):
            gelu8(pairs(dd, ts))
            o = pack(pairs(dd, ts))
            a.e('buffer_store_dwordx4 %s, v%d, %s, s%d offen offset:%d' % (vr(o, 4), vRow, ws, sC, dd * 64))
    a.e('s_branch %s_q' % name)
    a.label('%s_g' % name); a.hist = hist0
    a.e('s_lshl_b32 s%d, s%d, 9' % (sB, sWave))
    a.e('s_add_u32 s%d, s%d, %d' % (sB, sB, STL))
    a.e('v_lshlrev_b32 v%d, 3, v%d' % (vSr, vI))
    a.e('v_add_u32 v%d, s%d, v%d' % (vSw, sB, vSr))
    a.e('v_add_u32 v%d, %d, v%d' % (vSr, STL, vSr))
    S0 = PK
    for ts in range(4):
        allp = []
        for dd in range(4):
            gelu8(pairs(dd, ts)); allp += pairs(dd, ts)
        s, nm, d, q = [vr(S0 + 2 * i, 2) for i in range(4)]
        a.e('v_pk_add_f32 %s, %s, %s' % (s, vr(allp[0], 2), vr(allp[1], 2)))
        for r in allp[2:]: a.e('v_pk_add_f32 %s, %s, %s' % (s, s, vr(r, 2)))
        a.e('v_add_f32 v%d, v%d, v%d' % (S0, S0, S0 + 1))
        quad_reduce(a, 'v_add_f32', S0, S0 + 8)
        a.e('v_mul_f32 v%d, %s, v%d' % (S0, fhex(1.0 / 128), S0))
        a.e('v_sub_f32 v%d, 0, v%d' % (S0 + 2, S0))
        a.e('v_sub_f32 v%d, 0, v%d' % (S0 + 3, S0))
        for j, r in enumerate(allp):
            a.e('v_pk_add_f32 %s, %s, %s' % (d, vr(r, 2), nm))
            if j == 0: a.e('v_pk_mul_f32 %s, %s, %s' % (q, d, d))
            else: a.e('v_pk_fma_f32 %s, %s, %s, %s' % (q, d, d, q))
        a.e('v_add_f32 v%d, v%d, v%d' % (S0 + 1, S0 + 6, S0 + 7))
        quad_reduce(a, 'v_add_f32', S0 + 1, S0 + 8)
        a.e('ds_write_b64 v%d, %s offset:%d' % (vSw, vr(S0, 2), ts * 128))
    a.e('s_waitcnt lgkmcnt(0)')
    a.e('s_barrier')
    SQ = T + 32
    for ts in range(4):
        b = SQ + 8 * (ts % 2)
        if ts == 0:
            for t2 in range(2):
                for w in range(4): a.e('ds_read_b64 %s, v%d offset:%d' % (vr(SQ + 8 * t2 + 2 * w, 2), vSr, w * 512 + t2 * 128))
        a.e('s_waitcnt lgkmcnt(%d)' % (4 if ts < 3 else 0))
        chan_combine(a, b, 4, 128, T, T + 1, T + 2)
        if ts + 2 < 4:
            for w in range(4): a.e('ds_read_b64 %s, v%d offset:%d' % (vr(b + 2 * w, 2), vSr, w * 512 + (ts + 2) * 128))
        a.e('s_add_u32 s%d, s47, %d' % (sC, G_OFF + ts * 16384))
        for dd in range(4):
            for r in pairs(dd, ts):
                a.e('v_pk_fma_f32 %s, %s, %s, %s op_sel:[0,0,1] op_sel_hi:[1,0,1]' % (vr(r, 2), vr(r, 2), vr(T, 2), vr(T, 2)))
            o = pack(pairs(dd, ts))
            a.e('buffer_store_dwordx4 %s, v%d, %s, s%d offen offset:%d' % (vr(o, 4), vRow, ws, sC, dd * 64))
            vq.issue()
    a.dense = False
    a.label('%s_q' % name, reset=True)
    if STAMP: stamp_mid(a, 2)
    a.e('s_nop 1')
    gemm(8, 4, 128)
    assert not st.q
    if STAMP: stamp_mid(a, 3)
    a.e('s_lshl_b32 s%d, s46, 12' % sB)
    a.e('s_add_u32 s%d, s%d, s%d' % (sB, sA, sB))
    a.e('s_add_u32 s%d, s%d, %d' % (sB, sB, QF_OFF))
    a.e('s_add_u32 s%d, s%d, 0x8000' % (sC, sB))
    for ts in range(4):
        for dd in range(2):
            o = pack(pairs(4 + dd, ts))
            a.e('buffer_store_dwordx4 %s, v%d, %s, s%d offen offset:%d' % (vr(o, 4), vLane16, ws, sB if ts < 2 else sC, dd * 2048 + (ts & 1) * 1024))
    if STAMP: stamp_end(a, sWave)
    a.label('%s_end' % name)
    a.e('s_endpgm')
    return dict(name=name, vgpr=512, sgpr=96, accum=256, grid=256, block=256, lds=65536 + 4096)
```

```python
MB = 1 << 20
WS_BYTES = 268435456
XF_OFF = 0
QF_OFF = 8 * MB
U_OFF = 16 * MB
G_OFF = 24 * MB
OP_OFF = 32 * MB
ML_OFF = 64 * MB
M_OFF = 66 * MB
W1_OFF = 84 * MB
W2_OFF = W1_OFF + 1536 * 1024
W3_OFF = W2_OFF + 1024 * 1024
DWC_OFF = W3_OFF + 1024 * 1024
DWM_OFF = DWC_OFF + 32 * 1024
TPC_OFF = DWM_OFF + 64 * 1024
TPM_OFF = TPC_OFF + 144 * 1024
CNT_OFF = TPM_OFF + 288 * 1024
TC_OFF = CNT_OFF + 8192
RC_OFF = TC_OFF + 16384
SX_OFF = CNT_OFF + 65536
PO_OFF = 66 * MB
HX_OFF = 76 * MB
TRACE_OFF = 200 * MB
TRACE_STRIDE = 256 * 1024
UG_OFF = 120 * MB; GST_OFF = 130 * MB; MC_OFF = 132 * MB
```

```python
from common import *
from convlib import *
from attn16 import stamp_begin, stamp_mid, stamp_end

def gen_mid(a, name='mid_kernel', cfg=None):
    cfg = cfg or {}
    STAMP = cfg.get('STAMP', False)
    RW = 56; PW = cfg.get('MID_PW', 52); NW = 128; TB = 4 * RW
    CW, CACC = 0, 64
    RAW = CACC + 32
    INR, VAL, AD, UR, UT = 128, 136, 140, 148, 152
    vLane, vLane16, vIn, vDs, TR0, TR1, vRow, vU0, vU1, vI, vQ4, vTo, TMP = 208, 209, 210, 211, 212, 213, 214, 215, 216, 217, 218, 219, 220
    WIN = 65536
    sWave, sK, sW, sA, sB, sC, sU, sWin, sTy, sBt, sTok, sP = 3, 6, 7, 32, 33, 34, 35, 36, 37, 38, 39, 40
    ws = 's[8:11]'
    def acc(t, ts): return (t * 4 + ts) * 4

    kernel_begin(a, name)
    a.e('s_and_b32 s%d, s2, 3' % sK)
    a.e('s_lshl_b32 s%d, s%d, 4' % (sK, sK))
    a.e('s_lshr_b32 s%d, s2, 4' % sA)
    a.e('s_add_u32 s%d, s%d, s%d' % (sK, sK, sA))
    a.e('s_cmp_ge_u32 s2, 256')
    a.e('s_cbranch_scc1 %s_end' % name)
    a.e('s_cmp_ge_u32 s%d, 63' % sK)
    a.e('s_cbranch_scc1 %s_end' % name)
    a.e('s_load_dwordx2 s[4:5], s[0:1], 80')
    if STAMP: stamp_begin(a)
    if cfg.get('CPF', 1): code_prefetch(a, name, 250, 251, 2)
    a.e('s_bfe_u32 s%d, s2, 0x10003' % sTy)
    a.e('s_bfe_u32 s%d, s2, 0x10002' % sBt)
    a.e('s_mov_b32 s90, 0xffff0000')
    a.e('v_lshrrev_b32 v1, 6, v0')
    a.e('v_and_b32 v%d, 63, v0' % vLane)
    a.e('v_readfirstlane_b32 s%d, v1' % sWave)
    a.e('v_lshlrev_b32 v%d, 4, v%d' % (vLane16, vLane))
    a.e('v_lshrrev_b32 v%d, 4, v%d' % (vQ4, vLane))
    a.e('v_and_b32 v%d, 15, v%d' % (vI, vLane))
    a.e('v_lshlrev_b32 v%d, 11, v%d' % (vRow, vI))
    a.e('v_lshl_add_u32 v%d, v%d, 4, v%d' % (vRow, vQ4, vRow))
    a.e('v_lshlrev_b32 v%d, 7, v%d' % (vTo, vLane))
    tok_read_regs(a, TR0, TR1, vLane, TMP)
    a.e('s_mul_i32 s%d, s%d, 4000' % (sTok, sBt))
    a.e('s_lshl_b32 s%d, s%d, 6' % (sA, sK))
    a.e('s_add_u32 s%d, s%d, s%d' % (sTok, sTok, sA))
    a.e('s_lshl_b32 s%d, s%d, 2' % (sW, sTy))
    a.e('s_add_u32 s%d, s%d, s%d' % (sW, sW, sWave))
    a.e('s_lshl_b32 s46, s%d, 8' % sW)
    a.e('s_lshl_b32 s%d, s%d, 17' % (sW, sW))
    a.e('s_add_u32 s%d, s%d, %d' % (sW, sW, W2_OFF))
    a.e('s_lshl_b32 s%d, s%d, 10' % (sP, sTok))
    a.e('s_lshl_b32 s%d, s%d, 13' % (sB, sWave))
    a.e('s_add_u32 s%d, s%d, s%d' % (sP, sP, sB))
    a.e('s_add_u32 s%d, s%d, %d' % (sP, sP, OP_OFF))
    a.e('s_waitcnt lgkmcnt(0)')
    make_srd(a, 8, 4, WS_BYTES)
    vq = VmQ(); lq = LgQ()
    state = dict(cons=-1)
    def wfrag(st, n):
        pre = ['s_add_u32 s%d, s%d, 0x1000' % (sW, sW)] if (n and n % 4 == 0) else []
        st.add(pre, 'buffer_load_dwordx4 %s, v%d, %s, s%d offen offset:%d' % (ar(4 * (n % RW), 4), vLane16, ws, sW, (n % 4) * 1024), ('w', n),
               (lambda: True) if n < RW else (lambda: state['cons'] >= n - RW))
    def m_srd():
        a.e('s_mul_i32 s%d, s%d, 8192000' % (sC, sBt))
        a.e('s_add_u32 s%d, s%d, %d' % (sC, sC, M_OFF))
        a.e('s_add_u32 s20, s4, s%d' % sC)
        a.e('s_addc_u32 s21, s5, 0')
        a.e('s_and_b32 s21, s21, 0xffff')
        a.e('s_mov_b32 s22, 8192000')
        a.e('s_mov_b32 s23, 0x00020000')
    a.e('s_cmp_eq_u32 s%d, 0' % sTy)
    a.e('s_cbranch_scc1 %s_glob' % name)

    st = Stream(a, vq, cfg.get('MID_PACE', 120))
    a.e('s_add_u32 s%d, s%d, %d' % (sB, sB, DWC_OFF))
    a.e('s_add_u32 s%d, s%d, 0x1000' % (sC, sB))
    for q in range(8):
        a.e('buffer_load_dwordx4 %s, v%d, %s, s%d offen offset:%d' % (vr(RAW + 4 * q, 4), vLane16, ws, sB if q < 4 else sC, (q % 4) * 1024))
        vq.issue('dw')
    a.e('s_mul_i32 s%d, s%d, 4096000' % (sA, sBt))
    a.e('s_add_u32 s%d, s%d, %d' % (sA, sA, G_OFF - 16384))
    a.e('s_add_u32 s12, s4, s%d' % sA)
    a.e('s_addc_u32 s13, s5, 0')
    a.e('s_and_b32 s13, s13, 0xffff')
    a.e('s_mov_b32 s14, %d' % (4096000 + 16384))
    a.e('s_mov_b32 s15, 0x00020000')
    a.e('s_mov_b32 s16, s12'); a.e('s_mov_b32 s17, s13')
    a.e('s_cmp_eq_u32 s%d, 0' % sK); a.e('s_cselect_b32 s18, 0, s14')
    a.e('s_mov_b32 s19, 0x00020000')
    a.e('v_lshlrev_b32 v%d, 10, v%d' % (vDs, vQ4))
    a.e('v_lshl_add_u32 v%d, v%d, 4, v%d' % (vDs, vI, vDs))
    a.e('s_mul_i32 s%d, s%d, 24576' % (sWin, sWave))
    a.e('s_add_u32 s%d, s%d, %d' % (sWin, sWin, WIN))
    a.e('s_lshl_b32 s%d, s%d, 16' % (sA, sK))
    a.e('s_lshl_b32 s%d, s%d, 8' % (sB, sWave))
    a.e('s_add_u32 s%d, s%d, s%d' % (sA, sA, sB))
    a.e('s_lshl_b32 s%d, s%d, 10' % (sU, sTok))
    a.e('s_add_u32 s%d, s%d, s%d' % (sU, sU, sB))
    a.e('s_add_u32 s%d, s%d, %d' % (sU, sU, U_OFF))
    a.e('s_lshl_b32 s%d, s%d, 14' % (sB, sWave))
    def win(p):
        st.add(['s_add_u32 m0, s%d, %d' % (sWin, p * 1024), 's_add_u32 s%d, s%d, %d' % (sC, sA, p * 4096)],
               'buffer_load_dwordx4 v%d, %s, s%d offen lds' % (vDs, 's[16:19]' if p < 4 else 's[12:15]', sC), ('win', p))
    def up(ts, kk):
        st.add(['s_add_u32 m0, s%d, %d' % (sB, (kk * 4 + ts) * 1024), 's_add_u32 s%d, s%d, %d' % (sC, sU, ts * 16384 + kk * 64)],
               'buffer_load_dwordx4 v%d, %s, s%d offen lds' % (vU1 if kk & 1 else vU0, ws, sC), ('u', ts, kk))
    def touch(j):
        st.add(['s_add_u32 s%d, s%d, %d' % (sC, sP, j * 250 * 32768 + 32768)],
               'buffer_load_dword v253, v%d, %s, s%d offen' % (vTo, ws, sC), ('to', j), None, 4.0)
    for p in range(10): win(p)
    if cfg.get('MID_HELP', 0):
        for j in range(4): touch(j)
    for kk in range(4): up(0, kk)
    for p in range(10, 14): win(p)
    for kk in range(4): up(1, kk)
    for p in range(14, 18): win(p)
    for kk in range(4): up(2, kk)
    for p in range(18, 24): win(p)
    for kk in range(4): up(3, kk)
    for n in range(PW): wfrag(st, n)
    st.burst(8)
    a.e('v_xor_b32 v%d, v%d, v%d' % (vU0, vI, vQ4))
    a.e('v_lshlrev_b32 v%d, 10, v%d' % (vU0, vU0))
    a.e('v_lshl_add_u32 v%d, v%d, 4, v%d' % (vU0, vQ4, vU0))
    a.e('v_xor_b32 v%d, 0x1000, v%d' % (vU1, vU0))
    a.e('v_lshlrev_b32 v%d, 2, v%d' % (vIn, vLane))
    a.e('v_add_u32 v%d, s%d, v%d' % (vIn, sWin, vIn))
    conv_addr_regs(a, AD, vLane, sB, 4, TMP)
    m_srd()
    st.burst(cfg.get('MID_B1', 6))
    vq.wait(a, 'dw')
    conv_unpack_w(a, CW, RAW, False)
    if STAMP: stamp_mid(a, 2)
    def hook(row):
        o = row + 1 - 1 - 30 + 2
        if o >= 0 and o % 16 == 0 and o < 64: st.wait(('u', o // 16, 3))
    conv_body(a, 64, CW, CACC, INR, VAL, vIn, AD, lq, (UR, UT), lambda p: st.wait(('win', p)), hook, st.tick)
    st.burst(1000)
    assert not st.q
    lq.wait_all(a)
    a.e('s_branch %s_main' % name)

    a.label('%s_glob' % name, reset=True)
    vq.__init__(); lq.__init__()
    st = Stream(a, vq, cfg.get('MID_PACE2', 40))
    MLR = 160; WT = 192
    a.e('v_lshlrev_b32 v%d, 3, v%d' % (vDs, vI))
    a.e('s_lshl_b32 s%d, s%d, 3' % (sA, sTok))
    a.e('s_add_u32 s%d, s%d, %d' % (sA, sA, ML_OFF))
    for s in range(4):
        for ts in range(4):
            a.e('buffer_load_dwordx2 %s, v%d, %s, s%d offen offset:%d' % (vr(MLR + (ts * 4 + s) * 2, 2), vDs, ws, sA, ts * 128))
            vq.issue('ml')
        if s < 3: a.e('s_add_u32 s%d, s%d, 64000' % (sA, sA))
    gs = dict(f=-1)
    def preg(f, s): return ((f % 8) * 4 + s) * 4
    for f in range(16):
        ts, k = f // 4, f % 4
        for s in range(4):
            off = s * 250 * 32768 + (ts >> 1) * 32768 + k * 2048 + (ts & 1) * 1024
            st.add(['s_add_u32 s%d, s%d, %d' % (sC, sP, off)], 'buffer_load_dwordx4 %s, v%d, %s, s%d offen' % (vr(preg(f, s), 4), vLane16, ws, sC), ('p', f, s),
                   (lambda ff: (lambda: gs['f'] >= ff - 8))(f))
    for n in range(PW): wfrag(st, n)
    st.burst(cfg.get('MID_B2', 12))
    m_srd()
    vq.wait(a, 'ml')
    a.dense = True
    for ts in range(4):
        m = [MLR + (ts * 4 + s) * 2 for s in range(4)]
        t = TMP
        a.e('v_max3_f32 v%d, v%d, v%d, v%d' % (t, m[0], m[1], m[2]))
        a.e('v_max_f32 v%d, v%d, v%d' % (t, t, m[3]))
        for s in range(4): a.e('v_sub_f32 v%d, v%d, v%d' % (WT + ts * 4 + s, m[s], t))
        for s in range(4): a.e('v_exp_f32 v%d, v%d' % (WT + ts * 4 + s, WT + ts * 4 + s))
        a.e('v_mul_f32 v%d, v%d, v%d' % (t, WT + ts * 4, m[0] + 1))
        for s in range(1, 4): a.e('v_fmac_f32 v%d, v%d, v%d' % (t, WT + ts * 4 + s, m[s] + 1))
        a.e('v_rcp_f32 v%d, v%d' % (t, t))
        for s in range(4): a.e('v_mul_f32 v%d, v%d, v%d' % (WT + ts * 4 + s, WT + ts * 4 + s, t))
        st.burst(5)
    a.e('s_lshl_b32 s%d, s%d, 14' % (sB, sWave))
    a.e('v_add_u32 v%d, s%d, v%d' % (vU0, sB, TR0))
    a.e('v_add_u32 v%d, s%d, v%d' % (vU1, sB, TR1))
    CA, CU = 128, 136
    if STAMP: stamp_mid(a, 3)
    for f in range(16):
        ts, k = f // 4, f % 4
        for s in range(4):
            if s % 2 == 0: st.wait(('p', f, s + 1))
            p = preg(f, s); w = WT + ts * 4 + s
            wp = vr(w & ~1, 2); sel = w & 1
            for d in range(4):
                a.e('v_lshlrev_b32 v%d, 16, v%d' % (CU + 2 * d, p + d))
                a.e('v_and_b32 v%d, s90, v%d' % (CU + 2 * d + 1, p + d))
            for d in range(4):
                if s == 0:
                    a.e('v_pk_mul_f32 %s, %s, %s op_sel:[0,%d] op_sel_hi:[1,%d]' % (vr(CA + 2 * d, 2), vr(CU + 2 * d, 2), wp, sel, sel))
                else:
                    a.e('v_pk_fma_f32 %s, %s, %s, %s op_sel:[0,%d,0] op_sel_hi:[1,%d,1]' % (vr(CA + 2 * d, 2), vr(CU + 2 * d, 2), wp, vr(CA + 2 * d, 2), sel, sel))
            st.burst(1 if f < 8 else 2)
        gs['f'] = f
        o = 144 + 4 * k
        for d in range(4):
            a.e('v_cvt_pk_bf16_f32 v%d, v%d, v%d' % (o + d, CA + 2 * d, CA + 2 * d + 1))
        a.e('ds_write_b128 v%d, %s offset:%d' % (vU1 if k & 1 else vU0, vr(o, 4), (k * 4 + ts) * 1024))
    a.dense = False
    st.burst(1000)
    assert not st.q
    a.e('s_waitcnt lgkmcnt(0)')
    vq.done = vq.n - PW
    a.label('%s_main' % name, reset=True)
    a.e('s_barrier')
    if STAMP: stamp_mid(a, 0)

    st = Stream(a, vq, cfg.get('MID_PACE3', 64))
    st.issued = set(('w', n) for n in range(PW))
    for n in range(PW, NW): wfrag(st, n)
    lq = LgQ()
    def tread(kk, ts):
        ks = kk % 16
        a.e('ds_read_b128 %s, v%d offset:%d' % (ar(TB + ((kk % 2) * 4 + ts) * 4, 4), TR1 if ks & 1 else TR0, (ks * 4 + ts) * 1024))
        lq.issue((kk, ts))
    a.e('s_lshl_b32 s%d, s%d, 17' % (sA, sK))
    a.e('s_add_u32 s%d, s%d, s46' % (sA, sA))
    PK = 128
    def epi(h):
        out = []; k = 0
        for ts in range(4):
            out.append(('s', 's_add_u32 s%d, s%d, %d' % (sB, sA, ts * 0x8000)))
            for dd in range(2 * h, 2 * h + 2):
                o = PK + 4 * (k % 8); k += 1
                for e in range(2):
                    for j in range(2):
                        r = acc(2 * dd + e, ts) + 2 * j
                        out.append(('s', 'v_cvt_pk_bf16_f32 v%d, v%d, v%d' % (o + 2 * e + j, r, r + 1)))
                out.append(('v', 'buffer_store_dwordx4 %s, v%d, s[20:23], s%d offen offset:%d' % (vr(o, 4), vRow, sB, dd * 64)))
        return out
    for ts in range(4): tread(0, ts)
    extra = []
    for kk in range(32):
        h, ks = kk // 16, kk % 16
        if kk == cfg.get('MID_EPI', 20): extra = epi(0)
        lq.wait(a, (kk, 3))
        st.wait(('w', kk * 4 + 3))
        cnt = 0
        for t4 in range(4):
            n = kk * 4 + t4; t = 4 * h + t4
            for ts in (range(4) if t4 % 2 == 0 else range(3, -1, -1)):
                a.e('%s %s, %s, %s, %s' % (MF, vr(acc(t, ts), 4), ar(4 * (n % RW), 4), ar(TB + ((kk % 2) * 4 + ts) * 4, 4), '0' if ks == 0 else vr(acc(t, ts), 4)))
                cnt += 1
                if cnt in (2, 5, 7, 10) and kk + 1 < 32: tread(kk + 1, (2, 5, 7, 10).index(cnt))
                elif extra and cnt % 4 != 0:
                    it = extra.pop(0); a.e(it[1])
                    if it[0] == 'v': vq.issue()
            state['cons'] = n
            st.burst(1)
    assert not st.q and not extra
    if STAMP: stamp_mid(a, 1)
    PK = 160
    for it in epi(1): a.e(it[1])
    if STAMP: stamp_end(a, sWave)
    a.label('%s_end' % name)
    a.e('s_endpgm')
    return dict(name=name, vgpr=512, sgpr=96, accum=256, grid=256, block=256, lds=163840)
```

```python
from common import *
from convlib import *
from attn16 import stamp_begin, stamp_mid, stamp_end

def gen_mrg(a, name='mrg_kernel', cfg=None):
    cfg = cfg or {}
    STAMP = cfg.get('STAMP', False)
    RW = 64
    PACE = cfg.get('MRG_PACE', 64)
    AHEAD = cfg.get('MRG_AHEAD', 20)
    CW, CACC, GACC = 0, 64, 128
    RAW = CACC + 32
    TOK = 192
    INR, VAL, AD = 208, 216, 220
    vLane, vLane16, vIn, vDs, vT0, vT1, vRow, vTp, vTmp = 228, 229, 230, 231, 232, 233, 234, 235, 236
    XR = 0
    IMG = 65536
    TAPL = 131072
    sWave, sBlk, sW, sA, sB, sC, sWin, sDw, sX0, sX1, sTl = 3, 6, 7, 32, 33, 34, 36, 37, 38, 39, 35
    ws = 's[8:11]'
    def gacc(t, ts): return GACC + (t * 2 + ts) * 4

    kernel_begin(a, name)
    a.e('s_and_b32 s%d, s2, 7' % sBlk)
    a.e('s_lshl_b32 s%d, s%d, 5' % (sBlk, sBlk))
    a.e('s_lshr_b32 s%d, s2, 3' % sA)
    a.e('s_add_u32 s%d, s%d, s%d' % (sBlk, sBlk, sA))
    a.e('s_cmp_ge_u32 s2, 256')
    a.e('s_cbranch_scc1 %s_end' % name)
    a.e('s_cmp_ge_u32 s%d, 250' % sBlk)
    a.e('s_cbranch_scc1 %s_end' % name)
    a.e('s_load_dwordx2 s[4:5], s[0:1], 80')
    a.e('s_load_dwordx2 s[40:41], s[0:1], 0')
    a.e('s_load_dwordx2 s[42:43], s[0:1], 64')
    if STAMP: stamp_begin(a)
    if cfg.get('CPF', 1): code_prefetch(a, name, 250, 251, 1)
    a.e('v_lshrrev_b32 v1, 6, v0')
    a.e('v_and_b32 v%d, 63, v0' % vLane)
    a.e('v_readfirstlane_b32 s%d, v1' % sWave)
    a.e('v_lshlrev_b32 v%d, 4, v%d' % (vLane16, vLane))
    a.e('v_lshrrev_b32 v%d, 4, v%d' % (vT0, vLane))
    a.e('v_and_b32 v%d, 15, v%d' % (vT1, vLane))
    a.e('v_lshlrev_b32 v%d, 11, v%d' % (vDs, vT0))
    a.e('v_lshl_add_u32 v%d, v%d, 4, v%d' % (vDs, vT1, vDs))
    a.e('v_lshlrev_b32 v%d, 10, v%d' % (vRow, vT1))
    a.e('v_lshl_add_u32 v%d, v%d, 4, v%d' % (vRow, vT0, vRow))
    a.e('s_cmp_eq_u32 s%d, 0' % sBlk);   a.e('s_cselect_b32 s44, 0, %d' % WS_BYTES)
    a.e('s_cmp_eq_u32 s%d, 125' % sBlk); a.e('s_cselect_b32 s44, 0, s44')
    a.e('s_cmp_eq_u32 s%d, 124' % sBlk); a.e('s_cselect_b32 s45, 0, %d' % WS_BYTES)
    a.e('s_cmp_eq_u32 s%d, 249' % sBlk); a.e('s_cselect_b32 s45, 0, s45')
    a.e('s_lshl_b32 s%d, s%d, 14' % (sWin, sWave))
    a.e('s_lshl_b32 s%d, s%d, 16' % (sA, sBlk))
    a.e('s_lshl_b32 s%d, s%d, 8' % (sB, sWave))
    a.e('s_add_u32 s%d, s%d, s%d' % (sA, sA, sB))
    a.e('s_add_u32 s%d, s%d, %d' % (sA, sA, M_OFF - 16 * 2048))
    a.e('s_lshl_b32 s%d, s%d, 15' % (sX0, sBlk))
    a.e('s_add_u32 s%d, s%d, s%d' % (sX0, sX0, sB))
    a.e('s_add_u32 s%d, s%d, 0x4000' % (sX1, sX0))
    a.e('s_lshl_b32 s%d, s%d, 13' % (sDw, sWave))
    a.e('s_add_u32 s%d, s%d, %d' % (sTl, sDw, TAPL))
    a.e('s_add_u32 s%d, s%d, %d' % (sDw, sDw, DWM_OFF))
    a.e('s_lshl_b32 s%d, s%d, 18' % (sW, sWave))
    a.e('s_add_u32 s%d, s%d, %d' % (sW, sW, W3_OFF))
    a.e('s_waitcnt lgkmcnt(0)')
    make_srd(a, 8, 4, WS_BYTES)
    make_srd(a, 12, 4, 0); a.e('s_mov_b32 s14, s44')
    make_srd(a, 16, 4, 0); a.e('s_mov_b32 s18, s45')
    vq = VmQ(); lq = LgQ()
    st = Stream(a, vq, PACE)
    state = dict(row=0, cons=-1, rnd=0)
    def win_piece(r, p, ready=None):
        srd = 's[12:15]' if p < 4 else ('s[16:19]' if p >= 12 else ws)
        st.add(['s_add_u32 m0, s%d, %d' % (sWin, p * 1024), 's_add_u32 s%d, s%d, %d' % (sC, sA, p * 8192 + r * 1024)],
               'buffer_load_dwordx4 v%d, %s, s%d offen lds' % (vDs, srd, sC), ('win', r, p), ready)
    def wfrag(n):
        pre = ['s_add_u32 s%d, s%d, 0x1000' % (sW, sW)] if (n and n % 4 == 0) else []
        st.add(pre, 'buffer_load_dwordx4 %s, v%d, %s, s%d offen offset:%d' % (ar(4 * (n % RW), 4), vLane16, ws, sW, (n % 4) * 1024), ('w', n),
               (lambda: True) if n < RW else (lambda: state['cons'] >= n - RW))
    for p in range(2): win_piece(0, p)
    for q in range(8):
        st.add(['s_add_u32 s%d, s%d, 0x1000' % (sC, sDw)] if q == 4 else [],
               'buffer_load_dwordx4 %s, v%d, %s, s%d offen offset:%d' % (vr(RAW + 4 * q, 4), vLane16, ws, sDw if q < 4 else sC, (q % 4) * 1024), ('dw', q))
    for p in range(2, 16): win_piece(0, p)
    n = 0
    for p in range(16):
        for _ in range(4 if p < 15 else 2):
            wfrag(n); n += 1
        if p % 2 == 0:
            q = p // 2
            st.add(['s_add_u32 m0, s%d, %d' % (sTl, q * 1024), 's_add_u32 s%d, s%d, %d' % (sC, sDw, 4 * 8192 + q * 1024)],
                   'buffer_load_dwordx4 v%d, %s, s%d offen lds' % (vLane16, ws, sC), ('tl', q))
        if p >= 2:
            win_piece(1, p - 2, (lambda pp: (lambda: state['row'] >= min(4 * pp + 3, 62)))(p - 2))
    for p in (14, 15): win_piece(1, p, (lambda pp: (lambda: state['row'] >= min(4 * pp + 3, 62)))(p))
    while n < 200: wfrag(n); n += 1
    for ts in range(2):
        for dd in range(4):
            st.add([], 'buffer_load_dwordx4 %s, v%d, s[24:27], s%d offen offset:%d' % (vr(XR + (ts * 4 + dd) * 4, 4), vRow, sX0 if ts == 0 else sX1, dd * 64), ('x', ts, dd), lambda: state['rnd'] >= 3)
    while n < 256: wfrag(n); n += 1

    st.burst(cfg.get('MRG_B0', 16))
    make_srd(a, 24, 40, 8192000)
    make_srd(a, 28, 42, 8192000)
    a.e('v_lshlrev_b32 v%d, 2, v%d' % (vIn, vLane))
    a.e('v_add_u32 v%d, s%d, v%d' % (vIn, sWin, vIn))
    a.e('v_add_u32 v%d, s%d, v%d' % (vTp, sTl, vLane16))
    a.e('s_lshl_b32 s%d, s%d, 13' % (sB, sWave))
    a.e('s_add_u32 s%d, s%d, %d' % (sB, sB, IMG))
    conv_addr_regs(a, AD, vLane, sB, 2, vTmp)
    TR0, TR1 = vT0, vT1
    tok_read_regs(a, TR0, TR1, vLane, vTmp)
    a.e('v_add_u32 v%d, %d, v%d' % (TR0, IMG, TR0))
    a.e('v_add_u32 v%d, %d, v%d' % (TR1, IMG, TR1))
    st.burst(cfg.get('MRG_B1', 8))
    if cfg.get('MRG_TOUCH', 0): l2_touch(a, ws, W3_OFF, 1 << 20, 250, 252, 50, vq, 128)

    for r in range(2):
        state['rnd'] = 2 * r
        st.pace = PACE
        if r == 0:
            st.wait(('dw', 7))
        else:
            lq.wait_all(a)
        conv_unpack_w(a, CW, RAW, True)
        if r == 0 and STAMP: stamp_mid(a, 0)
        def hook(row):
            if r == 0: state['row'] = row
        conv_body(a, 32, CW, CACC, INR, VAL, vIn, AD, lq, None, lambda p: st.wait(('win', r, p)), hook, st.tick)
        lq.wait_all(a)
        a.e('s_barrier')
        state['rnd'] = 2 * r + 1
        st.pace = cfg.get('MRG_PACE2', 44)
        if STAMP: stamp_mid(a, 1 + 2 * r)
        if cfg.get('V'): print('after conv', r, 'vm issued', vq.n, 'next', st.q[0][2], 'clock', a.clock)
        extra = []
        if r == 0:
            for i in range(8): extra.append('v_add_u32 v%d, 0x8000, v%d' % (AD + i, AD + i))
        def tread(ks, ts):
            a.e('ds_read_b128 %s, v%d offset:%d' % (vr(TOK + ((ks % 2) * 2 + ts) * 4, 4), TR1 if ks & 1 else TR0, (ks * 2 + ts) * 1024))
            lq.issue(('t', ks, ts))
        k0 = 16 * r
        tread(k0, 0); tread(k0, 1)
        for ks in range(k0, k0 + 16):
            lq.wait(a, ('t', ks, 1))
            for t in range(8):
                n = ks * 8 + t
                if t % 4 == 0: st.wait(('w', n + 3))
                for x, ts in enumerate((0, 1) if t % 2 == 0 else (1, 0)):
                    a.e('%s %s, %s, %s, %s' % (MF, vr(gacc(t, ts), 4), ar(4 * (n % RW), 4), vr(TOK + ((ks % 2) * 2 + ts) * 4, 4), '0' if ks == 0 else vr(gacc(t, ts), 4)))
                    if x == 0:
                        if t in (1, 2) and ks + 1 < k0 + 16: tread(ks + 1, t - 1)
                        elif extra: a.e(extra.pop(0))
                state['cons'] = n
                lim = min(n + AHEAD, 128 * (r + 1) - 1)
                if ('w', lim) not in st.issued: st.burst(1)
                elif st.q and not (st.q[0][2][0] == 'w' and st.q[0][2][1] >= 128 * (r + 1) + cfg.get('MRG_OVER', 0)): st.tick()
            if r == 0 and ks == 14:
                st.wait(('tl', 7))
                for q in range(8):
                    a.e('ds_read_b128 %s, v%d offset:%d' % (vr(RAW + 4 * q, 4), vTp, q * 1024)); lq.issue()
        assert not extra
        if STAMP: stamp_mid(a, 2 + 2 * r)
        if cfg.get('V'): print('after mfma', r, 'vm issued', vq.n, 'next', st.q[0][2] if st.q else None, 'clock', a.clock)
    assert not st.q
    U = 64; PK = 72
    k = 0
    for ts in range(2):
        for dd in range(4):
            vq.wait(a, ('x', ts, dd))
            x = XR + (ts * 4 + dd) * 4
            o = PK + 4 * (k % 8); k += 1
            for e in range(2):
                for j in range(2):
                    r_ = gacc(2 * dd + e, ts) + 2 * j
                    u = U + 2 * ((2 * e + j) % 4)
                    a.e('v_lshlrev_b32 v%d, 16, v%d' % (u, x + 2 * e + j))
                    a.e('v_and_b32 v%d, 0xffff0000, v%d' % (u + 1, x + 2 * e + j))
                    a.e('v_pk_add_f32 %s, %s, %s' % (vr(r_, 2), vr(r_, 2), vr(u, 2)))
                    a.e('v_cvt_pk_bf16_f32 v%d, v%d, v%d' % (o + 2 * e + j, r_, r_ + 1))
            a.e('buffer_store_dwordx4 %s, v%d, s[28:31], s%d offen offset:%d' % (vr(o, 4), vRow, sX0 if ts == 0 else sX1, dd * 64))
            vq.issue()
    if STAMP: stamp_end(a, sWave)
    a.label('%s_end' % name)
    a.e('s_endpgm')
    return dict(name=name, vgpr=512, sgpr=96, accum=256, grid=256, block=256, lds=163840)
```

```python
import math
from common import *
from attn16 import stamp_begin, stamp_mid, stamp_end

N_M, N_VO, N_RL, N_DW = 128, 64, 40, 3
P = 1040

def gen_prep(a, name='prep_kernel', cfg=None):
    cfg = cfg or {}
    STAMP = cfg.get('STAMP', False)
    total = N_M + N_VO + N_RL + N_DW
    kernel_begin(a, name)
    a.e('s_cmp_ge_u32 s2, 256')
    a.e('s_cbranch_scc1 %s_end' % name)
    a.e('s_load_dwordx16 s[16:31], s[0:1], 0')
    a.e('s_load_dwordx2 s[4:5], s[0:1], 80')
    if STAMP: stamp_begin(a)
    if cfg.get('CPF', 1):
        a.e('s_lshr_b32 s62, s2, 3')
        a.e('s_min_u32 s62, s62, 5')
        a.e('s_lshl_b32 s62, s62, 15')
        code_prefetch(a, name, 120, 121, 1, end=cfg.get('LAST_END', 'mrg_kernel_end'), part_sgpr=62)
    a.e('v_lshrrev_b32 v1, 6, v0')
    a.e('v_and_b32 v2, 63, v0')
    a.e('v_readfirstlane_b32 s3, v1')
    a.e('v_lshlrev_b32 v3, 4, v2')
    a.e('v_lshrrev_b32 v4, 4, v2')
    a.e('v_and_b32 v5, 15, v2')
    a.e('s_waitcnt lgkmcnt(0)')
    make_srd(a, 8, 4, WS_BYTES)
    def xtouch():
        if not cfg.get('XTOUCH', 1): return
        make_srd(a, 52, 16, 8192000)
        a.e('s_and_b32 s56, s2, 7')
        a.e('s_lshl_b32 s56, s56, 5')
        a.e('s_lshr_b32 s57, s2, 3')
        a.e('s_add_u32 s56, s56, s57')
        a.e('s_lshl_b32 s56, s56, 15')
        a.e('v_lshlrev_b32 v122, 7, v0')
        a.e('buffer_load_dword v123, v122, s[52:55], s56 offen')
    ws = 's[8:11]'
    a.e('s_cmp_lt_u32 s2, %d' % N_M)
    a.e('s_cbranch_scc1 %s_m' % name)
    a.e('s_cmp_lt_u32 s2, %d' % (N_M + N_VO))
    a.e('s_cbranch_scc1 %s_vo' % name)
    a.e('s_cmp_lt_u32 s2, %d' % (N_M + N_VO + N_RL))
    a.e('s_cbranch_scc1 %s_rl' % name)
    a.e('s_cmp_ge_u32 s2, %d' % total)
    a.e('s_cbranch_scc1 %s_xt' % name)

    a.e('s_sub_u32 s6, s2, %d' % (N_M + N_VO + N_RL))
    a.e('s_cmp_eq_u32 s6, 0')
    a.e('s_cselect_b32 s32, s24, s28')
    a.e('s_cselect_b32 s33, s25, s29')
    a.e('s_cselect_b32 s34, 1, 2')
    a.e('s_lshl_b32 s34, s34, 10')
    a.e('s_mul_i32 s35, s34, 31')
    make_srd(a, 12, 32, 0)
    a.e('s_mov_b32 s14, s35')
    a.e('s_lshl_b32 s36, s6, 2')
    a.e('s_add_u32 s36, s36, s3')
    a.e('s_lshl_b32 s37, s36, 13')
    a.e('s_add_u32 s37, s37, %d' % DWC_OFF)
    a.e('s_add_u32 s38, s37, 0x1000')
    a.e('s_cmp_eq_u32 s6, 0')
    a.e('s_cselect_b32 s39, 0, 4')
    a.e('s_sub_u32 s36, s36, s39')
    a.e('s_lshl_b32 s36, s36, 8')
    a.e('v_lshlrev_b32 v6, 2, v2')
    for i_ in range(31):
        a.e('buffer_load_dword v%d, v6, s[12:15], s36 offen' % (16 + i_))
        a.e('s_add_u32 s36, s36, s34')
    a.e('v_mov_b32 v47, 0')
    a.e('s_waitcnt vmcnt(0)')
    xtouch()
    for q in range(8):
        a.e('buffer_store_dwordx4 %s, v3, %s, s%d offen offset:%d' % (vr(16 + 4 * q, 4), ws, 37 if q < 4 else 38, (q % 4) * 1024))
    if STAMP: stamp_end(a, 3)
    a.e('s_endpgm')

    def rows_dma(srd, nrows, s_src, s_lds):
        for r in range(nrows):
            a.e('s_add_u32 m0, s%d, %d' % (s_lds, r * P))
            a.e('s_add_u32 s45, s%d, %d' % (s_src, r * 3072))
            a.e('buffer_load_dwordx4 v3, %s, s45 offen lds' % srd)

    a.label('%s_m' % name, reset=True)
    make_srd(a, 12, 18, 512 * 1536 * 2)
    a.e('s_lshr_b32 s32, s2, 3')
    a.e('s_and_b32 s33, s2, 7')
    a.e('s_lshl_b32 s34, s32, 5'); a.e('s_lshl_b32 s35, s3, 3'); a.e('s_add_u32 s34, s34, s35'); a.e('s_mul_i32 s34, s34, 3072')
    a.e('s_mul_i32 s36, s3, %d' % (8 * P))
    rows_dma('s[12:15]', 8, 34, 36)
    a.e('s_lshl_b32 s34, s33, 6'); a.e('s_lshl_b32 s35, s3, 4'); a.e('s_add_u32 s34, s34, s35'); a.e('s_mul_i32 s34, s34, 3072')
    a.e('s_add_u32 s34, s34, 1024')
    a.e('s_mul_i32 s36, s3, %d' % (16 * P)); a.e('s_add_u32 s36, s36, %d' % (32 * P))
    rows_dma('s[12:15]', 16, 34, 36)
    a.e('v_lshrrev_b32 v6, 2, v5'); a.e('v_lshlrev_b32 v6, 3, v6'); a.e('v_and_b32 v7, 3, v5'); a.e('v_add_u32 v6, v6, v7')
    a.e('v_mul_u32_u24 v6, %d, v6' % P)
    a.e('v_lshl_add_u32 v6, v4, 4, v6')
    a.e('s_lshr_b32 s36, s3, 1'); a.e('s_lshl_b32 s36, s36, 3'); a.e('s_and_b32 s37, s3, 1'); a.e('s_add_u32 s36, s36, s37')
    a.e('s_mul_i32 s36, s36, %d' % (4 * P)); a.e('s_add_u32 s36, s36, %d' % (32 * P))
    a.e('v_add_u32 v7, s36, v6')
    a.e('s_mul_i32 s34, s33, 192')
    a.e('s_lshl_b32 s35, s32, 2')
    a.e('s_add_u32 s34, s34, s35')
    a.e('s_add_u32 s34, s34, s3')
    a.e('s_lshl_b32 s34, s34, 10')
    a.e('s_add_u32 s34, s34, %d' % (W1_OFF + 128 * 1024))
    a.e('s_mov_b32 s38, %s' % fhex(512 ** -0.5 * math.log2(math.e)))
    a.e('s_waitcnt vmcnt(%d)' % cfg.get('XT_EARLY', 0))
    xtouch()
    a.e('s_waitcnt vmcnt(%d)' % (1 if cfg.get('XTOUCH', 1) else 0))
    a.e('s_barrier')
    if STAMP: stamp_mid(a, 0)
    lq = LgQ()
    def rd(kk):
        b = 32 + 12 * (kk % 5)
        a.e('ds_read_b128 %s, v6 offset:%d' % (vr(b, 4), kk * 64)); lq.issue()
        a.e('ds_read_b128 %s, v6 offset:%d' % (vr(b + 4, 4), kk * 64 + 4 * P)); lq.issue()
        a.e('ds_read_b128 %s, v7 offset:%d' % (vr(b + 8, 4), kk * 64)); lq.issue(kk)
    for kk in range(4): rd(kk)
    for kk in range(16):
        if kk + 4 < 16: rd(kk + 4)
        lq.wait(a, kk)
        b = 32 + 12 * (kk % 5)
        for e in range(2):
            a.e('%s %s, %s, %s, %s' % (MF, vr(16 + 4 * e, 4), vr(b + 4 * e, 4), vr(b + 8, 4), '0' if kk == 0 else vr(16 + 4 * e, 4)))
    for r in range(8):
        a.e('v_mul_f32 v%d, s38, v%d' % (16 + r, 16 + r))
    for d in range(4):
        a.e('v_cvt_pk_bf16_f32 v%d, v%d, v%d' % (24 + d, 16 + 2 * d, 17 + 2 * d))
    a.e('buffer_store_dwordx4 v[24:27], v3, %s, s34 offen' % ws)
    if STAMP: stamp_end(a, 3)
    a.e('s_endpgm')

    def load_strip():
        a.e('v_lshrrev_b32 v7, 3, v2')
        a.e('v_bfe_u32 v8, v2, 4, 1')
        a.e('v_lshlrev_b32 v8, 2, v8')
        a.e('v_and_b32 v9, 7, v2')
        a.e('v_xor_b32 v8, v8, v9')
        a.e('v_mul_lo_u32 v7, v7, s42')
        a.e('v_lshl_add_u32 v7, v8, 4, v7')
        a.e('s_lshl_b32 s41, s42, 3')
        a.e('s_lshl_b32 s43, s3, 4')
        a.e('s_mul_i32 s43, s43, s41')
        a.e('s_add_u32 s40, s40, s43')
        a.e('s_lshl_b32 s44, s3, 14')
        for j in range(16):
            a.e('s_add_u32 m0, s44, %d' % (1024 * j))
            if j: a.e('s_add_u32 s40, s40, s41')
            a.e('buffer_load_dwordx4 v7, s[12:15], s40 offen lds')
        a.e('v_bfe_u32 v8, v2, 2, 2')
        a.e('v_lshl_add_u32 v9, v4, 3, v8')
        a.e('v_lshlrev_b32 v9, 7, v9')
        a.e('v_lshrrev_b32 v8, 1, v8')
        a.e('v_lshl_add_u32 v9, v8, 6, v9')
        a.e('v_and_b32 v8, 3, v2')
        a.e('v_lshl_add_u32 v8, v8, 4, v9')
        a.e('v_xor_b32 v9, 64, v8')

    a.label('%s_vo' % name, reset=True)
    a.e('s_sub_u32 s6, s2, %d' % N_M)
    a.e('s_lshr_b32 s33, s6, 3')
    a.e('s_and_b32 s32, s6, 7')
    make_srd(a, 12, 20, 512 * 512 * 2)
    make_srd(a, 48, 18, 512 * 1536 * 2)
    a.e('s_lshl_b32 s40, s33, 7')
    a.e('s_mov_b32 s42, 1024')
    load_strip()
    a.e('s_lshl_b32 s34, s32, 6'); a.e('s_lshl_b32 s35, s3, 4'); a.e('s_add_u32 s34, s34, s35'); a.e('s_mul_i32 s34, s34, 3072')
    a.e('s_add_u32 s34, s34, 2048')
    a.e('s_mul_i32 s36, s3, %d' % (16 * P)); a.e('s_add_u32 s36, s36, 65536')
    rows_dma('s[48:51]', 16, 34, 36)
    a.e('s_bitcmp1_b32 s3, 0')
    a.e('s_cselect_b64 vcc, -1, 0')
    a.e('v_cndmask_b32 v8, v8, v9, vcc')
    a.e('v_mul_u32_u24 v6, %d, v5' % P)
    a.e('v_lshl_add_u32 v6, v4, 4, v6')
    a.e('s_lshr_b32 s36, s3, 1')
    a.e('s_mul_i32 s37, s36, %d' % (32 * P)); a.e('s_add_u32 s37, s37, 65536')
    a.e('v_add_u32 v6, s37, v6')
    a.e('s_lshl_b32 s34, s33, 4')
    a.e('s_lshl_b32 s35, s32, 1'); a.e('s_add_u32 s35, s35, s36')
    a.e('s_add_u32 s34, s34, s35')
    a.e('s_lshl_b32 s34, s34, 2')
    a.e('s_and_b32 s35, s3, 1'); a.e('s_lshl_b32 s35, s35, 1')
    a.e('s_add_u32 s34, s34, s35')
    a.e('s_lshl_b32 s34, s34, 10')
    a.e('s_add_u32 s34, s34, %d' % W2_OFF)
    a.e('s_waitcnt vmcnt(%d)' % cfg.get('XT_EARLY', 0))
    xtouch()
    a.e('s_waitcnt vmcnt(%d)' % (1 if cfg.get('XTOUCH', 1) else 0))
    a.e('s_barrier')
    if STAMP: stamp_mid(a, 0)
    lq = LgQ()
    def rd2(kk):
        b = 32 + 16 * (kk % 3)
        for e in range(2):
            a.e('ds_read_b128 %s, v6 offset:%d' % (vr(b + 4 * e, 4), kk * 64 + 16 * P * e)); lq.issue()
        for o in range(2):
            a.e('ds_read_b64_tr_b16 %s, v8 offset:%d' % (vr(b + 8 + 4 * o, 2), kk * 4096 + 8 * o)); lq.issue()
            a.e('ds_read_b64_tr_b16 %s, v8 offset:%d' % (vr(b + 8 + 4 * o + 2, 2), kk * 4096 + 8 * o + 512)); lq.issue(kk)
    rd2(0); rd2(1)
    for kk in range(16):
        if kk + 2 < 16: rd2(kk + 2)
        lq.wait(a, kk)
        b = 32 + 16 * (kk % 3)
        for o in range(2):
            for e in range(2):
                acc = vr(16 + 8 * o + 4 * e, 4)
                a.e('%s %s, %s, %s, %s' % (MF, acc, vr(b + 4 * e, 4), vr(b + 8 + 4 * o, 4), '0' if kk == 0 else acc))
    for o in range(2):
        for d in range(4):
            a.e('v_cvt_pk_bf16_f32 v%d, v%d, v%d' % (80 + 4 * o + d, 16 + 8 * o + 2 * d, 17 + 8 * o + 2 * d))
        a.e('buffer_store_dwordx4 %s, v3, %s, s34 offen offset:%d' % (vr(80 + 4 * o, 4), ws, 1024 * o))
    if STAMP: stamp_end(a, 3)
    a.e('s_endpgm')

    a.label('%s_rl' % name, reset=True)
    a.e('s_sub_u32 s6, s2, %d' % (N_M + N_VO))
    a.e('s_cmp_lt_u32 s6, 16')
    a.e('s_cbranch_scc1 %s_rl_mi' % name)
    a.e('s_cmp_lt_u32 s6, 24')
    a.e('s_cbranch_scc1 %s_rl_mo' % name)
    a.e('s_sub_u32 s6, s6, 24')
    a.e('s_lshr_b32 s36, s6, 3')
    a.e('s_and_b32 s33, s6, 7')
    make_srd(a, 12, 30, 1024 * 512 * 2)
    a.e('s_lshl_b32 s40, s33, 7')
    a.e('s_lshl_b32 s37, s36, 19')
    a.e('s_add_u32 s40, s40, s37')
    a.e('s_mov_b32 s42, 1024')
    a.e('s_lshr_b32 s34, s33, 1')
    a.e('s_lshl_b32 s34, s34, 5')
    a.e('s_lshl_b32 s37, s36, 4')
    a.e('s_add_u32 s34, s34, s37')
    a.e('s_lshl_b32 s34, s34, 3')
    a.e('s_and_b32 s37, s33, 1')
    a.e('s_lshl_b32 s37, s37, 2')
    a.e('s_add_u32 s34, s34, s37')
    a.e('s_lshl_b32 s34, s34, 10')
    a.e('s_add_u32 s34, s34, %d' % W3_OFF)
    a.e('s_mov_b32 s35, 8192')
    a.e('s_branch %s_rl_go' % name)
    a.label('%s_rl_mo' % name, reset=True)
    a.e('s_sub_u32 s33, s6, 16')
    make_srd(a, 12, 26, 512 * 512 * 2)
    a.e('s_lshl_b32 s40, s33, 7')
    a.e('s_mov_b32 s42, 1024')
    a.e('s_lshl_b32 s34, s33, 16')
    a.e('s_add_u32 s34, s34, %d' % (W2_OFF + 512 * 1024))
    a.e('s_mov_b32 s35, 4096')
    a.e('s_branch %s_rl_go' % name)
    a.label('%s_rl_mi' % name, reset=True)
    make_srd(a, 12, 22, 512 * 1024 * 2)
    a.e('s_lshl_b32 s40, s6, 7')
    a.e('s_mov_b32 s42, 2048')
    a.e('s_xor_b32 s33, s6, 8')
    a.e('s_lshr_b32 s34, s33, 1')
    a.e('s_mul_i32 s34, s34, 192')
    a.e('s_and_b32 s37, s33, 1')
    a.e('s_lshl_b32 s37, s37, 2')
    a.e('s_add_u32 s34, s34, s37')
    a.e('s_lshl_b32 s34, s34, 10')
    a.e('s_add_u32 s34, s34, %d' % W1_OFF)
    a.e('s_mov_b32 s35, 8192')
    a.label('%s_rl_go' % name, reset=True)
    load_strip()
    a.e('v_add_u32 v8, s44, v8')
    a.e('v_add_u32 v9, s44, v9')
    a.e('s_lshl_b32 s37, s3, 2')
    a.e('s_mul_i32 s37, s37, s35')
    a.e('s_add_u32 s34, s34, s37')
    for k4 in range(4):
        a.e('s_waitcnt vmcnt(%d)' % (12 - 4 * k4 + 4 * k4))
        for q in range(4):
            b = 16 + 16 * k4 + 4 * q
            ad = 9 if q >= 2 else 8
            a.e('ds_read_b64_tr_b16 %s, v%d offset:%d' % (vr(b, 2), ad, k4 * 4096 + 8 * (q & 1)))
            a.e('ds_read_b64_tr_b16 %s, v%d offset:%d' % (vr(b + 2, 2), ad, k4 * 4096 + 8 * (q & 1) + 512))
        a.e('s_waitcnt lgkmcnt(0)')
        for q in range(4):
            a.e('buffer_store_dwordx4 %s, v3, %s, s34 offen offset:%d' % (vr(16 + 16 * k4 + 4 * q, 4), ws, 1024 * q))
        if k4 < 3: a.e('s_add_u32 s34, s34, s35')
    a.label('%s_xt' % name)
    xtouch()
    if STAMP: stamp_end(a, 3)
    a.label('%s_end' % name)
    a.e('s_endpgm')
    return dict(name=name, vgpr=128, sgpr=96, accum=128, grid=256, block=256, lds=65536 + 64 * P)

def chan_combine(a, P, n, cnt, oA, oB, tmp):
    a.e('v_add_f32 v%d, v%d, v%d' % (oB, P, P + 2))
    a.e('v_add_f32 v%d, v%d, v%d' % (oA, P + 1, P + 3))
    for i in range(2, n):
        a.e('v_add_f32 v%d, v%d, v%d' % (oB, oB, P + 2 * i))
        a.e('v_add_f32 v%d, v%d, v%d' % (oA, oA, P + 2 * i + 1))
    a.e('v_mul_f32 v%d, %s, v%d' % (oB, fhex(1.0 / n), oB))
    a.e('v_mov_b32 v%d, 0' % (tmp + 1))
    for i in range(n):
        a.e('v_sub_f32 v%d, v%d, v%d' % (tmp, P + 2 * i, oB))
        a.e('v_fmac_f32 v%d, v%d, v%d' % (tmp + 1, tmp, tmp))
    a.e('v_mul_f32 v%d, %s, v%d' % (tmp + 1, fhex(float(cnt)), tmp + 1))
    a.e('v_add_f32 v%d, v%d, v%d' % (oA, oA, tmp + 1))
    a.e('v_mul_f32 v%d, %s, v%d' % (oA, fhex(1.0 / (n * cnt)), oA))
    a.e('v_add_f32 v%d, %s, v%d' % (oA, fhex(1e-5), oA))
    a.e('v_rsq_f32 v%d, v%d' % (oA, oA))
    a.e('v_mul_f32 v%d, v%d, v%d' % (oB, oB, oA))
    a.e('v_sub_f32 v%d, 0, v%d' % (oB, oB))
```

```python
import sys, json
from build import *
from prep import gen_prep
from inp import gen_in
from mid2 import gen_mid
from mrg2 import gen_mrg
from attn16 import gen_attn
cfg = json.loads(sys.argv[2]) if len(sys.argv) > 2 else {}
ks = [(gen_prep, dict(cfg=cfg)), (gen_in, dict(cfg=cfg)), (gen_attn, dict(cfg=cfg)), (gen_mid, dict(cfg=cfg)), (gen_mrg, dict(cfg=cfg))]
out, infos, a = build(ks)
open(sys.argv[1], 'w').write(out)
print('auto nops:', len(a.auto_nops), 'bytes', len(out))
if len(sys.argv) > 3:
    from checksize import check
    check(a, sys.argv[1])
```

```python
import re

TRANS = ('v_exp_f32', 'v_log_f32', 'v_rcp_f32', 'v_rsq_f32', 'v_sqrt_f32', 'v_sin_f32', 'v_cos_f32', 'v_rcp_iflag_f32')

def split_ops(s):
    ops, depth, cur = [], 0, ''
    for ch in s:
        if ch in '[(':
            depth += 1
        if ch in '])':
            depth -= 1
        if ch == ',' and depth == 0:
            ops.append(cur.strip()); cur = ''
        else:
            cur += ch
    if cur.strip():
        ops.append(cur.strip())
    return ops

_reg_re = re.compile(r'^-?\|?(?:abs\()?([vas])(?:(\d+)|\[(\d+):(\d+)\])\)?\|?$')

def regs_of(tok):
    tok = tok.split()[0] if tok.split() else ''
    if tok in ('vcc',):
        return {('s', 106), ('s', 107)}
    if tok == 'vcc_lo':
        return {('s', 106)}
    if tok == 'vcc_hi':
        return {('s', 107)}
    if tok == 'exec':
        return {('s', 126), ('s', 127)}
    if tok == 'exec_lo':
        return {('s', 126)}
    if tok == 'exec_hi':
        return {('s', 127)}
    if tok == 'm0':
        return {('s', 124)}
    m = _reg_re.match(tok)
    if not m:
        return set()
    f = m.group(1)
    if m.group(2) is not None:
        return {(f, int(m.group(2)))}
    return {(f, i) for i in range(int(m.group(3)), int(m.group(4)) + 1)}

class Ins:
    __slots__ = ('text', 'mn', 'ops', 'kind', 'w', 'r', 'srcC', 'srcAB', 'passes', 'states', 'lds_dma', 'wide_store', 'sdata')
    def __init__(self, text):
        self.text = text
        t = text.split(';')[0].strip()
        parts = t.split(None, 1)
        self.mn = parts[0]
        self.ops = split_ops(parts[1]) if len(parts) > 1 else []
        self.w = set(); self.r = set(); self.srcC = set(); self.srcAB = set(); self.passes = 0
        self.states = 1; self.lds_dma = False; self.wide_store = False; self.sdata = set()
        mn, ops = self.mn, self.ops
        R = regs_of
        if mn.startswith('v_mfma'):
            self.kind = 'mfma'
            self.w = R(ops[0]); self.srcAB = R(ops[1]) | R(ops[2]); self.srcC = R(ops[3])
            self.r = self.srcAB | self.srcC
            self.passes = 8 if '32x32x16' in mn else (4 if '16x16x32' in mn else (2 if '4x4x4' in mn else 16))
        elif mn.startswith('v_'):
            self.kind = 'valu'
            base = mn.replace('_e32', '').replace('_e64', '').replace('_dpp', '').replace('_sdwa', '')
            if base.startswith('v_cmpx'):
                self.w = R(ops[0]) | R('exec')
                for o in ops[1:]: self.r |= R(o)
            elif base.startswith('v_cmp'):
                self.w = R(ops[0])
                for o in ops[1:]: self.r |= R(o)
            elif base in ('v_add_co_u32', 'v_sub_co_u32', 'v_subrev_co_u32', 'v_addc_co_u32', 'v_subb_co_u32', 'v_mad_u64_u32', 'v_div_scale_f32'):
                self.w = R(ops[0]) | R(ops[1])
                for o in ops[2:]: self.r |= R(o)
            elif base.startswith('v_permlane') or base == 'v_swap_b32':
                self.w = R(ops[0]) | R(ops[1]); self.r = set(self.w)
            elif base == 'v_nop':
                pass
            else:
                self.w = R(ops[0])
                for o in ops[1:]: self.r |= R(o)
                if base in ('v_fmac_f32', 'v_dot2c_f32_bf16', 'v_pk_fmac_f16', 'v_writelane_b32') or '_dpp' in mn or '_sdwa' in mn:
                    self.r |= self.w
                if base == 'v_cndmask_b32' and len(ops) == 3:
                    self.r |= R('vcc')
        elif mn.startswith('ds_'):
            self.kind = 'ds'
            if mn.startswith('ds_read') or mn.startswith('ds_bpermute') or mn.startswith('ds_permute') or mn.startswith('ds_swizzle'):
                self.w = R(ops[0])
                for o in ops[1:]: self.r |= R(o)
            else:
                for o in ops: self.r |= R(o)
        elif mn.startswith('buffer_') or mn.startswith('global_') or mn.startswith('flat_'):
            self.kind = 'vmem'
            words = t.split()
            if mn.startswith('buffer_wbl2') or mn.startswith('buffer_inv'):
                pass
            elif 'lds' in words or '_lds_' in mn:
                self.lds_dma = True
                for o in ops: self.r |= R(o)
                self.r |= R('m0')
            elif '_load' in mn:
                self.w = R(ops[0])
                for o in ops[1:]: self.r |= R(o)
                if 'd16' in mn: self.r |= self.w
            elif '_store' in mn:
                for o in ops: self.r |= R(o)
                data = ops[0] if mn.startswith('buffer_') else ops[1]
                if 'x3' in mn or 'x4' in mn:
                    self.wide_store = True; self.sdata = R(data)
            else:
                for o in ops: self.r |= R(o)
                if 'sc0' in words:
                    self.w = R(ops[0])
        elif mn.startswith('s_'):
            self.kind = 'salu'
            if mn == 's_nop':
                self.states = int(ops[0], 0) + 1
            elif mn.startswith('s_cmp') or mn.startswith('s_cbranch') or mn in ('s_branch', 's_barrier', 's_waitcnt', 's_endpgm', 's_setprio', 's_sleep') or mn.startswith('s_bitcmp'):
                for o in ops: self.r |= R(o)
            elif mn.endswith('saveexec_b64'):
                self.w = R(ops[0]) | R('exec'); self.r = R(ops[1]) | R('exec')
            else:
                self.w = R(ops[0]) if ops else set()
                for o in ops[1:]: self.r |= R(o)
                if mn in ('s_addk_i32', 's_mulk_i32'): self.r |= self.w
        else:
            self.kind = 'other'

def required_states(p, c):
    need = 0
    vr = lambda s: {x for x in s if x[0] in 'va'}
    sr = lambda s: {x for x in s if x[0] == 's'}
    if p.kind == 'mfma':
        tb = {2: (2, 4, 5, 5, 1), 4: (0, 6, 8, 8, 3), 8: (0, 10, 12, 12, 7), 16: (0, 18, 20, 20, 15)}[p.passes]
        if c.kind == 'mfma':
            if p.w & c.srcC:
                if p.w == c.srcC and p.passes == c.passes:
                    need = max(need, tb[0])
                else:
                    need = max(need, tb[1])
            if p.w & c.srcAB:
                need = max(need, tb[2])
            if (p.w & c.w) and not (p.w == c.srcC):
                need = max(need, tb[1])
        elif c.kind in ('valu', 'vmem', 'ds'):
            if p.w & (c.r | c.w):
                need = max(need, tb[3])
            if c.kind == 'valu' and (p.srcC & c.w):
                need = max(need, tb[4])
            if c.kind in ('vmem', 'ds') and (p.srcC & c.w):
                need = max(need, tb[4])
    elif p.kind == 'valu':
        pv, ps = vr(p.w), sr(p.w)
        base = p.mn.replace('_e32', '').replace('_e64', '')
        if c.kind == 'mfma':
            if pv & c.r: need = max(need, 2)
            if ('s', 126) in p.w: need = max(need, 4)
        if c.kind == 'valu':
            cb = c.mn.replace('_e32', '').replace('_e64', '')
            if base in TRANS and (pv & c.r) :
                need = max(need, 1)
            if cb.startswith('v_permlane') and (pv & c.r): need = max(need, 2)
            if '_dpp' in c.mn and (pv & c.r): need = max(need, 2)
            if '_dpp' in c.mn and ('s', 126) in p.w: need = max(need, 5)
            if cb in ('v_readfirstlane_b32', 'v_readlane_b32') and (pv & c.r): need = max(need, 1)
            if ps & c.r:
                need = max(need, 2)
                if cb in ('v_readlane_b32', 'v_writelane_b32', 'v_div_fmas_f32'): need = max(need, 4)
            if ('s', 126) in p.w and cb in ('v_readfirstlane_b32', 'v_readlane_b32', 'v_writelane_b32'): need = max(need, 4)
            if ('s', 126) in p.w and cb.startswith('v_permlane'): need = max(need, 4)
            if ('_sdwa' in p.mn or 'op_sel' in p.text and not p.mn.startswith('v_pk')) and (pv & (c.r | c.w)): need = max(need, 1)
            if p.mn.startswith('v_dot') and (pv & (c.r | c.w)):
                if not (c.mn == p.mn and not (pv & (regs_of(c.ops[1]) | regs_of(c.ops[2])))):
                    need = max(need, 3)
        if c.kind == 'vmem' and (ps & c.r): need = max(need, 5)
        if c.kind == 'salu' and (ps & c.r) and not c.mn.startswith('s_cbranch'): need = max(need, 1)
    elif p.kind == 'salu':
        if ('s', 124) in p.w and (c.lds_dma or c.mn.endswith('addtid_b32')): need = max(need, 1)
    elif p.kind == 'vmem':
        if p.wide_store and (p.sdata & c.w):
            need = max(need, 2 if c.kind == 'valu' else 1)
    return need

MAXLOOK = 22

VOP12 = set("""v_mov_b32 v_add_u32 v_sub_u32 v_subrev_u32 v_lshlrev_b32 v_lshrrev_b32 v_ashrrev_i32 v_and_b32 v_or_b32 v_xor_b32 v_mul_u32_u24
v_min_u32 v_max_u32 v_cndmask_b32 v_add_f32 v_sub_f32 v_subrev_f32 v_mul_f32 v_fmac_f32 v_min_f32 v_max_f32 v_rcp_f32 v_rsq_f32 v_sqrt_f32 v_exp_f32 v_log_f32
v_readfirstlane_b32 v_permlane32_swap_b32 v_permlane16_swap_b32 v_accvgpr_mov_b32 v_nop v_dot2c_f32_bf16 v_cvt_f32_u32 v_cvt_u32_f32 v_not_b32""".split())
NOPROMO = set('v_readfirstlane_b32 v_permlane32_swap_b32 v_permlane16_swap_b32 v_accvgpr_mov_b32 v_nop v_fmac_f32 v_dot2c_f32_bf16 v_cndmask_b32'.split())
_INLINE_F = {'0.5', '-0.5', '1.0', '-1.0', '2.0', '-2.0', '4.0', '-4.0'}
_INLINE_HEX = {0x3f000000, 0xbf000000, 0x3f800000, 0xbf800000, 0x40000000, 0xc0000000, 0x40800000, 0xc0800000, 0x3e22f983}
def is_literal(tok):
    tok = tok.strip()
    if not tok or regs_of(tok) or tok in _INLINE_F or tok in ('vcc', 'exec', 'm0', 'off', 'scc'): return False
    try:
        v = int(tok, 0)
    except ValueError:
        return not tok.startswith('hwreg') and not tok.startswith('vmcnt') and not tok.startswith('lgkmcnt')
    if -16 <= v <= 64: return False
    if (v & 0xffffffff) in _INLINE_HEX or (v & 0xffffffff) >= 0xfffffff0: return False
    return True
def ins_size(ins):
    mn = ins.mn
    if ins.kind in ('mfma', 'ds', 'vmem'): return 8, False
    if ins.kind == 'valu':
        if mn.endswith('_e64') or '_dpp' in mn or '_sdwa' in mn: return 8, False
        base = mn.replace('_e32', '')
        if base.startswith('v_cmp'):
            if ins.ops[0] != 'vcc': return 8, False
            lit = any(is_literal(o) for o in ins.ops[1:])
            if not lit and not ins.ops[2].startswith('v'): return 8, False
            return (8, False) if lit else (4, True)
        if base in VOP12:
            if base == 'v_cndmask_b32' and ins.ops[-1] != 'vcc': return 8, False
            if any(is_literal(o) for o in ins.ops[1:]): return 8, False
            if len(ins.ops) >= 3 and not ins.ops[2].startswith('v'): return 8, False
            if any(o.startswith('-v') or o.startswith('|') or o.startswith('abs') for o in ins.ops): return 8, False
            return 4, (base not in NOPROMO and not mn.endswith('_e32'))
        return 8, False
    if ins.kind == 'salu':
        if mn.startswith('s_load') or mn.startswith('s_mem') or mn.startswith('s_buffer') or mn.startswith('s_atomic'): return 8, False
        if mn in ('s_nop', 's_waitcnt', 's_barrier', 's_endpgm', 's_branch', 's_setprio', 's_sleep') or mn.startswith('s_cbranch') or mn.endswith('k_i32') or mn.startswith('s_getreg'): return 4, False
        if mn == 's_mov_b64' and ins.ops[1].startswith('0x'): return 8, False
        return (8 if any(is_literal(o) for o in ins.ops) else 4), False
    return 4, False

class Asm:
    def __init__(self):
        self.lines = []
        self.hist = []
        self.auto_nops = []
        self.all_ins = []
        self.record = None
        self.clock = 0; self.mfree = 0; self.store_mod = ' sc1'
        self.off = 0; self.run4 = []; self.align = True; self.dense = False; self.sizes = []
    def raw(self, s):
        self.lines.append(s)
        if s.startswith('.p2align'): self.off = 0; self.run4 = []
    def comment(self, s):
        self.lines.append('    ; ' + s)
    def label(self, name, reset=False):
        self.lines.append(name + ':')
        if self.record is not None: self.record.append(('label', name))
        if reset:
            self.hist = []
    def _need(self, ins):
        dist = 0; pad = 0
        for p in reversed(self.hist):
            req = required_states(p, ins)
            if req > dist:
                pad = max(pad, req - dist)
            dist += p.states
            if dist > MAXLOOK: break
        return pad
    def _tick(self, ins):
        if ins.kind == 'mfma':
            t = max(self.clock, self.mfree)
            self.mfree = t + 4 * ins.passes; self.clock = t + (4 if ins.passes == 2 else 8)
        elif ins.mn.startswith('v_pk_') or ins.mn.startswith('v_dot'):
            self.clock = max(self.clock, self.mfree) + 4
        elif ins.mn.replace('_e32', '') in TRANS:
            self.clock += 8
        else:
            self.clock += 4 * ins.states
    def e(self, text):
        if text.startswith('buffer_store_dword') and self.store_mod: text += self.store_mod
        ins = Ins(text)
        self._tick(ins)
        pad = self._need(ins)
        while pad > 0:
            n = min(pad, 16)
            nop = Ins('s_nop %d' % (n - 1))
            self.lines.append(' s_nop %d' % (n - 1)); self.off += 4; self.sizes.append(4)
            self.hist.append(nop); self.auto_nops.append((len(self.lines), n, text))
            if self.record is not None: self.record.append(('ins', nop))
            pad -= n
        sz, promo = ins_size(ins)
        if self.align and sz == 8 and self.off % 8 == 4:
            if self.run4:
                li, si = self.run4.pop()
                t = self.lines[li].split(None, 1)
                self.lines[li] = ' ' + t[0] + '_e64 ' + t[1]; self.off += 4; self.sizes[si] = 8
            elif self.dense:
                nop = Ins('s_nop 0')
                self.lines.append(' s_nop 0'); self.off += 4; self.sizes.append(4); self.hist.append(nop)
                if self.record is not None: self.record.append(('ins', nop))
        if sz == 8: self.run4 = []
        elif promo: self.run4.append((len(self.lines), len(self.sizes)))
        self.off += sz; self.sizes.append(sz)
        self.lines.append(' ' + text)
        self.hist.append(ins)
        if len(self.hist) > 64: self.hist = self.hist[-40:]
        if self.record is not None: self.record.append(('ins', ins))
        return ins
    def text(self):
        return '\n'.join(self.lines) + '\n'

def check_seq(seq):
    out = []
    for i, c in enumerate(seq):
        dist = 0
        for j in range(i - 1, -1, -1):
            p = seq[j]
            req = required_states(p, c)
            if req > dist:
                out.append((j, i, req, dist, p.text, c.text))
            dist += p.states
            if dist > MAXLOOK: break
    return out

def vr(base, n=1, f='v'):
    return '%s%d' % (f, base) if n == 1 else '%s[%d:%d]' % (f, base, base + n - 1)
def ar(base, n=1):
    return vr(base, n, 'a')
def sr(base, n=1):
    return vr(base, n, 's')

def kernel_begin(a, name):
    a.raw('.globl %s' % name)
    a.raw('.p2align 8')
    a.raw('.type %s,@function' % name)
    a.label(name, reset=True)

def kernel_desc(name, vgpr, sgpr, accum):
    return '\n'.join([
        '.amdhsa_kernel %s' % name,
        '  .amdhsa_next_free_vgpr %d' % vgpr,
        '  .amdhsa_next_free_sgpr %d' % sgpr,
        '  .amdhsa_accum_offset %d' % accum,
        '  .amdhsa_group_segment_fixed_size 0',
        '  .amdhsa_kernarg_size 88',
        '  .amdhsa_user_sgpr_count 2',
        '  .amdhsa_user_sgpr_kernarg_segment_ptr 1',
        '  .amdhsa_system_sgpr_workgroup_id_x 1',
        '.end_amdhsa_kernel', ''])
```

```python
import copy
from asmlib import *
from layout import *

class LdsQ:
    def __init__(self):
        self.n = 0; self.done = 0; self.where = {}; self.pending = set()
    def issue(self, regs, check=True):
        self.n += 1
        for r in regs:
            if check: assert r not in self.pending, ('ring WAR', r)
            self.where[r] = self.n; self.pending.add(r)
    def consume(self, r):
        self.pending.discard(r); self.pending.discard(r + 1000)
    def need(self, regs):
        return max([self.where.get(r, 0) for r in regs] + [0])
    def wait_for(self, a, idx):
        if idx <= self.done: return
        N = min(self.n - idx, 15)
        a.e('s_waitcnt lgkmcnt(%d)' % N)
        self.done = self.n - N
    def drained(self):
        self.done = self.n
    def state(self):
        return (self.n - self.done, sorted((self.n - v, k) for k, v in self.where.items() if v > self.done), sorted(self.pending))

MF = 'v_mfma_f32_16x16x32_bf16'

KIDX = [0]
MIDR = {76: 80, 77: 81, 0: 80, 1: 81, 2: 82, 3: 83, 4: 84}
def stamp_begin(a):
    a.e('s_memrealtime s[66:67]')
    a.e('s_memtime s[72:73]')
    for r in range(80, 85): a.e('s_mov_b32 s%d, 0' % r)
    KIDX[0] += 1
def stamp_mid(a, reg):
    a.e('s_memrealtime s[78:79]')
    a.e('s_waitcnt lgkmcnt(0)')
    a.e('s_mov_b32 s%d, s78' % MIDR[reg])
def stamp_end(a, sWave, endlabel=None, nw=4):
    a.e('s_waitcnt vmcnt(0)')
    a.e('s_memrealtime s[68:69]')
    a.e('s_memtime s[74:75]')
    a.e('s_waitcnt lgkmcnt(0)')
    a.e('s_sub_u32 s74, s74, s72')
    a.e('s_getreg_b32 s71, hwreg(HW_REG_XCC_ID)')
    a.e('s_and_b32 s71, s71, 15')
    a.e('s_lshl_b32 s71, s71, 28')
    a.e('s_or_b32 s74, s74, s71')
    a.e('s_mul_i32 s70, s2, %d' % nw)
    a.e('s_add_u32 s70, s70, s%d' % sWave)
    a.e('s_lshl_b32 s70, s70, 5')
    a.e('s_add_u32 s70, s70, %d' % (TRACE_OFF + (KIDX[0] - 1) * TRACE_STRIDE))
    a.e('s_mov_b64 exec, 1')
    a.e('v_mov_b32 v0, s66'); a.e('v_mov_b32 v1, s68'); a.e('v_mov_b32 v2, s74'); a.e('v_mov_b32 v3, s80')
    a.e('v_mov_b32 v4, s81'); a.e('v_mov_b32 v5, s82'); a.e('v_mov_b32 v6, s83'); a.e('v_mov_b32 v7, s84')
    a.e('v_mov_b32 v8, s70')
    a.e('global_store_dwordx4 v8, v[0:3], s[4:5]')
    a.e('global_store_dwordx4 v8, v[4:7], s[4:5] offset:16')

def gen_attn(a, name='attn_kernel', cfg=None):
    cfg = cfg or {}
    DV = cfg.get('DV', 9)
    DK = cfg.get('DK', 7)
    BARPOS = cfg.get('BARPOS', 31 - DV + 4)
    WG = cfg.get('WAITGROUP', 4)
    DMA_SLOTS = cfg.get('DMA_SLOTS', [2, 6, 10, 14, 18, 22, 26, 30])
    NO_DMA = cfg.get('NO_DMA', False)
    NO_SM = cfg.get('NO_SM', False)
    STAMP = cfg.get('STAMP', False)
    S = [0, 16]; P = 32; RING = 40; NR = 16
    NEGM = 104
    vK = [112, 113]; vV = [114, 115]
    vD0, vD1, vL0, vL1, vMx, vT0, vT1, vLane16 = 116, 117, 118, 119, 120, 121, 122, 123
    vL = [vL0, vL1]
    def Sreg(b, kt, qs): return S[b] + (kt * 2 + qs) * 4
    def Obase(dt, qs): return (dt * 2 + qs) * 4
    def Oreg(dt, qs):
        o = Obase(dt, qs)
        return vr(128 + o, 4) if o < 128 else ar(o, 4)
    def Qreg(ks, qs): return ar((ks * 2 + qs) * 4, 4)
    sSRD = 8; sWave = 12; sM0 = 13; sDma = 14; sQ = 15; sI = 16; sN2 = 17; sValid = 18; sOut = 19; sMl = 20; sT0 = 21; sT1 = 22; sT2 = 23
    srd = sr(sSRD, 4)

    kernel_begin(a, name)
    a.e('s_cmp_ge_u32 s2, 256')
    a.e('s_cbranch_scc1 %s_end' % name)
    a.e('s_load_dwordx2 s[4:5], s[0:1], 80')
    if STAMP: stamp_begin(a)
    if cfg.get('CPF', 1):
        from common import code_prefetch
        code_prefetch(a, name, 124, 125, 1)
    a.e('v_lshrrev_b32 v1, 6, v0')
    a.e('v_and_b32 v2, 63, v0')
    a.e('v_readfirstlane_b32 s%d, v1' % sWave)
    a.e('v_lshlrev_b32 v%d, 4, v2' % vLane16)
    a.e('s_and_b32 s%d, s2, 7' % sT0)
    a.e('s_lshr_b32 s%d, s2, 3' % sT1)
    a.e('s_and_b32 s%d, s%d, 3' % (sT2, sT1))
    a.e('s_lshr_b32 s%d, s%d, 2' % (sT1, sT1))
    a.e('s_and_b32 s24, s%d, 3' % sT0)
    a.e('s_lshl_b32 s24, s24, 3')
    a.e('s_add_u32 s24, s24, s%d' % sT1)
    a.e('s_lshl_b32 s24, s24, 2')
    a.e('s_add_u32 s24, s24, s%d' % sWave)
    a.e('s_cmp_lt_u32 s24, 125')
    a.e('s_cselect_b32 s%d, 1, 0' % sValid)
    a.e('s_min_u32 s24, s24, 124')
    a.e('s_lshr_b32 s25, s%d, 2' % sT0)
    a.e('s_mul_i32 s25, s25, 125')
    a.e('s_add_u32 s24, s24, s25')
    a.e('s_lshl_b32 s%d, s24, 15' % sQ)
    a.e('s_mul_i32 s26, s%d, 250' % sT2)
    a.e('s_add_u32 s26, s26, s24')
    a.e('s_lshl_b32 s%d, s26, 15' % sOut)
    a.e('s_add_u32 s%d, s%d, %d' % (sOut, sOut, OP_OFF))
    a.e('s_lshl_b32 s%d, s26, 8' % sMl)
    a.e('s_add_u32 s%d, s%d, %d' % (sMl, sMl, ML_OFF))
    a.e('s_add_u32 s%d, s%d, %d' % (sQ, sQ, QF_OFF))
    a.e('s_mul_i32 s27, s%d, 31' % sT2)
    a.e('s_min_u32 s28, s%d, 1' % sT2)
    a.e('s_add_u32 s27, s27, s28')
    a.e('s_add_u32 s27, s27, s25')
    a.e('s_lshl_b32 s%d, s27, 15' % sDma)
    if XF_OFF: a.e('s_add_u32 s%d, s%d, %d' % (sDma, sDma, XF_OFF))
    a.e('s_sub_u32 s%d, 31, s28' % sN2)
    a.e('s_lshl_b32 s%d, s%d, 13' % (sM0, sWave))
    a.e('v_add_u32 v%d, s%d, v%d' % (vD0, sM0, vLane16))
    a.e('v_add_u32 v%d, 0x1000, v%d' % (vD1, vD0))
    sG, sRd0, sRd1 = 29, 30, 31
    a.e('s_and_b32 s%d, s%d, 3' % (sG, sT0))
    a.e('s_lshl_b32 s%d, s%d, 5' % (sG, sG))
    a.e('s_lshr_b32 s34, s2, 3')
    a.e('s_add_u32 s%d, s%d, s34' % (sG, sG))
    a.e('s_add_u32 s%d, s%d, s25' % (sG, sG))
    a.e('s_lshl_b32 s%d, s%d, 15' % (sG, sG))
    a.e('s_add_u32 s35, s%d, %d' % (sG, U_OFF))
    a.e('s_add_u32 s%d, s%d, %d' % (sG, sG, G_OFF))
    a.e('s_sub_u32 s%d, s%d, 3' % (sRd0, sN2))
    a.e('s_sub_u32 s%d, s%d, 2' % (sRd1, sN2))
    a.e('v_lshrrev_b32 v3, 4, v2')
    a.e('v_and_b32 v4, 15, v2')
    a.e('v_and_b32 v5, 1, v3')
    a.e('v_mul_u32_u24 v5, 12, v5')
    a.e('v_xor_b32 v5, v4, v5')
    a.e('v_lshlrev_b32 v5, 4, v5')
    a.e('v_lshl_add_u32 v%d, v3, 9, v5' % vK[0])
    a.e('v_add_u32 v%d, 0x10000, v%d' % (vK[1], vK[0]))
    a.e('v_lshrrev_b32 v4, 2, v2')
    a.e('v_bfe_u32 v5, v2, 1, 1')
    a.e('v_and_b32 v6, 1, v2')
    a.e('v_mul_u32_u24 v7, 12, v5')
    a.e('v_xor_b32 v4, v4, v7')
    a.e('v_lshlrev_b32 v4, 4, v4')
    a.e('v_lshl_add_u32 v4, v5, 9, v4')
    a.e('v_lshl_add_u32 v%d, v6, 3, v4' % vV[0])
    a.e('v_add_u32 v%d, 0x10000, v%d' % (vV[1], vV[0]))
    a.e('v_lshlrev_b32 v126, 7, v2')
    a.e('v_lshlrev_b32 v127, 7, v0')
    zl = ['v_mov_b32 v%d, 0' % r for r in range(128, 256)] + ['v_accvgpr_write_b32 a%d, 0' % r for r in range(128, 256)]
    def zero(n):
        for _ in range(n):
            if zl: a.e(zl.pop(0))
    zero(cfg.get('AT_Z0', 64))
    a.e('s_waitcnt lgkmcnt(0)')
    a.e('s_mov_b32 s%d, s4' % sSRD)
    a.e('s_and_b32 s%d, s5, 0xffff' % (sSRD + 1))
    a.e('s_mov_b32 s%d, %d' % (sSRD + 2, WS_BYTES))
    a.e('s_mov_b32 s%d, 0x00020000' % (sSRD + 3))

    def dma_piece(stage, j, redirect=False):
        out = []
        if j % 4 == 0:
            out.append('s_add_u32 m0, s%d, %d' % (sM0, stage * 32768 + (j // 4) * 4096))
        out.append('buffer_load_dwordx4 v%d, %s, s%d offen offset:%d lds' % (vD0 if j < 4 else vD1, srd, sDma, (j % 4) * 1024))
        if j == 7:
            out.append('s_add_u32 s%d, s%d, 0x8000' % (sDma, sDma))
            if redirect and cfg.get('AT_REDIR', 1):
                out.append('s_cmp_eq_u32 s%d, s%d' % (sI, sRd0))
                out.append('s_cselect_b32 s%d, s%d, s%d' % (sDma, sG, sDma))
                out.append('s_cmp_eq_u32 s%d, s%d' % (sI, sRd1))
                out.append('s_cselect_b32 s%d, s35, s%d' % (sDma, sDma))
        return out
    def dma_tile(stage, z=0):
        for j in range(8):
            for t in dma_piece(stage, j): a.e(t)
            zero(z)

    if cfg.get('AT_QT', 0):
        a.e('s_lshl_b32 s34, s%d, 13' % sT2)
        a.e('s_add_u32 s34, s34, s%d' % sQ)
        a.e('buffer_load_dword v125, v126, %s, s34 offen' % srd)
    dma_tile(0)
    for f in range(32):
        if f and f % 4 == 0:
            a.e('s_add_u32 s%d, s%d, 0x1000' % (sQ, sQ))
        a.e('buffer_load_dwordx4 %s, v%d, %s, s%d offen offset:%d' % (ar(4 * f, 4), vLane16, srd, sQ, (f % 4) * 1024))
        zero(6)
    zero(1000)
    a.e('v_mov_b32 v%d, 0' % vL0)
    a.e('v_mov_b32 v%d, 0' % vL1)
    a.e('s_mov_b32 s%d, 0' % sI)

    q = LdsQ()
    def ring(n): return RING + 4 * ((n % 64) % NR)
    def kread(stage, n):
        reg = ring(n); ks, kt = n // 2, n % 2
        return [('ds', 'ds_read_b128 %s, v%d offset:%d' % (vr(reg, 4), vK[stage >> 1], (stage & 1) * 32768 + ks * 2048 + kt * 256), [reg])]
    def vread(stage, dt):
        reg = ring(32 + dt)
        off = (stage & 1) * 32768 + dt * 1024
        return [('ds', 'ds_read_b64_tr_b16 %s, v%d offset:%d' % (vr(reg, 2), vV[stage >> 1], off), [reg + 1000]),
                ('ds', 'ds_read_b64_tr_b16 %s, v%d offset:%d' % (vr(reg + 2, 2), vV[stage >> 1], off + 256), [reg])]
    chk = [True]
    def emit_item(it):
        if isinstance(it, tuple):
            a.e(it[1]); q.issue(it[2], chk[0])
        else:
            a.e(it)

    a.e('s_waitcnt vmcnt(32)')
    a.e('s_barrier')
    PD = 8
    for n in range(PD):
        for it in kread(0, n): emit_item(it)
    late = [dma_piece(1, j) for j in range(8)] + [dma_piece(2, j) for j in range(8)]
    nl = 0
    for n in range(32):
        ks, kt = n // 2, n % 2
        if n + PD < 32:
            for it in kread(0, n + PD): emit_item(it)
        if kt == 0:
            a.e('s_waitcnt vmcnt(%d)' % (nl + 30 - 2 * ks))
        q.wait_for(a, q.need([ring(n)]))
        for qs in range(2):
            a.e('%s %s, %s, %s, %s' % (MF, vr(Sreg(0, kt, qs), 4), vr(ring(n), 4), Qreg(ks, qs), '0' if ks == 0 else vr(Sreg(0, kt, qs), 4)))
        q.consume(ring(n))
        if (n < 8 or n % 2 == 1) and late:
            for t in late.pop(0): a.e(t)
            nl += 1
    assert not late
    a.e('s_waitcnt vmcnt(8)')
    a.e('s_barrier')

    n_tail = cfg.get('NTAIL', 8)
    for n in range(n_tail):
        for it in kread(1, n): emit_item(it)

    def head_wait():
        idx = max(q.need([ring(k2)]) for k2 in range(WG))
        assert idx > q.done
        q.wait_for(a, idx)
    def rowmax(b, qs, dst, tmp):
        r0, r1 = Sreg(b, 0, qs), Sreg(b, 1, qs)
        a.e('v_max3_f32 v%d, v%d, v%d, v%d' % (dst, r0, r0 + 1, r0 + 2))
        a.e('v_max3_f32 v%d, v%d, v%d, v%d' % (dst, dst, r0 + 3, r1))
        a.e('v_max3_f32 v%d, v%d, v%d, v%d' % (dst, dst, r1 + 1, r1 + 2))
        a.e('v_max_f32 v%d, v%d, v%d' % (dst, dst, r1 + 3))
        a.e('v_mov_b32 v%d, v%d' % (tmp, dst))
        a.e('v_permlane16_swap_b32 v%d, v%d' % (tmp, dst))
        a.e('v_max_f32 v%d, v%d, v%d' % (dst, dst, tmp))
        a.e('v_mov_b32 v%d, v%d' % (tmp, dst))
        a.e('v_permlane32_swap_b32 v%d, v%d' % (tmp, dst))
        a.e('v_max_f32 v%d, v%d, v%d' % (dst, dst, tmp))
    for qs in range(2):
        rowmax(0, qs, vMx, vT0)
        for kt in range(2):
            for r in range(4):
                a.e('v_sub_f32 v%d, v%d, v%d' % (Sreg(0, kt, qs) + r, Sreg(0, kt, qs) + r, vMx))
        for r in range(4):
            a.e('v_sub_f32 v%d, 0, v%d' % (NEGM + 4 * qs + r, vMx))

    def softmax_items(b):
        items = []
        for qs in range(2):
            for kt in range(2):
                for pr in range(2):
                    r0 = Sreg(b, kt, qs) + 2 * pr; r1 = r0 + 1
                    items.append('v_exp_f32 v%d, v%d' % (r0, r0))
                    items.append('v_exp_f32 v%d, v%d' % (r1, r1))
                    items.append('v_add_f32 v%d, v%d, v%d' % (vL[qs], vL[qs], r0))
                    items.append('v_cvt_pk_bf16_f32 v%d, v%d, v%d' % (P + 4 * qs + 2 * kt + pr, r0, r1))
                    items.append('v_add_f32 v%d, v%d, v%d' % (vL[qs], vL[qs], r1))
        return items

    LAT = cfg.get('LAT', 8)
    EARLY = cfg.get('EARLY', 22)
    BARG = cfg.get('BARG', 112)
    def body(u, final=False):
        bc, bn = u % 2, (u + 1) % 2
        stK, stV = (u + 1) % 4, u
        mf = [None] * 128
        need = [None] * 64
        for n in range(32):
            if final: break
            ks, kt = n // 2, n % 2
            for qs in range(2):
                mf[2 * n + qs] = '%s %s, %s, %s, %s' % (MF, vr(Sreg(bn, kt, qs), 4), vr(ring(n), 4), Qreg(ks, qs), vr(NEGM + 4 * qs, 4) if ks == 0 else vr(Sreg(bn, kt, qs), 4))
            need[n] = ring(n)
        for dt in range(32):
            for qs in range(2):
                mf[64 + 2 * dt + qs] = '%s %s, %s, %s, %s' % (MF, Oreg(dt, qs), vr(ring(32 + dt), 4), vr(P + 4 * qs, 4), Oreg(dt, qs))
            need[32 + dt] = ring(32 + dt)
        pre = [[] for _ in range(129)]
        if final:
            sm = [] if NO_SM else softmax_items(bc)
            for dt in range(32):
                its = vread(stV, dt)
                sl = 32 + dt - 9
                pre[2 * sl] += [its[0]]; pre[2 * sl + 1] += [its[1]]
            for j, it in enumerate(sm):
                pre[2 * (32 - 9) + (j * 18) // len(sm)].append(it)
            waits = set(range(64, 128, 4))
        else:
            cap = [2] * 128
            def wgap(k):
                g = 2 * (k - k % WG)
                return g
            waits = set(wgap(k) for k in range(WG, 64) if not (BARG <= wgap(k) < 128))
            for g in waits: cap[g] -= 1
            cap[BARG] -= 2; pre[BARG].append(('bar',))
            cap[0] -= 1 if u == 1 else 2
            cap[127] -= 1
            pre[125].append('s_add_u32 s%d, s%d, 1' % (sI, sI)); cap[125] -= 1
            if u in (1, 2):
                pre[126].append('s_cmp_eq_u32 s%d, s%d' % (sI, sN2)); cap[126] -= 1
            ds = []
            def ring_ok(k):
                return 2 * (k - NR) + 2
            for n in range(n_tail, 32):
                for it in kread(stK, n): ds.append((it, max(0, wgap(n) - EARLY, ring_ok(n)), wgap(n) - LAT))
            for dt in range(32):
                k = 32 + dt
                w = min(wgap(k), BARG)
                for it in vread(stV, dt): ds.append((it, max(w - EARLY, ring_ok(k)), w - LAT))
            for n in range(n_tail):
                for it in kread((u + 2) % 4, n): ds.append((it, max(BARG + 1, ring_ok(64 + n)), 124))
            dl = [d[2] for d in ds]
            for x in range(len(ds) - 2, -1, -1):
                dl[x] = min(dl[x], dl[x + 1] - 1)
            sm = [] if NO_SM else [(it, 2 if it.startswith('v_exp') else 1, 1) for it in softmax_items(bc)]
            Sn = S[bn]
            mx = ['v_max3_f32 v%d, v%d, v%d, v%d' % (vMx, Sn, Sn + 1, Sn + 2)]
            for r in range(3, 15, 2):
                mx.append('v_max3_f32 v%d, v%d, v%d, v%d' % (vMx, vMx, Sn + r, Sn + r + 1))
            mx.append('v_max_f32 v%d, v%d, v%d' % (vMx, vMx, Sn + 15))
            mx.append('v_cmp_lt_f32 vcc, 0x41000000, v%d' % vMx)
            sm += [(it, 1, cfg.get('MX_START', 70)) for it in mx]
            dm = []
            if not NO_DMA:
                g0, gs = cfg.get('DMA_START', 66), cfg.get('DMA_STEP', 5)
                for j in range(8):
                    for x, it in enumerate(dma_piece((u + 3) % 4, j, True)):
                        dm.append((it, g0 + gs * j + (-1 if it.startswith('s_add_u32 m0') else 0)))
            di = si = mi = 0
            last_m0 = -9
            for g in range(128):
                used_ds = False
                while cap[g] > 0:
                    ds_ready = di < len(ds) and ds[di][1] <= g and not used_ds
                    ds_urgent = ds_ready and dl[di] <= g + cfg.get('URG', 0)
                    sm_ready = si < len(sm) and sm[si][2] <= g and sm[si][1] <= cap[g]
                    dm_ready = mi < len(dm) and dm[mi][1] <= g and not (dm[mi][0].startswith('buffer') and (last_m0 == g or (used_ds and cfg.get('DMA_EXCL'))))
                    if ds_urgent:
                        pre[g].append(ds[di][0]); di += 1; cap[g] -= 1; used_ds = True
                    elif sm_ready and sm[si][1] == 2:
                        pre[g].append(sm[si][0]); cap[g] -= 2; si += 1
                    elif dm_ready:
                        if dm[mi][0].startswith('s_add_u32 m0'): last_m0 = g
                        if dm[mi][0].startswith('buffer') and cfg.get('DMA_EXCL'): used_ds = True
                        pre[g].append(dm[mi][0]); mi += 1; cap[g] -= 1
                    elif ds_ready:
                        pre[g].append(ds[di][0]); di += 1; cap[g] -= 1; used_ds = True
                    elif sm_ready:
                        pre[g].append(sm[si][0]); cap[g] -= 1; si += 1
                    else:
                        break
                if g == 62: assert NO_SM or si >= 40, ('softmax not finished in phase A', si)
                if g == BARG - 1: assert mi == len(dm), 'dma not finished'
                if di < len(ds): assert ds[di][2] + 4 > g, ('ds late', di, g, ds[di])
            assert di == len(ds) and si == len(sm), (di, len(ds), si, len(sm))
            if u == 0 and cfg.get('SHOW'):
                for g in range(128):
                    print(g, 'W' if g in waits else ' ', [ (x[1] if len(x) > 1 else 'BAR').split()[0] if isinstance(x, tuple) else x.split()[0] for x in pre[g]])
        for pos in range(128):
            k = pos // 2
            for it in pre[pos]:
                if isinstance(it, tuple) and it[0] == 'bar':
                    a.e('s_waitcnt vmcnt(%d) lgkmcnt(0)' % (0 if NO_DMA else 8)); q.drained()
                    a.e('s_barrier')
                else:
                    emit_item(it)
            if mf[pos] is None: continue
            if pos == 127 and not final:
                head_wait()
            if pos in waits:
                idx = 0
                for k2 in range(k, min(64, k + (2 if final else WG))):
                    assert need[k2] in q.pending, ('not issued', k2, pos)
                    idx = max(idx, q.need([need[k2]]))
                q.wait_for(a, idx)
            assert q.need([need[k]]) <= q.done and need[k] in q.pending, ('uncovered', pos)
            a.e(mf[pos])
            if pos % 2 == 1: q.consume(need[k])

    def rare(u):
        bn = (u + 1) % 2
        a.label('%s_rare%d' % (name, u), reset=True)
        a.e('s_nop 15')
        for qs in range(2):
            rowmax(bn, qs, vMx, vT0)
            a.e('v_max_f32 v%d, 0, v%d' % (vMx, vMx))
            a.e('v_sub_f32 v%d, 0, v%d' % (vT0, vMx))
            a.e('v_exp_f32 v%d, v%d' % (vT0, vT0))
            for kt in range(2):
                for r in range(4):
                    a.e('v_sub_f32 v%d, v%d, v%d' % (Sreg(bn, kt, qs) + r, Sreg(bn, kt, qs) + r, vMx))
            for r in range(4):
                a.e('v_sub_f32 v%d, v%d, v%d' % (NEGM + 4 * qs + r, NEGM + 4 * qs + r, vMx))
            a.e('v_mul_f32 v%d, v%d, v%d' % (vL[qs], vL[qs], vT0))
            for dt in range(32):
                o = Obase(dt, qs)
                if o < 128:
                    for j in range(4): a.e('v_mul_f32 v%d, v%d, v%d' % (128 + o + j, 128 + o + j, vT0))
                else:
                    for j in range(4): a.e('v_accvgpr_read_b32 v%d, a%d' % (P + j, o + j))
                    for j in range(4): a.e('v_mul_f32 v%d, v%d, v%d' % (P + j, P + j, vT0))
                    for j in range(4): a.e('v_accvgpr_write_b32 a%d, v%d' % (o + j, P + j))
        a.e('s_nop 3')
        a.e('s_branch %s_back%d' % (name, u))

    head_wait()
    if STAMP: stamp_mid(a, 76)
    a.raw('.p2align 6')
    a.label('%s_loop' % name)
    a.record = []
    qstate0 = q.state()
    saved = {}
    for u in range(4):
        body(u)
        a.e('s_cbranch_vccnz %s_rare%d' % (name, u))
        a.label('%s_back%d' % (name, u))
        if u in (1, 2):
            a.e('s_cbranch_scc1 %s_final%d' % (name, u + 1))
            saved[u + 1] = (copy.deepcopy(q), list(a.hist))
        assert q.state() == qstate0, (q.state(), qstate0)
    a.e('s_branch %s_loop' % name)
    rec = [x[1] for x in a.record if x[0] == 'ins']
    a.record = None
    viol = check_seq(rec + rec[:40])
    assert not viol, viol
    loop_len = len(rec)

    for u in (2, 3):
        a.label('%s_final%d' % (name, u))
        q.__dict__.update(saved[u][0].__dict__); a.hist = saved[u][1]
        q.pending = set()
        if cfg.get('AT_TOUCH', 1):
            a.e('s_lshr_b32 s34, s2, 3')
            a.e('s_lshl_b32 s34, s34, 15')
            a.e('s_add_u32 s34, s34, %d' % W2_OFF)
            a.e('buffer_load_dword v125, v127, %s, s34 offen' % srd)
            a.e('s_sub_u32 s34, s34, %d' % W2_OFF)
            a.e('s_min_u32 s34, s34, %d' % (4 << 15))
            a.e('s_add_u32 s34, s34, %d' % TPC_OFF)
            a.e('buffer_load_dword v125, v127, %s, s34 offen' % srd)
            a.e('s_getpc_b64 s[60:61]')
            lbl = '%s_np%d' % (name, u)
            a.label(lbl)
            a.e('s_add_u32 s60, s60, mid_kernel-%s' % lbl)
            a.e('s_addc_u32 s61, s61, 0')
            a.e('v_min_u32 v124, mid_kernel_end-mid_kernel, v127')
            a.e('global_load_dword v125, v124, s[60:61]')
        body(u, final=True)
        if u == 2:
            a.e('s_branch %s_epi' % name)
    a.label('%s_epi' % name)
    if STAMP: stamp_mid(a, 77)
    a.e('s_cmp_eq_u32 s%d, 0' % sValid)
    a.e('s_cbranch_scc1 %s_end' % name)
    a.e('s_nop 15')
    for qs in range(2):
        l = vL[qs]
        a.e('v_mov_b32 v%d, v%d' % (vT0, l))
        a.e('v_permlane16_swap_b32 v%d, v%d' % (vT0, l))
        a.e('v_add_f32 v%d, v%d, v%d' % (l, l, vT0))
        a.e('v_mov_b32 v%d, v%d' % (vT0, l))
        a.e('v_permlane32_swap_b32 v%d, v%d' % (vT0, l))
        a.e('v_add_f32 v%d, v%d, v%d' % (l, l, vT0))
    a.e('v_cmp_gt_u32 vcc, 0x100, v%d' % vLane16)
    a.e('v_cndmask_b32 v0, v%d, v%d, vcc' % (NEGM + 4, NEGM))
    a.e('v_cndmask_b32 v1, v%d, v%d, vcc' % (vL1, vL0))
    a.e('v_sub_f32 v0, 0, v0')
    a.e('v_lshrrev_b32 v2, 1, v%d' % vLane16)
    a.e('s_mov_b64 exec, 0xffffffff')
    a.e('buffer_store_dwordx2 v[0:1], v2, %s, s%d offen' % (srd, sMl))
    a.e('s_mov_b64 exec, -1')
    t = 0
    for D in range(16):
        for qs in range(2):
            f = D * 2 + qs
            tmp = RING + 4 * (t % 8); t += 1
            srcs = []
            for e in range(2):
                o = Obase(2 * D + e, qs)
                if o < 128:
                    srcs.append(128 + o)
                else:
                    s_ = 8 + 8 * (f % 3) + 4 * e
                    for j in range(4): a.e('v_accvgpr_read_b32 v%d, a%d' % (s_ + j, o + j))
                    srcs.append(s_)
            for e in range(2):
                for j in range(2):
                    a.e('v_cvt_pk_bf16_f32 v%d, v%d, v%d' % (tmp + 2 * e + j, srcs[e] + 2 * j, srcs[e] + 2 * j + 1))
            if f and f % 4 == 0:
                a.e('s_add_u32 s%d, s%d, 0x1000' % (sOut, sOut))
            a.e('buffer_store_dwordx4 %s, v%d, %s, s%d offen offset:%d' % (vr(tmp, 4), vLane16, srd, sOut, (f % 4) * 1024))
    if cfg.get('AT_BACK', 0):
        if cfg.get('AT_BACK31', 1):
            a.e('s_cmp_eq_u32 s%d, 31' % sN2)
            a.e('s_cbranch_scc1 %s_nb' % name)
        a.e('s_sub_u32 s%d, s%d, 0x7000' % (sOut, sOut))
        a.e('s_waitcnt vmcnt(%d)' % (32 - 8 * cfg['AT_BACK']))
        for j in range(cfg['AT_BACK']):
            a.e('buffer_load_dword v125, v126, %s, s%d offen' % (srd, sOut))
            a.e('s_add_u32 s%d, s%d, 0x2000' % (sOut, sOut))
        a.label('%s_nb' % name)
    if STAMP: stamp_end(a, sWave, '%s_end' % name)
    a.label('%s_end' % name)
    a.e('s_endpgm')
    for u in range(4):
        rare(u)
    return dict(name=name, vgpr=512, sgpr=96, accum=256, grid=256, block=256, lds=131072, loop_len=loop_len)
```

```python
from asmlib import *
from layout import *
MF = 'v_mfma_f32_16x16x32_bf16'

def make_srd(a, d, ptr, nbytes):
    a.e('s_mov_b32 s%d, s%d' % (d, ptr))
    a.e('s_and_b32 s%d, s%d, 0xffff' % (d + 1, ptr + 1))
    a.e('s_mov_b32 s%d, %d' % (d + 2, nbytes))
    a.e('s_mov_b32 s%d, 0x00020000' % (d + 3))

class VmQ:
    def __init__(self): self.n = 0; self.done = 0; self.where = {}
    def issue(self, key=None):
        self.n += 1
        if key is not None: self.where[key] = self.n
    def wait(self, a, key):
        idx = self.where[key]
        if idx <= self.done: return
        N = min(self.n - idx, 63)
        a.e('s_waitcnt vmcnt(%d)' % N); self.done = self.n - N
    def wait_all(self, a):
        if self.done < self.n:
            a.e('s_waitcnt vmcnt(0)'); self.done = self.n

class LgQ(VmQ):
    def wait(self, a, key):
        idx = self.where[key]
        if idx <= self.done: return
        N = min(self.n - idx, 15)
        a.e('s_waitcnt lgkmcnt(%d)' % N); self.done = self.n - N
    def wait_all(self, a):
        if self.done < self.n:
            a.e('s_waitcnt lgkmcnt(0)'); self.done = self.n

def quad_reduce(a, op, reg, tmp):
    a.e('v_mov_b32 v%d, v%d' % (tmp, reg))
    a.e('v_permlane16_swap_b32 v%d, v%d' % (tmp, reg))
    a.e('%s v%d, v%d, v%d' % (op, reg, reg, tmp))
    a.e('v_mov_b32 v%d, v%d' % (tmp, reg))
    a.e('v_permlane32_swap_b32 v%d, v%d' % (tmp, reg))
    a.e('%s v%d, v%d, v%d' % (op, reg, reg, tmp))

import struct
def f2u(x): return struct.unpack('<I', struct.pack('<f', x))[0]
def fhex(x): return '0x%08x' % f2u(x)

def code_prefetch(a, name, vtmp, vdst, n, sp=60, start=None, end=None, back=True, part_sgpr=None):
    start = start or name; end = end or (name + '_end')
    a.e('s_getpc_b64 s[%d:%d]' % (sp, sp + 1))
    lbl = '%s_pf%d' % (name, len(a.lines))
    a.label(lbl)
    a.e('s_add_u32 s%d, s%d, %s-%s' % (sp, sp, start, lbl))
    a.e('s_addc_u32 s%d, s%d, %s' % (sp + 1, sp + 1, '-1' if back else '0'))
    a.e('v_lshlrev_b32 v%d, 7, v0' % vtmp)
    if part_sgpr is not None: a.e('v_add_u32 v%d, s%d, v%d' % (vtmp, part_sgpr, vtmp))
    for k in range(n):
        if k: a.e('v_add_u32 v%d, 0x8000, v%d' % (vtmp, vtmp))
        a.e('v_min_u32 v%d, %s-%s, v%d' % (vdst, end, start, vtmp))
        a.e('global_load_dword v%d, v%d, s[%d:%d]' % (vdst, vdst, sp, sp + 1))
        vdst += 1
    return n

def l2_touch(a, srd, base, nbytes, vtmp, vdst, stmp, vq=None, gran=128, base_sgpr=None, nparts=32, part_expr=None):
    per = 256 * gran
    sh = {128: 7, 64: 6}[gran]
    if part_expr is None:
        a.e('s_lshr_b32 s%d, s2, 3' % stmp)
    else:
        part_expr(stmp)
    a.e('s_mul_i32 s%d, s%d, %d' % (stmp, stmp, per))
    if base_sgpr is not None: a.e('s_add_u32 s%d, s%d, s%d' % (stmp, stmp, base_sgpr))
    a.e('s_add_u32 s%d, s%d, %d' % (stmp, stmp, base))
    a.e('v_lshlrev_b32 v%d, %d, v0' % (vtmp, sh))
    n = (nbytes + per * nparts - 1) // (per * nparts)
    for k in range(n):
        if k: a.e('s_add_u32 s%d, s%d, %d' % (stmp, stmp, per * nparts))
        a.e('buffer_load_dword v%d, v%d, %s, s%d offen' % (vdst, vtmp, srd, stmp))
        if vq is not None: vq.issue()

class Stream:
    def __init__(self, a, vq, pace):
        self.a = a; self.vq = vq; self.pace = pace; self.q = []; self.last = -10**9; self.issued = set()
    def add(self, pre, ins, key, ready=None, cost=1.0):
        self.q.append((pre, ins, key, ready, cost))
    def _issue(self):
        pre, ins, key, ready, cost = self.q.pop(0)
        for p in pre: self.a.e(p)
        self.a.e(ins); self.vq.issue(key); self.issued.add(key)
        self.last = max(self.last + self.pace, self.a.clock - self.pace // 2) + (cost - 1.0) * self.pace
    def tick(self):
        if self.q and self.a.clock - self.last >= self.pace and (self.q[0][3] is None or self.q[0][3]()):
            self._issue(); return True
        return False
    def force(self, key):
        while key not in self.issued:
            assert self.q[0][3] is None or self.q[0][3](), ('stream blocked', self.q[0][2], key)
            self._issue()
    def burst(self, n):
        for _ in range(n):
            if self.q and (self.q[0][3] is None or self.q[0][3]()): self._issue()
    def wait(self, key):
        self.force(key); self.vq.wait(self.a, key)

class MStream:
    def __init__(self, a, vq, pace, nq):
        self.a = a; self.vq = vq; self.pace = pace; self.qs = [[] for _ in range(nq)]; self.last = -10**9; self.issued = set(); self.loc = {}; self.look = 24; self.pace2 = 80
    def add(self, qi, need, pre, ins, key, ready=None):
        self.qs[qi].append((need, pre, ins, key, ready)); self.loc[key] = qi
    def _issue(self, qi):
        need, pre, ins, key, ready = self.qs[qi].pop(0)
        for p in pre: self.a.e(p)
        self.a.e(ins); self.vq.issue(key); self.issued.add(key)
        self.last = self.a.clock
    def _best(self):
        c = [(q[0][0], i) for i, q in enumerate(self.qs) if q and (q[0][4] is None or q[0][4]())]
        return min(c)[1] if c else None
    def tick(self):
        if self.a.clock - self.last < self.pace: return False
        if self.vq.n - self.vq.done >= self.look and self.a.clock - self.last < self.pace2: return False
        b = self._best()
        if b is None: return False
        self._issue(b); return True
    def burst(self, n):
        for _ in range(n):
            b = self._best()
            if b is None: return
            self._issue(b)
    def wait(self, key):
        late = 0
        while key not in self.issued:
            q = self.qs[self.loc[key]]
            assert q[0][4] is None or q[0][4](), ('stream blocked', q[0][3], key)
            self._issue(self.loc[key]); late += 1
        if late: print('  WARNING: late issue', key, late)
        self.slack = getattr(self, 'slack', []) + [(key, self.vq.n - self.vq.where[key])]
        self.vq.wait(self.a, key)
    def empty(self): return not any(self.qs)
```

```python
from common import *
M4 = 'v_mfma_f32_4x4x4_16b_bf16'

def win_regs(a, vS, vRd, vLane, slabbytes, s_first, tmp):
    t0, t1, t2 = tmp, tmp + 1, tmp + 2
    a.e('v_lshrrev_b32 v%d, 5, v%d' % (t0, vLane))
    a.e('v_and_b32 v%d, 31, v%d' % (t1, vLane))
    a.e('v_xor_b32 v%d, v%d, v%d' % (t1, t1, t0))
    a.e('v_lshlrev_b32 v%d, 4, v%d' % (t1, t1))
    a.e('v_mul_u32_u24 v%d, %d, v%d' % (t2, slabbytes, t0))
    a.e('v_add_u32 v%d, v%d, v%d' % (vS, t1, t2))
    a.e('v_xor_b32 v%d, 32, v%d' % (vS + 1, vS))
    a.e('v_add_u32 v%d, %d, v%d' % (vS + 1, 2 * slabbytes, vS + 1))
    a.e('v_add_u32 v%d, %d, v%d' % (vS + 2, 4 * slabbytes, vS))
    a.e('v_cmp_eq_u32 vcc, 0, v%d' % t0)
    a.e('v_mov_b32 v%d, s%d' % (t1, s_first))
    a.e('v_cndmask_b32 v%d, 0, v%d, vcc' % (t1, t1))
    a.e('v_or_b32 v%d, v%d, v%d' % (vS, vS, t1))
    a.e('v_and_b32 v%d, 3, v%d' % (t0, vLane))
    a.e('v_lshrrev_b32 v%d, 2, v%d' % (t1, vLane))
    a.e('v_lshlrev_b32 v%d, 1, v%d' % (t1, t1))
    for mp in range(3):
        r = vRd + 2 * mp
        a.e('v_add_u32 v%d, %d, v%d' % (t2, mp, t0))
        a.e('v_and_b32 v%d, 3, v%d' % (r, t2))
        a.e('v_xor_b32 v%d, v%d, v%d' % (r, r, t1))
        a.e('v_lshlrev_b32 v%d, 4, v%d' % (r, r))
        a.e('v_lshl_add_u32 v%d, v%d, 9, v%d' % (r, t2, r))
        a.e('v_xor_b32 v%d, 16, v%d' % (r + 1, r))

def img_write_reg(a, vW, vLane, tmp):
    t0, t1 = tmp, tmp + 1
    a.e('v_bfe_u32 v%d, v%d, 3, 1' % (t0, vLane))
    a.e('v_bfe_u32 v%d, v%d, 5, 1' % (t1, vLane))
    a.e('v_lshl_add_u32 v%d, v%d, 1, v%d' % (t0, t1, t0))
    a.e('v_and_b32 v%d, 3, v%d' % (t1, vLane))
    a.e('v_xor_b32 v%d, v%d, v%d' % (t0, t0, t1))
    a.e('v_lshrrev_b32 v%d, 2, v%d' % (t1, vLane))
    a.e('v_lshlrev_b32 v%d, 7, v%d' % (vW, t1))
    a.e('v_lshl_add_u32 v%d, v%d, 5, v%d' % (vW, t0, vW))

def img_read_regs(a, vR, vLane, tmp, nform=False):
    t0, t1, t2 = tmp, tmp + 1, tmp + 2
    a.e('v_bfe_u32 v%d, v%d, 3, 1' % (t0, vLane))
    a.e('v_bfe_u32 v%d, v%d, 4, 1' % (t1, vLane))
    a.e('v_lshl_add_u32 v%d, v%d, 1, v%d' % (t0, t1, t0))
    a.e('v_lshrrev_b32 v%d, 4, v%d' % (t1, vLane))
    a.e('v_lshlrev_b32 v%d, 10, v%d' % (t2, t1))
    a.e('v_bfe_u32 v%d, v%d, 2, 2' % (t1, vLane))
    a.e('v_lshl_add_u32 v%d, v%d, 7, v%d' % (t2, t1, t2))
    if not nform:
        a.e('v_and_b32 v%d, 3, v%d' % (t1, vLane))
        a.e('v_lshl_add_u32 v%d, v%d, 3, v%d' % (t2, t1, t2))
        for ts in range(4):
            a.e('v_xor_b32 v%d, %d, v%d' % (t1, ts, t0))
            a.e('v_lshl_add_u32 v%d, v%d, 5, v%d' % (vR + ts, t1, t2))
    else:
        a.e('v_and_b32 v%d, 1, v%d' % (t1, vLane))
        a.e('v_lshl_add_u32 v%d, v%d, 4, v%d' % (t2, t1, t2))
        a.e('v_bfe_u32 v%d, v%d, 1, 1' % (t1, vLane))
        a.e('v_xor_b32 v%d, v%d, v%d' % (t0, t0, t1))
        for blk in range(2):
            a.e('v_xor_b32 v%d, %d, v%d' % (t1, 2 * blk, t0))
            a.e('v_lshl_add_u32 v%d, v%d, 5, v%d' % (vR + 2 * blk, t1, t2))
            a.e('v_add_u32 v%d, 8, v%d' % (vR + 2 * blk + 1, vR + 2 * blk))
```

```python
import math
from common import *
from prep import chan_combine
from attn16 import stamp_begin, stamp_mid, stamp_end

def gen_in(a, name='in_kernel', cfg=None):
    cfg = cfg or {}
    STAMP = cfg.get('STAMP', False)
    RW = 56; PW = cfg.get('IN_PW', 52); NW = 192; TB = 4 * RW
    QA = 128
    vLane, vLane16, vK, vRow, vI, vQ4, vX, vSw, vSr, TMP = 192, 193, 194, 195, 196, 197, 198, 199, 200, 202
    vN = 252
    sWave, sT, sCG, sW, sA, sB, sC = 3, 6, 7, 12, 13, 14, 15
    STL = 65536
    ws = 's[8:11]'
    def acc(t, ts): return (t * 4 + ts) * 4

    kernel_begin(a, name)
    a.e('s_and_b32 s20, s2, 7')
    a.e('s_lshr_b32 s21, s2, 4')
    a.e('s_lshl_b32 s%d, s20, 4' % sT)
    a.e('s_add_u32 s%d, s%d, s21' % (sT, sT))
    a.e('s_cmp_ge_u32 s2, 256')
    a.e('s_cbranch_scc1 %s_end' % name)
    a.e('s_cmp_ge_u32 s%d, 125' % sT)
    a.e('s_cbranch_scc1 %s_end' % name)
    a.e('s_load_dwordx2 s[4:5], s[0:1], 80')
    a.e('s_load_dwordx2 s[16:17], s[0:1], 0')
    if STAMP: stamp_begin(a)
    if cfg.get('CPF', 1): code_prefetch(a, name, 250, 251, 1)
    a.e('s_bfe_u32 s%d, s2, 0x10003' % sCG)
    a.e('v_lshrrev_b32 v1, 6, v0')
    a.e('v_and_b32 v%d, 63, v0' % vLane)
    a.e('v_readfirstlane_b32 s%d, v1' % sWave)
    a.e('v_lshlrev_b32 v%d, 4, v%d' % (vLane16, vLane))
    a.e('v_lshrrev_b32 v%d, 4, v%d' % (vQ4, vLane))
    a.e('v_and_b32 v%d, 15, v%d' % (vI, vLane))
    a.e('v_lshrrev_b32 v6, 5, v%d' % vLane)
    a.e('v_mul_u32_u24 v7, 12, v6')
    a.e('v_and_b32 v8, 31, v%d' % vLane)
    a.e('v_xor_b32 v7, v7, v8')
    a.e('v_lshlrev_b32 v%d, 10, v7' % vX)
    a.e('v_lshl_add_u32 v%d, v6, 4, v%d' % (vX, vX))
    a.e('s_lshl_b32 s%d, s%d, 9' % (sB, sWave))
    a.e('s_add_u32 s%d, s%d, %d' % (sB, sB, STL))
    a.e('v_lshlrev_b32 v%d, 3, v7' % vSr)
    a.e('v_lshl_add_u32 v%d, v6, 8, v%d' % (vSw, vSr))
    a.e('v_add_u32 v%d, s%d, v%d' % (vSw, sB, vSw))
    a.e('v_add_u32 v%d, %d, v%d' % (vSr, STL, vSr))
    a.e('s_lshl_b32 s%d, s%d, 16' % (sA, sT))
    a.e('s_lshl_b32 s%d, s%d, 8' % (sB, sWave))
    a.e('s_add_u32 s%d, s%d, s%d' % (sB, sA, sB))
    a.e('s_add_u32 s%d, s%d, 0x8000' % (sC, sB))
    a.e('s_lshl_b32 s%d, s%d, 2' % (sW, sCG))
    a.e('s_add_u32 s%d, s%d, s%d' % (sW, sW, sWave))
    a.e('s_mov_b32 s46, s%d' % sW)
    a.e('s_mul_i32 s%d, s%d, %d' % (sW, sW, NW * 1024))
    a.e('s_add_u32 s%d, s%d, %d' % (sW, sW, W1_OFF))
    a.e('s_waitcnt lgkmcnt(0)')
    make_srd(a, 8, 4, WS_BYTES)
    make_srd(a, 20, 16, 8192000)
    vq = VmQ()
    RAWX = 128
    for b2 in range(2):
        for j in range(8):
            a.e('buffer_load_dwordx4 %s, v%d, s[20:23], s%d offen offset:%d' % (vr(RAWX + 32 * b2 + 4 * j, 4), vX, sB if b2 == 0 else sC, 32 * j))
            vq.issue(('x', b2, j))
    st = Stream(a, vq, cfg.get('IN_PACE', 72))
    state = dict(cons=-1)
    for n in range(NW):
        pre = ['s_add_u32 s%d, s%d, 0x1000' % (sW, sW)] if (n and n % 4 == 0) else []
        st.add(pre, 'buffer_load_dwordx4 %s, v%d, %s, s%d offen offset:%d' % (ar(4 * (n % RW), 4), vLane16, ws, sW, (n % 4) * 1024), ('w', n),
               (lambda nn: (lambda: nn < RW or state['cons'] >= nn - RW))(n))
    st.burst(cfg.get('IN_W0', 8))
    a.e('s_mov_b32 s90, 0xffff0000')
    LNT = cfg.get('IN_LNTICK', 1)
    a.e('v_and_b32 v%d, 1, v%d' % (vK, vQ4))
    a.e('v_mul_u32_u24 v%d, 12, v%d' % (vK, vK))
    a.e('v_xor_b32 v%d, v%d, v%d' % (vK, vK, vI))
    a.e('v_lshlrev_b32 v%d, 4, v%d' % (vK, vK))
    a.e('v_lshl_add_u32 v%d, v%d, 9, v%d' % (vK, vQ4, vK))
    a.e('v_lshrrev_b32 v%d, 2, v%d' % (vN, vI))
    a.e('v_lshlrev_b32 v%d, 3, v%d' % (vN, vN))
    a.e('v_and_b32 v%d, 3, v%d' % (vN + 1, vI))
    a.e('v_add_u32 v%d, v%d, v%d' % (vN, vN, vN + 1))
    a.e('v_lshlrev_b32 v%d, 5, v%d' % (vRow, vN))
    a.e('v_and_b32 v%d, 1, v%d' % (vN + 1, vQ4))
    a.e('v_lshl_add_u32 v%d, v%d, 4, v%d' % (vRow, vN + 1, vRow))
    a.e('v_mul_u32_u24 v%d, 12, v%d' % (vN + 1, vN + 1))
    a.e('v_xor_b32 v%d, v%d, v%d' % (vN, vN, vN + 1))
    a.e('v_lshlrev_b32 v%d, 4, v%d' % (vN, vN))
    a.e('v_lshl_add_u32 v%d, v%d, 9, v%d' % (vN, vQ4, vN))
    a.e('v_lshrrev_b32 v%d, 1, v%d' % (vN + 1, vQ4))
    a.e('v_lshl_add_u32 v%d, v%d, 14, v%d' % (vRow, vN + 1, vRow))
    a.e('v_xor_b32 v%d, 64, v%d' % (vN + 1, vN))
    T = TMP
    a.dense = True
    for b2 in range(2):
        X = 64 * b2
        for j in range(8):
            vq.wait(a, ('x', b2, j))
            for d in range(4):
                a.e('v_lshlrev_b32 v%d, 16, v%d' % (X + 8 * j + 2 * d, RAWX + 32 * b2 + 4 * j + d))
                a.e('v_and_b32 v%d, s90, v%d' % (X + 8 * j + 2 * d + 1, RAWX + 32 * b2 + 4 * j + d))
            if LNT: st.tick()
        p0, p1, nm, d0, d1, q0, q1 = [vr(T + 2 * i, 2) for i in range(7)]
        a.e('v_pk_add_f32 %s, %s, %s' % (p0, vr(X, 2), vr(X + 2, 2)))
        a.e('v_pk_add_f32 %s, %s, %s' % (p1, vr(X + 4, 2), vr(X + 6, 2)))
        for p in range(4, 32, 2):
            a.e('v_pk_add_f32 %s, %s, %s' % (p0, p0, vr(X + 2 * p, 2)))
            a.e('v_pk_add_f32 %s, %s, %s' % (p1, p1, vr(X + 2 * p + 2, 2)))
        a.e('v_pk_add_f32 %s, %s, %s' % (p0, p0, p1))
        a.e('v_add_f32 v%d, v%d, v%d' % (T, T, T + 1))
        a.e('v_mul_f32 v%d, %s, v%d' % (T, fhex(1.0 / 64), T))
        a.e('v_sub_f32 v%d, 0, v%d' % (T + 4, T))
        a.e('v_sub_f32 v%d, 0, v%d' % (T + 5, T))
        for p in range(0, 32, 2):
            a.e('v_pk_add_f32 %s, %s, %s' % (d0, vr(X + 2 * p, 2), nm))
            a.e('v_pk_add_f32 %s, %s, %s' % (d1, vr(X + 2 * p + 2, 2), nm))
            if p == 0:
                a.e('v_pk_mul_f32 %s, %s, %s' % (q0, d0, d0)); a.e('v_pk_mul_f32 %s, %s, %s' % (q1, d1, d1))
            else:
                a.e('v_pk_fma_f32 %s, %s, %s, %s' % (q0, d0, d0, q0)); a.e('v_pk_fma_f32 %s, %s, %s, %s' % (q1, d1, d1, q1))
            if LNT: st.tick()
        a.e('v_pk_add_f32 %s, %s, %s' % (q0, q0, q1))
        a.e('v_add_f32 v%d, v%d, v%d' % (T + 1, T + 10, T + 11))
        a.e('ds_write_b64 v%d, %s offset:%d' % (vSw, vr(T, 2), 2048 * b2))
    a.e('s_waitcnt lgkmcnt(0)')
    a.e('s_barrier')
    if STAMP: stamp_mid(a, 4)
    SP = T + 16
    for b2 in range(2):
        for p in range(8):
            a.e('ds_read_b64 %s, v%d offset:%d' % (vr(SP + 16 * b2 + 2 * p, 2), vSr, 2048 * b2 + 256 * p))
    a.e('s_lshl_b32 s%d, s%d, 13' % (sB, sWave))
    a.e('v_add_u32 v%d, s%d, v%d' % (vX, sB, vLane16))
    a.e('s_add_u32 s%d, s%d, s%d' % (sB, sB, sA))
    a.e('s_lshl_b32 s%d, s%d, 15' % (sC, sCG))
    a.e('s_add_u32 s%d, s%d, s%d' % (sB, sB, sC))
    if XF_OFF: a.e('s_add_u32 s%d, s%d, %d' % (sB, sB, XF_OFF))
    a.e('s_add_u32 s%d, s%d, 0x1000' % (sC, sB))
    for b2 in range(2):
        a.e('s_waitcnt lgkmcnt(%d)' % (8 if b2 == 0 else 8))
        X = 64 * b2
        chan_combine(a, SP + 16 * b2, 8, 64, T, T + 1, T + 2)
        for j in range(8):
            for d in range(4):
                r = X + 8 * j + 2 * d
                a.e('v_pk_fma_f32 %s, %s, %s, %s op_sel:[0,0,1] op_sel_hi:[1,0,1]' % (vr(r, 2), vr(r, 2), vr(T, 2), vr(T, 2)))
            for d in range(4):
                r = X + 8 * j + 2 * d
                a.e('v_cvt_pk_bf16_f32 v%d, v%d, v%d' % (RAWX + 32 * b2 + 4 * j + d, r, r + 1))
            a.e('ds_write_b128 v%d, %s offset:%d' % (vX, vr(RAWX + 32 * b2 + 4 * j, 4), 32768 * b2 + 1024 * j))
            if LNT: st.tick()
    a.dense = False
    a.e('s_mov_b32 s48, s%d' % sB); a.e('s_mov_b32 s49, s%d' % sC)
    a.e('s_waitcnt lgkmcnt(0)')
    a.e('s_barrier')
    if STAMP: stamp_mid(a, 76)

    def gemm(t0, nt, n0, nform=False):
        lq = LgQ()
        def tread(ks, ts):
            if nform: a.e('ds_read_b128 %s, v%d offset:%d' % (ar(TB + ((ks % 2) * 4 + ts) * 4, 4), vN + (ts & 1), (ts >> 1) * 32768 + ks * 2048))
            else: a.e('ds_read_b128 %s, v%d offset:%d' % (ar(TB + ((ks % 2) * 4 + ts) * 4, 4), vK, (ts >> 1) * 32768 + ks * 2048 + (ts & 1) * 256))
            lq.issue((ks, ts))
        for ts in range(4): tread(0, ts)
        for ks in range(16):
            lq.wait(a, (ks, 3))
            cnt = 0
            for t in range(nt):
                n = n0 + ks * nt + t
                if t % 4 == 0: st.wait(('w', n + 3))
                for ts in (range(4) if t % 2 == 0 else range(3, -1, -1)):
                    ops = [ar(4 * (n % RW), 4), ar(TB + ((ks % 2) * 4 + ts) * 4, 4)]
                    if nform: ops.reverse()
                    a.e('%s %s, %s, %s, %s' % (MF, vr(acc(t0 + t, ts), 4), ops[0], ops[1], '0' if ks == 0 else vr(acc(t0 + t, ts), 4)))
                    cnt += 1
                    if cnt in (2, 5, 7, 10) and ks + 1 < 16: tread(ks + 1, (2, 5, 7, 10).index(cnt))
                    if cnt % 4 == 3: st.burst(1)
                state['cons'] = n
    gemm(0, 8, 0, True)
    st.burst(cfg.get('IN_B2', 0))
    a.e('s_cmp_eq_u32 s%d, 0' % sCG)
    a.e('s_cbranch_scc0 %s_xs1' % name)
    for b2 in range(2):
        if b2 == 1: a.label('%s_xs1' % name)
        for j in range(8):
            a.e('buffer_store_dwordx4 %s, v%d, %s, s%d offen offset:%d' % (vr(RAWX + 32 * b2 + 4 * j, 4), vLane16, ws, 48 if j < 4 else 49, (j % 4) * 1024))
            if b2 == 0: vq.issue()
        if b2 == 0: a.e('s_branch %s_xs2' % name)
    a.label('%s_xs2' % name)
    a.dense = True
    if STAMP: stamp_mid(a, 77)
    c1 = -2.0 * math.log2(math.e) * math.sqrt(2.0 / math.pi); c2 = c1 * 0.044715
    C1, C2, ONE, G = T, T + 2, T + 4, T + 6
    for r, v in ((C1, c1), (C2, c2), (ONE, 1.0)):
        a.e('v_mov_b32 v%d, %s' % (r, fhex(v))); a.e('v_mov_b32 v%d, %s' % (r + 1, fhex(v)))
    def gelu8(prs):
        g = [vr(G + 2 * j, 2) for j in range(4)]
        x = [vr(r, 2) for r in prs]
        for j in range(4): a.e('v_pk_mul_f32 %s, %s, %s' % (g[j], x[j], x[j]))
        for j in range(4): a.e('v_pk_fma_f32 %s, %s, %s, %s' % (g[j], g[j], vr(C2, 2), vr(C1, 2)))
        for j in range(4): a.e('v_pk_mul_f32 %s, %s, %s' % (g[j], g[j], x[j]))
        for j in range(8): a.e('v_exp_f32 v%d, v%d' % (G + j, G + j))
        for j in range(4): a.e('v_pk_add_f32 %s, %s, %s' % (g[j], g[j], vr(ONE, 2)))
        for j in range(8): a.e('v_rcp_f32 v%d, v%d' % (G + j, G + j))
        for j in range(4): a.e('v_pk_mul_f32 %s, %s, %s' % (x[j], x[j], g[j]))
    def pairs(dd, ts): return [acc(2 * dd + e, ts) + 2 * j for e in range(2) for j in range(2)]
    PK = T + 16
    pk = [0]
    def pack(prs):
        o = PK + 4 * (pk[0] % 4); pk[0] += 1
        for j, r in enumerate(prs): a.e('v_cvt_pk_bf16_f32 v%d, v%d, v%d' % (o + j, r, r + 1))
        return o
    def npairs(t, blk): return [acc(t, 2 * blk) + 2 * j for j in range(4)]
    def nstore(o, t, sreg):
        a.e('buffer_store_dwordx4 %s, v%d, %s, s%d offen offset:%d' % (vr(o, 4), vRow, ws, sreg, (t >> 1) * 1024 + (t & 1) * 128))
    a.e('s_lshl_b32 s%d, s%d, 12' % (sB, sWave))
    a.e('s_add_u32 s47, s%d, s%d' % (sA, sB))
    a.e('s_cmp_eq_u32 s%d, 0' % sCG)
    a.e('s_cbranch_scc1 %s_g' % name)
    hist0 = list(a.hist)
    a.e('s_add_u32 s%d, s47, %d' % (sB, U_OFF))
    a.e('s_add_u32 s%d, s47, %d' % (sC, U_OFF + 32768))
    for t in range(8):
        for blk in range(2):
            gelu8(npairs(t, blk))
            o = pack(npairs(t, blk))
            nstore(o, t, sB if blk == 0 else sC)
    a.e('s_branch %s_q' % name)
    a.label('%s_g' % name); a.hist = hist0
    SS, SQ2 = 128, 144
    a.e('s_nop 1')
    for t in range(8):
        for blk in range(2):
            pr = npairs(t, blk)
            gelu8(pr)
            for j, r in enumerate(pr):
                sj, qj = vr(SS + 8 * blk + 2 * j, 2), vr(SQ2 + 8 * blk + 2 * j, 2)
                if t == 0:
                    a.e('v_pk_mul_f32 %s, %s, %s' % (qj, vr(r, 2), vr(r, 2)))
                else:
                    a.e('v_pk_fma_f32 %s, %s, %s, %s' % (qj, vr(r, 2), vr(r, 2), qj))
                    a.e('v_pk_add_f32 %s, %s, %s' % (sj, vr(r, 2), vr(npairs(0, blk)[j], 2) if t == 1 else sj))
    for sh in (8, 4, 2, 1):
        for r in range(SS, SS + 32):
            a.e('v_add_f32_dpp v%d, v%d, v%d row_ror:%d row_mask:0xf bank_mask:0xf' % (r, r, r, sh))
    a.e('s_lshl_b32 s%d, s%d, 9' % (sB, sWave))
    a.e('s_add_u32 s%d, s%d, %d' % (sB, sB, STL))
    a.e('v_lshlrev_b32 v%d, 5, v%d' % (vSw, vQ4))
    a.e('v_add_u32 v%d, s%d, v%d' % (vSw, sB, vSw))
    a.e('v_lshlrev_b32 v%d, 2, v%d' % (vSr, vLane))
    a.e('v_add_u32 v%d, %d, v%d' % (vSr, STL, vSr))
    a.e('s_mov_b32 exec_lo, 0x00010001'); a.e('s_mov_b32 exec_hi, 0x00010001')
    for x in range(8):
        a.e('ds_write_b128 v%d, %s offset:%d' % (vSw, vr(SS + 4 * x, 4), (x >> 2) * 256 + ((x >> 1) & 1) * 128 + (x & 1) * 16))
    a.e('s_mov_b64 exec, -1')
    a.e('s_waitcnt lgkmcnt(0)')
    a.e('s_barrier')
    R4 = 160
    for w in range(4):
        a.e('ds_read2st64_b32 %s, v%d offset0:%d offset1:%d' % (vr(R4 + 2 * w, 2), vSr, 2 * w, 2 * w + 1))
    a.e('v_lshlrev_b32 v%d, 2, v%d' % (vSr, vLane))
    a.e('v_add_u32 v%d, s%d, v%d' % (vSr, sB, vSr))
    a.e('s_waitcnt lgkmcnt(0)')
    a.e('v_pk_add_f32 %s, %s, %s' % (vr(R4, 2), vr(R4, 2), vr(R4 + 2, 2)))
    a.e('v_pk_add_f32 %s, %s, %s' % (vr(R4 + 4, 2), vr(R4 + 4, 2), vr(R4 + 6, 2)))
    a.e('v_pk_add_f32 %s, %s, %s' % (vr(R4, 2), vr(R4, 2), vr(R4 + 4, 2)))
    a.e('v_mul_f32 v%d, %s, v%d' % (R4, fhex(1.0 / 512), R4))
    a.e('v_mul_f32 v%d, %s, v%d' % (R4 + 1, fhex(1.0 / 512), R4 + 1))
    a.e('v_fma_f32 v%d, -v%d, v%d, v%d' % (R4 + 1, R4, R4, R4 + 1))
    a.e('v_max_f32 v%d, 0, v%d' % (R4 + 1, R4 + 1))
    a.e('v_add_f32 v%d, %s, v%d' % (R4 + 1, fhex(1e-5), R4 + 1))
    a.e('v_rsq_f32 v%d, v%d' % (R4 + 1, R4 + 1))
    a.e('v_mul_f32 v%d, -v%d, v%d' % (R4, R4, R4 + 1))
    a.e('ds_write2st64_b32 v%d, v%d, v%d offset0:8 offset1:9' % (vSr, R4 + 1, R4))
    a.e('s_waitcnt lgkmcnt(0)')
    for x in range(8):
        a.e('ds_read_b128 %s, v%d offset:%d' % (vr(SS + 4 * x, 4), vSw, 2048 + (x >> 2) * 256 + ((x >> 1) & 1) * 128 + (x & 1) * 16))
    a.e('s_add_u32 s%d, s47, %d' % (sB, G_OFF))
    a.e('s_add_u32 s%d, s47, %d' % (sC, G_OFF + 32768))
    a.e('s_waitcnt lgkmcnt(0)')
    for t in range(8):
        for blk in range(2):
            for j, r in enumerate(npairs(t, blk)):
                a.e('v_pk_fma_f32 %s, %s, %s, %s' % (vr(r, 2), vr(r, 2), vr(SS + 8 * blk + 2 * j, 2), vr(SQ2 + 8 * blk + 2 * j, 2)))
            o = pack(npairs(t, blk))
            nstore(o, t, sB if blk == 0 else sC)
            vq.issue()
    a.dense = False
    a.label('%s_q' % name, reset=True)
    if STAMP: stamp_mid(a, 2)
    a.e('s_nop 1')
    gemm(8, 4, 128)
    assert not st.q
    if STAMP: stamp_mid(a, 3)
    a.e('s_lshl_b32 s%d, s46, 12' % sB)
    a.e('s_add_u32 s%d, s%d, s%d' % (sB, sA, sB))
    a.e('s_add_u32 s%d, s%d, %d' % (sB, sB, QF_OFF))
    a.e('s_add_u32 s%d, s%d, 0x8000' % (sC, sB))
    for ts in range(4):
        for dd in range(2):
            o = pack(pairs(4 + dd, ts))
            a.e('buffer_store_dwordx4 %s, v%d, %s, s%d offen offset:%d' % (vr(o, 4), vLane16, ws, sB if ts < 2 else sC, dd * 2048 + (ts & 1) * 1024))
    if STAMP: stamp_end(a, sWave)
    a.label('%s_end' % name)
    a.e('s_endpgm')
    return dict(name=name, vgpr=512, sgpr=96, accum=256, grid=256, block=256, lds=65536 + 4096)
```

```python
from common import *
from convlib import tok_read_regs
from conv4 import *
from attn16 import stamp_begin, stamp_mid, stamp_end

def gen_mid(a, name='mid_kernel', cfg=None):
    cfg = cfg or {}
    STAMP = cfg.get('STAMP', False)
    NW = 128; TB = 224
    vLane, vLane16, TR0, TR1, vRow, vI, vQ4, TMP, NR = 240, 241, 242, 243, 244, 245, 246, 247, 250
    WIN = 65536
    sWave, sK, sW, sA, sB, sC, sU, sWin, sTy, sBt, sTok, sP = 3, 6, 7, 32, 33, 34, 35, 36, 37, 38, 39, 40
    ws = 's[8:11]'
    def acc(t, ts): return (t * 4 + ts) * 4

    kernel_begin(a, name)
    a.e('s_and_b32 s%d, s2, 3' % sK)
    a.e('s_lshl_b32 s%d, s%d, 4' % (sK, sK))
    a.e('s_lshr_b32 s%d, s2, 4' % sA)
    a.e('s_add_u32 s%d, s%d, s%d' % (sK, sK, sA))
    a.e('s_cmp_ge_u32 s2, 256')
    a.e('s_cbranch_scc1 %s_end' % name)
    a.e('s_cmp_ge_u32 s%d, 63' % sK)
    a.e('s_cbranch_scc1 %s_end' % name)
    a.e('s_load_dwordx2 s[4:5], s[0:1], 80')
    if STAMP: stamp_begin(a)
    if cfg.get('CPF', 1): code_prefetch(a, name, 30, 31, 1)
    a.e('s_bfe_u32 s%d, s2, 0x10003' % sTy)
    a.e('s_bfe_u32 s%d, s2, 0x10002' % sBt)
    a.e('s_mov_b32 s90, 0xffff0000')
    a.e('v_lshrrev_b32 v1, 6, v0')
    a.e('v_and_b32 v%d, 63, v0' % vLane)
    a.e('v_readfirstlane_b32 s%d, v1' % sWave)
    a.e('v_lshlrev_b32 v%d, 4, v%d' % (vLane16, vLane))
    a.e('v_lshrrev_b32 v%d, 4, v%d' % (vQ4, vLane))
    a.e('v_and_b32 v%d, 15, v%d' % (vI, vLane))
    a.e('s_mul_i32 s%d, s%d, 4000' % (sTok, sBt))
    a.e('s_lshl_b32 s%d, s%d, 6' % (sA, sK))
    a.e('s_add_u32 s%d, s%d, s%d' % (sTok, sTok, sA))
    a.e('s_lshl_b32 s%d, s%d, 2' % (sW, sTy))
    a.e('s_add_u32 s%d, s%d, s%d' % (sW, sW, sWave))
    a.e('s_lshl_b32 s46, s%d, 12' % sW)
    a.e('s_lshl_b32 s%d, s%d, 17' % (sW, sW))
    a.e('s_add_u32 s%d, s%d, %d' % (sW, sW, W2_OFF))
    a.e('s_mul_i32 s%d, s%d, 24576' % (sWin, sWave))
    a.e('s_add_u32 s%d, s%d, %d' % (sWin, sWin, WIN))
    a.e('s_waitcnt lgkmcnt(0)')
    make_srd(a, 8, 4, WS_BYTES)

    def common_setup(tr):
        a.e('s_mul_i32 s44, s%d, 8192000' % sBt)
        a.e('s_add_u32 s44, s44, %d' % M_OFF)
        a.e('s_add_u32 s20, s4, s44')
        a.e('s_addc_u32 s21, s5, 0')
        a.e('s_and_b32 s21, s21, 0xffff')
        a.e('s_mov_b32 s22, 8192000')
        a.e('s_mov_b32 s23, 0x00020000')
        a.e('s_lshl_b32 s44, s%d, 17' % sK)
        a.e('s_add_u32 s46, s46, s44')
        a.e('v_lshrrev_b32 v%d, 2, v%d' % (TMP, vI))
        a.e('v_lshlrev_b32 v%d, 3, v%d' % (TMP, TMP))
        a.e('v_and_b32 v%d, 3, v%d' % (TMP + 1, vI))
        a.e('v_add_u32 v%d, v%d, v%d' % (TMP, TMP, TMP + 1))
        a.e('v_lshlrev_b32 v%d, 5, v%d' % (vRow, TMP))
        a.e('v_and_b32 v%d, 1, v%d' % (TMP + 1, vQ4))
        a.e('v_lshl_add_u32 v%d, v%d, 4, v%d' % (vRow, TMP + 1, vRow))
        a.e('v_lshrrev_b32 v%d, 1, v%d' % (TMP + 1, vQ4))
        a.e('v_lshl_add_u32 v%d, v%d, 15, v%d' % (vRow, TMP + 1, vRow))
        if tr:
            img_read_regs(a, NR, vLane, TMP, nform=True)
        else:
            a.e('v_lshrrev_b32 v%d, 4, v%d' % (TMP + 1, TMP))
            a.e('v_and_b32 v%d, 15, v%d' % (TMP, TMP))
            a.e('v_xor_b32 v%d, v%d, v%d' % (TMP, TMP, vQ4))
            a.e('v_lshl_add_u32 v%d, v%d, 4, v%d' % (TMP, vQ4, TMP))
            a.e('v_lshlrev_b32 v%d, 4, v%d' % (TMP, TMP))
            a.e('v_lshl_add_u32 v%d, v%d, 10, v%d' % (NR, TMP + 1, TMP))
            a.e('v_xor_b32 v%d, 64, v%d' % (NR + 1, NR))

    def add_w(st, state, RW, tw):
        for n in range(NW):
            pre = ['s_add_u32 s%d, s%d, 0x1000' % (sW, sW)] if (n and n % 4 == 0) else []
            st.add(2, tw(n), pre, 'buffer_load_dwordx4 %s, v%d, %s, s%d offen offset:%d' % (ar(4 * (n % RW), 4), vLane16, ws, sW, (n % 4) * 1024), ('w', n),
                   (lambda n=n: state['wcons'] >= n - RW))

    def skeleton(tr, st, lq, state, RW, produce, pre_produce):
        fill = []
        def tok_reads(ks):
            out = []
            for f in range(4):
                b = TB + ((ks % 2) * 4 + f) * 4
                if tr:
                    def g0(b=b, f=f): a.e('ds_read_b64_tr_b16 %s, v%d offset:%d' % (ar(b, 2), NR + f, ks * 4096)); lq.issue()
                    def g1(b=b, f=f): a.e('ds_read_b64_tr_b16 %s, v%d offset:%d' % (ar(b + 2, 2), NR + f, ks * 4096 + 512)); lq.issue(('t', ks, f))
                    out += [g0, g1]
                else:
                    def g(b=b, f=f): a.e('ds_read_b128 %s, v%d offset:%d' % (ar(b, 4), NR + ((ks ^ f) & 1), (ks * 4 + (f & 2)) * 1024)); lq.issue(('t', ks, f))
                    out.append(g)
            return out
        def gemm(r, head, tail):
            fill.extend(head)
            for k4 in range(4):
                ks = 4 * r + k4
                lq.wait(a, ('t', ks, 3))
                if k4 < 3: fill.extend(tok_reads(ks + 1))
                else: fill.extend(tail)
                for t in range(8):
                    n = ks * 8 + t
                    if t % 4 == 0: st.wait(('w', n + 3))
                    for ts in (range(4) if t % 2 == 0 else range(3, -1, -1)):
                        a.e('%s %s, %s, %s, %s' % (MF, vr(acc(t, ts), 4), ar(TB + ((ks % 2) * 4 + ts) * 4, 4), ar(4 * (n % RW), 4), '0' if ks == 0 else vr(acc(t, ts), 4)))
                        if fill: fill.pop(0)()
                        if not st.tick() and len(fill) > 16: fill.pop(0)()
                    state['wcons'] = n
                while fill: fill.pop(0)()
        def barrier():
            lq.wait_all(a); a.e('s_barrier')
        for f in pre_produce(0): f()
        left = produce(0, pre_produce(1))
        for f in left: f()
        barrier()
        if STAMP: stamp_mid(a, 0)
        for r in range(1, 4):
            left = produce(r, tok_reads(4 * (r - 1)))
            gemm(r - 1, left, pre_produce(r + 1) if r < 3 else [])
            barrier()
            if STAMP: stamp_mid(a, r)
        for f in tok_reads(12): f()
        gemm(3, [], [])
        assert st.empty()
        if STAMP: stamp_mid(a, 4)
        if cfg.get('V'): print(name, tr, st.slack)
        k = 0
        for blk in range(2):
            a.e('s_add_u32 s%d, s46, %d' % (sB, blk * 65536))
            for t in range(8):
                o = 128 + 4 * (k % 16); k += 1
                for e in range(2):
                    for j in range(2):
                        r_ = acc(t, 2 * blk + e) + 2 * j
                        a.e('v_cvt_pk_bf16_f32 v%d, v%d, v%d' % (o + 2 * e + j, r_, r_ + 1))
                a.e('buffer_store_dwordx4 %s, v%d, s[20:23], s%d offen offset:%d' % (vr(o, 4), vRow, sB, (t >> 1) * 1024 + (t & 1) * 128))
        if STAMP: stamp_end(a, sWave)

    a.e('s_cmp_eq_u32 s%d, 0' % sTy)
    a.e('s_cbranch_scc1 %s_glob' % name)

    RWL = 28; TP = 112; NTP = 3
    CD, DATA, PKO, UB, UT2 = 128, 160, 208, 0, 216
    UB = 220
    vS, vRd, vWr, vUo = 236, 16, 239, 254
    vq = VmQ(); lq = LgQ()
    st = MStream(a, vq, cfg.get('MID_PACE', 24), 4)
    st.look = cfg.get('MID_LOOK', 32); st.pace2 = cfg.get('MID_PACE2L', 64)
    state = dict(wcons=-1, gdone=-1, edone=-1, uok=False)
    return_later = None
    RD = [242, 243, 248, 249, 255, 219]
    a.e('s_cmp_eq_u32 s%d, 0' % sK)
    a.e('s_cselect_b32 s41, 0x40000000, 0')
    a.e('s_mul_i32 s%d, s%d, 4096000' % (sA, sBt))
    a.e('s_add_u32 s%d, s%d, %d' % (sA, sA, G_OFF - 16384))
    a.e('s_add_u32 s12, s4, s%d' % sA)
    a.e('s_addc_u32 s13, s5, 0')
    a.e('s_and_b32 s13, s13, 0xffff')
    a.e('s_mov_b32 s14, %d' % (4096000 + 16384))
    a.e('s_mov_b32 s15, 0x00020000')
    win_regs(a, vS, 16, vLane, 16384, 41, 8)
    a.e('s_lshl_b32 s%d, s%d, 16' % (sA, sK))
    a.e('s_lshl_b32 s%d, s%d, 10' % (sB, sWave))
    a.e('s_add_u32 s%d, s%d, s%d' % (sA, sA, sB))
    a.e('s_lshl_b32 s%d, s%d, 10' % (sU, sTok))
    a.e('s_add_u32 s%d, s%d, s%d' % (sU, sU, sB))
    a.e('s_add_u32 s%d, s%d, %d' % (sU, sU, U_OFF))
    a.e('s_mul_i32 s42, s%d, 9216' % sWave)
    a.e('s_add_u32 s42, s42, %d' % TPC_OFF)
    def tg(g): return g + 5 * max(0, (g >> 1) - 1)
    def tw(n):
        r = n // 32
        return ((4 + 7 * r) if r < 3 else 23) + 5.0 * (n % 32) / 32
    for g in range(8):
        off = (g >> 1) * 4096 + (g & 1) * 512
        for d in range(3):
            pre = ['s_add_u32 m0, s%d, %d' % (sWin, g * 3072 + d * 1024)]
            if d == 0: pre.append('s_add_u32 s%d, s%d, %d' % (sC, sA, off))
            st.add(0, tg(g) - cfg.get('MID_WINLEAD', 3), pre, 'buffer_load_dwordx4 v%d, s[12:15], s%d offen lds' % (vS + d, sC), ('win', g, d))
        for h in range(2):
            pre = ['s_add_u32 s45, s%d, %d' % (sU, off)] if h == 0 else []
            st.add(3, tg(g) - 2, pre, 'buffer_load_dwordx4 %s, v%d, %s, s45 offen offset:%d' % (vr(UB + 8 * (g % 2) + 4 * h, 4), vUo, ws, 16 * h), ('u', g, h),
                   (lambda g=g: state['uok'] and state['edone'] >= g - 2))
    for p in range(4):
        for q in range(9):
            pre = ['s_add_u32 s43, s42, %d' % (p * 4 * 9216 + q * 1024)] if q % 4 == 0 else []
            st.add(1, tg(2 * p + (q > 4)) - 1, pre, 'buffer_load_dwordx4 %s, v%d, %s, s43 offen offset:%d' % (ar(TP + 36 * (p % NTP) + 4 * q, 4), vLane16, ws, (q % 4) * 1024), ('tp', p, q),
                   (lambda p=p: state['gdone'] >= 2 * (p - NTP) + 1))
    add_w(st, state, RWL, tw)
    st.burst(11)
    a.e('v_and_b32 v8, 3, v%d' % vLane)
    a.e('v_lshlrev_b32 v%d, 14, v8' % vUo)
    a.e('v_lshrrev_b32 v8, 2, v%d' % vLane)
    a.e('v_lshl_add_u32 v%d, v8, 5, v%d' % (vUo, vUo))
    state['uok'] = True
    img_write_reg(a, vWr, vLane, 8)
    a.e('s_lshl_b32 s%d, s%d, 12' % (sB, sWave))
    a.e('v_add_u32 v%d, s%d, v%d' % (vWr, sB, vWr))
    common_setup(True)
    for m in range(6): a.e('v_add_u32 v%d, s%d, v%d' % (RD[m], sWin, 16 + m))
    st.burst(cfg.get('MID_B1', 16))
    def data_reads(g):
        out = [lambda: st.wait(('win', g, 2))]
        for m in range(6):
            def f(m=m):
                a.e('ds_read_b128 %s, v%d offset:%d' % (vr(DATA + 24 * (g % 2) + 4 * m, 4), RD[m], g * 3072)); lq.issue(('d', g, m))
            out.append(f)
        return out
    def conv_epi(g):
        out = [lambda: st.wait(('u', g, 1))]
        D = CD + 16 * (g % 2); o = PKO; U = UB + 8 * (g % 2)
        for d in range(8):
            t = UT2
            out.append(lambda d=d, t=t: a.e('v_lshlrev_b32 v%d, 16, v%d' % (t, U + d)))
            out.append(lambda d=d, t=t: a.e('v_and_b32 v%d, s90, v%d' % (t + 1, U + d)))
            out.append(lambda d=d, t=t: a.e('v_mul_f32 v%d, v%d, v%d' % (t, t, D + 2 * d)))
            out.append(lambda d=d, t=t: a.e('v_mul_f32 v%d, v%d, v%d' % (t + 1, t + 1, D + 2 * d + 1)))
            out.append(lambda d=d, t=t: a.e('v_cvt_pk_bf16_f32 v%d, v%d, v%d' % (o + d, t, t + 1)))
            if d % 4 == 3:
                def f(d=d):
                    a.e('ds_write_b128 v%d, %s offset:%d' % (vWr, vr(o + d - 3, 4), (g >> 1) * 16384 + (g & 1) * 2048 + (d // 4) * 16)); lq.issue()
                out.append(f)
        def done(): state['edone'] = g
        out.append(done)
        return out
    def loc_produce(r, tail):
        fill = []
        for g in (2 * r, 2 * r + 1):
            A0 = TP + 36 * (r % NTP) + 18 * (g % 2); D = CD + 16 * (g % 2); B = DATA + 24 * (g % 2)
            st.wait(('tp', r, 4 if g % 2 == 0 else 8))
            lq.wait(a, ('d', g, 5))
            k = 0
            for s_ in range(9):
                for q in range(4):
                    ac = vr(D + 4 * q, 4)
                    a.e('%s %s, %s, %s, %s' % (M4, ac, ar(A0 + 2 * s_, 2), vr(B + 2 * (q + s_), 2), '0' if s_ == 0 else ac))
                    k += 1
                    if k == 1 and g % 2 == 0: fill.extend(data_reads(g + 1))
                    if k == 1 and g % 2 == 1: fill.extend(tail)
                    if k == 4 and g % 2 == 1: fill.extend(conv_epi(g - 1))
                    if not st.tick():
                        if fill: fill.pop(0)()
            state['gdone'] = g
            if g % 2 == 0:
                while fill: fill.pop(0)()
        return fill + conv_epi(2 * r + 1)
    skeleton(True, st, lq, state, RWL, loc_produce, lambda r: data_reads(2 * r))
    a.e('s_endpgm')

    a.label('%s_glob' % name, reset=True)
    RWG = 56
    vq = VmQ(); lq = LgQ()
    st = MStream(a, vq, cfg.get('MID_PACEG', 24), 4)
    st.look = cfg.get('MID_LOOKG', 36); st.pace2 = cfg.get('MID_PACE2G', 64)
    state = dict(wcons=-1, fread=-1)
    MLR = 0; WT = 128; PB = 144; CA, CU, PO = 176, 184, 192
    vWa, vSt = 200, 201
    a.e('v_lshlrev_b32 v%d, 3, v%d' % (TMP, vI))
    a.e('s_lshl_b32 s%d, s%d, 3' % (sA, sTok))
    a.e('s_add_u32 s%d, s%d, %d' % (sA, sA, ML_OFF))
    a.e('s_lshl_b32 s%d, s%d, 10' % (sP, sTok))
    a.e('s_lshl_b32 s%d, s%d, 11' % (sB, sWave))
    a.e('s_add_u32 s%d, s%d, s%d' % (sP, sP, sB))
    a.e('s_add_u32 s%d, s%d, %d' % (sP, sP, OP_OFF))
    def tf(f): return f + 8 * max(0, (f >> 2) - 1)
    def twg(n):
        r = n // 32
        return ((8 + 12 * r) if r < 3 else 40) + 8.0 * (n % 32) / 32 - cfg.get('MID_WLEAD', 8)
    for f in range(16):
        r, ts = f >> 2, f & 3
        for s in range(4):
            off = s * 250 * 32768 + (ts >> 1) * 32768 + r * 8192 + (ts & 1) * 1024
            slot = (f % 6) * 4 + s
            st.add(0, tf(f) - cfg.get('MID_PLEAD', 12), ['s_add_u32 m0, s%d, %d' % (sWin, slot * 1024), 's_add_u32 s%d, s%d, %d' % (sC, sP, off)],
                   'buffer_load_dwordx4 v%d, %s, s%d offen lds' % (vLane16, ws, sC), ('p', f, s), (lambda f=f: state['fread'] >= f - 6))
    add_w(st, state, RWG, twg)
    st.burst(4)
    for s in range(4):
        for ts in range(4):
            a.e('buffer_load_dwordx2 %s, v%d, %s, s%d offen offset:%d' % (vr(MLR + (ts * 4 + s) * 2, 2), TMP, ws, sA, ts * 128))
            vq.issue('ml')
        if s < 3: a.e('s_add_u32 s%d, s%d, 64000' % (sA, sA))
    st.burst(cfg.get('MID_B2', 20))
    common_setup(False)
    tok_read_regs(a, TR0, TR1, vLane, TMP)
    a.e('s_bitcmp1_b32 s%d, 0' % sWave)
    a.e('s_cselect_b64 vcc, -1, 0')
    a.e('v_cndmask_b32 v%d, v%d, v%d, vcc' % (vWa, TR0, TR1))
    a.e('s_lshl_b32 s%d, s%d, 12' % (sB, sWave))
    a.e('v_add_u32 v%d, s%d, v%d' % (vWa, sB, vWa))
    a.e('v_add_u32 v%d, s%d, v%d' % (vSt, sWin, vLane16))
    vq.wait(a, 'ml')
    a.dense = True
    for ts in range(4):
        m = [MLR + (ts * 4 + s) * 2 for s in range(4)]
        t = TMP
        a.e('v_max3_f32 v%d, v%d, v%d, v%d' % (t, m[0], m[1], m[2]))
        a.e('v_max_f32 v%d, v%d, v%d' % (t, t, m[3]))
        for s in range(4): a.e('v_sub_f32 v%d, v%d, v%d' % (WT + ts * 4 + s, m[s], t))
        for s in range(4): a.e('v_exp_f32 v%d, v%d' % (WT + ts * 4 + s, WT + ts * 4 + s))
        a.e('v_mul_f32 v%d, v%d, v%d' % (t, WT + ts * 4, m[0] + 1))
        for s in range(1, 4): a.e('v_fmac_f32 v%d, v%d, v%d' % (t, WT + ts * 4 + s, m[s] + 1))
        a.e('v_rcp_f32 v%d, v%d' % (t, t))
        for s in range(4): a.e('v_mul_f32 v%d, v%d, v%d' % (WT + ts * 4 + s, WT + ts * 4 + s, t))
    a.dense = False
    def p_reads(f):
        out = [lambda: st.wait(('p', f, 3))]
        for s in range(4):
            def g(s=s):
                a.e('ds_read_b128 %s, v%d offset:%d' % (vr(PB + 16 * (f % 2) + 4 * s, 4), vSt, ((f % 6) * 4 + s) * 1024)); lq.issue(('pr', f, s))
            out.append(g)
        return out
    def glob_produce(r, tail):
        a.dense = True
        for ts in range(4):
            f = 4 * r + ts
            lq.wait(a, ('pr', f, 3))
            state['fread'] = f
            for g in (p_reads(f + 1) if ts < 3 else tail): g()
            for s in range(4):
                p = PB + 16 * (f % 2) + 4 * s; w = WT + ts * 4 + s
                wp = vr(w & ~1, 2); sel = w & 1
                for d in range(4):
                    a.e('v_lshlrev_b32 v%d, 16, v%d' % (CU + 2 * d, p + d))
                    a.e('v_and_b32 v%d, s90, v%d' % (CU + 2 * d + 1, p + d))
                st.tick()
                for d in range(4):
                    if s == 0:
                        a.e('v_pk_mul_f32 %s, %s, %s op_sel:[0,%d] op_sel_hi:[1,%d]' % (vr(CA + 2 * d, 2), vr(CU + 2 * d, 2), wp, sel, sel))
                    else:
                        a.e('v_pk_fma_f32 %s, %s, %s, %s op_sel:[0,%d,0] op_sel_hi:[1,%d,1]' % (vr(CA + 2 * d, 2), vr(CU + 2 * d, 2), wp, vr(CA + 2 * d, 2), sel, sel))
                st.tick()
            o = PO + 4 * (f % 2)
            for d in range(4):
                a.e('v_cvt_pk_bf16_f32 v%d, v%d, v%d' % (o + d, CA + 2 * d, CA + 2 * d + 1))
            a.e('ds_write_b128 v%d, %s offset:%d' % (vWa, vr(o, 4), r * 16384 + ts * 1024)); lq.issue()
        a.dense = False
        return []
    skeleton(False, st, lq, state, RWG, glob_produce, lambda r: p_reads(4 * r))
    a.label('%s_end' % name)
    a.e('s_endpgm')
    return dict(name=name, vgpr=512, sgpr=96, accum=256, grid=256, block=256, lds=163840)
```

```python
from common import *
from conv4 import *
from attn16 import stamp_begin, stamp_mid, stamp_end

def gen_mrg(a, name='mrg_kernel', cfg=None):
    cfg = cfg or {}
    STAMP = cfg.get('STAMP', False)
    NTP = 3; RW = 36; WB = 36 * NTP
    GACC, CD, DATA, PKO, TOK, XR = 0, 64, 96, 144, 160, 192
    vLane, vLane16, vRow, vWr, vId, vS, vR, vRd, TMP = 224, 225, 226, 227, 228, 230, 233, 237, 244
    IMG = 98304
    sWave, sK, sW, sA, sB, sC, sWin, sCG, sBt, sTp, sX, sF = 3, 6, 7, 32, 33, 34, 36, 37, 38, 39, 35, 46
    ws = 's[8:11]'
    def gacc(t, ts): return GACC + (t * 4 + ts) * 4

    kernel_begin(a, name)
    a.e('s_and_b32 s%d, s2, 3' % sK)
    a.e('s_lshl_b32 s%d, s%d, 4' % (sK, sK))
    a.e('s_lshr_b32 s%d, s2, 4' % sA)
    a.e('s_add_u32 s%d, s%d, s%d' % (sK, sK, sA))
    a.e('s_cmp_ge_u32 s2, 256')
    a.e('s_cbranch_scc1 %s_end' % name)
    a.e('s_cmp_ge_u32 s%d, 63' % sK)
    a.e('s_cbranch_scc1 %s_end' % name)
    a.e('s_load_dwordx2 s[4:5], s[0:1], 80')
    a.e('s_load_dwordx2 s[40:41], s[0:1], 0')
    a.e('s_load_dwordx2 s[42:43], s[0:1], 64')
    if STAMP: stamp_begin(a)
    if cfg.get('CPF', 1): code_prefetch(a, name, 250, 251, 1)
    a.e('s_bfe_u32 s%d, s2, 0x10003' % sCG)
    a.e('s_bfe_u32 s%d, s2, 0x10002' % sBt)
    a.e('v_lshrrev_b32 v1, 6, v0')
    a.e('v_and_b32 v%d, 63, v0' % vLane)
    a.e('v_readfirstlane_b32 s%d, v1' % sWave)
    a.e('v_lshlrev_b32 v%d, 4, v%d' % (vLane16, vLane))
    a.e('s_cmp_eq_u32 s%d, 0' % sK)
    a.e('s_cselect_b32 s%d, 0x40000000, 0' % sF)
    win_regs(a, vS, vRd, vLane, 32768, sF, TMP)
    a.e('s_mul_i32 s%d, s%d, 24576' % (sWin, sWave))
    a.e('s_lshl_b32 s%d, s%d, 17' % (sA, sK))
    a.e('s_lshl_b32 s%d, s%d, 11' % (sB, sWave))
    a.e('s_add_u32 s%d, s%d, s%d' % (sA, sA, sB))
    a.e('s_mul_i32 s%d, s%d, %d' % (sTp, sWave, 2 * 9216))
    a.e('s_add_u32 s%d, s%d, %d' % (sTp, sTp, TPM_OFF))
    a.e('s_lshl_b32 s%d, s%d, 2' % (sW, sCG))
    a.e('s_add_u32 s%d, s%d, s%d' % (sW, sW, sWave))
    a.e('s_lshl_b32 s%d, s%d, 7' % (sX, sW))
    a.e('s_lshl_b32 s%d, s%d, 16' % (sB, sK))
    a.e('s_add_u32 s%d, s%d, s%d' % (sX, sX, sB))
    a.e('s_lshl_b32 s%d, s%d, 17' % (sW, sW))
    a.e('s_add_u32 s%d, s%d, %d' % (sW, sW, W3_OFF))
    a.e('s_mul_i32 s44, s%d, 8192000' % sBt)
    a.e('s_add_u32 s44, s44, %d' % (M_OFF - 32768))
    a.e('s_mul_i32 s45, s%d, 4096000' % sBt)
    a.e('s_waitcnt lgkmcnt(0)')
    make_srd(a, 8, 4, WS_BYTES)
    def srd_off(d, ptr, soff, nbytes):
        a.e('s_add_u32 s%d, s%d, s%d' % (d, ptr, soff))
        a.e('s_addc_u32 s%d, s%d, 0' % (d + 1, ptr + 1))
        a.e('s_and_b32 s%d, s%d, 0xffff' % (d + 1, d + 1))
        a.e('s_mov_b32 s%d, %d' % (d + 2, nbytes))
        a.e('s_mov_b32 s%d, 0x00020000' % (d + 3))
    srd_off(12, 4, 44, 8192000 + 32768)
    vq = VmQ(); lq = LgQ()
    st = MStream(a, vq, cfg.get('MRG_PACE', 24), 4)
    st.look = cfg.get('MRG_LOOK', 20); st.pace2 = cfg.get('MRG_PACE2', 64)
    state = dict(wcons=-1, gread=-1, gdone=-1)
    def tg(g): return g + 6 * max(0, (g >> 2) - 1)
    def tw(n):
        r = n // 32
        start = (8 + 10 * r) if r < 3 else 34
        return start + 6.0 * (n % 32) / 32
    for g in range(16):
        for d in range(3):
            pre = ['s_add_u32 m0, s%d, %d' % (sWin, (g % 8) * 3072 + d * 1024)]
            if d == 0: pre.append('s_add_u32 s%d, s%d, %d' % (sC, sA, (g >> 2) * 8192 + (g & 3) * 512))
            st.add(0, tg(g) - cfg.get('MRG_WINLEAD', 2), pre, 'buffer_load_dwordx4 v%d, s[12:15], s%d offen lds' % (vS + d, sC), ('win', g, d), (lambda g=g: state['gread'] >= g - 8))
    for p in range(8):
        for q in range(9):
            pre = []
            if q % 4 == 0: pre = ['s_add_u32 s%d, s%d, %d' % (sB, sTp, (p >> 1) * 8 * 9216 + (p & 1) * 9216 + q * 1024)]
            st.add(1, tg(2 * p + (q > 4)), pre, 'buffer_load_dwordx4 %s, v%d, %s, s%d offen offset:%d' % (ar(36 * (p % NTP) + 4 * q, 4), vLane16, ws, sB, (q % 4) * 1024), ('tp', p, q),
                   (lambda p=p: state['gdone'] >= 2 * (p - NTP) + 1))
    for n in range(128):
        pre = ['s_add_u32 s%d, s%d, 0x1000' % (sW, sW)] if (n and n % 4 == 0) else []
        st.add(2, tw(n), pre, 'buffer_load_dwordx4 %s, v%d, %s, s%d offen offset:%d' % (ar(WB + 4 * (n % RW), 4), vLane16, ws, sW, (n % 4) * 1024), ('w', n),
               (lambda n=n: state['wcons'] >= n - RW))
    for ts in range(4):
        for dd in range(2):
            st.add(3, 2.5, ['s_add_u32 s47, s%d, %d' % (sX, ts * 16384)] if dd == 0 else [],
                   'buffer_load_dwordx4 %s, v%d, s[24:27], s47 offen offset:%d' % (vr(XR + (ts * 2 + dd) * 4, 4), vRow, dd * 64), ('x', ts, dd), lambda: state.get('xok', False))

    st.burst(cfg.get('MRG_B0', 15))
    srd_off(24, 40, 45, 4096000)
    srd_off(28, 42, 45, 4096000)
    a.e('v_lshrrev_b32 v%d, 4, v%d' % (TMP, vLane))
    a.e('v_and_b32 v%d, 15, v%d' % (TMP + 1, vLane))
    a.e('v_lshlrev_b32 v%d, 10, v%d' % (vRow, TMP + 1))
    a.e('v_lshl_add_u32 v%d, v%d, 4, v%d' % (vRow, TMP, vRow))
    for m in range(6): a.e('v_add_u32 v%d, s%d, v%d' % (vRd + m, sWin, vRd + m))
    img_write_reg(a, vWr, vLane, TMP)
    a.e('s_lshl_b32 s48, s%d, 13' % sWave)
    a.e('s_add_u32 s48, s48, %d' % IMG)
    a.e('v_add_u32 v%d, s48, v%d' % (vWr, vWr))
    img_read_regs(a, vR, vLane, TMP)
    for ts in range(4): a.e('v_add_u32 v%d, %d, v%d' % (vR + ts, IMG, vR + ts))
    a.e('v_and_b32 v%d, 1, v%d' % (TMP, vLane))
    a.e('v_lshlrev_b32 v%d, 4, v%d' % (TMP, TMP))
    a.e('v_mov_b32 v%d, 0x3f80' % (TMP + 1))
    a.e('v_lshlrev_b32 v%d, v%d, v%d' % (TMP + 1, TMP, TMP + 1))
    a.e('v_and_b32 v%d, 2, v%d' % (TMP, vLane))
    a.e('v_cmp_eq_u32 vcc, 0, v%d' % TMP)
    a.e('v_cndmask_b32 v%d, 0, v%d, vcc' % (vId, TMP + 1))
    a.e('v_cndmask_b32 v%d, v%d, 0, vcc' % (vId + 1, TMP + 1))
    a.e('s_mov_b32 s90, 0xffff0000')
    state['xok'] = True
    st.burst(cfg.get('MRG_B1', 10))

    fill = []
    def pop_fill(n):
        for _ in range(n):
            if st.tick(): pass
            elif fill: fill.pop(0)()
    def data_reads(g):
        out = [lambda: st.wait(('win', g, 2))]
        for m in range(6):
            def f(m=m):
                a.e('ds_read_b128 %s, v%d offset:%d' % (vr(DATA + 24 * (g % 2) + 4 * m, 4), vRd + m, (g % 8) * 3072)); lq.issue(('d', g, m))
            out.append(f)
        return out
    def conv_epi(g):
        out = []
        D = CD + 16 * (g % 2); o = PKO + 8 * (g % 2)
        for d in range(8):
            out.append(lambda d=d: a.e('v_cvt_pk_bf16_f32 v%d, v%d, v%d' % (o + d, D + 2 * d, D + 2 * d + 1)))
            if d % 4 == 3:
                def f(d=d):
                    a.e('ds_write_b128 v%d, %s offset:%d' % (vWr, vr(o + d - 3, 4), ((g >> 2) % 2) * 32768 + (g & 3) * 2048 + (d // 4) * 16)); lq.issue()
                out.append(f)
        return out
    def tok_reads(ks):
        out = []
        off = ((ks >> 3) % 2) * 32768 + (ks & 7) * 4096
        for ts in range(4):
            for h in range(2):
                def f(ts=ts, h=h):
                    a.e('ds_read_b64_tr_b16 %s, v%d offset:%d' % (vr(TOK + ((ks % 2) * 4 + ts) * 4 + 2 * h, 2), vR + ts, off + 512 * h)); lq.issue(('t', ks, ts, h))
                out.append(f)
        return out
    def flush():
        while fill: fill.pop(0)()

    def conv(g, nxt):
        p = g // 2
        A0 = 36 * (p % NTP) + 18 * (g % 2)
        D = CD + 16 * (g % 2); B = DATA + 24 * (g % 2)
        st.wait(('tp', p, 4 if g % 2 == 0 else 8))
        lq.wait(a, ('d', g, 5))
        state['gread'] = g
        k = 0
        for s in list(range(9)) + ['I']:
            for q in range(4):
                acc = vr(D + 4 * q, 4)
                if s == 'I': a.e('%s %s, %s, %s, %s' % (M4, acc, vr(vId, 2), vr(B + 2 * (q + 4), 2), acc))
                else: a.e('%s %s, %s, %s, %s' % (M4, acc, ar(A0 + 2 * s, 2), vr(B + 2 * (q + s), 2), '0' if s == 0 else acc))
                k += 1
                if k == 4: fill.extend(nxt)
                pop_fill(1)
        state['gdone'] = g
        flush()
    def gemm(r, nxt_tail, head):
        fill.extend(head)
        for k8 in range(8):
            ks = 8 * r + k8
            lq.wait(a, ('t', ks, 3, 1))
            st.wait(('w', ks * 4 + 3))
            if k8 < 7: fill.extend(tok_reads(ks + 1))
            else: fill.extend(nxt_tail)
            for t in range(4):
                n = ks * 4 + t
                for ts in (range(4) if t % 2 == 0 else range(3, -1, -1)):
                    a.e('%s %s, %s, %s, %s' % (MF, vr(gacc(t, ts), 4), ar(WB + 4 * (n % RW), 4), vr(TOK + ((ks % 2) * 4 + ts) * 4, 4), vr(gacc(t, ts), 4)))
                    if fill: fill.pop(0)()
                    st.tick()
                state['wcons'] = n
            flush()
    def xinit():
        out = [lambda: st.wait(('x', 3, 1))]
        for ts in range(4):
            for dd in range(2):
                x = XR + (ts * 2 + dd) * 4
                for e in range(2):
                    for j in range(2):
                        r_ = gacc(2 * dd + e, ts) + 2 * j
                        out.append(lambda r_=r_, s_=x + 2 * e + j: a.e('v_lshlrev_b32 v%d, 16, v%d' % (r_, s_)))
                        out.append(lambda r_=r_, s_=x + 2 * e + j: a.e('v_and_b32 v%d, s90, v%d' % (r_ + 1, s_)))
        return out
    def barrier():
        lq.wait_all(a); a.e('s_barrier')

    for f in data_reads(0): f()
    if STAMP: st.wait(('tp', 0, 4)); stamp_mid(a, 0); lq.done = lq.n
    xi = xinit()
    for g in range(4):
        conv(g, (conv_epi(g - 1) if g else []) + data_reads(g + 1))
    fill.extend(conv_epi(3)); flush()
    barrier()
    if STAMP: stamp_mid(a, 1)
    for r in range(1, 4):
        for g in range(4 * r, 4 * r + 4):
            nxt = conv_epi(g - 1) if g % 4 else []
            if g % 4 < 3: nxt = nxt + data_reads(g + 1)
            else: nxt = nxt + tok_reads(8 * (r - 1))
            if r == 1 and g >= 5:
                nxt = nxt + xi[:22]; xi = xi[22:]
            conv(g, nxt)
        assert not xi
        if cfg.get('V'): print('conv end', a.clock, len(a.lines))
        gemm(r - 1, data_reads(4 * r + 4) if r < 3 else [], [lambda: None] * 3 + conv_epi(4 * r + 3))
        barrier()
        if STAMP: stamp_mid(a, 1 + r)
        if cfg.get('V'): print('gemm end', a.clock, len(a.lines))
    for f in tok_reads(24): f()
    gemm(3, [], [])
    assert st.empty()
    if cfg.get('V'): print(st.slack)
    k = 0
    for ts in range(4):
        a.e('s_add_u32 s47, s%d, %d' % (sX, ts * 16384))
        for dd in range(2):
            o = 64 + 4 * (k % 8); k += 1
            for e in range(2):
                for j in range(2):
                    r_ = gacc(2 * dd + e, ts) + 2 * j
                    a.e('v_cvt_pk_bf16_f32 v%d, v%d, v%d' % (o + 2 * e + j, r_, r_ + 1))
            a.e('buffer_store_dwordx4 %s, v%d, s[28:31], s47 offen offset:%d' % (vr(o, 4), vRow, dd * 64))
    if STAMP: stamp_end(a, sWave)
    a.label('%s_end' % name)
    a.e('s_endpgm')
    return dict(name=name, vgpr=512, sgpr=96, accum=256, grid=256, block=256, lds=163840)
```

```python
import math
from common import *
from attn16 import stamp_begin, stamp_mid, stamp_end

N_M, N_VO, N_RL, N_DW, N_TP = 128, 64, 40, 0, 12
P = 1040

def gen_prep(a, name='prep_kernel', cfg=None):
    cfg = cfg or {}
    STAMP = cfg.get('STAMP', False)
    total = N_M + N_VO + N_RL + N_DW + N_TP
    kernel_begin(a, name)
    a.e('s_cmp_ge_u32 s2, 256')
    a.e('s_cbranch_scc1 %s_end' % name)
    a.e('s_load_dwordx16 s[16:31], s[0:1], 0')
    a.e('s_load_dwordx2 s[4:5], s[0:1], 80')
    if STAMP: stamp_begin(a)
    if cfg.get('CPF', 1):
        a.e('s_lshr_b32 s62, s2, 3')
        a.e('s_min_u32 s62, s62, 5')
        a.e('s_lshl_b32 s62, s62, 15')
        code_prefetch(a, name, 120, 121, 1, end=cfg.get('LAST_END', 'mrg_kernel_end'), part_sgpr=62)
    a.e('v_lshrrev_b32 v1, 6, v0')
    a.e('v_and_b32 v2, 63, v0')
    a.e('v_readfirstlane_b32 s3, v1')
    a.e('v_lshlrev_b32 v3, 4, v2')
    a.e('v_lshrrev_b32 v4, 4, v2')
    a.e('v_and_b32 v5, 15, v2')
    a.e('s_waitcnt lgkmcnt(0)')
    make_srd(a, 8, 4, WS_BYTES)
    def xtouch():
        if not cfg.get('XTOUCH', 0): return
        make_srd(a, 52, 16, 8192000)
        a.e('s_and_b32 s56, s2, 7')
        a.e('s_lshl_b32 s56, s56, 5')
        a.e('s_lshr_b32 s57, s2, 3')
        a.e('s_add_u32 s56, s56, s57')
        a.e('s_lshl_b32 s56, s56, 15')
        a.e('v_lshlrev_b32 v122, 7, v0')
        a.e('buffer_load_dword v123, v122, s[52:55], s56 offen')
    ws = 's[8:11]'
    a.e('s_cmp_lt_u32 s2, %d' % N_M)
    a.e('s_cbranch_scc1 %s_m' % name)
    a.e('s_cmp_lt_u32 s2, %d' % (N_M + N_VO))
    a.e('s_cbranch_scc1 %s_vo' % name)
    a.e('s_cmp_lt_u32 s2, %d' % (N_M + N_VO + N_RL))
    a.e('s_cbranch_scc1 %s_rl' % name)
    a.e('s_cmp_ge_u32 s2, %d' % total)
    a.e('s_cbranch_scc1 %s_xt' % name)

    a.e('s_sub_u32 s6, s2, %d' % (N_M + N_VO + N_RL + N_DW))
    a.e('s_cmp_lt_u32 s6, 4')
    a.e('s_cselect_b32 s32, s24, s28')
    a.e('s_cselect_b32 s33, s25, s29')
    a.e('s_cselect_b32 s34, 1, 2')
    a.e('s_cselect_b32 s39, 0, 16')
    a.e('s_lshl_b32 s34, s34, 10')
    a.e('s_mul_i32 s35, s34, 31')
    make_srd(a, 12, 32, 0)
    a.e('s_mov_b32 s14, s35')
    a.e('s_lshl_b32 s36, s6, 2')
    a.e('s_add_u32 s36, s36, s3')
    a.e('s_mul_i32 s37, s36, 9216')
    a.e('s_add_u32 s37, s37, %d' % TPC_OFF)
    a.e('s_sub_u32 s36, s36, s39')
    a.e('s_lshl_b32 s36, s36, 6')
    a.e('v_and_b32 v6, 3, v2')
    a.e('v_add_u32 v6, 1, v6')
    a.e('v_mul_lo_u32 v6, v6, s34')
    a.e('v_lshrrev_b32 v7, 2, v2')
    a.e('v_lshlrev_b32 v7, 1, v7')
    a.e('v_add_u32 v7, s36, v7')
    a.e('v_sub_u32 v6, v7, v6')
    for h in range(36):
        m, hi = h // 2, h % 2
        for g2 in range(2):
            a.e('buffer_load_ushort v%d, v6, s[12:15], 0 offen offset:%d' % (16 + 36 * hi + 18 * g2 + m, 32 * g2))
        if h < 35: a.e('v_add_u32 v6, s34, v6')
    a.e('s_waitcnt vmcnt(0)')
    for d in range(36):
        a.e('v_lshl_or_b32 v%d, v%d, 16, v%d' % (16 + d, 52 + d, 16 + d))
    xtouch()
    for q in range(9):
        if q and q % 4 == 0: a.e('s_add_u32 s37, s37, 0x1000')
        a.e('buffer_store_dwordx4 %s, v3, %s, s37 offen offset:%d' % (vr(16 + 4 * q, 4), ws, (q % 4) * 1024))
    if STAMP: stamp_end(a, 3)
    a.e('s_endpgm')
    def rows_dma(srd, nrows, s_src, s_lds):
        for r in range(nrows):
            a.e('s_add_u32 m0, s%d, %d' % (s_lds, r * P))
            a.e('s_add_u32 s45, s%d, %d' % (s_src, r * 3072))
            a.e('buffer_load_dwordx4 v3, %s, s45 offen lds' % srd)

    a.label('%s_m' % name, reset=True)
    make_srd(a, 12, 18, 512 * 1536 * 2)
    a.e('s_lshr_b32 s32, s2, 3')
    a.e('s_and_b32 s33, s2, 7')
    a.e('s_lshl_b32 s34, s32, 5'); a.e('s_lshl_b32 s35, s3, 3'); a.e('s_add_u32 s34, s34, s35'); a.e('s_mul_i32 s34, s34, 3072')
    a.e('s_mul_i32 s36, s3, %d' % (8 * P))
    rows_dma('s[12:15]', 8, 34, 36)
    a.e('s_lshl_b32 s34, s33, 6'); a.e('s_lshl_b32 s35, s3, 4'); a.e('s_add_u32 s34, s34, s35'); a.e('s_mul_i32 s34, s34, 3072')
    a.e('s_add_u32 s34, s34, 1024')
    a.e('s_mul_i32 s36, s3, %d' % (16 * P)); a.e('s_add_u32 s36, s36, %d' % (32 * P))
    rows_dma('s[12:15]', 16, 34, 36)
    a.e('v_lshrrev_b32 v6, 2, v5'); a.e('v_lshlrev_b32 v6, 3, v6'); a.e('v_and_b32 v7, 3, v5'); a.e('v_add_u32 v6, v6, v7')
    a.e('v_mul_u32_u24 v6, %d, v6' % P)
    a.e('v_lshl_add_u32 v6, v4, 4, v6')
    a.e('s_lshr_b32 s36, s3, 1'); a.e('s_lshl_b32 s36, s36, 3'); a.e('s_and_b32 s37, s3, 1'); a.e('s_add_u32 s36, s36, s37')
    a.e('s_mul_i32 s36, s36, %d' % (4 * P)); a.e('s_add_u32 s36, s36, %d' % (32 * P))
    a.e('v_add_u32 v7, s36, v6')
    a.e('s_mul_i32 s34, s33, 192')
    a.e('s_lshl_b32 s35, s32, 2')
    a.e('s_add_u32 s34, s34, s35')
    a.e('s_add_u32 s34, s34, s3')
    a.e('s_lshl_b32 s34, s34, 10')
    a.e('s_add_u32 s34, s34, %d' % (W1_OFF + 128 * 1024))
    a.e('s_mov_b32 s38, %s' % fhex(512 ** -0.5 * math.log2(math.e)))
    a.e('s_waitcnt vmcnt(%d)' % cfg.get('XT_EARLY', 0))
    xtouch()
    a.e('s_waitcnt vmcnt(%d)' % (1 if cfg.get('XTOUCH', 0) else 0))
    a.e('s_barrier')
    if STAMP: stamp_mid(a, 0)
    lq = LgQ()
    def rd(kk):
        b = 32 + 12 * (kk % 5)
        a.e('ds_read_b128 %s, v6 offset:%d' % (vr(b, 4), kk * 64)); lq.issue()
        a.e('ds_read_b128 %s, v6 offset:%d' % (vr(b + 4, 4), kk * 64 + 4 * P)); lq.issue()
        a.e('ds_read_b128 %s, v7 offset:%d' % (vr(b + 8, 4), kk * 64)); lq.issue(kk)
    for kk in range(4): rd(kk)
    for kk in range(16):
        if kk + 4 < 16: rd(kk + 4)
        lq.wait(a, kk)
        b = 32 + 12 * (kk % 5)
        for e in range(2):
            a.e('%s %s, %s, %s, %s' % (MF, vr(16 + 4 * e, 4), vr(b + 4 * e, 4), vr(b + 8, 4), '0' if kk == 0 else vr(16 + 4 * e, 4)))
    for r in range(8):
        a.e('v_mul_f32 v%d, s38, v%d' % (16 + r, 16 + r))
    for d in range(4):
        a.e('v_cvt_pk_bf16_f32 v%d, v%d, v%d' % (24 + d, 16 + 2 * d, 17 + 2 * d))
    a.e('buffer_store_dwordx4 v[24:27], v3, %s, s34 offen' % ws)
    if STAMP: stamp_end(a, 3)
    a.e('s_endpgm')

    def load_strip():
        a.e('v_lshrrev_b32 v7, 3, v2')
        a.e('v_bfe_u32 v8, v2, 4, 1')
        a.e('v_lshlrev_b32 v8, 2, v8')
        a.e('v_and_b32 v9, 7, v2')
        a.e('v_xor_b32 v8, v8, v9')
        a.e('v_mul_lo_u32 v7, v7, s42')
        a.e('v_lshl_add_u32 v7, v8, 4, v7')
        a.e('s_lshl_b32 s41, s42, 3')
        a.e('s_lshl_b32 s43, s3, 4')
        a.e('s_mul_i32 s43, s43, s41')
        a.e('s_add_u32 s40, s40, s43')
        a.e('s_lshl_b32 s44, s3, 14')
        for j in range(16):
            a.e('s_add_u32 m0, s44, %d' % (1024 * j))
            if j: a.e('s_add_u32 s40, s40, s41')
            a.e('buffer_load_dwordx4 v7, s[12:15], s40 offen lds')
        a.e('v_bfe_u32 v8, v2, 2, 2')
        a.e('v_lshl_add_u32 v9, v4, 3, v8')
        a.e('v_lshlrev_b32 v9, 7, v9')
        a.e('v_lshrrev_b32 v8, 1, v8')
        a.e('v_lshl_add_u32 v9, v8, 6, v9')
        a.e('v_and_b32 v8, 3, v2')
        a.e('v_lshl_add_u32 v8, v8, 4, v9')
        a.e('v_xor_b32 v9, 64, v8')

    a.label('%s_vo' % name, reset=True)
    a.e('s_sub_u32 s6, s2, %d' % N_M)
    a.e('s_lshr_b32 s33, s6, 3')
    a.e('s_and_b32 s32, s6, 7')
    make_srd(a, 12, 20, 512 * 512 * 2)
    make_srd(a, 48, 18, 512 * 1536 * 2)
    a.e('s_lshl_b32 s40, s33, 7')
    a.e('s_mov_b32 s42, 1024')
    load_strip()
    a.e('s_lshl_b32 s34, s32, 6'); a.e('s_lshl_b32 s35, s3, 4'); a.e('s_add_u32 s34, s34, s35'); a.e('s_mul_i32 s34, s34, 3072')
    a.e('s_add_u32 s34, s34, 2048')
    a.e('s_mul_i32 s36, s3, %d' % (16 * P)); a.e('s_add_u32 s36, s36, 65536')
    rows_dma('s[48:51]', 16, 34, 36)
    a.e('s_bitcmp1_b32 s3, 0')
    a.e('s_cselect_b64 vcc, -1, 0')
    a.e('v_cndmask_b32 v8, v8, v9, vcc')
    a.e('v_mul_u32_u24 v6, %d, v5' % P)
    a.e('v_lshl_add_u32 v6, v4, 4, v6')
    a.e('s_lshr_b32 s36, s3, 1')
    a.e('s_mul_i32 s37, s36, %d' % (32 * P)); a.e('s_add_u32 s37, s37, 65536')
    a.e('v_add_u32 v6, s37, v6')
    a.e('s_lshr_b32 s34, s33, 1')
    a.e('s_lshl_b32 s34, s34, 4')
    a.e('s_lshl_b32 s35, s32, 1'); a.e('s_add_u32 s35, s35, s36')
    a.e('s_add_u32 s34, s34, s35')
    a.e('s_lshl_b32 s34, s34, 3')
    a.e('s_and_b32 s35, s3, 1'); a.e('s_lshl_b32 s35, s35, 1')
    a.e('s_add_u32 s34, s34, s35')
    a.e('s_and_b32 s35, s33, 1'); a.e('s_lshl_b32 s35, s35, 2')
    a.e('s_add_u32 s34, s34, s35')
    a.e('s_lshl_b32 s34, s34, 10')
    a.e('s_add_u32 s34, s34, %d' % W2_OFF)
    a.e('s_waitcnt vmcnt(%d)' % cfg.get('XT_EARLY', 0))
    xtouch()
    a.e('s_waitcnt vmcnt(%d)' % (1 if cfg.get('XTOUCH', 0) else 0))
    a.e('s_barrier')
    if STAMP: stamp_mid(a, 0)
    lq = LgQ()
    def rd2(kk):
        b = 32 + 16 * (kk % 3)
        for e in range(2):
            a.e('ds_read_b128 %s, v6 offset:%d' % (vr(b + 4 * e, 4), kk * 64 + 16 * P * e)); lq.issue()
        for o in range(2):
            a.e('ds_read_b64_tr_b16 %s, v8 offset:%d' % (vr(b + 8 + 4 * o, 2), kk * 4096 + 8 * o)); lq.issue()
            a.e('ds_read_b64_tr_b16 %s, v8 offset:%d' % (vr(b + 8 + 4 * o + 2, 2), kk * 4096 + 8 * o + 512)); lq.issue(kk)
    rd2(0); rd2(1)
    for kk in range(16):
        if kk + 2 < 16: rd2(kk + 2)
        lq.wait(a, kk)
        b = 32 + 16 * (kk % 3)
        for o in range(2):
            for e in range(2):
                acc = vr(16 + 8 * o + 4 * e, 4)
                a.e('%s %s, %s, %s, %s' % (MF, acc, vr(b + 4 * e, 4), vr(b + 8 + 4 * o, 4), '0' if kk == 0 else acc))
    for o in range(2):
        for d in range(4):
            a.e('v_cvt_pk_bf16_f32 v%d, v%d, v%d' % (80 + 4 * o + d, 16 + 8 * o + 2 * d, 17 + 8 * o + 2 * d))
        a.e('buffer_store_dwordx4 %s, v3, %s, s34 offen offset:%d' % (vr(80 + 4 * o, 4), ws, 1024 * o))
    if STAMP: stamp_end(a, 3)
    a.e('s_endpgm')

    a.label('%s_rl' % name, reset=True)
    a.e('s_sub_u32 s6, s2, %d' % (N_M + N_VO))
    a.e('s_cmp_lt_u32 s6, 16')
    a.e('s_cbranch_scc1 %s_rl_mi' % name)
    a.e('s_cmp_lt_u32 s6, 24')
    a.e('s_cbranch_scc1 %s_rl_mo' % name)
    a.e('s_sub_u32 s6, s6, 24')
    a.e('s_lshr_b32 s36, s6, 3')
    a.e('s_and_b32 s33, s6, 7')
    make_srd(a, 12, 30, 1024 * 512 * 2)
    a.e('s_lshl_b32 s40, s33, 7')
    a.e('s_lshl_b32 s37, s36, 19')
    a.e('s_add_u32 s40, s40, s37')
    a.e('s_mov_b32 s42, 1024')
    a.e('s_lshl_b32 s34, s33, 5')
    a.e('s_lshl_b32 s37, s36, 4')
    a.e('s_add_u32 s34, s34, s37')
    a.e('s_lshl_b32 s34, s34, 12')
    a.e('s_add_u32 s34, s34, %d' % W3_OFF)
    a.e('s_mov_b32 s35, 4096')
    a.e('s_branch %s_rl_go' % name)
    a.label('%s_rl_mo' % name, reset=True)
    a.e('s_sub_u32 s33, s6, 16')
    make_srd(a, 12, 26, 512 * 512 * 2)
    a.e('s_lshl_b32 s40, s33, 7')
    a.e('s_mov_b32 s42, 1024')
    a.e('s_lshr_b32 s34, s33, 1')
    a.e('s_lshl_b32 s34, s34, 17')
    a.e('s_and_b32 s37, s33, 1')
    a.e('s_lshl_b32 s37, s37, 12')
    a.e('s_add_u32 s34, s34, s37')
    a.e('s_add_u32 s34, s34, %d' % (W2_OFF + 512 * 1024))
    a.e('s_mov_b32 s35, 8192')
    a.e('s_branch %s_rl_go' % name)
    a.label('%s_rl_mi' % name, reset=True)
    make_srd(a, 12, 22, 512 * 1024 * 2)
    a.e('s_lshl_b32 s40, s6, 7')
    a.e('s_mov_b32 s42, 2048')
    a.e('s_xor_b32 s33, s6, 8')
    a.e('s_lshr_b32 s34, s33, 1')
    a.e('s_mul_i32 s34, s34, 192')
    a.e('s_and_b32 s37, s33, 1')
    a.e('s_lshl_b32 s37, s37, 2')
    a.e('s_add_u32 s34, s34, s37')
    a.e('s_lshl_b32 s34, s34, 10')
    a.e('s_add_u32 s34, s34, %d' % W1_OFF)
    a.e('s_mov_b32 s35, 8192')
    a.label('%s_rl_go' % name, reset=True)
    load_strip()
    a.e('v_add_u32 v8, s44, v8')
    a.e('v_add_u32 v9, s44, v9')
    a.e('s_lshl_b32 s37, s3, 2')
    a.e('s_mul_i32 s37, s37, s35')
    a.e('s_add_u32 s34, s34, s37')
    for k4 in range(4):
        a.e('s_waitcnt vmcnt(%d)' % (12 - 4 * k4 + 4 * k4))
        for q in range(4):
            b = 16 + 16 * k4 + 4 * q
            ad = 9 if q >= 2 else 8
            a.e('ds_read_b64_tr_b16 %s, v%d offset:%d' % (vr(b, 2), ad, k4 * 4096 + 8 * (q & 1)))
            a.e('ds_read_b64_tr_b16 %s, v%d offset:%d' % (vr(b + 2, 2), ad, k4 * 4096 + 8 * (q & 1) + 512))
        a.e('s_waitcnt lgkmcnt(0)')
        for q in range(4):
            a.e('buffer_store_dwordx4 %s, v3, %s, s34 offen offset:%d' % (vr(16 + 16 * k4 + 4 * q, 4), ws, 1024 * q))
        if k4 < 3: a.e('s_add_u32 s34, s34, s35')
    a.label('%s_xt' % name)
    xtouch()
    if STAMP: stamp_end(a, 3)
    a.label('%s_end' % name)
    a.e('s_endpgm')
    return dict(name=name, vgpr=128, sgpr=96, accum=128, grid=256, block=256, lds=65536 + 64 * P)

def chan_combine(a, P, n, cnt, oA, oB, tmp):
    a.e('v_add_f32 v%d, v%d, v%d' % (oB, P, P + 2))
    a.e('v_add_f32 v%d, v%d, v%d' % (oA, P + 1, P + 3))
    for i in range(2, n):
        a.e('v_add_f32 v%d, v%d, v%d' % (oB, oB, P + 2 * i))
        a.e('v_add_f32 v%d, v%d, v%d' % (oA, oA, P + 2 * i + 1))
    a.e('v_mul_f32 v%d, %s, v%d' % (oB, fhex(1.0 / n), oB))
    a.e('v_mov_b32 v%d, 0' % (tmp + 1))
    for i in range(n):
        a.e('v_sub_f32 v%d, v%d, v%d' % (tmp, P + 2 * i, oB))
        a.e('v_fmac_f32 v%d, v%d, v%d' % (tmp + 1, tmp, tmp))
    a.e('v_mul_f32 v%d, %s, v%d' % (tmp + 1, fhex(float(cnt)), tmp + 1))
    a.e('v_add_f32 v%d, v%d, v%d' % (oA, oA, tmp + 1))
    a.e('v_mul_f32 v%d, %s, v%d' % (oA, fhex(1.0 / (n * cnt)), oA))
    a.e('v_add_f32 v%d, %s, v%d' % (oA, fhex(1e-5), oA))
    a.e('v_rsq_f32 v%d, v%d' % (oA, oA))
    a.e('v_mul_f32 v%d, v%d, v%d' % (oB, oB, oA))
    a.e('v_sub_f32 v%d, 0, v%d' % (oB, oB))
```

```python
import re

TRANS = ('v_exp_f32', 'v_log_f32', 'v_rcp_f32', 'v_rsq_f32', 'v_sqrt_f32', 'v_sin_f32', 'v_cos_f32', 'v_rcp_iflag_f32')

def split_ops(s):
    ops, depth, cur = [], 0, ''
    for ch in s:
        if ch in '[(':
            depth += 1
        if ch in '])':
            depth -= 1
        if ch == ',' and depth == 0:
            ops.append(cur.strip()); cur = ''
        else:
            cur += ch
    if cur.strip():
        ops.append(cur.strip())
    return ops

_reg_re = re.compile(r'^-?\|?(?:abs\()?([vas])(?:(\d+)|\[(\d+):(\d+)\])\)?\|?$')

def regs_of(tok):
    tok = tok.split()[0] if tok.split() else ''
    if tok in ('vcc',):
        return {('s', 106), ('s', 107)}
    if tok == 'vcc_lo':
        return {('s', 106)}
    if tok == 'vcc_hi':
        return {('s', 107)}
    if tok == 'exec':
        return {('s', 126), ('s', 127)}
    if tok == 'exec_lo':
        return {('s', 126)}
    if tok == 'exec_hi':
        return {('s', 127)}
    if tok == 'm0':
        return {('s', 124)}
    m = _reg_re.match(tok)
    if not m:
        return set()
    f = m.group(1)
    if m.group(2) is not None:
        return {(f, int(m.group(2)))}
    return {(f, i) for i in range(int(m.group(3)), int(m.group(4)) + 1)}

class Ins:
    __slots__ = ('text', 'mn', 'ops', 'kind', 'w', 'r', 'srcC', 'srcAB', 'passes', 'states', 'lds_dma', 'wide_store', 'sdata')
    def __init__(self, text):
        self.text = text
        t = text.split(';')[0].strip()
        parts = t.split(None, 1)
        self.mn = parts[0]
        self.ops = split_ops(parts[1]) if len(parts) > 1 else []
        self.w = set(); self.r = set(); self.srcC = set(); self.srcAB = set(); self.passes = 0
        self.states = 1; self.lds_dma = False; self.wide_store = False; self.sdata = set()
        mn, ops = self.mn, self.ops
        R = regs_of
        if mn.startswith('v_mfma'):
            self.kind = 'mfma'
            self.w = R(ops[0]); self.srcAB = R(ops[1]) | R(ops[2]); self.srcC = R(ops[3])
            self.r = self.srcAB | self.srcC
            self.passes = 8 if '32x32x16' in mn else (4 if '16x16x32' in mn else (2 if '4x4x4' in mn else 16))
        elif mn.startswith('v_'):
            self.kind = 'valu'
            base = mn.replace('_e32', '').replace('_e64', '').replace('_dpp', '').replace('_sdwa', '')
            if base.startswith('v_cmpx'):
                self.w = R(ops[0]) | R('exec')
                for o in ops[1:]: self.r |= R(o)
            elif base.startswith('v_cmp'):
                self.w = R(ops[0])
                for o in ops[1:]: self.r |= R(o)
            elif base in ('v_add_co_u32', 'v_sub_co_u32', 'v_subrev_co_u32', 'v_addc_co_u32', 'v_subb_co_u32', 'v_mad_u64_u32', 'v_div_scale_f32'):
                self.w = R(ops[0]) | R(ops[1])
                for o in ops[2:]: self.r |= R(o)
            elif base.startswith('v_permlane') or base == 'v_swap_b32':
                self.w = R(ops[0]) | R(ops[1]); self.r = set(self.w)
            elif base == 'v_nop':
                pass
            else:
                self.w = R(ops[0])
                for o in ops[1:]: self.r |= R(o)
                if base in ('v_fmac_f32', 'v_dot2c_f32_bf16', 'v_pk_fmac_f16', 'v_writelane_b32') or '_dpp' in mn or '_sdwa' in mn:
                    self.r |= self.w
                if base == 'v_cndmask_b32' and len(ops) == 3:
                    self.r |= R('vcc')
        elif mn.startswith('ds_'):
            self.kind = 'ds'
            if mn.startswith('ds_read') or mn.startswith('ds_bpermute') or mn.startswith('ds_permute') or mn.startswith('ds_swizzle'):
                self.w = R(ops[0])
                for o in ops[1:]: self.r |= R(o)
            else:
                for o in ops: self.r |= R(o)
        elif mn.startswith('buffer_') or mn.startswith('global_') or mn.startswith('flat_'):
            self.kind = 'vmem'
            words = t.split()
            if mn.startswith('buffer_wbl2') or mn.startswith('buffer_inv'):
                pass
            elif 'lds' in words or '_lds_' in mn:
                self.lds_dma = True
                for o in ops: self.r |= R(o)
                self.r |= R('m0')
            elif '_load' in mn:
                self.w = R(ops[0])
                for o in ops[1:]: self.r |= R(o)
                if 'd16' in mn: self.r |= self.w
            elif '_store' in mn:
                for o in ops: self.r |= R(o)
                data = ops[0] if mn.startswith('buffer_') else ops[1]
                if 'x3' in mn or 'x4' in mn:
                    self.wide_store = True; self.sdata = R(data)
            else:
                for o in ops: self.r |= R(o)
                if 'sc0' in words:
                    self.w = R(ops[0])
        elif mn.startswith('s_'):
            self.kind = 'salu'
            if mn == 's_nop':
                self.states = int(ops[0], 0) + 1
            elif mn.startswith('s_cmp') or mn.startswith('s_cbranch') or mn in ('s_branch', 's_barrier', 's_waitcnt', 's_endpgm', 's_setprio', 's_sleep') or mn.startswith('s_bitcmp'):
                for o in ops: self.r |= R(o)
            elif mn.endswith('saveexec_b64'):
                self.w = R(ops[0]) | R('exec'); self.r = R(ops[1]) | R('exec')
            else:
                self.w = R(ops[0]) if ops else set()
                for o in ops[1:]: self.r |= R(o)
                if mn in ('s_addk_i32', 's_mulk_i32'): self.r |= self.w
        else:
            self.kind = 'other'

def required_states(p, c):
    need = 0
    vr = lambda s: {x for x in s if x[0] in 'va'}
    sr = lambda s: {x for x in s if x[0] == 's'}
    if p.kind == 'mfma':
        tb = {2: (2, 4, 5, 5, 1), 4: (0, 6, 8, 8, 3), 8: (0, 10, 12, 12, 7), 16: (0, 18, 20, 20, 15)}[p.passes]
        if c.kind == 'mfma':
            if p.w & c.srcC:
                if p.w == c.srcC and p.passes == c.passes:
                    need = max(need, tb[0])
                else:
                    need = max(need, tb[1])
            if p.w & c.srcAB:
                need = max(need, tb[2])
            if (p.w & c.w) and not (p.w == c.srcC):
                need = max(need, tb[1])
        elif c.kind in ('valu', 'vmem', 'ds'):
            if p.w & (c.r | c.w):
                need = max(need, tb[3])
            if c.kind == 'valu' and (p.srcC & c.w):
                need = max(need, tb[4])
            if c.kind in ('vmem', 'ds') and (p.srcC & c.w):
                need = max(need, tb[4])
    elif p.kind == 'valu':
        pv, ps = vr(p.w), sr(p.w)
        base = p.mn.replace('_e32', '').replace('_e64', '')
        if c.kind == 'mfma':
            if pv & c.r: need = max(need, 2)
            if ('s', 126) in p.w: need = max(need, 4)
        if c.kind == 'valu':
            cb = c.mn.replace('_e32', '').replace('_e64', '')
            if base in TRANS and (pv & c.r) :
                need = max(need, 1)
            if cb.startswith('v_permlane') and (pv & c.r): need = max(need, 2)
            if '_dpp' in c.mn and (pv & c.r): need = max(need, 2)
            if '_dpp' in c.mn and ('s', 126) in p.w: need = max(need, 5)
            if cb in ('v_readfirstlane_b32', 'v_readlane_b32') and (pv & c.r): need = max(need, 1)
            if ps & c.r:
                need = max(need, 2)
                if cb in ('v_readlane_b32', 'v_writelane_b32', 'v_div_fmas_f32'): need = max(need, 4)
            if ('s', 126) in p.w and cb in ('v_readfirstlane_b32', 'v_readlane_b32', 'v_writelane_b32'): need = max(need, 4)
            if ('s', 126) in p.w and cb.startswith('v_permlane'): need = max(need, 4)
            if ('_sdwa' in p.mn or 'op_sel' in p.text and not p.mn.startswith('v_pk') and p.mn != 'v_fma_mix_f32') and (pv & (c.r | c.w)): need = max(need, 1)
            if p.mn.startswith('v_dot') and (pv & (c.r | c.w)):
                if not (c.mn == p.mn and not (pv & (regs_of(c.ops[1]) | regs_of(c.ops[2])))):
                    need = max(need, 3)
        if c.kind == 'vmem' and (ps & c.r): need = max(need, 5)
        if c.kind == 'salu' and (ps & c.r) and not c.mn.startswith('s_cbranch'): need = max(need, 1)
    elif p.kind == 'salu':
        if ('s', 124) in p.w and (c.lds_dma or c.mn.endswith('addtid_b32')): need = max(need, 1)
    elif p.kind == 'vmem':
        if p.wide_store and (p.sdata & c.w):
            need = max(need, 2 if c.kind == 'valu' else 1)
    return need

MAXLOOK = 22

VOP12 = set("""v_mov_b32 v_add_u32 v_sub_u32 v_subrev_u32 v_lshlrev_b32 v_lshrrev_b32 v_ashrrev_i32 v_and_b32 v_or_b32 v_xor_b32 v_mul_u32_u24
v_min_u32 v_max_u32 v_cndmask_b32 v_add_f32 v_sub_f32 v_subrev_f32 v_mul_f32 v_fmac_f32 v_min_f32 v_max_f32 v_rcp_f32 v_rsq_f32 v_sqrt_f32 v_exp_f32 v_log_f32
v_readfirstlane_b32 v_permlane32_swap_b32 v_permlane16_swap_b32 v_accvgpr_mov_b32 v_nop v_dot2c_f32_bf16 v_cvt_f32_u32 v_cvt_u32_f32 v_not_b32""".split())
NOPROMO = set('v_readfirstlane_b32 v_permlane32_swap_b32 v_permlane16_swap_b32 v_accvgpr_mov_b32 v_nop v_fmac_f32 v_dot2c_f32_bf16 v_cndmask_b32'.split())
_INLINE_F = {'0.5', '-0.5', '1.0', '-1.0', '2.0', '-2.0', '4.0', '-4.0'}
_INLINE_HEX = {0x3f000000, 0xbf000000, 0x3f800000, 0xbf800000, 0x40000000, 0xc0000000, 0x40800000, 0xc0800000, 0x3e22f983}
def is_literal(tok):
    tok = tok.strip()
    if not tok or regs_of(tok) or tok in _INLINE_F or tok in ('vcc', 'exec', 'm0', 'off', 'scc'): return False
    try:
        v = int(tok, 0)
    except ValueError:
        return not tok.startswith('hwreg') and not tok.startswith('vmcnt') and not tok.startswith('lgkmcnt')
    if -16 <= v <= 64: return False
    if (v & 0xffffffff) in _INLINE_HEX or (v & 0xffffffff) >= 0xfffffff0: return False
    return True
def ins_size(ins):
    mn = ins.mn
    if ins.kind in ('mfma', 'ds', 'vmem'): return 8, False
    if ins.kind == 'valu':
        if mn.endswith('_e64') or '_dpp' in mn or '_sdwa' in mn: return 8, False
        base = mn.replace('_e32', '')
        if base.startswith('v_cmp'):
            if ins.ops[0] != 'vcc': return 8, False
            lit = any(is_literal(o) for o in ins.ops[1:])
            if not lit and not ins.ops[2].startswith('v'): return 8, False
            return (8, False) if lit else (4, True)
        if base in VOP12:
            if base == 'v_cndmask_b32' and ins.ops[-1] != 'vcc': return 8, False
            if any(is_literal(o) for o in ins.ops[1:]): return 8, False
            if len(ins.ops) >= 3 and not ins.ops[2].startswith('v'): return 8, False
            if any(o.startswith('-v') or o.startswith('|') or o.startswith('abs') for o in ins.ops): return 8, False
            return 4, (base not in NOPROMO and not mn.endswith('_e32'))
        return 8, False
    if ins.kind == 'salu':
        if mn.startswith('s_load') or mn.startswith('s_mem') or mn.startswith('s_buffer') or mn.startswith('s_atomic'): return 8, False
        if mn in ('s_nop', 's_waitcnt', 's_barrier', 's_endpgm', 's_branch', 's_setprio', 's_sleep') or mn.startswith('s_cbranch') or mn.endswith('k_i32') or mn.startswith('s_getreg'): return 4, False
        if mn == 's_mov_b64' and ins.ops[1].startswith('0x'): return 8, False
        return (8 if any(is_literal(o) for o in ins.ops) else 4), False
    return 4, False

class Asm:
    def __init__(self):
        self.lines = []
        self.hist = []
        self.auto_nops = []
        self.all_ins = []
        self.record = None
        self.prevk = None; self.clock = 0; self.mfree = 0; self.store_mod = ' sc1'
        self.off = 0; self.run4 = []; self.align = True; self.dense = False; self.sizes = []
    def raw(self, s):
        self.lines.append(s)
        if s.startswith('.p2align'): self.off = 0; self.run4 = []
    def comment(self, s):
        self.lines.append('    ; ' + s)
    def label(self, name, reset=False):
        self.lines.append(name + ':')
        if self.record is not None: self.record.append(('label', name))
        if reset:
            self.hist = []
    def _need(self, ins):
        dist = 0; pad = 0
        for p in reversed(self.hist):
            req = required_states(p, ins)
            if req > dist:
                pad = max(pad, req - dist)
            dist += p.states
            if dist > MAXLOOK: break
        return pad
    def _tick(self, ins):
        if ins.kind == 'mfma':
            t = max(self.clock, self.mfree)
            self.mfree = t + 4 * ins.passes; self.clock = t + (4 if ins.passes == 2 else 8)
        elif ins.mn.startswith('v_pk_') or ins.mn.startswith('v_dot'):
            self.clock = max(self.clock, self.mfree) + 4
        elif ins.mn.replace('_e32', '') in TRANS:
            self.clock += 8
        elif ins.kind in ('vmem', 'ds'):
            self.clock += (8 if ins.kind == 'vmem' else 4) + (8 if self.prevk == 'valu' else 0)
        else:
            self.clock += 4 * ins.states
        self.prevk = ins.kind
    def e(self, text):
        if text.startswith('buffer_store_dword') and self.store_mod: text += self.store_mod
        ins = Ins(text)
        self._tick(ins)
        pad = self._need(ins)
        while pad > 0:
            n = min(pad, 16)
            nop = Ins('s_nop %d' % (n - 1))
            self.lines.append(' s_nop %d' % (n - 1)); self.off += 4; self.sizes.append(4)
            self.hist.append(nop); self.auto_nops.append((len(self.lines), n, text))
            if self.record is not None: self.record.append(('ins', nop))
            pad -= n
        sz, promo = ins_size(ins)
        if self.align and sz == 8 and self.off % 8 == 4:
            if self.run4:
                li, si = self.run4.pop()
                t = self.lines[li].split(None, 1)
                self.lines[li] = ' ' + t[0] + '_e64 ' + t[1]; self.off += 4; self.sizes[si] = 8
            elif self.dense:
                nop = Ins('s_nop 0')
                self.lines.append(' s_nop 0'); self.off += 4; self.sizes.append(4); self.hist.append(nop)
                if self.record is not None: self.record.append(('ins', nop))
        if sz == 8: self.run4 = []
        elif promo: self.run4.append((len(self.lines), len(self.sizes)))
        self.off += sz; self.sizes.append(sz)
        self.lines.append(' ' + text)
        self.hist.append(ins)
        if len(self.hist) > 64: self.hist = self.hist[-40:]
        if self.record is not None: self.record.append(('ins', ins))
        return ins
    def text(self):
        return '\n'.join(self.lines) + '\n'

def check_seq(seq):
    out = []
    for i, c in enumerate(seq):
        dist = 0
        for j in range(i - 1, -1, -1):
            p = seq[j]
            req = required_states(p, c)
            if req > dist:
                out.append((j, i, req, dist, p.text, c.text))
            dist += p.states
            if dist > MAXLOOK: break
    return out

def vr(base, n=1, f='v'):
    return '%s%d' % (f, base) if n == 1 else '%s[%d:%d]' % (f, base, base + n - 1)
def ar(base, n=1):
    return vr(base, n, 'a')
def sr(base, n=1):
    return vr(base, n, 's')

def kernel_begin(a, name):
    a.raw('.globl %s' % name)
    a.raw('.p2align 8')
    a.raw('.type %s,@function' % name)
    a.label(name, reset=True)

def kernel_desc(name, vgpr, sgpr, accum):
    return '\n'.join([
        '.amdhsa_kernel %s' % name,
        '  .amdhsa_next_free_vgpr %d' % vgpr,
        '  .amdhsa_next_free_sgpr %d' % sgpr,
        '  .amdhsa_accum_offset %d' % accum,
        '  .amdhsa_group_segment_fixed_size 0',
        '  .amdhsa_kernarg_size 88',
        '  .amdhsa_user_sgpr_count 2',
        '  .amdhsa_user_sgpr_kernarg_segment_ptr 1',
        '  .amdhsa_system_sgpr_workgroup_id_x 1',
        '.end_amdhsa_kernel', ''])
```

```python
import copy
from asmlib import *
from layout import *

class LdsQ:
    def __init__(self):
        self.n = 0; self.done = 0; self.where = {}; self.pending = set()
    def issue(self, regs, check=True):
        self.n += 1
        for r in regs:
            if check: assert r not in self.pending, ('ring WAR', r)
            self.where[r] = self.n; self.pending.add(r)
    def consume(self, r):
        self.pending.discard(r); self.pending.discard(r + 1000)
    def need(self, regs):
        return max([self.where.get(r, 0) for r in regs] + [0])
    def wait_for(self, a, idx):
        if idx <= self.done: return
        N = min(self.n - idx, 15)
        a.e('s_waitcnt lgkmcnt(%d)' % N)
        self.done = self.n - N
    def drained(self):
        self.done = self.n
    def state(self):
        return (self.n - self.done, sorted((self.n - v, k) for k, v in self.where.items() if v > self.done), sorted(self.pending))

MF = 'v_mfma_f32_16x16x32_bf16'

KIDX = [0]
MIDR = {76: 80, 77: 81, 0: 80, 1: 81, 2: 82, 3: 83, 4: 84}
def stamp_begin(a):
    a.e('s_memrealtime s[66:67]')
    a.e('s_memtime s[72:73]')
    for r in range(80, 85): a.e('s_mov_b32 s%d, 0' % r)
    KIDX[0] += 1
CYC = [False]
def stamp_mid(a, reg):
    if CYC[0]:
        a.e('s_memtime s[78:79]')
        a.e('s_waitcnt lgkmcnt(0)')
        a.e('s_cselect_b32 s79, 1, 0')
        a.e('s_sub_u32 s78, s78, s72')
        a.e('s_add_u32 s%d, s78, s66' % MIDR[reg])
        a.e('s_cmp_eq_u32 s79, 1')
        return
    a.e('s_memrealtime s[78:79]')
    a.e('s_waitcnt lgkmcnt(0)')
    a.e('s_mov_b32 s%d, s78' % MIDR[reg])
def stamp_end(a, sWave, endlabel=None, nw=4):
    a.e('s_waitcnt vmcnt(0)')
    a.e('s_memrealtime s[68:69]')
    a.e('s_memtime s[74:75]')
    a.e('s_waitcnt lgkmcnt(0)')
    a.e('s_sub_u32 s74, s74, s72')
    a.e('s_getreg_b32 s71, hwreg(HW_REG_XCC_ID)')
    a.e('s_and_b32 s71, s71, 15')
    a.e('s_lshl_b32 s71, s71, 28')
    a.e('s_or_b32 s74, s74, s71')
    a.e('s_mul_i32 s70, s2, %d' % nw)
    a.e('s_add_u32 s70, s70, s%d' % sWave)
    a.e('s_lshl_b32 s70, s70, 5')
    a.e('s_add_u32 s70, s70, %d' % (TRACE_OFF + (KIDX[0] - 1) * TRACE_STRIDE))
    a.e('s_mov_b64 exec, 1')
    a.e('v_mov_b32 v0, s66'); a.e('v_mov_b32 v1, s68'); a.e('v_mov_b32 v2, s74'); a.e('v_mov_b32 v3, s80')
    a.e('v_mov_b32 v4, s81'); a.e('v_mov_b32 v5, s82'); a.e('v_mov_b32 v6, s83'); a.e('v_mov_b32 v7, s84')
    a.e('v_mov_b32 v8, s70')
    a.e('global_store_dwordx4 v8, v[0:3], s[4:5]')
    a.e('global_store_dwordx4 v8, v[4:7], s[4:5] offset:16')

def gen_attn(a, name='attn_kernel', cfg=None):
    cfg = cfg or {}
    DV = cfg.get('DV', 9)
    DK = cfg.get('DK', 7)
    BARPOS = cfg.get('BARPOS', 31 - DV + 4)
    WG = cfg.get('WAITGROUP', 4)
    DMA_SLOTS = cfg.get('DMA_SLOTS', [2, 6, 10, 14, 18, 22, 26, 30])
    NO_DMA = cfg.get('NO_DMA', False)
    NO_SM = cfg.get('NO_SM', False)
    STAMP = cfg.get('STAMP', False)
    S = [0, 16]; P = 32; RING = 40; NR = 16
    NEGM = 104
    vK = [112, 113]; vV = [114, 115]
    vD0, vD1, vL0, vL1, vMx, vT0, vT1, vLane16 = 116, 117, 118, 119, 120, 121, 122, 123
    vL = [vL0, vL1]
    def Sreg(b, kt, qs): return S[b] + (kt * 2 + qs) * 4
    def Obase(dt, qs): return (dt * 2 + qs) * 4
    def Oreg(dt, qs):
        o = Obase(dt, qs)
        return vr(128 + o, 4) if o < 128 else ar(o, 4)
    def Qreg(ks, qs): return ar((ks * 2 + qs) * 4, 4)
    sSRD = 8; sWave = 12; sM0 = 13; sDma = 14; sQ = 15; sI = 16; sN2 = 17; sValid = 18; sOut = 19; sMl = 20; sT0 = 21; sT1 = 22; sT2 = 23
    srd = sr(sSRD, 4)

    kernel_begin(a, name)
    a.e('s_cmp_ge_u32 s2, 256')
    a.e('s_cbranch_scc1 %s_end' % name)
    a.e('s_load_dwordx2 s[4:5], s[0:1], 80')
    if STAMP: stamp_begin(a)
    if cfg.get('CPF', 1):
        from common import code_prefetch
        code_prefetch(a, name, 124, 125, 1)
    a.e('v_lshrrev_b32 v1, 6, v0')
    a.e('v_and_b32 v2, 63, v0')
    a.e('v_readfirstlane_b32 s%d, v1' % sWave)
    a.e('v_lshlrev_b32 v%d, 4, v2' % vLane16)
    a.e('s_and_b32 s%d, s2, 7' % sT0)
    a.e('s_lshr_b32 s%d, s2, 3' % sT1)
    a.e('s_and_b32 s%d, s%d, 3' % (sT2, sT1))
    a.e('s_lshr_b32 s%d, s%d, 2' % (sT1, sT1))
    a.e('s_and_b32 s24, s%d, 3' % sT0)
    a.e('s_lshl_b32 s24, s24, 3')
    a.e('s_add_u32 s24, s24, s%d' % sT1)
    a.e('s_lshl_b32 s24, s24, 2')
    a.e('s_add_u32 s24, s24, s%d' % sWave)
    a.e('s_cmp_lt_u32 s24, 125')
    a.e('s_cselect_b32 s%d, 1, 0' % sValid)
    a.e('s_min_u32 s24, s24, 124')
    a.e('s_lshr_b32 s25, s%d, 2' % sT0)
    a.e('s_mul_i32 s25, s25, 125')
    a.e('s_add_u32 s24, s24, s25')
    a.e('s_lshl_b32 s%d, s24, 15' % sQ)
    a.e('s_mul_i32 s26, s%d, 250' % sT2)
    a.e('s_add_u32 s26, s26, s24')
    a.e('s_lshl_b32 s%d, s24, 17' % sOut)
    a.e('s_lshl_b32 s27, s%d, 10' % sT2)
    a.e('s_add_u32 s%d, s%d, s27' % (sOut, sOut))
    a.e('s_add_u32 s%d, s%d, %d' % (sOut, sOut, OP_OFF))
    a.e('s_lshl_b32 s%d, s26, 8' % sMl)
    a.e('s_add_u32 s%d, s%d, %d' % (sMl, sMl, ML_OFF))
    a.e('s_add_u32 s%d, s%d, %d' % (sQ, sQ, QF_OFF))
    a.e('s_mul_i32 s27, s%d, 31' % sT2)
    a.e('s_min_u32 s28, s%d, 1' % sT2)
    a.e('s_add_u32 s27, s27, s28')
    a.e('s_add_u32 s27, s27, s25')
    a.e('s_lshl_b32 s%d, s27, 15' % sDma)
    if XF_OFF: a.e('s_add_u32 s%d, s%d, %d' % (sDma, sDma, XF_OFF))
    a.e('s_sub_u32 s%d, 31, s28' % sN2)
    a.e('s_lshl_b32 s%d, s%d, 13' % (sM0, sWave))
    a.e('v_add_u32 v%d, s%d, v%d' % (vD0, sM0, vLane16))
    a.e('v_add_u32 v%d, 0x1000, v%d' % (vD1, vD0))
    sG, sRd0, sRd1 = 29, 30, 31
    a.e('s_and_b32 s%d, s%d, 3' % (sG, sT0))
    a.e('s_lshl_b32 s%d, s%d, 5' % (sG, sG))
    a.e('s_lshr_b32 s34, s2, 3')
    a.e('s_add_u32 s%d, s%d, s34' % (sG, sG))
    a.e('s_add_u32 s%d, s%d, s25' % (sG, sG))
    a.e('s_lshl_b32 s%d, s%d, 15' % (sG, sG))
    a.e('s_add_u32 s35, s%d, %d' % (sG, U_OFF))
    a.e('s_add_u32 s%d, s%d, %d' % (sG, sG, G_OFF))
    a.e('s_sub_u32 s%d, s%d, 3' % (sRd0, sN2))
    a.e('s_sub_u32 s%d, s%d, 2' % (sRd1, sN2))
    a.e('v_lshrrev_b32 v3, 4, v2')
    a.e('v_and_b32 v4, 15, v2')
    a.e('v_and_b32 v5, 1, v3')
    a.e('v_mul_u32_u24 v5, 12, v5')
    a.e('v_xor_b32 v5, v4, v5')
    a.e('v_lshlrev_b32 v5, 4, v5')
    a.e('v_lshl_add_u32 v%d, v3, 9, v5' % vK[0])
    a.e('v_add_u32 v%d, 0x10000, v%d' % (vK[1], vK[0]))
    a.e('v_lshrrev_b32 v4, 2, v2')
    a.e('v_bfe_u32 v5, v2, 1, 1')
    a.e('v_and_b32 v6, 1, v2')
    a.e('v_mul_u32_u24 v7, 12, v5')
    a.e('v_xor_b32 v4, v4, v7')
    a.e('v_lshlrev_b32 v4, 4, v4')
    a.e('v_lshl_add_u32 v4, v5, 9, v4')
    a.e('v_lshl_add_u32 v%d, v6, 3, v4' % vV[0])
    a.e('v_add_u32 v%d, 0x10000, v%d' % (vV[1], vV[0]))
    a.e('v_lshlrev_b32 v126, 7, v2')
    a.e('v_lshlrev_b32 v127, 7, v0')
    zl = ['v_mov_b32 v%d, 0' % r for r in range(128, 256)] + ['v_accvgpr_write_b32 a%d, 0' % r for r in range(128, 256)]
    def zero(n):
        for _ in range(n):
            if zl: a.e(zl.pop(0))
    zero(cfg.get('AT_Z0', 64))
    a.e('s_waitcnt lgkmcnt(0)')
    a.e('s_mov_b32 s%d, s4' % sSRD)
    a.e('s_and_b32 s%d, s5, 0xffff' % (sSRD + 1))
    a.e('s_mov_b32 s%d, %d' % (sSRD + 2, WS_BYTES))
    a.e('s_mov_b32 s%d, 0x00020000' % (sSRD + 3))

    def dma_piece(stage, j, redirect=False):
        out = []
        if j % 4 == 0:
            out.append('s_add_u32 m0, s%d, %d' % (sM0, stage * 32768 + (j // 4) * 4096))
        out.append('buffer_load_dwordx4 v%d, %s, s%d offen offset:%d lds' % (vD0 if j < 4 else vD1, srd, sDma, (j % 4) * 1024))
        if j == 7:
            out.append('s_add_u32 s%d, s%d, 0x8000' % (sDma, sDma))
            if redirect and cfg.get('AT_REDIR', 1):
                out.append('s_cmp_eq_u32 s%d, s%d' % (sI, sRd0))
                out.append('s_cselect_b32 s%d, s%d, s%d' % (sDma, sG, sDma))
                out.append('s_cmp_eq_u32 s%d, s%d' % (sI, sRd1))
                out.append('s_cselect_b32 s%d, s35, s%d' % (sDma, sDma))
        return out
    def dma_tile(stage, z=0):
        for j in range(8):
            for t in dma_piece(stage, j): a.e(t)
            zero(z)

    if cfg.get('AT_QT', 0):
        a.e('s_lshl_b32 s34, s%d, 13' % sT2)
        a.e('s_add_u32 s34, s34, s%d' % sQ)
        a.e('buffer_load_dword v125, v126, %s, s34 offen' % srd)
    dma_tile(0)
    for f in range(32):
        if f and f % 4 == 0:
            a.e('s_add_u32 s%d, s%d, 0x1000' % (sQ, sQ))
        a.e('buffer_load_dwordx4 %s, v%d, %s, s%d offen offset:%d' % (ar(4 * f, 4), vLane16, srd, sQ, (f % 4) * 1024))
        zero(6)
    zero(1000)
    a.e('v_mov_b32 v%d, 0' % vL0)
    a.e('v_mov_b32 v%d, 0' % vL1)
    a.e('s_mov_b32 s%d, 0' % sI)

    q = LdsQ()
    def ring(n): return RING + 4 * ((n % 64) % NR)
    def kread(stage, n):
        reg = ring(n); ks, kt = n // 2, n % 2
        return [('ds', 'ds_read_b128 %s, v%d offset:%d' % (vr(reg, 4), vK[stage >> 1], (stage & 1) * 32768 + ks * 2048 + kt * 256), [reg])]
    def vread(stage, dt):
        reg = ring(32 + dt)
        off = (stage & 1) * 32768 + dt * 1024
        return [('ds', 'ds_read_b64_tr_b16 %s, v%d offset:%d' % (vr(reg, 2), vV[stage >> 1], off), [reg + 1000]),
                ('ds', 'ds_read_b64_tr_b16 %s, v%d offset:%d' % (vr(reg + 2, 2), vV[stage >> 1], off + 256), [reg])]
    chk = [True]
    def emit_item(it):
        if isinstance(it, tuple):
            a.e(it[1]); q.issue(it[2], chk[0])
        else:
            a.e(it)

    a.e('s_waitcnt vmcnt(32)')
    a.e('s_barrier')
    PD = 8
    for n in range(PD):
        for it in kread(0, n): emit_item(it)
    late = [dma_piece(1, j) for j in range(8)] + [dma_piece(2, j) for j in range(8)]
    nl = 0
    for n in range(32):
        ks, kt = n // 2, n % 2
        if n + PD < 32:
            for it in kread(0, n + PD): emit_item(it)
        if kt == 0:
            a.e('s_waitcnt vmcnt(%d)' % (nl + 30 - 2 * ks))
        q.wait_for(a, q.need([ring(n)]))
        for qs in range(2):
            a.e('%s %s, %s, %s, %s' % (MF, vr(Sreg(0, kt, qs), 4), vr(ring(n), 4), Qreg(ks, qs), '0' if ks == 0 else vr(Sreg(0, kt, qs), 4)))
        q.consume(ring(n))
        if (n < 8 or n % 2 == 1) and late:
            for t in late.pop(0): a.e(t)
            nl += 1
    assert not late
    a.e('s_waitcnt vmcnt(8)')
    a.e('s_barrier')
    for r_ in range(4): a.e('v_mov_b32 v%d, -1' % (P + r_))
    a.e('s_lshl_b32 s34, s2, 15')
    a.e('s_add_u32 s34, s34, %d' % PO_OFF)
    for j in range(8):
        a.e('buffer_store_dwordx4 %s, v%d, %s, s34 offen offset:%d' % (vr(P, 4), vD0 if j < 4 else vD1, srd, (j % 4) * 1024))

    n_tail = cfg.get('NTAIL', 8)
    for n in range(n_tail):
        for it in kread(1, n): emit_item(it)

    def head_wait():
        idx = max(q.need([ring(k2)]) for k2 in range(WG))
        assert idx > q.done
        q.wait_for(a, idx)
    def rowmax(b, qs, dst, tmp):
        r0, r1 = Sreg(b, 0, qs), Sreg(b, 1, qs)
        a.e('v_max3_f32 v%d, v%d, v%d, v%d' % (dst, r0, r0 + 1, r0 + 2))
        a.e('v_max3_f32 v%d, v%d, v%d, v%d' % (dst, dst, r0 + 3, r1))
        a.e('v_max3_f32 v%d, v%d, v%d, v%d' % (dst, dst, r1 + 1, r1 + 2))
        a.e('v_max_f32 v%d, v%d, v%d' % (dst, dst, r1 + 3))
        a.e('v_mov_b32 v%d, v%d' % (tmp, dst))
        a.e('v_permlane16_swap_b32 v%d, v%d' % (tmp, dst))
        a.e('v_max_f32 v%d, v%d, v%d' % (dst, dst, tmp))
        a.e('v_mov_b32 v%d, v%d' % (tmp, dst))
        a.e('v_permlane32_swap_b32 v%d, v%d' % (tmp, dst))
        a.e('v_max_f32 v%d, v%d, v%d' % (dst, dst, tmp))
    for qs in range(2):
        rowmax(0, qs, vMx, vT0)
        for kt in range(2):
            for r in range(4):
                a.e('v_sub_f32 v%d, v%d, v%d' % (Sreg(0, kt, qs) + r, Sreg(0, kt, qs) + r, vMx))
        for r in range(4):
            a.e('v_sub_f32 v%d, 0, v%d' % (NEGM + 4 * qs + r, vMx))

    def softmax_items(b):
        items = []
        for qs in range(2):
            for kt in range(2):
                for pr in range(2):
                    r0 = Sreg(b, kt, qs) + 2 * pr; r1 = r0 + 1
                    items.append('v_exp_f32 v%d, v%d' % (r0, r0))
                    items.append('v_exp_f32 v%d, v%d' % (r1, r1))
                    items.append('v_add_f32 v%d, v%d, v%d' % (vL[qs], vL[qs], r0))
                    items.append('v_cvt_pk_bf16_f32 v%d, v%d, v%d' % (P + 4 * qs + 2 * kt + pr, r0, r1))
                    items.append('v_add_f32 v%d, v%d, v%d' % (vL[qs], vL[qs], r1))
        return items

    LAT = cfg.get('LAT', 8)
    EARLY = cfg.get('EARLY', 22)
    BARG = cfg.get('BARG', 112)
    def body(u, final=False):
        bc, bn = u % 2, (u + 1) % 2
        stK, stV = (u + 1) % 4, u
        mf = [None] * 128
        need = [None] * 64
        for n in range(32):
            if final: break
            ks, kt = n // 2, n % 2
            for qs in range(2):
                mf[2 * n + qs] = '%s %s, %s, %s, %s' % (MF, vr(Sreg(bn, kt, qs), 4), vr(ring(n), 4), Qreg(ks, qs), vr(NEGM + 4 * qs, 4) if ks == 0 else vr(Sreg(bn, kt, qs), 4))
            need[n] = ring(n)
        for dt in range(32):
            for qs in range(2):
                mf[64 + 2 * dt + qs] = '%s %s, %s, %s, %s' % (MF, Oreg(dt, qs), vr(ring(32 + dt), 4), vr(P + 4 * qs, 4), Oreg(dt, qs))
            need[32 + dt] = ring(32 + dt)
        pre = [[] for _ in range(129)]
        if final:
            sm = [] if NO_SM else softmax_items(bc)
            for dt in range(32):
                its = vread(stV, dt)
                sl = 32 + dt - 9
                pre[2 * sl] += [its[0]]; pre[2 * sl + 1] += [its[1]]
            for j, it in enumerate(sm):
                pre[2 * (32 - 9) + (j * 18) // len(sm)].append(it)
            waits = set(range(64, 128, 4))
        else:
            cap = [2] * 128
            def wgap(k):
                g = 2 * (k - k % WG)
                return g
            waits = set(wgap(k) for k in range(WG, 64) if not (BARG <= wgap(k) < 128))
            for g in waits: cap[g] -= 1
            cap[BARG] -= 2; pre[BARG].append(('bar',))
            cap[0] -= 1 if u == 1 else 2
            cap[127] -= 1
            pre[125].append('s_add_u32 s%d, s%d, 1' % (sI, sI)); cap[125] -= 1
            if u in (1, 2):
                pre[126].append('s_cmp_eq_u32 s%d, s%d' % (sI, sN2)); cap[126] -= 1
            ds = []
            def ring_ok(k):
                return 2 * (k - NR) + 2
            for n in range(n_tail, 32):
                for it in kread(stK, n): ds.append((it, max(0, wgap(n) - EARLY, ring_ok(n)), wgap(n) - LAT))
            for dt in range(32):
                k = 32 + dt
                w = min(wgap(k), BARG)
                for it in vread(stV, dt): ds.append((it, max(w - EARLY, ring_ok(k)), w - LAT))
            for n in range(n_tail):
                for it in kread((u + 2) % 4, n): ds.append((it, max(BARG + 1, ring_ok(64 + n)), 124))
            dl = [d[2] for d in ds]
            for x in range(len(ds) - 2, -1, -1):
                dl[x] = min(dl[x], dl[x + 1] - 1)
            sm = [] if NO_SM else [(it, 2 if it.startswith('v_exp') else 1, 1) for it in softmax_items(bc)]
            Sn = S[bn]
            mx = ['v_max3_f32 v%d, v%d, v%d, v%d' % (vMx, Sn, Sn + 1, Sn + 2)]
            for r in range(3, 15, 2):
                mx.append('v_max3_f32 v%d, v%d, v%d, v%d' % (vMx, vMx, Sn + r, Sn + r + 1))
            mx.append('v_max_f32 v%d, v%d, v%d' % (vMx, vMx, Sn + 15))
            mx.append('v_cmp_lt_f32 vcc, 0x41000000, v%d' % vMx)
            sm += [(it, 1, cfg.get('MX_START', 70)) for it in mx]
            dm = []
            if not NO_DMA:
                g0, gs = cfg.get('DMA_START', 66), cfg.get('DMA_STEP', 5)
                for j in range(8):
                    for x, it in enumerate(dma_piece((u + 3) % 4, j, True)):
                        dm.append((it, g0 + gs * j + (-1 if it.startswith('s_add_u32 m0') else 0)))
            di = si = mi = 0
            last_m0 = -9
            for g in range(128):
                used_ds = False
                while cap[g] > 0:
                    ds_ready = di < len(ds) and ds[di][1] <= g and not used_ds
                    ds_urgent = ds_ready and dl[di] <= g + cfg.get('URG', 0)
                    sm_ready = si < len(sm) and sm[si][2] <= g and sm[si][1] <= cap[g]
                    dm_ready = mi < len(dm) and dm[mi][1] <= g and not (dm[mi][0].startswith('buffer') and (last_m0 == g or (used_ds and cfg.get('DMA_EXCL'))))
                    if ds_urgent:
                        pre[g].append(ds[di][0]); di += 1; cap[g] -= 1; used_ds = True
                    elif sm_ready and sm[si][1] == 2:
                        pre[g].append(sm[si][0]); cap[g] -= 2; si += 1
                    elif dm_ready:
                        if dm[mi][0].startswith('s_add_u32 m0'): last_m0 = g
                        if dm[mi][0].startswith('buffer') and cfg.get('DMA_EXCL'): used_ds = True
                        pre[g].append(dm[mi][0]); mi += 1; cap[g] -= 1
                    elif ds_ready:
                        pre[g].append(ds[di][0]); di += 1; cap[g] -= 1; used_ds = True
                    elif sm_ready:
                        pre[g].append(sm[si][0]); cap[g] -= 1; si += 1
                    else:
                        break
                if g == 62: assert NO_SM or si >= 40, ('softmax not finished in phase A', si)
                if g == BARG - 1: assert mi == len(dm), 'dma not finished'
                if di < len(ds): assert ds[di][2] + 4 > g, ('ds late', di, g, ds[di])
            assert di == len(ds) and si == len(sm), (di, len(ds), si, len(sm))
            if u == 0 and cfg.get('SHOW'):
                for g in range(128):
                    print(g, 'W' if g in waits else ' ', [ (x[1] if len(x) > 1 else 'BAR').split()[0] if isinstance(x, tuple) else x.split()[0] for x in pre[g]])
        for pos in range(128):
            k = pos // 2
            for it in pre[pos]:
                if isinstance(it, tuple) and it[0] == 'bar':
                    a.e('s_waitcnt vmcnt(%d) lgkmcnt(0)' % (0 if NO_DMA else 8)); q.drained()
                    a.e('s_barrier')
                else:
                    emit_item(it)
            if mf[pos] is None: continue
            if pos == 127 and not final:
                head_wait()
            if pos in waits:
                idx = 0
                for k2 in range(k, min(64, k + (2 if final else WG))):
                    assert need[k2] in q.pending, ('not issued', k2, pos)
                    idx = max(idx, q.need([need[k2]]))
                q.wait_for(a, idx)
            assert q.need([need[k]]) <= q.done and need[k] in q.pending, ('uncovered', pos)
            a.e(mf[pos])
            if pos % 2 == 1: q.consume(need[k])

    def rare(u):
        bn = (u + 1) % 2
        a.label('%s_rare%d' % (name, u), reset=True)
        a.e('s_nop 15')
        for qs in range(2):
            rowmax(bn, qs, vMx, vT0)
            a.e('v_max_f32 v%d, 0, v%d' % (vMx, vMx))
            a.e('v_sub_f32 v%d, 0, v%d' % (vT0, vMx))
            a.e('v_exp_f32 v%d, v%d' % (vT0, vT0))
            for kt in range(2):
                for r in range(4):
                    a.e('v_sub_f32 v%d, v%d, v%d' % (Sreg(bn, kt, qs) + r, Sreg(bn, kt, qs) + r, vMx))
            for r in range(4):
                a.e('v_sub_f32 v%d, v%d, v%d' % (NEGM + 4 * qs + r, NEGM + 4 * qs + r, vMx))
            a.e('v_mul_f32 v%d, v%d, v%d' % (vL[qs], vL[qs], vT0))
            for dt in range(32):
                o = Obase(dt, qs)
                if o < 128:
                    for j in range(4): a.e('v_mul_f32 v%d, v%d, v%d' % (128 + o + j, 128 + o + j, vT0))
                else:
                    for j in range(4): a.e('v_accvgpr_read_b32 v%d, a%d' % (P + j, o + j))
                    for j in range(4): a.e('v_mul_f32 v%d, v%d, v%d' % (P + j, P + j, vT0))
                    for j in range(4): a.e('v_accvgpr_write_b32 a%d, v%d' % (o + j, P + j))
        a.e('s_nop 3')
        a.e('s_branch %s_back%d' % (name, u))

    head_wait()
    if STAMP: stamp_mid(a, 76)
    a.raw('.p2align 6')
    a.label('%s_loop' % name)
    a.record = []
    qstate0 = q.state()
    saved = {}
    for u in range(4):
        body(u)
        a.e('s_cbranch_vccnz %s_rare%d' % (name, u))
        a.label('%s_back%d' % (name, u))
        if u in (1, 2):
            a.e('s_cbranch_scc1 %s_final%d' % (name, u + 1))
            saved[u + 1] = (copy.deepcopy(q), list(a.hist))
        assert q.state() == qstate0, (q.state(), qstate0)
    a.e('s_branch %s_loop' % name)
    rec = [x[1] for x in a.record if x[0] == 'ins']
    a.record = None
    viol = check_seq(rec + rec[:40])
    assert not viol, viol
    loop_len = len(rec)

    for u in (2, 3):
        a.label('%s_final%d' % (name, u))
        q.__dict__.update(saved[u][0].__dict__); a.hist = saved[u][1]
        q.pending = set()
        if cfg.get('AT_TOUCH', 1):
            a.e('s_lshr_b32 s34, s2, 3')
            a.e('s_lshl_b32 s34, s34, 15')
            a.e('s_add_u32 s34, s34, %d' % W2_OFF)
            a.e('buffer_load_dword v125, v127, %s, s34 offen' % srd)
            a.e('s_sub_u32 s34, s34, %d' % W2_OFF)
            a.e('s_min_u32 s34, s34, %d' % (4 << 15))
            a.e('s_add_u32 s34, s34, %d' % TPC_OFF)
            a.e('buffer_load_dword v125, v127, %s, s34 offen' % srd)
            a.e('s_getpc_b64 s[60:61]')
            lbl = '%s_np%d' % (name, u)
            a.label(lbl)
            a.e('s_add_u32 s60, s60, tail_kernel-%s' % lbl)
            a.e('s_addc_u32 s61, s61, 0')
            a.e('v_min_u32 v124, tail_kernel_end-tail_kernel, v127')
            a.e('global_load_dword v125, v124, s[60:61]')
        body(u, final=True)
        if u == 2:
            a.e('s_branch %s_epi' % name)
    a.label('%s_epi' % name)
    if STAMP: stamp_mid(a, 77)
    a.e('s_cmp_eq_u32 s%d, 0' % sValid)
    a.e('s_cbranch_scc1 %s_end' % name)
    a.e('s_nop 15')
    for qs in range(2):
        l = vL[qs]
        a.e('v_mov_b32 v%d, v%d' % (vT0, l))
        a.e('v_permlane16_swap_b32 v%d, v%d' % (vT0, l))
        a.e('v_add_f32 v%d, v%d, v%d' % (l, l, vT0))
        a.e('v_mov_b32 v%d, v%d' % (vT0, l))
        a.e('v_permlane32_swap_b32 v%d, v%d' % (vT0, l))
        a.e('v_add_f32 v%d, v%d, v%d' % (l, l, vT0))
    a.e('v_cmp_gt_u32 vcc, 0x100, v%d' % vLane16)
    a.e('v_cndmask_b32 v0, v%d, v%d, vcc' % (NEGM + 4, NEGM))
    a.e('v_cndmask_b32 v1, v%d, v%d, vcc' % (vL1, vL0))
    a.e('v_sub_f32 v0, 0, v0')
    a.e('v_lshrrev_b32 v2, 1, v%d' % vLane16)
    a.e('s_mov_b64 exec, 0xffffffff')
    a.e('buffer_store_dwordx2 v[0:1], v2, %s, s%d offen' % (srd, sMl))
    a.e('s_mov_b64 exec, -1')
    a.e('v_rcp_f32 v4, v%d' % vL0)
    a.e('v_rcp_f32 v5, v%d' % vL1)
    a.dense = True
    t = 0
    for D in range(16):
        for qs in range(2):
            f = D * 2 + qs
            tmp = RING + 4 * (t % 8); t += 1
            srcs = []
            for e in range(2):
                o = Obase(2 * D + e, qs)
                if o < 128:
                    srcs.append(128 + o)
                else:
                    s_ = 8 + 8 * (f % 3) + 4 * e
                    for j in range(4): a.e('v_accvgpr_read_b32 v%d, a%d' % (s_ + j, o + j))
                    srcs.append(s_)
            for e in range(2):
                for j in range(2):
                    r_ = vr(srcs[e] + 2 * j, 2)
                    a.e('v_pk_mul_f32 %s, %s, v[4:5] op_sel:[0,%d] op_sel_hi:[1,%d]' % (r_, r_, qs, qs))
            for e in range(2):
                for j in range(2):
                    a.e('v_cvt_pk_f16_f32 v%d, v%d, v%d' % (tmp + 2 * e + j, srcs[e] + 2 * j, srcs[e] + 2 * j + 1))
            if f: a.e('s_add_u32 s%d, s%d, 0x1000' % (sOut, sOut))
            a.e('buffer_store_dwordx4 %s, v%d, %s, s%d offen' % (vr(tmp, 4), vLane16, srd, sOut))
    a.dense = False
    if cfg.get('AT_BACK', 0):
        if cfg.get('AT_BACK31', 1):
            a.e('s_cmp_eq_u32 s%d, 31' % sN2)
            a.e('s_cbranch_scc1 %s_nb' % name)
        a.e('s_sub_u32 s%d, s%d, 0x7000' % (sOut, sOut))
        a.e('s_waitcnt vmcnt(%d)' % (32 - 8 * cfg['AT_BACK']))
        for j in range(cfg['AT_BACK']):
            a.e('buffer_load_dword v125, v126, %s, s%d offen' % (srd, sOut))
            a.e('s_add_u32 s%d, s%d, 0x2000' % (sOut, sOut))
        a.label('%s_nb' % name)
    if STAMP: stamp_end(a, sWave, '%s_end' % name)
    a.label('%s_end' % name)
    a.e('s_endpgm')
    for u in range(4):
        rare(u)
    return dict(name=name, vgpr=512, sgpr=96, accum=256, grid=256, block=256, lds=131072, loop_len=loop_len)
```

```python
from asmlib import *
from layout import *
MF = 'v_mfma_f32_16x16x32_bf16'

def make_srd(a, d, ptr, nbytes):
    a.e('s_mov_b32 s%d, s%d' % (d, ptr))
    a.e('s_and_b32 s%d, s%d, 0xffff' % (d + 1, ptr + 1))
    a.e('s_mov_b32 s%d, %d' % (d + 2, nbytes))
    a.e('s_mov_b32 s%d, 0x00020000' % (d + 3))

class VmQ:
    def __init__(self): self.n = 0; self.done = 0; self.where = {}
    def issue(self, key=None):
        self.n += 1
        if key is not None: self.where[key] = self.n
    def wait(self, a, key):
        idx = self.where[key]
        if idx <= self.done: return
        N = min(self.n - idx, 63)
        a.e('s_waitcnt vmcnt(%d)' % N); self.done = self.n - N
    def wait_all(self, a):
        if self.done < self.n:
            a.e('s_waitcnt vmcnt(0)'); self.done = self.n

class LgQ(VmQ):
    def wait(self, a, key):
        idx = self.where[key]
        if idx <= self.done: return
        N = min(self.n - idx, 15)
        a.e('s_waitcnt lgkmcnt(%d)' % N); self.done = self.n - N
    def wait_all(self, a):
        if self.done < self.n:
            a.e('s_waitcnt lgkmcnt(0)'); self.done = self.n

def quad_reduce(a, op, reg, tmp):
    a.e('v_mov_b32 v%d, v%d' % (tmp, reg))
    a.e('v_permlane16_swap_b32 v%d, v%d' % (tmp, reg))
    a.e('%s v%d, v%d, v%d' % (op, reg, reg, tmp))
    a.e('v_mov_b32 v%d, v%d' % (tmp, reg))
    a.e('v_permlane32_swap_b32 v%d, v%d' % (tmp, reg))
    a.e('%s v%d, v%d, v%d' % (op, reg, reg, tmp))

import struct
def f2u(x): return struct.unpack('<I', struct.pack('<f', x))[0]
def fhex(x): return '0x%08x' % f2u(x)

def code_prefetch(a, name, vtmp, vdst, n, sp=60, start=None, end=None, back=True, part_sgpr=None):
    start = start or name; end = end or (name + '_end')
    a.e('s_getpc_b64 s[%d:%d]' % (sp, sp + 1))
    lbl = '%s_pf%d' % (name, len(a.lines))
    a.label(lbl)
    a.e('s_add_u32 s%d, s%d, %s-%s' % (sp, sp, start, lbl))
    a.e('s_addc_u32 s%d, s%d, %s' % (sp + 1, sp + 1, '-1' if back else '0'))
    a.e('v_lshlrev_b32 v%d, 7, v0' % vtmp)
    if part_sgpr is not None: a.e('v_add_u32 v%d, s%d, v%d' % (vtmp, part_sgpr, vtmp))
    for k in range(n):
        if k: a.e('v_add_u32 v%d, 0x8000, v%d' % (vtmp, vtmp))
        a.e('v_min_u32 v%d, %s-%s, v%d' % (vdst, end, start, vtmp))
        a.e('global_load_dword v%d, v%d, s[%d:%d]' % (vdst, vdst, sp, sp + 1))
        vdst += 1
    return n

def l2_touch(a, srd, base, nbytes, vtmp, vdst, stmp, vq=None, gran=128, base_sgpr=None, nparts=32, part_expr=None):
    per = 256 * gran
    sh = {128: 7, 64: 6}[gran]
    if part_expr is None:
        a.e('s_lshr_b32 s%d, s2, 3' % stmp)
    else:
        part_expr(stmp)
    a.e('s_mul_i32 s%d, s%d, %d' % (stmp, stmp, per))
    if base_sgpr is not None: a.e('s_add_u32 s%d, s%d, s%d' % (stmp, stmp, base_sgpr))
    a.e('s_add_u32 s%d, s%d, %d' % (stmp, stmp, base))
    a.e('v_lshlrev_b32 v%d, %d, v0' % (vtmp, sh))
    n = (nbytes + per * nparts - 1) // (per * nparts)
    for k in range(n):
        if k: a.e('s_add_u32 s%d, s%d, %d' % (stmp, stmp, per * nparts))
        a.e('buffer_load_dword v%d, v%d, %s, s%d offen' % (vdst, vtmp, srd, stmp))
        if vq is not None: vq.issue()

class Stream:
    def __init__(self, a, vq, pace):
        self.a = a; self.vq = vq; self.pace = pace; self.q = []; self.last = -10**9; self.issued = set()
    def add(self, pre, ins, key, ready=None, cost=1.0):
        self.q.append((pre, ins, key, ready, cost))
    def _issue(self):
        pre, ins, key, ready, cost = self.q.pop(0)
        for p in pre: self.a.e(p)
        self.a.e(ins); self.vq.issue(key); self.issued.add(key)
        self.last = max(self.last + self.pace, self.a.clock - self.pace // 2) + (cost - 1.0) * self.pace
    def tick(self):
        if self.q and self.a.clock - self.last >= self.pace and (self.q[0][3] is None or self.q[0][3]()):
            self._issue(); return True
        return False
    def force(self, key):
        while key not in self.issued:
            assert self.q[0][3] is None or self.q[0][3](), ('stream blocked', self.q[0][2], key)
            self._issue()
    def burst(self, n):
        for _ in range(n):
            if self.q and (self.q[0][3] is None or self.q[0][3]()): self._issue()
    def wait(self, key):
        self.force(key); self.vq.wait(self.a, key)

class MStream:
    def __init__(self, a, vq, pace, nq):
        self.a = a; self.vq = vq; self.pace = pace; self.qs = [[] for _ in range(nq)]; self.last = -10**9; self.issued = set(); self.loc = {}; self.look = 24; self.pace2 = 80
    def add(self, qi, need, pre, ins, key, ready=None):
        self.qs[qi].append((need, pre, ins, key, ready)); self.loc[key] = qi
    def _issue(self, qi):
        need, pre, ins, key, ready = self.qs[qi].pop(0)
        for p in pre:
            self.a.e(p)
            if p.startswith('buffer_'): self.vq.issue()
        self.a.e(ins); self.vq.issue(key); self.issued.add(key)
        self.last = self.a.clock
    def _best(self):
        c = [(q[0][0], i) for i, q in enumerate(self.qs) if q and (q[0][4] is None or q[0][4]())]
        return min(c)[1] if c else None
    def tick(self):
        if self.a.clock - self.last < self.pace: return False
        if self.vq.n - self.vq.done >= self.look and self.a.clock - self.last < self.pace2: return False
        b = self._best()
        if b is None: return False
        self._issue(b); return True
    def burst(self, n):
        for _ in range(n):
            b = self._best()
            if b is None: return
            self._issue(b)
    def wait(self, key):
        late = 0
        while key not in self.issued:
            q = self.qs[self.loc[key]]
            assert q[0][4] is None or q[0][4](), ('stream blocked', q[0][3], key)
            self._issue(self.loc[key]); late += 1
        if late: print('  WARNING: late issue', key, late)
        self.slack = getattr(self, 'slack', []) + [(key, self.vq.n - self.vq.where[key])]
        self.vq.wait(self.a, key)
    def empty(self): return not any(self.qs)

class F:
    __slots__ = ('kind', 'text', 'post', 'fn', 'ins')
    def __init__(self, kind, text=None, post=None, fn=None):
        self.kind = kind; self.text = text; self.post = post; self.fn = fn
        self.ins = Ins(text) if text else None
    def emit(self, a):
        n0 = len(a.sizes)
        if self.fn: self.fn()
        if self.text: a.e(self.text)
        if self.post: self.post()
        return len(a.sizes) - n0
def FV(text): return F('v', text)
def FS(text): return F('s', text)
def FD(text, lq, key=None): return F('d', text, post=lambda: lq.issue(key))
def FW(fn): return F('w', fn=fn)
def FM(text, vq, key=None): return F('m', text, post=lambda: vq.issue(key))
def indep(x, y):
    a_, b_ = x.ins, y.ins
    return not (a_.w & (b_.r | b_.w)) and not (a_.r & b_.w)

class GStream(MStream):
    def __init__(self, *k):
        MStream.__init__(self, *k); self.cur = []
    def _emit1(self):
        t, key = self.cur.pop(0)
        self.a.e(t)
        if t.startswith('buffer_') or t.startswith('global_'):
            self.vq.issue(key); self.last = self.a.clock
            if key is not None: self.issued.add(key)
    def flush(self):
        while self.cur: self._emit1()
    def _issue(self, qi):
        self.flush(); self._load(qi); self.flush()
    def _load(self, qi):
        need, pre, ins, key, ready = self.qs[qi].pop(0)
        self.cur = [(p, None) for p in pre] + [(ins, key)]
    def want(self):
        if not self.cur:
            lead = 16
            if self.a.clock + lead - self.last < self.pace: return None
            if self.vq.n - self.vq.done >= self.look and self.a.clock + lead - self.last < self.pace2: return None
            b = self._best()
            if b is None: return None
            self._load(b)
        return self.cur[0][0]
    def wait(self, key):
        if key not in self.issued: self.flush()
        MStream.wait(self, key)
    def tick(self):
        if self.cur: self.flush(); return True
        return MStream.tick(self)
    def empty(self): return not self.cur and MStream.empty(self)

class Sched:
    def __init__(self, a, st):
        self.a = a; self.st = st; self.q = []; self.vmcap = 2
    def add(self, items, front=False):
        if front: self.q[0:0] = items
        else: self.q.extend(items)
    def flush(self):
        while self.q: self.gap(10**6, vm=False)
    def gap(self, cap=2, vm=True):
        a, st, q = self.a, self.st, self.q
        used = 0; lastv = False
        if cap <= 0: return 0
        if q and q[0].kind == 'm':
            q.pop(0).emit(a); used += 2
        elif vm and st is not None:
            h = st.want()
            if h is not None and not h.startswith('s_') and cap >= self.vmcap:
                st._emit1(); used += 2
        while used < cap:
            h = st.want() if (vm and st is not None) else None
            if q and q[0].kind == 'd' and not lastv:
                used += q.pop(0).emit(a); continue
            if h is not None and h.startswith('s_'):
                st._emit1(); used += 1; lastv = False; continue
            if not q: break
            it = q[0]
            if it.kind in 'dm':
                if cap > 1000: used += q.pop(0).emit(a); lastv = False; continue
                j = 1
                while j < len(q) and q[j].kind in 'dm': j += 1
                if j < len(q) and j <= 3 and q[j].kind == 'v' and all(indep(q[i], q[j]) for i in range(j)):
                    used += q.pop(j).emit(a); lastv = True; continue
                break
            if it.kind == 'v' and used == 0 and cap > 1 and len(q) > 1 and q[1].kind == 'd' and indep(it, q[1]):
                used += q.pop(1).emit(a); continue
            n = q.pop(0).emit(a); used += n
            if n: lastv = (it.kind == 'v')
        return used
```

```python
import math
from common import *
from attn16 import stamp_begin, stamp_mid, stamp_end

N_M, N_VO, N_RL, N_DW, N_TP = 128, 64, 40, 0, 12
P = 1040

def gen_prep(a, name='prep_kernel', cfg=None):
    cfg = cfg or {}
    STAMP = cfg.get('STAMP', False)
    total = N_M + N_VO + N_RL + N_DW + N_TP
    kernel_begin(a, name)
    a.e('s_cmp_ge_u32 s2, 256')
    a.e('s_cbranch_scc1 %s_end' % name)
    a.e('s_load_dwordx16 s[16:31], s[0:1], 0')
    a.e('s_load_dwordx2 s[4:5], s[0:1], 80')
    if STAMP: stamp_begin(a)
    if cfg.get('CPF', 1):
        a.e('s_lshr_b32 s62, s2, 3')
        a.e('s_min_u32 s62, s62, 5')
        a.e('s_lshl_b32 s62, s62, 15')
        code_prefetch(a, name, 120, 121, 1, end=cfg.get('LAST_END', 'tail_kernel_end'), part_sgpr=62)
    a.e('v_lshrrev_b32 v1, 6, v0')
    a.e('v_and_b32 v2, 63, v0')
    a.e('v_readfirstlane_b32 s3, v1')
    a.e('v_lshlrev_b32 v3, 4, v2')
    a.e('v_lshrrev_b32 v4, 4, v2')
    a.e('v_and_b32 v5, 15, v2')
    a.e('s_waitcnt lgkmcnt(0)')
    make_srd(a, 8, 4, WS_BYTES)
    def xtouch():
        if not cfg.get('XTOUCH', 0): return
        make_srd(a, 52, 16, 8192000)
        a.e('s_and_b32 s56, s2, 7')
        a.e('s_lshl_b32 s56, s56, 5')
        a.e('s_lshr_b32 s57, s2, 3')
        a.e('s_add_u32 s56, s56, s57')
        a.e('s_lshl_b32 s56, s56, 15')
        a.e('v_lshlrev_b32 v122, 7, v0')
        a.e('buffer_load_dword v123, v122, s[52:55], s56 offen')
    ws = 's[8:11]'
    a.e('s_cmp_lt_u32 s2, %d' % N_M)
    a.e('s_cbranch_scc1 %s_m' % name)
    a.e('s_cmp_lt_u32 s2, %d' % (N_M + N_VO))
    a.e('s_cbranch_scc1 %s_vo' % name)
    a.e('s_cmp_lt_u32 s2, %d' % (N_M + N_VO + N_RL))
    a.e('s_cbranch_scc1 %s_rl' % name)
    a.e('s_cmp_ge_u32 s2, %d' % total)
    a.e('s_cbranch_scc1 %s_xt' % name)

    a.e('s_sub_u32 s6, s2, %d' % (N_M + N_VO + N_RL + N_DW))
    a.e('s_cmp_lt_u32 s6, 4')
    a.e('s_cselect_b32 s32, s24, s28')
    a.e('s_cselect_b32 s33, s25, s29')
    a.e('s_cselect_b32 s34, 1, 2')
    a.e('s_cselect_b32 s39, 0, 16')
    a.e('s_lshl_b32 s34, s34, 10')
    a.e('s_mul_i32 s35, s34, 31')
    make_srd(a, 12, 32, 0)
    a.e('s_mov_b32 s14, s35')
    a.e('s_lshl_b32 s36, s6, 2')
    a.e('s_add_u32 s36, s36, s3')
    a.e('s_mul_i32 s37, s36, 9216')
    a.e('s_add_u32 s37, s37, %d' % TPC_OFF)
    a.e('s_sub_u32 s36, s36, s39')
    a.e('s_lshl_b32 s36, s36, 6')
    a.e('v_and_b32 v6, 3, v2')
    a.e('v_add_u32 v6, 1, v6')
    a.e('v_mul_lo_u32 v6, v6, s34')
    a.e('v_lshrrev_b32 v7, 2, v2')
    a.e('v_lshlrev_b32 v7, 1, v7')
    a.e('v_add_u32 v7, s36, v7')
    a.e('v_sub_u32 v6, v7, v6')
    for h in range(36):
        m, hi = h // 2, h % 2
        for g2 in range(2):
            a.e('buffer_load_ushort v%d, v6, s[12:15], 0 offen offset:%d' % (16 + 36 * hi + 18 * g2 + m, 32 * g2))
        if h < 35: a.e('v_add_u32 v6, s34, v6')
    a.e('s_waitcnt vmcnt(0)')
    for d in range(36):
        a.e('v_lshl_or_b32 v%d, v%d, 16, v%d' % (16 + d, 52 + d, 16 + d))
    xtouch()
    for q in range(9):
        if q and q % 4 == 0: a.e('s_add_u32 s37, s37, 0x1000')
        a.e('buffer_store_dwordx4 %s, v3, %s, s37 offen offset:%d' % (vr(16 + 4 * q, 4), ws, (q % 4) * 1024))
    if STAMP: stamp_end(a, 3)
    a.e('s_endpgm')
    def rows_dma(srd, nrows, s_src, s_lds):
        for r in range(nrows):
            a.e('s_add_u32 m0, s%d, %d' % (s_lds, r * P))
            a.e('s_add_u32 s45, s%d, %d' % (s_src, r * 3072))
            a.e('buffer_load_dwordx4 v3, %s, s45 offen lds' % srd)

    a.label('%s_m' % name, reset=True)
    make_srd(a, 12, 18, 512 * 1536 * 2)
    a.e('s_lshr_b32 s32, s2, 3')
    a.e('s_and_b32 s33, s2, 7')
    a.e('s_lshl_b32 s34, s32, 5'); a.e('s_lshl_b32 s35, s3, 3'); a.e('s_add_u32 s34, s34, s35'); a.e('s_mul_i32 s34, s34, 3072')
    a.e('s_mul_i32 s36, s3, %d' % (8 * P))
    rows_dma('s[12:15]', 8, 34, 36)
    a.e('s_lshl_b32 s34, s33, 6'); a.e('s_lshl_b32 s35, s3, 4'); a.e('s_add_u32 s34, s34, s35'); a.e('s_mul_i32 s34, s34, 3072')
    a.e('s_add_u32 s34, s34, 1024')
    a.e('s_mul_i32 s36, s3, %d' % (16 * P)); a.e('s_add_u32 s36, s36, %d' % (32 * P))
    rows_dma('s[12:15]', 16, 34, 36)
    a.e('v_lshrrev_b32 v6, 2, v5'); a.e('v_lshlrev_b32 v6, 3, v6'); a.e('v_and_b32 v7, 3, v5'); a.e('v_add_u32 v6, v6, v7')
    a.e('v_mul_u32_u24 v6, %d, v6' % P)
    a.e('v_lshl_add_u32 v6, v4, 4, v6')
    a.e('s_lshr_b32 s36, s3, 1'); a.e('s_lshl_b32 s36, s36, 3'); a.e('s_and_b32 s37, s3, 1'); a.e('s_add_u32 s36, s36, s37')
    a.e('s_mul_i32 s36, s36, %d' % (4 * P)); a.e('s_add_u32 s36, s36, %d' % (32 * P))
    a.e('v_add_u32 v7, s36, v6')
    a.e('s_mul_i32 s34, s33, 192')
    a.e('s_lshl_b32 s35, s32, 2')
    a.e('s_add_u32 s34, s34, s35')
    a.e('s_add_u32 s34, s34, s3')
    a.e('s_lshl_b32 s34, s34, 10')
    a.e('s_add_u32 s34, s34, %d' % (W1_OFF + 128 * 1024))
    a.e('s_mov_b32 s38, %s' % fhex(512 ** -0.5 * math.log2(math.e)))
    a.e('s_waitcnt vmcnt(%d)' % cfg.get('XT_EARLY', 0))
    xtouch()
    a.e('s_waitcnt vmcnt(%d)' % (1 if cfg.get('XTOUCH', 0) else 0))
    a.e('s_barrier')
    if STAMP: stamp_mid(a, 0)
    lq = LgQ()
    def rd(kk):
        b = 32 + 12 * (kk % 5)
        a.e('ds_read_b128 %s, v6 offset:%d' % (vr(b, 4), kk * 64)); lq.issue()
        a.e('ds_read_b128 %s, v6 offset:%d' % (vr(b + 4, 4), kk * 64 + 4 * P)); lq.issue()
        a.e('ds_read_b128 %s, v7 offset:%d' % (vr(b + 8, 4), kk * 64)); lq.issue(kk)
    for kk in range(4): rd(kk)
    for kk in range(16):
        if kk + 4 < 16: rd(kk + 4)
        lq.wait(a, kk)
        b = 32 + 12 * (kk % 5)
        for e in range(2):
            a.e('%s %s, %s, %s, %s' % (MF, vr(16 + 4 * e, 4), vr(b + 4 * e, 4), vr(b + 8, 4), '0' if kk == 0 else vr(16 + 4 * e, 4)))
    for r in range(8):
        a.e('v_mul_f32 v%d, s38, v%d' % (16 + r, 16 + r))
    for d in range(4):
        a.e('v_cvt_pk_bf16_f32 v%d, v%d, v%d' % (24 + d, 16 + 2 * d, 17 + 2 * d))
    a.e('buffer_store_dwordx4 v[24:27], v3, %s, s34 offen' % ws)
    if STAMP: stamp_end(a, 3)
    a.e('s_endpgm')

    def load_strip():
        a.e('v_lshrrev_b32 v7, 3, v2')
        a.e('v_bfe_u32 v8, v2, 4, 1')
        a.e('v_lshlrev_b32 v8, 2, v8')
        a.e('v_and_b32 v9, 7, v2')
        a.e('v_xor_b32 v8, v8, v9')
        a.e('v_mul_lo_u32 v7, v7, s42')
        a.e('v_lshl_add_u32 v7, v8, 4, v7')
        a.e('s_lshl_b32 s41, s42, 3')
        a.e('s_lshl_b32 s43, s3, 4')
        a.e('s_mul_i32 s43, s43, s41')
        a.e('s_add_u32 s40, s40, s43')
        a.e('s_lshl_b32 s44, s3, 14')
        for j in range(16):
            a.e('s_add_u32 m0, s44, %d' % (1024 * j))
            if j: a.e('s_add_u32 s40, s40, s41')
            a.e('buffer_load_dwordx4 v7, s[12:15], s40 offen lds')
        a.e('v_bfe_u32 v8, v2, 2, 2')
        a.e('v_lshl_add_u32 v9, v4, 3, v8')
        a.e('v_lshlrev_b32 v9, 7, v9')
        a.e('v_lshrrev_b32 v8, 1, v8')
        a.e('v_lshl_add_u32 v9, v8, 6, v9')
        a.e('v_and_b32 v8, 3, v2')
        a.e('v_lshlrev_b32 v8, s63, v8')
        a.e('v_add_u32 v8, v8, v9')
        a.e('v_xor_b32 v9, 64, v8')
        a.e('v_add_u32 v10, s59, v8')
        a.e('v_xor_b32 v11, 64, v10')

    a.label('%s_vo' % name, reset=True)
    a.e('s_sub_u32 s6, s2, %d' % N_M)
    a.e('s_lshr_b32 s33, s6, 3')
    a.e('s_and_b32 s32, s6, 7')
    make_srd(a, 12, 20, 512 * 512 * 2)
    make_srd(a, 48, 18, 512 * 1536 * 2)
    a.e('s_lshl_b32 s40, s33, 7')
    a.e('s_mov_b32 s42, 1024')
    a.e('s_mov_b32 s63, 3'); a.e('s_mov_b32 s59, 32')
    load_strip()
    a.e('s_lshl_b32 s34, s32, 6'); a.e('s_lshl_b32 s35, s3, 4'); a.e('s_add_u32 s34, s34, s35'); a.e('s_mul_i32 s34, s34, 3072')
    a.e('s_add_u32 s34, s34, 2048')
    a.e('s_mul_i32 s36, s3, %d' % (16 * P)); a.e('s_add_u32 s36, s36, 65536')
    rows_dma('s[48:51]', 16, 34, 36)
    a.e('s_bitcmp1_b32 s3, 0')
    a.e('s_cselect_b64 vcc, -1, 0')
    a.e('v_cndmask_b32 v8, v8, v9, vcc')
    a.e('v_cndmask_b32 v9, v10, v11, vcc')
    a.e('v_mul_u32_u24 v6, %d, v5' % P)
    a.e('v_lshl_add_u32 v6, v4, 4, v6')
    a.e('s_lshr_b32 s36, s3, 1')
    a.e('s_mul_i32 s37, s36, %d' % (32 * P)); a.e('s_add_u32 s37, s37, 65536')
    a.e('v_add_u32 v6, s37, v6')
    a.e('s_lshr_b32 s34, s33, 1')
    a.e('s_lshl_b32 s34, s34, 4')
    a.e('s_lshl_b32 s35, s32, 1'); a.e('s_add_u32 s35, s35, s36')
    a.e('s_add_u32 s34, s34, s35')
    a.e('s_lshl_b32 s34, s34, 3')
    a.e('s_and_b32 s35, s3, 1'); a.e('s_lshl_b32 s35, s35, 1')
    a.e('s_add_u32 s34, s34, s35')
    a.e('s_and_b32 s35, s33, 1'); a.e('s_lshl_b32 s35, s35, 2')
    a.e('s_add_u32 s34, s34, s35')
    a.e('s_lshl_b32 s34, s34, 10')
    a.e('s_add_u32 s34, s34, %d' % W2_OFF)
    a.e('s_waitcnt vmcnt(%d)' % cfg.get('XT_EARLY', 0))
    xtouch()
    a.e('s_waitcnt vmcnt(%d)' % (1 if cfg.get('XTOUCH', 0) else 0))
    a.e('s_barrier')
    if STAMP: stamp_mid(a, 0)
    lq = LgQ()
    def rd2(kk):
        b = 32 + 16 * (kk % 3)
        for e in range(2):
            a.e('ds_read_b128 %s, v6 offset:%d' % (vr(b + 4 * e, 4), kk * 64 + 16 * P * e)); lq.issue()
        for o in range(2):
            a.e('ds_read_b64_tr_b16 %s, v%d offset:%d' % (vr(b + 8 + 4 * o, 2), 8 + o, kk * 4096)); lq.issue()
            a.e('ds_read_b64_tr_b16 %s, v%d offset:%d' % (vr(b + 8 + 4 * o + 2, 2), 8 + o, kk * 4096 + 512)); lq.issue(kk)
    rd2(0); rd2(1)
    for kk in range(16):
        if kk + 2 < 16: rd2(kk + 2)
        lq.wait(a, kk)
        b = 32 + 16 * (kk % 3)
        for o in range(2):
            for e in range(2):
                acc = vr(16 + 8 * o + 4 * e, 4)
                a.e('%s %s, %s, %s, %s' % (MF, acc, vr(b + 4 * e, 4), vr(b + 8 + 4 * o, 4), '0' if kk == 0 else acc))
    for o in range(2):
        for d in range(4):
            a.e('v_cvt_pk_bf16_f32 v%d, v%d, v%d' % (80 + 4 * o + d, 16 + 8 * o + 2 * d, 17 + 8 * o + 2 * d))
        a.e('buffer_store_dwordx4 %s, v3, %s, s34 offen offset:%d' % (vr(80 + 4 * o, 4), ws, 1024 * o))
    if STAMP: stamp_end(a, 3)
    a.e('s_endpgm')

    a.label('%s_rl' % name, reset=True)
    a.e('s_sub_u32 s6, s2, %d' % (N_M + N_VO))
    a.e('s_mov_b32 s63, 4'); a.e('s_mov_b32 s59, 8')
    a.e('s_cmp_lt_u32 s6, 16')
    a.e('s_cbranch_scc1 %s_rl_mi' % name)
    a.e('s_cmp_lt_u32 s6, 24')
    a.e('s_cbranch_scc1 %s_rl_mo' % name)
    a.e('s_sub_u32 s6, s6, 24')
    a.e('s_lshr_b32 s36, s6, 3')
    a.e('s_and_b32 s33, s6, 7')
    make_srd(a, 12, 30, 1024 * 512 * 2)
    a.e('s_lshl_b32 s40, s33, 7')
    a.e('s_lshl_b32 s37, s36, 19')
    a.e('s_add_u32 s40, s40, s37')
    a.e('s_mov_b32 s42, 1024')
    a.e('s_lshr_b32 s34, s6, 1')
    a.e('s_lshl_b32 s34, s34, 17')
    a.e('s_xor_b32 s37, s6, s36')
    a.e('s_xor_b32 s37, s37, 1')
    a.e('s_and_b32 s37, s37, 1')
    a.e('s_lshl_b32 s37, s37, 16')
    a.e('s_add_u32 s34, s34, s37')
    a.e('s_add_u32 s34, s34, %d' % W3_OFF)
    a.e('s_mov_b32 s35, 4096')
    a.e('s_branch %s_rl_go' % name)
    a.label('%s_rl_mo' % name, reset=True)
    a.e('s_sub_u32 s33, s6, 16')
    a.e('s_mov_b32 s63, 3'); a.e('s_mov_b32 s59, 32')
    make_srd(a, 12, 26, 512 * 512 * 2)
    a.e('s_lshl_b32 s40, s33, 7')
    a.e('s_mov_b32 s42, 1024')
    a.e('s_lshr_b32 s34, s33, 1')
    a.e('s_lshl_b32 s34, s34, 17')
    a.e('s_and_b32 s37, s33, 1')
    a.e('s_lshl_b32 s37, s37, 12')
    a.e('s_add_u32 s34, s34, s37')
    a.e('s_add_u32 s34, s34, %d' % (W2_OFF + 512 * 1024))
    a.e('s_mov_b32 s35, 8192')
    a.e('s_branch %s_rl_go' % name)
    a.label('%s_rl_mi' % name, reset=True)
    make_srd(a, 12, 22, 512 * 1024 * 2)
    a.e('s_lshl_b32 s40, s6, 7')
    a.e('s_mov_b32 s42, 2048')
    a.e('s_xor_b32 s33, s6, 8')
    a.e('s_lshr_b32 s34, s33, 1')
    a.e('s_mul_i32 s34, s34, 192')
    a.e('s_and_b32 s37, s33, 1')
    a.e('s_lshl_b32 s37, s37, 2')
    a.e('s_add_u32 s34, s34, s37')
    a.e('s_lshl_b32 s34, s34, 10')
    a.e('s_add_u32 s34, s34, %d' % W1_OFF)
    a.e('s_mov_b32 s35, 8192')
    a.label('%s_rl_go' % name, reset=True)
    load_strip()
    for r_ in (8, 9, 10, 11): a.e('v_add_u32 v%d, s44, v%d' % (r_, r_))
    a.e('s_lshl_b32 s37, s3, 2')
    a.e('s_mul_i32 s37, s37, s35')
    a.e('s_add_u32 s34, s34, s37')
    for k4 in range(4):
        a.e('s_waitcnt vmcnt(%d)' % (12 - 4 * k4 + 4 * k4))
        for q in range(4):
            b = 16 + 16 * k4 + 4 * q
            ad = 8 + (q >> 1) + 2 * (q & 1)
            a.e('ds_read_b64_tr_b16 %s, v%d offset:%d' % (vr(b, 2), ad, k4 * 4096))
            a.e('ds_read_b64_tr_b16 %s, v%d offset:%d' % (vr(b + 2, 2), ad, k4 * 4096 + 512))
        a.e('s_waitcnt lgkmcnt(0)')
        for q in range(4):
            a.e('buffer_store_dwordx4 %s, v3, %s, s34 offen offset:%d' % (vr(16 + 16 * k4 + 4 * q, 4), ws, 1024 * q))
        if k4 < 3: a.e('s_add_u32 s34, s34, s35')
    a.label('%s_xt' % name)
    xtouch()
    if STAMP: stamp_end(a, 3)
    a.label('%s_end' % name)
    a.e('s_endpgm')
    return dict(name=name, vgpr=128, sgpr=96, accum=128, grid=256, block=256, lds=65536 + 64 * P)

def chan_combine(a, P, n, cnt, oA, oB, tmp):
    a.e('v_add_f32 v%d, v%d, v%d' % (oB, P, P + 2))
    a.e('v_add_f32 v%d, v%d, v%d' % (oA, P + 1, P + 3))
    for i in range(2, n):
        a.e('v_add_f32 v%d, v%d, v%d' % (oB, oB, P + 2 * i))
        a.e('v_add_f32 v%d, v%d, v%d' % (oA, oA, P + 2 * i + 1))
    a.e('v_mul_f32 v%d, %s, v%d' % (oB, fhex(1.0 / n), oB))
    a.e('v_mov_b32 v%d, 0' % (tmp + 1))
    for i in range(n):
        a.e('v_sub_f32 v%d, v%d, v%d' % (tmp, P + 2 * i, oB))
        a.e('v_fmac_f32 v%d, v%d, v%d' % (tmp + 1, tmp, tmp))
    a.e('v_mul_f32 v%d, %s, v%d' % (tmp + 1, fhex(float(cnt)), tmp + 1))
    a.e('v_add_f32 v%d, v%d, v%d' % (oA, oA, tmp + 1))
    a.e('v_mul_f32 v%d, %s, v%d' % (oA, fhex(1.0 / (n * cnt)), oA))
    a.e('v_add_f32 v%d, %s, v%d' % (oA, fhex(1e-5), oA))
    a.e('v_rsq_f32 v%d, v%d' % (oA, oA))
    a.e('v_mul_f32 v%d, v%d, v%d' % (oB, oB, oA))
    a.e('v_sub_f32 v%d, 0, v%d' % (oB, oB))
```

```python
from common import *
from convlib import tok_read_regs
from conv4 import *
from attn16 import stamp_begin, stamp_mid, stamp_end

def gen_tail(a, name='tail_kernel', cfg=None):
    cfg = cfg or {}
    STAMP = cfg.get('STAMP', False)
    TB = 208
    vLane, vLane16, vI, vQ4, TMP, NR = 244, 245, 246, 247, 248, 251
    STG = 98304
    sWave, sK, sW, sA, sB, sC, sU, sStg, sTy, sBt, sTok, sP, sF = 3, 6, 7, 32, 33, 34, 35, 36, 37, 38, 39, 40, 41
    ws = 's[8:11]'
    def acc1(t, f): return (t * 6 + f) * 4
    def srd_off(d, ptr, soff, nbytes):
        a.e('s_add_u32 s%d, s%d, s%d' % (d, ptr, soff))
        a.e('s_addc_u32 s%d, s%d, 0' % (d + 1, ptr + 1))
        a.e('s_and_b32 s%d, s%d, 0xffff' % (d + 1, d + 1))
        a.e('s_mov_b32 s%d, %d' % (d + 2, nbytes))
        a.e('s_mov_b32 s%d, 0x00020000' % (d + 3))

    kernel_begin(a, name)
    a.e('s_and_b32 s%d, s2, 3' % sK)
    a.e('s_lshl_b32 s%d, s%d, 4' % (sK, sK))
    a.e('s_lshr_b32 s%d, s2, 4' % sA)
    a.e('s_add_u32 s%d, s%d, s%d' % (sK, sK, sA))
    a.e('s_cmp_ge_u32 s2, 256')
    a.e('s_cbranch_scc1 %s_end' % name)
    a.e('s_cmp_ge_u32 s%d, 63' % sK)
    a.e('s_cbranch_scc1 %s_end' % name)
    a.e('s_load_dwordx2 s[4:5], s[0:1], 80')
    a.e('s_load_dwordx2 s[52:53], s[0:1], 0')
    a.e('s_load_dwordx2 s[54:55], s[0:1], 64')
    if STAMP: stamp_begin(a)
    if cfg.get('CPF', 1): code_prefetch(a, name, 60, 61, 2)
    a.e('s_bfe_u32 s%d, s2, 0x10003' % sTy)
    a.e('s_bfe_u32 s%d, s2, 0x10002' % sBt)
    a.e('s_mov_b32 s90, 0xffff0000')
    a.e('v_lshrrev_b32 v1, 6, v0')
    a.e('v_and_b32 v%d, 63, v0' % vLane)
    a.e('v_readfirstlane_b32 s%d, v1' % sWave)
    a.e('v_lshlrev_b32 v%d, 4, v%d' % (vLane16, vLane))
    a.e('v_lshrrev_b32 v%d, 4, v%d' % (vQ4, vLane))
    a.e('v_and_b32 v%d, 15, v%d' % (vI, vLane))
    a.e('s_lshl_b32 s%d, s%d, 2' % (sW, sTy))
    a.e('s_add_u32 s%d, s%d, s%d' % (sW, sW, sWave))
    a.e('s_mul_i32 s46, s%d, %d' % (sW, 4 * 9216))
    a.e('s_add_u32 s46, s46, %d' % TPM_OFF)
    a.e('s_lshl_b32 s%d, s%d, 17' % (sW, sW))
    a.e('s_add_u32 s%d, s%d, %d' % (sW, sW, W2_OFF))
    a.e('s_lshl_b32 s%d, s%d, 14' % (sStg, sWave))
    a.e('s_add_u32 s%d, s%d, %d' % (sStg, sStg, STG))
    a.e('s_cmp_eq_u32 s%d, 0' % sK)
    a.e('s_cselect_b32 s%d, 0x40000000, 0' % sF)
    a.e('s_mul_i32 s47, s%d, 4096000' % sBt)
    a.e('s_waitcnt lgkmcnt(0)')
    make_srd(a, 8, 4, WS_BYTES)

    def add_w(st, state, ringreg, RW, n0, n1, tw, qi=2, ready=None):
        for n in range(n0, n1):
            pre = []
            if n == 128: pre = ['s_add_u32 s%d, s%d, %d' % (sW, sW, W3_OFF - W2_OFF - 31 * 4096)]
            elif n and n % 4 == 0: pre = ['s_add_u32 s%d, s%d, 0x1000' % (sW, sW)]
            st.add(qi, tw(n), pre, 'buffer_load_dwordx4 %s, v%d, %s, s%d offen offset:%d' % (ringreg(n), vLane16, ws, sW, (n % 4) * 1024), ('w', n),
                   (lambda n=n: state['wcons'] >= n - RW) if ready is None else (lambda n=n: ready(n)))
    RW2 = 52; NPRE = 14
    SLOT2 = [80 + 4 * i for i in range(14)] + [4 * i for i in range(20)] + [136 + 4 * i for i in range(18)]
    def wreg(n): return ar(SLOT2[(n - 128) % RW2], 4)

    def stage1(tr, sc, lq, state, RW, produce):
        st = sc.st
        def tok_reads(ks):
            out = []
            for f in range(6):
                b = TB + ((ks % 2) * 6 + f) * 4
                hi = ks >= 8
                if tr:
                    off = (ks % 8) * 6144 + (f >> 1) * 64 + (f & 1) * 8
                    out.append(FD('ds_read_b64_tr_b16 %s, v%d offset:%d' % (ar(b, 2), NR + hi, off), lq))
                    out.append(FD('ds_read_b64_tr_b16 %s, v%d offset:%d' % (ar(b + 2, 2), NR + hi, off + 768), lq, ('t', ks, f)))
                else:
                    out.append(FD('ds_read_b128 %s, v%d offset:%d' % (ar(b, 4), NR + 2 * hi + ((ks ^ f) & 1), ((ks % 8) * 6 + (f & 6)) * 1024), lq, ('t', ks, f)))
            return out
        def spread(ds):
            q = sc.q; out = []
            while ds:
                out.append(ds.pop(0))
                if q: out.append(q.pop(0))
            sc.q[0:0] = out
        def barrier():
            st.flush(); lq.wait_all(a); a.e('s_barrier')
        BART = cfg.get('T1_BART', 3)
        def gemm(r, plan, midbar):
            for k4 in range(4):
                ks = 4 * r + k4
                blk, fl = plan[k4] if k4 < len(plan) else (None, [])
                if blk is not None:
                    sc.flush(); blk()
                lq.wait(a, ('t', ks, 5))
                sc.add(fl)
                if k4 < 3: spread(tok_reads(ks + 1))
                nxt_blk = min([k for k in range(k4 + 1, 4) if k < len(plan) and plan[k][0] is not None] + [9])
                for t in range(8):
                    n = ks * 8 + t
                    if k4 == 3 and t == BART and midbar:
                        sc.flush(); barrier()
                        sc.add(tok_reads(ks + 1))
                    if t % 2 == 0: st.wait(('w', n + 1))
                    for x, f in enumerate(range(6) if t % 2 == 0 else range(5, -1, -1)):
                        a.e('%s %s, %s, %s, %s' % (MF, vr(acc1(t, f), 4), ar(TB + ((ks % 2) * 6 + f) * 4, 4), ar(4 * (n % RW), 4), '0' if ks == 0 else vr(acc1(t, f), 4)))
                        if x == 5: state['wcons'] = n
                        pos = k4 * 48 + t * 6 + x + 1
                        end = min(nxt_blk * 48, 144 + BART * 6)
                        cap = 2
                        if x == 5 and t % 2 == 1: cap = 1 if t < 7 else 0
                        if midbar and pos < end and len(sc.q) > cfg.get('T1_PRESS', 1.45) * (end - pos): cap += 1
                        sc.gap(cap)
            sc.flush()
        a.dense = True
        for blk, fl in produce(0):
            if blk is not None: blk()
            sc.add(fl)
            while sc.q: sc.gap(6) or sc.gap(10**6, vm=False)
        a.dense = False
        barrier()
        if STAMP and cfg.get('S1') != 3: stamp_mid(a, 0)
        for f in tok_reads(0): f.emit(a)
        for r in range(3):
            c0 = a.clock
            if r == cfg.get('T1_TOUCH', 9):
                st.flush()
                vt = 249 if tr else 244
                a.e('s_lshr_b32 s62, s2, 3')
                a.e('s_lshl_b32 s62, s62, 2')
                a.e('s_add_u32 s62, s62, s%d' % sWave)
                a.e('s_lshl_b32 s62, s62, 13')
                a.e('s_add_u32 s63, s62, %d' % W3_OFF)
                a.e('v_lshlrev_b32 v%d, 3, v%d' % (vt, vLane16))
                a.e('buffer_load_dword a207, v%d, %s, s63 offen' % (vt, ws)) if not tr else a.e('buffer_load_dword v249, v%d, %s, s63 offen' % (vt, ws))
                st.vq.issue()
                if not tr:
                    a.e('s_lshr_b32 s62, s2, 4')
                    a.e('s_lshl_b32 s62, s62, 2')
                    a.e('s_add_u32 s62, s62, s%d' % sWave)
                    a.e('s_min_u32 s62, s62, 35')
                    a.e('s_lshl_b32 s62, s62, 13')
                    a.e('s_add_u32 s63, s62, %d' % TPM_OFF)
                    a.e('buffer_load_dword a207, v%d, %s, s63 offen' % (vt, ws)); st.vq.issue()
                    a.e('v_lshlrev_b32 v%d, 6, v%d' % (vt, vLane16))
                    a.e('buffer_load_dword a207, v%d, s[24:27], s49 offen' % vt); st.vq.issue()
                    a.e('buffer_load_dword a207, v%d, s[24:27], s49 offen offset:128' % vt); st.vq.issue()
                    a.e('v_lshrrev_b32 v%d, 4, v%d' % (vLane, vLane16))
            gemm(r, produce(r + 1), True)
            if cfg.get('V'): print('  gemm round', a.clock - c0)
            if STAMP and cfg.get('S1') == 1: stamp_mid(a, r + 1); lq.done = lq.n
        state['last'] = True
        gemm(3, [], False)
        if STAMP and cfg.get('S1') == 1: stamp_mid(a, 4)
        if cfg.get('V'): print(name, tr, st.slack)

    def add_x(st, state):
        for k in range(8):
            ts, dd = k // 2, k % 2
            st.add(0, 900, ['s_add_u32 m0, s%d, %d' % (sStg, k * 1024), 's_add_u32 s50, s49, %d' % (ts * 16384 + dd * 64)],
                   'buffer_load_dwordx4 v%d, s[24:27], s50 offen lds' % TMP, ('x', k), lambda: state.get('last', False))
    def x_setup():
        srd_off(24, 52, 47, 0 if cfg.get('NOX') else 4096000)
        a.e('s_lshl_b32 s49, s%d, 16' % sK)
        a.e('s_lshl_b32 s50, s%d, 8' % sWave)
        a.e('s_add_u32 s49, s49, s50')
        a.e('s_lshl_b32 s50, s%d, 7' % sTy)
        a.e('s_add_u32 s49, s49, s50')
        a.e('v_lshlrev_b32 v%d, 10, v%d' % (TMP, vI))
        a.e('v_lshl_add_u32 v%d, v%d, 4, v%d' % (TMP, vQ4, TMP))

    TP2 = 136
    def add_taps2(st, state, pairs, need, ready):
        for p in pairs:
            for q in range(9):
                pre = ['s_add_u32 s43, s46, %d' % (p * 9216 + q * 1024)] if q % 4 == 0 else []
                st.add(1, need + p, pre, 'buffer_load_dwordx4 %s, v%d, %s, s43 offen offset:%d' % (ar(TP2 + 36 * (p % 2) + 4 * q, 4), vLane16, ws, (q % 4) * 1024), ('t2', p, q), (lambda p=p: ready(p)))

    a.e('s_cmp_eq_u32 s%d, 0' % sTy)
    a.e('s_cbranch_scc1 %s_glob' % name)

    RWL = 27; DATA = 108; TP = 136
    CD, UB, PKO, UT2, vS, vRd, vWr = 192, 216, 228, 240, 242, 243, 254
    vUo = [253, 255, 250]
    vq = VmQ(); lq = LgQ()
    st = GStream(a, vq, cfg.get('TL_PACE', 24), 4)
    st.look = cfg.get('TL_LOOK', 24); st.pace2 = cfg.get('TL_PACE2', 64)
    state = dict(wcons=-1, gdone=-1, gread=-1, edone=-1, uok=False)
    a.e('s_add_u32 s%d, s47, %d' % (sA, G_OFF - 32768))
    srd_off(12, 4, sA, 4096000 + 32768)
    a.e('v_lshrrev_b32 v8, 1, v%d' % vI)
    a.e('v_lshlrev_b32 v%d, 14, v8' % vS)
    a.e('v_lshl_add_u32 v%d, v%d, 5, v%d' % (vS, vQ4, vS))
    a.e('v_and_b32 v9, 1, v%d' % vI)
    a.e('v_lshl_add_u32 v%d, v9, 4, v%d' % (vS, vS))
    a.e('v_cmp_gt_u32 vcc, 2, v8')
    a.e('v_mov_b32 v9, s%d' % sF)
    a.e('v_cndmask_b32 v9, 0, v9, vcc')
    a.e('v_or_b32 v%d, v%d, v9' % (vS, vS))
    a.e('s_lshl_b32 s%d, s%d, 16' % (sA, sK))
    a.e('s_lshl_b32 s%d, s%d, 10' % (sB, sWave))
    a.e('s_add_u32 s%d, s%d, s%d' % (sA, sA, sB))
    a.e('s_mul_i32 s42, s%d, 9216' % sWave)
    a.e('s_add_u32 s42, s42, %d' % TPC_OFF)
    def tg(g): return g if g < 2 else 2 + (g - 2) * 4
    def tw(n): return 2 + n / 4.0 - 1
    for g in range(8):
        off = (g >> 1) * 4096 + (g & 1) * 512
        for d in range(4):
            st.add(0, tg(g) - cfg.get('TL_WINLEAD', 7), ['s_add_u32 m0, s%d, %d' % (sStg, (g % 3) * 4160 + d * 1040), 's_add_u32 s%d, s%d, %d' % (sC, sA, off + d * 128)],
                   'buffer_load_dwordx4 v%d, s[12:15], s%d offen lds' % (vS, sC), ('win', g, d), (lambda g=g: state['gread'] >= g - 3))
        for h in range(3):
            pre = ['s_add_u32 m0, s44, %d' % ((g >> 1) * 24576 + (g & 1) * 3072 + h * 1024), 's_add_u32 s45, s%d, %d' % (sA, off)]
            st.add(3, tg(g) - 3, pre, 'buffer_load_dwordx4 v%d, s[16:19], s45 offen lds' % vUo[h], ('u', g, h), (lambda: state['uok']))
    for p in range(4):
        for q in range(9):
            pre = ['s_add_u32 s43, s42, %d' % (p * 4 * 9216 + q * 1024)] if q % 4 == 0 else []
            st.add(1, tg(2 * p + (q > 4)) - 3, pre, 'buffer_load_dwordx4 %s, v%d, %s, s43 offen offset:%d' % (ar(TP + 36 * (p % 2) + 4 * q, 4), vLane16, ws, (q % 4) * 1024), ('tp', p, q),
                   (lambda p=p: state['gdone'] >= 2 * (p - 2) + 1))
    add_w(st, state, lambda n: ar(4 * (n % RWL), 4), RWL, 0, 128, tw)
    add_x(st, state)
    add_taps2(st, state, (0, 1), 1000, lambda p: ('x', 7) in st.issued)
    add_w(st, state, wreg, 0, 128, 128 + NPRE, lambda n: 2000, ready=lambda n: ('t2', 1, 8) in st.issued and (SLOT2[n - 128] >= 4 * RWL or state['wcons'] >= max(m_ for m_ in range(128) if m_ % RWL == SLOT2[n - 128] // 4)))
    st.burst(13)
    a.e('s_add_u32 s%d, s47, %d' % (sU, U_OFF - 16384))
    srd_off(16, 4, sU, 4096000 + 16384)
    a.e('v_and_b32 v8, 3, v%d' % vLane)
    a.e('v_mul_u32_u24 v8, 3, v8')
    a.e('v_lshrrev_b32 v9, 2, v%d' % vLane)
    a.e('s_mul_i32 s44, s%d, 6144' % sWave)
    for h in range(3):
        a.e('v_add_u32 v10, %d, v%d' % (64 * h, vLane))
        a.e('v_mul_u32_u24 v12, 0x1556, v10')
        a.e('v_lshrrev_b32 v12, 16, v12')
        a.e('v_mul_u32_u24 v11, 12, v12')
        a.e('v_sub_u32 v10, v10, v11')
        a.e('v_lshrrev_b32 v11, 1, v10')
        a.e('v_lshlrev_b32 v%d, 14, v11' % vUo[h])
        a.e('v_lshl_add_u32 v%d, v12, 5, v%d' % (vUo[h], vUo[h]))
        a.e('v_and_b32 v10, 1, v10')
        a.e('v_lshl_add_u32 v%d, v10, 4, v%d' % (vUo[h], vUo[h]))
        a.e('v_cmp_eq_u32 vcc, 0, v11')
        a.e('v_mov_b32 v10, s%d' % sF)
        a.e('v_cndmask_b32 v10, 0, v10, vcc')
        a.e('v_or_b32 v%d, v%d, v10' % (vUo[h], vUo[h]))
    state['uok'] = True
    a.e('v_lshlrev_b32 v8, 4, v8')
    a.e('v_lshl_add_u32 v%d, v9, 8, v8' % vRd)
    a.e('v_lshl_add_u32 v%d, v%d, 4, v%d' % (vRd, vQ4, vRd))
    a.e('v_add_u32 v%d, s%d, v%d' % (vRd, sStg, vRd))
    a.e('v_mul_u32_u24 v%d, 192, v9' % vWr)
    a.e('v_add_u32 v%d, v8, v%d' % (vWr, vWr))
    a.e('s_mul_i32 s%d, s%d, 6144' % (sB, sWave))
    a.e('v_add_u32 v%d, s%d, v%d' % (vWr, sB, vWr))
    a.e('v_bfe_u32 v8, v%d, 2, 2' % vLane)
    a.e('v_lshl_add_u32 v8, v%d, 3, v8' % vQ4)
    a.e('v_mul_u32_u24 v%d, 192, v8' % NR)
    a.e('v_and_b32 v8, 3, v%d' % vLane)
    a.e('v_lshl_add_u32 v%d, v8, 4, v%d' % (NR, NR))
    a.e('v_add_u32 v%d, %d, v%d' % (NR + 1, 49152, NR))
    x_setup()
    st.burst(cfg.get('TL_B1', 12))
    sc = Sched(a, st)
    def data_reads(g):
        return [FW(lambda: st.wait(('win', g, 3)))] + [FD('ds_read_b128 %s, v%d offset:%d' % (ar(DATA + 4 * m, 4), vRd, (g % 3) * 4160 + 16 * m), lq, ('d', g, m)) for m in range(7)]
    def ioff(g, h): return ((g >> 1) * 24576 + (g & 1) * 3072 + h * 16) % 49152
    def u_reads(g):
        out = [FW(lambda: st.wait(('u', g, 2)))]
        if g == 4: out.append(FV('v_add_u32 v%d, %d, v%d' % (vWr, 49152, vWr)))
        return out + [FD('ds_read_b128 %s, v%d offset:%d' % (vr(UB + 4 * h, 4), vWr, ioff(g, h)), lq, ('ur', g, h)) for h in range(3)]
    def conv_epi(g, d0, d1):
        out = []
        if d0 == 0: out.append(FW(lambda: lq.wait(a, ('ur', g, 2))))
        t = UT2
        for d in range(d0, d1):
            out.append(FV('v_lshlrev_b32 v%d, 16, v%d' % (t, UB + d)))
            out.append(FV('v_and_b32 v%d, s90, v%d' % (t + 1, UB + d)))
            out.append(FV('v_mul_f32 v%d, v%d, v%d' % (t, t, CD + 2 * d)))
            out.append(FV('v_mul_f32 v%d, v%d, v%d' % (t + 1, t + 1, CD + 2 * d + 1)))
            out.append(FV('v_cvt_pk_bf16_f32 v%d, v%d, v%d' % (PKO + d, t, t + 1)))
            if d % 4 == 3: out.append(FD('ds_write_b128 v%d, %s offset:%d' % (vWr, vr(PKO + d - 3, 4), ioff(g, d // 4)), lq))
        return out
    def conv_block(g):
        def blk():
            r = g // 2
            A0 = TP + 36 * (r % 2) + 18 * (g % 2); B = DATA
            if g == 0:
                for f in data_reads(0): f.emit(a)
            st.wait(('tp', r, 4 if g % 2 == 0 else 8))
            lq.wait(a, ('d', g, 6))
            state['gread'] = g
            sc.add(u_reads(g))
            sc.vmcap = 1 if g < 2 else 2
            for hf in range(2):
                for s_ in range(9):
                    for q in range(3 * hf, 3 * hf + 3):
                        ac = vr(CD + 4 * q, 4)
                        a.e('%s %s, %s, %s, %s' % (M4, ac, ar(A0 + 2 * s_, 2), ar(B + 2 * (q + s_), 2), '0' if s_ == 0 else ac))
                        if hf == 1 and s_ == 1 and q == 3: sc.add(conv_epi(g, 0, 4))
                        sc.gap(1)
            sc.vmcap = 2
            state['gdone'] = g
        return blk
    def loc_produce(r):
        if r == 0: return [(conv_block(0), data_reads(1) + conv_epi(0, 4, 12)), (conv_block(1), data_reads(2) + conv_epi(1, 4, 12))]
        return [(conv_block(2 * r), conv_epi(2 * r, 4, 12)), (None, data_reads(2 * r + 1)), (conv_block(2 * r + 1), conv_epi(2 * r + 1, 4, 12) + (data_reads(2 * r + 2) if r < 3 else []))]
    stage1(True, sc, lq, state, RWL, loc_produce)
    st.flush(); st.burst(100)
    assert st.empty()
    a.e('s_branch %s_s2' % name)

    a.label('%s_glob' % name, reset=True)
    RWG = cfg.get('TG_RW', 34)
    vq = VmQ(); lq = LgQ()
    st = GStream(a, vq, cfg.get('TG_PACE', 24), 4)
    st.look = cfg.get('TG_LOOK', 28); st.pace2 = cfg.get('TG_PACE2', 64)
    state = dict(wcons=-1, fread=-1)
    MLR = 0; WT = 192; PB = 216; CA, CU, PO = 232, 240, 128
    vWa, vSt, vS0 = 255, 250, 249
    a.e('s_mul_i32 s%d, s%d, 4000' % (sTok, sBt))
    a.e('s_lshl_b32 s%d, s%d, 6' % (sA, sK))
    a.e('s_add_u32 s%d, s%d, s%d' % (sTok, sTok, sA))
    a.e('v_lshlrev_b32 v%d, 3, v%d' % (TMP, vI))
    a.e('s_lshl_b32 s%d, s%d, 3' % (sA, sTok))
    a.e('s_add_u32 s%d, s%d, %d' % (sA, sA, ML_OFF - 128))
    a.e('s_lshl_b32 s%d, s%d, 12' % (sP, sTok))
    a.e('s_lshl_b32 s%d, s%d, 13' % (sB, sWave))
    a.e('s_add_u32 s%d, s%d, s%d' % (sP, sP, sB))
    a.e('s_add_u32 s%d, s%d, %d' % (sP, sP, OP_OFF - 131072))
    make_srd(a, 12, 4, 0); a.e('s_cmp_eq_u32 s%d, 0' % sK); a.e('s_cselect_b32 s14, 0, %d' % WS_BYTES)
    make_srd(a, 16, 4, 0); a.e('s_cmp_eq_u32 s%d, 62' % sK); a.e('s_cselect_b32 s18, 0, %d' % WS_BYTES)
    def tsrd(ts): return 's[12:15]' if ts == 0 else ('s[16:19]' if ts >= 3 else ws)
    NS = 5
    a.e('s_mul_i32 s44, s%d, 6144' % sWave)
    def tf(f): return f if f < 6 else 6 + (f - 6) // 6 * 16 + ((f - 6) % 6) * 2
    def twg(n): return 6 + n / 2.0 - cfg.get('TG_WLEAD', 6)
    for f in range(24):
        r, ts = f // 6, f % 6
        off = ((ts + 1) >> 1) * 131072 + r * 32768 + ((ts + 1) & 1) * 4096
        st.add(3, tf(f) - cfg.get('TG_PLEAD0', 16), ['s_add_u32 m0, s44, %d' % (r * 24576 + ts * 1024), 's_add_u32 s45, s%d, %d' % (sP, off)],
               'buffer_load_dwordx4 v%d, %s, s45 offen lds' % (vLane16, tsrd(ts)), ('p', f, 0))
        pre = ['s_add_u32 m0, s%d, %d' % (sStg, ((f % NS) * 3 - 1) * 1024), 's_add_u32 s%d, s%d, %d' % (sC, sP, off),
               'buffer_load_dwordx4 v%d, %s, s%d offen offset:1024 lds' % (vLane16, tsrd(ts), sC), 'buffer_load_dwordx4 v%d, %s, s%d offen offset:2048 lds' % (vLane16, tsrd(ts), sC)]
        st.add(0, tf(f) - cfg.get('TG_PLEAD', 16), pre, 'buffer_load_dwordx4 v%d, %s, s%d offen offset:3072 lds' % (vLane16, tsrd(ts), sC), ('p', f, 3), (lambda f=f: state['fread'] >= f - NS))
    add_w(st, state, lambda n: ar(4 * (n % RWG), 4), RWG, 0, 128, twg)
    def gfree(reg):
        sl = reg // 4
        if sl >= RWG: return True
        lastn = max(n for n in range(128) if n % RWG == sl)
        return state['wcons'] >= lastn
    add_x(st, state)
    add_taps2(st, state, (0, 1), 1000, lambda p: ('x', 7) in st.issued and all(gfree(r_) for r_ in range(TP2, TP2 + 72, 4)))
    add_w(st, state, wreg, 0, 128, 128 + NPRE, lambda n: 2000, ready=lambda n: ('t2', 1, 8) in st.issued and gfree(SLOT2[n - 128]))
    st.burst(2)
    for s in range(4):
        for ts in range(6):
            a.e('buffer_load_dwordx2 %s, v%d, %s, s%d offen offset:%d' % (vr(MLR + (ts * 4 + s) * 2, 2), TMP, tsrd(ts), sA, ts * 128))
            vq.issue('ml')
        if s < 3: a.e('s_add_u32 s%d, s%d, 64000' % (sA, sA))
    st.burst(cfg.get('TG_B2', 10))
    a.e('v_lshrrev_b32 v64, 2, v%d' % vI)
    a.e('v_lshlrev_b32 v64, 3, v64')
    a.e('v_and_b32 v65, 3, v%d' % vI)
    a.e('v_add_u32 v64, v64, v65')
    a.e('v_lshrrev_b32 v65, 4, v64')
    a.e('v_and_b32 v64, 15, v64')
    a.e('v_xor_b32 v64, v64, v%d' % vQ4)
    a.e('v_lshl_add_u32 v64, v%d, 4, v64' % vQ4)
    a.e('v_lshlrev_b32 v64, 4, v64')
    a.e('v_lshl_add_u32 v%d, v65, 10, v64' % NR)
    a.e('v_xor_b32 v%d, 64, v%d' % (NR + 1, NR))
    a.e('v_add_u32 v%d, 49152, v%d' % (NR + 2, NR))
    a.e('v_add_u32 v%d, 49152, v%d' % (NR + 3, NR + 1))
    tok_read_regs(a, 64, 65, vLane, 66)
    a.e('s_bitcmp1_b32 s%d, 0' % sWave)
    a.e('s_cselect_b64 vcc, -1, 0')
    a.e('v_cndmask_b32 v%d, v64, v65, vcc' % vWa)
    a.e('s_mul_i32 s%d, s%d, 6144' % (sB, sWave))
    a.e('v_add_u32 v%d, s%d, v%d' % (vWa, sB, vWa))
    a.e('v_add_u32 v%d, s%d, v%d' % (vSt, sStg, vLane16))
    a.e('v_add_u32 v%d, s%d, v%d' % (vS0, sB, vLane16))
    x_setup()
    vq.wait(a, 'ml')
    a.dense = True
    for ts in range(6):
        m = [MLR + (ts * 4 + s) * 2 for s in range(4)]
        t = 64
        a.e('v_max3_f32 v%d, v%d, v%d, v%d' % (t, m[0], m[1], m[2]))
        a.e('v_max_f32 v%d, v%d, v%d' % (t, t, m[3]))
        for s in range(4): a.e('v_sub_f32 v%d, v%d, v%d' % (WT + ts * 4 + s, m[s], t))
        for s in range(4): a.e('v_exp_f32 v%d, v%d' % (WT + ts * 4 + s, WT + ts * 4 + s))
        for s in range(4): a.e('v_mul_f32 v%d, v%d, v%d' % (WT + ts * 4 + s, WT + ts * 4 + s, m[s] + 1))
        a.e('v_add_f32 v%d, v%d, v%d' % (t, WT + ts * 4, WT + ts * 4 + 1))
        for s in range(2, 4): a.e('v_add_f32 v%d, v%d, v%d' % (t, t, WT + ts * 4 + s))
        a.e('v_max_f32 v%d, 0x0d800000, v%d' % (t, t))
        a.e('v_rcp_f32 v%d, v%d' % (t, t))
        for s in range(4): a.e('v_mul_f32 v%d, v%d, v%d' % (WT + ts * 4 + s, WT + ts * 4 + s, t))
    a.dense = False
    sc = Sched(a, st)
    def p_read(f, s):
        r, ts = f // 6, f % 6
        if s == 0:
            def w_(): st.wait(('p', f, 0)); st.wait(('p', f, 3))
            out = [FW(w_)]
            if f == 12: out.append(FV('v_add_u32 v%d, 49152, v%d' % (vS0, vS0)))
            return out + [FD('ds_read_b128 %s, v%d offset:%d' % (vr(PB, 4), vS0, (r % 2) * 24576 + ts * 1024), lq, ('pr', f, s))]
        return [FD('ds_read_b128 %s, v%d offset:%d' % (vr(PB + 4 * s, 4), vSt, ((f % NS) * 3 + s - 1) * 1024), lq, ('pr', f, s))]
    def glob_produce(r):
        out = []
        if r == 0:
            for s in range(4): out += p_read(0, s)
        for ts in range(6):
            f = 6 * r + ts
            for s in range(4):
                def w_(f=f, s=s):
                    lq.wait(a, ('pr', f, s + 1))
                    if s == 2: state['fread'] = f
                if s % 2 == 0: out.append(FW(w_))
                p = PB + 4 * s; w = WT + ts * 4 + s
                for d in range(8):
                    out.append(FV('v_fma_mix_f32 v%d, v%d, v%d, %s op_sel:[%d,0,0] op_sel_hi:[1,0,0]' % (CA + d, p + d // 2, w, '0' if s == 0 else 'v%d' % (CA + d), d & 1)))
                if f < 23: out += p_read(f + 1, s)
            for d in range(4):
                out.append(FV('v_cvt_pk_bf16_f32 v%d, v%d, v%d' % (CU + d, CA + 2 * d, CA + 2 * d + 1)))
            if f == 12: out.append(FV('v_add_u32 v%d, 49152, v%d' % (vWa, vWa)))
            out.append(FD('ds_write_b128 v%d, %s offset:%d' % (vWa, vr(CU, 4), (r % 2) * 24576 + ts * 1024), lq))
        return [(None, out)]
    stage1(False, sc, lq, state, RWG, glob_produce)
    st.flush(); st.burst(100)
    assert st.empty()

    a.label('%s_s2' % name, reset=True)
    if STAMP and cfg.get('S1') in (None, 2): stamp_mid(a, 1)
    vq = VmQ(); lq = LgQ()
    pre_keys = [('t2', q // 9, q % 9) for q in range(18)] + [('w', 128 + n) for n in range(NPRE)]
    for k_ in pre_keys: vq.issue(k_)
    st = GStream(a, vq, cfg.get('T2_PACE', 48), 4)
    st.look = cfg.get('T2_LOOK', 60); st.pace2 = cfg.get('T2_PACE2', 64)
    st.issued = set(pre_keys)
    state = dict(wcons=127, gdone=-1, packed=0)
    def w2ready(n):
        i = n - 128
        if i >= RW2: return state['wcons'] >= n - RW2
        if i >= 43: return state['gdone'] >= 3
        if i >= 34: return state['gdone'] >= 1
        return True
    add_w(st, state, wreg, RW2, 128 + NPRE, 256, lambda n: 8 + (n - 128) / 5.0, ready=w2ready)
    for p in (2, 3):
        for q in range(9):
            pre = ['s_add_u32 s43, s46, %d' % (p * 9216 + q * 1024)] if q % 4 == 0 else []
            st.add(1, p, pre, 'buffer_load_dwordx4 %s, v%d, %s, s43 offen offset:%d' % (vr(36 * (p - 2) + 4 * q, 4), vLane16, ws, (q % 4) * 1024), ('t2', p, q),
                   (lambda p=p, q=q: state['packed'] * 24 >= 36 * (p - 2) + 4 * q + 4))
    vW1, vRd2, vWr2, vId, vRow, vR = 192, 193, 194, 196, 195, 198
    PK = 204
    srd_off(28, 54, 47, 4096000)
    a.e('v_mov_b32 v%d, v%d' % (vRow, TMP))
    a.e('s_mul_i32 s%d, s%d, 24576' % (sB, sWave))
    a.e('v_mul_u32_u24 v%d, 192, v%d' % (vW1, vI))
    a.e('v_bfe_u32 v%d, v%d, 1, 2' % (TMP, vI))
    a.e('v_xor_b32 v%d, v%d, v%d' % (TMP, TMP, vQ4))
    a.e('v_lshl_add_u32 v%d, v%d, 4, v%d' % (vW1, TMP, vW1))
    a.e('v_add_u32 v%d, s%d, v%d' % (vW1, sB, vW1))
    RD2 = [220 + m for m in range(6)]
    a.e('v_lshrrev_b32 v%d, 2, v%d' % (TMP, vLane))
    a.e('v_mul_u32_u24 v%d, 192, v%d' % (vRd2, TMP))
    a.e('v_add_u32 v%d, s%d, v%d' % (vRd2, sB, vRd2))
    a.e('v_bfe_u32 v%d, v%d, 3, 2' % (TMP + 1, vLane))
    a.e('v_and_b32 v%d, 3, v%d' % (TMP, vLane))
    a.e('v_lshlrev_b32 v%d, 1, v%d' % (TMP, TMP))
    for m in range(6):
        a.e('v_add_u32 v%d, %d, v%d' % (TMP + 2, m, TMP))
        a.e('v_xor_b32 v%d, v%d, v%d' % (TMP + 2, TMP + 2, TMP + 1))
        a.e('v_lshl_add_u32 v%d, v%d, 4, v%d' % (RD2[m], TMP + 2, vRd2))
    st.burst(4)
    a.e('s_barrier')
    if STAMP and cfg.get('S1') == 2: stamp_mid(a, 2)
    c2 = a.clock
    a.dense = True
    for t in range(8):
        for b3 in range(3):
            for d in range(4):
                r_ = acc1(t, 2 * b3) + 2 * d
                a.e('v_cvt_pk_bf16_f32 v%d, v%d, v%d' % (acc1(t, 2 * b3) + d, r_, r_ + 1))
        if t % 2 == 1:
            for t2 in (t - 1, t):
                for b3 in range(3):
                    a.e('ds_write_b128 v%d, %s offset:%d' % (vW1, vr(acc1(t2, 2 * b3), 4), t2 * 3072 + b3 * 64)); lq.issue(('w1', t2))
            state['packed'] = max(0, t - 1)
            st.burst(cfg.get('T2_PB', 3))
    state['packed'] = 8
    a.dense = False
    GACC, CD, DAT, PKO, TOK, XR = 0, 128, 208, 160, 208, 220
    def gacc(t, ts): return GACC + (t * 4 + ts) * 4
    img_write_reg(a, vWr2, vLane, TMP)
    a.e('s_lshl_b32 s%d, s%d, 14' % (sB, sWave))
    a.e('s_add_u32 s%d, s%d, %d' % (sB, sB, STG))
    a.e('v_add_u32 v%d, s%d, v%d' % (vWr2, sB, vWr2))
    img_read_regs(a, vR, vLane, TMP)
    for ts in range(4): a.e('v_add_u32 v%d, %d, v%d' % (vR + ts, STG, vR + ts))
    a.e('v_and_b32 v%d, 1, v%d' % (TMP, vLane))
    a.e('v_lshlrev_b32 v%d, 4, v%d' % (TMP, TMP))
    a.e('v_mov_b32 v%d, 0x3f80' % (TMP + 1))
    a.e('v_lshlrev_b32 v%d, v%d, v%d' % (TMP + 1, TMP, TMP + 1))
    a.e('v_and_b32 v%d, 2, v%d' % (TMP, vLane))
    a.e('v_cmp_eq_u32 vcc, 0, v%d' % TMP)
    a.e('v_cndmask_b32 v%d, 0, v%d, vcc' % (vId, TMP + 1))
    a.e('v_cndmask_b32 v%d, v%d, 0, vcc' % (vId + 1, TMP + 1))
    XL = 176
    def xreg(k): return (176 + 4 * k) if k < 4 else (226 + 4 * (k - 4))
    st.wait(('t2', 0, 0))
    a.e('v_add_u32 v%d, s%d, v%d' % (TMP, sStg, vLane16))
    for k in range(8):
        a.e('ds_read_b128 %s, v%d offset:%d' % (vr(xreg(k), 4), TMP, k * 1024)); lq.issue()
    a.e('s_lshl_b32 s51, s%d, 6' % sBt)
    a.e('s_add_u32 s51, s51, s%d' % sK)
    a.e('s_lshl_b32 s56, s51, 8')
    a.e('s_add_u32 s56, s56, %d' % CNT_OFF)
    sc = Sched(a, st)
    def d_reads(g):
        return [FD('ds_read_b128 %s, v%d offset:%d' % (ar(DAT + 24 * (g % 2) + 4 * m, 4), RD2[m], g * 3072), lq, ('d', g, m)) for m in range(6)]
    def c_epi(g):
        out = []
        D = CD + 16 * (g % 2); o = PKO + 8 * (g % 2)
        for d in range(8):
            out.append(FV('v_cvt_pk_bf16_f32 v%d, v%d, v%d' % (o + d, D + 2 * d, D + 2 * d + 1)))
            if d % 4 == 3: out.append(FD('ds_write_b128 v%d, %s offset:%d' % (vWr2, vr(o + d - 3, 4), g * 2048 + (d // 4) * 16), lq))
        return out
    if STAMP and cfg.get('S1') == 2: stamp_mid(a, 3); lq.done = lq.n
    if cfg.get('V'): print('pack end', a.clock - c2)
    for f in d_reads(0): f.emit(a)
    sc.vmcap = 1
    for g in range(8):
        p = g // 2
        A0 = (TP2 if p < 2 else 0) + 36 * (p % 2) + 18 * (g % 2); D = CD + 16 * (g % 2); B = DAT + 24 * (g % 2)
        AF = ar if p < 2 else vr
        st.wait(('t2', p, 4 if g % 2 == 0 else 8))
        lq.wait(a, ('d', g, 5))
        k = 0
        for s_ in list(range(9)) + ['I']:
            for q in range(4):
                ac = vr(D + 4 * q, 4)
                if s_ == 'I': a.e('%s %s, %s, %s, %s' % (M4, ac, vr(vId, 2), ar(B + 2 * (q + 4), 2), ac))
                else: a.e('%s %s, %s, %s, %s' % (M4, ac, AF(A0 + 2 * s_, 2), ar(B + 2 * (q + s_), 2), '0' if s_ == 0 else ac))
                k += 1
                if k == 1 and g < 7: sc.add(d_reads(g + 1))
                if k == 4 and g: sc.add(c_epi(g - 1))
                if k < 40: sc.gap(1)
        state['gdone'] = g
        sc.flush()
    sc.vmcap = 2
    sc.add(c_epi(7)); sc.flush(); st.flush()
    lq.wait_all(a)
    if cfg.get('V'): print('conv end', a.clock - c2)
    if STAMP and cfg.get('S1') == 2: stamp_mid(a, 4)
    a.e('s_barrier')
    if STAMP and not cfg.get('S1'): stamp_mid(a, 2)
    def t_reads(ks):
        return [FD('ds_read_b64_tr_b16 %s, v%d offset:%d' % (ar(TOK + ((ks % 3) * 4 + ts) * 4 + 2 * h, 2), vR + ts, (ks % 16) * 4096 + 512 * h), lq, ('t', ks, ts, h))
                for ts in range(4) for h in range(2)]
    for f in t_reads(0) + t_reads(1): f.emit(a)
    vOne, vZ, vFl, vFa = 204, 205, 206, 207
    LD, PKS = 128, 160
    a.e('s_lshl_b32 s57, s51, 16')
    a.e('s_lshl_b32 s%d, s%d, 13' % (sB, sWave))
    a.e('s_add_u32 s57, s57, s%d' % sB)
    a.e('s_add_u32 s57, s57, %d' % PO_OFF)
    a.e('s_lshl_b32 s%d, s%d, 15' % (sB, sTy))
    a.e('s_add_u32 s48, s57, s%d' % sB)
    a.e('s_xor_b32 s%d, s%d, 0x8000' % (sB, sB))
    a.e('s_add_u32 s57, s57, s%d' % sB)
    a.e('s_add_u32 s58, s57, 0x1000')
    def pub():
        out = []; k = 0
        for ts in range(4):
            for dd in range(2):
                o = PKS + 4 * (k % 4)
                for e in range(2):
                    for j in range(2):
                        r_ = gacc(2 * dd + e, ts) + 2 * j
                        out.append(FV('v_cvt_pk_bf16_f32 v%d, v%d, v%d' % (o + 2 * e + j, r_, r_ + 1)))
                        out.append(FV('v_min_u32 v%d, -2, v%d' % (o + 2 * e + j, o + 2 * e + j)))
                if k == 4: out.append(FS('s_add_u32 s48, s48, 0x1000'))
                out.append(FM('buffer_store_dwordx4 %s, v%d, %s, s48 offen offset:%d' % (vr(o, 4), vLane16, ws, (k % 4) * 1024), vq)); k += 1
        return out
    def part_loads():
        return [FM('buffer_load_dwordx4 %s, v%d, %s, s%d offen offset:%d sc1' % (vr(LD + 4 * k, 4), vLane16, ws, 57 + k // 4, (k % 4) * 1024), vq) for k in range(8)]
    def xadd():
        out = []
        for ts in range(4):
            for dd in range(2):
                pass
        return out
    KP = cfg.get('T2_KP', 30)
    for kk in range(32):
        h, ks = kk // 16, kk % 16
        if STAMP and cfg.get('S1') == 3 and kk in (0, 8, 16, 24): stamp_mid(a, kk // 8); lq.done = lq.n
        lq.wait(a, ('t', kk, 3, 1))
        if kk >= 17 and not state.get('pub') and (st.empty() or kk == cfg.get('T2_KPUB', 24)):
            sc.add(pub()); state['pub'] = kk
        if kk == KP: sc.add(part_loads())
        if kk < 30:
            ds = t_reads(kk + 2); q_ = sc.q; out = []
            while ds:
                out.append(ds.pop(0))
                if q_ and q_[0].kind == 'v': out.append(q_.pop(0))
            sc.q[0:0] = out
        st.wait(('w', 128 + kk * 4 + 3))
        for t4 in range(4):
            n = 128 + kk * 4 + t4; t = 4 * h + t4
            for x, ts in enumerate(range(4) if t4 % 2 == 0 else range(3, -1, -1)):
                a.e('%s %s, %s, %s, %s' % (MF, vr(gacc(t, ts), 4), wreg(n), ar(TOK + ((kk % 3) * 4 + ts) * 4, 4), '0' if ks == 0 else vr(gacc(t, ts), 4)))
                if x == 3: state['wcons'] = n
                sc.gap(0 if (x == 3 and t4 == 3) else 2)
    sc.flush()
    if cfg.get('V'): print(name, 's2', st.slack, state)
    if STAMP and not cfg.get('S1'): stamp_mid(a, 3)
    if STAMP and cfg.get('S1') == 3: stamp_mid(a, 4)
    a.dense = True
    U = 208
    def addin(src, ts, dd, pack):
        for e in range(2):
            for j in range(2):
                r_ = gacc(4 + 2 * dd + e, ts) + 2 * j
                u = U + 2 * ((2 * e + j) % 4)
                a.e('v_lshlrev_b32 v%d, 16, v%d' % (u, src + 2 * e + j))
                a.e('v_and_b32 v%d, s90, v%d' % (u + 1, src + 2 * e + j))
                a.e('v_pk_add_f32 %s, %s, %s' % (vr(r_, 2), vr(r_, 2), vr(u, 2)))
                if pack: a.e('v_cvt_pk_bf16_f32 v%d, v%d, v%d' % (src + 2 * e + j, r_, r_ + 1))
    for ts in range(4):
        for dd in range(2): addin(xreg(ts * 2 + dd), ts, dd, False)
    a.e('s_mov_b32 s59, 0')
    a.label('%s_poll' % name)
    a.e('s_waitcnt vmcnt(0)')
    a.e('v_max3_u32 v%d, v%d, v%d, v%d' % (vFl, LD, LD + 1, LD + 2))
    a.e('v_max3_u32 v%d, v%d, v%d, v%d' % (vFa, LD + 3, LD + 4, LD + 5))
    for j in range(6, 30, 4):
        a.e('v_max3_u32 v%d, v%d, v%d, v%d' % (vFl, vFl, LD + j, LD + j + 1))
        a.e('v_max3_u32 v%d, v%d, v%d, v%d' % (vFa, vFa, LD + j + 2, LD + j + 3))
    a.e('v_max3_u32 v%d, v%d, v%d, v%d' % (vFl, vFl, LD + 30, LD + 31))
    a.e('v_max_u32 v%d, v%d, v%d' % (vFl, vFl, vFa))
    a.e('v_cmp_eq_u32 vcc, -1, v%d' % vFl)
    a.e('s_cbranch_vccz %s_go' % name)
    for f in part_loads(): f.emit(a)
    a.e('s_add_u32 s59, s59, 1')
    a.e('s_cmp_lt_u32 s59, 0x40000')
    a.e('s_cbranch_scc1 %s_poll' % name)
    a.e('s_waitcnt vmcnt(0)')
    a.label('%s_go' % name, reset=True)
    if STAMP and not cfg.get('S1'): stamp_mid(a, 4)
    for ts in range(4):
        a.e('s_add_u32 s50, s49, %d' % (ts * 16384))
        for dd in range(2):
            x = LD + 4 * (ts * 2 + dd)
            addin(x, ts, dd, True)
            a.e('buffer_store_dwordx4 %s, v%d, s[28:31], s50 offen offset:%d' % (vr(x, 4), vRow, dd * 64))
    a.dense = False
    a.label('%s_fin' % name)
    if STAMP: stamp_end(a, sWave)
    a.label('%s_end' % name)
    a.e('s_endpgm')
    return dict(name=name, vgpr=512, sgpr=96, accum=256, grid=256, block=256, lds=163840)
```

```python
import sys, json
from build import *
from prep import gen_prep
from inp3 import gen_in
from tail2 import gen_tail
from attn16 import gen_attn
cfg = json.loads(sys.argv[2]) if len(sys.argv) > 2 else {}
import attn16, asmlib, common
common.MAXD[0] = cfg.get('MAXD', 1)
asmlib.SCRAMBLE[0] = bool(cfg.get('SCR'))
attn16.CYC[0] = bool(cfg.get('CYC'))
ks = [(gen_prep, dict(cfg=cfg)), (gen_in, dict(cfg=cfg)), (gen_attn, dict(cfg=cfg)), (gen_tail, dict(cfg=cfg))]
out, infos, a = build(ks)
open(sys.argv[1], 'w').write(out)
print('auto nops:', len(a.auto_nops), 'bytes', len(out))
if len(sys.argv) > 3:
    from checksize import check
    check(a, sys.argv[1])
```

```python
import copy
from asmlib import *
from layout import *

class LdsQ:
    def __init__(self):
        self.n = 0; self.done = 0; self.where = {}; self.pending = set()
    def issue(self, regs, check=True):
        self.n += 1
        for r in regs:
            if check: assert r not in self.pending, ('ring WAR', r)
            self.where[r] = self.n; self.pending.add(r)
    def consume(self, r):
        self.pending.discard(r); self.pending.discard(r + 1000)
    def need(self, regs):
        return max([self.where.get(r, 0) for r in regs] + [0])
    def wait_for(self, a, idx):
        if idx <= self.done: return
        N = min(self.n - idx, 15)
        a.e('s_waitcnt lgkmcnt(%d)' % N)
        self.done = self.n - N
    def drained(self):
        self.done = self.n
    def state(self):
        return (self.n - self.done, sorted((self.n - v, k) for k, v in self.where.items() if v > self.done), sorted(self.pending))

MF = 'v_mfma_f32_16x16x32_bf16'

KIDX = [0]
MIDR = {76: 80, 77: 81, 0: 80, 1: 81, 2: 82, 3: 83, 4: 84}
def stamp_begin(a):
    a.e('s_memrealtime s[66:67]')
    a.e('s_memtime s[72:73]')
    for r in range(80, 85): a.e('s_mov_b32 s%d, 0' % r)
    KIDX[0] += 1
CYC = [False]
def stamp_mid(a, reg):
    if CYC[0]:
        a.e('s_memtime s[78:79]')
        a.e('s_waitcnt lgkmcnt(0)')
        a.e('s_cselect_b32 s79, 1, 0')
        a.e('s_sub_u32 s78, s78, s72')
        a.e('s_add_u32 s%d, s78, s66' % MIDR[reg])
        a.e('s_cmp_eq_u32 s79, 1')
        return
    a.e('s_memrealtime s[78:79]')
    a.e('s_waitcnt lgkmcnt(0)')
    a.e('s_mov_b32 s%d, s78' % MIDR[reg])
def stamp_end(a, sWave, endlabel=None, nw=4):
    a.e('s_waitcnt vmcnt(0)')
    a.e('s_memrealtime s[68:69]')
    a.e('s_memtime s[74:75]')
    a.e('s_waitcnt lgkmcnt(0)')
    a.e('s_sub_u32 s74, s74, s72')
    a.e('s_getreg_b32 s71, hwreg(HW_REG_XCC_ID)')
    a.e('s_and_b32 s71, s71, 15')
    a.e('s_lshl_b32 s71, s71, 28')
    a.e('s_or_b32 s74, s74, s71')
    a.e('s_mul_i32 s70, s2, %d' % nw)
    a.e('s_add_u32 s70, s70, s%d' % sWave)
    a.e('s_lshl_b32 s70, s70, 5')
    a.e('s_add_u32 s70, s70, %d' % (TRACE_OFF + (KIDX[0] - 1) * TRACE_STRIDE))
    a.e('s_mov_b64 exec, 1')
    a.e('v_mov_b32 v0, s66'); a.e('v_mov_b32 v1, s68'); a.e('v_mov_b32 v2, s74'); a.e('v_mov_b32 v3, s80')
    a.e('v_mov_b32 v4, s81'); a.e('v_mov_b32 v5, s82'); a.e('v_mov_b32 v6, s83'); a.e('v_mov_b32 v7, s84')
    a.e('v_mov_b32 v8, s70')
    a.e('global_store_dwordx4 v8, v[0:3], s[4:5]')
    a.e('global_store_dwordx4 v8, v[4:7], s[4:5] offset:16')

def gen_attn(a, name='attn_kernel', cfg=None):
    cfg = cfg or {}
    DV = cfg.get('DV', 9)
    DK = cfg.get('DK', 7)
    BARPOS = cfg.get('BARPOS', 31 - DV + 4)
    WG = cfg.get('WAITGROUP', 4)
    DMA_SLOTS = cfg.get('DMA_SLOTS', [2, 6, 10, 14, 18, 22, 26, 30])
    NO_DMA = cfg.get('NO_DMA', False)
    NO_SM = cfg.get('NO_SM', False)
    STAMP = cfg.get('STAMP', False)
    FUSE = cfg.get('FUSE', 1)
    S = [0, 16]; P = 32; RING = 40; NR = 16
    NEGM = 104
    vK = [112, 113]; vV = [114, 115]
    vD0, vD1, vL0, vL1, vMx, vT0, vT1, vLane16 = 116, 117, 118, 119, 120, 121, 122, 123
    vL = [vL0, vL1]
    def Sreg(b, kt, qs): return S[b] + (kt * 2 + qs) * 4
    def Obase(dt, qs): return (dt * 2 + qs) * 4
    def Oreg(dt, qs):
        o = Obase(dt, qs)
        return vr(128 + o, 4) if o < 128 else ar(o, 4)
    def Qreg(ks, qs): return ar((ks * 2 + qs) * 4, 4)
    sSRD = 8; sWave = 12; sM0 = 13; sDma = 14; sQ = 15; sI = 16; sN2 = 17; sValid = 18; sOut = 19; sMl = 20; sT0 = 21; sT1 = 22; sT2 = 23
    srd = sr(sSRD, 4)

    kernel_begin(a, name)
    a.e('s_cmp_ge_u32 s2, 256')
    a.e('s_cbranch_scc1 %s_end' % name)
    a.e('s_load_dwordx2 s[4:5], s[0:1], 80')
    if STAMP: stamp_begin(a)
    if cfg.get('CPF', 1):
        from common import code_prefetch
        code_prefetch(a, name, 124, 125, 1)
    a.e('v_lshrrev_b32 v1, 6, v0')
    a.e('v_and_b32 v2, 63, v0')
    a.e('v_readfirstlane_b32 s%d, v1' % sWave)
    a.e('v_lshlrev_b32 v%d, 4, v2' % vLane16)
    a.e('s_and_b32 s%d, s2, 7' % sT0)
    a.e('s_lshr_b32 s%d, s2, 3' % sT1)
    a.e('s_and_b32 s%d, s%d, 3' % (sT2, sT1))
    a.e('s_lshr_b32 s%d, s%d, 2' % (sT1, sT1))
    a.e('s_and_b32 s24, s%d, 3' % sT0)
    a.e('s_lshl_b32 s24, s24, 3')
    a.e('s_add_u32 s24, s24, s%d' % sT1)
    a.e('s_lshl_b32 s24, s24, 2')
    a.e('s_add_u32 s24, s24, s%d' % sWave)
    a.e('s_cmp_lt_u32 s24, 125')
    a.e('s_cselect_b32 s%d, 1, 0' % sValid)
    a.e('s_min_u32 s24, s24, 124')
    a.e('s_lshr_b32 s25, s%d, 2' % sT0)
    a.e('s_mul_i32 s25, s25, 125')
    a.e('s_add_u32 s24, s24, s25')
    a.e('s_lshl_b32 s%d, s24, 15' % sQ)
    a.e('s_mul_i32 s26, s%d, 250' % sT2)
    a.e('s_add_u32 s26, s26, s24')
    a.e('s_lshl_b32 s%d, s24, 17' % sOut)
    a.e('s_lshl_b32 s27, s%d, 10' % sT2)
    a.e('s_add_u32 s%d, s%d, s27' % (sOut, sOut))
    a.e('s_add_u32 s%d, s%d, %d' % (sOut, sOut, OP_OFF))
    a.e('s_lshl_b32 s%d, s26, 8' % sMl)
    a.e('s_add_u32 s%d, s%d, %d' % (sMl, sMl, ML_OFF))
    a.e('s_add_u32 s%d, s%d, %d' % (sQ, sQ, QF_OFF))
    a.e('s_mul_i32 s27, s%d, 31' % sT2)
    a.e('s_min_u32 s28, s%d, 1' % sT2)
    a.e('s_add_u32 s27, s27, s28')
    a.e('s_add_u32 s27, s27, s25')
    a.e('s_lshl_b32 s%d, s27, 15' % sDma)
    if XF_OFF: a.e('s_add_u32 s%d, s%d, %d' % (sDma, sDma, XF_OFF))
    a.e('s_sub_u32 s%d, 31, s28' % sN2)
    a.e('s_lshl_b32 s%d, s%d, 13' % (sM0, sWave))
    a.e('v_add_u32 v%d, s%d, v%d' % (vD0, sM0, vLane16))
    a.e('v_add_u32 v%d, 0x1000, v%d' % (vD1, vD0))
    sG, sRd0, sRd1 = 29, 30, 31
    a.e('s_and_b32 s%d, s%d, 3' % (sG, sT0))
    a.e('s_lshl_b32 s%d, s%d, 5' % (sG, sG))
    a.e('s_lshr_b32 s34, s2, 3')
    a.e('s_add_u32 s%d, s%d, s34' % (sG, sG))
    a.e('s_add_u32 s%d, s%d, s25' % (sG, sG))
    a.e('s_lshl_b32 s%d, s%d, 15' % (sG, sG))
    a.e('s_add_u32 s35, s%d, %d' % (sG, U_OFF))
    a.e('s_add_u32 s%d, s%d, %d' % (sG, sG, G_OFF))
    a.e('s_sub_u32 s%d, s%d, 3' % (sRd0, sN2))
    a.e('s_sub_u32 s%d, s%d, 2' % (sRd1, sN2))
    a.e('v_lshrrev_b32 v3, 4, v2')
    a.e('v_and_b32 v4, 15, v2')
    a.e('v_and_b32 v5, 1, v3')
    a.e('v_mul_u32_u24 v5, 12, v5')
    a.e('v_xor_b32 v5, v4, v5')
    a.e('v_lshlrev_b32 v5, 4, v5')
    a.e('v_lshl_add_u32 v%d, v3, 9, v5' % vK[0])
    a.e('v_add_u32 v%d, 0x10000, v%d' % (vK[1], vK[0]))
    a.e('v_lshrrev_b32 v4, 2, v2')
    a.e('v_bfe_u32 v5, v2, 1, 1')
    a.e('v_and_b32 v6, 1, v2')
    a.e('v_mul_u32_u24 v7, 12, v5')
    a.e('v_xor_b32 v4, v4, v7')
    a.e('v_lshlrev_b32 v4, 4, v4')
    a.e('v_lshl_add_u32 v4, v5, 9, v4')
    a.e('v_lshl_add_u32 v%d, v6, 3, v4' % vV[0])
    a.e('v_add_u32 v%d, 0x10000, v%d' % (vV[1], vV[0]))
    a.e('v_lshlrev_b32 v126, 7, v2')
    a.e('v_lshlrev_b32 v127, 7, v0')
    zl = ['v_mov_b32 v%d, 0' % r for r in range(128, 256)] + ['v_accvgpr_write_b32 a%d, 0' % r for r in range(128, 256)]
    def zero(n):
        for _ in range(n):
            if zl: a.e(zl.pop(0))
    zero(cfg.get('AT_Z0', 64))
    a.e('s_waitcnt lgkmcnt(0)')
    a.e('s_mov_b32 s%d, s4' % sSRD)
    a.e('s_and_b32 s%d, s5, 0xffff' % (sSRD + 1))
    a.e('s_mov_b32 s%d, %d' % (sSRD + 2, WS_BYTES))
    a.e('s_mov_b32 s%d, 0x00020000' % (sSRD + 3))

    def dma_piece(stage, j, redirect=False):
        out = []
        if j % 4 == 0:
            out.append('s_add_u32 m0, s%d, %d' % (sM0, stage * 32768 + (j // 4) * 4096))
        out.append('buffer_load_dwordx4 v%d, %s, s%d offen offset:%d lds' % (vD0 if j < 4 else vD1, srd, sDma, (j % 4) * 1024))
        if j == 7:
            out.append('s_add_u32 s%d, s%d, 0x8000' % (sDma, sDma))
            if redirect and cfg.get('AT_REDIR', 0):
                out.append('s_cmp_eq_u32 s%d, s%d' % (sI, sRd0))
                out.append('s_cselect_b32 s%d, s%d, s%d' % (sDma, sG, sDma))
                out.append('s_cmp_eq_u32 s%d, s%d' % (sI, sRd1))
                out.append('s_cselect_b32 s%d, s35, s%d' % (sDma, sDma))
        return out
    def dma_tile(stage, z=0):
        for j in range(8):
            for t in dma_piece(stage, j): a.e(t)
            zero(z)

    if cfg.get('AT_QT', 0):
        a.e('s_lshl_b32 s34, s%d, 13' % sT2)
        a.e('s_add_u32 s34, s34, s%d' % sQ)
        a.e('buffer_load_dword v125, v126, %s, s34 offen' % srd)
    dma_tile(0)
    for f in range(32):
        if f and f % 4 == 0:
            a.e('s_add_u32 s%d, s%d, 0x1000' % (sQ, sQ))
        a.e('buffer_load_dwordx4 %s, v%d, %s, s%d offen offset:%d' % (ar(4 * f, 4), vLane16, srd, sQ, (f % 4) * 1024))
        zero(6)
    zero(1000)
    a.e('v_mov_b32 v%d, 0' % vL0)
    a.e('v_mov_b32 v%d, 0' % vL1)
    a.e('s_mov_b32 s%d, 0' % sI)

    q = LdsQ()
    def ring(n): return RING + 4 * ((n % 64) % NR)
    def kread(stage, n):
        reg = ring(n); ks, kt = n // 2, n % 2
        return [('ds', 'ds_read_b128 %s, v%d offset:%d' % (vr(reg, 4), vK[stage >> 1], (stage & 1) * 32768 + ks * 2048 + kt * 256), [reg])]
    def vread(stage, dt):
        reg = ring(32 + dt)
        off = (stage & 1) * 32768 + dt * 1024
        return [('ds', 'ds_read_b64_tr_b16 %s, v%d offset:%d' % (vr(reg, 2), vV[stage >> 1], off), [reg + 1000]),
                ('ds', 'ds_read_b64_tr_b16 %s, v%d offset:%d' % (vr(reg + 2, 2), vV[stage >> 1], off + 256), [reg])]
    chk = [True]
    def emit_item(it):
        if isinstance(it, tuple):
            a.e(it[1]); q.issue(it[2], chk[0])
        else:
            a.e(it)

    a.e('s_waitcnt vmcnt(32)')
    a.e('s_barrier')
    PD = 8
    for n in range(PD):
        for it in kread(0, n): emit_item(it)
    late = [dma_piece(1, j) for j in range(8)] + [dma_piece(2, j) for j in range(8)]
    nl = 0
    for n in range(32):
        ks, kt = n // 2, n % 2
        if n + PD < 32:
            for it in kread(0, n + PD): emit_item(it)
        if kt == 0:
            a.e('s_waitcnt vmcnt(%d)' % (nl + 30 - 2 * ks))
        q.wait_for(a, q.need([ring(n)]))
        for qs in range(2):
            a.e('%s %s, %s, %s, %s' % (MF, vr(Sreg(0, kt, qs), 4), vr(ring(n), 4), Qreg(ks, qs), '0' if ks == 0 else vr(Sreg(0, kt, qs), 4)))
        q.consume(ring(n))
        if (n < 8 or n % 2 == 1) and late:
            for t in late.pop(0): a.e(t)
            nl += 1
    assert not late
    a.e('s_waitcnt vmcnt(8)')
    a.e('s_barrier')
    for r_ in range(4): a.e('v_mov_b32 v%d, -1' % (P + r_))
    if FUSE:
        a.e('s_lshl_b32 s34, s%d, 4' % sT0)
        a.e('s_lshr_b32 s36, s2, 4')
        a.e('s_add_u32 s34, s34, s36')
        a.e('s_lshl_b32 s34, s34, 16')
        a.e('s_add_u32 s34, s34, %d' % PO_OFF)
        a.e('s_add_u32 s36, s34, 0x8000')
        a.e('s_bitcmp%d_b32 s2, 3' % cfg.get('TSWAP', 1))
        a.e('s_cbranch_scc1 %s_nofill' % name)
        for j in range(16):
            a.e('buffer_store_dwordx4 %s, v%d, %s, s%d offen offset:%d' % (vr(P, 4), vD0 if j % 8 < 4 else vD1, srd, 34 if j < 8 else 36, (j % 4) * 1024))
        a.label('%s_nofill' % name)
    else:
        a.e('s_lshl_b32 s34, s2, 15')
        a.e('s_add_u32 s34, s34, %d' % PO_OFF)
        for j in range(8):
            a.e('buffer_store_dwordx4 %s, v%d, %s, s34 offen offset:%d' % (vr(P, 4), vD0 if j < 4 else vD1, srd, (j % 4) * 1024))

    if cfg.get('AT_DMA2', 0):
        for j in range(4):
            for t in dma_piece(3, j): a.e(t)
    n_tail = cfg.get('NTAIL', 8)
    for n in range(n_tail):
        for it in kread(1, n): emit_item(it)

    def head_wait():
        idx = max(q.need([ring(k2)]) for k2 in range(WG))
        assert idx > q.done
        q.wait_for(a, idx)
    def rowmax(b, qs, dst, tmp):
        r0, r1 = Sreg(b, 0, qs), Sreg(b, 1, qs)
        a.e('v_max3_f32 v%d, v%d, v%d, v%d' % (dst, r0, r0 + 1, r0 + 2))
        a.e('v_max3_f32 v%d, v%d, v%d, v%d' % (dst, dst, r0 + 3, r1))
        a.e('v_max3_f32 v%d, v%d, v%d, v%d' % (dst, dst, r1 + 1, r1 + 2))
        a.e('v_max_f32 v%d, v%d, v%d' % (dst, dst, r1 + 3))
        a.e('v_mov_b32 v%d, v%d' % (tmp, dst))
        a.e('v_permlane16_swap_b32 v%d, v%d' % (tmp, dst))
        a.e('v_max_f32 v%d, v%d, v%d' % (dst, dst, tmp))
        a.e('v_mov_b32 v%d, v%d' % (tmp, dst))
        a.e('v_permlane32_swap_b32 v%d, v%d' % (tmp, dst))
        a.e('v_max_f32 v%d, v%d, v%d' % (dst, dst, tmp))
    for qs in range(2):
        rowmax(0, qs, vMx, vT0)
        for kt in range(2):
            for r in range(4):
                a.e('v_sub_f32 v%d, v%d, v%d' % (Sreg(0, kt, qs) + r, Sreg(0, kt, qs) + r, vMx))
        for r in range(4):
            a.e('v_sub_f32 v%d, 0, v%d' % (NEGM + 4 * qs + r, vMx))

    def softmax_items(b):
        items = []
        for qs in range(2):
            for kt in range(2):
                for pr in range(2):
                    r0 = Sreg(b, kt, qs) + 2 * pr; r1 = r0 + 1
                    items.append('v_exp_f32 v%d, v%d' % (r0, r0))
                    items.append('v_exp_f32 v%d, v%d' % (r1, r1))
                    items.append('v_add_f32 v%d, v%d, v%d' % (vL[qs], vL[qs], r0))
                    items.append('v_cvt_pk_bf16_f32 v%d, v%d, v%d' % (P + 4 * qs + 2 * kt + pr, r0, r1))
                    items.append('v_add_f32 v%d, v%d, v%d' % (vL[qs], vL[qs], r1))
        return items

    LAT = cfg.get('LAT', 8)
    EARLY = cfg.get('EARLY', 22)
    BARG = cfg.get('BARG', 112)
    def body(u, final=False):
        bc, bn = u % 2, (u + 1) % 2
        stK, stV = (u + 1) % 4, u
        mf = [None] * 128
        need = [None] * 64
        for n in range(32):
            if final: break
            ks, kt = n // 2, n % 2
            for qs in range(2):
                pos = qs ^ (kt if cfg.get('AT_GRAY', 1) else 0)
                mf[2 * n + pos] = '%s %s, %s, %s, %s' % (MF, vr(Sreg(bn, kt, qs), 4), vr(ring(n), 4), Qreg(ks, qs), vr(NEGM + 4 * qs, 4) if ks == 0 else vr(Sreg(bn, kt, qs), 4))
            need[n] = ring(n)
        for dt in range(32):
            for qs in range(2):
                pos = qs ^ ((dt & 1) if cfg.get('AT_GRAY', 1) else 0)
                mf[64 + 2 * dt + pos] = '%s %s, %s, %s, %s' % (MF, Oreg(dt, qs), vr(ring(32 + dt), 4), vr(P + 4 * qs, 4), Oreg(dt, qs))
            need[32 + dt] = ring(32 + dt)
        pre = [[] for _ in range(129)]
        if final:
            sm = [] if NO_SM else softmax_items(bc)
            for dt in range(32):
                its = vread(stV, dt)
                sl = 32 + dt - 9
                pre[2 * sl] += [its[0]]; pre[2 * sl + 1] += [its[1]]
            for j, it in enumerate(sm):
                pre[2 * (32 - 9) + (j * 18) // len(sm)].append(it)
            waits = set(range(64, 128, 4))
        else:
            cap = [2] * 128
            def wgap(k):
                g = 2 * (k - k % WG)
                return g
            waits = set(wgap(k) for k in range(WG, 64) if not (BARG <= wgap(k) < 128))
            for g in waits: cap[g] -= 1
            cap[BARG] -= 2; pre[BARG].append(('bar',))
            cap[0] -= 1 if u == 1 else 2
            cap[127] -= 1
            pre[125].append('s_add_u32 s%d, s%d, 1' % (sI, sI)); cap[125] -= 1
            if u in (1, 2):
                pre[126].append('s_cmp_eq_u32 s%d, s%d' % (sI, sN2)); cap[126] -= 1
            ds = []
            def ring_ok(k):
                return 2 * (k - NR) + 2
            for n in range(n_tail, 32):
                for it in kread(stK, n): ds.append((it, max(0, wgap(n) - EARLY, ring_ok(n)), wgap(n) - LAT))
            for dt in range(32):
                k = 32 + dt
                w = min(wgap(k), BARG)
                for it in vread(stV, dt): ds.append((it, max(w - EARLY, ring_ok(k)), w - LAT))
            for n in range(n_tail):
                for it in kread((u + 2) % 4, n): ds.append((it, max(BARG + 1, ring_ok(64 + n)), 120))
            dl = [d[2] for d in ds]
            for x in range(len(ds) - 2, -1, -1):
                dl[x] = min(dl[x], dl[x + 1] - 1)
            sm = [] if NO_SM else [(it, 2 if it.startswith('v_exp') else 1, 1) for it in softmax_items(bc)]
            Sn = S[bn]
            mx = ['v_max3_f32 v%d, v%d, v%d, v%d' % (vMx, Sn, Sn + 1, Sn + 2)]
            for r in range(3, 15, 2):
                mx.append('v_max3_f32 v%d, v%d, v%d, v%d' % (vMx, vMx, Sn + r, Sn + r + 1))
            mx.append('v_max_f32 v%d, v%d, v%d' % (vMx, vMx, Sn + 15))
            mx.append('v_cmp_lt_f32 vcc, 0x41000000, v%d' % vMx)
            sm += [(it, 1, cfg.get('MX_START', 70)) for it in mx]
            dm = []
            post = {}
            if cfg.get('AT_DMA2', 0):
                def place(stage, js, g0):
                    for x, j in enumerate(js):
                        for it in dma_piece(stage, j):
                            if it.startswith('s_add_u32 m0'): post.setdefault(g0 - 1, []).append(it); cap[g0 - 1] -= 1
                            elif it.startswith('buffer'): pre[g0 + x].append(it); cap[g0 + x] -= 2
                            else: post.setdefault(g0 + x + 1, []).append(it); cap[g0 + x + 1] -= 1
                place((u + 3) % 4, range(4, 8), BARG - 5)
                place(u, range(0, 4), 121)
            elif not NO_DMA:
                g0, gs = cfg.get('DMA_START', 66), cfg.get('DMA_STEP', 5)
                for j in range(8):
                    for x, it in enumerate(dma_piece((u + 3) % 4, j, True)):
                        dm.append((it, g0 + gs * j + (-1 if it.startswith('s_add_u32 m0') else 0)))
            di = si = mi = 0
            last_m0 = -9
            for g in range(128):
                used_ds = False
                while cap[g] > 0:
                    ds_ready = di < len(ds) and ds[di][1] <= g and not used_ds
                    ds_urgent = ds_ready and dl[di] <= g + cfg.get('URG', 0)
                    sm_ready = si < len(sm) and sm[si][2] <= g and sm[si][1] <= cap[g]
                    dm_ready = mi < len(dm) and dm[mi][1] <= g and not (dm[mi][0].startswith('buffer') and (last_m0 == g or (used_ds and cfg.get('DMA_EXCL'))))
                    if ds_urgent:
                        pre[g].append(ds[di][0]); di += 1; cap[g] -= 1; used_ds = True
                    elif sm_ready and sm[si][1] == 2:
                        pre[g].append(sm[si][0]); cap[g] -= 2; si += 1
                    elif dm_ready:
                        if dm[mi][0].startswith('s_add_u32 m0'): last_m0 = g
                        if dm[mi][0].startswith('buffer') and cfg.get('DMA_EXCL'): used_ds = True
                        pre[g].append(dm[mi][0]); mi += 1; cap[g] -= 1
                    elif ds_ready:
                        pre[g].append(ds[di][0]); di += 1; cap[g] -= 1; used_ds = True
                    elif sm_ready:
                        pre[g].append(sm[si][0]); cap[g] -= 1; si += 1
                    else:
                        break
                pre[g] += post.get(g, [])
                if g == 62: assert NO_SM or si >= 40, ('softmax not finished in phase A', si)
                if g == BARG - 1: assert mi == len(dm), 'dma not finished'
                if di < len(ds): assert ds[di][2] + 4 > g, ('ds late', di, g, ds[di])
            assert di == len(ds) and si == len(sm), (di, len(ds), si, len(sm))
            if u == 0 and cfg.get('SHOW'):
                for g in range(128):
                    print(g, 'W' if g in waits else ' ', [ (x[1] if len(x) > 1 else 'BAR').split()[0] if isinstance(x, tuple) else x.split()[0] for x in pre[g]])
        for pos in range(128):
            k = pos // 2
            for it in pre[pos]:
                if isinstance(it, tuple) and it[0] == 'bar':
                    a.e('s_waitcnt vmcnt(%d) lgkmcnt(0)' % (0 if NO_DMA else 8)); q.drained()
                    a.e('s_barrier')
                else:
                    emit_item(it)
            if mf[pos] is None: continue
            if pos == 127 and not final:
                head_wait()
            if pos in waits:
                idx = 0
                for k2 in range(k, min(64, k + (2 if final else WG))):
                    assert need[k2] in q.pending, ('not issued', k2, pos)
                    idx = max(idx, q.need([need[k2]]))
                q.wait_for(a, idx)
            assert q.need([need[k]]) <= q.done and need[k] in q.pending, ('uncovered', pos)
            a.e(mf[pos])
            if pos % 2 == 1: q.consume(need[k])

    def rare(u):
        bn = (u + 1) % 2
        a.label('%s_rare%d' % (name, u), reset=True)
        a.e('s_nop 15')
        for qs in range(2):
            rowmax(bn, qs, vMx, vT0)
            a.e('v_max_f32 v%d, 0, v%d' % (vMx, vMx))
            a.e('v_sub_f32 v%d, 0, v%d' % (vT0, vMx))
            a.e('v_exp_f32 v%d, v%d' % (vT0, vT0))
            for kt in range(2):
                for r in range(4):
                    a.e('v_sub_f32 v%d, v%d, v%d' % (Sreg(bn, kt, qs) + r, Sreg(bn, kt, qs) + r, vMx))
            for r in range(4):
                a.e('v_sub_f32 v%d, v%d, v%d' % (NEGM + 4 * qs + r, NEGM + 4 * qs + r, vMx))
            a.e('v_mul_f32 v%d, v%d, v%d' % (vL[qs], vL[qs], vT0))
            for dt in range(32):
                o = Obase(dt, qs)
                if o < 128:
                    for j in range(4): a.e('v_mul_f32 v%d, v%d, v%d' % (128 + o + j, 128 + o + j, vT0))
                else:
                    for j in range(4): a.e('v_accvgpr_read_b32 v%d, a%d' % (P + j, o + j))
                    for j in range(4): a.e('v_mul_f32 v%d, v%d, v%d' % (P + j, P + j, vT0))
                    for j in range(4): a.e('v_accvgpr_write_b32 a%d, v%d' % (o + j, P + j))
        a.e('s_nop 3')
        a.e('s_branch %s_back%d' % (name, u))

    head_wait()
    if STAMP and (not FUSE or cfg.get('S1') == 4): stamp_mid(a, 76)
    a.raw('.p2align 6')
    a.label('%s_loop' % name)
    a.record = []
    qstate0 = q.state()
    saved = {}
    for u in range(4):
        body(u)
        a.e('s_cbranch_vccnz %s_rare%d' % (name, u))
        a.label('%s_back%d' % (name, u))
        if u in (1, 2):
            a.e('s_cbranch_scc1 %s_final%d' % (name, u + 1))
            saved[u + 1] = (copy.deepcopy(q), list(a.hist))
        assert q.state() == qstate0, (q.state(), qstate0)
    a.e('s_branch %s_loop' % name)
    rec = [x[1] for x in a.record if x[0] == 'ins']
    a.record = None
    viol = check_seq(rec + rec[:40])
    assert not viol, viol
    loop_len = len(rec)

    for u in (2, 3):
        a.label('%s_final%d' % (name, u))
        q.__dict__.update(saved[u][0].__dict__); a.hist = saved[u][1]
        q.pending = set()
        if cfg.get('AT_TOUCH', 0):
            a.e('s_lshr_b32 s34, s2, 3')
            a.e('s_lshl_b32 s34, s34, 15')
            a.e('s_add_u32 s34, s34, %d' % W2_OFF)
            a.e('buffer_load_dword v125, v127, %s, s34 offen' % srd)
            a.e('s_sub_u32 s34, s34, %d' % W2_OFF)
            a.e('s_min_u32 s34, s34, %d' % (4 << 15))
            a.e('s_add_u32 s34, s34, %d' % TPC_OFF)
            a.e('buffer_load_dword v125, v127, %s, s34 offen' % srd)
            a.e('s_getpc_b64 s[60:61]')
            lbl = '%s_np%d' % (name, u)
            a.label(lbl)
            a.e('s_add_u32 s60, s60, tail_kernel-%s' % lbl)
            a.e('s_addc_u32 s61, s61, 0')
            a.e('v_min_u32 v124, tail_kernel_end-tail_kernel, v127')
            a.e('global_load_dword v125, v124, s[60:61]')
        body(u, final=True)
        if u == 2:
            a.e('s_branch %s_epi' % name)
    a.label('%s_epi' % name)
    if STAMP and (not FUSE or cfg.get('S1') == 4): stamp_mid(a, 77)
    a.e('s_cmp_eq_u32 s%d, 0' % sValid)
    a.e('s_cbranch_scc1 %s_%s' % (name, 'sig' if FUSE else 'end'))
    a.e('s_nop 15')
    for qs in range(2):
        l = vL[qs]
        a.e('v_mov_b32 v%d, v%d' % (vT0, l))
        a.e('v_permlane16_swap_b32 v%d, v%d' % (vT0, l))
        a.e('v_add_f32 v%d, v%d, v%d' % (l, l, vT0))
        a.e('v_mov_b32 v%d, v%d' % (vT0, l))
        a.e('v_permlane32_swap_b32 v%d, v%d' % (vT0, l))
        a.e('v_add_f32 v%d, v%d, v%d' % (l, l, vT0))
    a.e('v_cmp_gt_u32 vcc, 0x100, v%d' % vLane16)
    a.e('v_cndmask_b32 v0, v%d, v%d, vcc' % (NEGM + 4, NEGM))
    a.e('v_cndmask_b32 v1, v%d, v%d, vcc' % (vL1, vL0))
    a.e('v_sub_f32 v0, 0, v0')
    a.e('v_lshrrev_b32 v2, 1, v%d' % vLane16)
    a.e('s_mov_b64 exec, 0xffffffff')
    a.e('buffer_store_dwordx2 v[0:1], v2, %s, s%d offen' % (srd, sMl))
    a.e('s_mov_b64 exec, -1')
    a.e('v_rcp_f32 v4, v%d' % vL0)
    a.e('v_rcp_f32 v5, v%d' % vL1)
    a.dense = True
    t = 0
    for D in range(16):
        for qs in range(2):
            f = D * 2 + qs
            tmp = RING + 4 * (t % 8); t += 1
            srcs = []
            for e in range(2):
                o = Obase(2 * D + e, qs)
                if o < 128:
                    srcs.append(128 + o)
                else:
                    s_ = 8 + 8 * (f % 3) + 4 * e
                    for j in range(4): a.e('v_accvgpr_read_b32 v%d, a%d' % (s_ + j, o + j))
                    srcs.append(s_)
            for e in range(2):
                for j in range(2):
                    r_ = vr(srcs[e] + 2 * j, 2)
                    a.e('v_pk_mul_f32 %s, %s, v[4:5] op_sel:[0,%d] op_sel_hi:[1,%d]' % (r_, r_, qs, qs))
            for e in range(2):
                for j in range(2):
                    a.e('v_cvt_pk_f16_f32 v%d, v%d, v%d' % (tmp + 2 * e + j, srcs[e] + 2 * j, srcs[e] + 2 * j + 1))
            if f: a.e('s_add_u32 s%d, s%d, 0x1000' % (sOut, sOut))
            a.e('buffer_store_dwordx4 %s, v%d, %s, s%d offen' % (vr(tmp, 4), vLane16, srd, sOut))
    a.dense = False
    if cfg.get('AT_BACK', 0):
        if cfg.get('AT_BACK31', 1):
            a.e('s_cmp_eq_u32 s%d, 31' % sN2)
            a.e('s_cbranch_scc1 %s_nb' % name)
        a.e('s_sub_u32 s%d, s%d, 0x7000' % (sOut, sOut))
        a.e('s_waitcnt vmcnt(%d)' % (32 - 8 * cfg['AT_BACK']))
        for j in range(cfg['AT_BACK']):
            a.e('buffer_load_dword v125, v126, %s, s%d offen' % (srd, sOut))
            a.e('s_add_u32 s%d, s%d, 0x2000' % (sOut, sOut))
        a.label('%s_nb' % name)
    if FUSE:
        a.label('%s_sig' % name, reset=True)
        a.e('s_lshl_b32 s34, s%d, 3' % sT0)
        a.e('s_add_u32 s34, s34, s%d' % sT1)
        a.e('s_lshl_b32 s34, s34, 7')
        a.e('s_add_u32 s34, s34, %d' % CNT_OFF)
        a.e('v_mov_b32 v2, 1')
        a.e('v_mov_b32 v3, 0')
        a.e('s_lshl_b32 s35, s%d, 6' % sWave)
        a.e('v_lshrrev_b32 v0, 4, v%d' % vLane16)
        a.e('v_add_u32 v0, s35, v0')
        a.e('s_waitcnt vmcnt(0)')
        a.e('s_mov_b64 exec, 1')
        a.e('buffer_atomic_add v2, v3, %s, s34 offen sc1' % srd)
        a.e('s_mov_b64 exec, -1')
        if STAMP and cfg.get('S1') == 4: stamp_mid(a, 2)
        a.e('s_barrier')
        a.e('s_branch tail_body')
    else:
        if STAMP: stamp_end(a, sWave, '%s_end' % name)
    a.label('%s_end' % name)
    a.e('s_endpgm')
    for u in range(4):
        rare(u)
    return dict(name=name, vgpr=512, sgpr=96, accum=256, grid=256, block=256, lds=163840 if FUSE else 131072, loop_len=loop_len)
```

```python
from asmlib import *
from layout import *
MF = 'v_mfma_f32_16x16x32_bf16'

def make_srd(a, d, ptr, nbytes):
    a.e('s_mov_b32 s%d, s%d' % (d, ptr))
    a.e('s_and_b32 s%d, s%d, 0xffff' % (d + 1, ptr + 1))
    a.e('s_mov_b32 s%d, %d' % (d + 2, nbytes))
    a.e('s_mov_b32 s%d, 0x00020000' % (d + 3))

class VmQ:
    def __init__(self): self.n = 0; self.done = 0; self.where = {}
    def issue(self, key=None):
        self.n += 1
        if key is not None: self.where[key] = self.n
    def wait(self, a, key):
        idx = self.where[key]
        if idx <= self.done: return
        N = min(self.n - idx, 63)
        a.e('s_waitcnt vmcnt(%d)' % N); self.done = self.n - N
    def wait_all(self, a):
        if self.done < self.n:
            a.e('s_waitcnt vmcnt(0)'); self.done = self.n

class LgQ(VmQ):
    def wait(self, a, key):
        idx = self.where[key]
        if idx <= self.done: return
        N = min(self.n - idx, 15)
        a.e('s_waitcnt lgkmcnt(%d)' % N); self.done = self.n - N
    def wait_all(self, a):
        if self.done < self.n:
            a.e('s_waitcnt lgkmcnt(0)'); self.done = self.n

def quad_reduce(a, op, reg, tmp):
    a.e('v_mov_b32 v%d, v%d' % (tmp, reg))
    a.e('v_permlane16_swap_b32 v%d, v%d' % (tmp, reg))
    a.e('%s v%d, v%d, v%d' % (op, reg, reg, tmp))
    a.e('v_mov_b32 v%d, v%d' % (tmp, reg))
    a.e('v_permlane32_swap_b32 v%d, v%d' % (tmp, reg))
    a.e('%s v%d, v%d, v%d' % (op, reg, reg, tmp))

import struct
def f2u(x): return struct.unpack('<I', struct.pack('<f', x))[0]
def fhex(x): return '0x%08x' % f2u(x)

def code_prefetch(a, name, vtmp, vdst, n, sp=60, start=None, end=None, back=True, part_sgpr=None):
    start = start or name; end = end or (name + '_end')
    a.e('s_getpc_b64 s[%d:%d]' % (sp, sp + 1))
    lbl = '%s_pf%d' % (name, len(a.lines))
    a.label(lbl)
    a.e('s_add_u32 s%d, s%d, %s-%s' % (sp, sp, start, lbl))
    a.e('s_addc_u32 s%d, s%d, %s' % (sp + 1, sp + 1, '-1' if back else '0'))
    a.e('v_lshlrev_b32 v%d, 7, v0' % vtmp)
    if part_sgpr is not None: a.e('v_add_u32 v%d, s%d, v%d' % (vtmp, part_sgpr, vtmp))
    for k in range(n):
        if k: a.e('v_add_u32 v%d, 0x8000, v%d' % (vtmp, vtmp))
        a.e('v_min_u32 v%d, %s-%s, v%d' % (vdst, end, start, vtmp))
        a.e('global_load_dword v%d, v%d, s[%d:%d]' % (vdst, vdst, sp, sp + 1))
        vdst += 1
    return n

def l2_touch(a, srd, base, nbytes, vtmp, vdst, stmp, vq=None, gran=128, base_sgpr=None, nparts=32, part_expr=None):
    per = 256 * gran
    sh = {128: 7, 64: 6}[gran]
    if part_expr is None:
        a.e('s_lshr_b32 s%d, s2, 3' % stmp)
    else:
        part_expr(stmp)
    a.e('s_mul_i32 s%d, s%d, %d' % (stmp, stmp, per))
    if base_sgpr is not None: a.e('s_add_u32 s%d, s%d, s%d' % (stmp, stmp, base_sgpr))
    a.e('s_add_u32 s%d, s%d, %d' % (stmp, stmp, base))
    a.e('v_lshlrev_b32 v%d, %d, v0' % (vtmp, sh))
    n = (nbytes + per * nparts - 1) // (per * nparts)
    for k in range(n):
        if k: a.e('s_add_u32 s%d, s%d, %d' % (stmp, stmp, per * nparts))
        a.e('buffer_load_dword v%d, v%d, %s, s%d offen' % (vdst, vtmp, srd, stmp))
        if vq is not None: vq.issue()

class Stream:
    def __init__(self, a, vq, pace):
        self.a = a; self.vq = vq; self.pace = pace; self.q = []; self.last = -10**9; self.issued = set()
    def add(self, pre, ins, key, ready=None, cost=1.0):
        self.q.append((pre, ins, key, ready, cost))
    def _issue(self):
        pre, ins, key, ready, cost = self.q.pop(0)
        for p in pre: self.a.e(p)
        self.a.e(ins); self.vq.issue(key); self.issued.add(key)
        self.last = max(self.last + self.pace, self.a.clock - self.pace // 2) + (cost - 1.0) * self.pace
    def tick(self):
        if self.q and self.a.clock - self.last >= self.pace and (self.q[0][3] is None or self.q[0][3]()):
            self._issue(); return True
        return False
    def force(self, key):
        while key not in self.issued:
            assert self.q[0][3] is None or self.q[0][3](), ('stream blocked', self.q[0][2], key)
            self._issue()
    def burst(self, n):
        for _ in range(n):
            if self.q and (self.q[0][3] is None or self.q[0][3]()): self._issue()
    def wait(self, key):
        self.force(key); self.vq.wait(self.a, key)

class MStream:
    def __init__(self, a, vq, pace, nq):
        self.a = a; self.vq = vq; self.pace = pace; self.qs = [[] for _ in range(nq)]; self.last = -10**9; self.issued = set(); self.loc = {}; self.look = 24; self.pace2 = 80
    def add(self, qi, need, pre, ins, key, ready=None):
        self.qs[qi].append((need, pre, ins, key, ready)); self.loc[key] = qi
    def _issue(self, qi):
        need, pre, ins, key, ready = self.qs[qi].pop(0)
        for p in pre:
            self.a.e(p)
            if p.startswith('buffer_'): self.vq.issue()
        self.a.e(ins); self.vq.issue(key); self.issued.add(key)
        self.last = self.a.clock
    def _best(self):
        c = [(q[0][0], i) for i, q in enumerate(self.qs) if q and (q[0][4] is None or q[0][4]())]
        return min(c)[1] if c else None
    def tick(self):
        if self.a.clock - self.last < self.pace: return False
        if self.vq.n - self.vq.done >= self.look and self.a.clock - self.last < self.pace2: return False
        b = self._best()
        if b is None: return False
        self._issue(b); return True
    def burst(self, n):
        for _ in range(n):
            b = self._best()
            if b is None: return
            self._issue(b)
    def wait(self, key):
        late = 0
        while key not in self.issued:
            q = self.qs[self.loc[key]]
            assert q[0][4] is None or q[0][4](), ('stream blocked', q[0][3], key)
            self._issue(self.loc[key]); late += 1
        if late: print('  WARNING: late issue', key, late)
        self.slack = getattr(self, 'slack', []) + [(key, self.vq.n - self.vq.where[key])]
        self.vq.wait(self.a, key)
    def empty(self): return not any(self.qs)

class F:
    __slots__ = ('kind', 'text', 'post', 'fn', 'ins')
    def __init__(self, kind, text=None, post=None, fn=None):
        self.kind = kind; self.text = text; self.post = post; self.fn = fn
        self.ins = Ins(text) if text else None
    def emit(self, a):
        n0 = len(a.sizes)
        if self.fn: self.fn()
        if self.text: a.e(self.text)
        if self.post: self.post()
        return len(a.sizes) - n0
def FV(text): return F('v', text)
def FS(text): return F('s', text)
def FD(text, lq, key=None): return F('d', text, post=lambda: lq.issue(key))
def FW(fn): return F('w', fn=fn)
def FM(text, vq, key=None): return F('m', text, post=lambda: vq.issue(key))
def indep(x, y):
    a_, b_ = x.ins, y.ins
    return not (a_.w & (b_.r | b_.w)) and not (a_.r & b_.w)

class GStream(MStream):
    def __init__(self, *k):
        MStream.__init__(self, *k); self.cur = []
    def _emit1(self):
        t, key = self.cur.pop(0)
        self.a.e(t)
        if t.startswith('buffer_') or t.startswith('global_'):
            self.vq.issue(key); self.last = self.a.clock
            if key is not None: self.issued.add(key)
    def flush(self):
        while self.cur: self._emit1()
    def _issue(self, qi):
        self.flush(); self._load(qi); self.flush()
    def _load(self, qi):
        need, pre, ins, key, ready = self.qs[qi].pop(0)
        self.cur = [(p, None) for p in pre] + [(ins, key)]
    def want(self):
        if not self.cur:
            lead = 16
            if self.a.clock + lead - self.last < self.pace: return None
            if self.vq.n - self.vq.done >= self.look and self.a.clock + lead - self.last < self.pace2: return None
            b = self._best()
            if b is None: return None
            self._load(b)
        return self.cur[0][0]
    def wait(self, key):
        if key not in self.issued: self.flush()
        MStream.wait(self, key)
    def tick(self):
        if self.cur: self.flush(); return True
        return MStream.tick(self)
    def empty(self): return not self.cur and MStream.empty(self)

class Sched:
    def __init__(self, a, st):
        self.a = a; self.st = st; self.q = []; self.vmcap = 2
    def add(self, items, front=False):
        if front: self.q[0:0] = items
        else: self.q.extend(items)
    def flush(self):
        while self.q: self.gap(10**6, vm=False)
    def gap(self, cap=2, vm=True):
        a, st, q = self.a, self.st, self.q
        used = 0; lastv = False
        if cap <= 0: return 0
        if q and q[0].kind == 'm':
            q.pop(0).emit(a); used += 2
        elif vm and st is not None:
            h = st.want()
            if h is not None and not h.startswith('s_') and cap >= self.vmcap:
                st._emit1(); used += 2
        while used < cap:
            h = st.want() if (vm and st is not None) else None
            if q and q[0].kind == 'd' and not lastv:
                used += q.pop(0).emit(a); continue
            if h is not None and h.startswith('s_'):
                st._emit1(); used += 1; lastv = False; continue
            if not q: break
            it = q[0]
            if it.kind in 'dm':
                if cap > 1000: used += q.pop(0).emit(a); lastv = False; continue
                j = 1
                while j < len(q) and q[j].kind in 'dm': j += 1
                if j < len(q) and j <= 3 and q[j].kind == 'v' and all(indep(q[i], q[j]) for i in range(j)):
                    used += q.pop(j).emit(a); lastv = True; continue
                break
            if it.kind == 'v' and used == 0 and cap > 1 and len(q) > 1 and q[1].kind == 'd' and indep(it, q[1]):
                used += q.pop(1).emit(a); continue
            if it.kind == 'x':
                if cap - used < 2:
                    break
                q.pop(0).emit(a); used += 2; lastv = True; continue
            n = q.pop(0).emit(a); used += n
            if n: lastv = (it.kind == 'v')
        return used
```

```python
import math
from common import *
from attn16 import stamp_begin, stamp_mid, stamp_end

def gen_in(a, name='in_kernel', cfg=None):
    cfg = cfg or {}
    STAMP = cfg.get('STAMP', False)
    RW = 52; NW = 192; TB = 208
    vLane, vLane16, vK, vRow, vI, vQ4, vX, vSw, vSr = 192, 193, 194, 195, 196, 197, 198, 199, 200
    vN = 202
    C1, C2, G, PK, SS = 204, 206, 208, 216, 224
    SQ2 = SS + 16
    sWave, sT, sCG, sW, sA, sB, sC = 3, 6, 7, 12, 13, 14, 15
    STL = 65536
    ws = 's[8:11]'
    def acc(t, ts): return (t * 4 + ts) * 4

    kernel_begin(a, name)
    a.e('s_and_b32 s20, s2, 7')
    a.e('s_lshr_b32 s21, s2, 4')
    a.e('s_lshl_b32 s%d, s20, 4' % sT)
    a.e('s_add_u32 s%d, s%d, s21' % (sT, sT))
    a.e('s_cmp_ge_u32 s2, 256')
    a.e('s_cbranch_scc1 %s_end' % name)
    a.e('s_cmp_ge_u32 s%d, 125' % sT)
    a.e('s_cbranch_scc1 %s_end' % name)
    a.e('s_load_dwordx2 s[4:5], s[0:1], 80')
    a.e('s_load_dwordx2 s[16:17], s[0:1], 0')
    if STAMP: stamp_begin(a)
    a.e('s_bfe_u32 s%d, s2, 0x10003' % sCG)
    a.e('s_and_b32 s53, s21, %d' % cfg.get('IN_ROT', 0))
    a.e('s_lshl_b32 s54, s53, 6')
    a.e('s_lshl_b32 s55, s53, 12')
    a.e('s_lshl_b32 s56, s53, 11')
    a.e('v_lshrrev_b32 v1, 6, v0')
    a.e('v_and_b32 v%d, 63, v0' % vLane)
    a.e('v_readfirstlane_b32 s%d, v1' % sWave)
    a.e('v_lshlrev_b32 v%d, 4, v%d' % (vLane16, vLane))
    a.e('v_lshrrev_b32 v%d, 4, v%d' % (vQ4, vLane))
    a.e('v_and_b32 v%d, 15, v%d' % (vI, vLane))
    a.e('v_lshlrev_b32 v%d, 10, v%d' % (vX, vI))
    a.e('v_lshl_add_u32 v%d, v%d, 4, v%d' % (vX, vQ4, vX))
    a.e('s_lshl_b32 s%d, s%d, 16' % (sA, sT))
    a.e('s_lshl_b32 s%d, s%d, 14' % (sB, sWave))
    a.e('s_add_u32 s%d, s%d, s%d' % (sB, sA, sB))
    a.e('s_lshl_b32 s%d, s%d, 2' % (sW, sCG))
    a.e('s_add_u32 s%d, s%d, s%d' % (sW, sW, sWave))
    a.e('s_mov_b32 s46, s%d' % sW)
    a.e('s_mul_i32 s%d, s%d, %d' % (sW, sW, NW * 1024))
    a.e('s_add_u32 s%d, s%d, %d' % (sW, sW, W1_OFF))
    a.e('s_waitcnt lgkmcnt(0)')
    make_srd(a, 20, 16, 8192000)
    vq = VmQ()
    RAWX = 128
    for j in range(16):
        a.e('s_xor_b32 s57, s54, %d' % (64 * j))
        a.e('s_add_u32 s57, s57, s%d' % sB)
        a.e('buffer_load_dwordx4 %s, v%d, s[20:23], s57 offen' % (vr(RAWX + 4 * j, 4), vX))
        vq.issue(('x', j))
    if cfg.get('CPF', 1):
        code_prefetch(a, name, 250, 251, 2); vq.issue(); vq.issue()
    make_srd(a, 8, 4, WS_BYTES)
    st = GStream(a, vq, cfg.get('IN_PACE', 56), 1)
    st.look = 100; st.pace2 = 56
    state = dict(cons=-1)
    for n in range(NW):
        pre = ['s_xor_b32 s58, s55, %d' % ((n // 4) * 4096), 's_add_u32 s58, s58, s%d' % sW] if n % 4 == 0 else []
        st.add(0, n, pre, 'buffer_load_dwordx4 %s, v%d, %s, s58 offen offset:%d' % (ar(4 * (n % RW), 4), vLane16, ws, (n % 4) * 1024), ('w', n),
               (lambda nn=n: state['cons'] >= nn - RW))
    st.burst(cfg.get('IN_W0', 8))
    a.e('s_mov_b32 s90, 0xffff0000')
    a.e('v_and_b32 v%d, 1, v%d' % (vK, vQ4))
    a.e('v_mul_u32_u24 v%d, 12, v%d' % (vK, vK))
    a.e('v_xor_b32 v%d, v%d, v%d' % (vK, vK, vI))
    a.e('v_lshlrev_b32 v%d, 4, v%d' % (vK, vK))
    a.e('v_lshl_add_u32 v%d, v%d, 9, v%d' % (vK, vQ4, vK))
    a.e('v_lshrrev_b32 v%d, 2, v%d' % (vN, vI))
    a.e('v_lshlrev_b32 v%d, 3, v%d' % (vN, vN))
    a.e('v_and_b32 v%d, 3, v%d' % (vN + 1, vI))
    a.e('v_add_u32 v%d, v%d, v%d' % (vN, vN, vN + 1))
    a.e('v_lshlrev_b32 v%d, 5, v%d' % (vRow, vN))
    a.e('v_and_b32 v%d, 1, v%d' % (vN + 1, vQ4))
    a.e('v_lshl_add_u32 v%d, v%d, 4, v%d' % (vRow, vN + 1, vRow))
    a.e('v_mul_u32_u24 v%d, 12, v%d' % (vN + 1, vN + 1))
    a.e('v_xor_b32 v%d, v%d, v%d' % (vN, vN, vN + 1))
    a.e('v_lshlrev_b32 v%d, 4, v%d' % (vN, vN))
    a.e('v_lshl_add_u32 v%d, v%d, 9, v%d' % (vN, vQ4, vN))
    a.e('v_lshrrev_b32 v%d, 1, v%d' % (vN + 1, vQ4))
    a.e('v_lshl_add_u32 v%d, v%d, 14, v%d' % (vRow, vN + 1, vRow))
    a.e('v_xor_b32 v%d, 64, v%d' % (vN + 1, vN))
    a.e('s_lshr_b32 s%d, s%d, 1' % (sB, sWave))
    a.e('s_lshl_b32 s%d, s%d, 15' % (sB, sB))
    a.e('s_and_b32 s%d, s%d, 1' % (sC, sWave))
    a.e('s_lshl_b32 s%d, s%d, 8' % (sC, sC))
    a.e('s_add_u32 s%d, s%d, s%d' % (sB, sB, sC))
    a.e('v_add_u32 v%d, s%d, v%d' % (vX, sB, vK))
    a.e('s_mov_b32 s48, s%d' % sA)
    if XF_OFF: a.e('s_add_u32 s48, s48, %d' % XF_OFF)
    c1 = -2.0 * math.log2(math.e) * math.sqrt(2.0 / math.pi); c2 = c1 * 0.044715
    for r, v in ((C1, c1), (C2, c2)):
        a.e('v_mov_b32 v%d, %s' % (r, fhex(v))); a.e('v_mov_b32 v%d, %s' % (r + 1, fhex(v)))
    T = G
    p0, p1, nm = vr(T, 2), vr(T + 2, 2), vr(T + 4, 2)
    a.dense = True
    for j in range(16):
        vq.wait(a, ('x', j))
        for d in range(4):
            a.e('v_lshlrev_b32 v%d, 16, v%d' % (8 * j + 2 * d, RAWX + 4 * j + d))
            a.e('v_and_b32 v%d, s90, v%d' % (8 * j + 2 * d + 1, RAWX + 4 * j + d))
        if j == 0:
            a.e('v_pk_add_f32 %s, %s, %s' % (p0, vr(0, 2), vr(2, 2))); a.e('v_pk_add_f32 %s, %s, %s' % (p1, vr(4, 2), vr(6, 2)))
        else:
            for d in range(4): a.e('v_pk_add_f32 %s, %s, %s' % ((p0, p1)[d % 2], (p0, p1)[d % 2], vr(8 * j + 2 * d, 2)))
    if STAMP: stamp_mid(a, 4)
    st.burst(cfg.get('IN_W1', 8))
    a.e('v_pk_add_f32 %s, %s, %s' % (p0, p0, p1))
    a.e('v_add_f32 v%d, v%d, v%d' % (T, T, T + 1))
    quad_reduce(a, 'v_add_f32', T, T + 1)
    a.e('v_mul_f32 v%d, %s, v%d' % (T + 4, fhex(-1.0 / 512), T))
    for p in range(64):
        r = vr(2 * p, 2)
        a.e('v_pk_add_f32 %s, %s, %s op_sel_hi:[1,0]' % (r, r, nm))
        q = (p0, p1)[p % 2]
        if p < 2: a.e('v_pk_mul_f32 %s, %s, %s' % (q, r, r))
        else: a.e('v_pk_fma_f32 %s, %s, %s, %s' % (q, r, r, q))
        if p % 16 == 15: st.burst(cfg.get('IN_W2', 2))
    a.e('v_pk_add_f32 %s, %s, %s' % (p0, p0, p1))
    a.e('v_add_f32 v%d, v%d, v%d' % (T, T, T + 1))
    quad_reduce(a, 'v_add_f32', T, T + 1)
    a.e('v_mul_f32 v%d, %s, v%d' % (T, fhex(1.0 / 512), T))
    a.e('v_add_f32 v%d, %s, v%d' % (T, fhex(1e-5), T))
    a.e('v_rsq_f32 v%d, v%d' % (T + 4, T))
    for j4 in range(4):
        for j in range(4 * j4, 4 * j4 + 4):
            for d in range(4):
                r = vr(8 * j + 2 * d, 2)
                a.e('v_pk_mul_f32 %s, %s, %s op_sel_hi:[1,0]' % (r, r, nm))
            for d in range(4):
                r = 8 * j + 2 * d
                a.e('v_cvt_pk_bf16_f32 v%d, v%d, v%d' % (RAWX + 4 * j + d, r, r + 1))
        for j in range(4 * j4, 4 * j4 + 4):
            a.e('ds_write_b128 v%d, %s offset:%d' % (vX, vr(RAWX + 4 * j, 4), 2048 * j))
        st.burst(cfg.get('IN_W2', 2))
    a.dense = False
    a.e('s_lshl_b32 s%d, s%d, 12' % (sB, sWave))
    a.e('s_add_u32 s47, s%d, s%d' % (sA, sB))
    a.e('s_waitcnt lgkmcnt(0)')
    a.e('s_barrier')
    if STAMP: stamp_mid(a, 0)
    a.e('s_cmp_eq_u32 s%d, 0' % sCG)
    a.e('s_cbranch_scc1 %s_g' % name)
    import copy
    snap = (copy.deepcopy(vq.__dict__), [list(q) for q in st.qs], set(st.issued), st.last, a.clock, a.mfree)

    def npairs(t, blk): return [acc(t, 2 * blk) + 2 * j for j in range(4)]
    def body(isg):
        lq = LgQ(); sc = Sched(a, st); clk = []; deferred = []
        a.e('s_add_u32 s%d, s47, %d' % (sB, G_OFF if isg else U_OFF))
        a.e('s_add_u32 s%d, s%d, 0x8000' % (sC, sB))
        def treads(kk):
            ks = kk % 16; out = []
            for ts in range(4):
                dst = ar(TB + ((kk % 3) * 4 + ts) * 4, 4)
                if kk < 32: out.append(FD('ds_read_b128 %s, v%d offset:%d' % (dst, vN + (ts & 1), (ts >> 1) * 32768 + ks * 2048), lq, (kk, ts)))
                else: out.append(FD('ds_read_b128 %s, v%d offset:%d' % (dst, vK, (ts >> 1) * 32768 + ks * 2048 + (ts & 1) * 256), lq, (kk, ts)))
            return out
        def nstore(o, t, blk):
            return FM('buffer_store_dwordx4 %s, v%d, %s, s%d offen offset:%d' % (vr(o, 4), vRow, ws, sB if blk == 0 else sC, (t >> 1) * 1024 + (t & 1) * 128), vq)
        def burst(c):
            if isg and c >= 1:
                t, blk = (c - 1) >> 1, (c - 1) & 1
                for j, r in enumerate(npairs(t, blk)):
                    sj, qj = vr(SS + 8 * blk + 2 * j, 2), vr(SQ2 + 8 * blk + 2 * j, 2)
                    if t == 0: a.e('v_pk_mul_f32 %s, %s, %s' % (qj, vr(r, 2), vr(r, 2)))
                    else:
                        a.e('v_pk_fma_f32 %s, %s, %s, %s' % (qj, vr(r, 2), vr(r, 2), qj))
                        a.e('v_pk_add_f32 %s, %s, %s' % (sj, vr(r, 2), vr(npairs(0, blk)[j], 2) if t == 1 else sj))
            if c < 16:
                g = [vr(G + 2 * j, 2) for j in range(4)]; x = [vr(r, 2) for r in npairs(c >> 1, c & 1)]
                for j in range(4): a.e('v_pk_mul_f32 %s, %s, %s' % (g[j], x[j], x[j]))
                for j in range(4): a.e('v_pk_fma_f32 %s, %s, %s, %s' % (g[j], g[j], vr(C2, 2), vr(C1, 2)))
                for j in range(4): a.e('v_pk_mul_f32 %s, %s, %s' % (g[j], g[j], x[j]))
        def rest(c):
            t, blk = c >> 1, c & 1
            x0 = acc(t, 2 * blk); out = []
            for j in range(8): out.append(F('x', 'v_exp_f32 v%d, v%d' % (G + j, G + j)))
            for j in range(8): out.append(FV('v_add_f32 v%d, 1.0, v%d' % (G + j, G + j)))
            for j in range(8): out.append(F('x', 'v_rcp_f32 v%d, v%d' % (G + j, G + j)))
            for j in range(8): out.append(FV('v_mul_f32 v%d, v%d, v%d' % (x0 + j, x0 + j, G + j)))
            if not isg:
                for j in range(4): out.append(FV('v_cvt_pk_bf16_f32 v%d, v%d, v%d' % (x0 + j, x0 + 2 * j, x0 + 2 * j + 1)))
                deferred.append(nstore(x0, t, blk))
                if st.empty() or not cfg.get('IN_DEFER', 0):
                    for _ in range(cfg.get('IN_DN', 3)):
                        if deferred: out.append(deferred.pop(0))
            return out
        def xf_stores():
            out = []
            ng = cfg.get('IN_XG', 0)
            for j in (range(ng) if isg else range(ng, 16)):
                out.append(FS('s_xor_b32 s57, s56, %d' % (j * 2048)))
                out.append(FS('s_add_u32 s57, s57, s48'))
                out.append(FM('buffer_store_dwordx4 %s, v%d, %s, s57 offen' % (vr(RAWX + 4 * j, 4), vX, ws), vq))
            return out
        for f in treads(0) + treads(1): f.emit(a)
        sm0 = a.store_mod; a.store_mod = cfg.get('IN_SM', sm0)
        for kk in range(48):
            part, ks = kk // 16, kk % 16
            if ks == 0: clk.append(a.clock)
            if STAMP and kk in (16, 32): stamp_mid(a, kk // 16); lq.done = lq.n
            if kk >= 16 and kk % 2 == 0:
                c = (kk - 16) // 2
                sc.flush(); st.flush()
                a.dense = True; burst(c); a.dense = False
                sc.add(rest(c))
            if kk == cfg.get('IN_XS', 14): sc.add(xf_stores())
            lq.wait(a, (kk, 3))
            st.wait(('w', kk * 4 + 3))
            if kk < 46: sc.add(treads(kk + 2), front=True)
            for t4 in range(4):
                n = kk * 4 + t4; t = 4 * part + t4
                for x, ts in enumerate(range(4) if t4 % 2 == 0 else range(3, -1, -1)):
                    ops = [ar(4 * (n % RW), 4), ar(TB + ((kk % 3) * 4 + ts) * 4, 4)]
                    if part < 2: ops.reverse()
                    a.e('%s %s, %s, %s, %s' % (MF, vr(acc(t, ts), 4), ops[0], ops[1], '0' if ks == 0 else vr(acc(t, ts), 4)))
                    if x == 3: state['cons'] = n
                    cap = 0 if (x == 3 and t4 == 3) else 2
                    left = (1 - kk % 2) * 16 + (3 - t4) * 4 + 3 - x
                    units = sum(2 if f.kind in 'xm' else 1 for f in sc.q)
                    if kk >= 16 and cap and units > cfg.get('IN_PRESS', 1.5) * left: cap += 1
                    sc.gap(cap)
        sc.add(deferred); sc.flush()
        a.store_mod = sm0
        assert st.empty()
        if cfg.get('V'): print('in', isg, [x[1] for x in st.slack[-48:]], clk + [a.clock])
        if STAMP: stamp_mid(a, 3)
        a.dense = True
        a.e('s_lshl_b32 s50, s46, 12')
        a.e('s_add_u32 s50, s50, s%d' % sA)
        a.e('s_add_u32 s50, s50, %d' % QF_OFF)
        a.e('s_add_u32 s51, s50, 0x8000')
        if isg: burst(16)
        for ts in range(4):
            for dd in range(2):
                o = acc(8 + 2 * dd, ts)
                for e in range(2):
                    for j in range(2):
                        r = acc(8 + 2 * dd + e, ts) + 2 * j
                        a.e('v_cvt_pk_bf16_f32 v%d, v%d, v%d' % (o + 2 * e + j, r, r + 1))
        for ts in range(4):
            for dd in range(2):
                a.e('buffer_store_dwordx4 %s, v%d, %s, s%d offen offset:%d' % (vr(acc(8 + 2 * dd, ts), 4), vLane16, ws, 50 if ts < 2 else 51, dd * 2048 + (ts & 1) * 1024))
        if isg:
            for sh in (8, 4, 2, 1):
                for r in range(SS, SS + 32):
                    a.e('v_add_f32_dpp v%d, v%d, v%d row_ror:%d row_mask:0xf bank_mask:0xf' % (r, r, r, sh))
            a.e('s_lshl_b32 s52, s%d, 9' % sWave)
            a.e('s_add_u32 s52, s52, %d' % STL)
            a.e('v_lshlrev_b32 v%d, 5, v%d' % (vSw, vQ4))
            a.e('v_add_u32 v%d, s52, v%d' % (vSw, vSw))
            a.e('v_lshlrev_b32 v%d, 2, v%d' % (vSr, vLane))
            a.e('v_add_u32 v%d, %d, v%d' % (vSr, STL, vSr))
            a.e('s_mov_b32 exec_lo, 0x00010001'); a.e('s_mov_b32 exec_hi, 0x00010001')
            for x in range(8):
                a.e('ds_write_b128 v%d, %s offset:%d' % (vSw, vr(SS + 4 * x, 4), (x >> 2) * 256 + ((x >> 1) & 1) * 128 + (x & 1) * 16))
            a.e('s_mov_b64 exec, -1')
            a.e('s_waitcnt lgkmcnt(0)')
            a.e('s_barrier')
            R4 = G
            for w in range(4):
                a.e('ds_read2st64_b32 %s, v%d offset0:%d offset1:%d' % (vr(R4 + 2 * w, 2), vSr, 2 * w, 2 * w + 1))
            a.e('v_lshlrev_b32 v%d, 2, v%d' % (vSr, vLane))
            a.e('v_add_u32 v%d, s52, v%d' % (vSr, vSr))
            a.e('s_waitcnt lgkmcnt(0)')
            a.e('v_pk_add_f32 %s, %s, %s' % (vr(R4, 2), vr(R4, 2), vr(R4 + 2, 2)))
            a.e('v_pk_add_f32 %s, %s, %s' % (vr(R4 + 4, 2), vr(R4 + 4, 2), vr(R4 + 6, 2)))
            a.e('v_pk_add_f32 %s, %s, %s' % (vr(R4, 2), vr(R4, 2), vr(R4 + 4, 2)))
            a.e('v_mul_f32 v%d, %s, v%d' % (R4, fhex(1.0 / 512), R4))
            a.e('v_mul_f32 v%d, %s, v%d' % (R4 + 1, fhex(1.0 / 512), R4 + 1))
            a.e('v_fma_f32 v%d, -v%d, v%d, v%d' % (R4 + 1, R4, R4, R4 + 1))
            a.e('v_max_f32 v%d, 0, v%d' % (R4 + 1, R4 + 1))
            a.e('v_add_f32 v%d, %s, v%d' % (R4 + 1, fhex(1e-5), R4 + 1))
            a.e('v_rsq_f32 v%d, v%d' % (R4 + 1, R4 + 1))
            a.e('v_mul_f32 v%d, -v%d, v%d' % (R4, R4, R4 + 1))
            a.e('ds_write2st64_b32 v%d, v%d, v%d offset0:8 offset1:9' % (vSr, R4 + 1, R4))
            a.e('s_waitcnt lgkmcnt(0)')
            for x in range(8):
                a.e('ds_read_b128 %s, v%d offset:%d' % (vr(SS + 4 * x, 4), vSw, 2048 + (x >> 2) * 256 + ((x >> 1) & 1) * 128 + (x & 1) * 16))
            a.e('s_waitcnt lgkmcnt(0)')
            for t2 in range(4):
                for t in (2 * t2, 2 * t2 + 1):
                    for blk in range(2):
                        for j, r in enumerate(npairs(t, blk)):
                            a.e('v_pk_fma_f32 %s, %s, %s, %s' % (vr(r, 2), vr(r, 2), vr(SS + 8 * blk + 2 * j, 2), vr(SQ2 + 8 * blk + 2 * j, 2)))
                        x0 = acc(t, 2 * blk)
                        for j in range(4): a.e('v_cvt_pk_bf16_f32 v%d, v%d, v%d' % (x0 + j, x0 + 2 * j, x0 + 2 * j + 1))
                for t in (2 * t2, 2 * t2 + 1):
                    for blk in range(2): nstore(acc(t, 2 * blk), t, blk).emit(a)
        a.dense = False
        if STAMP: stamp_end(a, sWave)
    body(False)
    a.e('s_endpgm')
    a.label('%s_g' % name, reset=True)
    vq.__dict__.update(snap[0]); st.qs = snap[1]; st.issued = snap[2]; st.last = snap[3] + (a.clock - snap[4]); st.cur = []
    state['cons'] = -1
    body(True)
    a.label('%s_end' % name)
    a.e('s_endpgm')
    return dict(name=name, vgpr=512, sgpr=96, accum=256, grid=256, block=256, lds=65536 + 4096)
```

```python
import math
from common import *
from attn16 import stamp_begin, stamp_mid, stamp_end

N_M, N_VO, N_RL, N_DW, N_TP = 128, 64, 40, 0, 12
P = 1040

def gen_prep(a, name='prep_kernel', cfg=None):
    cfg = cfg or {}
    STAMP = cfg.get('STAMP', False)
    total = N_M + N_VO + N_RL + N_DW + N_TP
    kernel_begin(a, name)
    a.e('s_cmp_ge_u32 s2, 256')
    a.e('s_cbranch_scc1 %s_end' % name)
    a.e('s_load_dwordx16 s[16:31], s[0:1], 0')
    a.e('s_load_dwordx2 s[4:5], s[0:1], 80')
    if STAMP: stamp_begin(a)
    if cfg.get('CPF', 1):
        a.e('s_lshr_b32 s62, s2, 3')
        a.e('s_min_u32 s62, s62, 5')
        a.e('s_lshl_b32 s62, s62, 15')
        code_prefetch(a, name, 120, 121, 1, end=cfg.get('LAST_END', 'tail_kernel_end'), part_sgpr=62)
    a.e('v_lshrrev_b32 v1, 6, v0')
    a.e('v_and_b32 v2, 63, v0')
    a.e('v_readfirstlane_b32 s3, v1')
    a.e('v_lshlrev_b32 v3, 4, v2')
    a.e('v_lshrrev_b32 v4, 4, v2')
    a.e('v_and_b32 v5, 15, v2')
    a.e('s_waitcnt lgkmcnt(0)')
    make_srd(a, 8, 4, WS_BYTES)
    def xtouch():
        if not cfg.get('XTOUCH', 0): return
        make_srd(a, 52, 16, 8192000)
        a.e('s_and_b32 s56, s2, 7')
        a.e('s_lshl_b32 s56, s56, 5')
        a.e('s_lshr_b32 s57, s2, 3')
        a.e('s_add_u32 s56, s56, s57')
        a.e('s_lshl_b32 s56, s56, 15')
        a.e('v_lshlrev_b32 v122, 7, v0')
        a.e('buffer_load_dword v123, v122, s[52:55], s56 offen')
    ws = 's[8:11]'
    a.e('s_cmp_lt_u32 s2, %d' % N_M)
    a.e('s_cbranch_scc1 %s_m' % name)
    a.e('s_cmp_lt_u32 s2, %d' % (N_M + N_VO))
    a.e('s_cbranch_scc1 %s_vo' % name)
    a.e('s_cmp_lt_u32 s2, %d' % (N_M + N_VO + N_RL))
    a.e('s_cbranch_scc1 %s_rl' % name)
    a.e('s_cmp_lt_u32 s2, %d' % total)
    a.e('s_cbranch_scc1 %s_tp' % name)
    a.e('s_sub_u32 s6, s2, %d' % total)
    a.e('s_cmp_ge_u32 s6, 6')
    a.e('s_cbranch_scc1 %s_xt' % name)
    a.e('s_lshl_b32 s6, s6, 12')
    a.e('s_add_u32 s6, s6, %d' % CNT_OFF)
    for r_ in range(8, 12): a.e('v_mov_b32 v%d, 0' % r_)
    a.e('v_lshlrev_b32 v6, 4, v0')
    a.e('buffer_store_dwordx4 v[8:11], v6, %s, s6 offen' % ws)
    a.e('s_branch %s_xt' % name)
    a.label('%s_tp' % name, reset=True)

    a.e('s_sub_u32 s6, s2, %d' % (N_M + N_VO + N_RL + N_DW))
    a.e('s_cmp_lt_u32 s6, 4')
    a.e('s_cselect_b32 s32, s24, s28')
    a.e('s_cselect_b32 s33, s25, s29')
    a.e('s_cselect_b32 s34, 1, 2')
    a.e('s_cselect_b32 s39, 0, 16')
    a.e('s_lshl_b32 s34, s34, 10')
    a.e('s_mul_i32 s35, s34, 31')
    make_srd(a, 12, 32, 0)
    a.e('s_mov_b32 s14, s35')
    a.e('s_lshl_b32 s36, s6, 2')
    a.e('s_add_u32 s36, s36, s3')
    a.e('s_mul_i32 s37, s36, 9216')
    a.e('s_add_u32 s37, s37, %d' % TPC_OFF)
    a.e('s_sub_u32 s36, s36, s39')
    a.e('s_lshl_b32 s36, s36, 6')
    a.e('v_and_b32 v6, 3, v2')
    a.e('v_add_u32 v6, 1, v6')
    a.e('v_mul_lo_u32 v6, v6, s34')
    a.e('v_lshrrev_b32 v7, 2, v2')
    a.e('v_lshlrev_b32 v7, 1, v7')
    a.e('v_add_u32 v7, s36, v7')
    a.e('v_sub_u32 v6, v7, v6')
    for h in range(36):
        m, hi = h // 2, h % 2
        for g2 in range(2):
            a.e('buffer_load_ushort v%d, v6, s[12:15], 0 offen offset:%d' % (16 + 36 * hi + 18 * g2 + m, 32 * g2))
        if h < 35: a.e('v_add_u32 v6, s34, v6')
    a.e('s_waitcnt vmcnt(0)')
    for d in range(36):
        a.e('v_lshl_or_b32 v%d, v%d, 16, v%d' % (16 + d, 52 + d, 16 + d))
    xtouch()
    for q in range(9):
        if q and q % 4 == 0: a.e('s_add_u32 s37, s37, 0x1000')
        a.e('buffer_store_dwordx4 %s, v3, %s, s37 offen offset:%d' % (vr(16 + 4 * q, 4), ws, (q % 4) * 1024))
    if STAMP: stamp_end(a, 3)
    a.e('s_endpgm')
    def rows_dma(srd, nrows, s_src, s_lds):
        for r in range(nrows):
            a.e('s_add_u32 m0, s%d, %d' % (s_lds, r * P))
            a.e('s_add_u32 s45, s%d, %d' % (s_src, r * 3072))
            a.e('buffer_load_dwordx4 v3, %s, s45 offen lds' % srd)

    a.label('%s_m' % name, reset=True)
    make_srd(a, 12, 18, 512 * 1536 * 2)
    a.e('s_lshr_b32 s32, s2, 3')
    a.e('s_and_b32 s33, s2, 7')
    a.e('s_lshl_b32 s34, s32, 5'); a.e('s_lshl_b32 s35, s3, 3'); a.e('s_add_u32 s34, s34, s35'); a.e('s_mul_i32 s34, s34, 3072')
    a.e('s_mul_i32 s36, s3, %d' % (8 * P))
    rows_dma('s[12:15]', 8, 34, 36)
    a.e('s_lshl_b32 s34, s33, 6'); a.e('s_lshl_b32 s35, s3, 4'); a.e('s_add_u32 s34, s34, s35'); a.e('s_mul_i32 s34, s34, 3072')
    a.e('s_add_u32 s34, s34, 1024')
    a.e('s_mul_i32 s36, s3, %d' % (16 * P)); a.e('s_add_u32 s36, s36, %d' % (32 * P))
    rows_dma('s[12:15]', 16, 34, 36)
    a.e('v_lshrrev_b32 v6, 2, v5'); a.e('v_lshlrev_b32 v6, 3, v6'); a.e('v_and_b32 v7, 3, v5'); a.e('v_add_u32 v6, v6, v7')
    a.e('v_mul_u32_u24 v6, %d, v6' % P)
    a.e('v_lshl_add_u32 v6, v4, 4, v6')
    a.e('s_lshr_b32 s36, s3, 1'); a.e('s_lshl_b32 s36, s36, 3'); a.e('s_and_b32 s37, s3, 1'); a.e('s_add_u32 s36, s36, s37')
    a.e('s_mul_i32 s36, s36, %d' % (4 * P)); a.e('s_add_u32 s36, s36, %d' % (32 * P))
    a.e('v_add_u32 v7, s36, v6')
    a.e('s_mul_i32 s34, s33, 192')
    a.e('s_lshl_b32 s35, s32, 2')
    a.e('s_add_u32 s34, s34, s35')
    a.e('s_add_u32 s34, s34, s3')
    a.e('s_lshl_b32 s34, s34, 10')
    a.e('s_add_u32 s34, s34, %d' % (W1_OFF + 128 * 1024))
    a.e('s_mov_b32 s38, %s' % fhex(512 ** -0.5 * math.log2(math.e)))
    a.e('s_waitcnt vmcnt(%d)' % cfg.get('XT_EARLY', 0))
    xtouch()
    a.e('s_waitcnt vmcnt(%d)' % (1 if cfg.get('XTOUCH', 0) else 0))
    a.e('s_barrier')
    if STAMP: stamp_mid(a, 0)
    lq = LgQ()
    def rd(kk):
        b = 32 + 12 * (kk % 5)
        a.e('ds_read_b128 %s, v6 offset:%d' % (vr(b, 4), kk * 64)); lq.issue()
        a.e('ds_read_b128 %s, v6 offset:%d' % (vr(b + 4, 4), kk * 64 + 4 * P)); lq.issue()
        a.e('ds_read_b128 %s, v7 offset:%d' % (vr(b + 8, 4), kk * 64)); lq.issue(kk)
    for kk in range(4): rd(kk)
    for kk in range(16):
        if kk + 4 < 16: rd(kk + 4)
        lq.wait(a, kk)
        b = 32 + 12 * (kk % 5)
        for e in range(2):
            a.e('%s %s, %s, %s, %s' % (MF, vr(16 + 4 * e, 4), vr(b + 4 * e, 4), vr(b + 8, 4), '0' if kk == 0 else vr(16 + 4 * e, 4)))
    for r in range(8):
        a.e('v_mul_f32 v%d, s38, v%d' % (16 + r, 16 + r))
    for d in range(4):
        a.e('v_cvt_pk_bf16_f32 v%d, v%d, v%d' % (24 + d, 16 + 2 * d, 17 + 2 * d))
    a.e('buffer_store_dwordx4 v[24:27], v3, %s, s34 offen' % ws)
    if STAMP: stamp_end(a, 3)
    a.e('s_endpgm')

    def load_strip():
        a.e('v_lshrrev_b32 v7, 3, v2')
        a.e('v_bfe_u32 v8, v2, 4, 1')
        a.e('v_lshlrev_b32 v8, 2, v8')
        a.e('v_and_b32 v9, 7, v2')
        a.e('v_xor_b32 v8, v8, v9')
        a.e('v_mul_lo_u32 v7, v7, s42')
        a.e('v_lshl_add_u32 v7, v8, 4, v7')
        a.e('s_lshl_b32 s41, s42, 3')
        a.e('s_lshl_b32 s43, s3, 4')
        a.e('s_mul_i32 s43, s43, s41')
        a.e('s_add_u32 s40, s40, s43')
        a.e('s_lshl_b32 s44, s3, 14')
        for j in range(16):
            a.e('s_add_u32 m0, s44, %d' % (1024 * j))
            if j: a.e('s_add_u32 s40, s40, s41')
            a.e('buffer_load_dwordx4 v7, s[12:15], s40 offen lds')
        a.e('v_bfe_u32 v8, v2, 2, 2')
        a.e('v_lshl_add_u32 v9, v4, 3, v8')
        a.e('v_lshlrev_b32 v9, 7, v9')
        a.e('v_lshrrev_b32 v8, 1, v8')
        a.e('v_lshl_add_u32 v9, v8, 6, v9')
        a.e('v_and_b32 v8, 3, v2')
        a.e('v_lshlrev_b32 v8, s63, v8')
        a.e('v_add_u32 v8, v8, v9')
        a.e('v_xor_b32 v9, 64, v8')
        a.e('v_add_u32 v10, s59, v8')
        a.e('v_xor_b32 v11, 64, v10')

    a.label('%s_vo' % name, reset=True)
    a.e('s_sub_u32 s6, s2, %d' % N_M)
    a.e('s_lshr_b32 s33, s6, 3')
    a.e('s_and_b32 s32, s6, 7')
    make_srd(a, 12, 20, 512 * 512 * 2)
    make_srd(a, 48, 18, 512 * 1536 * 2)
    a.e('s_lshl_b32 s40, s33, 7')
    a.e('s_mov_b32 s42, 1024')
    a.e('s_mov_b32 s63, 3'); a.e('s_mov_b32 s59, 32')
    load_strip()
    a.e('s_lshl_b32 s34, s32, 6'); a.e('s_lshl_b32 s35, s3, 4'); a.e('s_add_u32 s34, s34, s35'); a.e('s_mul_i32 s34, s34, 3072')
    a.e('s_add_u32 s34, s34, 2048')
    a.e('s_mul_i32 s36, s3, %d' % (16 * P)); a.e('s_add_u32 s36, s36, 65536')
    rows_dma('s[48:51]', 16, 34, 36)
    a.e('s_bitcmp1_b32 s3, 0')
    a.e('s_cselect_b64 vcc, -1, 0')
    a.e('v_cndmask_b32 v8, v8, v9, vcc')
    a.e('v_cndmask_b32 v9, v10, v11, vcc')
    a.e('v_mul_u32_u24 v6, %d, v5' % P)
    a.e('v_lshl_add_u32 v6, v4, 4, v6')
    a.e('s_lshr_b32 s36, s3, 1')
    a.e('s_mul_i32 s37, s36, %d' % (32 * P)); a.e('s_add_u32 s37, s37, 65536')
    a.e('v_add_u32 v6, s37, v6')
    a.e('s_lshr_b32 s34, s33, 1')
    a.e('s_lshl_b32 s34, s34, 4')
    a.e('s_lshl_b32 s35, s32, 1'); a.e('s_add_u32 s35, s35, s36')
    a.e('s_add_u32 s34, s34, s35')
    a.e('s_lshl_b32 s34, s34, 3')
    a.e('s_and_b32 s35, s3, 1'); a.e('s_lshl_b32 s35, s35, 1')
    a.e('s_add_u32 s34, s34, s35')
    a.e('s_and_b32 s35, s33, 1'); a.e('s_lshl_b32 s35, s35, 2')
    a.e('s_add_u32 s34, s34, s35')
    a.e('s_lshl_b32 s34, s34, 10')
    a.e('s_add_u32 s34, s34, %d' % W2_OFF)
    a.e('s_waitcnt vmcnt(%d)' % cfg.get('XT_EARLY', 0))
    xtouch()
    a.e('s_waitcnt vmcnt(%d)' % (1 if cfg.get('XTOUCH', 0) else 0))
    a.e('s_barrier')
    if STAMP: stamp_mid(a, 0)
    lq = LgQ()
    def rd2(kk):
        b = 32 + 16 * (kk % 3)
        for e in range(2):
            a.e('ds_read_b128 %s, v6 offset:%d' % (vr(b + 4 * e, 4), kk * 64 + 16 * P * e)); lq.issue()
        for o in range(2):
            a.e('ds_read_b64_tr_b16 %s, v%d offset:%d' % (vr(b + 8 + 4 * o, 2), 8 + o, kk * 4096)); lq.issue()
            a.e('ds_read_b64_tr_b16 %s, v%d offset:%d' % (vr(b + 8 + 4 * o + 2, 2), 8 + o, kk * 4096 + 512)); lq.issue(kk)
    rd2(0); rd2(1)
    for kk in range(16):
        if kk + 2 < 16: rd2(kk + 2)
        lq.wait(a, kk)
        b = 32 + 16 * (kk % 3)
        for o in range(2):
            for e in range(2):
                acc = vr(16 + 8 * o + 4 * e, 4)
                a.e('%s %s, %s, %s, %s' % (MF, acc, vr(b + 4 * e, 4), vr(b + 8 + 4 * o, 4), '0' if kk == 0 else acc))
    for o in range(2):
        for d in range(4):
            a.e('v_cvt_pk_bf16_f32 v%d, v%d, v%d' % (80 + 4 * o + d, 16 + 8 * o + 2 * d, 17 + 8 * o + 2 * d))
        a.e('buffer_store_dwordx4 %s, v3, %s, s34 offen offset:%d' % (vr(80 + 4 * o, 4), ws, 1024 * o))
    if STAMP: stamp_end(a, 3)
    a.e('s_endpgm')

    a.label('%s_rl' % name, reset=True)
    a.e('s_sub_u32 s6, s2, %d' % (N_M + N_VO))
    a.e('s_mov_b32 s63, 4'); a.e('s_mov_b32 s59, 8')
    a.e('s_cmp_lt_u32 s6, 16')
    a.e('s_cbranch_scc1 %s_rl_mi' % name)
    a.e('s_cmp_lt_u32 s6, 24')
    a.e('s_cbranch_scc1 %s_rl_mo' % name)
    a.e('s_sub_u32 s6, s6, 24')
    a.e('s_lshr_b32 s36, s6, 3')
    a.e('s_and_b32 s33, s6, 7')
    make_srd(a, 12, 30, 1024 * 512 * 2)
    a.e('s_lshl_b32 s40, s33, 7')
    a.e('s_lshl_b32 s37, s36, 19')
    a.e('s_add_u32 s40, s40, s37')
    a.e('s_mov_b32 s42, 1024')
    a.e('s_lshr_b32 s34, s6, 1')
    a.e('s_lshl_b32 s34, s34, 17')
    a.e('s_xor_b32 s37, s6, s36')
    a.e('s_xor_b32 s37, s37, 1')
    a.e('s_and_b32 s37, s37, 1')
    a.e('s_lshl_b32 s37, s37, 16')
    a.e('s_add_u32 s34, s34, s37')
    a.e('s_add_u32 s34, s34, %d' % W3_OFF)
    a.e('s_mov_b32 s35, 4096')
    a.e('s_branch %s_rl_go' % name)
    a.label('%s_rl_mo' % name, reset=True)
    a.e('s_sub_u32 s33, s6, 16')
    a.e('s_mov_b32 s63, 3'); a.e('s_mov_b32 s59, 32')
    make_srd(a, 12, 26, 512 * 512 * 2)
    a.e('s_lshl_b32 s40, s33, 7')
    a.e('s_mov_b32 s42, 1024')
    a.e('s_lshr_b32 s34, s33, 1')
    a.e('s_lshl_b32 s34, s34, 17')
    a.e('s_and_b32 s37, s33, 1')
    a.e('s_lshl_b32 s37, s37, 12')
    a.e('s_add_u32 s34, s34, s37')
    a.e('s_add_u32 s34, s34, %d' % (W2_OFF + 512 * 1024))
    a.e('s_mov_b32 s35, 8192')
    a.e('s_branch %s_rl_go' % name)
    a.label('%s_rl_mi' % name, reset=True)
    make_srd(a, 12, 22, 512 * 1024 * 2)
    a.e('s_lshl_b32 s40, s6, 7')
    a.e('s_mov_b32 s42, 2048')
    a.e('s_xor_b32 s33, s6, 8')
    a.e('s_lshr_b32 s34, s33, 1')
    a.e('s_mul_i32 s34, s34, 192')
    a.e('s_and_b32 s37, s33, 1')
    a.e('s_lshl_b32 s37, s37, 6')
    a.e('s_add_u32 s34, s34, s37')
    a.e('s_lshl_b32 s34, s34, 10')
    a.e('s_add_u32 s34, s34, %d' % W1_OFF)
    a.e('s_mov_b32 s35, 4096')
    a.label('%s_rl_go' % name, reset=True)
    load_strip()
    for r_ in (8, 9, 10, 11): a.e('v_add_u32 v%d, s44, v%d' % (r_, r_))
    a.e('s_lshl_b32 s37, s3, 2')
    a.e('s_mul_i32 s37, s37, s35')
    a.e('s_add_u32 s34, s34, s37')
    for k4 in range(4):
        a.e('s_waitcnt vmcnt(%d)' % (12 - 4 * k4 + 4 * k4))
        for q in range(4):
            b = 16 + 16 * k4 + 4 * q
            ad = 8 + (q >> 1) + 2 * (q & 1)
            a.e('ds_read_b64_tr_b16 %s, v%d offset:%d' % (vr(b, 2), ad, k4 * 4096))
            a.e('ds_read_b64_tr_b16 %s, v%d offset:%d' % (vr(b + 2, 2), ad, k4 * 4096 + 512))
        a.e('s_waitcnt lgkmcnt(0)')
        for q in range(4):
            a.e('buffer_store_dwordx4 %s, v3, %s, s34 offen offset:%d' % (vr(16 + 16 * k4 + 4 * q, 4), ws, 1024 * q))
        if k4 < 3: a.e('s_add_u32 s34, s34, s35')
    a.label('%s_xt' % name)
    xtouch()
    if STAMP: stamp_end(a, 3)
    a.label('%s_end' % name)
    a.e('s_endpgm')
    return dict(name=name, vgpr=128, sgpr=96, accum=128, grid=256, block=256, lds=65536 + 64 * P)

def chan_combine(a, P, n, cnt, oA, oB, tmp):
    a.e('v_add_f32 v%d, v%d, v%d' % (oB, P, P + 2))
    a.e('v_add_f32 v%d, v%d, v%d' % (oA, P + 1, P + 3))
    for i in range(2, n):
        a.e('v_add_f32 v%d, v%d, v%d' % (oB, oB, P + 2 * i))
        a.e('v_add_f32 v%d, v%d, v%d' % (oA, oA, P + 2 * i + 1))
    a.e('v_mul_f32 v%d, %s, v%d' % (oB, fhex(1.0 / n), oB))
    a.e('v_mov_b32 v%d, 0' % (tmp + 1))
    for i in range(n):
        a.e('v_sub_f32 v%d, v%d, v%d' % (tmp, P + 2 * i, oB))
        a.e('v_fmac_f32 v%d, v%d, v%d' % (tmp + 1, tmp, tmp))
    a.e('v_mul_f32 v%d, %s, v%d' % (tmp + 1, fhex(float(cnt)), tmp + 1))
    a.e('v_add_f32 v%d, v%d, v%d' % (oA, oA, tmp + 1))
    a.e('v_mul_f32 v%d, %s, v%d' % (oA, fhex(1.0 / (n * cnt)), oA))
    a.e('v_add_f32 v%d, %s, v%d' % (oA, fhex(1e-5), oA))
    a.e('v_rsq_f32 v%d, v%d' % (oA, oA))
    a.e('v_mul_f32 v%d, v%d, v%d' % (oB, oB, oA))
    a.e('v_sub_f32 v%d, 0, v%d' % (oB, oB))
```

```python
from common import *
from convlib import tok_read_regs
from conv4 import *
from attn16 import stamp_begin, stamp_mid, stamp_end

def gen_tail(a, name='tail_kernel', cfg=None):
    cfg = cfg or {}
    STAMP = cfg.get('STAMP', False)
    TB = 208
    vLane, vLane16, vI, vQ4, TMP, NR = 244, 245, 246, 247, 248, 251
    STG = 98304
    sWave, sK, sW, sA, sB, sC, sU, sStg, sTy, sBt, sTok, sP, sF = 3, 6, 7, 32, 33, 34, 35, 36, 37, 38, 39, 40, 41
    ws = 's[8:11]'
    def acc1(t, f): return (t * 6 + f) * 4
    def srd_off(d, ptr, soff, nbytes):
        a.e('s_add_u32 s%d, s%d, s%d' % (d, ptr, soff))
        a.e('s_addc_u32 s%d, s%d, 0' % (d + 1, ptr + 1))
        a.e('s_and_b32 s%d, s%d, 0xffff' % (d + 1, d + 1))
        a.e('s_mov_b32 s%d, %d' % (d + 2, nbytes))
        a.e('s_mov_b32 s%d, 0x00020000' % (d + 3))

    FUSE = cfg.get('FUSE', 1)
    if FUSE:
        a.raw('.p2align 8'); a.label(name, reset=True); a.label('tail_body')
    else:
        kernel_begin(a, name)
    a.e('s_and_b32 s%d, s2, 3' % sK)
    a.e('s_lshl_b32 s%d, s%d, 4' % (sK, sK))
    a.e('s_lshr_b32 s%d, s2, 4' % sA)
    a.e('s_add_u32 s%d, s%d, s%d' % (sK, sK, sA))
    if not FUSE:
        a.e('s_cmp_ge_u32 s2, 256')
        a.e('s_cbranch_scc1 %s_end' % name)
    a.e('s_cmp_ge_u32 s%d, 63' % sK)
    a.e('s_cbranch_scc1 %s_end' % name)
    if not FUSE: a.e('s_load_dwordx2 s[4:5], s[0:1], 80')
    a.e('s_load_dwordx2 s[52:53], s[0:1], 0')
    a.e('s_load_dwordx2 s[54:55], s[0:1], 64')
    if STAMP and not FUSE: stamp_begin(a)
    if cfg.get('CPF', 1): code_prefetch(a, name, 60, 61, 2)
    a.e('s_bfe_u32 s%d, s2, 0x10003' % sTy)
    if FUSE and cfg.get('TSWAP', 1): a.e('s_xor_b32 s%d, s%d, 1' % (sTy, sTy))
    a.e('s_bfe_u32 s%d, s2, 0x10002' % sBt)
    a.e('s_mov_b32 s90, 0xffff0000')
    a.e('v_lshrrev_b32 v1, 6, v0')
    a.e('v_and_b32 v%d, 63, v0' % vLane)
    a.e('v_readfirstlane_b32 s%d, v1' % sWave)
    a.e('v_lshlrev_b32 v%d, 4, v%d' % (vLane16, vLane))
    a.e('v_lshrrev_b32 v%d, 4, v%d' % (vQ4, vLane))
    a.e('v_and_b32 v%d, 15, v%d' % (vI, vLane))
    a.e('s_lshl_b32 s%d, s%d, 2' % (sW, sTy))
    a.e('s_add_u32 s%d, s%d, s%d' % (sW, sW, sWave))
    a.e('s_mul_i32 s46, s%d, %d' % (sW, 4 * 9216))
    a.e('s_add_u32 s46, s46, %d' % TPM_OFF)
    a.e('s_lshl_b32 s%d, s%d, 17' % (sW, sW))
    a.e('s_add_u32 s%d, s%d, %d' % (sW, sW, W2_OFF))
    a.e('s_lshl_b32 s%d, s%d, 14' % (sStg, sWave))
    a.e('s_add_u32 s%d, s%d, %d' % (sStg, sStg, STG))
    a.e('s_cmp_eq_u32 s%d, 0' % sK)
    a.e('s_cselect_b32 s%d, 0x40000000, 0' % sF)
    a.e('s_mul_i32 s47, s%d, 4096000' % sBt)
    if not FUSE:
        a.e('s_waitcnt lgkmcnt(0)')
        make_srd(a, 8, 4, WS_BYTES)

    def add_w(st, state, ringreg, RW, n0, n1, tw, qi=2, ready=None):
        for n in range(n0, n1):
            pre = []
            if n == 128: pre = ['s_add_u32 s%d, s%d, %d' % (sW, sW, W3_OFF - W2_OFF - 31 * 4096)]
            elif n and n % 4 == 0: pre = ['s_add_u32 s%d, s%d, 0x1000' % (sW, sW)]
            st.add(qi, tw(n), pre, 'buffer_load_dwordx4 %s, v%d, %s, s%d offen offset:%d' % (ringreg(n), vLane16, ws, sW, (n % 4) * 1024), ('w', n),
                   (lambda n=n: state['wcons'] >= n - RW) if ready is None else (lambda n=n: ready(n)))
    RW2 = 52; NPRE = 14
    SLOT2 = [80 + 4 * i for i in range(14)] + [4 * i for i in range(20)] + [136 + 4 * i for i in range(18)]
    def wreg(n): return ar(SLOT2[(n - 128) % RW2], 4)

    def stage1(tr, sc, lq, state, RW, produce):
        st = sc.st
        def tok_reads(ks):
            out = []
            for f in range(6):
                b = TB + ((ks % 2) * 6 + f) * 4
                hi = ks >= 8
                if tr:
                    off = (ks % 8) * 6144 + (f >> 1) * 64 + (f & 1) * 8
                    out.append(FD('ds_read_b64_tr_b16 %s, v%d offset:%d' % (ar(b, 2), NR + hi, off), lq))
                    out.append(FD('ds_read_b64_tr_b16 %s, v%d offset:%d' % (ar(b + 2, 2), NR + hi, off + 768), lq, ('t', ks, f)))
                else:
                    out.append(FD('ds_read_b128 %s, v%d offset:%d' % (ar(b, 4), NR + 2 * hi + ((ks ^ f) & 1), ((ks % 8) * 6 + (f & 6)) * 1024), lq, ('t', ks, f)))
            return out
        def spread(ds):
            q = sc.q; out = []
            while ds:
                out.append(ds.pop(0))
                if q: out.append(q.pop(0))
            sc.q[0:0] = out
        def barrier():
            st.flush(); lq.wait_all(a); a.e('s_barrier')
        BART = cfg.get('T1_BART', 3)
        def gemm(r, plan, midbar):
            for k4 in range(4):
                ks = 4 * r + k4
                blk, fl = plan[k4] if k4 < len(plan) else (None, [])
                if blk is not None:
                    sc.flush(); blk()
                lq.wait(a, ('t', ks, 5))
                sc.add(fl)
                if k4 < 3: spread(tok_reads(ks + 1))
                nxt_blk = min([k for k in range(k4 + 1, 4) if k < len(plan) and plan[k][0] is not None] + [9])
                for t in range(8):
                    n = ks * 8 + t
                    if k4 == 3 and t == BART and midbar:
                        sc.flush(); barrier()
                        sc.add(tok_reads(ks + 1))
                    if t % 2 == 0: st.wait(('w', n + 1))
                    for x, f in enumerate(range(6) if t % 2 == 0 else range(5, -1, -1)):
                        a.e('%s %s, %s, %s, %s' % (MF, vr(acc1(t, f), 4), ar(TB + ((ks % 2) * 6 + f) * 4, 4), ar(4 * (n % RW), 4), '0' if ks == 0 else vr(acc1(t, f), 4)))
                        if x == 5: state['wcons'] = n
                        pos = k4 * 48 + t * 6 + x + 1
                        end = min(nxt_blk * 48, 144 + BART * 6)
                        cap = 2
                        if x == 5 and t % 2 == 1: cap = 1 if t < 7 else 0
                        if midbar and pos < end and len(sc.q) > cfg.get('T1_PRESS', 1.45) * (end - pos): cap += 1
                        sc.gap(cap)
            sc.flush()
        a.dense = True
        for blk, fl in produce(0):
            if blk is not None: blk()
            sc.add(fl)
            while sc.q: sc.gap(6) or sc.gap(10**6, vm=False)
        a.dense = False
        barrier()
        if STAMP and cfg.get('S1') not in (3, 4): stamp_mid(a, 0)
        if STAMP and cfg.get('S1') == 4: stamp_mid(a, 4)
        for f in tok_reads(0): f.emit(a)
        for r in range(3):
            c0 = a.clock
            if r == cfg.get('T1_TOUCH', 9):
                st.flush()
                vt = 249 if tr else 244
                a.e('s_lshr_b32 s62, s2, 3')
                a.e('s_lshl_b32 s62, s62, 2')
                a.e('s_add_u32 s62, s62, s%d' % sWave)
                a.e('s_lshl_b32 s62, s62, 13')
                a.e('s_add_u32 s63, s62, %d' % W3_OFF)
                a.e('v_lshlrev_b32 v%d, 3, v%d' % (vt, vLane16))
                a.e('buffer_load_dword a207, v%d, %s, s63 offen' % (vt, ws)) if not tr else a.e('buffer_load_dword v249, v%d, %s, s63 offen' % (vt, ws))
                st.vq.issue()
                if not tr:
                    a.e('s_lshr_b32 s62, s2, 4')
                    a.e('s_lshl_b32 s62, s62, 2')
                    a.e('s_add_u32 s62, s62, s%d' % sWave)
                    a.e('s_min_u32 s62, s62, 35')
                    a.e('s_lshl_b32 s62, s62, 13')
                    a.e('s_add_u32 s63, s62, %d' % TPM_OFF)
                    a.e('buffer_load_dword a207, v%d, %s, s63 offen' % (vt, ws)); st.vq.issue()
                    a.e('v_lshlrev_b32 v%d, 6, v%d' % (vt, vLane16))
                    a.e('buffer_load_dword a207, v%d, s[24:27], s49 offen' % vt); st.vq.issue()
                    a.e('buffer_load_dword a207, v%d, s[24:27], s49 offen offset:128' % vt); st.vq.issue()
                    a.e('v_lshrrev_b32 v%d, 4, v%d' % (vLane, vLane16))
            gemm(r, produce(r + 1), True)
            if cfg.get('V'): print('  gemm round', a.clock - c0)
            if STAMP and cfg.get('S1') == 1: stamp_mid(a, r + 1); lq.done = lq.n
        state['last'] = True
        gemm(3, [], False)
        if STAMP and cfg.get('S1') == 1: stamp_mid(a, 4)
        if cfg.get('V'): print(name, tr, st.slack)

    def add_x(st, state):
        for k in range(8):
            ts, dd = k // 2, k % 2
            st.add(0, 900, ['s_add_u32 m0, s%d, %d' % (sStg, k * 1024), 's_add_u32 s50, s49, %d' % (ts * 16384 + dd * 64)],
                   'buffer_load_dwordx4 v%d, s[24:27], s50 offen lds' % TMP, ('x', k), lambda: state.get('last', False))
    def x_setup():
        a.e('s_waitcnt lgkmcnt(0)')
        srd_off(24, 52, 47, 0 if cfg.get('NOX') else 4096000)
        a.e('s_lshl_b32 s49, s%d, 16' % sK)
        a.e('s_lshl_b32 s50, s%d, 8' % sWave)
        a.e('s_add_u32 s49, s49, s50')
        a.e('s_lshl_b32 s50, s%d, 7' % sTy)
        a.e('s_add_u32 s49, s49, s50')
        a.e('v_lshlrev_b32 v%d, 10, v%d' % (TMP, vI))
        a.e('v_lshl_add_u32 v%d, v%d, 4, v%d' % (TMP, vQ4, TMP))

    TP2 = 136
    def add_taps2(st, state, pairs, need, ready):
        for p in pairs:
            for q in range(9):
                pre = ['s_add_u32 s43, s46, %d' % (p * 9216 + q * 1024)] if q % 4 == 0 else []
                st.add(1, need + p, pre, 'buffer_load_dwordx4 %s, v%d, %s, s43 offen offset:%d' % (ar(TP2 + 36 * (p % 2) + 4 * q, 4), vLane16, ws, (q % 4) * 1024), ('t2', p, q), (lambda p=p: ready(p)))

    a.e('s_cmp_eq_u32 s%d, 0' % sTy)
    a.e('s_cbranch_scc1 %s_glob' % name)

    RWL = 27; DATA = 108; TP = 136
    CD, UB, PKO, UT2, vS, vRd, vWr = 192, 216, 228, 240, 242, 243, 254
    vUo = [253, 255, 250]
    vq = VmQ(); lq = LgQ()
    st = GStream(a, vq, cfg.get('TL_PACE', 24), 4)
    st.look = cfg.get('TL_LOOK', 24); st.pace2 = cfg.get('TL_PACE2', 64)
    state = dict(wcons=-1, gdone=-1, gread=-1, edone=-1, uok=False)
    a.e('s_add_u32 s%d, s47, %d' % (sA, G_OFF - 32768))
    srd_off(12, 4, sA, 4096000 + 32768)
    a.e('v_lshrrev_b32 v8, 1, v%d' % vI)
    a.e('v_lshlrev_b32 v%d, 14, v8' % vS)
    a.e('v_lshl_add_u32 v%d, v%d, 5, v%d' % (vS, vQ4, vS))
    a.e('v_and_b32 v9, 1, v%d' % vI)
    a.e('v_lshl_add_u32 v%d, v9, 4, v%d' % (vS, vS))
    a.e('v_cmp_gt_u32 vcc, 2, v8')
    a.e('v_mov_b32 v9, s%d' % sF)
    a.e('v_cndmask_b32 v9, 0, v9, vcc')
    a.e('v_or_b32 v%d, v%d, v9' % (vS, vS))
    a.e('s_lshl_b32 s%d, s%d, 16' % (sA, sK))
    a.e('s_lshl_b32 s%d, s%d, 10' % (sB, sWave))
    a.e('s_add_u32 s%d, s%d, s%d' % (sA, sA, sB))
    a.e('s_mul_i32 s42, s%d, 9216' % sWave)
    a.e('s_add_u32 s42, s42, %d' % TPC_OFF)
    def tg(g): return g if g < 2 else 2 + (g - 2) * 4
    def tw(n): return 2 + n / 4.0 - 1
    for g in range(8):
        off = (g >> 1) * 4096 + (g & 1) * 512
        for d in range(4):
            st.add(0, tg(g) - cfg.get('TL_WINLEAD', 7), ['s_add_u32 m0, s%d, %d' % (sStg, (g % 3) * 4160 + d * 1040), 's_add_u32 s%d, s%d, %d' % (sC, sA, off + d * 128)],
                   'buffer_load_dwordx4 v%d, s[12:15], s%d offen lds' % (vS, sC), ('win', g, d), (lambda g=g: state['gread'] >= g - 3))
        for h in range(3):
            pre = ['s_add_u32 m0, s44, %d' % ((g >> 1) * 24576 + (g & 1) * 3072 + h * 1024), 's_add_u32 s45, s%d, %d' % (sA, off)]
            st.add(3, tg(g) - 3, pre, 'buffer_load_dwordx4 v%d, s[16:19], s45 offen lds' % vUo[h], ('u', g, h), (lambda: state['uok']))
    for p in range(4):
        for q in range(9):
            pre = ['s_add_u32 s43, s42, %d' % (p * 4 * 9216 + q * 1024)] if q % 4 == 0 else []
            st.add(1, tg(2 * p + (q > 4)) - 3, pre, 'buffer_load_dwordx4 %s, v%d, %s, s43 offen offset:%d' % (ar(TP + 36 * (p % 2) + 4 * q, 4), vLane16, ws, (q % 4) * 1024), ('tp', p, q),
                   (lambda p=p: state['gdone'] >= 2 * (p - 2) + 1))
    add_w(st, state, lambda n: ar(4 * (n % RWL), 4), RWL, 0, 128, tw)
    add_x(st, state)
    add_taps2(st, state, (0, 1), 1000, lambda p: ('x', 7) in st.issued)
    add_w(st, state, wreg, 0, 128, 128 + NPRE, lambda n: 2000, ready=lambda n: ('t2', 1, 8) in st.issued and (SLOT2[n - 128] >= 4 * RWL or state['wcons'] >= max(m_ for m_ in range(128) if m_ % RWL == SLOT2[n - 128] // 4)))
    st.burst(13)
    a.e('s_add_u32 s%d, s47, %d' % (sU, U_OFF - 16384))
    srd_off(16, 4, sU, 4096000 + 16384)
    a.e('v_and_b32 v8, 3, v%d' % vLane)
    a.e('v_mul_u32_u24 v8, 3, v8')
    a.e('v_lshrrev_b32 v9, 2, v%d' % vLane)
    a.e('s_mul_i32 s44, s%d, 6144' % sWave)
    for h in range(3):
        a.e('v_add_u32 v10, %d, v%d' % (64 * h, vLane))
        a.e('v_mul_u32_u24 v12, 0x1556, v10')
        a.e('v_lshrrev_b32 v12, 16, v12')
        a.e('v_mul_u32_u24 v11, 12, v12')
        a.e('v_sub_u32 v10, v10, v11')
        a.e('v_lshrrev_b32 v11, 1, v10')
        a.e('v_lshlrev_b32 v%d, 14, v11' % vUo[h])
        a.e('v_lshl_add_u32 v%d, v12, 5, v%d' % (vUo[h], vUo[h]))
        a.e('v_and_b32 v10, 1, v10')
        a.e('v_lshl_add_u32 v%d, v10, 4, v%d' % (vUo[h], vUo[h]))
        a.e('v_cmp_eq_u32 vcc, 0, v11')
        a.e('v_mov_b32 v10, s%d' % sF)
        a.e('v_cndmask_b32 v10, 0, v10, vcc')
        a.e('v_or_b32 v%d, v%d, v10' % (vUo[h], vUo[h]))
    state['uok'] = True
    a.e('v_lshlrev_b32 v8, 4, v8')
    a.e('v_lshl_add_u32 v%d, v9, 8, v8' % vRd)
    a.e('v_lshl_add_u32 v%d, v%d, 4, v%d' % (vRd, vQ4, vRd))
    a.e('v_add_u32 v%d, s%d, v%d' % (vRd, sStg, vRd))
    a.e('v_mul_u32_u24 v%d, 192, v9' % vWr)
    a.e('v_add_u32 v%d, v8, v%d' % (vWr, vWr))
    a.e('s_mul_i32 s%d, s%d, 6144' % (sB, sWave))
    a.e('v_add_u32 v%d, s%d, v%d' % (vWr, sB, vWr))
    a.e('v_bfe_u32 v8, v%d, 2, 2' % vLane)
    a.e('v_lshl_add_u32 v8, v%d, 3, v8' % vQ4)
    a.e('v_mul_u32_u24 v%d, 192, v8' % NR)
    a.e('v_and_b32 v8, 3, v%d' % vLane)
    a.e('v_lshl_add_u32 v%d, v8, 4, v%d' % (NR, NR))
    a.e('v_add_u32 v%d, %d, v%d' % (NR + 1, 49152, NR))
    x_setup()
    st.burst(cfg.get('TL_B1', 12))
    sc = Sched(a, st)
    def data_reads(g):
        return [FW(lambda: st.wait(('win', g, 3)))] + [FD('ds_read_b128 %s, v%d offset:%d' % (ar(DATA + 4 * m, 4), vRd, (g % 3) * 4160 + 16 * m), lq, ('d', g, m)) for m in range(7)]
    def ioff(g, h): return ((g >> 1) * 24576 + (g & 1) * 3072 + h * 16) % 49152
    def u_reads(g):
        out = [FW(lambda: st.wait(('u', g, 2)))]
        if g == 4: out.append(FV('v_add_u32 v%d, %d, v%d' % (vWr, 49152, vWr)))
        return out + [FD('ds_read_b128 %s, v%d offset:%d' % (vr(UB + 4 * h, 4), vWr, ioff(g, h)), lq, ('ur', g, h)) for h in range(3)]
    def conv_epi(g, d0, d1):
        out = []
        if d0 == 0: out.append(FW(lambda: lq.wait(a, ('ur', g, 2))))
        t = UT2
        for d in range(d0, d1):
            out.append(FV('v_lshlrev_b32 v%d, 16, v%d' % (t, UB + d)))
            out.append(FV('v_and_b32 v%d, s90, v%d' % (t + 1, UB + d)))
            out.append(FV('v_mul_f32 v%d, v%d, v%d' % (t, t, CD + 2 * d)))
            out.append(FV('v_mul_f32 v%d, v%d, v%d' % (t + 1, t + 1, CD + 2 * d + 1)))
            out.append(FV('v_cvt_pk_bf16_f32 v%d, v%d, v%d' % (PKO + d, t, t + 1)))
            if d % 4 == 3: out.append(FD('ds_write_b128 v%d, %s offset:%d' % (vWr, vr(PKO + d - 3, 4), ioff(g, d // 4)), lq))
        return out
    def conv_block(g):
        def blk():
            r = g // 2
            A0 = TP + 36 * (r % 2) + 18 * (g % 2); B = DATA
            if g == 0:
                for f in data_reads(0): f.emit(a)
            st.wait(('tp', r, 4 if g % 2 == 0 else 8))
            lq.wait(a, ('d', g, 6))
            state['gread'] = g
            sc.add(u_reads(g))
            sc.vmcap = 1 if g < 2 else 2
            for hf in range(2):
                for s_ in range(9):
                    for q in range(3 * hf, 3 * hf + 3):
                        ac = vr(CD + 4 * q, 4)
                        a.e('%s %s, %s, %s, %s' % (M4, ac, ar(A0 + 2 * s_, 2), ar(B + 2 * (q + s_), 2), '0' if s_ == 0 else ac))
                        if hf == 1 and s_ == 1 and q == 3: sc.add(conv_epi(g, 0, 4))
                        sc.gap(1)
            sc.vmcap = 2
            state['gdone'] = g
        return blk
    def loc_produce(r):
        if r == 0: return [(conv_block(0), data_reads(1) + conv_epi(0, 4, 12)), (conv_block(1), data_reads(2) + conv_epi(1, 4, 12))]
        return [(conv_block(2 * r), conv_epi(2 * r, 4, 12)), (None, data_reads(2 * r + 1)), (conv_block(2 * r + 1), conv_epi(2 * r + 1, 4, 12) + (data_reads(2 * r + 2) if r < 3 else []))]
    stage1(True, sc, lq, state, RWL, loc_produce)
    st.flush(); st.burst(100)
    assert st.empty()
    a.e('s_branch %s_s2' % name)

    a.label('%s_glob' % name, reset=True)
    RWG = cfg.get('TG_RW', 34)
    vq = VmQ(); lq = LgQ()
    st = GStream(a, vq, cfg.get('TG_PACE', 24), 4)
    st.look = cfg.get('TG_LOOK', 28); st.pace2 = cfg.get('TG_PACE2', 64)
    state = dict(wcons=-1, fread=-1)
    MLR = 0; WT = 192; PB = 216; CA, CU, PO = 232, 240, 128
    vWa, vSt, vS0 = 255, 250, 249
    a.e('s_mul_i32 s%d, s%d, 4000' % (sTok, sBt))
    a.e('s_lshl_b32 s%d, s%d, 6' % (sA, sK))
    a.e('s_add_u32 s%d, s%d, s%d' % (sTok, sTok, sA))
    a.e('v_lshlrev_b32 v%d, 3, v%d' % (TMP, vI))
    a.e('s_lshl_b32 s%d, s%d, 3' % (sA, sTok))
    a.e('s_add_u32 s%d, s%d, %d' % (sA, sA, ML_OFF - 128))
    a.e('s_lshl_b32 s%d, s%d, 12' % (sP, sTok))
    a.e('s_lshl_b32 s%d, s%d, 13' % (sB, sWave))
    a.e('s_add_u32 s%d, s%d, s%d' % (sP, sP, sB))
    a.e('s_add_u32 s%d, s%d, %d' % (sP, sP, OP_OFF - 131072))
    make_srd(a, 12, 4, 0); a.e('s_cmp_eq_u32 s%d, 0' % sK); a.e('s_cselect_b32 s14, 0, %d' % WS_BYTES)
    make_srd(a, 16, 4, 0); a.e('s_cmp_eq_u32 s%d, 62' % sK); a.e('s_cselect_b32 s18, 0, %d' % WS_BYTES)
    def tsrd(ts): return 's[12:15]' if ts == 0 else ('s[16:19]' if ts >= 3 else ws)
    NS = 5
    a.e('s_mul_i32 s44, s%d, 6144' % sWave)
    def tf(f): return f if f < 6 else 6 + (f - 6) // 6 * 16 + ((f - 6) % 6) * 2
    def twg(n): return 6 + n / 2.0 - cfg.get('TG_WLEAD', 6)
    for f in range(24):
        r, ts = f // 6, f % 6
        off = ((ts + 1) >> 1) * 131072 + r * 32768 + ((ts + 1) & 1) * 4096
        st.add(3, tf(f) - cfg.get('TG_PLEAD0', 16), ['s_add_u32 m0, s44, %d' % (r * 24576 + ts * 1024), 's_add_u32 s45, s%d, %d' % (sP, off)],
               'buffer_load_dwordx4 v%d, %s, s45 offen sc1 lds' % (vLane16, tsrd(ts)), ('p', f, 0))
        pre = ['s_add_u32 m0, s%d, %d' % (sStg, ((f % NS) * 3 - 1) * 1024), 's_add_u32 s%d, s%d, %d' % (sC, sP, off),
               'buffer_load_dwordx4 v%d, %s, s%d offen offset:1024 sc1 lds' % (vLane16, tsrd(ts), sC), 'buffer_load_dwordx4 v%d, %s, s%d offen offset:2048 sc1 lds' % (vLane16, tsrd(ts), sC)]
        st.add(0, tf(f) - cfg.get('TG_PLEAD', 16), pre, 'buffer_load_dwordx4 v%d, %s, s%d offen offset:3072 sc1 lds' % (vLane16, tsrd(ts), sC), ('p', f, 3), (lambda f=f: state['fread'] >= f - NS))
    add_w(st, state, lambda n: ar(4 * (n % RWG), 4), RWG, 0, 128, twg)
    def gfree(reg):
        sl = reg // 4
        if sl >= RWG: return True
        lastn = max(n for n in range(128) if n % RWG == sl)
        return state['wcons'] >= lastn
    add_x(st, state)
    add_taps2(st, state, (0, 1), 1000, lambda p: ('x', 7) in st.issued and all(gfree(r_) for r_ in range(TP2, TP2 + 72, 4)))
    add_w(st, state, wreg, 0, 128, 128 + NPRE, lambda n: 2000, ready=lambda n: ('t2', 1, 8) in st.issued and gfree(SLOT2[n - 128]))
    if FUSE:
        for _ in range(cfg.get('TG_W0', 24)): st._issue(2)
        a.e('s_lshr_b32 s62, s%d, 1' % sK)
        a.e('s_and_b32 s63, s%d, 1' % sK)
        a.e('s_lshl_b32 s63, s63, 1')
        a.e('s_add_u32 s63, s63, s62')
        a.e('s_max_u32 s63, s63, 1')
        a.e('s_sub_u32 s63, s63, 1')
        a.e('s_min_u32 s63, s63, 31')
        a.e('s_lshl_b32 s59, s%d, 5' % sBt)
        a.e('s_add_u32 s62, s62, s59')
        a.e('s_add_u32 s63, s63, s59')
        a.e('s_lshl_b32 s62, s62, 7')
        a.e('s_lshl_b32 s63, s63, 7')
        a.e('s_add_u32 s62, s62, %d' % CNT_OFF)
        a.e('s_add_u32 s63, s63, %d' % CNT_OFF)
        a.e('v_mov_b32 v64, s62')
        a.e('v_mov_b32 v65, s63')
        a.e('s_mov_b32 s59, 0')
        a.label('%s_wait' % name)
        a.e('global_load_dword v66, v64, s[4:5] sc1')
        a.e('global_load_dword v67, v65, s[4:5] sc1')
        a.e('s_waitcnt vmcnt(0)')
        a.e('v_min_u32 v66, v66, v67')
        a.e('v_readfirstlane_b32 s62, v66')
        a.e('s_cmp_ge_u32 s62, 16')
        a.e('s_cbranch_scc1 %s_ready' % name)
        a.e('s_sleep 1')
        a.e('s_add_u32 s59, s59, 1')
        a.e('s_cmp_lt_u32 s59, 0x80000')
        a.e('s_cbranch_scc1 %s_wait' % name)
        a.label('%s_ready' % name, reset=True)
        a.e('s_barrier')
        vq.done = vq.n
        if STAMP and cfg.get('S1') == 4: stamp_mid(a, 3)
    st.burst(2)
    for s in range(4):
        for ts in range(6):
            a.e('buffer_load_dwordx2 %s, v%d, %s, s%d offen offset:%d sc1' % (vr(MLR + (ts * 4 + s) * 2, 2), TMP, tsrd(ts), sA, ts * 128))
            vq.issue('ml')
        if s < 3: a.e('s_add_u32 s%d, s%d, 64000' % (sA, sA))
    st.burst(cfg.get('TG_B2', 10))
    a.e('v_lshrrev_b32 v64, 2, v%d' % vI)
    a.e('v_lshlrev_b32 v64, 3, v64')
    a.e('v_and_b32 v65, 3, v%d' % vI)
    a.e('v_add_u32 v64, v64, v65')
    a.e('v_lshrrev_b32 v65, 4, v64')
    a.e('v_and_b32 v64, 15, v64')
    a.e('v_xor_b32 v64, v64, v%d' % vQ4)
    a.e('v_lshl_add_u32 v64, v%d, 4, v64' % vQ4)
    a.e('v_lshlrev_b32 v64, 4, v64')
    a.e('v_lshl_add_u32 v%d, v65, 10, v64' % NR)
    a.e('v_xor_b32 v%d, 64, v%d' % (NR + 1, NR))
    a.e('v_add_u32 v%d, 49152, v%d' % (NR + 2, NR))
    a.e('v_add_u32 v%d, 49152, v%d' % (NR + 3, NR + 1))
    tok_read_regs(a, 64, 65, vLane, 66)
    a.e('s_bitcmp1_b32 s%d, 0' % sWave)
    a.e('s_cselect_b64 vcc, -1, 0')
    a.e('v_cndmask_b32 v%d, v64, v65, vcc' % vWa)
    a.e('s_mul_i32 s%d, s%d, 6144' % (sB, sWave))
    a.e('v_add_u32 v%d, s%d, v%d' % (vWa, sB, vWa))
    a.e('v_add_u32 v%d, s%d, v%d' % (vSt, sStg, vLane16))
    a.e('v_add_u32 v%d, s%d, v%d' % (vS0, sB, vLane16))
    x_setup()
    vq.wait(a, 'ml')
    a.dense = True
    for ts in range(6):
        m = [MLR + (ts * 4 + s) * 2 for s in range(4)]
        t = 64
        a.e('v_max3_f32 v%d, v%d, v%d, v%d' % (t, m[0], m[1], m[2]))
        a.e('v_max_f32 v%d, v%d, v%d' % (t, t, m[3]))
        for s in range(4): a.e('v_sub_f32 v%d, v%d, v%d' % (WT + ts * 4 + s, m[s], t))
        for s in range(4): a.e('v_exp_f32 v%d, v%d' % (WT + ts * 4 + s, WT + ts * 4 + s))
        for s in range(4): a.e('v_mul_f32 v%d, v%d, v%d' % (WT + ts * 4 + s, WT + ts * 4 + s, m[s] + 1))
        a.e('v_add_f32 v%d, v%d, v%d' % (t, WT + ts * 4, WT + ts * 4 + 1))
        for s in range(2, 4): a.e('v_add_f32 v%d, v%d, v%d' % (t, t, WT + ts * 4 + s))
        a.e('v_max_f32 v%d, 0x0d800000, v%d' % (t, t))
        a.e('v_rcp_f32 v%d, v%d' % (t, t))
        for s in range(4): a.e('v_mul_f32 v%d, v%d, v%d' % (WT + ts * 4 + s, WT + ts * 4 + s, t))
    a.dense = False
    sc = Sched(a, st)
    def p_read(f, s):
        r, ts = f // 6, f % 6
        if s == 0:
            def w_(): st.wait(('p', f, 0)); st.wait(('p', f, 3))
            out = [FW(w_)]
            if f == 12: out.append(FV('v_add_u32 v%d, 49152, v%d' % (vS0, vS0)))
            return out + [FD('ds_read_b128 %s, v%d offset:%d' % (vr(PB, 4), vS0, (r % 2) * 24576 + ts * 1024), lq, ('pr', f, s))]
        return [FD('ds_read_b128 %s, v%d offset:%d' % (vr(PB + 4 * s, 4), vSt, ((f % NS) * 3 + s - 1) * 1024), lq, ('pr', f, s))]
    def glob_produce(r):
        out = []
        if r == 0:
            for s in range(4): out += p_read(0, s)
        for ts in range(6):
            f = 6 * r + ts
            for s in range(4):
                def w_(f=f, s=s):
                    lq.wait(a, ('pr', f, s + 1))
                    if s == 2: state['fread'] = f
                if s % 2 == 0: out.append(FW(w_))
                p = PB + 4 * s; w = WT + ts * 4 + s
                for d in range(8):
                    out.append(FV('v_fma_mix_f32 v%d, v%d, v%d, %s op_sel:[%d,0,0] op_sel_hi:[1,0,0]' % (CA + d, p + d // 2, w, '0' if s == 0 else 'v%d' % (CA + d), d & 1)))
                if f < 23: out += p_read(f + 1, s)
            for d in range(4):
                out.append(FV('v_cvt_pk_bf16_f32 v%d, v%d, v%d' % (CU + d, CA + 2 * d, CA + 2 * d + 1)))
            if f == 12: out.append(FV('v_add_u32 v%d, 49152, v%d' % (vWa, vWa)))
            out.append(FD('ds_write_b128 v%d, %s offset:%d' % (vWa, vr(CU, 4), (r % 2) * 24576 + ts * 1024), lq))
        return [(None, out)]
    stage1(False, sc, lq, state, RWG, glob_produce)
    st.flush(); st.burst(100)
    assert st.empty()

    a.label('%s_s2' % name, reset=True)
    if STAMP and cfg.get('S1') in (None, 2): stamp_mid(a, 1)
    vq = VmQ(); lq = LgQ()
    pre_keys = [('t2', q // 9, q % 9) for q in range(18)] + [('w', 128 + n) for n in range(NPRE)]
    for k_ in pre_keys: vq.issue(k_)
    st = GStream(a, vq, cfg.get('T2_PACE', 48), 4)
    st.look = cfg.get('T2_LOOK', 60); st.pace2 = cfg.get('T2_PACE2', 64)
    st.issued = set(pre_keys)
    state = dict(wcons=127, gdone=-1, packed=0)
    def w2ready(n):
        i = n - 128
        if i >= RW2: return state['wcons'] >= n - RW2
        if i >= 43: return state['gdone'] >= 3
        if i >= 34: return state['gdone'] >= 1
        return True
    add_w(st, state, wreg, RW2, 128 + NPRE, 256, lambda n: 8 + (n - 128) / 5.0, ready=w2ready)
    for p in (2, 3):
        for q in range(9):
            pre = ['s_add_u32 s43, s46, %d' % (p * 9216 + q * 1024)] if q % 4 == 0 else []
            st.add(1, p, pre, 'buffer_load_dwordx4 %s, v%d, %s, s43 offen offset:%d' % (vr(36 * (p - 2) + 4 * q, 4), vLane16, ws, (q % 4) * 1024), ('t2', p, q),
                   (lambda p=p, q=q: state['packed'] * 24 >= 36 * (p - 2) + 4 * q + 4))
    vW1, vRd2, vWr2, vId, vRow, vR = 192, 193, 194, 196, 195, 198
    PK = 204
    srd_off(28, 54, 47, 4096000)
    a.e('v_mov_b32 v%d, v%d' % (vRow, TMP))
    a.e('s_mul_i32 s%d, s%d, 24576' % (sB, sWave))
    a.e('v_mul_u32_u24 v%d, 192, v%d' % (vW1, vI))
    a.e('v_bfe_u32 v%d, v%d, 1, 2' % (TMP, vI))
    a.e('v_xor_b32 v%d, v%d, v%d' % (TMP, TMP, vQ4))
    a.e('v_lshl_add_u32 v%d, v%d, 4, v%d' % (vW1, TMP, vW1))
    a.e('v_add_u32 v%d, s%d, v%d' % (vW1, sB, vW1))
    RD2 = [220 + m for m in range(6)]
    a.e('v_lshrrev_b32 v%d, 2, v%d' % (TMP, vLane))
    a.e('v_mul_u32_u24 v%d, 192, v%d' % (vRd2, TMP))
    a.e('v_add_u32 v%d, s%d, v%d' % (vRd2, sB, vRd2))
    a.e('v_bfe_u32 v%d, v%d, 3, 2' % (TMP + 1, vLane))
    a.e('v_and_b32 v%d, 3, v%d' % (TMP, vLane))
    a.e('v_lshlrev_b32 v%d, 1, v%d' % (TMP, TMP))
    for m in range(6):
        a.e('v_add_u32 v%d, %d, v%d' % (TMP + 2, m, TMP))
        a.e('v_xor_b32 v%d, v%d, v%d' % (TMP + 2, TMP + 2, TMP + 1))
        a.e('v_lshl_add_u32 v%d, v%d, 4, v%d' % (RD2[m], TMP + 2, vRd2))
    st.burst(4)
    a.e('s_barrier')
    if STAMP and cfg.get('S1') == 2: stamp_mid(a, 2)
    c2 = a.clock
    a.dense = True
    for t in range(8):
        for b3 in range(3):
            for d in range(4):
                r_ = acc1(t, 2 * b3) + 2 * d
                a.e('v_cvt_pk_bf16_f32 v%d, v%d, v%d' % (acc1(t, 2 * b3) + d, r_, r_ + 1))
        if t % 2 == 1:
            for t2 in (t - 1, t):
                for b3 in range(3):
                    a.e('ds_write_b128 v%d, %s offset:%d' % (vW1, vr(acc1(t2, 2 * b3), 4), t2 * 3072 + b3 * 64)); lq.issue(('w1', t2))
            state['packed'] = max(0, t - 1)
            st.burst(cfg.get('T2_PB', 3))
    state['packed'] = 8
    a.dense = False
    GACC, CD, DAT, PKO, TOK, XR = 0, 128, 208, 160, 208, 220
    def gacc(t, ts): return GACC + (t * 4 + ts) * 4
    img_write_reg(a, vWr2, vLane, TMP)
    a.e('s_lshl_b32 s%d, s%d, 14' % (sB, sWave))
    a.e('s_add_u32 s%d, s%d, %d' % (sB, sB, STG))
    a.e('v_add_u32 v%d, s%d, v%d' % (vWr2, sB, vWr2))
    img_read_regs(a, vR, vLane, TMP)
    for ts in range(4): a.e('v_add_u32 v%d, %d, v%d' % (vR + ts, STG, vR + ts))
    a.e('v_and_b32 v%d, 1, v%d' % (TMP, vLane))
    a.e('v_lshlrev_b32 v%d, 4, v%d' % (TMP, TMP))
    a.e('v_mov_b32 v%d, 0x3f80' % (TMP + 1))
    a.e('v_lshlrev_b32 v%d, v%d, v%d' % (TMP + 1, TMP, TMP + 1))
    a.e('v_and_b32 v%d, 2, v%d' % (TMP, vLane))
    a.e('v_cmp_eq_u32 vcc, 0, v%d' % TMP)
    a.e('v_cndmask_b32 v%d, 0, v%d, vcc' % (vId, TMP + 1))
    a.e('v_cndmask_b32 v%d, v%d, 0, vcc' % (vId + 1, TMP + 1))
    XL = 176
    def xreg(k): return (176 + 4 * k) if k < 4 else (226 + 4 * (k - 4))
    st.wait(('t2', 0, 0))
    a.e('v_add_u32 v%d, s%d, v%d' % (TMP, sStg, vLane16))
    for k in range(8):
        a.e('ds_read_b128 %s, v%d offset:%d' % (vr(xreg(k), 4), TMP, k * 1024)); lq.issue()
    a.e('s_lshl_b32 s51, s%d, 6' % sBt)
    a.e('s_add_u32 s51, s51, s%d' % sK)
    a.e('s_lshl_b32 s56, s51, 8')
    a.e('s_add_u32 s56, s56, %d' % CNT_OFF)
    sc = Sched(a, st)
    def d_reads(g):
        return [FD('ds_read_b128 %s, v%d offset:%d' % (ar(DAT + 24 * (g % 2) + 4 * m, 4), RD2[m], g * 3072), lq, ('d', g, m)) for m in range(6)]
    def c_epi(g):
        out = []
        D = CD + 16 * (g % 2); o = PKO + 8 * (g % 2)
        for d in range(8):
            out.append(FV('v_cvt_pk_bf16_f32 v%d, v%d, v%d' % (o + d, D + 2 * d, D + 2 * d + 1)))
            if d % 4 == 3: out.append(FD('ds_write_b128 v%d, %s offset:%d' % (vWr2, vr(o + d - 3, 4), g * 2048 + (d // 4) * 16), lq))
        return out
    if STAMP and cfg.get('S1') == 2: stamp_mid(a, 3); lq.done = lq.n
    if cfg.get('V'): print('pack end', a.clock - c2)
    for f in d_reads(0): f.emit(a)
    sc.vmcap = 1
    for g in range(8):
        p = g // 2
        A0 = (TP2 if p < 2 else 0) + 36 * (p % 2) + 18 * (g % 2); D = CD + 16 * (g % 2); B = DAT + 24 * (g % 2)
        AF = ar if p < 2 else vr
        st.wait(('t2', p, 4 if g % 2 == 0 else 8))
        lq.wait(a, ('d', g, 5))
        k = 0
        for s_ in list(range(9)) + ['I']:
            for q in range(4):
                ac = vr(D + 4 * q, 4)
                if s_ == 'I': a.e('%s %s, %s, %s, %s' % (M4, ac, vr(vId, 2), ar(B + 2 * (q + 4), 2), ac))
                else: a.e('%s %s, %s, %s, %s' % (M4, ac, AF(A0 + 2 * s_, 2), ar(B + 2 * (q + s_), 2), '0' if s_ == 0 else ac))
                k += 1
                if k == 1 and g < 7: sc.add(d_reads(g + 1))
                if k == 4 and g: sc.add(c_epi(g - 1))
                if k < 40: sc.gap(1)
        state['gdone'] = g
        sc.flush()
    sc.vmcap = 2
    sc.add(c_epi(7)); sc.flush(); st.flush()
    lq.wait_all(a)
    if cfg.get('V'): print('conv end', a.clock - c2)
    if STAMP and cfg.get('S1') == 2: stamp_mid(a, 4)
    a.e('s_barrier')
    if STAMP and not cfg.get('S1'): stamp_mid(a, 2)
    def t_reads(ks):
        return [FD('ds_read_b64_tr_b16 %s, v%d offset:%d' % (ar(TOK + ((ks % 3) * 4 + ts) * 4 + 2 * h, 2), vR + ts, (ks % 16) * 4096 + 512 * h), lq, ('t', ks, ts, h))
                for ts in range(4) for h in range(2)]
    for f in t_reads(0) + t_reads(1): f.emit(a)
    vOne, vZ, vFl, vFa = 204, 205, 206, 207
    LD, PKS = 128, 160
    a.e('s_lshl_b32 s57, s51, 16')
    a.e('s_lshl_b32 s%d, s%d, 13' % (sB, sWave))
    a.e('s_add_u32 s57, s57, s%d' % sB)
    a.e('s_add_u32 s57, s57, %d' % PO_OFF)
    a.e('s_lshl_b32 s%d, s%d, 15' % (sB, sTy))
    a.e('s_add_u32 s48, s57, s%d' % sB)
    a.e('s_xor_b32 s%d, s%d, 0x8000' % (sB, sB))
    a.e('s_add_u32 s57, s57, s%d' % sB)
    a.e('s_add_u32 s58, s57, 0x1000')
    def pub():
        out = []; k = 0
        for ts in range(4):
            for dd in range(2):
                o = PKS + 4 * (k % 4)
                for e in range(2):
                    for j in range(2):
                        r_ = gacc(2 * dd + e, ts) + 2 * j
                        out.append(FV('v_cvt_pk_bf16_f32 v%d, v%d, v%d' % (o + 2 * e + j, r_, r_ + 1)))
                        out.append(FV('v_min_u32 v%d, -2, v%d' % (o + 2 * e + j, o + 2 * e + j)))
                if k == 4: out.append(FS('s_add_u32 s48, s48, 0x1000'))
                out.append(FM('buffer_store_dwordx4 %s, v%d, %s, s48 offen offset:%d' % (vr(o, 4), vLane16, ws, (k % 4) * 1024), vq)); k += 1
        return out
    def part_loads():
        return [FM('buffer_load_dwordx4 %s, v%d, %s, s%d offen offset:%d sc1' % (vr(LD + 4 * k, 4), vLane16, ws, 57 + k // 4, (k % 4) * 1024), vq) for k in range(8)]
    def xadd():
        out = []
        for ts in range(4):
            for dd in range(2):
                pass
        return out
    KP = cfg.get('T2_KP', 30)
    for kk in range(32):
        h, ks = kk // 16, kk % 16
        if STAMP and cfg.get('S1') == 3 and kk in (0, 8, 16, 24): stamp_mid(a, kk // 8); lq.done = lq.n
        lq.wait(a, ('t', kk, 3, 1))
        if kk >= 17 and not state.get('pub') and (st.empty() or kk == cfg.get('T2_KPUB', 24)):
            sc.add(pub()); state['pub'] = kk
        if kk == KP: sc.add(part_loads())
        if kk < 30:
            ds = t_reads(kk + 2); q_ = sc.q; out = []
            while ds:
                out.append(ds.pop(0))
                if q_ and q_[0].kind == 'v': out.append(q_.pop(0))
            sc.q[0:0] = out
        st.wait(('w', 128 + kk * 4 + 3))
        for t4 in range(4):
            n = 128 + kk * 4 + t4; t = 4 * h + t4
            for x, ts in enumerate(range(4) if t4 % 2 == 0 else range(3, -1, -1)):
                a.e('%s %s, %s, %s, %s' % (MF, vr(gacc(t, ts), 4), wreg(n), ar(TOK + ((kk % 3) * 4 + ts) * 4, 4), '0' if ks == 0 else vr(gacc(t, ts), 4)))
                if x == 3: state['wcons'] = n
                sc.gap(0 if (x == 3 and t4 == 3) else 2)
    sc.flush()
    if cfg.get('V'): print(name, 's2', st.slack, state)
    if STAMP and not cfg.get('S1'): stamp_mid(a, 3)
    if STAMP and cfg.get('S1') == 3: stamp_mid(a, 4)
    a.dense = True
    U = 208
    def addin(src, ts, dd, pack):
        for e in range(2):
            for j in range(2):
                r_ = gacc(4 + 2 * dd + e, ts) + 2 * j
                u = U + 2 * ((2 * e + j) % 4)
                a.e('v_lshlrev_b32 v%d, 16, v%d' % (u, src + 2 * e + j))
                a.e('v_and_b32 v%d, s90, v%d' % (u + 1, src + 2 * e + j))
                a.e('v_pk_add_f32 %s, %s, %s' % (vr(r_, 2), vr(r_, 2), vr(u, 2)))
                if pack: a.e('v_cvt_pk_bf16_f32 v%d, v%d, v%d' % (src + 2 * e + j, r_, r_ + 1))
    for ts in range(4):
        for dd in range(2): addin(xreg(ts * 2 + dd), ts, dd, False)
    a.e('s_mov_b32 s59, 0')
    a.label('%s_poll' % name)
    a.e('s_waitcnt vmcnt(0)')
    a.e('v_max3_u32 v%d, v%d, v%d, v%d' % (vFl, LD, LD + 1, LD + 2))
    a.e('v_max3_u32 v%d, v%d, v%d, v%d' % (vFa, LD + 3, LD + 4, LD + 5))
    for j in range(6, 30, 4):
        a.e('v_max3_u32 v%d, v%d, v%d, v%d' % (vFl, vFl, LD + j, LD + j + 1))
        a.e('v_max3_u32 v%d, v%d, v%d, v%d' % (vFa, vFa, LD + j + 2, LD + j + 3))
    a.e('v_max3_u32 v%d, v%d, v%d, v%d' % (vFl, vFl, LD + 30, LD + 31))
    a.e('v_max_u32 v%d, v%d, v%d' % (vFl, vFl, vFa))
    a.e('v_cmp_eq_u32 vcc, -1, v%d' % vFl)
    a.e('s_cbranch_vccz %s_go' % name)
    for f in part_loads(): f.emit(a)
    a.e('s_add_u32 s59, s59, 1')
    a.e('s_cmp_lt_u32 s59, 0x40000')
    a.e('s_cbranch_scc1 %s_poll' % name)
    a.e('s_waitcnt vmcnt(0)')
    a.label('%s_go' % name, reset=True)
    if STAMP and not cfg.get('S1'): stamp_mid(a, 4)
    for ts in range(4):
        a.e('s_add_u32 s50, s49, %d' % (ts * 16384))
        for dd in range(2):
            x = LD + 4 * (ts * 2 + dd)
            addin(x, ts, dd, True)
            a.e('buffer_store_dwordx4 %s, v%d, s[28:31], s50 offen offset:%d' % (vr(x, 4), vRow, dd * 64))
    a.dense = False
    a.label('%s_fin' % name)
    if STAMP: stamp_end(a, sWave)
    a.label('%s_end' % name)
    a.e('s_endpgm')
    if FUSE: return None
    return dict(name=name, vgpr=512, sgpr=96, accum=256, grid=256, block=256, lds=163840)
```

```python
import re

TRANS = ('v_exp_f32', 'v_log_f32', 'v_rcp_f32', 'v_rsq_f32', 'v_sqrt_f32', 'v_sin_f32', 'v_cos_f32', 'v_rcp_iflag_f32')

def split_ops(s):
    ops, depth, cur = [], 0, ''
    for ch in s:
        if ch in '[(':
            depth += 1
        if ch in '])':
            depth -= 1
        if ch == ',' and depth == 0:
            ops.append(cur.strip()); cur = ''
        else:
            cur += ch
    if cur.strip():
        ops.append(cur.strip())
    return ops

_reg_re = re.compile(r'^-?\|?(?:abs\()?([vas])(?:(\d+)|\[(\d+):(\d+)\])\)?\|?$')

def regs_of(tok):
    tok = tok.split()[0] if tok.split() else ''
    if tok in ('vcc',):
        return {('s', 106), ('s', 107)}
    if tok == 'vcc_lo':
        return {('s', 106)}
    if tok == 'vcc_hi':
        return {('s', 107)}
    if tok == 'exec':
        return {('s', 126), ('s', 127)}
    if tok == 'exec_lo':
        return {('s', 126)}
    if tok == 'exec_hi':
        return {('s', 127)}
    if tok == 'm0':
        return {('s', 124)}
    m = _reg_re.match(tok)
    if not m:
        return set()
    f = m.group(1)
    if m.group(2) is not None:
        return {(f, int(m.group(2)))}
    return {(f, i) for i in range(int(m.group(3)), int(m.group(4)) + 1)}

class Ins:
    __slots__ = ('text', 'mn', 'ops', 'kind', 'w', 'r', 'srcC', 'srcAB', 'passes', 'states', 'lds_dma', 'wide_store', 'sdata')
    def __init__(self, text):
        self.text = text
        t = text.split(';')[0].strip()
        parts = t.split(None, 1)
        self.mn = parts[0]
        self.ops = split_ops(parts[1]) if len(parts) > 1 else []
        self.w = set(); self.r = set(); self.srcC = set(); self.srcAB = set(); self.passes = 0
        self.states = 1; self.lds_dma = False; self.wide_store = False; self.sdata = set()
        mn, ops = self.mn, self.ops
        R = regs_of
        if mn.startswith('v_mfma'):
            self.kind = 'mfma'
            self.w = R(ops[0]); self.srcAB = R(ops[1]) | R(ops[2]); self.srcC = R(ops[3])
            self.r = self.srcAB | self.srcC
            self.passes = 8 if '32x32x16' in mn else (4 if '16x16x32' in mn else (2 if '4x4x4' in mn else 16))
        elif mn.startswith('v_'):
            self.kind = 'valu'
            base = mn.replace('_e32', '').replace('_e64', '').replace('_dpp', '').replace('_sdwa', '')
            if base.startswith('v_cmpx'):
                self.w = R(ops[0]) | R('exec')
                for o in ops[1:]: self.r |= R(o)
            elif base.startswith('v_cmp'):
                self.w = R(ops[0])
                for o in ops[1:]: self.r |= R(o)
            elif base in ('v_add_co_u32', 'v_sub_co_u32', 'v_subrev_co_u32', 'v_addc_co_u32', 'v_subb_co_u32', 'v_mad_u64_u32', 'v_div_scale_f32'):
                self.w = R(ops[0]) | R(ops[1])
                for o in ops[2:]: self.r |= R(o)
            elif base.startswith('v_permlane') or base == 'v_swap_b32':
                self.w = R(ops[0]) | R(ops[1]); self.r = set(self.w)
            elif base == 'v_nop':
                pass
            else:
                self.w = R(ops[0])
                for o in ops[1:]: self.r |= R(o)
                if base in ('v_fmac_f32', 'v_dot2c_f32_bf16', 'v_pk_fmac_f16', 'v_writelane_b32') or '_dpp' in mn or '_sdwa' in mn:
                    self.r |= self.w
                if base == 'v_cndmask_b32' and len(ops) == 3:
                    self.r |= R('vcc')
        elif mn.startswith('ds_'):
            self.kind = 'ds'
            if mn.startswith('ds_read') or mn.startswith('ds_bpermute') or mn.startswith('ds_permute') or mn.startswith('ds_swizzle'):
                self.w = R(ops[0])
                for o in ops[1:]: self.r |= R(o)
            else:
                for o in ops: self.r |= R(o)
        elif mn.startswith('buffer_') or mn.startswith('global_') or mn.startswith('flat_'):
            self.kind = 'vmem'
            words = t.split()
            if mn.startswith('buffer_wbl2') or mn.startswith('buffer_inv'):
                pass
            elif 'lds' in words or '_lds_' in mn:
                self.lds_dma = True
                for o in ops: self.r |= R(o)
                self.r |= R('m0')
            elif '_load' in mn:
                self.w = R(ops[0])
                for o in ops[1:]: self.r |= R(o)
                if 'd16' in mn: self.r |= self.w
            elif '_store' in mn:
                for o in ops: self.r |= R(o)
                data = ops[0] if mn.startswith('buffer_') else ops[1]
                if 'x3' in mn or 'x4' in mn:
                    self.wide_store = True; self.sdata = R(data)
            else:
                for o in ops: self.r |= R(o)
                if 'sc0' in words:
                    self.w = R(ops[0])
        elif mn.startswith('s_'):
            self.kind = 'salu'
            if mn == 's_nop':
                self.states = int(ops[0], 0) + 1
            elif mn.startswith('s_cmp') or mn.startswith('s_cbranch') or mn in ('s_branch', 's_barrier', 's_waitcnt', 's_endpgm', 's_setprio', 's_sleep') or mn.startswith('s_bitcmp'):
                for o in ops: self.r |= R(o)
            elif mn.endswith('saveexec_b64'):
                self.w = R(ops[0]) | R('exec'); self.r = R(ops[1]) | R('exec')
            else:
                self.w = R(ops[0]) if ops else set()
                for o in ops[1:]: self.r |= R(o)
                if mn in ('s_addk_i32', 's_mulk_i32'): self.r |= self.w
        else:
            self.kind = 'other'

def required_states(p, c):
    need = 0
    vr = lambda s: {x for x in s if x[0] in 'va'}
    sr = lambda s: {x for x in s if x[0] == 's'}
    if p.kind == 'mfma':
        tb = {2: (2, 4, 5, 5, 1), 4: (0, 6, 8, 8, 3), 8: (0, 10, 12, 12, 7), 16: (0, 18, 20, 20, 15)}[p.passes]
        if c.kind == 'mfma':
            if p.w & c.srcC:
                if p.w == c.srcC and p.passes == c.passes:
                    need = max(need, tb[0])
                else:
                    need = max(need, tb[1])
            if p.w & c.srcAB:
                need = max(need, tb[2])
            if (p.w & c.w) and not (p.w == c.srcC):
                need = max(need, tb[1])
        elif c.kind in ('valu', 'vmem', 'ds'):
            if p.w & (c.r | c.w):
                need = max(need, tb[3])
            if c.kind == 'valu' and (p.srcC & c.w):
                need = max(need, tb[4])
            if c.kind in ('vmem', 'ds') and (p.srcC & c.w):
                need = max(need, tb[4])
    elif p.kind == 'valu':
        pv, ps = vr(p.w), sr(p.w)
        base = p.mn.replace('_e32', '').replace('_e64', '')
        if c.kind == 'mfma':
            if pv & c.r: need = max(need, 2)
            if ('s', 126) in p.w: need = max(need, 4)
        if c.kind == 'valu':
            cb = c.mn.replace('_e32', '').replace('_e64', '')
            if base in TRANS and (pv & c.r) :
                need = max(need, 1)
            if cb.startswith('v_permlane') and (pv & c.r): need = max(need, 2)
            if '_dpp' in c.mn and (pv & c.r): need = max(need, 2)
            if '_dpp' in c.mn and ('s', 126) in p.w: need = max(need, 5)
            if cb in ('v_readfirstlane_b32', 'v_readlane_b32') and (pv & c.r): need = max(need, 1)
            if ps & c.r:
                need = max(need, 2)
                if cb in ('v_readlane_b32', 'v_writelane_b32', 'v_div_fmas_f32'): need = max(need, 4)
            if ('s', 126) in p.w and cb in ('v_readfirstlane_b32', 'v_readlane_b32', 'v_writelane_b32'): need = max(need, 4)
            if ('s', 126) in p.w and cb.startswith('v_permlane'): need = max(need, 4)
            if ('_sdwa' in p.mn or 'op_sel' in p.text and not p.mn.startswith('v_pk') and p.mn != 'v_fma_mix_f32') and (pv & (c.r | c.w)): need = max(need, 1)
            if p.mn.startswith('v_dot') and (pv & (c.r | c.w)):
                if not (c.mn == p.mn and not (pv & (regs_of(c.ops[1]) | regs_of(c.ops[2])))):
                    need = max(need, 3)
        if c.kind == 'vmem' and (ps & c.r): need = max(need, 5)
        if c.kind == 'salu' and (ps & c.r) and not c.mn.startswith('s_cbranch'): need = max(need, 1)
    elif p.kind == 'salu':
        if ('s', 124) in p.w and (c.lds_dma or c.mn.endswith('addtid_b32')): need = max(need, 1)
    elif p.kind == 'vmem':
        if p.wide_store and (p.sdata & c.w):
            need = max(need, 2 if c.kind == 'valu' else 1)
    return need

MAXLOOK = 22

VOP12 = set("""v_mov_b32 v_add_u32 v_sub_u32 v_subrev_u32 v_lshlrev_b32 v_lshrrev_b32 v_ashrrev_i32 v_and_b32 v_or_b32 v_xor_b32 v_mul_u32_u24
v_min_u32 v_max_u32 v_cndmask_b32 v_add_f32 v_sub_f32 v_subrev_f32 v_mul_f32 v_fmac_f32 v_min_f32 v_max_f32 v_rcp_f32 v_rsq_f32 v_sqrt_f32 v_exp_f32 v_log_f32
v_readfirstlane_b32 v_permlane32_swap_b32 v_permlane16_swap_b32 v_accvgpr_mov_b32 v_nop v_dot2c_f32_bf16 v_cvt_f32_u32 v_cvt_u32_f32 v_not_b32""".split())
NOPROMO = set('v_readfirstlane_b32 v_permlane32_swap_b32 v_permlane16_swap_b32 v_accvgpr_mov_b32 v_nop v_fmac_f32 v_dot2c_f32_bf16 v_cndmask_b32'.split())
_INLINE_F = {'0.5', '-0.5', '1.0', '-1.0', '2.0', '-2.0', '4.0', '-4.0'}
_INLINE_HEX = {0x3f000000, 0xbf000000, 0x3f800000, 0xbf800000, 0x40000000, 0xc0000000, 0x40800000, 0xc0800000, 0x3e22f983}
def is_literal(tok):
    tok = tok.strip()
    if not tok or regs_of(tok) or tok in _INLINE_F or tok in ('vcc', 'exec', 'm0', 'off', 'scc'): return False
    try:
        v = int(tok, 0)
    except ValueError:
        return not tok.startswith('hwreg') and not tok.startswith('vmcnt') and not tok.startswith('lgkmcnt')
    if -16 <= v <= 64: return False
    if (v & 0xffffffff) in _INLINE_HEX or (v & 0xffffffff) >= 0xfffffff0: return False
    return True
def ins_size(ins):
    mn = ins.mn
    if ins.kind in ('mfma', 'ds', 'vmem'): return 8, False
    if ins.kind == 'valu':
        if mn.endswith('_e64') or '_dpp' in mn or '_sdwa' in mn: return 8, False
        base = mn.replace('_e32', '')
        if base.startswith('v_cmp'):
            if ins.ops[0] != 'vcc': return 8, False
            lit = any(is_literal(o) for o in ins.ops[1:])
            if not lit and not ins.ops[2].startswith('v'): return 8, False
            return (8, False) if lit else (4, True)
        if base in VOP12:
            if base == 'v_cndmask_b32' and ins.ops[-1] != 'vcc': return 8, False
            if any(is_literal(o) for o in ins.ops[1:]): return 8, False
            if len(ins.ops) >= 3 and not ins.ops[2].startswith('v'): return 8, False
            if any(o.startswith('-v') or o.startswith('|') or o.startswith('abs') for o in ins.ops): return 8, False
            return 4, (base not in NOPROMO and not mn.endswith('_e32'))
        return 8, False
    if ins.kind == 'salu':
        if mn.startswith('s_load') or mn.startswith('s_mem') or mn.startswith('s_buffer') or mn.startswith('s_atomic'): return 8, False
        if mn in ('s_nop', 's_waitcnt', 's_barrier', 's_endpgm', 's_branch', 's_setprio', 's_sleep') or mn.startswith('s_cbranch') or mn.endswith('k_i32') or mn.startswith('s_getreg'): return 4, False
        if mn == 's_mov_b64' and ins.ops[1].startswith('0x'): return 8, False
        return (8 if any(is_literal(o) for o in ins.ops) else 4), False
    return 4, False

class Asm:
    def __init__(self):
        self.lines = []
        self.hist = []
        self.auto_nops = []
        self.all_ins = []
        self.record = None
        self.prevk = None; self.clock = 0; self.mfree = 0; self.store_mod = ' sc1'
        self.off = 0; self.run4 = []; self.align = True; self.dense = False; self.sizes = []
    def raw(self, s):
        self.lines.append(s)
        if s.startswith('.p2align'): self.off = 0; self.run4 = []
    def comment(self, s):
        self.lines.append('    ; ' + s)
    def label(self, name, reset=False):
        self.lines.append(name + ':')
        if self.record is not None: self.record.append(('label', name))
        if reset:
            self.hist = []
    def _need(self, ins):
        dist = 0; pad = 0
        for p in reversed(self.hist):
            req = required_states(p, ins)
            if req > dist:
                pad = max(pad, req - dist)
            dist += p.states
            if dist > MAXLOOK: break
        return pad
    def _tick(self, ins):
        if ins.kind == 'mfma':
            t = max(self.clock, self.mfree)
            self.mfree = t + 4 * ins.passes; self.clock = t + (4 if ins.passes == 2 else 8)
        elif ins.mn.startswith('v_pk_') or ins.mn.startswith('v_dot'):
            self.clock = max(self.clock, self.mfree) + 4
        elif ins.mn.replace('_e32', '') in TRANS:
            self.clock += 8
        elif ins.kind in ('vmem', 'ds'):
            self.clock += (8 if ins.kind == 'vmem' else 4) + (8 if self.prevk == 'valu' else 0)
        else:
            self.clock += 4 * ins.states
        self.prevk = ins.kind
    def e(self, text):
        if text.startswith('buffer_store_dword') and self.store_mod: text += self.store_mod
        ins = Ins(text)
        self._tick(ins)
        pad = self._need(ins)
        while pad > 0:
            n = min(pad, 16)
            nop = Ins('s_nop %d' % (n - 1))
            self.lines.append(' s_nop %d' % (n - 1)); self.off += 4; self.sizes.append(4)
            self.hist.append(nop); self.auto_nops.append((len(self.lines), n, text))
            if self.record is not None: self.record.append(('ins', nop))
            pad -= n
        sz, promo = ins_size(ins)
        if self.align and sz == 8 and self.off % 8 == 4:
            if self.run4:
                li, si = self.run4.pop()
                t = self.lines[li].split(None, 1)
                self.lines[li] = ' ' + t[0] + '_e64 ' + t[1]; self.off += 4; self.sizes[si] = 8
            elif self.dense:
                nop = Ins('s_nop 0')
                self.lines.append(' s_nop 0'); self.off += 4; self.sizes.append(4); self.hist.append(nop)
                if self.record is not None: self.record.append(('ins', nop))
        if sz == 8: self.run4 = []
        elif promo: self.run4.append((len(self.lines), len(self.sizes)))
        self.off += sz; self.sizes.append(sz)
        self.lines.append(' ' + text)
        self.hist.append(ins)
        if len(self.hist) > 64: self.hist = self.hist[-40:]
        if self.record is not None: self.record.append(('ins', ins))
        return ins
    def text(self):
        return '\n'.join(self.lines) + '\n'

def check_seq(seq):
    out = []
    for i, c in enumerate(seq):
        dist = 0
        for j in range(i - 1, -1, -1):
            p = seq[j]
            req = required_states(p, c)
            if req > dist:
                out.append((j, i, req, dist, p.text, c.text))
            dist += p.states
            if dist > MAXLOOK: break
    return out

def vr(base, n=1, f='v'):
    return '%s%d' % (f, base) if n == 1 else '%s[%d:%d]' % (f, base, base + n - 1)
def ar(base, n=1):
    return vr(base, n, 'a')
def sr(base, n=1):
    return vr(base, n, 's')

def kernel_begin(a, name):
    a.raw('.globl %s' % name)
    a.raw('.p2align 8')
    a.raw('.type %s,@function' % name)
    a.label(name, reset=True)
    if SCRAMBLE[0]:
        a.e('s_and_b32 s3, s2, 31')
        a.e('s_lshl_b32 s3, s3, 3')
        a.e('s_bfe_u32 s4, s2, 0x30005')
        a.e('s_or_b32 s3, s3, s4')
        a.e('s_andn2_b32 s2, s2, 0xff')
        a.e('s_or_b32 s2, s2, s3')

SCRAMBLE = [False]
def kernel_desc(name, vgpr, sgpr, accum):
    return '\n'.join([
        '.amdhsa_kernel %s' % name,
        '  .amdhsa_next_free_vgpr %d' % vgpr,
        '  .amdhsa_next_free_sgpr %d' % sgpr,
        '  .amdhsa_accum_offset %d' % accum,
        '  .amdhsa_group_segment_fixed_size 0',
        '  .amdhsa_kernarg_size 88',
        '  .amdhsa_user_sgpr_count 2',
        '  .amdhsa_user_sgpr_kernarg_segment_ptr 1',
        '  .amdhsa_system_sgpr_workgroup_id_x 1',
        '.end_amdhsa_kernel', ''])
```

```python
import copy
from asmlib import *
from layout import *

class LdsQ:
    def __init__(self):
        self.n = 0; self.done = 0; self.where = {}; self.pending = set()
    def issue(self, regs, check=True):
        self.n += 1
        for r in regs:
            if check: assert r not in self.pending, ('ring WAR', r)
            self.where[r] = self.n; self.pending.add(r)
    def consume(self, r):
        self.pending.discard(r); self.pending.discard(r + 1000)
    def need(self, regs):
        return max([self.where.get(r, 0) for r in regs] + [0])
    def wait_for(self, a, idx):
        if idx <= self.done: return
        N = min(self.n - idx, 15)
        a.e('s_waitcnt lgkmcnt(%d)' % N)
        self.done = self.n - N
    def drained(self):
        self.done = self.n
    def state(self):
        return (self.n - self.done, sorted((self.n - v, k) for k, v in self.where.items() if v > self.done), sorted(self.pending))

MF = 'v_mfma_f32_16x16x32_bf16'

KIDX = [0]
MIDR = {76: 80, 77: 81, 0: 80, 1: 81, 2: 82, 3: 83, 4: 84}
def stamp_begin(a):
    a.e('s_memrealtime s[66:67]')
    a.e('s_memtime s[72:73]')
    for r in range(80, 85): a.e('s_mov_b32 s%d, 0' % r)
    KIDX[0] += 1
CYC = [False]
def stamp_mid(a, reg):
    if CYC[0]:
        a.e('s_memtime s[78:79]')
        a.e('s_waitcnt lgkmcnt(0)')
        a.e('s_cselect_b32 s79, 1, 0')
        a.e('s_sub_u32 s78, s78, s72')
        a.e('s_add_u32 s%d, s78, s66' % MIDR[reg])
        a.e('s_cmp_eq_u32 s79, 1')
        return
    a.e('s_memrealtime s[78:79]')
    a.e('s_waitcnt lgkmcnt(0)')
    a.e('s_mov_b32 s%d, s78' % MIDR[reg])
def stamp_end(a, sWave, endlabel=None, nw=4):
    a.e('s_waitcnt vmcnt(0)')
    a.e('s_memrealtime s[68:69]')
    a.e('s_memtime s[74:75]')
    a.e('s_waitcnt lgkmcnt(0)')
    a.e('s_sub_u32 s74, s74, s72')
    a.e('s_getreg_b32 s71, hwreg(HW_REG_XCC_ID)')
    a.e('s_and_b32 s71, s71, 15')
    a.e('s_lshl_b32 s71, s71, 28')
    a.e('s_or_b32 s74, s74, s71')
    a.e('s_mul_i32 s70, s2, %d' % nw)
    a.e('s_add_u32 s70, s70, s%d' % sWave)
    a.e('s_lshl_b32 s70, s70, 5')
    a.e('s_add_u32 s70, s70, %d' % (TRACE_OFF + (KIDX[0] - 1) * TRACE_STRIDE))
    a.e('s_mov_b64 exec, 1')
    a.e('v_mov_b32 v0, s66'); a.e('v_mov_b32 v1, s68'); a.e('v_mov_b32 v2, s74'); a.e('v_mov_b32 v3, s80')
    a.e('v_mov_b32 v4, s81'); a.e('v_mov_b32 v5, s82'); a.e('v_mov_b32 v6, s83'); a.e('v_mov_b32 v7, s84')
    a.e('v_mov_b32 v8, s70')
    a.e('global_store_dwordx4 v8, v[0:3], s[4:5]')
    a.e('global_store_dwordx4 v8, v[4:7], s[4:5] offset:16')

def attn_salu(a):
    sWave = 40; sM0 = 41; sDma = 42; sQ = 43; sI = 16; sN2 = 17; sValid = 18; sOut = 19; sMl = 20; sT0 = 21; sT1 = 22; sT2 = 23
    a.e('s_and_b32 s%d, s2, 7' % sT0)
    a.e('s_lshr_b32 s%d, s2, 3' % sT1)
    a.e('s_and_b32 s%d, s%d, 3' % (sT2, sT1))
    a.e('s_lshr_b32 s%d, s%d, 2' % (sT1, sT1))
    a.e('s_and_b32 s24, s%d, 3' % sT0)
    a.e('s_lshl_b32 s24, s24, 3')
    a.e('s_add_u32 s24, s24, s%d' % sT1)
    a.e('s_lshl_b32 s24, s24, 2')
    a.e('s_add_u32 s24, s24, s%d' % sWave)
    a.e('s_cmp_lt_u32 s24, 125')
    a.e('s_cselect_b32 s%d, 1, 0' % sValid)
    a.e('s_min_u32 s24, s24, 124')
    a.e('s_lshr_b32 s25, s%d, 2' % sT0)
    a.e('s_mul_i32 s25, s25, 125')
    a.e('s_add_u32 s24, s24, s25')
    a.e('s_lshl_b32 s%d, s24, 15' % sQ)
    a.e('s_mul_i32 s26, s%d, 250' % sT2)
    a.e('s_add_u32 s26, s26, s24')
    a.e('s_lshl_b32 s%d, s24, 17' % sOut)
    a.e('s_lshl_b32 s27, s%d, 10' % sT2)
    a.e('s_add_u32 s%d, s%d, s27' % (sOut, sOut))
    a.e('s_add_u32 s%d, s%d, %d' % (sOut, sOut, OP_OFF))
    a.e('s_lshl_b32 s%d, s24, 9' % sMl)
    a.e('s_lshl_b32 s26, s%d, 7' % sT2)
    a.e('s_add_u32 s%d, s%d, s26' % (sMl, sMl))
    a.e('s_add_u32 s%d, s%d, %d' % (sMl, sMl, ML_OFF))
    a.e('s_add_u32 s%d, s%d, %d' % (sQ, sQ, QF_OFF))
    a.e('s_mul_i32 s27, s%d, 31' % sT2)
    a.e('s_min_u32 s28, s%d, 1' % sT2)
    a.e('s_add_u32 s27, s27, s28')
    a.e('s_add_u32 s27, s27, s25')
    a.e('s_lshl_b32 s%d, s27, 15' % sDma)
    if XF_OFF: a.e('s_add_u32 s%d, s%d, %d' % (sDma, sDma, XF_OFF))
    a.e('s_sub_u32 s%d, 31, s28' % sN2)
    a.e('s_lshl_b32 s%d, s%d, 13' % (sM0, sWave))

def attn_early_setup(a, sW_in, vLane, vLane16, T):
    a.e('s_mov_b32 s40, s%d' % sW_in)
    attn_salu(a)
    a.e('s_add_u32 s34, s27, s17')
    a.e('s_lshr_b32 s34, s34, 1')
    a.e('s_lshr_b32 s36, s27, 1')
    a.e('v_add_u32 v%d, s36, v%d' % (T, vLane))
    a.e('v_min_u32 v%d, s34, v%d' % (T, T))
    a.e('s_lshr_b32 s34, s24, 1')
    a.e('v_mov_b32 v%d, s34' % (T + 1))
    a.e('v_cmp_lt_u32 vcc, 31, v%d' % vLane)
    a.e('v_cndmask_b32 v%d, v%d, v%d, vcc' % (T, T, T + 1))
    a.e('v_lshlrev_b32 v%d, 7, v%d' % (T, T))
    a.e('v_add_u32 v%d, %d, v%d' % (T, TC_OFF, T))
    a.e('v_add_u32 v%d, s41, v%d' % (T + 2, vLane16))
    a.e('v_add_u32 v%d, 0x1000, v%d' % (T + 3, T + 2))
def attn_early_loads(vLane16, T):
    out = []
    def tile(stage):
        for j in range(8):
            g = []
            if j % 4 == 0: g += ['s_add_u32 m0, s41, %d' % (stage * 32768 + (j // 4) * 4096), 's_nop 0']
            g.append('buffer_load_dwordx4 v%d, s[8:11], s42 offen offset:%d lds' % (T + 2 if j < 4 else T + 3, (j % 4) * 1024))
            if j == 7: g.append('s_add_u32 s42, s42, 0x8000')
            out.append(g)
    tile(0)
    for f in range(32):
        g = ['s_add_u32 s43, s43, 0x1000'] if (f and f % 4 == 0) else []
        g.append('buffer_load_dwordx4 %s, v%d, s[8:11], s43 offen offset:%d' % (ar(4 * f, 4), vLane16, (f % 4) * 1024))
        out.append(g)
    tile(1); tile(2)
    return out

def gen_attn(a, name='attn_kernel', cfg=None):
    cfg = cfg or {}
    DV = cfg.get('DV', 9)
    DK = cfg.get('DK', 7)
    BARPOS = cfg.get('BARPOS', 31 - DV + 4)
    WG = cfg.get('WAITGROUP', 4)
    DMA_SLOTS = cfg.get('DMA_SLOTS', [2, 6, 10, 14, 18, 22, 26, 30])
    NO_DMA = cfg.get('NO_DMA', False)
    NO_SM = cfg.get('NO_SM', False)
    STAMP = cfg.get('STAMP', False)
    FUSE = cfg.get('FUSE', 1)
    S = [0, 16]; P = 32; RING = 40; NR = 16
    NEGM = 104
    vK = [112, 113]; vV = [114, 115]
    vD0, vD1, vL0, vL1, vMx, vT0, vT1, vLane16 = 116, 117, 118, 119, 120, 121, 122, 123
    vL = [vL0, vL1]
    def Sreg(b, kt, qs): return S[b] + (kt * 2 + qs) * 4
    def Obase(dt, qs): return (dt * 2 + qs) * 4
    def Oreg(dt, qs):
        o = Obase(dt, qs)
        return vr(128 + o, 4) if o < 128 else ar(o, 4)
    def Qreg(ks, qs): return ar((ks * 2 + qs) * 4, 4)
    sSRD = 8; sWave = 40; sM0 = 41; sDma = 42; sQ = 43; sI = 16; sN2 = 17; sValid = 18; sOut = 19; sMl = 20; sT0 = 21; sT1 = 22; sT2 = 23
    srd = sr(sSRD, 4)

    F2 = cfg.get('FUSE2', 1)
    from common import poll
    if F2:
        a.raw('.p2align 8'); a.label(name, reset=True); a.label('attn_body')
        a.e('s_nop 1')
    else:
        kernel_begin(a, name)
        a.e('s_cmp_ge_u32 s2, 256')
        a.e('s_cbranch_scc1 %s_end' % name)
        a.e('s_load_dwordx2 s[4:5], s[0:1], 80')
        if STAMP: stamp_begin(a)
    if cfg.get('CPF', 1) and not F2:
        from common import code_prefetch
        code_prefetch(a, name, 124, 125, 1)
    a.e('v_lshrrev_b32 v1, 6, v0')
    a.e('v_and_b32 v2, 63, v0')
    if not F2: a.e('v_readfirstlane_b32 s%d, v1' % sWave)
    a.e('v_lshlrev_b32 v%d, 4, v2' % vLane16)
    if not F2: attn_salu(a)
    a.e('v_add_u32 v%d, s%d, v%d' % (vD0, sM0, vLane16))
    a.e('v_add_u32 v%d, 0x1000, v%d' % (vD1, vD0))
    sG, sRd0, sRd1 = 29, 30, 31
    a.e('s_and_b32 s%d, s%d, 3' % (sG, sT0))
    a.e('s_lshl_b32 s%d, s%d, 5' % (sG, sG))
    a.e('s_lshr_b32 s34, s2, 3')
    a.e('s_add_u32 s%d, s%d, s34' % (sG, sG))
    a.e('s_add_u32 s%d, s%d, s25' % (sG, sG))
    a.e('s_lshl_b32 s%d, s%d, 15' % (sG, sG))
    a.e('s_add_u32 s35, s%d, %d' % (sG, U_OFF))
    a.e('s_add_u32 s%d, s%d, %d' % (sG, sG, G_OFF))
    a.e('s_sub_u32 s%d, s%d, 3' % (sRd0, sN2))
    a.e('s_sub_u32 s%d, s%d, 2' % (sRd1, sN2))
    a.e('v_lshrrev_b32 v3, 4, v2')
    a.e('v_and_b32 v4, 15, v2')
    a.e('v_and_b32 v5, 1, v3')
    a.e('v_mul_u32_u24 v5, 12, v5')
    a.e('v_xor_b32 v5, v4, v5')
    a.e('v_lshlrev_b32 v5, 4, v5')
    a.e('v_lshl_add_u32 v%d, v3, 9, v5' % vK[0])
    a.e('v_add_u32 v%d, 0x10000, v%d' % (vK[1], vK[0]))
    a.e('v_lshrrev_b32 v4, 2, v2')
    a.e('v_bfe_u32 v5, v2, 1, 1')
    a.e('v_and_b32 v6, 1, v2')
    a.e('v_mul_u32_u24 v7, 12, v5')
    a.e('v_xor_b32 v4, v4, v7')
    a.e('v_lshlrev_b32 v4, 4, v4')
    a.e('v_lshl_add_u32 v4, v5, 9, v4')
    a.e('v_lshl_add_u32 v%d, v6, 3, v4' % vV[0])
    a.e('v_add_u32 v%d, 0x10000, v%d' % (vV[1], vV[0]))
    a.e('v_lshlrev_b32 v126, 7, v2')
    a.e('v_lshlrev_b32 v127, 7, v0')
    zl = ['v_mov_b32 v%d, 0' % r for r in range(128, 256)] + ['v_accvgpr_write_b32 a%d, 0' % r for r in range(128, 256)]
    def zero(n):
        for _ in range(n):
            if zl: a.e(zl.pop(0))
    if F2:
        a.e('v_cmp_ne_u32 vcc, 0, v2')
        a.e('v_mov_b32 v125, 0x40000000')
        a.e('v_cndmask_b32 v124, 0, v125, vcc')
        a.e('v_mov_b32 v125, 1')
        zero(cfg.get('AT_Z2', 150))
    else:
        zero(cfg.get('AT_Z0', 64))
        a.e('s_waitcnt lgkmcnt(0)')
        a.e('s_mov_b32 s%d, s4' % sSRD)
        a.e('s_and_b32 s%d, s5, 0xffff' % (sSRD + 1))
        a.e('s_mov_b32 s%d, %d' % (sSRD + 2, WS_BYTES))
        a.e('s_mov_b32 s%d, 0x00020000' % (sSRD + 3))

    def dma_piece(stage, j, redirect=False):
        out = []
        if j % 4 == 0:
            out.append('s_add_u32 m0, s%d, %d' % (sM0, stage * 32768 + (j // 4) * 4096))
        out.append('buffer_load_dwordx4 v%d, %s, s%d offen offset:%d lds' % (vD0 if j < 4 else vD1, srd, sDma, (j % 4) * 1024))
        if j == 7:
            out.append('s_add_u32 s%d, s%d, 0x8000' % (sDma, sDma))
            if redirect and cfg.get('AT_REDIR', 0):
                out.append('s_cmp_eq_u32 s%d, s%d' % (sI, sRd0))
                out.append('s_cselect_b32 s%d, s%d, s%d' % (sDma, sG, sDma))
                out.append('s_cmp_eq_u32 s%d, s%d' % (sI, sRd1))
                out.append('s_cselect_b32 s%d, s35, s%d' % (sDma, sDma))
        return out
    def dma_tile(stage, z=0):
        for j in range(8):
            for t in dma_piece(stage, j): a.e(t)
            zero(z)

    if cfg.get('AT_QT', 0):
        a.e('s_lshl_b32 s34, s%d, 13' % sT2)
        a.e('s_add_u32 s34, s34, s%d' % sQ)
        a.e('buffer_load_dword v125, v126, %s, s34 offen' % srd)
    if not F2:
        dma_tile(0)
        for f in range(32):
            if f and f % 4 == 0:
                a.e('s_add_u32 s%d, s%d, 0x1000' % (sQ, sQ))
            a.e('buffer_load_dwordx4 %s, v%d, %s, s%d offen offset:%d' % (ar(4 * f, 4), vLane16, srd, sQ, (f % 4) * 1024))
            zero(6)
        zero(1000)
    a.e('v_mov_b32 v%d, 0' % vL0)
    a.e('v_mov_b32 v%d, 0' % vL1)
    a.e('s_mov_b32 s%d, 0' % sI)

    q = LdsQ()
    def ring(n): return RING + 4 * ((n % 64) % NR)
    def kread(stage, n):
        reg = ring(n); ks, kt = n // 2, n % 2
        return [('ds', 'ds_read_b128 %s, v%d offset:%d' % (vr(reg, 4), vK[stage >> 1], (stage & 1) * 32768 + ks * 2048 + kt * 256), [reg])]
    def vread(stage, dt):
        reg = ring(32 + dt)
        off = (stage & 1) * 32768 + dt * 1024
        return [('ds', 'ds_read_b64_tr_b16 %s, v%d offset:%d' % (vr(reg, 2), vV[stage >> 1], off), [reg + 1000]),
                ('ds', 'ds_read_b64_tr_b16 %s, v%d offset:%d' % (vr(reg + 2, 2), vV[stage >> 1], off + 256), [reg])]
    chk = [True]
    def emit_item(it):
        if isinstance(it, tuple):
            a.e(it[1]); q.issue(it[2], chk[0])
        else:
            a.e(it)

    if not F2: a.e('s_waitcnt vmcnt(32)')
    a.e('s_barrier')
    if STAMP and cfg.get('S1') == 6: stamp_mid(a, 0)
    PD = 8
    for n in range(PD):
        for it in kread(0, n): emit_item(it)
    late = [] if F2 else [dma_piece(1, j) for j in range(8)] + [dma_piece(2, j) for j in range(8)]
    nl = 0
    for n in range(32):
        ks, kt = n // 2, n % 2
        if kt == 0 and not F2:
            a.e('s_waitcnt vmcnt(%d)' % (nl + 30 - 2 * ks))
        q.wait_for(a, q.need([ring(n)]))
        for qs in range(2):
            a.e('%s %s, %s, %s, %s' % (MF, vr(Sreg(0, kt, qs), 4), vr(ring(n), 4), Qreg(ks, qs), '0' if ks == 0 else vr(Sreg(0, kt, qs), 4)))
            if qs == 0 and n + PD < 32:
                for it in kread(0, n + PD): emit_item(it)
            zero(1 + qs)
        q.consume(ring(n))
        if (n < 8 or n % 2 == 1) and late:
            for t in late.pop(0): a.e(t)
            nl += 1
    assert not late
    zero(1000)
    if not F2:
        a.e('s_waitcnt vmcnt(8)')
        a.e('s_barrier')
    for r_ in range(4): a.e('v_mov_b32 v%d, -1' % (P + r_))
    if FUSE:
        a.e('s_lshl_b32 s34, s%d, 4' % sT0)
        a.e('s_lshr_b32 s36, s2, 4')
        a.e('s_add_u32 s34, s34, s36')
        a.e('s_lshl_b32 s34, s34, 16')
        a.e('s_add_u32 s34, s34, %d' % PO_OFF)
        a.e('s_add_u32 s36, s34, 0x8000')
        a.e('s_bitcmp%d_b32 s2, 3' % cfg.get('TSWAP', 1))
        a.e('s_cbranch_scc1 %s_nofill' % name)
        for j in range(16):
            a.e('buffer_store_dwordx4 %s, v%d, %s, s%d offen offset:%d' % (vr(P, 4), vD0 if j % 8 < 4 else vD1, srd, 34 if j < 8 else 36, (j % 4) * 1024))
        a.label('%s_nofill' % name)
    else:
        a.e('s_lshl_b32 s34, s2, 15')
        a.e('s_add_u32 s34, s34, %d' % PO_OFF)
        for j in range(8):
            a.e('buffer_store_dwordx4 %s, v%d, %s, s34 offen offset:%d' % (vr(P, 4), vD0 if j < 4 else vD1, srd, (j % 4) * 1024))

    if cfg.get('AT_DMA2', 0):
        for j in range(4):
            for t in dma_piece(3, j): a.e(t)
    n_tail = cfg.get('NTAIL', 8)
    for n in range(n_tail):
        for it in kread(1, n): emit_item(it)

    def head_wait():
        idx = max(q.need([ring(k2)]) for k2 in range(WG))
        assert idx > q.done
        q.wait_for(a, idx)
    def rowmax(b, qs, dst, tmp):
        r0, r1 = Sreg(b, 0, qs), Sreg(b, 1, qs)
        a.e('v_max3_f32 v%d, v%d, v%d, v%d' % (dst, r0, r0 + 1, r0 + 2))
        a.e('v_max3_f32 v%d, v%d, v%d, v%d' % (dst, dst, r0 + 3, r1))
        a.e('v_max3_f32 v%d, v%d, v%d, v%d' % (dst, dst, r1 + 1, r1 + 2))
        a.e('v_max_f32 v%d, v%d, v%d' % (dst, dst, r1 + 3))
        a.e('v_mov_b32 v%d, v%d' % (tmp, dst))
        a.e('v_permlane16_swap_b32 v%d, v%d' % (tmp, dst))
        a.e('v_max_f32 v%d, v%d, v%d' % (dst, dst, tmp))
        a.e('v_mov_b32 v%d, v%d' % (tmp, dst))
        a.e('v_permlane32_swap_b32 v%d, v%d' % (tmp, dst))
        a.e('v_max_f32 v%d, v%d, v%d' % (dst, dst, tmp))
    for qs in range(2):
        rowmax(0, qs, vMx, vT0)
        for kt in range(2):
            for r in range(4):
                a.e('v_sub_f32 v%d, v%d, v%d' % (Sreg(0, kt, qs) + r, Sreg(0, kt, qs) + r, vMx))
        for r in range(4):
            a.e('v_sub_f32 v%d, 0, v%d' % (NEGM + 4 * qs + r, vMx))

    def softmax_items(b):
        items = []
        for qs in range(2):
            for kt in range(2):
                for pr in range(2):
                    r0 = Sreg(b, kt, qs) + 2 * pr; r1 = r0 + 1
                    items.append('v_exp_f32 v%d, v%d' % (r0, r0))
                    items.append('v_exp_f32 v%d, v%d' % (r1, r1))
                    items.append('v_add_f32 v%d, v%d, v%d' % (vL[qs], vL[qs], r0))
                    items.append('v_cvt_pk_bf16_f32 v%d, v%d, v%d' % (P + 4 * qs + 2 * kt + pr, r0, r1))
                    items.append('v_add_f32 v%d, v%d, v%d' % (vL[qs], vL[qs], r1))
        return items

    LAT = cfg.get('LAT', 8)
    EARLY = cfg.get('EARLY', 22)
    BARG = cfg.get('BARG', 112)
    def body(u, final=False):
        bc, bn = u % 2, (u + 1) % 2
        stK, stV = (u + 1) % 4, u
        mf = [None] * 128
        need = [None] * 64
        for n in range(32):
            if final: break
            ks, kt = n // 2, n % 2
            for qs in range(2):
                pos = qs ^ (kt if cfg.get('AT_GRAY', 1) else 0)
                mf[2 * n + pos] = '%s %s, %s, %s, %s' % (MF, vr(Sreg(bn, kt, qs), 4), vr(ring(n), 4), Qreg(ks, qs), vr(NEGM + 4 * qs, 4) if ks == 0 else vr(Sreg(bn, kt, qs), 4))
            need[n] = ring(n)
        for dt in range(32):
            for qs in range(2):
                pos = qs ^ ((dt & 1) if cfg.get('AT_GRAY', 1) else 0)
                mf[64 + 2 * dt + pos] = '%s %s, %s, %s, %s' % (MF, Oreg(dt, qs), vr(ring(32 + dt), 4), vr(P + 4 * qs, 4), Oreg(dt, qs))
            need[32 + dt] = ring(32 + dt)
        pre = [[] for _ in range(129)]
        if final:
            sm = [] if NO_SM else softmax_items(bc)
            for dt in range(32):
                its = vread(stV, dt)
                sl = 32 + dt - 9
                pre[2 * sl] += [its[0]]; pre[2 * sl + 1] += [its[1]]
            for j, it in enumerate(sm):
                pre[2 * (32 - 9) + (j * 18) // len(sm)].append(it)
            waits = set(range(64, 128, 4))
        else:
            cap = [2] * 128
            def wgap(k):
                g = 2 * (k - k % WG)
                return g
            waits = set(wgap(k) for k in range(WG, 64) if not (BARG <= wgap(k) < 128))
            for g in waits: cap[g] -= 1
            cap[BARG] -= 2; pre[BARG].append(('bar',))
            cap[0] -= 1 if u == 1 else 2
            cap[127] -= 1
            if F2 and u == 0:
                pre[122].append('buffer_atomic_add v125, v124, %s, s86 offen offset:8 sc1' % srd); cap[122] -= 2
                pre[123].append('s_mov_b32 s86, 0x40000000'); cap[123] -= 1
            pre[125].append('s_add_u32 s%d, s%d, 1' % (sI, sI)); cap[125] -= 1
            if u in (1, 2):
                pre[126].append('s_cmp_eq_u32 s%d, s%d' % (sI, sN2)); cap[126] -= 1
            ds = []
            def ring_ok(k):
                return 2 * (k - NR) + 2
            for n in range(n_tail, 32):
                for it in kread(stK, n): ds.append((it, max(0, wgap(n) - EARLY, ring_ok(n)), wgap(n) - LAT))
            for dt in range(32):
                k = 32 + dt
                w = min(wgap(k), BARG)
                for it in vread(stV, dt): ds.append((it, max(w - EARLY, ring_ok(k)), w - LAT))
            for n in range(n_tail):
                for it in kread((u + 2) % 4, n): ds.append((it, max(BARG + 1, ring_ok(64 + n)), 120))
            dl = [d[2] for d in ds]
            for x in range(len(ds) - 2, -1, -1):
                dl[x] = min(dl[x], dl[x + 1] - 1)
            sm = [] if NO_SM else [(it, 2 if it.startswith('v_exp') else 1, 1) for it in softmax_items(bc)]
            Sn = S[bn]
            mx = ['v_max3_f32 v%d, v%d, v%d, v%d' % (vMx, Sn, Sn + 1, Sn + 2)]
            for r in range(3, 15, 2):
                mx.append('v_max3_f32 v%d, v%d, v%d, v%d' % (vMx, vMx, Sn + r, Sn + r + 1))
            mx.append('v_max_f32 v%d, v%d, v%d' % (vMx, vMx, Sn + 15))
            mx.append('v_cmp_lt_f32 vcc, 0x41000000, v%d' % vMx)
            sm += [(it, 1, cfg.get('MX_START', 70)) for it in mx]
            dm = []
            post = {}
            if cfg.get('AT_DMA2', 0):
                def place(stage, js, g0):
                    for x, j in enumerate(js):
                        for it in dma_piece(stage, j):
                            if it.startswith('s_add_u32 m0'): post.setdefault(g0 - 1, []).append(it); cap[g0 - 1] -= 1
                            elif it.startswith('buffer'): pre[g0 + x].append(it); cap[g0 + x] -= 2
                            else: post.setdefault(g0 + x + 1, []).append(it); cap[g0 + x + 1] -= 1
                place((u + 3) % 4, range(4, 8), BARG - 5)
                place(u, range(0, 4), 121)
            elif not NO_DMA:
                g0, gs = cfg.get('DMA_START', 66), cfg.get('DMA_STEP', 5)
                for j in range(8):
                    for x, it in enumerate(dma_piece((u + 3) % 4, j, True)):
                        dm.append((it, g0 + gs * j + (-1 if it.startswith('s_add_u32 m0') else 0)))
            di = si = mi = 0
            last_m0 = -9
            for g in range(128):
                used_ds = False
                while cap[g] > 0:
                    ds_ready = di < len(ds) and ds[di][1] <= g and not used_ds
                    ds_urgent = ds_ready and dl[di] <= g + cfg.get('URG', 0)
                    sm_ready = si < len(sm) and sm[si][2] <= g and sm[si][1] <= cap[g]
                    dm_ready = mi < len(dm) and dm[mi][1] <= g and not (dm[mi][0].startswith('buffer') and (last_m0 == g or (used_ds and cfg.get('DMA_EXCL'))))
                    if ds_urgent:
                        pre[g].append(ds[di][0]); di += 1; cap[g] -= 1; used_ds = True
                    elif sm_ready and sm[si][1] == 2:
                        pre[g].append(sm[si][0]); cap[g] -= 2; si += 1
                    elif dm_ready:
                        if dm[mi][0].startswith('s_add_u32 m0'): last_m0 = g
                        if dm[mi][0].startswith('buffer') and cfg.get('DMA_EXCL'): used_ds = True
                        pre[g].append(dm[mi][0]); mi += 1; cap[g] -= 1
                    elif ds_ready:
                        pre[g].append(ds[di][0]); di += 1; cap[g] -= 1; used_ds = True
                    elif sm_ready:
                        pre[g].append(sm[si][0]); cap[g] -= 1; si += 1
                    else:
                        break
                pre[g] += post.get(g, [])
                if g == 62: assert NO_SM or si >= 40, ('softmax not finished in phase A', si)
                if g == BARG - 1: assert mi == len(dm), 'dma not finished'
                if di < len(ds): assert ds[di][2] + 4 > g, ('ds late', di, g, ds[di])
            assert di == len(ds) and si == len(sm), (di, len(ds), si, len(sm))
            if u == 0 and cfg.get('SHOW'):
                for g in range(128):
                    print(g, 'W' if g in waits else ' ', [ (x[1] if len(x) > 1 else 'BAR').split()[0] if isinstance(x, tuple) else x.split()[0] for x in pre[g]])
        for pos in range(128):
            k = pos // 2
            for it in pre[pos]:
                if isinstance(it, tuple) and it[0] == 'bar':
                    a.e('s_waitcnt vmcnt(%d) lgkmcnt(0)' % (0 if NO_DMA else 8)); q.drained()
                    a.e('s_barrier')
                else:
                    emit_item(it)
            if mf[pos] is None: continue
            if pos == 127 and not final:
                head_wait()
            if pos in waits:
                idx = 0
                for k2 in range(k, min(64, k + (2 if final else WG))):
                    assert need[k2] in q.pending, ('not issued', k2, pos)
                    idx = max(idx, q.need([need[k2]]))
                q.wait_for(a, idx)
            assert q.need([need[k]]) <= q.done and need[k] in q.pending, ('uncovered', pos)
            a.e(mf[pos])
            if pos % 2 == 1: q.consume(need[k])

    def rare(u):
        bn = (u + 1) % 2
        a.label('%s_rare%d' % (name, u), reset=True)
        a.e('s_nop 15')
        for qs in range(2):
            rowmax(bn, qs, vMx, vT0)
            a.e('v_max_f32 v%d, 0, v%d' % (vMx, vMx))
            a.e('v_sub_f32 v%d, 0, v%d' % (vT0, vMx))
            a.e('v_exp_f32 v%d, v%d' % (vT0, vT0))
            for kt in range(2):
                for r in range(4):
                    a.e('v_sub_f32 v%d, v%d, v%d' % (Sreg(bn, kt, qs) + r, Sreg(bn, kt, qs) + r, vMx))
            for r in range(4):
                a.e('v_sub_f32 v%d, v%d, v%d' % (NEGM + 4 * qs + r, NEGM + 4 * qs + r, vMx))
            a.e('v_mul_f32 v%d, v%d, v%d' % (vL[qs], vL[qs], vT0))
            for dt in range(32):
                o = Obase(dt, qs)
                if o < 128:
                    for j in range(4): a.e('v_mul_f32 v%d, v%d, v%d' % (128 + o + j, 128 + o + j, vT0))
                else:
                    for j in range(4): a.e('v_accvgpr_read_b32 v%d, a%d' % (P + j, o + j))
                    for j in range(4): a.e('v_mul_f32 v%d, v%d, v%d' % (P + j, P + j, vT0))
                    for j in range(4): a.e('v_accvgpr_write_b32 a%d, v%d' % (o + j, P + j))
        a.e('s_nop 3')
        a.e('s_branch %s_back%d' % (name, u))

    head_wait()
    if STAMP and (not FUSE or cfg.get('S1') == 4): stamp_mid(a, 76)
    if STAMP and cfg.get('S1') == 6: stamp_mid(a, 1)
    a.raw('.p2align 6')
    a.label('%s_loop' % name)
    a.record = []
    qstate0 = q.state()
    saved = {}
    for u in range(4):
        body(u)
        a.e('s_cbranch_vccnz %s_rare%d' % (name, u))
        a.label('%s_back%d' % (name, u))
        if u in (1, 2):
            a.e('s_cbranch_scc1 %s_final%d' % (name, u + 1))
            saved[u + 1] = (copy.deepcopy(q), list(a.hist))
        assert q.state() == qstate0, (q.state(), qstate0)
    a.e('s_branch %s_loop' % name)
    rec = [x[1] for x in a.record if x[0] == 'ins']
    a.record = None
    viol = check_seq(rec + rec[:40])
    assert not viol, viol
    loop_len = len(rec)

    for u in (2, 3):
        a.label('%s_final%d' % (name, u))
        q.__dict__.update(saved[u][0].__dict__); a.hist = saved[u][1]
        q.pending = set()
        if cfg.get('AT_TOUCH', 0):
            a.e('s_lshr_b32 s34, s2, 3')
            a.e('s_lshl_b32 s34, s34, 15')
            a.e('s_add_u32 s34, s34, %d' % W2_OFF)
            a.e('buffer_load_dword v125, v127, %s, s34 offen' % srd)
            a.e('s_sub_u32 s34, s34, %d' % W2_OFF)
            a.e('s_min_u32 s34, s34, %d' % (4 << 15))
            a.e('s_add_u32 s34, s34, %d' % TPC_OFF)
            a.e('buffer_load_dword v125, v127, %s, s34 offen' % srd)
            a.e('s_getpc_b64 s[60:61]')
            lbl = '%s_np%d' % (name, u)
            a.label(lbl)
            a.e('s_add_u32 s60, s60, tail_kernel-%s' % lbl)
            a.e('s_addc_u32 s61, s61, 0')
            a.e('v_min_u32 v124, tail_kernel_end-tail_kernel, v127')
            a.e('global_load_dword v125, v124, s[60:61]')
        body(u, final=True)
        if u == 2:
            a.e('s_branch %s_epi' % name)
    a.label('%s_epi' % name)
    if STAMP and (not FUSE or cfg.get('S1') == 4): stamp_mid(a, 77)
    a.e('s_cmp_eq_u32 s%d, 0' % sValid)
    a.e('s_cbranch_scc1 %s_%s' % (name, 'sig' if FUSE else 'end'))
    a.e('s_nop 15')
    for qs in range(2):
        l = vL[qs]
        a.e('v_mov_b32 v%d, v%d' % (vT0, l))
        a.e('v_permlane16_swap_b32 v%d, v%d' % (vT0, l))
        a.e('v_add_f32 v%d, v%d, v%d' % (l, l, vT0))
        a.e('v_mov_b32 v%d, v%d' % (vT0, l))
        a.e('v_permlane32_swap_b32 v%d, v%d' % (vT0, l))
        a.e('v_add_f32 v%d, v%d, v%d' % (l, l, vT0))
    a.e('v_cmp_gt_u32 vcc, 0x100, v%d' % vLane16)
    a.e('v_cndmask_b32 v0, v%d, v%d, vcc' % (NEGM + 4, NEGM))
    a.e('v_cndmask_b32 v1, v%d, v%d, vcc' % (vL1, vL0))
    a.e('v_log_f32 v1, v1')
    a.e('v_sub_f32 v0, v1, v0')
    a.e('v_lshrrev_b32 v2, 2, v%d' % vLane16)
    a.e('s_mov_b64 exec, 0xffffffff')
    a.e('buffer_store_dword v0, v2, %s, s%d offen' % (srd, sMl))
    a.e('s_mov_b64 exec, -1')
    a.e('v_rcp_f32 v4, v%d' % vL0)
    a.e('v_rcp_f32 v5, v%d' % vL1)
    a.dense = True
    sm0 = a.store_mod; a.store_mod = cfg.get('AT_SM', sm0)
    t = 0
    for D in range(16):
        for qs in range(2):
            f = D * 2 + qs
            tmp = RING + 4 * (t % 8); t += 1
            srcs = []
            for e in range(2):
                o = Obase(2 * D + e, qs)
                if o < 128:
                    srcs.append(128 + o)
                else:
                    s_ = 8 + 8 * (f % 3) + 4 * e
                    for j in range(4): a.e('v_accvgpr_read_b32 v%d, a%d' % (s_ + j, o + j))
                    srcs.append(s_)
            for e in range(2):
                for j in range(2):
                    r_ = vr(srcs[e] + 2 * j, 2)
                    a.e('v_pk_mul_f32 %s, %s, v[4:5] op_sel:[0,%d] op_sel_hi:[1,%d]' % (r_, r_, qs, qs))
            for e in range(2):
                for j in range(2):
                    a.e('v_cvt_pk_f16_f32 v%d, v%d, v%d' % (tmp + 2 * e + j, srcs[e] + 2 * j, srcs[e] + 2 * j + 1))
            if f: a.e('s_add_u32 s%d, s%d, 0x1000' % (sOut, sOut))
            a.e('buffer_store_dwordx4 %s, v%d, %s, s%d offen' % (vr(tmp, 4), vLane16, srd, sOut))
    a.store_mod = sm0
    a.dense = False
    if cfg.get('AT_BACK', 0):
        if cfg.get('AT_BACK31', 1):
            a.e('s_cmp_eq_u32 s%d, 31' % sN2)
            a.e('s_cbranch_scc1 %s_nb' % name)
        a.e('s_sub_u32 s%d, s%d, 0x7000' % (sOut, sOut))
        a.e('s_waitcnt vmcnt(%d)' % (32 - 8 * cfg['AT_BACK']))
        for j in range(cfg['AT_BACK']):
            a.e('buffer_load_dword v125, v126, %s, s%d offen' % (srd, sOut))
            a.e('s_add_u32 s%d, s%d, 0x2000' % (sOut, sOut))
        a.label('%s_nb' % name)
    if FUSE:
        a.label('%s_sig' % name, reset=True)
        a.e('s_lshl_b32 s34, s%d, 3' % sT0)
        a.e('s_add_u32 s34, s34, s%d' % sT1)
        a.e('s_lshl_b32 s34, s34, 7')
        a.e('s_add_u32 s34, s34, %d' % CNT_OFF)
        a.e('v_mov_b32 v2, 1')
        a.e('v_mov_b32 v3, 0')
        a.e('s_lshl_b32 s35, s%d, 6' % sWave)
        a.e('v_lshrrev_b32 v0, 4, v%d' % vLane16)
        if F2:
            a.e('s_and_b32 s36, s2, 3')
            a.e('s_lshl_b32 s36, s36, 4')
            a.e('s_lshr_b32 s37, s2, 4')
            a.e('s_add_u32 s36, s36, s37')
            a.e('s_lshl_b32 s36, s36, 6')
            a.e('s_lshl_b32 s37, s25, 5')
            a.e('s_add_u32 s36, s36, s37')
            a.e('s_add_u32 s37, s36, 95')
            a.e('s_min_u32 s37, s37, 7999')
            a.e('s_lshr_b32 s37, s37, 6')
            a.e('s_max_u32 s36, s36, 32')
            a.e('s_sub_u32 s36, s36, 32')
            a.e('s_lshr_b32 s36, s36, 6')
            a.e('v_add_u32 v6, s36, v0')
            a.e('v_min_u32 v6, s37, v6')
            a.e('v_lshlrev_b32 v6, 7, v6')
            a.e('v_add_u32 v6, %d, v6' % TC_OFF)
            poll(a, '%s_pg' % name, 6, 7, 8, 38, 8)
        a.e('v_add_u32 v0, s35, v0')
        a.e('s_waitcnt vmcnt(0)')
        a.e('s_mov_b64 exec, 1')
        a.e('buffer_atomic_add v2, v3, %s, s34 offen sc1' % srd)
        a.e('s_mov_b64 exec, -1')
        if STAMP and cfg.get('S1') == 4: stamp_mid(a, 2)
        a.e('s_barrier')
        a.e('s_branch tail_body')
    else:
        if STAMP: stamp_end(a, sWave, '%s_end' % name)
    a.label('%s_end' % name)
    a.e('s_endpgm')
    for u in range(4):
        rare(u)
    if F2: return None
    return dict(name=name, vgpr=512, sgpr=96, accum=256, grid=256, block=256, lds=163840 if FUSE else 131072, loop_len=loop_len)
```

```python
import sys, json
from asmlib import *
from layout import *

HEADER = """; Kernarg layout for this problem (88 bytes, ptrs only, base s[0:1]):
"""
MACROS = [('MM', 'v_mfma_f32_16x16x32_bf16', 4), ('M4', 'v_mfma_f32_4x4x4_16b_bf16', 4), ('CB', 'v_cvt_pk_bf16_f32', 3), ('RA', 'v_accvgpr_read_b32', 2), ('WA', 'v_accvgpr_write_b32', 2)]

def build(kernels, short=True):
    a = Asm()
    infos = []
    for f, kw in kernels:
        r = f(a, **kw)
        if r is not None: infos.append(r)
    out = HEADER
    for k in infos:
        for _ in range(k.get('repeat', 1)):
            out += '; @launch kernel=%s grid=(%d,1,1) block=(%d,1,1) lds=%d\n' % (k['name'], k['grid'], k['block'], k['lds'])
    out += '.amdgcn_target "amdgcn-amd-amdhsa--gfx950"\n.text\n'
    body = a.text()
    if short:
        for nm, mn, n in MACROS:
            args = ['p%d' % i for i in range(n)]
            out += '.macro %s %s\n %s %s\n.endm\n' % (nm, ', '.join(args), mn, ', '.join('\\' + x for x in args))
            body = body.replace('\n %s ' % mn, '\n %s ' % nm)
    out += body
    out += '.section .rodata,"a"\n'
    for k in infos:
        out += '.p2align 6\n' + kernel_desc(k['name'], k['vgpr'], k['sgpr'], k['accum'])
    return out, infos, a
```

```python
from asmlib import *
from layout import *
MF = 'v_mfma_f32_16x16x32_bf16'

def make_srd(a, d, ptr, nbytes):
    a.e('s_mov_b32 s%d, s%d' % (d, ptr))
    a.e('s_and_b32 s%d, s%d, 0xffff' % (d + 1, ptr + 1))
    a.e('s_mov_b32 s%d, %d' % (d + 2, nbytes))
    a.e('s_mov_b32 s%d, 0x00020000' % (d + 3))

class VmQ:
    def __init__(self): self.n = 0; self.done = 0; self.where = {}
    def issue(self, key=None):
        self.n += 1
        if key is not None: self.where[key] = self.n
    def wait(self, a, key):
        idx = self.where[key]
        if idx <= self.done: return
        N = min(self.n - idx, 63)
        a.e('s_waitcnt vmcnt(%d)' % N); self.done = self.n - N
    def wait_all(self, a):
        if self.done < self.n:
            a.e('s_waitcnt vmcnt(0)'); self.done = self.n

class LgQ(VmQ):
    def wait(self, a, key):
        idx = self.where[key]
        if idx <= self.done: return
        N = min(self.n - idx, 15)
        a.e('s_waitcnt lgkmcnt(%d)' % N); self.done = self.n - N
    def wait_all(self, a):
        if self.done < self.n:
            a.e('s_waitcnt lgkmcnt(0)'); self.done = self.n

def quad_reduce(a, op, reg, tmp):
    a.e('v_mov_b32 v%d, v%d' % (tmp, reg))
    a.e('v_permlane16_swap_b32 v%d, v%d' % (tmp, reg))
    a.e('%s v%d, v%d, v%d' % (op, reg, reg, tmp))
    a.e('v_mov_b32 v%d, v%d' % (tmp, reg))
    a.e('v_permlane32_swap_b32 v%d, v%d' % (tmp, reg))
    a.e('%s v%d, v%d, v%d' % (op, reg, reg, tmp))

import struct
def f2u(x): return struct.unpack('<I', struct.pack('<f', x))[0]
def fhex(x): return '0x%08x' % f2u(x)

def code_prefetch(a, name, vtmp, vdst, n, sp=60, start=None, end=None, back=True, part_sgpr=None, vtid=0):
    start = start or name; end = end or (name + '_end')
    a.e('s_getpc_b64 s[%d:%d]' % (sp, sp + 1))
    lbl = '%s_pf%d' % (name, len(a.lines))
    a.label(lbl)
    a.e('s_add_u32 s%d, s%d, %s-%s' % (sp, sp, start, lbl))
    a.e('s_addc_u32 s%d, s%d, %s' % (sp + 1, sp + 1, '-1' if back else '0'))
    a.e('v_lshlrev_b32 v%d, 7, v%d' % (vtmp, vtid))
    if part_sgpr is not None: a.e('v_add_u32 v%d, s%d, v%d' % (vtmp, part_sgpr, vtmp))
    for k in range(n):
        if k: a.e('v_add_u32 v%d, 0x8000, v%d' % (vtmp, vtmp))
        a.e('v_min_u32 v%d, %s-%s, v%d' % (vdst, end, start, vtmp))
        a.e('global_load_dword v%d, v%d, s[%d:%d]' % (vdst, vdst, sp, sp + 1))
        vdst += 1
    return n

def l2_touch(a, srd, base, nbytes, vtmp, vdst, stmp, vq=None, gran=128, base_sgpr=None, nparts=32, part_expr=None):
    per = 256 * gran
    sh = {128: 7, 64: 6}[gran]
    if part_expr is None:
        a.e('s_lshr_b32 s%d, s2, 3' % stmp)
    else:
        part_expr(stmp)
    a.e('s_mul_i32 s%d, s%d, %d' % (stmp, stmp, per))
    if base_sgpr is not None: a.e('s_add_u32 s%d, s%d, s%d' % (stmp, stmp, base_sgpr))
    a.e('s_add_u32 s%d, s%d, %d' % (stmp, stmp, base))
    a.e('v_lshlrev_b32 v%d, %d, v0' % (vtmp, sh))
    n = (nbytes + per * nparts - 1) // (per * nparts)
    for k in range(n):
        if k: a.e('s_add_u32 s%d, s%d, %d' % (stmp, stmp, per * nparts))
        a.e('buffer_load_dword v%d, v%d, %s, s%d offen' % (vdst, vtmp, srd, stmp))
        if vq is not None: vq.issue()

class Stream:
    def __init__(self, a, vq, pace):
        self.a = a; self.vq = vq; self.pace = pace; self.q = []; self.last = -10**9; self.issued = set()
    def add(self, pre, ins, key, ready=None, cost=1.0):
        self.q.append((pre, ins, key, ready, cost))
    def _issue(self):
        pre, ins, key, ready, cost = self.q.pop(0)
        for p in pre: self.a.e(p)
        self.a.e(ins); self.vq.issue(key); self.issued.add(key)
        self.last = max(self.last + self.pace, self.a.clock - self.pace // 2) + (cost - 1.0) * self.pace
    def tick(self):
        if self.q and self.a.clock - self.last >= self.pace and (self.q[0][3] is None or self.q[0][3]()):
            self._issue(); return True
        return False
    def force(self, key):
        while key not in self.issued:
            assert self.q[0][3] is None or self.q[0][3](), ('stream blocked', self.q[0][2], key)
            self._issue()
    def burst(self, n):
        for _ in range(n):
            if self.q and (self.q[0][3] is None or self.q[0][3]()): self._issue()
    def wait(self, key):
        self.force(key); self.vq.wait(self.a, key)

class MStream:
    def __init__(self, a, vq, pace, nq):
        self.a = a; self.vq = vq; self.pace = pace; self.qs = [[] for _ in range(nq)]; self.last = -10**9; self.issued = set(); self.loc = {}; self.look = 24; self.pace2 = 80
    def add(self, qi, need, pre, ins, key, ready=None):
        self.qs[qi].append((need, pre, ins, key, ready)); self.loc[key] = qi
    def _issue(self, qi):
        need, pre, ins, key, ready = self.qs[qi].pop(0)
        for p in pre:
            self.a.e(p)
            if p.startswith('buffer_'): self.vq.issue()
        self.a.e(ins); self.vq.issue(key); self.issued.add(key)
        self.last = self.a.clock
    def _best(self):
        c = [(q[0][0], i) for i, q in enumerate(self.qs) if q and (q[0][4] is None or q[0][4]())]
        return min(c)[1] if c else None
    def tick(self):
        if self.a.clock - self.last < self.pace: return False
        if self.vq.n - self.vq.done >= self.look and self.a.clock - self.last < self.pace2: return False
        b = self._best()
        if b is None: return False
        self._issue(b); return True
    def burst(self, n):
        for _ in range(n):
            b = self._best()
            if b is None: return
            self._issue(b)
    def wait(self, key):
        late = 0
        while key not in self.issued:
            q = self.qs[self.loc[key]]
            assert q[0][4] is None or q[0][4](), ('stream blocked', q[0][3], key)
            self._issue(self.loc[key]); late += 1
        if late: print('  WARNING: late issue', key, late)
        self.slack = getattr(self, 'slack', []) + [(key, self.vq.n - self.vq.where[key])]
        self.vq.wait(self.a, key)
    def empty(self): return not any(self.qs)

class F:
    __slots__ = ('kind', 'text', 'post', 'fn', 'ins')
    def __init__(self, kind, text=None, post=None, fn=None):
        self.kind = kind; self.text = text; self.post = post; self.fn = fn
        self.ins = Ins(text) if text else None
    def emit(self, a):
        n0 = len(a.sizes)
        if self.fn: self.fn()
        if self.text: a.e(self.text)
        if self.post: self.post()
        return len(a.sizes) - n0
def FV(text): return F('v', text)
def FS(text): return F('s', text)
def FD(text, lq, key=None): return F('d', text, post=lambda: lq.issue(key))
def FW(fn): return F('w', fn=fn)
def FM(text, vq, key=None): return F('m', text, post=lambda: vq.issue(key))
def indep(x, y):
    a_, b_ = x.ins, y.ins
    return not (a_.w & (b_.r | b_.w)) and not (a_.r & b_.w)

class GStream(MStream):
    def __init__(self, *k):
        MStream.__init__(self, *k); self.cur = []; self.due = -10**9
    def _emit1(self):
        t, key = self.cur.pop(0)
        self.a.e(t)
        if t.startswith('buffer_') or t.startswith('global_'):
            self.vq.issue(key); self.last = self.a.clock
            self.due = min(self.a.clock, max(self.due + self.pace, self.a.clock - self.pace))
            if key is not None: self.issued.add(key)
    def flush(self):
        while self.cur: self._emit1()
    def _issue(self, qi):
        self.flush(); self._load(qi); self.flush()
    def _load(self, qi):
        need, pre, ins, key, ready = self.qs[qi].pop(0)
        self.cur = [(p, None) for p in pre] + [(ins, key)]
    def want(self):
        p = self.pace if self.vq.n - self.vq.done < self.look else max(self.pace, self.pace2)
        if not self.cur:
            if self.a.clock + 32 - self.due < p: return None
            b = self._best()
            if b is None: return None
            self._load(b)
        h = self.cur[0][0]
        if not h.startswith('s_') and self.a.clock + 4 - self.due < p: return None
        return h
    def wait(self, key):
        if key not in self.issued: self.flush()
        MStream.wait(self, key)
    def tick(self):
        if self.cur: self.flush(); return True
        return MStream.tick(self)
    def empty(self): return not self.cur and MStream.empty(self)

MAXD = [1]
class Sched:
    def __init__(self, a, st):
        self.a = a; self.st = st; self.q = []; self.vmcap = 2; self.maxd = MAXD[0]
    def add(self, items, front=False):
        if front: self.q[0:0] = items
        else: self.q.extend(items)
    def flush(self):
        while self.q: self.gap(10**6, vm=False)
    def gap(self, cap=2, vm=True):
        a, st, q = self.a, self.st, self.q
        used = 0; lastv = False; nd = 0
        if cap <= 0: return 0
        if q and q[0].kind == 'm':
            q.pop(0).emit(a); used += 2
        elif vm and st is not None:
            h = st.want()
            if h is not None and not h.startswith('s_') and cap >= self.vmcap:
                st._emit1(); used += 2
        while used < cap:
            h = st.want() if (vm and st is not None) else None
            if q and q[0].kind == 'd' and not lastv and (nd < self.maxd or cap > 2):
                used += q.pop(0).emit(a); nd += 1; continue
            if h is not None and h.startswith('s_'):
                st._emit1(); used += 1; lastv = False; continue
            if not q: break
            it = q[0]
            if it.kind in 'dm':
                if cap > 1000: used += q.pop(0).emit(a); lastv = False; continue
                j = 1
                while j < len(q) and q[j].kind in 'dm': j += 1
                if j < len(q) and j <= 12 and q[j].kind == 'v' and all(indep(q[i], q[j]) for i in range(j)):
                    used += q.pop(j).emit(a); lastv = True; continue
                break
            if it.kind == 'v' and used == 0 and cap > 1 and len(q) > 1 and q[1].kind == 'd' and indep(it, q[1]):
                used += q.pop(1).emit(a); nd += 1; continue
            if it.kind == 'x':
                if cap - used < 2:
                    break
                q.pop(0).emit(a); used += 2; lastv = True; continue
            n = q.pop(0).emit(a); used += n
            if n: lastv = (it.kind == 'v')
        return used

def poll(a, label, vaddr, vtmp, need, scnt, offset=0):
    a.e('s_mov_b32 s%d, 0' % scnt)
    a.label(label)
    a.e('global_load_dword v%d, v%d, s[4:5] offset:%d sc1' % (vtmp, vaddr, offset))
    a.e('s_waitcnt vmcnt(0)')
    a.e('v_cmp_gt_u32 vcc, %d, v%d' % (need, vtmp))
    a.e('s_cbranch_vccz %s_ok' % label)
    a.e('s_sleep 1')
    a.e('s_add_u32 s%d, s%d, 1' % (scnt, scnt))
    a.e('s_cmp_lt_u32 s%d, 0x80000' % scnt)
    a.e('s_cbranch_scc1 %s' % label)
    a.label(label + '_ok')
```

```python
import math
from common import *
from attn16 import stamp_begin, stamp_mid, stamp_end, attn_early_setup, attn_early_loads

def gen_in(a, name='in_kernel', cfg=None):
    cfg = cfg or {}
    STAMP = cfg.get('STAMP', False)
    F2 = cfg.get('FUSE2', 1)
    ST2 = STAMP and (not F2 or cfg.get('S1') == 5)
    RW = 52; NW = 192; TB = 208
    vLane, vLane16, vK, vRow, vI, vQ4, vX, vSw, vSr = 192, 193, 194, 195, 196, 197, 198, 199, 200
    vN = 202
    C1, C2, G, PK, SS = 204, 206, 208, 216, 224
    SQ2 = SS + 16
    sWave, sT, sCG, sW, sA, sB, sC = 3, 6, 7, 12, 13, 14, 15
    STL = 131072 if F2 else 65536
    ws = 's[8:11]'
    def acc(t, ts): return (t * 4 + ts) * 4

    kernel_begin(a, name)
    a.e('s_and_b32 s20, s2, 7')
    a.e('s_lshr_b32 s21, s2, 4')
    a.e('s_lshl_b32 s%d, s20, 4' % sT)
    a.e('s_add_u32 s%d, s%d, s21' % (sT, sT))
    a.e('s_cmp_ge_u32 s2, 256')
    a.e('s_cbranch_scc1 %s_end' % name)
    if not F2:
        a.e('s_cmp_ge_u32 s%d, 125' % sT)
        a.e('s_cbranch_scc1 %s_end' % name)
    a.e('s_load_dwordx2 s[4:5], s[0:1], 80')
    a.e('s_load_dwordx2 s[16:17], s[0:1], 0')
    if STAMP: stamp_begin(a)
    if F2:
        a.e('s_lshl_b32 s86, s%d, 7' % sT)
        a.e('s_add_u32 s86, s86, %d' % TC_OFF)
        a.e('s_cmp_lt_u32 s%d, 125' % sT)
        a.e('s_cbranch_scc1 %s_work' % name)
        a.e('s_mov_b32 s86, 0x40000000')
        a.e('v_lshrrev_b32 v1, 6, v0')
        a.e('v_and_b32 v%d, 63, v0' % vLane)
        a.e('v_readfirstlane_b32 s%d, v1' % sWave)
        a.e('v_lshlrev_b32 v%d, 4, v%d' % (vLane16, vLane))
        a.e('s_waitcnt lgkmcnt(0)')
        make_srd(a, 8, 4, WS_BYTES)
        attn_early_setup(a, sWave, vLane, vLane16, 128)
        poll(a, '%s_pi' % name, 128, 129, 8, 34)
        for g_ in attn_early_loads(vLane16, 128):
            for t_ in g_: a.e(t_)
        a.e('s_waitcnt vmcnt(0)')
        a.e('s_branch attn_body')
        a.label('%s_work' % name)
    a.e('s_bfe_u32 s%d, s2, 0x10003' % sCG)
    a.e('s_and_b32 s53, s21, %d' % cfg.get('IN_ROT', 0))
    a.e('s_lshl_b32 s54, s53, 6')
    a.e('s_lshl_b32 s55, s53, 12')
    a.e('s_lshl_b32 s56, s53, 11')
    a.e('v_lshrrev_b32 v1, 6, v0')
    a.e('v_and_b32 v%d, 63, v0' % vLane)
    a.e('v_readfirstlane_b32 s%d, v1' % sWave)
    a.e('v_lshlrev_b32 v%d, 4, v%d' % (vLane16, vLane))
    a.e('v_lshrrev_b32 v%d, 4, v%d' % (vQ4, vLane))
    a.e('v_and_b32 v%d, 15, v%d' % (vI, vLane))
    a.e('v_lshlrev_b32 v%d, 10, v%d' % (vX, vI))
    a.e('v_lshl_add_u32 v%d, v%d, 4, v%d' % (vX, vQ4, vX))
    a.e('s_lshl_b32 s%d, s%d, 16' % (sA, sT))
    a.e('s_lshl_b32 s%d, s%d, 14' % (sB, sWave))
    a.e('s_add_u32 s%d, s%d, s%d' % (sB, sA, sB))
    a.e('s_lshl_b32 s%d, s%d, 2' % (sW, sCG))
    a.e('s_add_u32 s%d, s%d, s%d' % (sW, sW, sWave))
    a.e('s_mov_b32 s46, s%d' % sW)
    a.e('s_mul_i32 s%d, s%d, %d' % (sW, sW, NW * 1024))
    a.e('s_add_u32 s%d, s%d, %d' % (sW, sW, W1_OFF))
    a.e('s_waitcnt lgkmcnt(0)')
    make_srd(a, 20, 16, 8192000)
    vq = VmQ()
    RAWX = 128
    for j in range(16):
        a.e('buffer_load_dwordx4 %s, v%d, s[20:23], s%d offen offset:%d' % (vr(RAWX + 4 * j, 4), vX, sB, 64 * j))
        vq.issue(('x', j))
    if cfg.get('CPF', 1):
        code_prefetch(a, name, 250, 251, 2); vq.issue(); vq.issue()
    make_srd(a, 8, 4, WS_BYTES)
    st = GStream(a, vq, cfg.get('IN_PACE', 64), 1)
    st.look = 100; st.pace2 = 56
    state = dict(cons=-1)
    for n in range(NW):
        pre = ['s_add_u32 s58, s%d, %d' % (sW, (((n // 64) + 2) % 3) * 65536 + ((n // 4) % 16) * 4096)] if n % 4 == 0 else []
        st.add(0, n, pre, 'buffer_load_dwordx4 %s, v%d, %s, s58 offen offset:%d' % (ar(4 * (n % RW), 4), vLane16, ws, (n % 4) * 1024), ('w', n),
               (lambda nn=n: state['cons'] >= nn - RW))
    st.burst(cfg.get('IN_W0', 8))
    a.e('s_mov_b32 s90, 0xffff0000')
    a.e('v_and_b32 v%d, 1, v%d' % (vK, vQ4))
    a.e('v_mul_u32_u24 v%d, 12, v%d' % (vK, vK))
    a.e('v_xor_b32 v%d, v%d, v%d' % (vK, vK, vI))
    a.e('v_lshlrev_b32 v%d, 4, v%d' % (vK, vK))
    a.e('v_lshl_add_u32 v%d, v%d, 9, v%d' % (vK, vQ4, vK))
    a.e('v_lshrrev_b32 v%d, 2, v%d' % (vN, vI))
    a.e('v_lshlrev_b32 v%d, 3, v%d' % (vN, vN))
    a.e('v_and_b32 v%d, 3, v%d' % (vN + 1, vI))
    a.e('v_add_u32 v%d, v%d, v%d' % (vN, vN, vN + 1))
    a.e('v_lshlrev_b32 v%d, 5, v%d' % (vRow, vN))
    a.e('v_and_b32 v%d, 1, v%d' % (vN + 1, vQ4))
    a.e('v_lshl_add_u32 v%d, v%d, 4, v%d' % (vRow, vN + 1, vRow))
    a.e('v_mul_u32_u24 v%d, 12, v%d' % (vN + 1, vN + 1))
    a.e('v_xor_b32 v%d, v%d, v%d' % (vN, vN, vN + 1))
    a.e('v_lshlrev_b32 v%d, 4, v%d' % (vN, vN))
    a.e('v_lshl_add_u32 v%d, v%d, 9, v%d' % (vN, vQ4, vN))
    a.e('v_lshrrev_b32 v%d, 1, v%d' % (vN + 1, vQ4))
    a.e('v_lshl_add_u32 v%d, v%d, 14, v%d' % (vRow, vN + 1, vRow))
    a.e('v_xor_b32 v%d, 64, v%d' % (vN + 1, vN))
    a.e('s_lshr_b32 s%d, s%d, 1' % (sB, sWave))
    a.e('s_lshl_b32 s%d, s%d, 15' % (sB, sB))
    a.e('s_and_b32 s%d, s%d, 1' % (sC, sWave))
    a.e('s_lshl_b32 s%d, s%d, 8' % (sC, sC))
    a.e('s_add_u32 s%d, s%d, s%d' % (sB, sB, sC))
    a.e('v_add_u32 v%d, s%d, v%d' % (vX, sB, vK))
    a.e('s_mov_b32 s48, s%d' % sA)
    if XF_OFF: a.e('s_add_u32 s48, s48, %d' % XF_OFF)
    vOob, vOne = 201, PK
    a.e('v_cmp_ne_u32 vcc, 0, v%d' % vLane)
    a.e('v_mov_b32 v%d, 0x40000000' % vOne)
    a.e('v_cndmask_b32 v%d, 0, v%d, vcc' % (vOob, vOne))
    a.e('v_mov_b32 v%d, 1' % vOne)
    c1 = -2.0 * math.log2(math.e) * math.sqrt(2.0 / math.pi); c2 = c1 * 0.044715
    for r, v in ((C1, c1), (C2, c2)):
        a.e('v_mov_b32 v%d, %s' % (r, fhex(v))); a.e('v_mov_b32 v%d, %s' % (r + 1, fhex(v)))
    T = G
    p0, p1, nm = vr(T, 2), vr(T + 2, 2), vr(T + 4, 2)
    a.dense = True
    for j in range(16):
        vq.wait(a, ('x', j))
        for d in range(4):
            a.e('v_lshlrev_b32 v%d, 16, v%d' % (8 * j + 2 * d, RAWX + 4 * j + d))
            a.e('v_and_b32 v%d, s90, v%d' % (8 * j + 2 * d + 1, RAWX + 4 * j + d))
        if j == 0:
            a.e('v_pk_add_f32 %s, %s, %s' % (p0, vr(0, 2), vr(2, 2))); a.e('v_pk_add_f32 %s, %s, %s' % (p1, vr(4, 2), vr(6, 2)))
        else:
            for d in range(4): a.e('v_pk_add_f32 %s, %s, %s' % ((p0, p1)[d % 2], (p0, p1)[d % 2], vr(8 * j + 2 * d, 2)))
    if ST2: stamp_mid(a, 4)
    st.burst(cfg.get('IN_W1', 8))
    a.e('v_pk_add_f32 %s, %s, %s' % (p0, p0, p1))
    a.e('v_add_f32 v%d, v%d, v%d' % (T, T, T + 1))
    quad_reduce(a, 'v_add_f32', T, T + 1)
    a.e('v_mul_f32 v%d, %s, v%d' % (T + 4, fhex(-1.0 / 512), T))
    for p in range(64):
        r = vr(2 * p, 2)
        a.e('v_pk_add_f32 %s, %s, %s op_sel_hi:[1,0]' % (r, r, nm))
        q = (p0, p1)[p % 2]
        if p < 2: a.e('v_pk_mul_f32 %s, %s, %s' % (q, r, r))
        else: a.e('v_pk_fma_f32 %s, %s, %s, %s' % (q, r, r, q))
        if p % 16 == 15: st.burst(cfg.get('IN_W2', 2))
    a.e('v_pk_add_f32 %s, %s, %s' % (p0, p0, p1))
    a.e('v_add_f32 v%d, v%d, v%d' % (T, T, T + 1))
    quad_reduce(a, 'v_add_f32', T, T + 1)
    a.e('v_mul_f32 v%d, %s, v%d' % (T, fhex(1.0 / 512), T))
    a.e('v_add_f32 v%d, %s, v%d' % (T, fhex(1e-5), T))
    a.e('v_rsq_f32 v%d, v%d' % (T + 4, T))
    for j4 in range(4):
        for j in range(4 * j4, 4 * j4 + 4):
            for d in range(4):
                r = vr(8 * j + 2 * d, 2)
                a.e('v_pk_mul_f32 %s, %s, %s op_sel_hi:[1,0]' % (r, r, nm))
            for d in range(4):
                r = 8 * j + 2 * d
                a.e('v_cvt_pk_bf16_f32 v%d, v%d, v%d' % (RAWX + 4 * j + d, r, r + 1))
        for j in range(4 * j4, 4 * j4 + 4):
            a.e('ds_write_b128 v%d, %s offset:%d' % (vX, vr(RAWX + 4 * j, 4), 2048 * j))
        st.burst(cfg.get('IN_W2', 2))
    a.dense = False
    a.e('s_lshl_b32 s%d, s%d, 12' % (sB, sWave))
    a.e('s_add_u32 s47, s%d, s%d' % (sA, sB))
    a.e('s_waitcnt lgkmcnt(0)')
    a.e('s_barrier')
    if ST2: stamp_mid(a, 0)
    a.e('s_cmp_eq_u32 s%d, 0' % sCG)
    a.e('s_cbranch_scc1 %s_g' % name)
    import copy
    snap = (copy.deepcopy(vq.__dict__), [list(q) for q in st.qs], set(st.issued), st.last, a.clock, a.mfree)

    def npairs(t, blk): return [acc(t, 2 * blk) + 2 * j for j in range(4)]
    def body(isg):
        lq = LgQ(); sc = Sched(a, st); clk = []; deferred = []
        a.e('s_add_u32 s%d, s47, %d' % (sB, G_OFF if isg else U_OFF))
        a.e('s_add_u32 s%d, s%d, 0x8000' % (sC, sB))
        def treads(kk):
            ks = kk % 16; out = []
            for ts in range(4):
                dst = ar(TB + ((kk % 3) * 4 + ts) * 4, 4)
                if kk >= 16: out.append(FD('ds_read_b128 %s, v%d offset:%d' % (dst, vN + (ts & 1), (ts >> 1) * 32768 + ks * 2048), lq, (kk, ts)))
                else: out.append(FD('ds_read_b128 %s, v%d offset:%d' % (dst, vK, (ts >> 1) * 32768 + ks * 2048 + (ts & 1) * 256), lq, (kk, ts)))
            return out
        def nstore(o, t, blk):
            return FM('buffer_store_dwordx4 %s, v%d, %s, s%d offen offset:%d' % (vr(o, 4), vRow, ws, sB if blk == 0 else sC, (t >> 1) * 1024 + (t & 1) * 128), vq)
        def burst(c):
            if isg and c >= 1:
                t, blk = (c - 1) >> 1, (c - 1) & 1
                for j, r in enumerate(npairs(t, blk)):
                    sj, qj = vr(SS + 8 * blk + 2 * j, 2), vr(SQ2 + 8 * blk + 2 * j, 2)
                    if t == 0: a.e('v_pk_mul_f32 %s, %s, %s' % (qj, vr(r, 2), vr(r, 2)))
                    else:
                        a.e('v_pk_fma_f32 %s, %s, %s, %s' % (qj, vr(r, 2), vr(r, 2), qj))
                        a.e('v_pk_add_f32 %s, %s, %s' % (sj, vr(r, 2), vr(npairs(0, blk)[j], 2) if t == 1 else sj))
            if c < 16:
                g = [vr(G + 2 * j, 2) for j in range(4)]; x = [vr(r, 2) for r in npairs(c >> 1, c & 1)]
                for j in range(4): a.e('v_pk_mul_f32 %s, %s, %s' % (g[j], x[j], x[j]))
                for j in range(4): a.e('v_pk_fma_f32 %s, %s, %s, %s' % (g[j], g[j], vr(C2, 2), vr(C1, 2)))
                for j in range(4): a.e('v_pk_mul_f32 %s, %s, %s' % (g[j], g[j], x[j]))
        def rest(c):
            t, blk = c >> 1, c & 1
            x0 = acc(t, 2 * blk); out = []
            for j in range(8): out.append(F('x', 'v_exp_f32 v%d, v%d' % (G + j, G + j)))
            for j in range(8): out.append(FV('v_add_f32 v%d, 1.0, v%d' % (G + j, G + j)))
            for j in range(8): out.append(F('x', 'v_rcp_f32 v%d, v%d' % (G + j, G + j)))
            for j in range(8): out.append(FV('v_mul_f32 v%d, v%d, v%d' % (x0 + j, x0 + j, G + j)))
            if not isg:
                for j in range(4): out.append(FV('v_cvt_pk_bf16_f32 v%d, v%d, v%d' % (x0 + j, x0 + 2 * j, x0 + 2 * j + 1)))
                deferred.append(nstore(x0, t, blk))
                if st.empty() or not cfg.get('IN_DEFER', 0):
                    for _ in range(cfg.get('IN_DN', 3)):
                        if deferred: out.append(deferred.pop(0))
            return out
        def xf_stores():
            out = []
            for j in (range(8) if isg else range(8, 16)):
                if j % 2 == 0: out.append(FS('s_add_u32 s57, s48, %d' % (j * 2048)))
                out.append(FM('buffer_store_dwordx4 %s, v%d, %s, s57 offen offset:%d' % (vr(RAWX + 4 * j, 4), vX, ws, (j % 2) * 2048), vq, 'xf'))
            return out
        QP = RAWX + (32 if isg else 0)
        def q_pack():
            out = []
            for ts in range(4):
                for dd in range(2):
                    o = QP + (ts * 2 + dd) * 4
                    for e in range(2):
                        for j in range(2):
                            r = acc(4 + 2 * dd + e, ts) + 2 * j
                            out.append(FV('v_cvt_pk_bf16_f32 v%d, v%d, v%d' % (o + 2 * e + j, r, r + 1)))
            return out
        def q_stores():
            return [FM('buffer_store_dwordx4 %s, v%d, %s, s%d offen offset:%d' % (vr(QP + (ts * 2 + dd) * 4, 4), vLane16, ws, 50 if ts < 2 else 51, dd * 2048 + (ts & 1) * 1024), vq, 'xf')
                    for ts in range(4) for dd in range(2)]
        plan = {}
        def spread_st(items, k0, per):
            x = 0.0
            for it in items:
                plan.setdefault(k0 + int(x), []).append(it)
                if it.kind == 'm': x += 1.0 / per
        spread_st(xf_stores(), cfg.get('IN_XK', 0), cfg.get('IN_XP', 8))
        spread_st(q_stores(), cfg.get('IN_QK', 18), cfg.get('IN_QP', 8))
        lastst = max(plan)
        a.e('s_lshl_b32 s50, s46, 12')
        a.e('s_add_u32 s50, s50, s%d' % sA)
        a.e('s_add_u32 s50, s50, %d' % QF_OFF)
        a.e('s_add_u32 s51, s50, 0x8000')
        for f in treads(0) + treads(1): f.emit(a)
        ET = 217
        for kk in range(48):
            part, ks = kk // 16, kk % 16
            if ks == 0: clk.append(a.clock)
            if ST2 and kk in (16, 32): stamp_mid(a, kk // 16); lq.done = lq.n
            if kk >= 32 and kk % 2 == 0:
                c = (kk - 32) // 2
                sc.flush(); st.flush()
                a.dense = True; burst(c); a.dense = False
                sc.add(rest(c))
            if kk == 17: sc.add(q_pack())
            if kk in plan: sc.add(plan[kk])
            if F2 and kk == 30:
                sc.flush(); st.flush()
                attn_early_setup(a, sWave, vLane, vLane16, ET)
                if cfg.get('CPF', 1):
                    a.e('s_lshl_b32 s59, s%d, 6' % sWave)
                    a.e('v_add_u32 v%d, s59, v%d' % (ET + 4, vLane))
                    code_prefetch(a, name, ET + 5, ET + 6, 1, start='attn_kernel', end='attn_kernel_end', back=False, vtid=ET + 4); vq.issue()
            lq.wait(a, (kk, 3))
            st.wait(('w', kk * 4 + 3))
            if kk < 46: sc.add(treads(kk + 2), front=True)
            if F2 and not state.get('xsig') and kk > lastst + 3 and not any(f.kind == 'm' for f in sc.q) and (vq.where['xf'] <= vq.done or kk == cfg.get('IN_KSIG', 45)):
                vq.wait(a, 'xf')
                sc.add([FM('buffer_atomic_add v%d, v%d, %s, s86 offen sc1' % (vOne, vOob, ws), vq)]); state['xsig'] = kk
            if F2 and kk == cfg.get('IN_KPOLL', 45):
                sc.add([FM('global_load_dword v%d, v%d, s[4:5] sc1' % (ET + 1, ET), vq, 'poll')], front=True)
            for t4 in range(4):
                n = kk * 4 + t4; t = (4, 0, 4)[part] + t4
                for x, ts in enumerate(range(4) if t4 % 2 == 0 else range(3, -1, -1)):
                    ops = [ar(4 * (n % RW), 4), ar(TB + ((kk % 3) * 4 + ts) * 4, 4)]
                    if part >= 1: ops.reverse()
                    a.e('%s %s, %s, %s, %s' % (MF, vr(acc(t, ts), 4), ops[0], ops[1], '0' if ks == 0 else vr(acc(t, ts), 4)))
                    if x == 3: state['cons'] = n
                    cap = 0 if (x == 3 and t4 == 3) else 2
                    left = (1 - kk % 2) * 16 + (3 - t4) * 4 + 3 - x
                    units = sum(2 if f.kind in 'xm' else 1 for f in sc.q)
                    if kk >= 32 and cap and units > cfg.get('IN_PRESS', 1.5) * left: cap += 1
                    sc.gap(cap)
        sc.add(deferred); sc.flush()
        assert st.empty()
        if cfg.get('V'): print('in', isg, [x[1] for x in st.slack[-48:]], clk + [a.clock], state)
        if ST2: stamp_mid(a, 3)
        early = []
        if F2:
            assert state.get('xsig')
            lb = '%s_pe%d' % (name, isg)
            vq.wait(a, 'poll')
            a.e('v_cmp_gt_u32 vcc, 8, v%d' % (ET + 1))
            a.e('s_cbranch_vccz %s_ok' % lb)
            poll(a, lb, ET, ET + 1, 8, 34)
            a.e('s_barrier')
            early = attn_early_loads(vLane16, ET)
        def eload(n):
            for _ in range(n):
                if early:
                    for t_ in early.pop(0): a.e(t_)
        a.dense = True
        ONE = ET + 5
        a.e('v_mov_b32 v%d, 1.0' % ONE); a.e('v_mov_b32 v%d, 1.0' % (ONE + 1))
        eload(cfg.get('IN_E0', 24))
        for c in range(8, 16):
            burst(c)
            g = [vr(G + 2 * j, 2) for j in range(4)]; x = [vr(r, 2) for r in npairs(c >> 1, c & 1)]
            for j in range(8): a.e('v_exp_f32 v%d, v%d' % (G + j, G + j))
            for j in range(4): a.e('v_pk_add_f32 %s, %s, %s' % (g[j], g[j], vr(ONE, 2)))
            for j in range(8): a.e('v_rcp_f32 v%d, v%d' % (G + j, G + j))
            for j in range(4): a.e('v_pk_mul_f32 %s, %s, %s' % (x[j], x[j], g[j]))
            if not isg:
                x0 = acc(c >> 1, 2 * (c & 1))
                for j in range(4): a.e('v_cvt_pk_bf16_f32 v%d, v%d, v%d' % (x0 + j, x0 + 2 * j, x0 + 2 * j + 1))
            eload(cfg.get('IN_E1', 4 if isg else 6))
        if isg: burst(16)
        else:
            eload(100)
            for c in range(8, 16): nstore(acc(c >> 1, 2 * (c & 1)), c >> 1, c & 1).emit(a)
        if isg:
            for sh in (8, 4, 2, 1):
                for r in range(SS, SS + 32):
                    a.e('v_add_f32_dpp v%d, v%d, v%d row_ror:%d row_mask:0xf bank_mask:0xf' % (r, r, r, sh))
                eload(3)
            a.e('s_lshl_b32 s52, s%d, 9' % sWave)
            a.e('s_add_u32 s52, s52, %d' % STL)
            a.e('v_lshlrev_b32 v%d, 5, v%d' % (vSw, vQ4))
            a.e('v_add_u32 v%d, s52, v%d' % (vSw, vSw))
            a.e('v_lshlrev_b32 v%d, 2, v%d' % (vSr, vLane))
            a.e('v_add_u32 v%d, %d, v%d' % (vSr, STL, vSr))
            a.e('s_mov_b32 exec_lo, 0x00010001'); a.e('s_mov_b32 exec_hi, 0x00010001')
            for x in range(8):
                a.e('ds_write_b128 v%d, %s offset:%d' % (vSw, vr(SS + 4 * x, 4), (x >> 2) * 256 + ((x >> 1) & 1) * 128 + (x & 1) * 16))
            a.e('s_mov_b64 exec, -1')
            a.e('s_waitcnt lgkmcnt(0)')
            a.e('s_barrier')
            R4 = G
            for w in range(4):
                a.e('ds_read2st64_b32 %s, v%d offset0:%d offset1:%d' % (vr(R4 + 2 * w, 2), vSr, 2 * w, 2 * w + 1))
            a.e('v_lshlrev_b32 v%d, 2, v%d' % (vSr, vLane))
            a.e('v_add_u32 v%d, s52, v%d' % (vSr, vSr))
            a.e('s_waitcnt lgkmcnt(0)')
            a.e('v_pk_add_f32 %s, %s, %s' % (vr(R4, 2), vr(R4, 2), vr(R4 + 2, 2)))
            a.e('v_pk_add_f32 %s, %s, %s' % (vr(R4 + 4, 2), vr(R4 + 4, 2), vr(R4 + 6, 2)))
            a.e('v_pk_add_f32 %s, %s, %s' % (vr(R4, 2), vr(R4, 2), vr(R4 + 4, 2)))
            a.e('v_mul_f32 v%d, %s, v%d' % (R4, fhex(1.0 / 512), R4))
            a.e('v_mul_f32 v%d, %s, v%d' % (R4 + 1, fhex(1.0 / 512), R4 + 1))
            a.e('v_fma_f32 v%d, -v%d, v%d, v%d' % (R4 + 1, R4, R4, R4 + 1))
            a.e('v_max_f32 v%d, 0, v%d' % (R4 + 1, R4 + 1))
            a.e('v_add_f32 v%d, %s, v%d' % (R4 + 1, fhex(1e-5), R4 + 1))
            a.e('v_rsq_f32 v%d, v%d' % (R4 + 1, R4 + 1))
            a.e('v_mul_f32 v%d, -v%d, v%d' % (R4, R4, R4 + 1))
            a.e('ds_write2st64_b32 v%d, v%d, v%d offset0:8 offset1:9' % (vSr, R4 + 1, R4))
            a.e('s_waitcnt lgkmcnt(0)')
            for x in range(8):
                a.e('ds_read_b128 %s, v%d offset:%d' % (vr(SS + 4 * x, 4), vSw, 2048 + (x >> 2) * 256 + ((x >> 1) & 1) * 128 + (x & 1) * 16))
            a.e('s_waitcnt lgkmcnt(0)')
            eload(100)
            for t2 in range(4):
                for t in (2 * t2, 2 * t2 + 1):
                    for blk in range(2):
                        for j, r in enumerate(npairs(t, blk)):
                            a.e('v_pk_fma_f32 %s, %s, %s, %s' % (vr(r, 2), vr(r, 2), vr(SS + 8 * blk + 2 * j, 2), vr(SQ2 + 8 * blk + 2 * j, 2)))
                        x0 = acc(t, 2 * blk)
                        for j in range(4): a.e('v_cvt_pk_bf16_f32 v%d, v%d, v%d' % (x0 + j, x0 + 2 * j, x0 + 2 * j + 1))
                for t in (2 * t2, 2 * t2 + 1):
                    for blk in range(2): nstore(acc(t, 2 * blk), t, blk).emit(a)
        a.dense = False
        if F2:
            a.e('s_waitcnt vmcnt(%d)' % (16 if isg else 8))
            a.e('s_lshl_b32 s50, s%d, 6' % sWave)
            a.e('v_add_u32 v0, s50, v%d' % vLane)
            a.e('s_branch attn_body')
        elif STAMP: stamp_end(a, sWave)
    body(False)
    a.e('s_endpgm')
    a.label('%s_g' % name, reset=True)
    vq.__dict__.update(snap[0]); st.qs = snap[1]; st.issued = snap[2]; st.last = snap[3] + (a.clock - snap[4]); st.cur = []; st.due = st.last
    state['cons'] = -1; state['xsig'] = None
    body(True)
    a.label('%s_end' % name)
    a.e('s_endpgm')
    return dict(name=name, vgpr=512, sgpr=96, accum=256, grid=256, block=256, lds=163840 if F2 else 65536 + 4096)
```

```python
from common import *
from convlib import tok_read_regs
from conv4 import *
from attn16 import stamp_begin, stamp_mid, stamp_end

def gen_tail(a, name='tail_kernel', cfg=None):
    cfg = cfg or {}
    STAMP = cfg.get('STAMP', False)
    TB = 208
    vLane, vLane16, vI, vQ4, TMP, NR = 244, 245, 246, 247, 248, 251
    STG = 98304
    sWave, sK, sW, sA, sB, sC, sU, sStg, sTy, sBt, sTok, sP, sF = 3, 6, 7, 32, 33, 34, 35, 36, 37, 38, 39, 40, 41
    ws = 's[8:11]'
    def acc1(t, f): return (t * 6 + f) * 4
    def srd_off(d, ptr, soff, nbytes):
        a.e('s_add_u32 s%d, s%d, s%d' % (d, ptr, soff))
        a.e('s_addc_u32 s%d, s%d, 0' % (d + 1, ptr + 1))
        a.e('s_and_b32 s%d, s%d, 0xffff' % (d + 1, d + 1))
        a.e('s_mov_b32 s%d, %d' % (d + 2, nbytes))
        a.e('s_mov_b32 s%d, 0x00020000' % (d + 3))

    FUSE = cfg.get('FUSE', 1)
    if FUSE:
        a.raw('.p2align 8'); a.label(name, reset=True); a.label('tail_body')
    else:
        kernel_begin(a, name)
    a.e('s_and_b32 s%d, s2, 3' % sK)
    a.e('s_lshl_b32 s%d, s%d, 4' % (sK, sK))
    a.e('s_lshr_b32 s%d, s2, 4' % sA)
    a.e('s_add_u32 s%d, s%d, s%d' % (sK, sK, sA))
    if not FUSE:
        a.e('s_cmp_ge_u32 s2, 256')
        a.e('s_cbranch_scc1 %s_end' % name)
    a.e('s_cmp_ge_u32 s%d, 63' % sK)
    a.e('s_cbranch_scc1 %s_end' % name)
    if not FUSE: a.e('s_load_dwordx2 s[4:5], s[0:1], 80')
    a.e('s_load_dwordx2 s[52:53], s[0:1], 0')
    a.e('s_load_dwordx2 s[54:55], s[0:1], 64')
    if STAMP and not FUSE: stamp_begin(a)
    if cfg.get('CPF', 1): code_prefetch(a, name, 60, 61, 2)
    a.e('s_bfe_u32 s%d, s2, 0x10003' % sTy)
    if FUSE and cfg.get('TSWAP', 1): a.e('s_xor_b32 s%d, s%d, 1' % (sTy, sTy))
    a.e('s_bfe_u32 s%d, s2, 0x10002' % sBt)
    a.e('s_mov_b32 s90, 0xffff0000')
    a.e('v_lshrrev_b32 v1, 6, v0')
    a.e('v_and_b32 v%d, 63, v0' % vLane)
    a.e('v_readfirstlane_b32 s%d, v1' % sWave)
    a.e('v_lshlrev_b32 v%d, 4, v%d' % (vLane16, vLane))
    a.e('v_lshrrev_b32 v%d, 4, v%d' % (vQ4, vLane))
    a.e('v_and_b32 v%d, 15, v%d' % (vI, vLane))
    a.e('s_lshl_b32 s%d, s%d, 2' % (sW, sTy))
    a.e('s_add_u32 s%d, s%d, s%d' % (sW, sW, sWave))
    a.e('s_mul_i32 s46, s%d, %d' % (sW, 4 * 9216))
    a.e('s_add_u32 s46, s46, %d' % TPM_OFF)
    a.e('s_lshl_b32 s%d, s%d, 17' % (sW, sW))
    a.e('s_add_u32 s%d, s%d, %d' % (sW, sW, W2_OFF))
    a.e('s_lshl_b32 s%d, s%d, 14' % (sStg, sWave))
    a.e('s_add_u32 s%d, s%d, %d' % (sStg, sStg, STG))
    a.e('s_cmp_eq_u32 s%d, 0' % sK)
    a.e('s_cselect_b32 s%d, 0x40000000, 0' % sF)
    a.e('s_mul_i32 s47, s%d, 4096000' % sBt)
    if not FUSE:
        a.e('s_waitcnt lgkmcnt(0)')
        make_srd(a, 8, 4, WS_BYTES)

    def add_w(st, state, ringreg, RW, n0, n1, tw, qi=2, ready=None):
        for n in range(n0, n1):
            pre = []
            if n == 128: pre = ['s_add_u32 s%d, s%d, %d' % (sW, sW, W3_OFF - W2_OFF - 31 * 4096)]
            elif n and n % 4 == 0: pre = ['s_add_u32 s%d, s%d, 0x1000' % (sW, sW)]
            st.add(qi, tw(n), pre, 'buffer_load_dwordx4 %s, v%d, %s, s%d offen offset:%d' % (ringreg(n), vLane16, ws, sW, (n % 4) * 1024), ('w', n),
                   (lambda n=n: state['wcons'] >= n - RW) if ready is None else (lambda n=n: ready(n)))
    RW2 = 52; NPRE = 14
    SLOT2 = [80 + 4 * i for i in range(14)] + [4 * i for i in range(20)] + [136 + 4 * i for i in range(18)]
    def wreg(n): return ar(SLOT2[(n - 128) % RW2], 4)

    def stage1(tr, sc, lq, state, RW, produce):
        st = sc.st
        def tok_reads(ks):
            out = []
            for f in range(6):
                b = TB + ((ks % 2) * 6 + f) * 4
                hi = ks >= 8
                if tr:
                    off = (ks % 8) * 6144 + (f >> 1) * 64 + (f & 1) * 8
                    out.append(FD('ds_read_b64_tr_b16 %s, v%d offset:%d' % (ar(b, 2), NR + hi, off), lq))
                    out.append(FD('ds_read_b64_tr_b16 %s, v%d offset:%d' % (ar(b + 2, 2), NR + hi, off + 768), lq, ('t', ks, f)))
                else:
                    out.append(FD('ds_read_b128 %s, v%d offset:%d' % (ar(b, 4), NR + 2 * hi + ((ks ^ f) & 1), ((ks % 8) * 6 + (f & 6)) * 1024), lq, ('t', ks, f)))
            return out
        def spread(ds):
            q = sc.q; out = []
            while ds:
                out.append(ds.pop(0))
                if q: out.append(q.pop(0))
            sc.q[0:0] = out
        def barrier():
            st.flush(); lq.wait_all(a); a.e('s_barrier')
        BART = cfg.get('T1_BART', 3)
        def gemm(r, plan, midbar):
            for k4 in range(4):
                ks = 4 * r + k4
                blk, fl = plan[k4] if k4 < len(plan) else (None, [])
                if blk is not None:
                    sc.flush(); blk()
                lq.wait(a, ('t', ks, 5))
                sc.add(fl)
                if k4 < 3: spread(tok_reads(ks + 1))
                nxt_blk = min([k for k in range(k4 + 1, 4) if k < len(plan) and plan[k][0] is not None] + [9])
                for t in range(8):
                    n = ks * 8 + t
                    if k4 == 3 and t == BART and midbar:
                        sc.flush(); barrier()
                        sc.add(tok_reads(ks + 1))
                    if t % 2 == 0: st.wait(('w', n + 1))
                    for x, f in enumerate(range(6) if t % 2 == 0 else range(5, -1, -1)):
                        a.e('%s %s, %s, %s, %s' % (MF, vr(acc1(t, f), 4), ar(TB + ((ks % 2) * 6 + f) * 4, 4), ar(4 * (n % RW), 4), '0' if ks == 0 else vr(acc1(t, f), 4)))
                        if x == 5: state['wcons'] = n
                        pos = k4 * 48 + t * 6 + x + 1
                        end = min(nxt_blk * 48, 144 + BART * 6)
                        cap = 2
                        if x == 5 and t % 2 == 1: cap = 1 if t < 7 else 0
                        if midbar and pos < end and len(sc.q) > cfg.get('T1_PRESS', 1.45) * (end - pos): cap += 1
                        sc.gap(cap)
            sc.flush()
        a.dense = True
        for blk, fl in produce(0):
            if blk is not None: blk()
            sc.add(fl)
            while sc.q: sc.gap(6) or sc.gap(10**6, vm=False)
        a.dense = False
        barrier()
        if STAMP and cfg.get('S1') in (None, 1, 2): stamp_mid(a, 0)
        if STAMP and cfg.get('S1') == 4: stamp_mid(a, 4)
        for f in tok_reads(0): f.emit(a)
        st.pace = st.pace2 = cfg.get('T1_PACEL' if tr else 'T1_PACEG', 70 if tr else 64)
        for r in range(3):
            c0 = a.clock
            if r == cfg.get('T1_TOUCH', 9):
                st.flush()
                vt = 249 if tr else 244
                a.e('s_lshr_b32 s62, s2, 3')
                a.e('s_lshl_b32 s62, s62, 2')
                a.e('s_add_u32 s62, s62, s%d' % sWave)
                a.e('s_lshl_b32 s62, s62, 13')
                a.e('s_add_u32 s63, s62, %d' % W3_OFF)
                a.e('v_lshlrev_b32 v%d, 3, v%d' % (vt, vLane16))
                a.e('buffer_load_dword a207, v%d, %s, s63 offen' % (vt, ws)) if not tr else a.e('buffer_load_dword v249, v%d, %s, s63 offen' % (vt, ws))
                st.vq.issue()
                if not tr:
                    a.e('s_lshr_b32 s62, s2, 4')
                    a.e('s_lshl_b32 s62, s62, 2')
                    a.e('s_add_u32 s62, s62, s%d' % sWave)
                    a.e('s_min_u32 s62, s62, 35')
                    a.e('s_lshl_b32 s62, s62, 13')
                    a.e('s_add_u32 s63, s62, %d' % TPM_OFF)
                    a.e('buffer_load_dword a207, v%d, %s, s63 offen' % (vt, ws)); st.vq.issue()
                    a.e('v_lshlrev_b32 v%d, 6, v%d' % (vt, vLane16))
                    a.e('buffer_load_dword a207, v%d, s[24:27], s49 offen' % vt); st.vq.issue()
                    a.e('buffer_load_dword a207, v%d, s[24:27], s49 offen offset:128' % vt); st.vq.issue()
                    a.e('v_lshrrev_b32 v%d, 4, v%d' % (vLane, vLane16))
            gemm(r, produce(r + 1), True)
            if cfg.get('V'): print('  gemm round', a.clock - c0)
            if STAMP and cfg.get('S1') == 1: stamp_mid(a, r + 1); lq.done = lq.n
        state['last'] = True
        gemm(3, [], False)
        if STAMP and cfg.get('S1') == 1: stamp_mid(a, 4)
        if cfg.get('V'): print(name, tr, st.slack)

    def add_x(st, state):
        for k in range(8):
            ts, dd = k // 2, k % 2
            st.add(0, 900, ['s_add_u32 m0, s%d, %d' % (sStg, k * 1024), 's_add_u32 s50, s49, %d' % (ts * 16384 + dd * 64)],
                   'buffer_load_dwordx4 v%d, s[24:27], s50 offen lds' % TMP, ('x', k), lambda: state.get('last', False))
    def x_setup():
        a.e('s_waitcnt lgkmcnt(0)')
        srd_off(24, 52, 47, 0 if cfg.get('NOX') else 4096000)
        a.e('s_lshl_b32 s49, s%d, 16' % sK)
        a.e('s_lshl_b32 s50, s%d, 8' % sWave)
        a.e('s_add_u32 s49, s49, s50')
        a.e('s_lshl_b32 s50, s%d, 7' % sTy)
        a.e('s_add_u32 s49, s49, s50')
        a.e('v_lshlrev_b32 v%d, 10, v%d' % (TMP, vI))
        a.e('v_lshl_add_u32 v%d, v%d, 4, v%d' % (TMP, vQ4, TMP))

    TP2 = 136
    def add_taps2(st, state, pairs, need, ready):
        for p in pairs:
            for q in range(9):
                pre = ['s_add_u32 s43, s46, %d' % (p * 9216 + q * 1024)] if q % 4 == 0 else []
                st.add(1, need + p, pre, 'buffer_load_dwordx4 %s, v%d, %s, s43 offen offset:%d' % (ar(TP2 + 36 * (p % 2) + 4 * q, 4), vLane16, ws, (q % 4) * 1024), ('t2', p, q), (lambda p=p: ready(p)))

    a.e('s_cmp_eq_u32 s%d, 0' % sTy)
    a.e('s_cbranch_scc1 %s_glob' % name)

    RWL = 27; DATA = 108; TP = 136
    CD, UB, PKO, UT2, vS, vRd, vWr = 192, 216, 228, 240, 242, 243, 254
    vUo = [253, 255, 250]
    vq = VmQ(); lq = LgQ()
    st = GStream(a, vq, cfg.get('TL_PACE', 24), 4)
    st.look = cfg.get('TL_LOOK', 24); st.pace2 = cfg.get('TL_PACE2', 64)
    state = dict(wcons=-1, gdone=-1, gread=-1, edone=-1, uok=False)
    a.e('s_add_u32 s%d, s47, %d' % (sA, G_OFF - 32768))
    srd_off(12, 4, sA, 4096000 + 32768)
    a.e('v_lshrrev_b32 v8, 1, v%d' % vI)
    a.e('v_lshlrev_b32 v%d, 14, v8' % vS)
    a.e('v_lshl_add_u32 v%d, v%d, 5, v%d' % (vS, vQ4, vS))
    a.e('v_and_b32 v9, 1, v%d' % vI)
    a.e('v_lshl_add_u32 v%d, v9, 4, v%d' % (vS, vS))
    a.e('v_cmp_gt_u32 vcc, 2, v8')
    a.e('v_mov_b32 v9, s%d' % sF)
    a.e('v_cndmask_b32 v9, 0, v9, vcc')
    a.e('v_or_b32 v%d, v%d, v9' % (vS, vS))
    a.e('s_lshl_b32 s%d, s%d, 16' % (sA, sK))
    a.e('s_lshl_b32 s%d, s%d, 10' % (sB, sWave))
    a.e('s_add_u32 s%d, s%d, s%d' % (sA, sA, sB))
    a.e('s_mul_i32 s42, s%d, 9216' % sWave)
    a.e('s_add_u32 s42, s42, %d' % TPC_OFF)
    def tg(g): return g if g < 2 else 2 + (g - 2) * 4
    def tw(n): return 2 + n / 4.0 - 1
    for g in range(8):
        off = (g >> 1) * 4096 + (g & 1) * 512
        for d in range(4):
            st.add(0, tg(g) - cfg.get('TL_WINLEAD', 7), ['s_add_u32 m0, s%d, %d' % (sStg, (g % 3) * 4160 + d * 1040), 's_add_u32 s%d, s%d, %d' % (sC, sA, off + d * 128)],
                   'buffer_load_dwordx4 v%d, s[12:15], s%d offen lds' % (vS, sC), ('win', g, d), (lambda g=g: state['gread'] >= g - 3))
        for h in range(3):
            pre = ['s_add_u32 m0, s44, %d' % ((g >> 1) * 24576 + (g & 1) * 3072 + h * 1024), 's_add_u32 s45, s%d, %d' % (sA, off)]
            st.add(3, tg(g) - 3, pre, 'buffer_load_dwordx4 v%d, s[16:19], s45 offen lds' % vUo[h], ('u', g, h), (lambda: state['uok']))
    for p in range(4):
        for q in range(9):
            pre = ['s_add_u32 s43, s42, %d' % (p * 4 * 9216 + q * 1024)] if q % 4 == 0 else []
            st.add(1, tg(2 * p + (q > 4)) - 3, pre, 'buffer_load_dwordx4 %s, v%d, %s, s43 offen offset:%d' % (ar(TP + 36 * (p % 2) + 4 * q, 4), vLane16, ws, (q % 4) * 1024), ('tp', p, q),
                   (lambda p=p: state['gdone'] >= 2 * (p - 2) + 1))
    add_w(st, state, lambda n: ar(4 * (n % RWL), 4), RWL, 0, 128, tw)
    add_x(st, state)
    add_taps2(st, state, (0, 1), 1000, lambda p: ('x', 7) in st.issued)
    add_w(st, state, wreg, 0, 128, 128 + NPRE, lambda n: 2000, ready=lambda n: ('t2', 1, 8) in st.issued and (SLOT2[n - 128] >= 4 * RWL or state['wcons'] >= max(m_ for m_ in range(128) if m_ % RWL == SLOT2[n - 128] // 4)))
    st.burst(13)
    a.e('s_add_u32 s%d, s47, %d' % (sU, U_OFF - 16384))
    srd_off(16, 4, sU, 4096000 + 16384)
    a.e('v_and_b32 v8, 3, v%d' % vLane)
    a.e('v_mul_u32_u24 v8, 3, v8')
    a.e('v_lshrrev_b32 v9, 2, v%d' % vLane)
    a.e('s_mul_i32 s44, s%d, 6144' % sWave)
    for h in range(3):
        a.e('v_add_u32 v10, %d, v%d' % (64 * h, vLane))
        a.e('v_mul_u32_u24 v12, 0x1556, v10')
        a.e('v_lshrrev_b32 v12, 16, v12')
        a.e('v_mul_u32_u24 v11, 12, v12')
        a.e('v_sub_u32 v10, v10, v11')
        a.e('v_lshrrev_b32 v11, 1, v10')
        a.e('v_lshlrev_b32 v%d, 14, v11' % vUo[h])
        a.e('v_lshl_add_u32 v%d, v12, 5, v%d' % (vUo[h], vUo[h]))
        a.e('v_and_b32 v10, 1, v10')
        a.e('v_lshl_add_u32 v%d, v10, 4, v%d' % (vUo[h], vUo[h]))
        a.e('v_cmp_eq_u32 vcc, 0, v11')
        a.e('v_mov_b32 v10, s%d' % sF)
        a.e('v_cndmask_b32 v10, 0, v10, vcc')
        a.e('v_or_b32 v%d, v%d, v10' % (vUo[h], vUo[h]))
    state['uok'] = True
    a.e('v_lshlrev_b32 v8, 4, v8')
    a.e('v_lshl_add_u32 v%d, v9, 8, v8' % vRd)
    a.e('v_lshl_add_u32 v%d, v%d, 4, v%d' % (vRd, vQ4, vRd))
    a.e('v_add_u32 v%d, s%d, v%d' % (vRd, sStg, vRd))
    a.e('v_mul_u32_u24 v%d, 192, v9' % vWr)
    a.e('v_add_u32 v%d, v8, v%d' % (vWr, vWr))
    a.e('s_mul_i32 s%d, s%d, 6144' % (sB, sWave))
    a.e('v_add_u32 v%d, s%d, v%d' % (vWr, sB, vWr))
    a.e('v_bfe_u32 v8, v%d, 2, 2' % vLane)
    a.e('v_lshl_add_u32 v8, v%d, 3, v8' % vQ4)
    a.e('v_mul_u32_u24 v%d, 192, v8' % NR)
    a.e('v_and_b32 v8, 3, v%d' % vLane)
    a.e('v_lshl_add_u32 v%d, v8, 4, v%d' % (NR, NR))
    a.e('v_add_u32 v%d, %d, v%d' % (NR + 1, 49152, NR))
    x_setup()
    st.burst(cfg.get('TL_B1', 12))
    sc = Sched(a, st)
    def data_reads(g):
        return [FW(lambda: st.wait(('win', g, 3)))] + [FD('ds_read_b128 %s, v%d offset:%d' % (ar(DATA + 4 * m, 4), vRd, (g % 3) * 4160 + 16 * m), lq, ('d', g, m)) for m in range(7)]
    def ioff(g, h): return ((g >> 1) * 24576 + (g & 1) * 3072 + h * 16) % 49152
    def u_reads(g):
        out = [FW(lambda: st.wait(('u', g, 2)))]
        if g == 4: out.append(FV('v_add_u32 v%d, %d, v%d' % (vWr, 49152, vWr)))
        return out + [FD('ds_read_b128 %s, v%d offset:%d' % (vr(UB + 4 * h, 4), vWr, ioff(g, h)), lq, ('ur', g, h)) for h in range(3)]
    def conv_epi(g, d0, d1):
        out = []
        if d0 == 0: out.append(FW(lambda: lq.wait(a, ('ur', g, 2))))
        t = UT2
        for d in range(d0, d1):
            out.append(FV('v_lshlrev_b32 v%d, 16, v%d' % (t, UB + d)))
            out.append(FV('v_and_b32 v%d, s90, v%d' % (t + 1, UB + d)))
            out.append(FV('v_mul_f32 v%d, v%d, v%d' % (t, t, CD + 2 * d)))
            out.append(FV('v_mul_f32 v%d, v%d, v%d' % (t + 1, t + 1, CD + 2 * d + 1)))
            out.append(FV('v_cvt_pk_bf16_f32 v%d, v%d, v%d' % (PKO + d, t, t + 1)))
            if d % 4 == 3: out.append(FD('ds_write_b128 v%d, %s offset:%d' % (vWr, vr(PKO + d - 3, 4), ioff(g, d // 4)), lq))
        return out
    def conv_block(g):
        def blk():
            r = g // 2
            A0 = TP + 36 * (r % 2) + 18 * (g % 2); B = DATA
            if g == 0:
                for f in data_reads(0): f.emit(a)
            st.wait(('tp', r, 4 if g % 2 == 0 else 8))
            lq.wait(a, ('d', g, 6))
            state['gread'] = g
            sc.add(u_reads(g))
            sc.vmcap = 1
            for hf in range(2):
                for s_ in range(9):
                    for q in range(3 * hf, 3 * hf + 3):
                        ac = vr(CD + 4 * q, 4)
                        a.e('%s %s, %s, %s, %s' % (M4, ac, ar(A0 + 2 * s_, 2), ar(B + 2 * (q + s_), 2), '0' if s_ == 0 else ac))
                        if hf == 1 and s_ == 1 and q == 3: sc.add(conv_epi(g, 0, 4))
                        sc.gap(1)
            sc.vmcap = 2
            state['gdone'] = g
        return blk
    def loc_produce(r):
        if r == 0: return [(conv_block(0), data_reads(1) + conv_epi(0, 4, 12)), (conv_block(1), data_reads(2) + conv_epi(1, 4, 12))]
        return [(conv_block(2 * r), conv_epi(2 * r, 4, 12)), (None, data_reads(2 * r + 1)), (conv_block(2 * r + 1), conv_epi(2 * r + 1, 4, 12) + (data_reads(2 * r + 2) if r < 3 else []))]
    stage1(True, sc, lq, state, RWL, loc_produce)
    st.flush(); st.burst(100)
    assert st.empty()
    a.e('s_branch %s_s2' % name)

    a.label('%s_glob' % name, reset=True)
    RWG = cfg.get('TG_RW', 34)
    vq = VmQ(); lq = LgQ()
    st = GStream(a, vq, cfg.get('TG_PACE', 24), 4)
    st.look = cfg.get('TG_LOOK', 28); st.pace2 = cfg.get('TG_PACE2', 64)
    state = dict(wcons=-1, fread=-1)
    MLR = 0; WT = 192; PB = 216; CA, CU, PO = 232, 240, 128
    vWa, vSt, vS0 = 255, 250, 249
    a.e('s_mul_i32 s%d, s%d, 4000' % (sTok, sBt))
    a.e('s_lshl_b32 s%d, s%d, 6' % (sA, sK))
    a.e('s_add_u32 s%d, s%d, s%d' % (sTok, sTok, sA))
    a.e('v_lshlrev_b32 v%d, 2, v%d' % (TMP, vI))
    a.e('s_lshl_b32 s%d, s%d, 4' % (sA, sTok))
    a.e('s_add_u32 s%d, s%d, %d' % (sA, sA, ML_OFF - 512))
    a.e('s_lshl_b32 s%d, s%d, 12' % (sP, sTok))
    a.e('s_lshl_b32 s%d, s%d, 13' % (sB, sWave))
    a.e('s_add_u32 s%d, s%d, s%d' % (sP, sP, sB))
    a.e('s_add_u32 s%d, s%d, %d' % (sP, sP, OP_OFF - 131072))
    make_srd(a, 12, 4, 0); a.e('s_cmp_eq_u32 s%d, 0' % sK); a.e('s_cselect_b32 s14, 0, %d' % WS_BYTES)
    make_srd(a, 16, 4, 0); a.e('s_cmp_eq_u32 s%d, 62' % sK); a.e('s_cselect_b32 s18, 0, %d' % WS_BYTES)
    def tsrd(ts): return 's[12:15]' if ts == 0 else ('s[16:19]' if ts >= 3 else ws)
    NS = 5
    a.e('s_mul_i32 s44, s%d, 6144' % sWave)
    def tf(f): return f if f < 6 else 6 + (f - 6) // 6 * 16 + ((f - 6) % 6) * 2
    def twg(n): return 6 + n / 2.0 - cfg.get('TG_WLEAD', 6)
    XS = cfg.get('TG_XS', 1)
    def slot(f):
        if XS and f in (5, 6): return (True, f - 5, -1)
        g_ = f - 2 if (XS and f > 6) else f
        prev = f - NS
        if XS and 7 <= f < 12: prev = f - 7
        return (False, g_ % NS, prev)
    for f in range(24):
        r, ts = f // 6, f % 6
        off = ((ts + 1) >> 1) * 131072 + r * 32768 + ((ts + 1) & 1) * 4096
        st.add(3, tf(f) - cfg.get('TG_PLEAD0', 16), ['s_add_u32 m0, s44, %d' % (r * 24576 + ts * 1024), 's_add_u32 s45, s%d, %d' % (sP, off)],
               'buffer_load_dwordx4 v%d, %s, s45 offen sc1 lds' % (vLane16, tsrd(ts)), ('p', f, 0), (lambda r=r: r != 2 or not XS or state['fread'] >= 6))
        img, si, prev = slot(f)
        pre = ['s_add_u32 m0, s%d, %d' % (44 if img else sStg, (49152 if img else 0) + (si * 3 - 1) * 1024), 's_add_u32 s%d, s%d, %d' % (sC, sP, off),
               'buffer_load_dwordx4 v%d, %s, s%d offen offset:1024 sc1 lds' % (vLane16, tsrd(ts), sC), 'buffer_load_dwordx4 v%d, %s, s%d offen offset:2048 sc1 lds' % (vLane16, tsrd(ts), sC)]
        st.add(0, tf(f) - cfg.get('TG_PLEAD', 16), pre, 'buffer_load_dwordx4 v%d, %s, s%d offen offset:3072 sc1 lds' % (vLane16, tsrd(ts), sC), ('p', f, 3), (lambda prev=prev: state['fread'] >= prev))
    add_w(st, state, lambda n: ar(4 * (n % RWG), 4), RWG, 0, 128, twg)
    def gfree(reg):
        sl = reg // 4
        if sl >= RWG: return True
        lastn = max(n for n in range(128) if n % RWG == sl)
        return state['wcons'] >= lastn
    add_x(st, state)
    add_taps2(st, state, (0, 1), 1000, lambda p: ('x', 7) in st.issued and all(gfree(r_) for r_ in range(TP2, TP2 + 72, 4)))
    add_w(st, state, wreg, 0, 128, 128 + NPRE, lambda n: 2000, ready=lambda n: ('t2', 1, 8) in st.issued and gfree(SLOT2[n - 128]))
    if FUSE:
        for _ in range(cfg.get('TG_W0', 24)): st._issue(2)
        a.e('s_lshr_b32 s62, s%d, 1' % sK)
        a.e('s_and_b32 s63, s%d, 1' % sK)
        a.e('s_lshl_b32 s63, s63, 1')
        a.e('s_add_u32 s63, s63, s62')
        a.e('s_max_u32 s63, s63, 1')
        a.e('s_sub_u32 s63, s63, 1')
        a.e('s_min_u32 s63, s63, 31')
        a.e('s_lshl_b32 s59, s%d, 5' % sBt)
        a.e('s_add_u32 s62, s62, s59')
        a.e('s_add_u32 s63, s63, s59')
        a.e('s_lshl_b32 s62, s62, 7')
        a.e('s_lshl_b32 s63, s63, 7')
        a.e('s_add_u32 s62, s62, %d' % CNT_OFF)
        a.e('s_add_u32 s63, s63, %d' % CNT_OFF)
        a.e('v_mov_b32 v64, s62')
        a.e('v_mov_b32 v65, s63')
        a.e('s_mov_b32 s59, 0')
        a.label('%s_wait' % name)
        a.e('global_load_dword v66, v64, s[4:5] sc1')
        a.e('global_load_dword v67, v65, s[4:5] sc1')
        a.e('s_waitcnt vmcnt(0)')
        a.e('v_min_u32 v66, v66, v67')
        a.e('v_readfirstlane_b32 s62, v66')
        a.e('s_cmp_ge_u32 s62, 16')
        a.e('s_cbranch_scc1 %s_ready' % name)
        a.e('s_sleep 1')
        a.e('s_add_u32 s59, s59, 1')
        a.e('s_cmp_lt_u32 s59, 0x80000')
        a.e('s_cbranch_scc1 %s_wait' % name)
        a.label('%s_ready' % name, reset=True)
        a.e('s_barrier')
        vq.done = vq.n
        if STAMP and cfg.get('S1') == 4: stamp_mid(a, 3)
    for ts in range(6):
        for s in range(4):
            a.e('buffer_load_dword v%d, v%d, %s, s%d offen offset:%d sc1' % (WT + ts * 4 + s, TMP, tsrd(ts), sA, ((ts + 1) >> 1) * 512 + s * 128 + ((ts + 1) & 1) * 64))
            vq.issue('ml')
        if ts == 0: st.burst(2)
    st.burst(cfg.get('TG_B2', 14))
    a.e('v_lshrrev_b32 v64, 2, v%d' % vI)
    a.e('v_lshlrev_b32 v64, 3, v64')
    a.e('v_and_b32 v65, 3, v%d' % vI)
    a.e('v_add_u32 v64, v64, v65')
    a.e('v_lshrrev_b32 v65, 4, v64')
    a.e('v_and_b32 v64, 15, v64')
    a.e('v_xor_b32 v64, v64, v%d' % vQ4)
    a.e('v_lshl_add_u32 v64, v%d, 4, v64' % vQ4)
    a.e('v_lshlrev_b32 v64, 4, v64')
    a.e('v_lshl_add_u32 v%d, v65, 10, v64' % NR)
    a.e('v_xor_b32 v%d, 64, v%d' % (NR + 1, NR))
    a.e('v_add_u32 v%d, 49152, v%d' % (NR + 2, NR))
    a.e('v_add_u32 v%d, 49152, v%d' % (NR + 3, NR + 1))
    tok_read_regs(a, 64, 65, vLane, 66)
    a.e('s_bitcmp1_b32 s%d, 0' % sWave)
    a.e('s_cselect_b64 vcc, -1, 0')
    a.e('v_cndmask_b32 v%d, v64, v65, vcc' % vWa)
    a.e('s_mul_i32 s%d, s%d, 6144' % (sB, sWave))
    a.e('v_add_u32 v%d, s%d, v%d' % (vWa, sB, vWa))
    a.e('v_add_u32 v%d, s%d, v%d' % (vSt, sStg, vLane16))
    a.e('v_add_u32 v%d, s%d, v%d' % (vS0, sB, vLane16))
    x_setup()
    vq.wait(a, 'ml')
    a.dense = True
    for ts in range(6):
        m = [WT + ts * 4 + s for s in range(4)]
        t = 64
        a.e('v_max3_f32 v%d, v%d, v%d, v%d' % (t, m[0], m[1], m[2]))
        a.e('v_max_f32 v%d, v%d, v%d' % (t, t, m[3]))
        for s in range(4): a.e('v_sub_f32 v%d, v%d, v%d' % (m[s], m[s], t))
        for s in range(4): a.e('v_exp_f32 v%d, v%d' % (m[s], m[s]))
        a.e('v_add_f32 v%d, v%d, v%d' % (t, m[0], m[1]))
        for s in range(2, 4): a.e('v_add_f32 v%d, v%d, v%d' % (t, t, m[s]))
        a.e('v_rcp_f32 v%d, v%d' % (t, t))
        for s in range(4): a.e('v_mul_f32 v%d, v%d, v%d' % (WT + ts * 4 + s, WT + ts * 4 + s, t))
    a.dense = False
    sc = Sched(a, st)
    def p_read(f, s):
        r, ts = f // 6, f % 6
        if s == 0:
            def w_(): st.wait(('p', f, 0)); st.wait(('p', f, 3))
            out = [FW(w_)]
            if f == 12: out.append(FV('v_add_u32 v%d, 49152, v%d' % (vS0, vS0)))
            return out + [FD('ds_read_b128 %s, v%d offset:%d' % (vr(PB, 4), vS0, (r % 2) * 24576 + ts * 1024), lq, ('pr', f, s))]
        img, si, prev = slot(f)
        return [FD('ds_read_b128 %s, v%d offset:%d' % (vr(PB + 4 * s, 4), vS0 if img else vSt, (49152 if img else 0) + (si * 3 + s - 1) * 1024), lq, ('pr', f, s))]
    def glob_produce(r):
        out = []
        if r == 0:
            for s in range(4): out += p_read(0, s)
        for ts in range(6):
            f = 6 * r + ts
            for s in range(4):
                def w_(f=f, s=s):
                    lq.wait(a, ('pr', f, s + 1))
                    if s == 2: state['fread'] = f
                if s % 2 == 0: out.append(FW(w_))
                p = PB + 4 * s; w = WT + ts * 4 + s
                for d in range(8):
                    out.append(FV('v_fma_mix_f32 v%d, v%d, v%d, %s op_sel:[%d,0,0] op_sel_hi:[1,0,0]' % (CA + d, p + d // 2, w, '0' if s == 0 else 'v%d' % (CA + d), d & 1)))
                if f < 23: out += p_read(f + 1, s)
            for d in range(4):
                out.append(FV('v_cvt_pk_bf16_f32 v%d, v%d, v%d' % (CU + d, CA + 2 * d, CA + 2 * d + 1)))
            if f == 12: out.append(FV('v_add_u32 v%d, 49152, v%d' % (vWa, vWa)))
            out.append(FD('ds_write_b128 v%d, %s offset:%d' % (vWa, vr(CU, 4), (r % 2) * 24576 + ts * 1024), lq))
        return [(None, out)]
    stage1(False, sc, lq, state, RWG, glob_produce)
    st.flush(); st.burst(100)
    assert st.empty()

    a.label('%s_s2' % name, reset=True)
    if STAMP and cfg.get('S1') in (None, 2): stamp_mid(a, 1)
    vq = VmQ(); lq = LgQ()
    pre_keys = [('t2', q // 9, q % 9) for q in range(18)] + [('w', 128 + n) for n in range(NPRE)]
    for k_ in pre_keys: vq.issue(k_)
    st = GStream(a, vq, cfg.get('T2_PACE', 48), 4)
    st.look = cfg.get('T2_LOOK', 60); st.pace2 = cfg.get('T2_PACE2', 64)
    st.issued = set(pre_keys)
    state = dict(wcons=127, gdone=-1, packed=0)
    def w2ready(n):
        i = n - 128
        if i >= RW2: return state['wcons'] >= n - RW2
        if i >= 43: return state['gdone'] >= 3
        if i >= 34: return state['gdone'] >= 1
        return True
    add_w(st, state, wreg, RW2, 128 + NPRE, 256, lambda n: 8 + (n - 128) / 5.0, ready=w2ready)
    for p in (2, 3):
        for q in range(9):
            pre = ['s_add_u32 s43, s46, %d' % (p * 9216 + q * 1024)] if q % 4 == 0 else []
            st.add(1, p, pre, 'buffer_load_dwordx4 %s, v%d, %s, s43 offen offset:%d' % (vr(36 * (p - 2) + 4 * q, 4), vLane16, ws, (q % 4) * 1024), ('t2', p, q),
                   (lambda p=p, q=q: state['packed'] * 24 >= 36 * (p - 2) + 4 * q + 4))
    vW1, vRd2, vWr2, vId, vRow, vR = 192, 193, 194, 196, 195, 198
    PK = 204
    srd_off(28, 54, 47, 4096000)
    a.e('v_mov_b32 v%d, v%d' % (vRow, TMP))
    a.e('s_mul_i32 s%d, s%d, 24576' % (sB, sWave))
    a.e('v_mul_u32_u24 v%d, 192, v%d' % (vW1, vI))
    a.e('v_bfe_u32 v%d, v%d, 1, 2' % (TMP, vI))
    a.e('v_xor_b32 v%d, v%d, v%d' % (TMP, TMP, vQ4))
    a.e('v_lshl_add_u32 v%d, v%d, 4, v%d' % (vW1, TMP, vW1))
    a.e('v_add_u32 v%d, s%d, v%d' % (vW1, sB, vW1))
    RD2 = [220 + m for m in range(6)]
    a.e('v_lshrrev_b32 v%d, 2, v%d' % (TMP, vLane))
    a.e('v_mul_u32_u24 v%d, 192, v%d' % (vRd2, TMP))
    a.e('v_add_u32 v%d, s%d, v%d' % (vRd2, sB, vRd2))
    a.e('v_bfe_u32 v%d, v%d, 3, 2' % (TMP + 1, vLane))
    a.e('v_and_b32 v%d, 3, v%d' % (TMP, vLane))
    a.e('v_lshlrev_b32 v%d, 1, v%d' % (TMP, TMP))
    for m in range(6):
        a.e('v_add_u32 v%d, %d, v%d' % (TMP + 2, m, TMP))
        a.e('v_xor_b32 v%d, v%d, v%d' % (TMP + 2, TMP + 2, TMP + 1))
        a.e('v_lshl_add_u32 v%d, v%d, 4, v%d' % (RD2[m], TMP + 2, vRd2))
    st.burst(4)
    a.e('s_barrier')
    if STAMP and cfg.get('S1') == 2: stamp_mid(a, 2)
    c2 = a.clock
    a.dense = True
    for t in range(8):
        for b3 in range(3):
            for d in range(4):
                r_ = acc1(t, 2 * b3) + 2 * d
                a.e('v_cvt_pk_bf16_f32 v%d, v%d, v%d' % (acc1(t, 2 * b3) + d, r_, r_ + 1))
        if t % 2 == 1:
            for t2 in (t - 1, t):
                for b3 in range(3):
                    a.e('ds_write_b128 v%d, %s offset:%d' % (vW1, vr(acc1(t2, 2 * b3), 4), t2 * 3072 + b3 * 64)); lq.issue(('w1', t2))
            state['packed'] = max(0, t - 1)
            st.burst(cfg.get('T2_PB', 3))
    state['packed'] = 8
    a.dense = False
    GACC, CD, DAT, PKO, TOK, XR = 0, 128, 208, 160, 208, 220
    def gacc(t, ts): return GACC + (t * 4 + ts) * 4
    img_write_reg(a, vWr2, vLane, TMP)
    a.e('s_lshl_b32 s%d, s%d, 14' % (sB, sWave))
    a.e('s_add_u32 s%d, s%d, %d' % (sB, sB, STG))
    a.e('v_add_u32 v%d, s%d, v%d' % (vWr2, sB, vWr2))
    img_read_regs(a, vR, vLane, TMP)
    for ts in range(4): a.e('v_add_u32 v%d, %d, v%d' % (vR + ts, STG, vR + ts))
    a.e('v_and_b32 v%d, 1, v%d' % (TMP, vLane))
    a.e('v_lshlrev_b32 v%d, 4, v%d' % (TMP, TMP))
    a.e('v_mov_b32 v%d, 0x3f80' % (TMP + 1))
    a.e('v_lshlrev_b32 v%d, v%d, v%d' % (TMP + 1, TMP, TMP + 1))
    a.e('v_and_b32 v%d, 2, v%d' % (TMP, vLane))
    a.e('v_cmp_eq_u32 vcc, 0, v%d' % TMP)
    a.e('v_cndmask_b32 v%d, 0, v%d, vcc' % (vId, TMP + 1))
    a.e('v_cndmask_b32 v%d, v%d, 0, vcc' % (vId + 1, TMP + 1))
    XL = 176
    def xreg(k): return (176 + 4 * k) if k < 4 else (226 + 4 * (k - 4))
    st.wait(('t2', 0, 0))
    a.e('v_add_u32 v%d, s%d, v%d' % (TMP, sStg, vLane16))
    for k in range(8):
        a.e('ds_read_b128 %s, v%d offset:%d' % (vr(xreg(k), 4), TMP, k * 1024)); lq.issue()
    a.e('s_lshl_b32 s51, s%d, 6' % sBt)
    a.e('s_add_u32 s51, s51, s%d' % sK)
    a.e('s_lshl_b32 s56, s51, 8')
    a.e('s_add_u32 s56, s56, %d' % CNT_OFF)
    sc = Sched(a, st)
    def d_reads(g):
        return [FD('ds_read_b128 %s, v%d offset:%d' % (ar(DAT + 24 * (g % 2) + 4 * m, 4), RD2[m], g * 3072), lq, ('d', g, m)) for m in range(6)]
    def c_epi(g):
        out = []
        D = CD + 16 * (g % 2); o = PKO + 8 * (g % 2)
        for d in range(8):
            out.append(FV('v_cvt_pk_bf16_f32 v%d, v%d, v%d' % (o + d, D + 2 * d, D + 2 * d + 1)))
            if d % 4 == 3: out.append(FD('ds_write_b128 v%d, %s offset:%d' % (vWr2, vr(o + d - 3, 4), g * 2048 + (d // 4) * 16), lq))
        return out
    if STAMP and cfg.get('S1') == 2: stamp_mid(a, 3); lq.done = lq.n
    if cfg.get('V'): print('pack end', a.clock - c2)
    for f in d_reads(0): f.emit(a)
    sc.vmcap = 1
    for g in range(8):
        p = g // 2
        A0 = (TP2 if p < 2 else 0) + 36 * (p % 2) + 18 * (g % 2); D = CD + 16 * (g % 2); B = DAT + 24 * (g % 2)
        AF = ar if p < 2 else vr
        st.wait(('t2', p, 4 if g % 2 == 0 else 8))
        lq.wait(a, ('d', g, 5))
        k = 0
        for s_ in list(range(9)) + ['I']:
            for q in range(4):
                ac = vr(D + 4 * q, 4)
                if s_ == 'I': a.e('%s %s, %s, %s, %s' % (M4, ac, vr(vId, 2), ar(B + 2 * (q + 4), 2), ac))
                else: a.e('%s %s, %s, %s, %s' % (M4, ac, AF(A0 + 2 * s_, 2), ar(B + 2 * (q + s_), 2), '0' if s_ == 0 else ac))
                k += 1
                if k == 1 and g < 7: sc.add(d_reads(g + 1))
                if k == 4 and g: sc.add(c_epi(g - 1))
                if k < 40: sc.gap(1)
        state['gdone'] = g
        sc.flush()
    sc.vmcap = 2
    sc.add(c_epi(7)); sc.flush(); st.flush()
    lq.wait_all(a)
    if cfg.get('V'): print('conv end', a.clock - c2)
    if STAMP and cfg.get('S1') == 2: stamp_mid(a, 4)
    a.e('s_barrier')
    if STAMP and not cfg.get('S1'): stamp_mid(a, 2)
    def t_reads(ks):
        return [FD('ds_read_b64_tr_b16 %s, v%d offset:%d' % (ar(TOK + ((ks % 3) * 4 + ts) * 4 + 2 * h, 2), vR + ts, (ks % 16) * 4096 + 512 * h), lq, ('t', ks, ts, h))
                for ts in range(4) for h in range(2)]
    for f in t_reads(0) + t_reads(1): f.emit(a)
    vOne, vZ, vFl, vFa = 204, 205, 206, 207
    LD, PKS = 128, 160
    a.e('s_lshl_b32 s57, s51, 16')
    a.e('s_lshl_b32 s%d, s%d, 13' % (sB, sWave))
    a.e('s_add_u32 s57, s57, s%d' % sB)
    a.e('s_add_u32 s57, s57, %d' % PO_OFF)
    a.e('s_lshl_b32 s%d, s%d, 15' % (sB, sTy))
    a.e('s_add_u32 s48, s57, s%d' % sB)
    a.e('s_xor_b32 s%d, s%d, 0x8000' % (sB, sB))
    a.e('s_add_u32 s57, s57, s%d' % sB)
    a.e('s_add_u32 s58, s57, 0x1000')
    def pub():
        out = []; k = 0
        for ts in range(4):
            for dd in range(2):
                o = PKS + 4 * (k % 4)
                for e in range(2):
                    for j in range(2):
                        r_ = gacc(2 * dd + e, ts) + 2 * j
                        out.append(FV('v_cvt_pk_bf16_f32 v%d, v%d, v%d' % (o + 2 * e + j, r_, r_ + 1)))
                        out.append(FV('v_min_u32 v%d, -2, v%d' % (o + 2 * e + j, o + 2 * e + j)))
                if k == 4: out.append(FS('s_add_u32 s48, s48, 0x1000'))
                out.append(FM('buffer_store_dwordx4 %s, v%d, %s, s48 offen offset:%d' % (vr(o, 4), vLane16, ws, (k % 4) * 1024), vq)); k += 1
        return out
    def part_loads():
        return [FM('buffer_load_dwordx4 %s, v%d, %s, s%d offen offset:%d sc1' % (vr(LD + 4 * k, 4), vLane16, ws, 57 + k // 4, (k % 4) * 1024), vq) for k in range(8)]
    def xadd():
        out = []
        for ts in range(4):
            for dd in range(2):
                pass
        return out
    KP = cfg.get('T2_KP', 30)
    for kk in range(32):
        h, ks = kk // 16, kk % 16
        if STAMP and cfg.get('S1') == 3 and kk in (0, 8, 16, 24): stamp_mid(a, kk // 8); lq.done = lq.n
        lq.wait(a, ('t', kk, 3, 1))
        if kk >= 17 and not state.get('pub') and (st.empty() or kk == cfg.get('T2_KPUB', 24)):
            sc.add(pub()); state['pub'] = kk
        if kk == KP: sc.add(part_loads())
        if kk < 30:
            ds = t_reads(kk + 2); q_ = sc.q; out = []
            while ds:
                out.append(ds.pop(0))
                if q_ and q_[0].kind == 'v': out.append(q_.pop(0))
            sc.q[0:0] = out
        st.wait(('w', 128 + kk * 4 + 3))
        for t4 in range(4):
            n = 128 + kk * 4 + t4; t = 4 * h + t4
            for x, ts in enumerate(range(4) if t4 % 2 == 0 else range(3, -1, -1)):
                a.e('%s %s, %s, %s, %s' % (MF, vr(gacc(t, ts), 4), wreg(n), ar(TOK + ((kk % 3) * 4 + ts) * 4, 4), '0' if ks == 0 else vr(gacc(t, ts), 4)))
                if x == 3: state['wcons'] = n
                sc.gap(0 if (x == 3 and t4 == 3) else 2)
    sc.flush()
    if cfg.get('V'): print(name, 's2', st.slack, state)
    if STAMP and not cfg.get('S1'): stamp_mid(a, 3)
    if STAMP and cfg.get('S1') == 3: stamp_mid(a, 4)
    a.dense = True
    U = 208
    def addin(src, ts, dd, pack):
        for e in range(2):
            for j in range(2):
                r_ = gacc(4 + 2 * dd + e, ts) + 2 * j
                u = U + 2 * ((2 * e + j) % 4)
                a.e('v_lshlrev_b32 v%d, 16, v%d' % (u, src + 2 * e + j))
                a.e('v_and_b32 v%d, s90, v%d' % (u + 1, src + 2 * e + j))
                a.e('v_pk_add_f32 %s, %s, %s' % (vr(r_, 2), vr(r_, 2), vr(u, 2)))
                if pack: a.e('v_cvt_pk_bf16_f32 v%d, v%d, v%d' % (src + 2 * e + j, r_, r_ + 1))
    for ts in range(4):
        for dd in range(2): addin(xreg(ts * 2 + dd), ts, dd, False)
    a.e('s_mov_b32 s59, 0')
    a.label('%s_poll' % name)
    a.e('s_waitcnt vmcnt(0)')
    a.e('v_max3_u32 v%d, v%d, v%d, v%d' % (vFl, LD, LD + 1, LD + 2))
    a.e('v_max3_u32 v%d, v%d, v%d, v%d' % (vFa, LD + 3, LD + 4, LD + 5))
    for j in range(6, 30, 4):
        a.e('v_max3_u32 v%d, v%d, v%d, v%d' % (vFl, vFl, LD + j, LD + j + 1))
        a.e('v_max3_u32 v%d, v%d, v%d, v%d' % (vFa, vFa, LD + j + 2, LD + j + 3))
    a.e('v_max3_u32 v%d, v%d, v%d, v%d' % (vFl, vFl, LD + 30, LD + 31))
    a.e('v_max_u32 v%d, v%d, v%d' % (vFl, vFl, vFa))
    a.e('v_cmp_eq_u32 vcc, -1, v%d' % vFl)
    a.e('s_cbranch_vccz %s_go' % name)
    for f in part_loads(): f.emit(a)
    a.e('s_add_u32 s59, s59, 1')
    a.e('s_cmp_lt_u32 s59, 0x40000')
    a.e('s_cbranch_scc1 %s_poll' % name)
    a.e('s_waitcnt vmcnt(0)')
    a.label('%s_go' % name, reset=True)
    if STAMP and not cfg.get('S1'): stamp_mid(a, 4)
    for ts in range(4):
        a.e('s_add_u32 s50, s49, %d' % (ts * 16384))
        for dd in range(2):
            x = LD + 4 * (ts * 2 + dd)
            addin(x, ts, dd, True)
            a.e('buffer_store_dwordx4 %s, v%d, s[28:31], s50 offen offset:%d' % (vr(x, 4), vRow, dd * 64))
    a.dense = False
    a.label('%s_fin' % name)
    if STAMP: stamp_end(a, sWave)
    a.label('%s_end' % name)
    a.e('s_endpgm')
    if FUSE: return None
    return dict(name=name, vgpr=512, sgpr=96, accum=256, grid=256, block=256, lds=163840)
```

```python
import copy
from asmlib import *
from layout import *

class LdsQ:
    def __init__(self):
        self.n = 0; self.done = 0; self.where = {}; self.pending = set()
    def issue(self, regs, check=True):
        self.n += 1
        for r in regs:
            if check: assert r not in self.pending, ('ring WAR', r)
            self.where[r] = self.n; self.pending.add(r)
    def consume(self, r):
        self.pending.discard(r); self.pending.discard(r + 1000)
    def need(self, regs):
        return max([self.where.get(r, 0) for r in regs] + [0])
    def wait_for(self, a, idx):
        if idx <= self.done: return
        N = min(self.n - idx, 15)
        a.e('s_waitcnt lgkmcnt(%d)' % N)
        self.done = self.n - N
    def drained(self):
        self.done = self.n
    def state(self):
        return (self.n - self.done, sorted((self.n - v, k) for k, v in self.where.items() if v > self.done), sorted(self.pending))

MF = 'v_mfma_f32_16x16x32_bf16'

KIDX = [0]
MIDR = {76: 80, 77: 81, 0: 80, 1: 81, 2: 82, 3: 83, 4: 84}
def stamp_begin(a):
    a.e('s_memrealtime s[66:67]')
    a.e('s_memtime s[72:73]')
    for r in range(80, 85): a.e('s_mov_b32 s%d, 0' % r)
    KIDX[0] += 1
CYC = [False]
def stamp_mid(a, reg):
    if CYC[0]:
        a.e('s_memtime s[78:79]')
        a.e('s_waitcnt lgkmcnt(0)')
        a.e('s_cselect_b32 s79, 1, 0')
        a.e('s_sub_u32 s78, s78, s72')
        a.e('s_add_u32 s%d, s78, s66' % MIDR[reg])
        a.e('s_cmp_eq_u32 s79, 1')
        return
    a.e('s_memrealtime s[78:79]')
    a.e('s_waitcnt lgkmcnt(0)')
    a.e('s_mov_b32 s%d, s78' % MIDR[reg])
def stamp_end(a, sWave, endlabel=None, nw=4):
    a.e('s_waitcnt vmcnt(0)')
    a.e('s_memrealtime s[68:69]')
    a.e('s_memtime s[74:75]')
    a.e('s_waitcnt lgkmcnt(0)')
    a.e('s_sub_u32 s74, s74, s72')
    a.e('s_getreg_b32 s71, hwreg(HW_REG_XCC_ID)')
    a.e('s_and_b32 s71, s71, 15')
    a.e('s_lshl_b32 s71, s71, 28')
    a.e('s_or_b32 s74, s74, s71')
    a.e('s_mul_i32 s70, s2, %d' % nw)
    a.e('s_add_u32 s70, s70, s%d' % sWave)
    a.e('s_lshl_b32 s70, s70, 5')
    a.e('s_add_u32 s70, s70, %d' % (TRACE_OFF + (KIDX[0] - 1) * TRACE_STRIDE))
    a.e('s_mov_b64 exec, 1')
    a.e('v_mov_b32 v0, s66'); a.e('v_mov_b32 v1, s68'); a.e('v_mov_b32 v2, s74'); a.e('v_mov_b32 v3, s80')
    a.e('v_mov_b32 v4, s81'); a.e('v_mov_b32 v5, s82'); a.e('v_mov_b32 v6, s83'); a.e('v_mov_b32 v7, s84')
    a.e('v_mov_b32 v8, s70')
    a.e('global_store_dwordx4 v8, v[0:3], s[4:5]')
    a.e('global_store_dwordx4 v8, v[4:7], s[4:5] offset:16')

def attn_salu(a):
    sWave = 40; sM0 = 41; sDma = 42; sQ = 43; sI = 16; sN2 = 17; sValid = 18; sOut = 19; sMl = 20; sT0 = 21; sT1 = 22; sT2 = 23
    a.e('s_and_b32 s%d, s2, 7' % sT0)
    a.e('s_lshr_b32 s%d, s2, 3' % sT1)
    a.e('s_and_b32 s%d, s%d, 3' % (sT2, sT1))
    a.e('s_lshr_b32 s%d, s%d, 2' % (sT1, sT1))
    a.e('s_and_b32 s24, s%d, 3' % sT0)
    a.e('s_lshl_b32 s24, s24, 3')
    a.e('s_add_u32 s24, s24, s%d' % sT1)
    a.e('s_lshl_b32 s24, s24, 2')
    a.e('s_add_u32 s24, s24, s%d' % sWave)
    a.e('s_cmp_lt_u32 s24, 125')
    a.e('s_cselect_b32 s%d, 1, 0' % sValid)
    a.e('s_min_u32 s24, s24, 124')
    a.e('s_lshr_b32 s25, s%d, 2' % sT0)
    a.e('s_mul_i32 s25, s25, 125')
    a.e('s_add_u32 s24, s24, s25')
    a.e('s_lshl_b32 s%d, s24, 15' % sQ)
    a.e('s_mul_i32 s26, s%d, 250' % sT2)
    a.e('s_add_u32 s26, s26, s24')
    a.e('s_lshl_b32 s%d, s24, 17' % sOut)
    a.e('s_lshl_b32 s27, s%d, 10' % sT2)
    a.e('s_add_u32 s%d, s%d, s27' % (sOut, sOut))
    a.e('s_add_u32 s%d, s%d, %d' % (sOut, sOut, OP_OFF))
    a.e('s_lshl_b32 s%d, s24, 9' % sMl)
    a.e('s_lshl_b32 s26, s%d, 7' % sT2)
    a.e('s_add_u32 s%d, s%d, s26' % (sMl, sMl))
    a.e('s_add_u32 s%d, s%d, %d' % (sMl, sMl, ML_OFF))
    a.e('s_add_u32 s%d, s%d, %d' % (sQ, sQ, QF_OFF))
    a.e('s_mul_i32 s27, s%d, 31' % sT2)
    a.e('s_min_u32 s28, s%d, 1' % sT2)
    a.e('s_add_u32 s27, s27, s28')
    a.e('s_add_u32 s27, s27, s25')
    a.e('s_lshl_b32 s%d, s27, 15' % sDma)
    if XF_OFF: a.e('s_add_u32 s%d, s%d, %d' % (sDma, sDma, XF_OFF))
    a.e('s_sub_u32 s%d, 31, s28' % sN2)
    a.e('s_lshl_b32 s%d, s%d, 13' % (sM0, sWave))

def attn_early_setup(a, sW_in, vLane, vLane16, T):
    a.e('s_mov_b32 s40, s%d' % sW_in)
    attn_salu(a)
    a.e('s_add_u32 s34, s27, s17')
    a.e('s_lshr_b32 s34, s34, 1')
    a.e('s_lshr_b32 s36, s27, 1')
    a.e('v_add_u32 v%d, s36, v%d' % (T, vLane))
    a.e('v_min_u32 v%d, s34, v%d' % (T, T))
    a.e('s_lshr_b32 s34, s24, 1')
    a.e('v_mov_b32 v%d, s34' % (T + 1))
    a.e('v_cmp_lt_u32 vcc, 31, v%d' % vLane)
    a.e('v_cndmask_b32 v%d, v%d, v%d, vcc' % (T, T, T + 1))
    a.e('v_lshlrev_b32 v%d, 7, v%d' % (T, T))
    a.e('v_add_u32 v%d, %d, v%d' % (T, TC_OFF, T))
    a.e('v_add_u32 v%d, s41, v%d' % (T + 2, vLane16))
    a.e('v_add_u32 v%d, 0x1000, v%d' % (T + 3, T + 2))
def attn_early_loads(vLane16, T):
    out = []
    def tile(stage):
        for j in range(8):
            g = []
            if j % 4 == 0: g += ['s_add_u32 m0, s41, %d' % (stage * 32768 + (j // 4) * 4096), 's_nop 0']
            g.append('buffer_load_dwordx4 v%d, s[8:11], s42 offen offset:%d lds' % (T + 2 if j < 4 else T + 3, (j % 4) * 1024))
            if j == 7: g.append('s_add_u32 s42, s42, 0x8000')
            out.append(g)
    tile(0)
    for f in range(32):
        g = ['s_add_u32 s43, s43, 0x1000'] if (f and f % 4 == 0) else []
        g.append('buffer_load_dwordx4 %s, v%d, s[8:11], s43 offen offset:%d' % (ar(4 * f, 4), vLane16, (f % 4) * 1024))
        out.append(g)
    tile(1); tile(2)
    return out

def gen_attn(a, name='attn_kernel', cfg=None):
    cfg = cfg or {}
    DV = cfg.get('DV', 9)
    DK = cfg.get('DK', 7)
    BARPOS = cfg.get('BARPOS', 31 - DV + 4)
    WG = cfg.get('WAITGROUP', 4)
    DMA_SLOTS = cfg.get('DMA_SLOTS', [2, 6, 10, 14, 18, 22, 26, 30])
    NO_DMA = cfg.get('NO_DMA', False)
    NO_SM = cfg.get('NO_SM', False)
    STAMP = cfg.get('STAMP', False)
    FUSE = cfg.get('FUSE', 1)
    S = [0, 16]; P = 32; RING = 40; NR = 16
    NEGM = 104
    vK = [112, 113]; vV = [114, 115]
    vD0, vD1, vL0, vL1, vMx, vT0, vT1, vLane16 = 116, 117, 118, 119, 120, 121, 122, 123
    vL = [vL0, vL1]
    def Sreg(b, kt, qs): return S[b] + (kt * 2 + qs) * 4
    def Obase(dt, qs): return (dt * 2 + qs) * 4
    def Oreg(dt, qs):
        o = Obase(dt, qs)
        return vr(128 + o, 4) if o < 128 else ar(o, 4)
    def Qreg(ks, qs): return ar((ks * 2 + qs) * 4, 4)
    sSRD = 8; sWave = 40; sM0 = 41; sDma = 42; sQ = 43; sI = 16; sN2 = 17; sValid = 18; sOut = 19; sMl = 20; sT0 = 21; sT1 = 22; sT2 = 23
    srd = sr(sSRD, 4)

    F2 = cfg.get('FUSE2', 1)
    from common import poll
    if F2:
        a.raw('.p2align 8'); a.label(name, reset=True); a.label('attn_body')
        a.e('s_nop 1')
    else:
        kernel_begin(a, name)
        a.e('s_cmp_ge_u32 s2, 256')
        a.e('s_cbranch_scc1 %s_end' % name)
        a.e('s_load_dwordx2 s[4:5], s[0:1], 80')
        if STAMP: stamp_begin(a)
    if cfg.get('CPF', 1) and not F2:
        from common import code_prefetch
        code_prefetch(a, name, 124, 125, 1)
    a.e('v_lshrrev_b32 v1, 6, v0')
    a.e('v_and_b32 v2, 63, v0')
    if not F2: a.e('v_readfirstlane_b32 s%d, v1' % sWave)
    a.e('v_lshlrev_b32 v%d, 4, v2' % vLane16)
    if not F2: attn_salu(a)
    a.e('v_add_u32 v%d, s%d, v%d' % (vD0, sM0, vLane16))
    a.e('v_add_u32 v%d, 0x1000, v%d' % (vD1, vD0))
    sG, sRd0, sRd1 = 29, 30, 31
    a.e('s_and_b32 s%d, s%d, 3' % (sG, sT0))
    a.e('s_lshl_b32 s%d, s%d, 5' % (sG, sG))
    a.e('s_lshr_b32 s34, s2, 3')
    a.e('s_add_u32 s%d, s%d, s34' % (sG, sG))
    a.e('s_add_u32 s%d, s%d, s25' % (sG, sG))
    a.e('s_lshl_b32 s%d, s%d, 15' % (sG, sG))
    a.e('s_add_u32 s35, s%d, %d' % (sG, U_OFF))
    a.e('s_add_u32 s%d, s%d, %d' % (sG, sG, G_OFF))
    a.e('s_sub_u32 s%d, s%d, 3' % (sRd0, sN2))
    a.e('s_sub_u32 s%d, s%d, 2' % (sRd1, sN2))
    a.e('v_lshrrev_b32 v3, 4, v2')
    a.e('v_and_b32 v4, 15, v2')
    a.e('v_and_b32 v5, 1, v3')
    a.e('v_mul_u32_u24 v5, 12, v5')
    a.e('v_xor_b32 v5, v4, v5')
    a.e('v_lshlrev_b32 v5, 4, v5')
    a.e('v_lshl_add_u32 v%d, v3, 9, v5' % vK[0])
    a.e('v_add_u32 v%d, 0x10000, v%d' % (vK[1], vK[0]))
    a.e('v_lshrrev_b32 v4, 2, v2')
    a.e('v_bfe_u32 v5, v2, 1, 1')
    a.e('v_and_b32 v6, 1, v2')
    a.e('v_mul_u32_u24 v7, 12, v5')
    a.e('v_xor_b32 v4, v4, v7')
    a.e('v_lshlrev_b32 v4, 4, v4')
    a.e('v_lshl_add_u32 v4, v5, 9, v4')
    a.e('v_lshl_add_u32 v%d, v6, 3, v4' % vV[0])
    a.e('v_add_u32 v%d, 0x10000, v%d' % (vV[1], vV[0]))
    a.e('v_lshlrev_b32 v126, 7, v2')
    a.e('v_lshlrev_b32 v127, 7, v0')
    zl = ['v_mov_b32 v%d, 0' % r for r in range(128, 256)] + ['v_accvgpr_write_b32 a%d, 0' % r for r in range(128, 256)]
    def zero(n):
        for _ in range(n):
            if zl: a.e(zl.pop(0))
    if F2:
        a.e('v_cmp_ne_u32 vcc, 0, v2')
        a.e('v_mov_b32 v125, 0x40000000')
        a.e('v_cndmask_b32 v124, 0, v125, vcc')
        a.e('v_mov_b32 v125, 1')
        zero(cfg.get('AT_Z2', 150))
    else:
        zero(cfg.get('AT_Z0', 64))
        a.e('s_waitcnt lgkmcnt(0)')
        a.e('s_mov_b32 s%d, s4' % sSRD)
        a.e('s_and_b32 s%d, s5, 0xffff' % (sSRD + 1))
        a.e('s_mov_b32 s%d, %d' % (sSRD + 2, WS_BYTES))
        a.e('s_mov_b32 s%d, 0x00020000' % (sSRD + 3))

    def dma_piece(stage, j, redirect=False):
        out = []
        if j % 4 == 0:
            out.append('s_add_u32 m0, s%d, %d' % (sM0, stage * 32768 + (j // 4) * 4096))
        out.append('buffer_load_dwordx4 v%d, %s, s%d offen offset:%d lds' % (vD0 if j < 4 else vD1, srd, sDma, (j % 4) * 1024))
        if j == 7:
            out.append('s_add_u32 s%d, s%d, 0x8000' % (sDma, sDma))
            if redirect and cfg.get('AT_REDIR', 0):
                out.append('s_cmp_eq_u32 s%d, s%d' % (sI, sRd0))
                out.append('s_cselect_b32 s%d, s%d, s%d' % (sDma, sG, sDma))
                out.append('s_cmp_eq_u32 s%d, s%d' % (sI, sRd1))
                out.append('s_cselect_b32 s%d, s35, s%d' % (sDma, sDma))
        return out
    def dma_tile(stage, z=0):
        for j in range(8):
            for t in dma_piece(stage, j): a.e(t)
            zero(z)

    if cfg.get('AT_QT', 0):
        a.e('s_lshl_b32 s34, s%d, 13' % sT2)
        a.e('s_add_u32 s34, s34, s%d' % sQ)
        a.e('buffer_load_dword v125, v126, %s, s34 offen' % srd)
    if not F2:
        dma_tile(0)
        for f in range(32):
            if f and f % 4 == 0:
                a.e('s_add_u32 s%d, s%d, 0x1000' % (sQ, sQ))
            a.e('buffer_load_dwordx4 %s, v%d, %s, s%d offen offset:%d' % (ar(4 * f, 4), vLane16, srd, sQ, (f % 4) * 1024))
            zero(6)
        zero(1000)
    a.e('v_mov_b32 v%d, 0' % vL0)
    a.e('v_mov_b32 v%d, 0' % vL1)
    a.e('s_mov_b32 s%d, 0' % sI)

    q = LdsQ()
    def ring(n): return RING + 4 * ((n % 64) % NR)
    def kread(stage, n):
        reg = ring(n); ks, kt = n // 2, n % 2
        return [('ds', 'ds_read_b128 %s, v%d offset:%d' % (vr(reg, 4), vK[stage >> 1], (stage & 1) * 32768 + ks * 2048 + kt * 256), [reg])]
    def vread(stage, dt):
        reg = ring(32 + dt)
        off = (stage & 1) * 32768 + dt * 1024
        return [('ds', 'ds_read_b64_tr_b16 %s, v%d offset:%d' % (vr(reg, 2), vV[stage >> 1], off), [reg + 1000]),
                ('ds', 'ds_read_b64_tr_b16 %s, v%d offset:%d' % (vr(reg + 2, 2), vV[stage >> 1], off + 256), [reg])]
    chk = [True]
    def emit_item(it):
        if isinstance(it, tuple):
            a.e(it[1]); q.issue(it[2], chk[0])
        else:
            a.e(it)

    if not F2: a.e('s_waitcnt vmcnt(32)')
    a.e('s_barrier')
    if STAMP and cfg.get('S1') == 6: stamp_mid(a, 0)
    PD = 8
    for n in range(PD):
        for it in kread(0, n): emit_item(it)
    late = [] if F2 else [dma_piece(1, j) for j in range(8)] + [dma_piece(2, j) for j in range(8)]
    nl = 0
    for n in range(32):
        ks, kt = n // 2, n % 2
        if kt == 0 and not F2:
            a.e('s_waitcnt vmcnt(%d)' % (nl + 30 - 2 * ks))
        q.wait_for(a, q.need([ring(n)]))
        for qs in range(2):
            a.e('%s %s, %s, %s, %s' % (MF, vr(Sreg(0, kt, qs), 4), vr(ring(n), 4), Qreg(ks, qs), '0' if ks == 0 else vr(Sreg(0, kt, qs), 4)))
            if qs == 0 and n + PD < 32:
                for it in kread(0, n + PD): emit_item(it)
            zero(1 + qs)
        q.consume(ring(n))
        if (n < 8 or n % 2 == 1) and late:
            for t in late.pop(0): a.e(t)
            nl += 1
    assert not late
    zero(1000)
    if not F2:
        a.e('s_waitcnt vmcnt(8)')
        a.e('s_barrier')
    for r_ in range(4): a.e('v_mov_b32 v%d, -1' % (P + r_))
    if FUSE:
        a.e('s_lshl_b32 s34, s%d, 4' % sT0)
        a.e('s_lshr_b32 s36, s2, 4')
        a.e('s_add_u32 s34, s34, s36')
        a.e('s_lshl_b32 s34, s34, 16')
        a.e('s_add_u32 s34, s34, %d' % PO_OFF)
        a.e('s_add_u32 s36, s34, 0x8000')
        a.e('s_bitcmp%d_b32 s2, 3' % cfg.get('TSWAP', 1))
        a.e('s_cbranch_scc1 %s_nofill' % name)
        for j in range(16):
            a.e('buffer_store_dwordx4 %s, v%d, %s, s%d offen offset:%d' % (vr(P, 4), vD0 if j % 8 < 4 else vD1, srd, 34 if j < 8 else 36, (j % 4) * 1024))
        a.label('%s_nofill' % name)
    else:
        a.e('s_lshl_b32 s34, s2, 15')
        a.e('s_add_u32 s34, s34, %d' % PO_OFF)
        for j in range(8):
            a.e('buffer_store_dwordx4 %s, v%d, %s, s34 offen offset:%d' % (vr(P, 4), vD0 if j < 4 else vD1, srd, (j % 4) * 1024))

    if cfg.get('AT_DMA2', 0):
        for j in range(4):
            for t in dma_piece(3, j): a.e(t)
    n_tail = cfg.get('NTAIL', 8)
    for n in range(n_tail):
        for it in kread(1, n): emit_item(it)

    def head_wait():
        idx = max(q.need([ring(k2)]) for k2 in range(WG))
        assert idx > q.done
        q.wait_for(a, idx)
    def rowmax(b, qs, dst, tmp):
        r0, r1 = Sreg(b, 0, qs), Sreg(b, 1, qs)
        a.e('v_max3_f32 v%d, v%d, v%d, v%d' % (dst, r0, r0 + 1, r0 + 2))
        a.e('v_max3_f32 v%d, v%d, v%d, v%d' % (dst, dst, r0 + 3, r1))
        a.e('v_max3_f32 v%d, v%d, v%d, v%d' % (dst, dst, r1 + 1, r1 + 2))
        a.e('v_max_f32 v%d, v%d, v%d' % (dst, dst, r1 + 3))
        a.e('v_mov_b32 v%d, v%d' % (tmp, dst))
        a.e('v_permlane16_swap_b32 v%d, v%d' % (tmp, dst))
        a.e('v_max_f32 v%d, v%d, v%d' % (dst, dst, tmp))
        a.e('v_mov_b32 v%d, v%d' % (tmp, dst))
        a.e('v_permlane32_swap_b32 v%d, v%d' % (tmp, dst))
        a.e('v_max_f32 v%d, v%d, v%d' % (dst, dst, tmp))
    for qs in range(2):
        rowmax(0, qs, vMx, vT0)
        for kt in range(2):
            for r in range(4):
                a.e('v_sub_f32 v%d, v%d, v%d' % (Sreg(0, kt, qs) + r, Sreg(0, kt, qs) + r, vMx))
        for r in range(4):
            a.e('v_sub_f32 v%d, 0, v%d' % (NEGM + 4 * qs + r, vMx))

    def softmax_items(b):
        items = []
        for qs in range(2):
            for kt in range(2):
                for pr in range(2):
                    r0 = Sreg(b, kt, qs) + 2 * pr; r1 = r0 + 1
                    items.append('v_exp_f32 v%d, v%d' % (r0, r0))
                    items.append('v_exp_f32 v%d, v%d' % (r1, r1))
                    items.append('v_add_f32 v%d, v%d, v%d' % (vL[qs], vL[qs], r0))
                    items.append('v_cvt_pk_bf16_f32 v%d, v%d, v%d' % (P + 4 * qs + 2 * kt + pr, r0, r1))
                    items.append('v_add_f32 v%d, v%d, v%d' % (vL[qs], vL[qs], r1))
        return items

    LAT = cfg.get('LAT', 8)
    EARLY = cfg.get('EARLY', 22)
    BARG = cfg.get('BARG', 112)
    def body(u, final=False):
        bc, bn = u % 2, (u + 1) % 2
        stK, stV = (u + 1) % 4, u
        mf = [None] * 128
        need = [None] * 64
        for n in range(32):
            if final: break
            ks, kt = n // 2, n % 2
            for qs in range(2):
                pos = qs ^ (kt if cfg.get('AT_GRAY', 1) else 0)
                mf[2 * n + pos] = '%s %s, %s, %s, %s' % (MF, vr(Sreg(bn, kt, qs), 4), vr(ring(n), 4), Qreg(ks, qs), vr(NEGM + 4 * qs, 4) if ks == 0 else vr(Sreg(bn, kt, qs), 4))
            need[n] = ring(n)
        for dt in range(32):
            for qs in range(2):
                pos = qs ^ ((dt & 1) if cfg.get('AT_GRAY', 1) else 0)
                mf[64 + 2 * dt + pos] = '%s %s, %s, %s, %s' % (MF, Oreg(dt, qs), vr(ring(32 + dt), 4), vr(P + 4 * qs, 4), Oreg(dt, qs))
            need[32 + dt] = ring(32 + dt)
        pre = [[] for _ in range(129)]
        if final:
            sm = [] if NO_SM else softmax_items(bc)
            for dt in range(32):
                its = vread(stV, dt)
                sl = 32 + dt - 9
                pre[2 * sl] += [its[0]]; pre[2 * sl + 1] += [its[1]]
            for j, it in enumerate(sm):
                pre[2 * (32 - 9) + (j * 18) // len(sm)].append(it)
            waits = set(range(64, 128, 4))
        else:
            cap = [2] * 128
            def wgap(k):
                g = 2 * (k - k % WG)
                return g
            waits = set(wgap(k) for k in range(WG, 64) if not (BARG <= wgap(k) < 128))
            for g in waits: cap[g] -= 1
            cap[BARG] -= 2; pre[BARG].append(('bar',))
            cap[0] -= 1 if u == 1 else 2
            cap[127] -= 1
            if F2 and u == 0:
                pre[122].append('buffer_atomic_add v125, v124, %s, s86 offen offset:8 sc1' % srd); cap[122] -= 2
                pre[123].append('s_mov_b32 s86, 0x40000000'); cap[123] -= 1
            pre[125].append('s_add_u32 s%d, s%d, 1' % (sI, sI)); cap[125] -= 1
            if u in (1, 2):
                pre[126].append('s_cmp_eq_u32 s%d, s%d' % (sI, sN2)); cap[126] -= 1
            ds = []
            def ring_ok(k):
                return 2 * (k - NR) + 2
            for n in range(n_tail, 32):
                for it in kread(stK, n): ds.append((it, max(0, wgap(n) - EARLY, ring_ok(n)), wgap(n) - LAT))
            for dt in range(32):
                k = 32 + dt
                w = min(wgap(k), BARG)
                for it in vread(stV, dt): ds.append((it, max(w - EARLY, ring_ok(k)), w - LAT))
            for n in range(n_tail):
                for it in kread((u + 2) % 4, n): ds.append((it, max(BARG + 1, ring_ok(64 + n)), 120))
            dl = [d[2] for d in ds]
            for x in range(len(ds) - 2, -1, -1):
                dl[x] = min(dl[x], dl[x + 1] - 1)
            sm = [] if NO_SM else [(it, 2 if it.startswith('v_exp') else 1, 1) for it in softmax_items(bc)]
            Sn = S[bn]
            mx = ['v_max3_f32 v%d, v%d, v%d, v%d' % (vMx, Sn, Sn + 1, Sn + 2)]
            for r in range(3, 15, 2):
                mx.append('v_max3_f32 v%d, v%d, v%d, v%d' % (vMx, vMx, Sn + r, Sn + r + 1))
            mx.append('v_max_f32 v%d, v%d, v%d' % (vMx, vMx, Sn + 15))
            mx.append('v_cmp_lt_f32 vcc, 0x41000000, v%d' % vMx)
            sm += [(it, 1, cfg.get('MX_START', 70)) for it in mx]
            dm = []
            post = {}
            if cfg.get('AT_DMA2', 0):
                def place(stage, js, g0):
                    for x, j in enumerate(js):
                        for it in dma_piece(stage, j):
                            if it.startswith('s_add_u32 m0'): post.setdefault(g0 - 1, []).append(it); cap[g0 - 1] -= 1
                            elif it.startswith('buffer'): pre[g0 + x].append(it); cap[g0 + x] -= 2
                            else: post.setdefault(g0 + x + 1, []).append(it); cap[g0 + x + 1] -= 1
                place((u + 3) % 4, range(4, 8), BARG - 5)
                place(u, range(0, 4), 121)
            elif not NO_DMA:
                g0, gs = cfg.get('DMA_START', 66), cfg.get('DMA_STEP', 5)
                for j in range(8):
                    for x, it in enumerate(dma_piece((u + 3) % 4, j, True)):
                        dm.append((it, g0 + gs * j + (-1 if it.startswith('s_add_u32 m0') else 0)))
            di = si = mi = 0
            last_m0 = -9
            for g in range(128):
                used_ds = False
                while cap[g] > 0:
                    ds_ready = di < len(ds) and ds[di][1] <= g and not used_ds
                    ds_urgent = ds_ready and dl[di] <= g + cfg.get('URG', 0)
                    sm_ready = si < len(sm) and sm[si][2] <= g and sm[si][1] <= cap[g]
                    dm_ready = mi < len(dm) and dm[mi][1] <= g and not (dm[mi][0].startswith('buffer') and (last_m0 == g or (used_ds and cfg.get('DMA_EXCL'))))
                    if ds_urgent:
                        pre[g].append(ds[di][0]); di += 1; cap[g] -= 1; used_ds = True
                    elif sm_ready and sm[si][1] == 2:
                        pre[g].append(sm[si][0]); cap[g] -= 2; si += 1
                    elif dm_ready:
                        if dm[mi][0].startswith('s_add_u32 m0'): last_m0 = g
                        if dm[mi][0].startswith('buffer') and cfg.get('DMA_EXCL'): used_ds = True
                        pre[g].append(dm[mi][0]); mi += 1; cap[g] -= 1
                    elif ds_ready:
                        pre[g].append(ds[di][0]); di += 1; cap[g] -= 1; used_ds = True
                    elif sm_ready:
                        pre[g].append(sm[si][0]); cap[g] -= 1; si += 1
                    else:
                        break
                pre[g] += post.get(g, [])
                if g == 62: assert NO_SM or si >= 40, ('softmax not finished in phase A', si)
                if g == BARG - 1: assert mi == len(dm), 'dma not finished'
                if di < len(ds): assert ds[di][2] + 4 > g, ('ds late', di, g, ds[di])
            assert di == len(ds) and si == len(sm), (di, len(ds), si, len(sm))
            if u == 0 and cfg.get('SHOW'):
                for g in range(128):
                    print(g, 'W' if g in waits else ' ', [ (x[1] if len(x) > 1 else 'BAR').split()[0] if isinstance(x, tuple) else x.split()[0] for x in pre[g]])
        for pos in range(128):
            k = pos // 2
            for it in pre[pos]:
                if isinstance(it, tuple) and it[0] == 'bar':
                    a.e('s_waitcnt vmcnt(%d) lgkmcnt(0)' % (0 if NO_DMA else 8)); q.drained()
                    a.e('s_barrier')
                else:
                    emit_item(it)
            if mf[pos] is None: continue
            if pos == 127 and not final:
                head_wait()
            if pos in waits:
                idx = 0
                for k2 in range(k, min(64, k + (2 if final else WG))):
                    assert need[k2] in q.pending, ('not issued', k2, pos)
                    idx = max(idx, q.need([need[k2]]))
                q.wait_for(a, idx)
            assert q.need([need[k]]) <= q.done and need[k] in q.pending, ('uncovered', pos)
            a.e(mf[pos])
            if pos % 2 == 1: q.consume(need[k])

    def rare(u):
        bn = (u + 1) % 2
        a.label('%s_rare%d' % (name, u), reset=True)
        a.e('s_nop 15')
        for qs in range(2):
            rowmax(bn, qs, vMx, vT0)
            a.e('v_max_f32 v%d, 0, v%d' % (vMx, vMx))
            a.e('v_sub_f32 v%d, 0, v%d' % (vT0, vMx))
            a.e('v_exp_f32 v%d, v%d' % (vT0, vT0))
            for kt in range(2):
                for r in range(4):
                    a.e('v_sub_f32 v%d, v%d, v%d' % (Sreg(bn, kt, qs) + r, Sreg(bn, kt, qs) + r, vMx))
            for r in range(4):
                a.e('v_sub_f32 v%d, v%d, v%d' % (NEGM + 4 * qs + r, NEGM + 4 * qs + r, vMx))
            a.e('v_mul_f32 v%d, v%d, v%d' % (vL[qs], vL[qs], vT0))
            for dt in range(32):
                o = Obase(dt, qs)
                if o < 128:
                    for j in range(4): a.e('v_mul_f32 v%d, v%d, v%d' % (128 + o + j, 128 + o + j, vT0))
                else:
                    for j in range(4): a.e('v_accvgpr_read_b32 v%d, a%d' % (P + j, o + j))
                    for j in range(4): a.e('v_mul_f32 v%d, v%d, v%d' % (P + j, P + j, vT0))
                    for j in range(4): a.e('v_accvgpr_write_b32 a%d, v%d' % (o + j, P + j))
        a.e('s_nop 3')
        a.e('s_branch %s_back%d' % (name, u))

    head_wait()
    if STAMP and (not FUSE or cfg.get('S1') == 4): stamp_mid(a, 76)
    if STAMP and cfg.get('S1') == 6: stamp_mid(a, 1)
    a.raw('.p2align 6')
    a.label('%s_loop' % name)
    a.record = []
    qstate0 = q.state()
    saved = {}
    for u in range(4):
        body(u)
        a.e('s_cbranch_vccnz %s_rare%d' % (name, u))
        a.label('%s_back%d' % (name, u))
        if u in (1, 2):
            a.e('s_cbranch_scc1 %s_final%d' % (name, u + 1))
            saved[u + 1] = (copy.deepcopy(q), list(a.hist))
        assert q.state() == qstate0, (q.state(), qstate0)
    a.e('s_branch %s_loop' % name)
    rec = [x[1] for x in a.record if x[0] == 'ins']
    a.record = None
    viol = check_seq(rec + rec[:40])
    assert not viol, viol
    loop_len = len(rec)

    for u in (2, 3):
        a.label('%s_final%d' % (name, u))
        q.__dict__.update(saved[u][0].__dict__); a.hist = saved[u][1]
        q.pending = set()
        if cfg.get('AT_TOUCH', 0):
            a.e('s_lshr_b32 s34, s2, 3')
            a.e('s_lshl_b32 s34, s34, 15')
            a.e('s_add_u32 s34, s34, %d' % W2_OFF)
            a.e('buffer_load_dword v125, v127, %s, s34 offen' % srd)
            a.e('s_sub_u32 s34, s34, %d' % W2_OFF)
            a.e('s_min_u32 s34, s34, %d' % (4 << 15))
            a.e('s_add_u32 s34, s34, %d' % TPC_OFF)
            a.e('buffer_load_dword v125, v127, %s, s34 offen' % srd)
            a.e('s_getpc_b64 s[60:61]')
            lbl = '%s_np%d' % (name, u)
            a.label(lbl)
            a.e('s_add_u32 s60, s60, tail_kernel-%s' % lbl)
            a.e('s_addc_u32 s61, s61, 0')
            a.e('v_min_u32 v124, tail_kernel_end-tail_kernel, v127')
            a.e('global_load_dword v125, v124, s[60:61]')
        body(u, final=True)
        if u == 2:
            a.e('s_branch %s_epi' % name)
    a.label('%s_epi' % name)
    if STAMP and (not FUSE or cfg.get('S1') == 4): stamp_mid(a, 77)
    a.e('s_cmp_eq_u32 s%d, 0' % sValid)
    a.e('s_cbranch_scc1 %s_%s' % (name, 'sig' if FUSE else 'end'))
    a.e('s_nop 15')
    for qs in range(2):
        l = vL[qs]
        a.e('v_mov_b32 v%d, v%d' % (vT0, l))
        a.e('v_permlane16_swap_b32 v%d, v%d' % (vT0, l))
        a.e('v_add_f32 v%d, v%d, v%d' % (l, l, vT0))
        a.e('v_mov_b32 v%d, v%d' % (vT0, l))
        a.e('v_permlane32_swap_b32 v%d, v%d' % (vT0, l))
        a.e('v_add_f32 v%d, v%d, v%d' % (l, l, vT0))
    a.e('v_cmp_gt_u32 vcc, 0x100, v%d' % vLane16)
    a.e('v_cndmask_b32 v0, v%d, v%d, vcc' % (NEGM + 4, NEGM))
    a.e('v_cndmask_b32 v1, v%d, v%d, vcc' % (vL1, vL0))
    a.e('v_log_f32 v1, v1')
    a.e('v_sub_f32 v0, v1, v0')
    a.e('v_lshrrev_b32 v2, 2, v%d' % vLane16)
    a.e('s_mov_b64 exec, 0xffffffff')
    a.e('buffer_store_dword v0, v2, %s, s%d offen' % (srd, sMl))
    a.e('s_mov_b64 exec, -1')
    a.e('v_rcp_f32 v4, v%d' % vL0)
    a.e('v_rcp_f32 v5, v%d' % vL1)
    a.dense = True
    sm0 = a.store_mod; a.store_mod = cfg.get('AT_SM', sm0)
    t = 0
    for D in range(16):
        for qs in range(2):
            f = D * 2 + qs
            tmp = RING + 4 * (t % 8); t += 1
            srcs = []
            for e in range(2):
                o = Obase(2 * D + e, qs)
                if o < 128:
                    srcs.append(128 + o)
                else:
                    s_ = 8 + 8 * (f % 3) + 4 * e
                    for j in range(4): a.e('v_accvgpr_read_b32 v%d, a%d' % (s_ + j, o + j))
                    srcs.append(s_)
            for e in range(2):
                for j in range(2):
                    r_ = vr(srcs[e] + 2 * j, 2)
                    a.e('v_pk_mul_f32 %s, %s, v[4:5] op_sel:[0,%d] op_sel_hi:[1,%d]' % (r_, r_, qs, qs))
            for e in range(2):
                for j in range(2):
                    a.e('v_cvt_pk_f16_f32 v%d, v%d, v%d' % (tmp + 2 * e + j, srcs[e] + 2 * j, srcs[e] + 2 * j + 1))
            if f: a.e('s_add_u32 s%d, s%d, 0x1000' % (sOut, sOut))
            a.e('buffer_store_dwordx4 %s, v%d, %s, s%d offen' % (vr(tmp, 4), vLane16, srd, sOut))
    a.store_mod = sm0
    a.dense = False
    if cfg.get('AT_BACK', 0):
        if cfg.get('AT_BACK31', 1):
            a.e('s_cmp_eq_u32 s%d, 31' % sN2)
            a.e('s_cbranch_scc1 %s_nb' % name)
        a.e('s_sub_u32 s%d, s%d, 0x7000' % (sOut, sOut))
        a.e('s_waitcnt vmcnt(%d)' % (32 - 8 * cfg['AT_BACK']))
        for j in range(cfg['AT_BACK']):
            a.e('buffer_load_dword v125, v126, %s, s%d offen' % (srd, sOut))
            a.e('s_add_u32 s%d, s%d, 0x2000' % (sOut, sOut))
        a.label('%s_nb' % name)
    if FUSE:
        a.label('%s_sig' % name, reset=True)
        a.e('s_lshl_b32 s34, s%d, 3' % sT0)
        a.e('s_add_u32 s34, s34, s%d' % sT1)
        a.e('s_lshl_b32 s34, s34, 7')
        a.e('s_add_u32 s34, s34, %d' % CNT_OFF)
        a.e('v_mov_b32 v2, 1')
        a.e('v_mov_b32 v3, 0')
        a.e('s_lshl_b32 s35, s%d, 6' % sWave)
        a.e('v_lshrrev_b32 v0, 4, v%d' % vLane16)
        if F2:
            a.e('s_and_b32 s36, s2, 3')
            a.e('s_lshl_b32 s36, s36, 4')
            a.e('s_lshr_b32 s37, s2, 4')
            a.e('s_add_u32 s36, s36, s37')
            a.e('s_lshl_b32 s36, s36, 6')
            a.e('s_lshl_b32 s37, s25, 5')
            a.e('s_add_u32 s36, s36, s37')
            a.e('s_add_u32 s37, s36, 95')
            a.e('s_min_u32 s37, s37, 7999')
            a.e('s_lshr_b32 s37, s37, 6')
            a.e('s_max_u32 s36, s36, 32')
            a.e('s_sub_u32 s36, s36, 32')
            a.e('s_lshr_b32 s36, s36, 6')
            a.e('v_add_u32 v6, s36, v0')
            a.e('v_min_u32 v6, s37, v6')
            a.e('v_lshlrev_b32 v6, 7, v6')
            a.e('v_add_u32 v6, %d, v6' % TC_OFF)
            if cfg.get('FUSE3', 1):
                a.e('v_mov_b32 v8, 8')
                a.e('v_mov_b32 v9, %d' % (RC_OFF + 8 * 128 - 8))
                a.e('v_mov_b32 v10, 100')
                a.e('v_cmp_eq_u32 vcc, 63, v0')
                a.e('v_cndmask_b32 v6, v6, v9, vcc')
                a.e('v_cndmask_b32 v8, v8, v10, vcc')
                poll(a, '%s_pg' % name, 6, 7, 'v8', 38, 8)
            else:
                poll(a, '%s_pg' % name, 6, 7, 8, 38, 8)
        a.e('v_add_u32 v0, s35, v0')
        a.e('s_waitcnt vmcnt(0)')
        a.e('s_mov_b64 exec, 1')
        a.e('buffer_atomic_add v2, v3, %s, s34 offen sc1' % srd)
        a.e('s_mov_b64 exec, -1')
        if STAMP and cfg.get('S1') == 4: stamp_mid(a, 2)
        a.e('s_barrier')
        a.e('s_branch tail_body')
    else:
        if STAMP: stamp_end(a, sWave, '%s_end' % name)
    a.label('%s_end' % name)
    a.e('s_endpgm')
    for u in range(4):
        rare(u)
    if F2: return None
    return dict(name=name, vgpr=512, sgpr=96, accum=256, grid=256, block=256, lds=163840 if FUSE else 131072, loop_len=loop_len)
```

```python
from asmlib import *
from layout import *
MF = 'v_mfma_f32_16x16x32_bf16'

def make_srd(a, d, ptr, nbytes):
    a.e('s_mov_b32 s%d, s%d' % (d, ptr))
    a.e('s_and_b32 s%d, s%d, 0xffff' % (d + 1, ptr + 1))
    a.e('s_mov_b32 s%d, %d' % (d + 2, nbytes))
    a.e('s_mov_b32 s%d, 0x00020000' % (d + 3))

class VmQ:
    def __init__(self): self.n = 0; self.done = 0; self.where = {}
    def issue(self, key=None):
        self.n += 1
        if key is not None: self.where[key] = self.n
    def wait(self, a, key):
        idx = self.where[key]
        if idx <= self.done: return
        N = min(self.n - idx, 63)
        a.e('s_waitcnt vmcnt(%d)' % N); self.done = self.n - N
    def wait_all(self, a):
        if self.done < self.n:
            a.e('s_waitcnt vmcnt(0)'); self.done = self.n

class LgQ(VmQ):
    def wait(self, a, key):
        idx = self.where[key]
        if idx <= self.done: return
        N = min(self.n - idx, 15)
        a.e('s_waitcnt lgkmcnt(%d)' % N); self.done = self.n - N
    def wait_all(self, a):
        if self.done < self.n:
            a.e('s_waitcnt lgkmcnt(0)'); self.done = self.n

def quad_reduce(a, op, reg, tmp):
    a.e('v_mov_b32 v%d, v%d' % (tmp, reg))
    a.e('v_permlane16_swap_b32 v%d, v%d' % (tmp, reg))
    a.e('%s v%d, v%d, v%d' % (op, reg, reg, tmp))
    a.e('v_mov_b32 v%d, v%d' % (tmp, reg))
    a.e('v_permlane32_swap_b32 v%d, v%d' % (tmp, reg))
    a.e('%s v%d, v%d, v%d' % (op, reg, reg, tmp))

import struct
def f2u(x): return struct.unpack('<I', struct.pack('<f', x))[0]
def fhex(x): return '0x%08x' % f2u(x)

def code_prefetch(a, name, vtmp, vdst, n, sp=60, start=None, end=None, back=True, part_sgpr=None, vtid=0):
    start = start or name; end = end or (name + '_end')
    a.e('s_getpc_b64 s[%d:%d]' % (sp, sp + 1))
    lbl = '%s_pf%d' % (name, len(a.lines))
    a.label(lbl)
    a.e('s_add_u32 s%d, s%d, %s-%s' % (sp, sp, start, lbl))
    a.e('s_addc_u32 s%d, s%d, %s' % (sp + 1, sp + 1, '-1' if back else '0'))
    a.e('v_lshlrev_b32 v%d, 7, v%d' % (vtmp, vtid))
    if part_sgpr is not None: a.e('v_add_u32 v%d, s%d, v%d' % (vtmp, part_sgpr, vtmp))
    for k in range(n):
        if k: a.e('v_add_u32 v%d, 0x8000, v%d' % (vtmp, vtmp))
        a.e('v_min_u32 v%d, %s-%s, v%d' % (vdst, end, start, vtmp))
        a.e('global_load_dword v%d, v%d, s[%d:%d]' % (vdst, vdst, sp, sp + 1))
        vdst += 1
    return n

def l2_touch(a, srd, base, nbytes, vtmp, vdst, stmp, vq=None, gran=128, base_sgpr=None, nparts=32, part_expr=None):
    per = 256 * gran
    sh = {128: 7, 64: 6}[gran]
    if part_expr is None:
        a.e('s_lshr_b32 s%d, s2, 3' % stmp)
    else:
        part_expr(stmp)
    a.e('s_mul_i32 s%d, s%d, %d' % (stmp, stmp, per))
    if base_sgpr is not None: a.e('s_add_u32 s%d, s%d, s%d' % (stmp, stmp, base_sgpr))
    a.e('s_add_u32 s%d, s%d, %d' % (stmp, stmp, base))
    a.e('v_lshlrev_b32 v%d, %d, v0' % (vtmp, sh))
    n = (nbytes + per * nparts - 1) // (per * nparts)
    for k in range(n):
        if k: a.e('s_add_u32 s%d, s%d, %d' % (stmp, stmp, per * nparts))
        a.e('buffer_load_dword v%d, v%d, %s, s%d offen' % (vdst, vtmp, srd, stmp))
        if vq is not None: vq.issue()

class Stream:
    def __init__(self, a, vq, pace):
        self.a = a; self.vq = vq; self.pace = pace; self.q = []; self.last = -10**9; self.issued = set()
    def add(self, pre, ins, key, ready=None, cost=1.0):
        self.q.append((pre, ins, key, ready, cost))
    def _issue(self):
        pre, ins, key, ready, cost = self.q.pop(0)
        for p in pre: self.a.e(p)
        self.a.e(ins); self.vq.issue(key); self.issued.add(key)
        self.last = max(self.last + self.pace, self.a.clock - self.pace // 2) + (cost - 1.0) * self.pace
    def tick(self):
        if self.q and self.a.clock - self.last >= self.pace and (self.q[0][3] is None or self.q[0][3]()):
            self._issue(); return True
        return False
    def force(self, key):
        while key not in self.issued:
            assert self.q[0][3] is None or self.q[0][3](), ('stream blocked', self.q[0][2], key)
            self._issue()
    def burst(self, n):
        for _ in range(n):
            if self.q and (self.q[0][3] is None or self.q[0][3]()): self._issue()
    def wait(self, key):
        self.force(key); self.vq.wait(self.a, key)

class MStream:
    def __init__(self, a, vq, pace, nq):
        self.a = a; self.vq = vq; self.pace = pace; self.qs = [[] for _ in range(nq)]; self.last = -10**9; self.issued = set(); self.loc = {}; self.look = 24; self.pace2 = 80
    def add(self, qi, need, pre, ins, key, ready=None):
        self.qs[qi].append((need, pre, ins, key, ready)); self.loc[key] = qi
    def _issue(self, qi):
        need, pre, ins, key, ready = self.qs[qi].pop(0)
        for p in pre:
            self.a.e(p)
            if p.startswith('buffer_'): self.vq.issue()
        self.a.e(ins); self.vq.issue(key); self.issued.add(key)
        self.last = self.a.clock
    def _best(self):
        c = [(q[0][0], i) for i, q in enumerate(self.qs) if q and (q[0][4] is None or q[0][4]())]
        return min(c)[1] if c else None
    def tick(self):
        if self.a.clock - self.last < self.pace: return False
        if self.vq.n - self.vq.done >= self.look and self.a.clock - self.last < self.pace2: return False
        b = self._best()
        if b is None: return False
        self._issue(b); return True
    def burst(self, n):
        for _ in range(n):
            b = self._best()
            if b is None: return
            self._issue(b)
    def wait(self, key):
        late = 0
        while key not in self.issued:
            q = self.qs[self.loc[key]]
            assert q[0][4] is None or q[0][4](), ('stream blocked', q[0][3], key)
            self._issue(self.loc[key]); late += 1
        if late: print('  WARNING: late issue', key, late)
        self.slack = getattr(self, 'slack', []) + [(key, self.vq.n - self.vq.where[key])]
        self.vq.wait(self.a, key)
    def empty(self): return not any(self.qs)

class F:
    __slots__ = ('kind', 'text', 'post', 'fn', 'ins')
    def __init__(self, kind, text=None, post=None, fn=None):
        self.kind = kind; self.text = text; self.post = post; self.fn = fn
        self.ins = Ins(text) if text else None
    def emit(self, a):
        n0 = len(a.sizes)
        if self.fn: self.fn()
        if self.text: a.e(self.text)
        if self.post: self.post()
        return len(a.sizes) - n0
def FV(text): return F('v', text)
def FS(text): return F('s', text)
def FD(text, lq, key=None): return F('d', text, post=lambda: lq.issue(key))
def FW(fn): return F('w', fn=fn)
def FM(text, vq, key=None): return F('m', text, post=lambda: vq.issue(key))
def indep(x, y):
    a_, b_ = x.ins, y.ins
    return not (a_.w & (b_.r | b_.w)) and not (a_.r & b_.w)

class GStream(MStream):
    def __init__(self, *k):
        MStream.__init__(self, *k); self.cur = []; self.due = -10**9
    def _emit1(self):
        t, key = self.cur.pop(0)
        self.a.e(t)
        if t.startswith('buffer_') or t.startswith('global_'):
            self.vq.issue(key); self.last = self.a.clock
            self.due = min(self.a.clock, max(self.due + self.pace, self.a.clock - self.pace))
            if key is not None: self.issued.add(key)
    def flush(self):
        while self.cur: self._emit1()
    def _issue(self, qi):
        self.flush(); self._load(qi); self.flush()
    def _load(self, qi):
        need, pre, ins, key, ready = self.qs[qi].pop(0)
        self.cur = [(p, None) for p in pre] + [(ins, key)]
    def want(self):
        p = self.pace if self.vq.n - self.vq.done < self.look else max(self.pace, self.pace2)
        if not self.cur:
            if self.a.clock + 32 - self.due < p: return None
            b = self._best()
            if b is None: return None
            self._load(b)
        h = self.cur[0][0]
        if not h.startswith('s_') and self.a.clock + 4 - self.due < p: return None
        return h
    def wait(self, key):
        if key not in self.issued: self.flush()
        MStream.wait(self, key)
    def tick(self):
        if self.cur: self.flush(); return True
        return MStream.tick(self)
    def empty(self): return not self.cur and MStream.empty(self)

MAXD = [1]
class Sched:
    def __init__(self, a, st):
        self.a = a; self.st = st; self.q = []; self.vmcap = 2; self.maxd = MAXD[0]
    def add(self, items, front=False):
        if front: self.q[0:0] = items
        else: self.q.extend(items)
    def flush(self):
        while self.q: self.gap(10**6, vm=False)
    def gap(self, cap=2, vm=True):
        a, st, q = self.a, self.st, self.q
        used = 0; lastv = False; nd = 0
        if cap <= 0: return 0
        if q and q[0].kind == 'm':
            q.pop(0).emit(a); used += 2
        elif vm and st is not None:
            h = st.want()
            if h is not None and not h.startswith('s_') and cap >= self.vmcap:
                st._emit1(); used += 2
        while used < cap:
            h = st.want() if (vm and st is not None) else None
            if q and q[0].kind == 'd' and not lastv and (nd < self.maxd or cap > 2):
                used += q.pop(0).emit(a); nd += 1; continue
            if h is not None and h.startswith('s_'):
                st._emit1(); used += 1; lastv = False; continue
            if not q: break
            it = q[0]
            if it.kind in 'dm':
                if cap > 1000: used += q.pop(0).emit(a); lastv = False; continue
                j = 1
                while j < len(q) and q[j].kind in 'dm': j += 1
                if j < len(q) and j <= 12 and q[j].kind == 'v' and all(indep(q[i], q[j]) for i in range(j)):
                    used += q.pop(j).emit(a); lastv = True; continue
                break
            if it.kind == 'v' and used == 0 and cap > 1 and len(q) > 1 and q[1].kind == 'd' and indep(it, q[1]):
                used += q.pop(1).emit(a); nd += 1; continue
            if it.kind == 'x':
                if cap - used < 2:
                    break
                q.pop(0).emit(a); used += 2; lastv = True; continue
            n = q.pop(0).emit(a); used += n
            if n: lastv = (it.kind == 'v')
        return used

def poll(a, label, vaddr, vtmp, need, scnt, offset=0, base='s[4:5]', slp=1):
    a.e('s_mov_b32 s%d, 0' % scnt)
    a.label(label)
    a.e('global_load_dword v%d, v%d, %s offset:%d sc1' % (vtmp, vaddr, base, offset))
    a.e('s_waitcnt vmcnt(0)')
    a.e('v_cmp_gt_u32 vcc, %s, v%d' % (need, vtmp))
    a.e('s_cbranch_vccz %s_ok' % label)
    a.e('s_sleep %d' % slp)
    a.e('s_add_u32 s%d, s%d, 1' % (scnt, scnt))
    a.e('s_cmp_lt_u32 s%d, 0x80000' % scnt)
    a.e('s_cbranch_scc1 %s' % label)
    a.label(label + '_ok')
```

```python
import math
from common import *
from attn16 import stamp_begin, stamp_mid, stamp_end, attn_early_setup, attn_early_loads

def gen_in(a, name='in_kernel', cfg=None):
    cfg = cfg or {}
    STAMP = cfg.get('STAMP', False)
    F2 = cfg.get('FUSE2', 1)
    F3 = cfg.get('FUSE3', 1)
    ST2 = STAMP and (not F2 or cfg.get('S1') == 5)
    RW = 52; NW = 192; TB = 208
    vLane, vLane16, vK, vRow, vI, vQ4, vX, vSw, vSr = 192, 193, 194, 195, 196, 197, 198, 199, 200
    vN = 202
    C1, C2, G, PK, SS = 204, 206, 208, 216, 224
    SQ2 = SS + 16
    sWave, sT, sCG, sW, sA, sB, sC = 3, 6, 7, 12, 13, 14, 15
    STL = 131072 if F2 else 65536
    ws = 's[8:11]'
    def acc(t, ts): return (t * 4 + ts) * 4

    if F3:
        a.raw('.p2align 8'); a.label(name, reset=True); a.label('in_body')
        a.e('s_nop 1')
    else:
        kernel_begin(a, name)
    a.e('s_and_b32 s20, s2, 7')
    a.e('s_lshr_b32 s21, s2, 4')
    a.e('s_lshl_b32 s%d, s20, 4' % sT)
    a.e('s_add_u32 s%d, s%d, s21' % (sT, sT))
    if not F3:
        a.e('s_cmp_ge_u32 s2, 256')
        a.e('s_cbranch_scc1 %s_end' % name)
        if not F2:
            a.e('s_cmp_ge_u32 s%d, 125' % sT)
            a.e('s_cbranch_scc1 %s_end' % name)
        a.e('s_load_dwordx2 s[4:5], s[0:1], 80')
        a.e('s_load_dwordx2 s[16:17], s[0:1], 0')
        if STAMP: stamp_begin(a)
    def role_signal(vone, voob, tag):
        a.e('s_cmp_eq_u32 s%d, 0' % sWave)
        a.e('s_cselect_b32 s87, s87, 0x40000000')
        a.e('buffer_atomic_add v%d, v%d, %s, s87 offen sc1' % (vone, voob, ws))
    if F2:
        a.e('s_lshl_b32 s86, s%d, 7' % sT)
        a.e('s_add_u32 s86, s86, %d' % TC_OFF)
        a.e('s_cmp_lt_u32 s%d, 125' % sT)
        a.e('s_cbranch_scc1 %s_work' % name)
        a.e('s_mov_b32 s86, 0x40000000')
        a.e('v_lshrrev_b32 v1, 6, v0')
        a.e('v_and_b32 v%d, 63, v0' % vLane)
        a.e('v_readfirstlane_b32 s%d, v1' % sWave)
        a.e('v_lshlrev_b32 v%d, 4, v%d' % (vLane16, vLane))
        if F3:
            a.e('v_mov_b32 v125, 32')
            poll(a, '%s_pz' % name, 125, 126, 4, 34, 0, 's[88:89]', cfg.get('P1_SLP', 8))
            a.e('s_barrier')
            role_signal(124, 123, 0)
        else:
            a.e('s_waitcnt lgkmcnt(0)')
            make_srd(a, 8, 4, WS_BYTES)
        attn_early_setup(a, sWave, vLane, vLane16, 128)
        poll(a, '%s_pi' % name, 128, 129, 8, 34)
        for g_ in attn_early_loads(vLane16, 128):
            for t_ in g_: a.e(t_)
        a.e('s_waitcnt vmcnt(0)')
        a.e('s_branch attn_body')
        a.label('%s_work' % name)
    a.e('s_bfe_u32 s%d, s2, 0x10003' % sCG)
    a.e('v_lshrrev_b32 v1, 6, v0')
    a.e('v_and_b32 v%d, 63, v0' % vLane)
    a.e('v_readfirstlane_b32 s%d, v1' % sWave)
    a.e('v_lshlrev_b32 v%d, 4, v%d' % (vLane16, vLane))
    a.e('v_lshrrev_b32 v%d, 4, v%d' % (vQ4, vLane))
    a.e('v_and_b32 v%d, 15, v%d' % (vI, vLane))
    a.e('v_lshlrev_b32 v%d, 10, v%d' % (vX, vI))
    a.e('v_lshl_add_u32 v%d, v%d, 4, v%d' % (vX, vQ4, vX))
    a.e('s_lshl_b32 s%d, s%d, 16' % (sA, sT))
    a.e('s_lshl_b32 s%d, s%d, 14' % (sB, sWave))
    a.e('s_add_u32 s%d, s%d, s%d' % (sB, sA, sB))
    a.e('s_lshl_b32 s%d, s%d, 2' % (sW, sCG))
    a.e('s_add_u32 s%d, s%d, s%d' % (sW, sW, sWave))
    a.e('s_mov_b32 s46, s%d' % sW)
    a.e('s_mul_i32 s%d, s%d, %d' % (sW, sW, NW * 1024))
    a.e('s_add_u32 s%d, s%d, %d' % (sW, sW, W1_OFF))
    vq = VmQ()
    RAWX = 128
    if F3:
        for j in range(16): vq.issue(('x', j))
    else:
        a.e('s_waitcnt lgkmcnt(0)')
        make_srd(a, 20, 16, 8192000)
        for j in range(16):
            a.e('buffer_load_dwordx4 %s, v%d, s[20:23], s%d offen offset:%d' % (vr(RAWX + 4 * j, 4), vX, sB, 64 * j))
            vq.issue(('x', j))
        if cfg.get('CPF', 1):
            code_prefetch(a, name, 250, 251, 2); vq.issue(); vq.issue()
        make_srd(a, 8, 4, WS_BYTES)
    st = GStream(a, vq, cfg.get('IN_PACE', 64), 1)
    st.look = 100; st.pace2 = 56
    state = dict(cons=-1, wok=not F3, mok=not F3)
    ORD = (0, 2, 1)
    for n in range(NW):
        pre = ['s_add_u32 s58, s%d, %d' % (sW, ORD[n // 64] * 65536 + ((n // 4) % 16) * 4096)] if n % 4 == 0 else []
        st.add(0, n, pre, 'buffer_load_dwordx4 %s, v%d, %s, s58 offen offset:%d' % (ar(4 * (n % RW), 4), vLane16, ws, (n % 4) * 1024), ('w', n),
               (lambda nn=n: state['cons'] >= nn - RW and state['wok'] and (nn < 64 or state['mok'])))
    st.burst(cfg.get('IN_W0', 8))
    vPa, vPn, vPv, vPm = 217, 218, 219, 220
    if F3:
        a.e('s_lshl_b32 s59, s46, 2')
        a.e('v_mov_b32 v%d, s59' % vPa)
        a.e('v_mov_b32 v%d, 8' % vPn)
        a.e('v_cmp_lt_u32 vcc, 31, v%d' % vLane)
        a.e('v_cndmask_b32 v%d, v%d, 32, vcc' % (vPa, vPa))
        a.e('v_cndmask_b32 v%d, v%d, 4, vcc' % (vPn, vPn))
        a.e('s_lshl_b32 s59, s46, 7')
        a.e('s_add_u32 s59, s59, %d' % RC_OFF)
        a.e('v_mov_b32 v%d, s59' % vPm)
    a.e('s_mov_b32 s90, 0xffff0000')
    a.e('v_and_b32 v%d, 1, v%d' % (vK, vQ4))
    a.e('v_mul_u32_u24 v%d, 12, v%d' % (vK, vK))
    a.e('v_xor_b32 v%d, v%d, v%d' % (vK, vK, vI))
    a.e('v_lshlrev_b32 v%d, 4, v%d' % (vK, vK))
    a.e('v_lshl_add_u32 v%d, v%d, 9, v%d' % (vK, vQ4, vK))
    a.e('v_lshrrev_b32 v%d, 2, v%d' % (vN, vI))
    a.e('v_lshlrev_b32 v%d, 3, v%d' % (vN, vN))
    a.e('v_and_b32 v%d, 3, v%d' % (vN + 1, vI))
    a.e('v_add_u32 v%d, v%d, v%d' % (vN, vN, vN + 1))
    a.e('v_lshlrev_b32 v%d, 5, v%d' % (vRow, vN))
    a.e('v_and_b32 v%d, 1, v%d' % (vN + 1, vQ4))
    a.e('v_lshl_add_u32 v%d, v%d, 4, v%d' % (vRow, vN + 1, vRow))
    a.e('v_mul_u32_u24 v%d, 12, v%d' % (vN + 1, vN + 1))
    a.e('v_xor_b32 v%d, v%d, v%d' % (vN, vN, vN + 1))
    a.e('v_lshlrev_b32 v%d, 4, v%d' % (vN, vN))
    a.e('v_lshl_add_u32 v%d, v%d, 9, v%d' % (vN, vQ4, vN))
    a.e('v_lshrrev_b32 v%d, 1, v%d' % (vN + 1, vQ4))
    a.e('v_lshl_add_u32 v%d, v%d, 14, v%d' % (vRow, vN + 1, vRow))
    a.e('v_xor_b32 v%d, 64, v%d' % (vN + 1, vN))
    a.e('s_lshr_b32 s%d, s%d, 1' % (sB, sWave))
    a.e('s_lshl_b32 s%d, s%d, 15' % (sB, sB))
    a.e('s_and_b32 s%d, s%d, 1' % (sC, sWave))
    a.e('s_lshl_b32 s%d, s%d, 8' % (sC, sC))
    a.e('s_add_u32 s%d, s%d, s%d' % (sB, sB, sC))
    a.e('v_add_u32 v%d, s%d, v%d' % (vX, sB, vK))
    a.e('s_mov_b32 s48, s%d' % sA)
    if XF_OFF: a.e('s_add_u32 s48, s48, %d' % XF_OFF)
    vOob, vOne = 201, PK
    a.e('v_cmp_ne_u32 vcc, 0, v%d' % vLane)
    a.e('v_mov_b32 v%d, 0x40000000' % vOne)
    a.e('v_cndmask_b32 v%d, 0, v%d, vcc' % (vOob, vOne))
    a.e('v_mov_b32 v%d, 1' % vOne)
    c1 = -2.0 * math.log2(math.e) * math.sqrt(2.0 / math.pi); c2 = c1 * 0.044715
    for r, v in ((C1, c1), (C2, c2)):
        a.e('v_mov_b32 v%d, %s' % (r, fhex(v))); a.e('v_mov_b32 v%d, %s' % (r + 1, fhex(v)))
    T = G
    p0, p1, nm = vr(T, 2), vr(T + 2, 2), vr(T + 4, 2)
    a.dense = True
    for j in range(16):
        vq.wait(a, ('x', j))
        for d in range(4):
            a.e('v_lshlrev_b32 v%d, 16, v%d' % (8 * j + 2 * d, RAWX + 4 * j + d))
            a.e('v_and_b32 v%d, s90, v%d' % (8 * j + 2 * d + 1, RAWX + 4 * j + d))
        if j == 0:
            a.e('v_pk_add_f32 %s, %s, %s' % (p0, vr(0, 2), vr(2, 2))); a.e('v_pk_add_f32 %s, %s, %s' % (p1, vr(4, 2), vr(6, 2)))
        else:
            for d in range(4): a.e('v_pk_add_f32 %s, %s, %s' % ((p0, p1)[d % 2], (p0, p1)[d % 2], vr(8 * j + 2 * d, 2)))
    if ST2: stamp_mid(a, 4)
    if F3:
        a.e('global_load_dword v%d, v%d, s[88:89] sc1' % (vPv, vPa)); vq.issue('p1')
        a.e('s_barrier')
    st.burst(cfg.get('IN_W1', 8))
    a.e('v_pk_add_f32 %s, %s, %s' % (p0, p0, p1))
    a.e('v_add_f32 v%d, v%d, v%d' % (T, T, T + 1))
    quad_reduce(a, 'v_add_f32', T, T + 1)
    a.e('v_mul_f32 v%d, %s, v%d' % (T + 4, fhex(-1.0 / 512), T))
    for p in range(64):
        r = vr(2 * p, 2)
        a.e('v_pk_add_f32 %s, %s, %s op_sel_hi:[1,0]' % (r, r, nm))
        q = (p0, p1)[p % 2]
        if p < 2: a.e('v_pk_mul_f32 %s, %s, %s' % (q, r, r))
        else: a.e('v_pk_fma_f32 %s, %s, %s, %s' % (q, r, r, q))
        if p % 16 == 15: st.burst(cfg.get('IN_W2', 2))
    a.e('v_pk_add_f32 %s, %s, %s' % (p0, p0, p1))
    a.e('v_add_f32 v%d, v%d, v%d' % (T, T, T + 1))
    quad_reduce(a, 'v_add_f32', T, T + 1)
    a.e('v_mul_f32 v%d, %s, v%d' % (T, fhex(1.0 / 512), T))
    a.e('v_add_f32 v%d, %s, v%d' % (T, fhex(1e-5), T))
    a.e('v_rsq_f32 v%d, v%d' % (T + 4, T))
    if F3:
        vq.wait(a, 'p1')
        a.e('v_cmp_gt_u32 vcc, v%d, v%d' % (vPn, vPv))
        a.e('s_cbranch_vccz %s_p1_ok' % name)
        poll(a, '%s_p1' % name, vPa, vPv, 'v%d' % vPn, 34, 0, 's[88:89]', cfg.get('P1_SLP', 8))
        state['wok'] = True
        st.burst(cfg.get('IN_W3', 12))
        role_signal(vOne, vOob, 1); vq.issue()
    for j4 in range(4):
        for j in range(4 * j4, 4 * j4 + 4):
            for d in range(4):
                r = vr(8 * j + 2 * d, 2)
                a.e('v_pk_mul_f32 %s, %s, %s op_sel_hi:[1,0]' % (r, r, nm))
            for d in range(4):
                r = 8 * j + 2 * d
                a.e('v_cvt_pk_bf16_f32 v%d, v%d, v%d' % (RAWX + 4 * j + d, r, r + 1))
        for j in range(4 * j4, 4 * j4 + 4):
            a.e('ds_write_b128 v%d, %s offset:%d' % (vX, vr(RAWX + 4 * j, 4), 2048 * j))
        st.burst(cfg.get('IN_W4', 4) if F3 else cfg.get('IN_W2', 2))
    a.dense = False
    a.e('s_lshl_b32 s%d, s%d, 12' % (sB, sWave))
    a.e('s_add_u32 s47, s%d, s%d' % (sA, sB))
    a.e('s_waitcnt lgkmcnt(0)')
    a.e('s_barrier')
    if ST2: stamp_mid(a, 0)
    a.e('s_cmp_eq_u32 s%d, 0' % sCG)
    a.e('s_cbranch_scc1 %s_g' % name)
    import copy
    snap = (copy.deepcopy(vq.__dict__), [list(q) for q in st.qs], set(st.issued), st.last, a.clock, a.mfree)

    def npairs(t, blk): return [acc(t, 2 * blk) + 2 * j for j in range(4)]
    def body(isg):
        lq = LgQ(); sc = Sched(a, st); clk = []; deferred = []
        a.e('s_add_u32 s%d, s47, %d' % (sB, G_OFF if isg else U_OFF))
        a.e('s_add_u32 s%d, s%d, 0x8000' % (sC, sB))
        def treads(kk):
            ks = kk % 16; out = []
            for ts in range(4):
                dst = ar(TB + ((kk % 3) * 4 + ts) * 4, 4)
                if kk // 16 != 1: out.append(FD('ds_read_b128 %s, v%d offset:%d' % (dst, vN + (ts & 1), (ts >> 1) * 32768 + ks * 2048), lq, (kk, ts)))
                else: out.append(FD('ds_read_b128 %s, v%d offset:%d' % (dst, vK, (ts >> 1) * 32768 + ks * 2048 + (ts & 1) * 256), lq, (kk, ts)))
            return out
        def nstore(o, t, blk):
            return FM('buffer_store_dwordx4 %s, v%d, %s, s%d offen offset:%d' % (vr(o, 4), vRow, ws, sB if blk == 0 else sC, (t >> 1) * 1024 + (t & 1) * 128), vq)
        def burst(c):
            if isg and c >= 1:
                t, blk = (c - 1) >> 1, (c - 1) & 1
                for j, r in enumerate(npairs(t, blk)):
                    sj, qj = vr(SS + 8 * blk + 2 * j, 2), vr(SQ2 + 8 * blk + 2 * j, 2)
                    if t == 0: a.e('v_pk_mul_f32 %s, %s, %s' % (qj, vr(r, 2), vr(r, 2)))
                    else:
                        a.e('v_pk_fma_f32 %s, %s, %s, %s' % (qj, vr(r, 2), vr(r, 2), qj))
                        a.e('v_pk_add_f32 %s, %s, %s' % (sj, vr(r, 2), vr(npairs(0, blk)[j], 2) if t == 1 else sj))
            if c < 16:
                g = [vr(G + 2 * j, 2) for j in range(4)]; x = [vr(r, 2) for r in npairs(c >> 1, c & 1)]
                for j in range(4): a.e('v_pk_mul_f32 %s, %s, %s' % (g[j], x[j], x[j]))
                for j in range(4): a.e('v_pk_fma_f32 %s, %s, %s, %s' % (g[j], g[j], vr(C2, 2), vr(C1, 2)))
                for j in range(4): a.e('v_pk_mul_f32 %s, %s, %s' % (g[j], g[j], x[j]))
        def rest(c):
            t, blk = c >> 1, c & 1
            x0 = acc(t, 2 * blk); out = []
            for j in range(8): out.append(F('x', 'v_exp_f32 v%d, v%d' % (G + j, G + j)))
            for j in range(8): out.append(FV('v_add_f32 v%d, 1.0, v%d' % (G + j, G + j)))
            for j in range(8): out.append(F('x', 'v_rcp_f32 v%d, v%d' % (G + j, G + j)))
            for j in range(8): out.append(FV('v_mul_f32 v%d, v%d, v%d' % (x0 + j, x0 + j, G + j)))
            if not isg:
                for j in range(4): out.append(FV('v_cvt_pk_bf16_f32 v%d, v%d, v%d' % (x0 + j, x0 + 2 * j, x0 + 2 * j + 1)))
                deferred.append(nstore(x0, t, blk))
                if st.empty() or not cfg.get('IN_DEFER', 0):
                    for _ in range(cfg.get('IN_DN', 3)):
                        if deferred: out.append(deferred.pop(0))
            return out
        def xf_stores():
            out = []
            for j in (range(8) if isg else range(8, 16)):
                if j % 2 == 0: out.append(FS('s_add_u32 s57, s48, %d' % (j * 2048)))
                out.append(FM('buffer_store_dwordx4 %s, v%d, %s, s57 offen offset:%d' % (vr(RAWX + 4 * j, 4), vX, ws, (j % 2) * 2048), vq, 'xf'))
            return out
        QP = RAWX + (32 if isg else 0)
        def q_pack():
            out = []
            for ts in range(4):
                for dd in range(2):
                    o = QP + (ts * 2 + dd) * 4
                    for e in range(2):
                        for j in range(2):
                            r = acc(4 + 2 * dd + e, ts) + 2 * j
                            out.append(FV('v_cvt_pk_bf16_f32 v%d, v%d, v%d' % (o + 2 * e + j, r, r + 1)))
            return out
        def q_stores():
            return [FM('buffer_store_dwordx4 %s, v%d, %s, s%d offen offset:%d' % (vr(QP + (ts * 2 + dd) * 4, 4), vLane16, ws, 50 if ts < 2 else 51, dd * 2048 + (ts & 1) * 1024), vq, 'xf')
                    for ts in range(4) for dd in range(2)]
        plan = {}
        def spread_st(items, k0, per):
            x = 0.0
            for it in items:
                plan.setdefault(k0 + int(x), []).append(it)
                if it.kind == 'm': x += 1.0 / per
        spread_st(xf_stores(), cfg.get('IN_XK', 10), cfg.get('IN_XP', 8))
        spread_st(q_stores(), cfg.get('IN_QK', 32), cfg.get('IN_QP', 8))
        lastst = max(plan)
        a.e('s_lshl_b32 s50, s46, 12')
        a.e('s_add_u32 s50, s50, s%d' % sA)
        a.e('s_add_u32 s50, s50, %d' % QF_OFF)
        a.e('s_add_u32 s51, s50, 0x8000')
        for f in treads(0) + treads(1): f.emit(a)
        ET = 217
        CP = cfg.get('IN_CP', 4)
        for kk in range(48):
            part, ks = kk // 16, kk % 16
            if ks == 0: clk.append(a.clock)
            if ST2 and kk in (16, 32): stamp_mid(a, kk // 16); lq.done = lq.n
            if kk >= 16 and kk % CP == 0 and (kk - 16) // CP < 8:
                c = (kk - 16) // CP
                sc.flush(); st.flush()
                a.dense = True
                if kk == 32:
                    for f in q_pack(): f.emit(a)
                burst(c); a.dense = False
                sc.add(rest(c))
            elif kk == 32:
                sc.flush(); st.flush()
                for f in q_pack(): f.emit(a)
            if F3 and kk == cfg.get('IN_K2A', 5):
                sc.add([FM('global_load_dword v%d, v%d, s[4:5] sc1' % (vPv, vPm), vq, 'p2')], front=True)
            if F3 and kk == cfg.get('IN_K2B', 8):
                st.flush()
                lb = '%s_p2%d' % (name, isg)
                vq.wait(a, 'p2')
                a.e('v_cmp_gt_u32 vcc, 16, v%d' % vPv)
                a.e('s_cbranch_vccz %s_ok' % lb)
                poll(a, lb, vPm, vPv, 16, 34)
                state['mok'] = True
            if kk in plan: sc.add(plan[kk], front=True)
            if F2 and kk == 30:
                sc.flush(); st.flush()
                attn_early_setup(a, sWave, vLane, vLane16, ET)
                if cfg.get('CPF', 1):
                    a.e('s_lshl_b32 s59, s%d, 6' % sWave)
                    a.e('v_add_u32 v%d, s59, v%d' % (ET + 4, vLane))
                    code_prefetch(a, name, ET + 5, ET + 6, 1, start='attn_kernel', end='attn_kernel_end', back=False, vtid=ET + 4); vq.issue()
            lq.wait(a, (kk, 3))
            st.wait(('w', kk * 4 + 3))
            if kk < 46: sc.add(treads(kk + 2), front=True)
            if F2 and not state.get('xsig') and kk > lastst + 3 and (vq.where['xf'] <= vq.done or kk == cfg.get('IN_KSIG', 42)):
                vq.wait(a, 'xf')
                sc.add([FM('buffer_atomic_add v%d, v%d, %s, s86 offen sc1' % (vOne, vOob, ws), vq)]); state['xsig'] = kk
            if F2 and kk == cfg.get('IN_KPOLL', 47):
                sc.add([FM('global_load_dword v%d, v%d, s[4:5] sc1' % (ET + 1, ET), vq, 'poll')], front=True)
            for t4 in range(4):
                n = kk * 4 + t4; t = (0, 4, 4)[part] + t4
                for x, ts in enumerate(range(4) if t4 % 2 == 0 else range(3, -1, -1)):
                    ops = [ar(4 * (n % RW), 4), ar(TB + ((kk % 3) * 4 + ts) * 4, 4)]
                    if part != 1: ops.reverse()
                    a.e('%s %s, %s, %s, %s' % (MF, vr(acc(t, ts), 4), ops[0], ops[1], '0' if ks == 0 else vr(acc(t, ts), 4)))
                    if x == 3: state['cons'] = n
                    cap = 0 if (x == 3 and t4 == 3) else 2
                    left = (CP - 1 - kk % CP) * 16 + (3 - t4) * 4 + 3 - x
                    units = sum(2 if f.kind in 'xm' else 1 for f in sc.q)
                    if kk >= 16 and cap and units > cfg.get('IN_PRESS', 1.5) * left: cap += 1
                    sc.gap(cap)
        sc.add(deferred); sc.flush()
        assert st.empty()
        if cfg.get('V'): print('in', isg, [x[1] for x in st.slack[-48:]], clk + [a.clock], state)
        if ST2: stamp_mid(a, 3)
        early = []
        if F2:
            assert state.get('xsig')
            lb = '%s_pe%d' % (name, isg)
            vq.wait(a, 'poll')
            a.e('v_cmp_gt_u32 vcc, 8, v%d' % (ET + 1))
            a.e('s_cbranch_vccz %s_ok' % lb)
            poll(a, lb, ET, ET + 1, 8, 34)
            a.e('s_barrier')
            early = attn_early_loads(vLane16, ET)
        def eload(n):
            for _ in range(n):
                if early:
                    for t_ in early.pop(0): a.e(t_)
        a.dense = True
        ONE = ET + 5
        a.e('v_mov_b32 v%d, 1.0' % ONE); a.e('v_mov_b32 v%d, 1.0' % (ONE + 1))
        eload(cfg.get('IN_E0', 24))
        for c in range(8, 16):
            burst(c)
            g = [vr(G + 2 * j, 2) for j in range(4)]; x = [vr(r, 2) for r in npairs(c >> 1, c & 1)]
            for j in range(8): a.e('v_exp_f32 v%d, v%d' % (G + j, G + j))
            for j in range(4): a.e('v_pk_add_f32 %s, %s, %s' % (g[j], g[j], vr(ONE, 2)))
            for j in range(8): a.e('v_rcp_f32 v%d, v%d' % (G + j, G + j))
            for j in range(4): a.e('v_pk_mul_f32 %s, %s, %s' % (x[j], x[j], g[j]))
            if not isg:
                x0 = acc(c >> 1, 2 * (c & 1))
                for j in range(4): a.e('v_cvt_pk_bf16_f32 v%d, v%d, v%d' % (x0 + j, x0 + 2 * j, x0 + 2 * j + 1))
            eload(cfg.get('IN_E1', 4 if isg else 6))
        if isg: burst(16)
        else:
            eload(100)
            for c in range(8, 16): nstore(acc(c >> 1, 2 * (c & 1)), c >> 1, c & 1).emit(a)
        if isg:
            for sh in (8, 4, 2, 1):
                for r in range(SS, SS + 32):
                    a.e('v_add_f32_dpp v%d, v%d, v%d row_ror:%d row_mask:0xf bank_mask:0xf' % (r, r, r, sh))
                eload(3)
            a.e('s_lshl_b32 s52, s%d, 9' % sWave)
            a.e('s_add_u32 s52, s52, %d' % STL)
            a.e('v_lshlrev_b32 v%d, 5, v%d' % (vSw, vQ4))
            a.e('v_add_u32 v%d, s52, v%d' % (vSw, vSw))
            a.e('v_lshlrev_b32 v%d, 2, v%d' % (vSr, vLane))
            a.e('v_add_u32 v%d, %d, v%d' % (vSr, STL, vSr))
            a.e('s_mov_b32 exec_lo, 0x00010001'); a.e('s_mov_b32 exec_hi, 0x00010001')
            for x in range(8):
                a.e('ds_write_b128 v%d, %s offset:%d' % (vSw, vr(SS + 4 * x, 4), (x >> 2) * 256 + ((x >> 1) & 1) * 128 + (x & 1) * 16))
            a.e('s_mov_b64 exec, -1')
            a.e('s_waitcnt lgkmcnt(0)')
            a.e('s_barrier')
            R4 = G
            for w in range(4):
                a.e('ds_read2st64_b32 %s, v%d offset0:%d offset1:%d' % (vr(R4 + 2 * w, 2), vSr, 2 * w, 2 * w + 1))
            a.e('v_lshlrev_b32 v%d, 2, v%d' % (vSr, vLane))
            a.e('v_add_u32 v%d, s52, v%d' % (vSr, vSr))
            a.e('s_waitcnt lgkmcnt(0)')
            a.e('v_pk_add_f32 %s, %s, %s' % (vr(R4, 2), vr(R4, 2), vr(R4 + 2, 2)))
            a.e('v_pk_add_f32 %s, %s, %s' % (vr(R4 + 4, 2), vr(R4 + 4, 2), vr(R4 + 6, 2)))
            a.e('v_pk_add_f32 %s, %s, %s' % (vr(R4, 2), vr(R4, 2), vr(R4 + 4, 2)))
            a.e('v_mul_f32 v%d, %s, v%d' % (R4, fhex(1.0 / 512), R4))
            a.e('v_mul_f32 v%d, %s, v%d' % (R4 + 1, fhex(1.0 / 512), R4 + 1))
            a.e('v_fma_f32 v%d, -v%d, v%d, v%d' % (R4 + 1, R4, R4, R4 + 1))
            a.e('v_max_f32 v%d, 0, v%d' % (R4 + 1, R4 + 1))
            a.e('v_add_f32 v%d, %s, v%d' % (R4 + 1, fhex(1e-5), R4 + 1))
            a.e('v_rsq_f32 v%d, v%d' % (R4 + 1, R4 + 1))
            a.e('v_mul_f32 v%d, -v%d, v%d' % (R4, R4, R4 + 1))
            a.e('ds_write2st64_b32 v%d, v%d, v%d offset0:8 offset1:9' % (vSr, R4 + 1, R4))
            a.e('s_waitcnt lgkmcnt(0)')
            for x in range(8):
                a.e('ds_read_b128 %s, v%d offset:%d' % (vr(SS + 4 * x, 4), vSw, 2048 + (x >> 2) * 256 + ((x >> 1) & 1) * 128 + (x & 1) * 16))
            a.e('s_waitcnt lgkmcnt(0)')
            eload(100)
            for t2 in range(4):
                for t in (2 * t2, 2 * t2 + 1):
                    for blk in range(2):
                        for j, r in enumerate(npairs(t, blk)):
                            a.e('v_pk_fma_f32 %s, %s, %s, %s' % (vr(r, 2), vr(r, 2), vr(SS + 8 * blk + 2 * j, 2), vr(SQ2 + 8 * blk + 2 * j, 2)))
                        x0 = acc(t, 2 * blk)
                        for j in range(4): a.e('v_cvt_pk_bf16_f32 v%d, v%d, v%d' % (x0 + j, x0 + 2 * j, x0 + 2 * j + 1))
                for t in (2 * t2, 2 * t2 + 1):
                    for blk in range(2): nstore(acc(t, 2 * blk), t, blk).emit(a)
        a.dense = False
        if F2:
            a.e('s_waitcnt vmcnt(%d)' % (16 if isg else 8))
            a.e('s_lshl_b32 s50, s%d, 6' % sWave)
            a.e('v_add_u32 v0, s50, v%d' % vLane)
            a.e('s_branch attn_body')
        elif STAMP: stamp_end(a, sWave)
    body(False)
    a.e('s_endpgm')
    a.label('%s_g' % name, reset=True)
    vq.__dict__.update(snap[0]); st.qs = snap[1]; st.issued = snap[2]; st.last = snap[3] + (a.clock - snap[4]); st.cur = []; st.due = st.last
    state['cons'] = -1; state['xsig'] = None; state['mok'] = not F3
    body(True)
    a.label('%s_end' % name)
    a.e('s_endpgm')
    if F3: return None
    return dict(name=name, vgpr=512, sgpr=96, accum=256, grid=256, block=256, lds=163840 if F2 else 65536 + 4096)
```

```python
import math
from common import *
from attn16 import stamp_begin, stamp_mid, stamp_end

N_M, N_VO, N_RL, N_DW, N_TP = 128, 64, 40, 0, 12
P = 1040

def gen_prep(a, name='prep_kernel', cfg=None):
    cfg = cfg or {}
    STAMP = cfg.get('STAMP', False)
    total = N_M + N_VO + N_RL + N_DW + N_TP
    F3 = cfg.get('FUSE3', 1)
    NX = 16 if F3 else 0
    def fin():
        if F3: a.e('s_branch in_body')
        else:
            if STAMP: stamp_end(a, 3)
            a.e('s_endpgm')
    kernel_begin(a, name)
    a.e('s_cmp_ge_u32 s2, 256')
    a.e('s_cbranch_scc1 %s_end' % name)
    a.e('s_load_dwordx16 s[16:31], s[0:1], 0')
    a.e('s_load_dwordx2 s[4:5], s[0:1], 80')
    if F3: a.e('s_load_dwordx2 s[88:89], s[0:1], 72')
    if STAMP: stamp_begin(a)
    if cfg.get('CPF', 1):
        a.e('s_lshr_b32 s62, s2, 3')
        a.e('s_min_u32 s62, s62, 5')
        a.e('s_lshl_b32 s62, s62, 15')
        code_prefetch(a, name, 120, 121, 1, end=cfg.get('LAST_END', 'tail_kernel_end'), part_sgpr=62)
    a.e('v_lshrrev_b32 v1, 6, v0')
    a.e('v_and_b32 v2, 63, v0')
    a.e('v_readfirstlane_b32 s3, v1')
    a.e('v_lshlrev_b32 v3, 4, v2')
    a.e('v_lshrrev_b32 v4, 4, v2')
    a.e('v_and_b32 v5, 15, v2')
    a.e('s_waitcnt lgkmcnt(0)')
    make_srd(a, 8, 4, WS_BYTES)
    ws = 's[8:11]'
    if F3:
        a.e('s_lshr_b32 s85, s2, 4')
        a.e('s_lshl_b32 s85, s85, 3')
        a.e('s_and_b32 s56, s2, 7')
        a.e('s_or_b32 s85, s85, s56')
        a.e('s_bfe_u32 s57, s2, 0x10003')
        a.e('s_lshl_b32 s57, s57, 7')
        a.e('s_or_b32 s85, s85, s57')
        make_srd(a, 52, 16, 8192000)
        make_srd(a, 92, 88, 256)
        a.e('s_lshl_b32 s56, s56, 4')
        a.e('s_lshr_b32 s57, s2, 4')
        a.e('s_add_u32 s56, s56, s57')
        a.e('s_lshl_b32 s56, s56, 16')
        a.e('s_lshl_b32 s57, s3, 14')
        a.e('s_add_u32 s56, s56, s57')
        a.e('v_lshlrev_b32 v122, 10, v5')
        a.e('v_lshl_add_u32 v122, v4, 4, v122')
        a.e('v_cmp_ne_u32 vcc, 0, v2')
        a.e('v_mov_b32 v124, 0x40000000')
        a.e('v_cndmask_b32 v123, 0, v124, vcc')
        a.e('v_mov_b32 v124, 1')
        a.e('s_mov_b32 s87, %d' % (RC_OFF + 8 * 128))
        a.e('s_mov_b32 s91, 0x40000000')
    else:
        a.e('s_mov_b32 s85, s2')
    def xload():
        if not F3: return
        for j in range(16):
            a.e('buffer_load_dwordx4 %s, v122, s[52:55], s56 offen offset:%d' % (vr(128 + 4 * j, 4), 64 * j))
    a.e('s_cmp_lt_u32 s85, %d' % N_M)
    a.e('s_cbranch_scc1 %s_m' % name)
    a.e('s_cmp_lt_u32 s85, %d' % (N_M + N_VO))
    a.e('s_cbranch_scc1 %s_vo' % name)
    a.e('s_cmp_lt_u32 s85, %d' % (N_M + N_VO + N_RL))
    a.e('s_cbranch_scc1 %s_rl' % name)
    a.e('s_cmp_lt_u32 s85, %d' % total)
    a.e('s_cbranch_scc1 %s_tp' % name)
    a.e('s_mov_b32 s87, 0x40000000')
    a.e('s_cmp_eq_u32 s85, %d' % total)
    a.e('s_cbranch_scc0 %s_xt' % name)
    a.e('s_mov_b32 s6, %d' % CNT_OFF)
    a.e('s_mov_b32 s91, 32')
    for r_ in range(8, 12): a.e('v_mov_b32 v%d, 0' % r_)
    a.e('v_lshlrev_b32 v6, 4, v0')
    for j in range(7):
        a.e('buffer_store_dwordx4 v[8:11], v6, %s, s6 offen' % ws)
        a.e('s_add_u32 s6, s6, 0x1000')
    a.e('s_branch %s_xt' % name)
    a.label('%s_tp' % name, reset=True)

    a.e('s_sub_u32 s6, s85, %d' % (N_M + N_VO + N_RL + N_DW))
    a.e('s_cmp_lt_u32 s6, 4')
    a.e('s_cselect_b32 s32, s24, s28')
    a.e('s_cselect_b32 s33, s25, s29')
    a.e('s_cselect_b32 s34, 1, 2')
    a.e('s_cselect_b32 s39, 0, 16')
    a.e('s_lshl_b32 s34, s34, 10')
    a.e('s_mul_i32 s35, s34, 31')
    make_srd(a, 12, 32, 0)
    a.e('s_mov_b32 s14, s35')
    a.e('s_lshl_b32 s36, s6, 2')
    a.e('s_add_u32 s36, s36, s3')
    a.e('s_mul_i32 s37, s36, 9216')
    a.e('s_add_u32 s37, s37, %d' % TPC_OFF)
    a.e('s_sub_u32 s36, s36, s39')
    a.e('s_lshl_b32 s36, s36, 6')
    a.e('v_and_b32 v6, 3, v2')
    a.e('v_add_u32 v6, 1, v6')
    a.e('v_mul_lo_u32 v6, v6, s34')
    a.e('v_lshrrev_b32 v7, 2, v2')
    a.e('v_lshlrev_b32 v7, 1, v7')
    a.e('v_add_u32 v7, s36, v7')
    a.e('v_sub_u32 v6, v7, v6')
    for h in range(36):
        m, hi = h // 2, h % 2
        for g2 in range(2):
            a.e('buffer_load_ushort v%d, v6, s[12:15], 0 offen offset:%d' % (16 + 36 * hi + 18 * g2 + m, 32 * g2))
        if h < 35: a.e('v_add_u32 v6, s34, v6')
    xload()
    a.e('s_waitcnt vmcnt(%d)' % NX)
    for d in range(36):
        a.e('v_lshl_or_b32 v%d, v%d, 16, v%d' % (16 + d, 52 + d, 16 + d))
    for q in range(9):
        if q and q % 4 == 0: a.e('s_add_u32 s37, s37, 0x1000')
        a.e('buffer_store_dwordx4 %s, v3, %s, s37 offen offset:%d' % (vr(16 + 4 * q, 4), ws, (q % 4) * 1024))
    fin()
    def rows_dma(srd, nrows, s_src, s_lds):
        for r in range(nrows):
            a.e('s_add_u32 m0, s%d, %d' % (s_lds, r * P))
            a.e('s_add_u32 s45, s%d, %d' % (s_src, r * 3072))
            a.e('buffer_load_dwordx4 v3, %s, s45 offen lds' % srd)

    a.label('%s_m' % name, reset=True)
    make_srd(a, 12, 18, 512 * 1536 * 2)
    a.e('s_lshr_b32 s32, s85, 3')
    a.e('s_and_b32 s33, s85, 7')
    a.e('s_lshl_b32 s87, s33, 7')
    a.e('s_add_u32 s87, s87, %d' % RC_OFF)
    a.e('s_lshl_b32 s34, s32, 5'); a.e('s_lshl_b32 s35, s3, 3'); a.e('s_add_u32 s34, s34, s35'); a.e('s_mul_i32 s34, s34, 3072')
    a.e('s_mul_i32 s36, s3, %d' % (8 * P))
    rows_dma('s[12:15]', 8, 34, 36)
    a.e('s_lshl_b32 s34, s33, 6'); a.e('s_lshl_b32 s35, s3, 4'); a.e('s_add_u32 s34, s34, s35'); a.e('s_mul_i32 s34, s34, 3072')
    a.e('s_add_u32 s34, s34, 1024')
    a.e('s_mul_i32 s36, s3, %d' % (16 * P)); a.e('s_add_u32 s36, s36, %d' % (32 * P))
    rows_dma('s[12:15]', 16, 34, 36)
    a.e('v_lshrrev_b32 v6, 2, v5'); a.e('v_lshlrev_b32 v6, 3, v6'); a.e('v_and_b32 v7, 3, v5'); a.e('v_add_u32 v6, v6, v7')
    a.e('v_mul_u32_u24 v6, %d, v6' % P)
    a.e('v_lshl_add_u32 v6, v4, 4, v6')
    a.e('s_lshr_b32 s36, s3, 1'); a.e('s_lshl_b32 s36, s36, 3'); a.e('s_and_b32 s37, s3, 1'); a.e('s_add_u32 s36, s36, s37')
    a.e('s_mul_i32 s36, s36, %d' % (4 * P)); a.e('s_add_u32 s36, s36, %d' % (32 * P))
    a.e('v_add_u32 v7, s36, v6')
    a.e('s_mul_i32 s34, s33, 192')
    a.e('s_lshl_b32 s35, s32, 2')
    a.e('s_add_u32 s34, s34, s35')
    a.e('s_add_u32 s34, s34, s3')
    a.e('s_lshl_b32 s34, s34, 10')
    a.e('s_add_u32 s34, s34, %d' % (W1_OFF + 128 * 1024))
    a.e('s_mov_b32 s38, %s' % fhex(512 ** -0.5 * math.log2(math.e)))
    xload()
    a.e('s_waitcnt vmcnt(%d)' % NX)
    a.e('s_barrier')
    if STAMP and not F3: stamp_mid(a, 0)
    lq = LgQ()
    def rd(kk):
        b = 32 + 12 * (kk % 5)
        a.e('ds_read_b128 %s, v6 offset:%d' % (vr(b, 4), kk * 64)); lq.issue()
        a.e('ds_read_b128 %s, v6 offset:%d' % (vr(b + 4, 4), kk * 64 + 4 * P)); lq.issue()
        a.e('ds_read_b128 %s, v7 offset:%d' % (vr(b + 8, 4), kk * 64)); lq.issue(kk)
    for kk in range(4): rd(kk)
    for kk in range(16):
        if kk + 4 < 16: rd(kk + 4)
        lq.wait(a, kk)
        b = 32 + 12 * (kk % 5)
        for e in range(2):
            a.e('%s %s, %s, %s, %s' % (MF, vr(16 + 4 * e, 4), vr(b + 4 * e, 4), vr(b + 8, 4), '0' if kk == 0 else vr(16 + 4 * e, 4)))
    for r in range(8):
        a.e('v_mul_f32 v%d, s38, v%d' % (16 + r, 16 + r))
    for d in range(4):
        a.e('v_cvt_pk_bf16_f32 v%d, v%d, v%d' % (24 + d, 16 + 2 * d, 17 + 2 * d))
    a.e('buffer_store_dwordx4 v[24:27], v3, %s, s34 offen' % ws)
    fin()

    def load_strip():
        a.e('v_lshrrev_b32 v7, 3, v2')
        a.e('v_bfe_u32 v8, v2, 4, 1')
        a.e('v_lshlrev_b32 v8, 2, v8')
        a.e('v_and_b32 v9, 7, v2')
        a.e('v_xor_b32 v8, v8, v9')
        a.e('v_mul_lo_u32 v7, v7, s42')
        a.e('v_lshl_add_u32 v7, v8, 4, v7')
        a.e('s_lshl_b32 s41, s42, 3')
        a.e('s_lshl_b32 s43, s3, 4')
        a.e('s_mul_i32 s43, s43, s41')
        a.e('s_add_u32 s40, s40, s43')
        a.e('s_lshl_b32 s44, s3, 14')
        for j in range(16):
            a.e('s_add_u32 m0, s44, %d' % (1024 * j))
            if j: a.e('s_add_u32 s40, s40, s41')
            a.e('buffer_load_dwordx4 v7, s[12:15], s40 offen lds')
        a.e('v_bfe_u32 v8, v2, 2, 2')
        a.e('v_lshl_add_u32 v9, v4, 3, v8')
        a.e('v_lshlrev_b32 v9, 7, v9')
        a.e('v_lshrrev_b32 v8, 1, v8')
        a.e('v_lshl_add_u32 v9, v8, 6, v9')
        a.e('v_and_b32 v8, 3, v2')
        a.e('v_lshlrev_b32 v8, s63, v8')
        a.e('v_add_u32 v8, v8, v9')
        a.e('v_xor_b32 v9, 64, v8')
        a.e('v_add_u32 v10, s59, v8')
        a.e('v_xor_b32 v11, 64, v10')

    a.label('%s_vo' % name, reset=True)
    a.e('s_sub_u32 s6, s85, %d' % N_M)
    a.e('s_lshr_b32 s33, s6, 3')
    a.e('s_and_b32 s32, s6, 7')
    make_srd(a, 12, 20, 512 * 512 * 2)
    make_srd(a, 48, 18, 512 * 1536 * 2)
    a.e('s_lshl_b32 s40, s33, 7')
    a.e('s_mov_b32 s42, 1024')
    a.e('s_mov_b32 s63, 3'); a.e('s_mov_b32 s59, 32')
    load_strip()
    a.e('s_lshl_b32 s34, s32, 6'); a.e('s_lshl_b32 s35, s3, 4'); a.e('s_add_u32 s34, s34, s35'); a.e('s_mul_i32 s34, s34, 3072')
    a.e('s_add_u32 s34, s34, 2048')
    a.e('s_mul_i32 s36, s3, %d' % (16 * P)); a.e('s_add_u32 s36, s36, 65536')
    rows_dma('s[48:51]', 16, 34, 36)
    a.e('s_bitcmp1_b32 s3, 0')
    a.e('s_cselect_b64 vcc, -1, 0')
    a.e('v_cndmask_b32 v8, v8, v9, vcc')
    a.e('v_cndmask_b32 v9, v10, v11, vcc')
    a.e('v_mul_u32_u24 v6, %d, v5' % P)
    a.e('v_lshl_add_u32 v6, v4, 4, v6')
    a.e('s_lshr_b32 s36, s3, 1')
    a.e('s_mul_i32 s37, s36, %d' % (32 * P)); a.e('s_add_u32 s37, s37, 65536')
    a.e('v_add_u32 v6, s37, v6')
    a.e('s_lshr_b32 s34, s33, 1')
    a.e('s_lshl_b32 s34, s34, 4')
    a.e('s_lshl_b32 s35, s32, 1'); a.e('s_add_u32 s35, s35, s36')
    a.e('s_add_u32 s34, s34, s35')
    a.e('s_lshl_b32 s34, s34, 3')
    a.e('s_and_b32 s35, s3, 1'); a.e('s_lshl_b32 s35, s35, 1')
    a.e('s_add_u32 s34, s34, s35')
    a.e('s_and_b32 s35, s33, 1'); a.e('s_lshl_b32 s35, s35, 2')
    a.e('s_add_u32 s34, s34, s35')
    a.e('s_lshl_b32 s34, s34, 10')
    a.e('s_add_u32 s34, s34, %d' % W2_OFF)
    xload()
    a.e('s_waitcnt vmcnt(%d)' % NX)
    a.e('s_barrier')
    if STAMP and not F3: stamp_mid(a, 0)
    lq = LgQ()
    def rd2(kk):
        b = 32 + 16 * (kk % 3)
        for e in range(2):
            a.e('ds_read_b128 %s, v6 offset:%d' % (vr(b + 4 * e, 4), kk * 64 + 16 * P * e)); lq.issue()
        for o in range(2):
            a.e('ds_read_b64_tr_b16 %s, v%d offset:%d' % (vr(b + 8 + 4 * o, 2), 8 + o, kk * 4096)); lq.issue()
            a.e('ds_read_b64_tr_b16 %s, v%d offset:%d' % (vr(b + 8 + 4 * o + 2, 2), 8 + o, kk * 4096 + 512)); lq.issue(kk)
    rd2(0); rd2(1)
    for kk in range(16):
        if kk + 2 < 16: rd2(kk + 2)
        lq.wait(a, kk)
        b = 32 + 16 * (kk % 3)
        for o in range(2):
            for e in range(2):
                acc = vr(16 + 8 * o + 4 * e, 4)
                a.e('%s %s, %s, %s, %s' % (MF, acc, vr(b + 4 * e, 4), vr(b + 8 + 4 * o, 4), '0' if kk == 0 else acc))
    for o in range(2):
        for d in range(4):
            a.e('v_cvt_pk_bf16_f32 v%d, v%d, v%d' % (80 + 4 * o + d, 16 + 8 * o + 2 * d, 17 + 8 * o + 2 * d))
        a.e('buffer_store_dwordx4 %s, v3, %s, s34 offen offset:%d' % (vr(80 + 4 * o, 4), ws, 1024 * o))
    fin()

    a.label('%s_rl' % name, reset=True)
    a.e('s_sub_u32 s6, s85, %d' % (N_M + N_VO))
    a.e('s_mov_b32 s63, 4'); a.e('s_mov_b32 s59, 8')
    a.e('s_cmp_lt_u32 s6, 16')
    a.e('s_cbranch_scc1 %s_rl_mi' % name)
    a.e('s_cmp_lt_u32 s6, 24')
    a.e('s_cbranch_scc1 %s_rl_mo' % name)
    a.e('s_sub_u32 s6, s6, 24')
    a.e('s_lshr_b32 s36, s6, 3')
    a.e('s_and_b32 s33, s6, 7')
    make_srd(a, 12, 30, 1024 * 512 * 2)
    a.e('s_lshl_b32 s40, s33, 7')
    a.e('s_lshl_b32 s37, s36, 19')
    a.e('s_add_u32 s40, s40, s37')
    a.e('s_mov_b32 s42, 1024')
    a.e('s_lshr_b32 s34, s6, 1')
    a.e('s_lshl_b32 s34, s34, 17')
    a.e('s_xor_b32 s37, s6, s36')
    a.e('s_xor_b32 s37, s37, 1')
    a.e('s_and_b32 s37, s37, 1')
    a.e('s_lshl_b32 s37, s37, 16')
    a.e('s_add_u32 s34, s34, s37')
    a.e('s_add_u32 s34, s34, %d' % W3_OFF)
    a.e('s_mov_b32 s35, 4096')
    a.e('s_branch %s_rl_go' % name)
    a.label('%s_rl_mo' % name, reset=True)
    a.e('s_sub_u32 s33, s6, 16')
    a.e('s_mov_b32 s63, 3'); a.e('s_mov_b32 s59, 32')
    make_srd(a, 12, 26, 512 * 512 * 2)
    a.e('s_lshl_b32 s40, s33, 7')
    a.e('s_mov_b32 s42, 1024')
    a.e('s_lshr_b32 s34, s33, 1')
    a.e('s_lshl_b32 s34, s34, 17')
    a.e('s_and_b32 s37, s33, 1')
    a.e('s_lshl_b32 s37, s37, 12')
    a.e('s_add_u32 s34, s34, s37')
    a.e('s_add_u32 s34, s34, %d' % (W2_OFF + 512 * 1024))
    a.e('s_mov_b32 s35, 8192')
    a.e('s_branch %s_rl_go' % name)
    a.label('%s_rl_mi' % name, reset=True)
    make_srd(a, 12, 22, 512 * 1024 * 2)
    a.e('s_lshl_b32 s40, s6, 7')
    a.e('s_mov_b32 s42, 2048')
    a.e('s_xor_b32 s33, s6, 8')
    a.e('s_lshr_b32 s34, s33, 1')
    a.e('s_lshl_b32 s91, s34, 2')
    a.e('s_mov_b32 s87, 0x40000000')
    a.e('s_mul_i32 s34, s34, 192')
    a.e('s_and_b32 s37, s33, 1')
    a.e('s_lshl_b32 s37, s37, 6')
    a.e('s_add_u32 s34, s34, s37')
    a.e('s_lshl_b32 s34, s34, 10')
    a.e('s_add_u32 s34, s34, %d' % W1_OFF)
    a.e('s_mov_b32 s35, 4096')
    a.label('%s_rl_go' % name, reset=True)
    load_strip()
    for r_ in (8, 9, 10, 11): a.e('v_add_u32 v%d, s44, v%d' % (r_, r_))
    a.e('s_lshl_b32 s37, s3, 2')
    a.e('s_mul_i32 s37, s37, s35')
    a.e('s_add_u32 s34, s34, s37')
    for k4 in range(4):
        a.e('s_waitcnt vmcnt(%d)' % (12 - 4 * k4 + 4 * k4))
        for q in range(4):
            b = 16 + 16 * k4 + 4 * q
            ad = 8 + (q >> 1) + 2 * (q & 1)
            a.e('ds_read_b64_tr_b16 %s, v%d offset:%d' % (vr(b, 2), ad, k4 * 4096))
            a.e('ds_read_b64_tr_b16 %s, v%d offset:%d' % (vr(b + 2, 2), ad, k4 * 4096 + 512))
        a.e('s_waitcnt lgkmcnt(0)')
        for q in range(4):
            a.e('buffer_store_dwordx4 %s, v3, %s, s34 offen offset:%d' % (vr(16 + 16 * k4 + 4 * q, 4), ws, 1024 * q))
        if k4 < 3: a.e('s_add_u32 s34, s34, s35')
    a.label('%s_xt' % name)
    if F3:
        a.e('s_cmp_lt_u32 s91, 256')
        a.e('s_cbranch_scc0 %s_ns' % name)
        a.e('s_waitcnt vmcnt(0)')
        a.e('buffer_atomic_add v124, v123, s[92:95], s91 offen sc1')
        a.label('%s_ns' % name)
    xload()
    fin()
    a.label('%s_end' % name)
    a.e('s_endpgm')
    if F3: return dict(name=name, vgpr=512, sgpr=100, accum=256, grid=256, block=256, lds=163840)
    return dict(name=name, vgpr=128, sgpr=96, accum=128, grid=256, block=256, lds=65536 + 64 * P)

def chan_combine(a, P, n, cnt, oA, oB, tmp):
    a.e('v_add_f32 v%d, v%d, v%d' % (oB, P, P + 2))
    a.e('v_add_f32 v%d, v%d, v%d' % (oA, P + 1, P + 3))
    for i in range(2, n):
        a.e('v_add_f32 v%d, v%d, v%d' % (oB, oB, P + 2 * i))
        a.e('v_add_f32 v%d, v%d, v%d' % (oA, oA, P + 2 * i + 1))
    a.e('v_mul_f32 v%d, %s, v%d' % (oB, fhex(1.0 / n), oB))
    a.e('v_mov_b32 v%d, 0' % (tmp + 1))
    for i in range(n):
        a.e('v_sub_f32 v%d, v%d, v%d' % (tmp, P + 2 * i, oB))
        a.e('v_fmac_f32 v%d, v%d, v%d' % (tmp + 1, tmp, tmp))
    a.e('v_mul_f32 v%d, %s, v%d' % (tmp + 1, fhex(float(cnt)), tmp + 1))
    a.e('v_add_f32 v%d, v%d, v%d' % (oA, oA, tmp + 1))
    a.e('v_mul_f32 v%d, %s, v%d' % (oA, fhex(1.0 / (n * cnt)), oA))
    a.e('v_add_f32 v%d, %s, v%d' % (oA, fhex(1e-5), oA))
    a.e('v_rsq_f32 v%d, v%d' % (oA, oA))
    a.e('v_mul_f32 v%d, v%d, v%d' % (oB, oB, oA))
    a.e('v_sub_f32 v%d, 0, v%d' % (oB, oB))
```

```python
import copy
from asmlib import *
from layout import *

class LdsQ:
    def __init__(self):
        self.n = 0; self.done = 0; self.where = {}; self.pending = set()
    def issue(self, regs, check=True):
        self.n += 1
        for r in regs:
            if check: assert r not in self.pending, ('ring WAR', r)
            self.where[r] = self.n; self.pending.add(r)
    def consume(self, r):
        self.pending.discard(r); self.pending.discard(r + 1000)
    def need(self, regs):
        return max([self.where.get(r, 0) for r in regs] + [0])
    def wait_for(self, a, idx):
        if idx <= self.done: return
        N = min(self.n - idx, 15)
        a.e('s_waitcnt lgkmcnt(%d)' % N)
        self.done = self.n - N
    def drained(self):
        self.done = self.n
    def state(self):
        return (self.n - self.done, sorted((self.n - v, k) for k, v in self.where.items() if v > self.done), sorted(self.pending))

MF = 'v_mfma_f32_16x16x32_bf16'

KIDX = [0]
MIDR = {76: 80, 77: 81, 0: 80, 1: 81, 2: 82, 3: 83, 4: 84}
def stamp_begin(a):
    a.e('s_memrealtime s[66:67]')
    a.e('s_memtime s[72:73]')
    for r in range(80, 85): a.e('s_mov_b32 s%d, 0' % r)
    KIDX[0] += 1
CYC = [False]
def stamp_mid(a, reg):
    if CYC[0]:
        a.e('s_memtime s[78:79]')
        a.e('s_waitcnt lgkmcnt(0)')
        a.e('s_cselect_b32 s79, 1, 0')
        a.e('s_sub_u32 s78, s78, s72')
        a.e('s_add_u32 s%d, s78, s66' % MIDR[reg])
        a.e('s_cmp_eq_u32 s79, 1')
        return
    a.e('s_memrealtime s[78:79]')
    a.e('s_waitcnt lgkmcnt(0)')
    a.e('s_mov_b32 s%d, s78' % MIDR[reg])
def stamp_end(a, sWave, endlabel=None, nw=4):
    a.e('s_waitcnt vmcnt(0)')
    a.e('s_memrealtime s[68:69]')
    a.e('s_memtime s[74:75]')
    a.e('s_waitcnt lgkmcnt(0)')
    a.e('s_sub_u32 s74, s74, s72')
    a.e('s_getreg_b32 s71, hwreg(HW_REG_XCC_ID)')
    a.e('s_and_b32 s71, s71, 15')
    a.e('s_lshl_b32 s71, s71, 28')
    a.e('s_or_b32 s74, s74, s71')
    a.e('s_mul_i32 s70, s2, %d' % nw)
    a.e('s_add_u32 s70, s70, s%d' % sWave)
    a.e('s_lshl_b32 s70, s70, 5')
    a.e('s_add_u32 s70, s70, %d' % (TRACE_OFF + (KIDX[0] - 1) * TRACE_STRIDE))
    a.e('s_mov_b64 exec, 1')
    a.e('v_mov_b32 v0, s66'); a.e('v_mov_b32 v1, s68'); a.e('v_mov_b32 v2, s74'); a.e('v_mov_b32 v3, s80')
    a.e('v_mov_b32 v4, s81'); a.e('v_mov_b32 v5, s82'); a.e('v_mov_b32 v6, s83'); a.e('v_mov_b32 v7, s84')
    a.e('v_mov_b32 v8, s70')
    a.e('global_store_dwordx4 v8, v[0:3], s[4:5]')
    a.e('global_store_dwordx4 v8, v[4:7], s[4:5] offset:16')

def attn_salu(a):
    sWave = 40; sM0 = 41; sDma = 42; sQ = 43; sI = 16; sN2 = 17; sValid = 18; sOut = 19; sMl = 20; sT0 = 21; sT1 = 22; sT2 = 23
    a.e('s_and_b32 s%d, s2, 7' % sT0)
    a.e('s_lshr_b32 s%d, s2, 3' % sT1)
    a.e('s_and_b32 s%d, s%d, 3' % (sT2, sT1))
    a.e('s_lshr_b32 s%d, s%d, 2' % (sT1, sT1))
    a.e('s_and_b32 s24, s%d, 3' % sT0)
    a.e('s_lshl_b32 s24, s24, 3')
    a.e('s_add_u32 s24, s24, s%d' % sT1)
    a.e('s_lshl_b32 s24, s24, 2')
    a.e('s_add_u32 s24, s24, s%d' % sWave)
    a.e('s_cmp_lt_u32 s24, 125')
    a.e('s_cselect_b32 s%d, 1, 0' % sValid)
    a.e('s_min_u32 s24, s24, 124')
    a.e('s_lshr_b32 s25, s%d, 2' % sT0)
    a.e('s_mul_i32 s25, s25, 125')
    a.e('s_add_u32 s24, s24, s25')
    a.e('s_lshl_b32 s%d, s24, 15' % sQ)
    a.e('s_mul_i32 s26, s%d, 250' % sT2)
    a.e('s_add_u32 s26, s26, s24')
    a.e('s_lshl_b32 s%d, s24, 17' % sOut)
    a.e('s_lshl_b32 s27, s%d, 10' % sT2)
    a.e('s_add_u32 s%d, s%d, s27' % (sOut, sOut))
    a.e('s_add_u32 s%d, s%d, %d' % (sOut, sOut, OP_OFF))
    a.e('s_lshl_b32 s%d, s24, 9' % sMl)
    a.e('s_lshl_b32 s26, s%d, 7' % sT2)
    a.e('s_add_u32 s%d, s%d, s26' % (sMl, sMl))
    a.e('s_add_u32 s%d, s%d, %d' % (sMl, sMl, ML_OFF))
    a.e('s_add_u32 s%d, s%d, %d' % (sQ, sQ, QF_OFF))
    a.e('s_mul_i32 s27, s%d, 31' % sT2)
    a.e('s_min_u32 s28, s%d, 1' % sT2)
    a.e('s_add_u32 s27, s27, s28')
    a.e('s_add_u32 s27, s27, s25')
    a.e('s_lshl_b32 s%d, s27, 15' % sDma)
    if XF_OFF: a.e('s_add_u32 s%d, s%d, %d' % (sDma, sDma, XF_OFF))
    a.e('s_sub_u32 s%d, 31, s28' % sN2)
    a.e('s_lshl_b32 s%d, s%d, 13' % (sM0, sWave))

def attn_early_setup(a, sW_in, vLane, vLane16, T, qonly=False):
    a.e('s_mov_b32 s40, s%d' % sW_in)
    attn_salu(a)
    a.e('s_add_u32 s34, s27, s17')
    a.e('s_lshr_b32 s34, s34, 1')
    a.e('s_lshr_b32 s36, s27, 1')
    a.e('v_add_u32 v%d, s36, v%d' % (T, vLane))
    a.e('v_min_u32 v%d, s34, v%d' % (T, T))
    a.e('s_lshr_b32 s34, s24, 1')
    a.e('v_mov_b32 v%d, s34' % (T + 1))
    if qonly: a.e('v_mov_b32 v%d, v%d' % (T, T + 1))
    else:
        a.e('v_cmp_lt_u32 vcc, 31, v%d' % vLane)
        a.e('v_cndmask_b32 v%d, v%d, v%d, vcc' % (T, T, T + 1))
    a.e('v_lshlrev_b32 v%d, 7, v%d' % (T, T))
    a.e('v_add_u32 v%d, %d, v%d' % (T, TC_OFF, T))
    a.e('v_add_u32 v%d, s41, v%d' % (T + 2, vLane16))
    a.e('v_add_u32 v%d, 0x1000, v%d' % (T + 3, T + 2))
def attn_early_loads(vLane16, T):
    out = []
    def tile(stage):
        for j in range(8):
            g = []
            if j % 4 == 0: g += ['s_add_u32 m0, s41, %d' % (stage * 32768 + (j // 4) * 4096), 's_nop 0']
            g.append('buffer_load_dwordx4 v%d, s[8:11], s42 offen offset:%d lds' % (T + 2 if j < 4 else T + 3, (j % 4) * 1024))
            if j == 7: g.append('s_add_u32 s42, s42, 0x8000')
            out.append(g)
    tile(0)
    for f in range(32):
        g = ['s_add_u32 s43, s43, 0x1000'] if (f and f % 4 == 0) else []
        g.append('buffer_load_dwordx4 %s, v%d, s[8:11], s43 offen offset:%d' % (ar(4 * f, 4), vLane16, (f % 4) * 1024))
        out.append(g)
    tile(1); tile(2)
    return out

def gen_attn(a, name='attn_kernel', cfg=None):
    cfg = cfg or {}
    DV = cfg.get('DV', 9)
    DK = cfg.get('DK', 7)
    BARPOS = cfg.get('BARPOS', 31 - DV + 4)
    WG = cfg.get('WAITGROUP', 4)
    DMA_SLOTS = cfg.get('DMA_SLOTS', [2, 6, 10, 14, 18, 22, 26, 30])
    NO_DMA = cfg.get('NO_DMA', False)
    NO_SM = cfg.get('NO_SM', False)
    STAMP = cfg.get('STAMP', False)
    FUSE = cfg.get('FUSE', 1)
    S = [0, 16]; P = 32; RING = 40; NR = 16
    NEGM = 104
    vK = [112, 113]; vV = [114, 115]
    vD0, vD1, vL0, vL1, vMx, vT0, vT1, vLane16 = 116, 117, 118, 119, 120, 121, 122, 123
    vL = [vL0, vL1]
    def Sreg(b, kt, qs): return S[b] + (kt * 2 + qs) * 4
    def Obase(dt, qs): return (dt * 2 + qs) * 4
    def Oreg(dt, qs):
        o = Obase(dt, qs)
        return vr(128 + o, 4) if o < 128 else ar(o, 4)
    def Qreg(ks, qs): return ar((ks * 2 + qs) * 4, 4)
    sSRD = 8; sWave = 40; sM0 = 41; sDma = 42; sQ = 43; sI = 16; sN2 = 17; sValid = 18; sOut = 19; sMl = 20; sT0 = 21; sT1 = 22; sT2 = 23
    srd = sr(sSRD, 4)

    F2 = cfg.get('FUSE2', 1)
    from common import poll
    if F2:
        a.raw('.p2align 8'); a.label(name, reset=True); a.label('attn_body')
        a.e('s_nop 1')
    else:
        kernel_begin(a, name)
        a.e('s_cmp_ge_u32 s2, 256')
        a.e('s_cbranch_scc1 %s_end' % name)
        a.e('s_load_dwordx2 s[4:5], s[0:1], 80')
        if STAMP: stamp_begin(a)
    if cfg.get('CPF', 1) and not F2:
        from common import code_prefetch
        code_prefetch(a, name, 124, 125, 1)
    a.e('v_lshrrev_b32 v1, 6, v0')
    a.e('v_and_b32 v2, 63, v0')
    if not F2: a.e('v_readfirstlane_b32 s%d, v1' % sWave)
    a.e('v_lshlrev_b32 v%d, 4, v2' % vLane16)
    if not F2: attn_salu(a)
    a.e('v_add_u32 v%d, s%d, v%d' % (vD0, sM0, vLane16))
    a.e('v_add_u32 v%d, 0x1000, v%d' % (vD1, vD0))
    sG, sRd0, sRd1 = 29, 30, 31
    a.e('s_and_b32 s%d, s%d, 3' % (sG, sT0))
    a.e('s_lshl_b32 s%d, s%d, 5' % (sG, sG))
    a.e('s_lshr_b32 s34, s2, 3')
    a.e('s_add_u32 s%d, s%d, s34' % (sG, sG))
    a.e('s_add_u32 s%d, s%d, s25' % (sG, sG))
    a.e('s_lshl_b32 s%d, s%d, 15' % (sG, sG))
    a.e('s_add_u32 s35, s%d, %d' % (sG, U_OFF))
    a.e('s_add_u32 s%d, s%d, %d' % (sG, sG, G_OFF))
    a.e('s_sub_u32 s%d, s%d, 3' % (sRd0, sN2))
    a.e('s_sub_u32 s%d, s%d, 2' % (sRd1, sN2))
    a.e('v_lshrrev_b32 v3, 4, v2')
    a.e('v_and_b32 v4, 15, v2')
    a.e('v_and_b32 v5, 1, v3')
    a.e('v_mul_u32_u24 v5, 12, v5')
    a.e('v_xor_b32 v5, v4, v5')
    a.e('v_lshlrev_b32 v5, 4, v5')
    a.e('v_lshl_add_u32 v%d, v3, 9, v5' % vK[0])
    a.e('v_add_u32 v%d, 0x10000, v%d' % (vK[1], vK[0]))
    a.e('v_lshrrev_b32 v4, 2, v2')
    a.e('v_bfe_u32 v5, v2, 1, 1')
    a.e('v_and_b32 v6, 1, v2')
    a.e('v_mul_u32_u24 v7, 12, v5')
    a.e('v_xor_b32 v4, v4, v7')
    a.e('v_lshlrev_b32 v4, 4, v4')
    a.e('v_lshl_add_u32 v4, v5, 9, v4')
    a.e('v_lshl_add_u32 v%d, v6, 3, v4' % vV[0])
    a.e('v_add_u32 v%d, 0x10000, v%d' % (vV[1], vV[0]))
    a.e('v_lshlrev_b32 v126, 7, v2')
    a.e('v_lshlrev_b32 v127, 7, v0')
    zl = ['v_mov_b32 v%d, 0' % r for r in range(128, 256)] + ['v_accvgpr_write_b32 a%d, 0' % r for r in range(128, 256)]
    def zero(n):
        for _ in range(n):
            if zl: a.e(zl.pop(0))
    if F2:
        a.e('v_cmp_ne_u32 vcc, 0, v2')
        a.e('v_mov_b32 v125, 0x40000000')
        a.e('v_cndmask_b32 v124, 0, v125, vcc')
        a.e('v_mov_b32 v125, 1')
        zero(cfg.get('AT_Z2', 150))
    else:
        zero(cfg.get('AT_Z0', 64))
        a.e('s_waitcnt lgkmcnt(0)')
        a.e('s_mov_b32 s%d, s4' % sSRD)
        a.e('s_and_b32 s%d, s5, 0xffff' % (sSRD + 1))
        a.e('s_mov_b32 s%d, %d' % (sSRD + 2, WS_BYTES))
        a.e('s_mov_b32 s%d, 0x00020000' % (sSRD + 3))

    def dma_piece(stage, j, redirect=False):
        out = []
        if j % 4 == 0:
            out.append('s_add_u32 m0, s%d, %d' % (sM0, stage * 32768 + (j // 4) * 4096))
        out.append('buffer_load_dwordx4 v%d, %s, s%d offen offset:%d lds' % (vD0 if j < 4 else vD1, srd, sDma, (j % 4) * 1024))
        if j == 7:
            out.append('s_add_u32 s%d, s%d, 0x8000' % (sDma, sDma))
            if redirect and cfg.get('AT_REDIR', 0):
                out.append('s_cmp_eq_u32 s%d, s%d' % (sI, sRd0))
                out.append('s_cselect_b32 s%d, s%d, s%d' % (sDma, sG, sDma))
                out.append('s_cmp_eq_u32 s%d, s%d' % (sI, sRd1))
                out.append('s_cselect_b32 s%d, s35, s%d' % (sDma, sDma))
        return out
    def dma_tile(stage, z=0):
        for j in range(8):
            for t in dma_piece(stage, j): a.e(t)
            zero(z)

    if cfg.get('AT_QT', 0):
        a.e('s_lshl_b32 s34, s%d, 13' % sT2)
        a.e('s_add_u32 s34, s34, s%d' % sQ)
        a.e('buffer_load_dword v125, v126, %s, s34 offen' % srd)
    if not F2:
        dma_tile(0)
        for f in range(32):
            if f and f % 4 == 0:
                a.e('s_add_u32 s%d, s%d, 0x1000' % (sQ, sQ))
            a.e('buffer_load_dwordx4 %s, v%d, %s, s%d offen offset:%d' % (ar(4 * f, 4), vLane16, srd, sQ, (f % 4) * 1024))
            zero(6)
        zero(1000)
    a.e('v_mov_b32 v%d, 0' % vL0)
    a.e('v_mov_b32 v%d, 0' % vL1)
    a.e('s_mov_b32 s%d, 0' % sI)

    q = LdsQ()
    def ring(n): return RING + 4 * ((n % 64) % NR)
    def kread(stage, n):
        reg = ring(n); ks, kt = n // 2, n % 2
        return [('ds', 'ds_read_b128 %s, v%d offset:%d' % (vr(reg, 4), vK[stage >> 1], (stage & 1) * 32768 + ks * 2048 + kt * 256), [reg])]
    def vread(stage, dt):
        reg = ring(32 + dt)
        off = (stage & 1) * 32768 + dt * 1024
        return [('ds', 'ds_read_b64_tr_b16 %s, v%d offset:%d' % (vr(reg, 2), vV[stage >> 1], off), [reg + 1000]),
                ('ds', 'ds_read_b64_tr_b16 %s, v%d offset:%d' % (vr(reg + 2, 2), vV[stage >> 1], off + 256), [reg])]
    chk = [True]
    def emit_item(it):
        if isinstance(it, tuple):
            a.e(it[1]); q.issue(it[2], chk[0])
        else:
            a.e(it)

    if not F2: a.e('s_waitcnt vmcnt(32)')
    a.e('s_barrier')
    if STAMP and cfg.get('S1') == 6: stamp_mid(a, 0)
    PD = 8
    for n in range(PD):
        for it in kread(0, n): emit_item(it)
    late = [] if F2 else [dma_piece(1, j) for j in range(8)] + [dma_piece(2, j) for j in range(8)]
    nl = 0
    for n in range(32):
        ks, kt = n // 2, n % 2
        if kt == 0 and not F2:
            a.e('s_waitcnt vmcnt(%d)' % (nl + 30 - 2 * ks))
        q.wait_for(a, q.need([ring(n)]))
        for qs in range(2):
            a.e('%s %s, %s, %s, %s' % (MF, vr(Sreg(0, kt, qs), 4), vr(ring(n), 4), Qreg(ks, qs), '0' if ks == 0 else vr(Sreg(0, kt, qs), 4)))
            if qs == 0 and n + PD < 32:
                for it in kread(0, n + PD): emit_item(it)
            zero(1 + qs)
        q.consume(ring(n))
        if (n < 8 or n % 2 == 1) and late:
            for t in late.pop(0): a.e(t)
            nl += 1
    assert not late
    zero(1000)
    if not F2:
        a.e('s_waitcnt vmcnt(8)')
        a.e('s_barrier')
    for r_ in range(4): a.e('v_mov_b32 v%d, -1' % (P + r_))
    if FUSE:
        a.e('s_lshl_b32 s34, s%d, 4' % sT0)
        a.e('s_lshr_b32 s36, s2, 4')
        a.e('s_add_u32 s34, s34, s36')
        a.e('s_lshl_b32 s34, s34, 16')
        a.e('s_add_u32 s34, s34, %d' % PO_OFF)
        a.e('s_add_u32 s36, s34, 0x8000')
        a.e('s_bitcmp%d_b32 s2, 3' % cfg.get('TSWAP', 1))
        a.e('s_cbranch_scc1 %s_nofill' % name)
        for j in range(16):
            a.e('buffer_store_dwordx4 %s, v%d, %s, s%d offen offset:%d' % (vr(P, 4), vD0 if j % 8 < 4 else vD1, srd, 34 if j < 8 else 36, (j % 4) * 1024))
        a.label('%s_nofill' % name)
    else:
        a.e('s_lshl_b32 s34, s2, 15')
        a.e('s_add_u32 s34, s34, %d' % PO_OFF)
        for j in range(8):
            a.e('buffer_store_dwordx4 %s, v%d, %s, s34 offen offset:%d' % (vr(P, 4), vD0 if j < 4 else vD1, srd, (j % 4) * 1024))

    if cfg.get('AT_DMA2', 0):
        for j in range(4):
            for t in dma_piece(3, j): a.e(t)
    n_tail = cfg.get('NTAIL', 8)
    for n in range(n_tail):
        for it in kread(1, n): emit_item(it)

    def head_wait():
        idx = max(q.need([ring(k2)]) for k2 in range(WG))
        assert idx > q.done
        q.wait_for(a, idx)
    def rowmax(b, qs, dst, tmp):
        r0, r1 = Sreg(b, 0, qs), Sreg(b, 1, qs)
        a.e('v_max3_f32 v%d, v%d, v%d, v%d' % (dst, r0, r0 + 1, r0 + 2))
        a.e('v_max3_f32 v%d, v%d, v%d, v%d' % (dst, dst, r0 + 3, r1))
        a.e('v_max3_f32 v%d, v%d, v%d, v%d' % (dst, dst, r1 + 1, r1 + 2))
        a.e('v_max_f32 v%d, v%d, v%d' % (dst, dst, r1 + 3))
        a.e('v_mov_b32 v%d, v%d' % (tmp, dst))
        a.e('v_permlane16_swap_b32 v%d, v%d' % (tmp, dst))
        a.e('v_max_f32 v%d, v%d, v%d' % (dst, dst, tmp))
        a.e('v_mov_b32 v%d, v%d' % (tmp, dst))
        a.e('v_permlane32_swap_b32 v%d, v%d' % (tmp, dst))
        a.e('v_max_f32 v%d, v%d, v%d' % (dst, dst, tmp))
    for qs in range(2):
        rowmax(0, qs, vMx, vT0)
        for kt in range(2):
            for r in range(4):
                a.e('v_sub_f32 v%d, v%d, v%d' % (Sreg(0, kt, qs) + r, Sreg(0, kt, qs) + r, vMx))
        for r in range(4):
            a.e('v_sub_f32 v%d, 0, v%d' % (NEGM + 4 * qs + r, vMx))

    def softmax_items(b):
        items = []
        for qs in range(2):
            for kt in range(2):
                for pr in range(2):
                    r0 = Sreg(b, kt, qs) + 2 * pr; r1 = r0 + 1
                    items.append('v_exp_f32 v%d, v%d' % (r0, r0))
                    items.append('v_exp_f32 v%d, v%d' % (r1, r1))
                    items.append('v_add_f32 v%d, v%d, v%d' % (vL[qs], vL[qs], r0))
                    items.append('v_cvt_pk_bf16_f32 v%d, v%d, v%d' % (P + 4 * qs + 2 * kt + pr, r0, r1))
                    items.append('v_add_f32 v%d, v%d, v%d' % (vL[qs], vL[qs], r1))
        return items

    LAT = cfg.get('LAT', 8)
    EARLY = cfg.get('EARLY', 22)
    BARG = cfg.get('BARG', 112)
    def body(u, final=False):
        bc, bn = u % 2, (u + 1) % 2
        stK, stV = (u + 1) % 4, u
        mf = [None] * 128
        need = [None] * 64
        for n in range(32):
            if final: break
            ks, kt = n // 2, n % 2
            for qs in range(2):
                pos = qs ^ (kt if cfg.get('AT_GRAY', 1) else 0)
                mf[2 * n + pos] = '%s %s, %s, %s, %s' % (MF, vr(Sreg(bn, kt, qs), 4), vr(ring(n), 4), Qreg(ks, qs), vr(NEGM + 4 * qs, 4) if ks == 0 else vr(Sreg(bn, kt, qs), 4))
            need[n] = ring(n)
        for dt in range(32):
            for qs in range(2):
                pos = qs ^ ((dt & 1) if cfg.get('AT_GRAY', 1) else 0)
                mf[64 + 2 * dt + pos] = '%s %s, %s, %s, %s' % (MF, Oreg(dt, qs), vr(ring(32 + dt), 4), vr(P + 4 * qs, 4), Oreg(dt, qs))
            need[32 + dt] = ring(32 + dt)
        pre = [[] for _ in range(129)]
        if final:
            sm = [] if NO_SM else softmax_items(bc)
            for dt in range(32):
                its = vread(stV, dt)
                sl = 32 + dt - 9
                pre[2 * sl] += [its[0]]; pre[2 * sl + 1] += [its[1]]
            for j, it in enumerate(sm):
                pre[2 * (32 - 9) + (j * 18) // len(sm)].append(it)
            waits = set(range(64, 128, 4))
        else:
            cap = [2] * 128
            def wgap(k):
                g = 2 * (k - k % WG)
                return g
            waits = set(wgap(k) for k in range(WG, 64) if not (BARG <= wgap(k) < 128))
            for g in waits: cap[g] -= 1
            cap[BARG] -= 2; pre[BARG].append(('bar',))
            cap[0] -= 1 if u == 1 else 2
            cap[127] -= 1
            if F2 and u == 0:
                pre[122].append('buffer_atomic_add v125, v124, %s, s86 offen offset:8 sc1' % srd); cap[122] -= 2
                pre[123].append('s_mov_b32 s86, 0x40000000'); cap[123] -= 1
            pre[125].append('s_add_u32 s%d, s%d, 1' % (sI, sI)); cap[125] -= 1
            if u in (1, 2):
                pre[126].append('s_cmp_eq_u32 s%d, s%d' % (sI, sN2)); cap[126] -= 1
            ds = []
            def ring_ok(k):
                return 2 * (k - NR) + 2
            for n in range(n_tail, 32):
                for it in kread(stK, n): ds.append((it, max(0, wgap(n) - EARLY, ring_ok(n)), wgap(n) - LAT))
            for dt in range(32):
                k = 32 + dt
                w = min(wgap(k), BARG)
                for it in vread(stV, dt): ds.append((it, max(w - EARLY, ring_ok(k)), w - LAT))
            for n in range(n_tail):
                for it in kread((u + 2) % 4, n): ds.append((it, max(BARG + 1, ring_ok(64 + n)), 120))
            dl = [d[2] for d in ds]
            for x in range(len(ds) - 2, -1, -1):
                dl[x] = min(dl[x], dl[x + 1] - 1)
            sm = [] if NO_SM else [(it, 2 if it.startswith('v_exp') else 1, 1) for it in softmax_items(bc)]
            Sn = S[bn]
            mx = ['v_max3_f32 v%d, v%d, v%d, v%d' % (vMx, Sn, Sn + 1, Sn + 2)]
            for r in range(3, 15, 2):
                mx.append('v_max3_f32 v%d, v%d, v%d, v%d' % (vMx, vMx, Sn + r, Sn + r + 1))
            mx.append('v_max_f32 v%d, v%d, v%d' % (vMx, vMx, Sn + 15))
            mx.append('v_cmp_lt_f32 vcc, 0x41000000, v%d' % vMx)
            sm += [(it, 1, cfg.get('MX_START', 70)) for it in mx]
            dm = []
            post = {}
            if cfg.get('AT_DMA2', 0):
                def place(stage, js, g0):
                    for x, j in enumerate(js):
                        for it in dma_piece(stage, j):
                            if it.startswith('s_add_u32 m0'): post.setdefault(g0 - 1, []).append(it); cap[g0 - 1] -= 1
                            elif it.startswith('buffer'): pre[g0 + x].append(it); cap[g0 + x] -= 2
                            else: post.setdefault(g0 + x + 1, []).append(it); cap[g0 + x + 1] -= 1
                place((u + 3) % 4, range(4, 8), BARG - 5)
                place(u, range(0, 4), 121)
            elif not NO_DMA:
                g0, gs = cfg.get('DMA_START', 66), cfg.get('DMA_STEP', 5)
                for j in range(8):
                    for x, it in enumerate(dma_piece((u + 3) % 4, j, True)):
                        dm.append((it, g0 + gs * j + (-1 if it.startswith('s_add_u32 m0') else 0)))
            di = si = mi = 0
            last_m0 = -9
            for g in range(128):
                used_ds = False
                while cap[g] > 0:
                    ds_ready = di < len(ds) and ds[di][1] <= g and not used_ds
                    ds_urgent = ds_ready and dl[di] <= g + cfg.get('URG', 0)
                    sm_ready = si < len(sm) and sm[si][2] <= g and sm[si][1] <= cap[g]
                    dm_ready = mi < len(dm) and dm[mi][1] <= g and not (dm[mi][0].startswith('buffer') and (last_m0 == g or (used_ds and cfg.get('DMA_EXCL'))))
                    if ds_urgent:
                        pre[g].append(ds[di][0]); di += 1; cap[g] -= 1; used_ds = True
                    elif sm_ready and sm[si][1] == 2:
                        pre[g].append(sm[si][0]); cap[g] -= 2; si += 1
                    elif dm_ready:
                        if dm[mi][0].startswith('s_add_u32 m0'): last_m0 = g
                        if dm[mi][0].startswith('buffer') and cfg.get('DMA_EXCL'): used_ds = True
                        pre[g].append(dm[mi][0]); mi += 1; cap[g] -= 1
                    elif ds_ready:
                        pre[g].append(ds[di][0]); di += 1; cap[g] -= 1; used_ds = True
                    elif sm_ready:
                        pre[g].append(sm[si][0]); cap[g] -= 1; si += 1
                    else:
                        break
                pre[g] += post.get(g, [])
                if g == 62: assert NO_SM or si >= 40, ('softmax not finished in phase A', si)
                if g == BARG - 1: assert mi == len(dm), 'dma not finished'
                if di < len(ds): assert ds[di][2] + 4 > g, ('ds late', di, g, ds[di])
            assert di == len(ds) and si == len(sm), (di, len(ds), si, len(sm))
            if u == 0 and cfg.get('SHOW'):
                for g in range(128):
                    print(g, 'W' if g in waits else ' ', [ (x[1] if len(x) > 1 else 'BAR').split()[0] if isinstance(x, tuple) else x.split()[0] for x in pre[g]])
        for pos in range(128):
            k = pos // 2
            for it in pre[pos]:
                if isinstance(it, tuple) and it[0] == 'bar':
                    a.e('s_waitcnt vmcnt(%d) lgkmcnt(0)' % (0 if NO_DMA else 8)); q.drained()
                    a.e('s_barrier')
                else:
                    emit_item(it)
            if mf[pos] is None: continue
            if pos == 127 and not final:
                head_wait()
            if pos in waits:
                idx = 0
                for k2 in range(k, min(64, k + (2 if final else WG))):
                    assert need[k2] in q.pending, ('not issued', k2, pos)
                    idx = max(idx, q.need([need[k2]]))
                q.wait_for(a, idx)
            assert q.need([need[k]]) <= q.done and need[k] in q.pending, ('uncovered', pos)
            a.e(mf[pos])
            if pos % 2 == 1: q.consume(need[k])

    def rare(u):
        bn = (u + 1) % 2
        a.label('%s_rare%d' % (name, u), reset=True)
        a.e('s_nop 15')
        for qs in range(2):
            rowmax(bn, qs, vMx, vT0)
            a.e('v_max_f32 v%d, 0, v%d' % (vMx, vMx))
            a.e('v_sub_f32 v%d, 0, v%d' % (vT0, vMx))
            a.e('v_exp_f32 v%d, v%d' % (vT0, vT0))
            for kt in range(2):
                for r in range(4):
                    a.e('v_sub_f32 v%d, v%d, v%d' % (Sreg(bn, kt, qs) + r, Sreg(bn, kt, qs) + r, vMx))
            for r in range(4):
                a.e('v_sub_f32 v%d, v%d, v%d' % (NEGM + 4 * qs + r, NEGM + 4 * qs + r, vMx))
            a.e('v_mul_f32 v%d, v%d, v%d' % (vL[qs], vL[qs], vT0))
            for dt in range(32):
                o = Obase(dt, qs)
                if o < 128:
                    for j in range(4): a.e('v_mul_f32 v%d, v%d, v%d' % (128 + o + j, 128 + o + j, vT0))
                else:
                    for j in range(4): a.e('v_accvgpr_read_b32 v%d, a%d' % (P + j, o + j))
                    for j in range(4): a.e('v_mul_f32 v%d, v%d, v%d' % (P + j, P + j, vT0))
                    for j in range(4): a.e('v_accvgpr_write_b32 a%d, v%d' % (o + j, P + j))
        a.e('s_nop 3')
        a.e('s_branch %s_back%d' % (name, u))

    head_wait()
    if STAMP and (not FUSE or cfg.get('S1') == 4): stamp_mid(a, 76)
    if STAMP and cfg.get('S1') == 6: stamp_mid(a, 1)
    a.raw('.p2align 6')
    a.label('%s_loop' % name)
    a.record = []
    qstate0 = q.state()
    saved = {}
    for u in range(4):
        body(u)
        a.e('s_cbranch_vccnz %s_rare%d' % (name, u))
        a.label('%s_back%d' % (name, u))
        if u in (1, 2):
            a.e('s_cbranch_scc1 %s_final%d' % (name, u + 1))
            saved[u + 1] = (copy.deepcopy(q), list(a.hist))
        assert q.state() == qstate0, (q.state(), qstate0)
    a.e('s_branch %s_loop' % name)
    rec = [x[1] for x in a.record if x[0] == 'ins']
    a.record = None
    viol = check_seq(rec + rec[:40])
    assert not viol, viol
    loop_len = len(rec)

    for u in (2, 3):
        a.label('%s_final%d' % (name, u))
        q.__dict__.update(saved[u][0].__dict__); a.hist = saved[u][1]
        q.pending = set()
        if cfg.get('AT_TOUCH', 0):
            a.e('s_lshr_b32 s34, s2, 3')
            a.e('s_lshl_b32 s34, s34, 15')
            a.e('s_add_u32 s34, s34, %d' % W2_OFF)
            a.e('buffer_load_dword v125, v127, %s, s34 offen' % srd)
            a.e('s_sub_u32 s34, s34, %d' % W2_OFF)
            a.e('s_min_u32 s34, s34, %d' % (4 << 15))
            a.e('s_add_u32 s34, s34, %d' % TPC_OFF)
            a.e('buffer_load_dword v125, v127, %s, s34 offen' % srd)
            a.e('s_getpc_b64 s[60:61]')
            lbl = '%s_np%d' % (name, u)
            a.label(lbl)
            a.e('s_add_u32 s60, s60, tail_kernel-%s' % lbl)
            a.e('s_addc_u32 s61, s61, 0')
            a.e('v_min_u32 v124, tail_kernel_end-tail_kernel, v127')
            a.e('global_load_dword v125, v124, s[60:61]')
        body(u, final=True)
        if u == 2:
            a.e('s_branch %s_epi' % name)
    a.label('%s_epi' % name)
    if STAMP and (not FUSE or cfg.get('S1') == 4): stamp_mid(a, 77)
    a.e('s_cmp_eq_u32 s%d, 0' % sValid)
    a.e('s_cbranch_scc1 %s_%s' % (name, 'sig' if FUSE else 'end'))
    a.e('s_nop 15')
    for qs in range(2):
        l = vL[qs]
        a.e('v_mov_b32 v%d, v%d' % (vT0, l))
        a.e('v_permlane16_swap_b32 v%d, v%d' % (vT0, l))
        a.e('v_add_f32 v%d, v%d, v%d' % (l, l, vT0))
        a.e('v_mov_b32 v%d, v%d' % (vT0, l))
        a.e('v_permlane32_swap_b32 v%d, v%d' % (vT0, l))
        a.e('v_add_f32 v%d, v%d, v%d' % (l, l, vT0))
    a.e('v_cmp_gt_u32 vcc, 0x100, v%d' % vLane16)
    a.e('v_cndmask_b32 v0, v%d, v%d, vcc' % (NEGM + 4, NEGM))
    a.e('v_cndmask_b32 v1, v%d, v%d, vcc' % (vL1, vL0))
    a.e('v_log_f32 v1, v1')
    a.e('v_sub_f32 v0, v1, v0')
    a.e('v_lshrrev_b32 v2, 2, v%d' % vLane16)
    a.e('s_mov_b64 exec, 0xffffffff')
    a.e('buffer_store_dword v0, v2, %s, s%d offen' % (srd, sMl))
    a.e('s_mov_b64 exec, -1')
    a.e('v_rcp_f32 v4, v%d' % vL0)
    a.e('v_rcp_f32 v5, v%d' % vL1)
    a.dense = True
    sm0 = a.store_mod; a.store_mod = cfg.get('AT_SM', sm0)
    t = 0
    for D in range(16):
        for qs in range(2):
            f = D * 2 + qs
            tmp = RING + 4 * (t % 8); t += 1
            srcs = []
            for e in range(2):
                o = Obase(2 * D + e, qs)
                if o < 128:
                    srcs.append(128 + o)
                else:
                    s_ = 8 + 8 * (f % 3) + 4 * e
                    for j in range(4): a.e('v_accvgpr_read_b32 v%d, a%d' % (s_ + j, o + j))
                    srcs.append(s_)
            for e in range(2):
                for j in range(2):
                    r_ = vr(srcs[e] + 2 * j, 2)
                    a.e('v_pk_mul_f32 %s, %s, v[4:5] op_sel:[0,%d] op_sel_hi:[1,%d]' % (r_, r_, qs, qs))
            for e in range(2):
                for j in range(2):
                    a.e('v_cvt_pk_f16_f32 v%d, v%d, v%d' % (tmp + 2 * e + j, srcs[e] + 2 * j, srcs[e] + 2 * j + 1))
            if f: a.e('s_add_u32 s%d, s%d, 0x1000' % (sOut, sOut))
            a.e('buffer_store_dwordx4 %s, v%d, %s, s%d offen' % (vr(tmp, 4), vLane16, srd, sOut))
    a.store_mod = sm0
    a.dense = False
    if cfg.get('AT_BACK', 0):
        if cfg.get('AT_BACK31', 1):
            a.e('s_cmp_eq_u32 s%d, 31' % sN2)
            a.e('s_cbranch_scc1 %s_nb' % name)
        a.e('s_sub_u32 s%d, s%d, 0x7000' % (sOut, sOut))
        a.e('s_waitcnt vmcnt(%d)' % (32 - 8 * cfg['AT_BACK']))
        for j in range(cfg['AT_BACK']):
            a.e('buffer_load_dword v125, v126, %s, s%d offen' % (srd, sOut))
            a.e('s_add_u32 s%d, s%d, 0x2000' % (sOut, sOut))
        a.label('%s_nb' % name)
    if FUSE:
        a.label('%s_sig' % name, reset=True)
        a.e('s_lshl_b32 s34, s%d, 3' % sT0)
        a.e('s_add_u32 s34, s34, s%d' % sT1)
        a.e('s_lshl_b32 s34, s34, 7')
        a.e('s_add_u32 s34, s34, %d' % CNT_OFF)
        a.e('v_mov_b32 v2, 1')
        a.e('v_mov_b32 v3, 0')
        a.e('s_lshl_b32 s35, s%d, 6' % sWave)
        a.e('v_lshrrev_b32 v0, 4, v%d' % vLane16)
        if F2:
            a.e('s_and_b32 s36, s2, 3')
            a.e('s_lshl_b32 s36, s36, 4')
            a.e('s_lshr_b32 s37, s2, 4')
            a.e('s_add_u32 s36, s36, s37')
            a.e('s_lshl_b32 s36, s36, 6')
            a.e('s_lshl_b32 s37, s25, 5')
            a.e('s_add_u32 s36, s36, s37')
            a.e('s_add_u32 s37, s36, 95')
            a.e('s_min_u32 s37, s37, 7999')
            a.e('s_lshr_b32 s37, s37, 6')
            a.e('s_max_u32 s36, s36, 32')
            a.e('s_sub_u32 s36, s36, 32')
            a.e('s_lshr_b32 s36, s36, 6')
            a.e('v_add_u32 v6, s36, v0')
            a.e('v_min_u32 v6, s37, v6')
            a.e('v_lshlrev_b32 v6, 7, v6')
            a.e('v_add_u32 v6, %d, v6' % TC_OFF)
            if cfg.get('FUSE3', 0):
                a.e('v_mov_b32 v8, 8')
                a.e('v_mov_b32 v9, %d' % (RC_OFF + 8 * 128 - 8))
                a.e('v_mov_b32 v10, 100')
                a.e('v_cmp_eq_u32 vcc, 63, v0')
                a.e('v_cndmask_b32 v6, v6, v9, vcc')
                a.e('v_cndmask_b32 v8, v8, v10, vcc')
                poll(a, '%s_pg' % name, 6, 7, 'v8', 38, 8)
            else:
                poll(a, '%s_pg' % name, 6, 7, 8, 38, 8)
        a.e('v_add_u32 v0, s35, v0')
        a.e('s_waitcnt vmcnt(0)')
        a.e('s_mov_b64 exec, 1')
        a.e('buffer_atomic_add v2, v3, %s, s34 offen sc1' % srd)
        a.e('s_mov_b64 exec, -1')
        if STAMP and cfg.get('S1') == 4: stamp_mid(a, 2)
        a.e('s_barrier')
        a.e('s_branch tail_body')
    else:
        if STAMP: stamp_end(a, sWave, '%s_end' % name)
    a.label('%s_end' % name)
    a.e('s_endpgm')
    for u in range(4):
        rare(u)
    if F2: return None
    return dict(name=name, vgpr=512, sgpr=96, accum=256, grid=256, block=256, lds=163840 if FUSE else 131072, loop_len=loop_len)
```

```python
import math
from common import *
from attn16 import stamp_begin, stamp_mid, stamp_end, attn_early_setup, attn_early_loads

def gen_in(a, name='in_kernel', cfg=None):
    cfg = cfg or {}
    STAMP = cfg.get('STAMP', False)
    F2 = cfg.get('FUSE2', 1)
    F3 = cfg.get('FUSE3', 0)
    LNP = cfg.get('LNP', 1) and not F3
    ST2 = STAMP and (not F2 or cfg.get('S1') == 5)
    RW = 52; NW = 192; TB = 208
    vLane, vLane16, vK, vRow, vI, vQ4, vX, vSw, vSr = 192, 193, 194, 195, 196, 197, 198, 199, 200
    vN = 202
    C1, C2, G, PK, SS = 204, 206, 208, 216, 224
    SQ2 = SS + 16
    sWave, sT, sCG, sW, sA, sB, sC = 3, 6, 7, 12, 13, 14, 15
    EK = F2 and LNP and cfg.get('IN_EK', 1)
    IB = 98304 if EK else 0
    STL = IB if EK else (131072 if F2 else 65536)
    def wsl(n): return ar(4 * ((n + 16) % RW), 4)
    ws = 's[8:11]'
    def acc(t, ts): return (t * 4 + ts) * 4

    if F3:
        a.raw('.p2align 8'); a.label(name, reset=True); a.label('in_body')
        a.e('s_nop 1')
    else:
        kernel_begin(a, name)
    a.e('s_and_b32 s20, s2, 7')
    a.e('s_lshr_b32 s21, s2, 4')
    a.e('s_lshl_b32 s%d, s20, 4' % sT)
    a.e('s_add_u32 s%d, s%d, s21' % (sT, sT))
    if not F3:
        a.e('s_cmp_ge_u32 s2, 256')
        a.e('s_cbranch_scc1 %s_end' % name)
        if not F2:
            a.e('s_cmp_ge_u32 s%d, 125' % sT)
            a.e('s_cbranch_scc1 %s_end' % name)
        a.e('s_load_dwordx2 s[4:5], s[0:1], 80')
        a.e('s_load_dwordx2 s[16:17], s[0:1], 0')
        if STAMP: stamp_begin(a)
    def role_signal(vone, voob, tag):
        a.e('s_cmp_eq_u32 s%d, 0' % sWave)
        a.e('s_cselect_b32 s87, s87, 0x40000000')
        a.e('buffer_atomic_add v%d, v%d, %s, s87 offen sc1' % (vone, voob, ws))
    if F2:
        a.e('s_lshl_b32 s86, s%d, 7' % sT)
        a.e('s_add_u32 s86, s86, %d' % TC_OFF)
        a.e('s_cmp_lt_u32 s%d, 125' % sT)
        a.e('s_cbranch_scc1 %s_work' % name)
        a.e('s_mov_b32 s86, 0x40000000')
        a.e('v_lshrrev_b32 v1, 6, v0')
        a.e('v_and_b32 v%d, 63, v0' % vLane)
        a.e('v_readfirstlane_b32 s%d, v1' % sWave)
        a.e('v_lshlrev_b32 v%d, 4, v%d' % (vLane16, vLane))
        if F3:
            a.e('v_mov_b32 v125, 32')
            poll(a, '%s_pz' % name, 125, 126, 4, 34, 0, 's[88:89]', cfg.get('P1_SLP', 8))
            a.e('s_barrier')
            role_signal(124, 123, 0)
        else:
            a.e('s_waitcnt lgkmcnt(0)')
            make_srd(a, 8, 4, WS_BYTES)
        attn_early_setup(a, sWave, vLane, vLane16, 128, LNP)
        poll(a, '%s_pi' % name, 128, 129, 8, 34)
        for g_ in attn_early_loads(vLane16, 128):
            for t_ in g_: a.e(t_)
        a.e('s_waitcnt vmcnt(0)')
        a.e('s_branch attn_body')
        a.label('%s_work' % name)
    a.e('s_bfe_u32 s%d, s2, 0x10003' % sCG)
    if cfg.get('CGSWAP', 1) and not F3: a.e('s_xor_b32 s%d, s%d, 1' % (sCG, sCG))
    a.e('v_lshrrev_b32 v1, 6, v0')
    a.e('v_and_b32 v%d, 63, v0' % vLane)
    a.e('v_readfirstlane_b32 s%d, v1' % sWave)
    a.e('v_lshlrev_b32 v%d, 4, v%d' % (vLane16, vLane))
    a.e('v_lshrrev_b32 v%d, 4, v%d' % (vQ4, vLane))
    a.e('v_and_b32 v%d, 15, v%d' % (vI, vLane))
    a.e('v_lshlrev_b32 v%d, 10, v%d' % (vX, vI))
    a.e('v_lshl_add_u32 v%d, v%d, 4, v%d' % (vX, vQ4, vX))
    a.e('s_lshl_b32 s%d, s%d, 16' % (sA, sT))
    a.e('s_lshl_b32 s%d, s%d, 14' % (sB, sWave))
    a.e('s_add_u32 s%d, s%d, s%d' % (sB, sA, sB))
    a.e('s_lshl_b32 s%d, s%d, 2' % (sW, sCG))
    a.e('s_add_u32 s%d, s%d, s%d' % (sW, sW, sWave))
    a.e('s_mov_b32 s46, s%d' % sW)
    a.e('s_mul_i32 s%d, s%d, %d' % (sW, sW, NW * 1024))
    a.e('s_add_u32 s%d, s%d, %d' % (sW, sW, W1_OFF))
    vq = VmQ()
    RAWX = 128
    if F3:
        for j in range(16): vq.issue(('x', j))
    elif LNP:
        a.e('s_lshl_b32 s%d, s%d, 14' % (sC, sWave))
        if XF_OFF: a.e('s_add_u32 s%d, s%d, %d' % (sB, sB, XF_OFF))
        a.e('s_waitcnt lgkmcnt(0)')
        make_srd(a, 8, 4, WS_BYTES)
        for j in range(16):
            if j % 4 == 0:
                a.e('s_add_u32 m0, s%d, %d' % (sC, IB + j * 1024))
                a.e('s_add_u32 s57, s%d, %d' % (sB, j * 1024))
            a.e('buffer_load_dwordx4 v%d, %s, s57 offen offset:%d lds' % (vLane16, ws, (j % 4) * 1024))
            vq.issue('img')
        if cfg.get('CPF', 1):
            code_prefetch(a, name, 250, 251, 2); vq.issue(); vq.issue()
    else:
        a.e('s_waitcnt lgkmcnt(0)')
        make_srd(a, 20, 16, 8192000)
        for j in range(16):
            a.e('buffer_load_dwordx4 %s, v%d, s[20:23], s%d offen offset:%d' % (vr(RAWX + 4 * j, 4), vX, sB, 64 * j))
            vq.issue(('x', j))
        if cfg.get('CPF', 1):
            code_prefetch(a, name, 250, 251, 2); vq.issue(); vq.issue()
        make_srd(a, 8, 4, WS_BYTES)
    st = GStream(a, vq, cfg.get('IN_PACE', 64), 1)
    st.look = 100; st.pace2 = 56
    state = dict(cons=-1, wok=not F3, mok=not F3)
    QPOS = 0 if EK else 1
    ORD = (2, 0, 1) if QPOS == 0 else (0, 2, 1)
    for n in range(NW):
        pre = ['s_add_u32 s58, s%d, %d' % (sW, ORD[n // 64] * 65536 + ((n // 4) % 16) * 4096)] if n % 4 == 0 else []
        st.add(0, n, pre, 'buffer_load_dwordx4 %s, v%d, %s, s58 offen offset:%d' % (wsl(n), vLane16, ws, (n % 4) * 1024), ('w', n),
               (lambda nn=n: state['cons'] >= nn - RW and state['wok'] and (nn < 64 or state['mok'])))
    st.burst(cfg.get('IN_WL', 24) if LNP else cfg.get('IN_W0', 8))
    vPa, vPn, vPv, vPm = 217, 218, 219, 220
    if F3:
        a.e('s_lshl_b32 s59, s46, 2')
        a.e('v_mov_b32 v%d, s59' % vPa)
        a.e('v_mov_b32 v%d, 8' % vPn)
        a.e('v_cmp_lt_u32 vcc, 31, v%d' % vLane)
        a.e('v_cndmask_b32 v%d, v%d, 32, vcc' % (vPa, vPa))
        a.e('v_cndmask_b32 v%d, v%d, 4, vcc' % (vPn, vPn))
        a.e('s_lshl_b32 s59, s46, 7')
        a.e('s_add_u32 s59, s59, %d' % RC_OFF)
        a.e('v_mov_b32 v%d, s59' % vPm)
    a.e('s_mov_b32 s90, 0xffff0000')
    a.e('v_and_b32 v%d, 1, v%d' % (vK, vQ4))
    a.e('v_mul_u32_u24 v%d, 12, v%d' % (vK, vK))
    a.e('v_xor_b32 v%d, v%d, v%d' % (vK, vK, vI))
    a.e('v_lshlrev_b32 v%d, 4, v%d' % (vK, vK))
    a.e('v_lshl_add_u32 v%d, v%d, 9, v%d' % (vK, vQ4, vK))
    a.e('v_lshrrev_b32 v%d, 2, v%d' % (vN, vI))
    a.e('v_lshlrev_b32 v%d, 3, v%d' % (vN, vN))
    a.e('v_and_b32 v%d, 3, v%d' % (vN + 1, vI))
    a.e('v_add_u32 v%d, v%d, v%d' % (vN, vN, vN + 1))
    a.e('v_lshlrev_b32 v%d, 5, v%d' % (vRow, vN))
    a.e('v_and_b32 v%d, 1, v%d' % (vN + 1, vQ4))
    a.e('v_lshl_add_u32 v%d, v%d, 4, v%d' % (vRow, vN + 1, vRow))
    a.e('v_mul_u32_u24 v%d, 12, v%d' % (vN + 1, vN + 1))
    a.e('v_xor_b32 v%d, v%d, v%d' % (vN, vN, vN + 1))
    a.e('v_lshlrev_b32 v%d, 4, v%d' % (vN, vN))
    a.e('v_lshl_add_u32 v%d, v%d, 9, v%d' % (vN, vQ4, vN))
    a.e('v_lshrrev_b32 v%d, 1, v%d' % (vN + 1, vQ4))
    a.e('v_lshl_add_u32 v%d, v%d, 14, v%d' % (vRow, vN + 1, vRow))
    a.e('v_xor_b32 v%d, 64, v%d' % (vN + 1, vN))
    if IB:
        for r_ in (vK, vN, vN + 1): a.e('v_add_u32 v%d, %d, v%d' % (r_, IB, r_))
    a.e('s_lshr_b32 s%d, s%d, 1' % (sB, sWave))
    a.e('s_lshl_b32 s%d, s%d, 15' % (sB, sB))
    a.e('s_and_b32 s%d, s%d, 1' % (sC, sWave))
    a.e('s_lshl_b32 s%d, s%d, 8' % (sC, sC))
    a.e('s_add_u32 s%d, s%d, s%d' % (sB, sB, sC))
    a.e('v_add_u32 v%d, s%d, v%d' % (vX, sB, vK))
    a.e('s_mov_b32 s48, s%d' % sA)
    if XF_OFF: a.e('s_add_u32 s48, s48, %d' % XF_OFF)
    vOob, vOne = 201, PK
    a.e('v_cmp_ne_u32 vcc, 0, v%d' % vLane)
    a.e('v_mov_b32 v%d, 0x40000000' % vOne)
    a.e('v_cndmask_b32 v%d, 0, v%d, vcc' % (vOob, vOne))
    a.e('v_mov_b32 v%d, 1' % vOne)
    c1 = -2.0 * math.log2(math.e) * math.sqrt(2.0 / math.pi); c2 = c1 * 0.044715
    for r, v in ((C1, c1), (C2, c2)):
        a.e('v_mov_b32 v%d, %s' % (r, fhex(v))); a.e('v_mov_b32 v%d, %s' % (r + 1, fhex(v)))
    if LNP:
        vq.wait(a, 'img')
    else:
        T = G
        p0, p1, nm = vr(T, 2), vr(T + 2, 2), vr(T + 4, 2)
        a.dense = True
        for j in range(16):
            vq.wait(a, ('x', j))
            for d in range(4):
                a.e('v_lshlrev_b32 v%d, 16, v%d' % (8 * j + 2 * d, RAWX + 4 * j + d))
                a.e('v_and_b32 v%d, s90, v%d' % (8 * j + 2 * d + 1, RAWX + 4 * j + d))
            if j == 0:
                a.e('v_pk_add_f32 %s, %s, %s' % (p0, vr(0, 2), vr(2, 2))); a.e('v_pk_add_f32 %s, %s, %s' % (p1, vr(4, 2), vr(6, 2)))
            else:
                for d in range(4): a.e('v_pk_add_f32 %s, %s, %s' % ((p0, p1)[d % 2], (p0, p1)[d % 2], vr(8 * j + 2 * d, 2)))
        if ST2: stamp_mid(a, 4)
        if F3:
            a.e('global_load_dword v%d, v%d, s[88:89] sc1' % (vPv, vPa)); vq.issue('p1')
            a.e('s_barrier')
        st.burst(cfg.get('IN_W1', 8))
        a.e('v_pk_add_f32 %s, %s, %s' % (p0, p0, p1))
        a.e('v_add_f32 v%d, v%d, v%d' % (T, T, T + 1))
        quad_reduce(a, 'v_add_f32', T, T + 1)
        a.e('v_mul_f32 v%d, %s, v%d' % (T + 4, fhex(-1.0 / 512), T))
        for p in range(64):
            r = vr(2 * p, 2)
            a.e('v_pk_add_f32 %s, %s, %s op_sel_hi:[1,0]' % (r, r, nm))
            q = (p0, p1)[p % 2]
            if p < 2: a.e('v_pk_mul_f32 %s, %s, %s' % (q, r, r))
            else: a.e('v_pk_fma_f32 %s, %s, %s, %s' % (q, r, r, q))
            if p % 16 == 15: st.burst(cfg.get('IN_W2', 2))
        a.e('v_pk_add_f32 %s, %s, %s' % (p0, p0, p1))
        a.e('v_add_f32 v%d, v%d, v%d' % (T, T, T + 1))
        quad_reduce(a, 'v_add_f32', T, T + 1)
        a.e('v_mul_f32 v%d, %s, v%d' % (T, fhex(1.0 / 512), T))
        a.e('v_add_f32 v%d, %s, v%d' % (T, fhex(1e-5), T))
        a.e('v_rsq_f32 v%d, v%d' % (T + 4, T))
        if F3:
            vq.wait(a, 'p1')
            a.e('v_cmp_gt_u32 vcc, v%d, v%d' % (vPn, vPv))
            a.e('s_cbranch_vccz %s_p1_ok' % name)
            poll(a, '%s_p1' % name, vPa, vPv, 'v%d' % vPn, 34, 0, 's[88:89]', cfg.get('P1_SLP', 8))
            state['wok'] = True
            st.burst(cfg.get('IN_W3', 12))
            role_signal(vOne, vOob, 1); vq.issue()
        for j4 in range(4):
            for j in range(4 * j4, 4 * j4 + 4):
                for d in range(4):
                    r = vr(8 * j + 2 * d, 2)
                    a.e('v_pk_mul_f32 %s, %s, %s op_sel_hi:[1,0]' % (r, r, nm))
                for d in range(4):
                    r = 8 * j + 2 * d
                    a.e('v_cvt_pk_bf16_f32 v%d, v%d, v%d' % (RAWX + 4 * j + d, r, r + 1))
            for j in range(4 * j4, 4 * j4 + 4):
                a.e('ds_write_b128 v%d, %s offset:%d' % (vX, vr(RAWX + 4 * j, 4), 2048 * j))
            st.burst(cfg.get('IN_W4', 4) if F3 else cfg.get('IN_W2', 2))
        a.dense = False
    a.e('s_lshl_b32 s%d, s%d, 12' % (sB, sWave))
    a.e('s_add_u32 s47, s%d, s%d' % (sA, sB))
    a.e('s_waitcnt lgkmcnt(0)')
    a.e('s_barrier')
    if ST2: stamp_mid(a, 0)
    a.e('s_cmp_eq_u32 s%d, 0' % sCG)
    a.e('s_cbranch_scc1 %s_g' % name)
    import copy
    snap = (copy.deepcopy(vq.__dict__), [list(q) for q in st.qs], set(st.issued), st.last, a.clock, a.mfree)

    def npairs(t, blk): return [acc(t, 2 * blk) + 2 * j for j in range(4)]
    def body(isg):
        lq = LgQ(); sc = Sched(a, st); clk = []; deferred = []
        a.e('s_add_u32 s%d, s47, %d' % (sB, G_OFF if isg else U_OFF))
        a.e('s_add_u32 s%d, s%d, 0x8000' % (sC, sB))
        def treads(kk):
            ks = kk % 16; out = []
            for ts in range(4):
                dst = ar(TB + ((kk % 3) * 4 + ts) * 4, 4)
                if kk // 16 != QPOS: out.append(FD('ds_read_b128 %s, v%d offset:%d' % (dst, vN + (ts & 1), (ts >> 1) * 32768 + ks * 2048), lq, (kk, ts)))
                else: out.append(FD('ds_read_b128 %s, v%d offset:%d' % (dst, vK, (ts >> 1) * 32768 + ks * 2048 + (ts & 1) * 256), lq, (kk, ts)))
            return out
        def nstore(o, t, blk):
            return FM('buffer_store_dwordx4 %s, v%d, %s, s%d offen offset:%d' % (vr(o, 4), vRow, ws, sB if blk == 0 else sC, (t >> 1) * 1024 + (t & 1) * 128), vq)
        def burst(c):
            if isg and c >= 1:
                t, blk = (c - 1) >> 1, (c - 1) & 1
                for j, r in enumerate(npairs(t, blk)):
                    sj, qj = vr(SS + 8 * blk + 2 * j, 2), vr(SQ2 + 8 * blk + 2 * j, 2)
                    if t == 0: a.e('v_pk_mul_f32 %s, %s, %s' % (qj, vr(r, 2), vr(r, 2)))
                    else:
                        a.e('v_pk_fma_f32 %s, %s, %s, %s' % (qj, vr(r, 2), vr(r, 2), qj))
                        a.e('v_pk_add_f32 %s, %s, %s' % (sj, vr(r, 2), vr(npairs(0, blk)[j], 2) if t == 1 else sj))
            if c < 16:
                g = [vr(G + 2 * j, 2) for j in range(4)]; x = [vr(r, 2) for r in npairs(c >> 1, c & 1)]
                for j in range(4): a.e('v_pk_mul_f32 %s, %s, %s' % (g[j], x[j], x[j]))
                for j in range(4): a.e('v_pk_fma_f32 %s, %s, %s, %s' % (g[j], g[j], vr(C2, 2), vr(C1, 2)))
                for j in range(4): a.e('v_pk_mul_f32 %s, %s, %s' % (g[j], g[j], x[j]))
        def rest(c):
            t, blk = c >> 1, c & 1
            x0 = acc(t, 2 * blk); out = []
            for j in range(8): out.append(F('x', 'v_exp_f32 v%d, v%d' % (G + j, G + j)))
            for j in range(8): out.append(FV('v_add_f32 v%d, 1.0, v%d' % (G + j, G + j)))
            for j in range(8): out.append(F('x', 'v_rcp_f32 v%d, v%d' % (G + j, G + j)))
            for j in range(8): out.append(FV('v_mul_f32 v%d, v%d, v%d' % (x0 + j, x0 + j, G + j)))
            if not isg:
                for j in range(4): out.append(FV('v_cvt_pk_bf16_f32 v%d, v%d, v%d' % (x0 + j, x0 + 2 * j, x0 + 2 * j + 1)))
                deferred.append(nstore(x0, t, blk))
                if st.empty() or not cfg.get('IN_DEFER', 0):
                    for _ in range(cfg.get('IN_DN', 3)):
                        if deferred: out.append(deferred.pop(0))
            return out
        def xf_stores():
            out = []
            for j in (range(8) if isg else range(8, 16)):
                if j % 2 == 0: out.append(FS('s_add_u32 s57, s48, %d' % (j * 2048)))
                out.append(FM('buffer_store_dwordx4 %s, v%d, %s, s57 offen offset:%d' % (vr(RAWX + 4 * j, 4), vX, ws, (j % 2) * 2048), vq, 'xf'))
            return out
        QP = RAWX + (32 if isg else 0)
        def q_pack():
            out = []
            for ts in range(4):
                for dd in range(2):
                    o = QP + (ts * 2 + dd) * 4
                    for e in range(2):
                        for j in range(2):
                            r = acc(4 + 2 * dd + e, ts) + 2 * j
                            out.append(FV('v_cvt_pk_bf16_f32 v%d, v%d, v%d' % (o + 2 * e + j, r, r + 1)))
            return out
        def q_stores():
            return [FM('buffer_store_dwordx4 %s, v%d, %s, s%d offen offset:%d' % (vr(QP + (ts * 2 + dd) * 4, 4), vLane16, ws, 50 if ts < 2 else 51, dd * 2048 + (ts & 1) * 1024), vq, 'xf')
                    for ts in range(4) for dd in range(2)]
        plan = {}
        def spread_st(items, k0, per):
            x = 0.0
            for it in items:
                plan.setdefault(k0 + int(x), []).append(it)
                if it.kind == 'm': x += 1.0 / per
        if not LNP: spread_st(xf_stores(), cfg.get('IN_XK', 10), cfg.get('IN_XP', 8))
        spread_st(q_stores(), cfg.get('IN_QK', 32 if QPOS == 1 else 20), cfg.get('IN_QP', 8))
        lastst = max(plan)
        a.e('s_lshl_b32 s50, s46, 12')
        a.e('s_add_u32 s50, s50, s%d' % sA)
        a.e('s_add_u32 s50, s50, %d' % QF_OFF)
        a.e('s_add_u32 s51, s50, 0x8000')
        for f in treads(0) + treads(1): f.emit(a)
        ET = 217
        CP = cfg.get('IN_CP', 4) if QPOS == 1 else 2
        G0 = 16 if QPOS == 1 else 32
        carry = []
        for kk in range(48):
            part, ks = kk // 16, kk % 16
            if ks == 0: clk.append(a.clock)
            if ST2 and kk in (16, 32): stamp_mid(a, kk // 16); lq.done = lq.n
            if kk >= G0 and kk % CP == 0 and (kk - G0) // CP < 8:
                c = (kk - G0) // CP
                sc.flush(); st.flush()
                a.dense = True
                if kk == 32 and QPOS == 1:
                    for f in q_pack(): f.emit(a)
                burst(c); a.dense = False
                sc.add(rest(c))
            elif kk == 32 and QPOS == 1:
                sc.flush(); st.flush()
                for f in q_pack(): f.emit(a)
            if kk == 17 and QPOS == 0: sc.add(q_pack())
            if EK and kk == 31:
                el = attn_early_loads(vLane16, ET)
                for x_, g_ in enumerate(el[:8] + el[40:]):
                    vm = [t_ for t_ in g_ if t_.startswith('buffer')][0]
                    pre_ = carry + [t_ for t_ in g_[:g_.index(vm)] if not t_.startswith('s_nop')]; carry[:] = g_[g_.index(vm) + 1:]
                    st.add(0, 0, pre_, vm, ('ek', x_))
                for x_, g_ in enumerate(el[8:40]):
                    lastn = max(n_ for n_ in range(NW) if (n_ + 16) % RW == x_)
                    st.add(0, 0, carry + g_[:-1], g_[-1], ('eq', x_), (lambda l_=lastn: state['cons'] >= l_ and state.get('qok'))); carry[:] = []
            if EK and kk == cfg.get('IN_KP2', 42):
                st.flush()
                lb = '%s_pe%d' % (name, isg)
                vq.wait(a, 'poll')
                a.e('v_cmp_gt_u32 vcc, 8, v%d' % (ET + 1))
                a.e('s_cbranch_vccz %s_ok' % lb)
                poll(a, lb, ET, ET + 1, 8, 34)
                state['qok'] = True
            if F3 and kk == cfg.get('IN_K2A', 5):
                sc.add([FM('global_load_dword v%d, v%d, s[4:5] sc1' % (vPv, vPm), vq, 'p2')], front=True)
            if F3 and kk == cfg.get('IN_K2B', 8):
                st.flush()
                lb = '%s_p2%d' % (name, isg)
                vq.wait(a, 'p2')
                a.e('v_cmp_gt_u32 vcc, 16, v%d' % vPv)
                a.e('s_cbranch_vccz %s_ok' % lb)
                poll(a, lb, vPm, vPv, 16, 34)
                state['mok'] = True
            if kk in plan: sc.add(plan[kk], front=True)
            if F2 and kk == 30:
                sc.flush(); st.flush()
                attn_early_setup(a, sWave, vLane, vLane16, ET, LNP)
                if cfg.get('CPF', 1):
                    a.e('s_lshl_b32 s59, s%d, 6' % sWave)
                    a.e('v_add_u32 v%d, s59, v%d' % (ET + 4, vLane))
                    code_prefetch(a, name, ET + 5, ET + 6, 1, start='attn_kernel', end='attn_kernel_end', back=False, vtid=ET + 4); vq.issue()
            lq.wait(a, (kk, 3))
            st.wait(('w', kk * 4 + 3))
            if kk < 46: sc.add(treads(kk + 2), front=True)
            if F2 and not state.get('xsig') and kk > lastst + 3 and (vq.where['xf'] <= vq.done or kk == cfg.get('IN_KSIG', 34 if EK else 42)):
                vq.wait(a, 'xf')
                sc.add([FM('buffer_atomic_add v%d, v%d, %s, s86 offen sc1' % (vOne, vOob, ws), vq)]); state['xsig'] = kk
            if F2 and kk == cfg.get('IN_KPOLL', 39 if EK else 47):
                sc.add([FM('global_load_dword v%d, v%d, s[4:5] sc1' % (ET + 1, ET), vq, 'poll')], front=True)
            for t4 in range(4):
                n = kk * 4 + t4; t = ((4, 0, 4), (0, 4, 4))[QPOS][part] + t4
                for x, ts in enumerate(range(4) if t4 % 2 == 0 else range(3, -1, -1)):
                    ops = [wsl(n), ar(TB + ((kk % 3) * 4 + ts) * 4, 4)]
                    if part != QPOS: ops.reverse()
                    a.e('%s %s, %s, %s, %s' % (MF, vr(acc(t, ts), 4), ops[0], ops[1], '0' if ks == 0 else vr(acc(t, ts), 4)))
                    if x == 3: state['cons'] = n
                    cap = 0 if (x == 3 and t4 == 3) else 2
                    left = (CP - 1 - kk % CP) * 16 + (3 - t4) * 4 + 3 - x
                    units = sum(2 if f.kind in 'xm' else 1 for f in sc.q)
                    if kk >= G0 and cap and units > cfg.get('IN_PRESS', 1.5) * left: cap += 1
                    sc.gap(cap)
        sc.add(deferred); sc.flush(); st.flush()
        assert EK or st.empty()
        if cfg.get('V'): print('in', isg, [x[1] for x in st.slack[-48:]], clk + [a.clock], state)
        if ST2: stamp_mid(a, 3)
        early = []
        if EK:
            if cfg.get('V'): print('  early left', len(st.qs[0]))
            if isg: a.e('s_barrier')
        elif F2:
            assert state.get('xsig')
            lb = '%s_pe%d' % (name, isg)
            vq.wait(a, 'poll')
            a.e('v_cmp_gt_u32 vcc, 8, v%d' % (ET + 1))
            a.e('s_cbranch_vccz %s_ok' % lb)
            poll(a, lb, ET, ET + 1, 8, 34)
            a.e('s_barrier')
            early = attn_early_loads(vLane16, ET)
        def eload(n):
            if EK: st.burst(n); return
            for _ in range(n):
                if early:
                    for t_ in early.pop(0): a.e(t_)
        a.dense = True
        ONE = ET + 5
        a.e('v_mov_b32 v%d, 1.0' % ONE); a.e('v_mov_b32 v%d, 1.0' % (ONE + 1))
        eload(cfg.get('IN_E0', 8 if EK else 24))
        for c in range(8, 16):
            burst(c)
            g = [vr(G + 2 * j, 2) for j in range(4)]; x = [vr(r, 2) for r in npairs(c >> 1, c & 1)]
            for j in range(8): a.e('v_exp_f32 v%d, v%d' % (G + j, G + j))
            for j in range(4): a.e('v_pk_add_f32 %s, %s, %s' % (g[j], g[j], vr(ONE, 2)))
            for j in range(8): a.e('v_rcp_f32 v%d, v%d' % (G + j, G + j))
            for j in range(4): a.e('v_pk_mul_f32 %s, %s, %s' % (x[j], x[j], g[j]))
            if not isg:
                x0 = acc(c >> 1, 2 * (c & 1))
                for j in range(4): a.e('v_cvt_pk_bf16_f32 v%d, v%d, v%d' % (x0 + j, x0 + 2 * j, x0 + 2 * j + 1))
            eload(cfg.get('IN_E1', 4 if isg else 6))
        if isg: burst(16)
        else:
            eload(100)
            for c in range(8, 16): nstore(acc(c >> 1, 2 * (c & 1)), c >> 1, c & 1).emit(a)
        if isg:
            for sh in (8, 4, 2, 1):
                for r in range(SS, SS + 32):
                    a.e('v_add_f32_dpp v%d, v%d, v%d row_ror:%d row_mask:0xf bank_mask:0xf' % (r, r, r, sh))
                eload(3)
            a.e('s_lshl_b32 s52, s%d, 9' % sWave)
            a.e('s_add_u32 s52, s52, %d' % STL)
            a.e('v_lshlrev_b32 v%d, 5, v%d' % (vSw, vQ4))
            a.e('v_add_u32 v%d, s52, v%d' % (vSw, vSw))
            a.e('v_lshlrev_b32 v%d, 2, v%d' % (vSr, vLane))
            a.e('v_add_u32 v%d, %d, v%d' % (vSr, STL, vSr))
            a.e('s_mov_b32 exec_lo, 0x00010001'); a.e('s_mov_b32 exec_hi, 0x00010001')
            for x in range(8):
                a.e('ds_write_b128 v%d, %s offset:%d' % (vSw, vr(SS + 4 * x, 4), (x >> 2) * 256 + ((x >> 1) & 1) * 128 + (x & 1) * 16))
            a.e('s_mov_b64 exec, -1')
            a.e('s_waitcnt lgkmcnt(0)')
            a.e('s_barrier')
            R4 = G
            for w in range(4):
                a.e('ds_read2st64_b32 %s, v%d offset0:%d offset1:%d' % (vr(R4 + 2 * w, 2), vSr, 2 * w, 2 * w + 1))
            a.e('v_lshlrev_b32 v%d, 2, v%d' % (vSr, vLane))
            a.e('v_add_u32 v%d, s52, v%d' % (vSr, vSr))
            a.e('s_waitcnt lgkmcnt(0)')
            a.e('v_pk_add_f32 %s, %s, %s' % (vr(R4, 2), vr(R4, 2), vr(R4 + 2, 2)))
            a.e('v_pk_add_f32 %s, %s, %s' % (vr(R4 + 4, 2), vr(R4 + 4, 2), vr(R4 + 6, 2)))
            a.e('v_pk_add_f32 %s, %s, %s' % (vr(R4, 2), vr(R4, 2), vr(R4 + 4, 2)))
            a.e('v_mul_f32 v%d, %s, v%d' % (R4, fhex(1.0 / 512), R4))
            a.e('v_mul_f32 v%d, %s, v%d' % (R4 + 1, fhex(1.0 / 512), R4 + 1))
            a.e('v_fma_f32 v%d, -v%d, v%d, v%d' % (R4 + 1, R4, R4, R4 + 1))
            a.e('v_max_f32 v%d, 0, v%d' % (R4 + 1, R4 + 1))
            a.e('v_add_f32 v%d, %s, v%d' % (R4 + 1, fhex(1e-5), R4 + 1))
            a.e('v_rsq_f32 v%d, v%d' % (R4 + 1, R4 + 1))
            a.e('v_mul_f32 v%d, -v%d, v%d' % (R4, R4, R4 + 1))
            a.e('ds_write2st64_b32 v%d, v%d, v%d offset0:8 offset1:9' % (vSr, R4 + 1, R4))
            a.e('s_waitcnt lgkmcnt(0)')
            for x in range(8):
                a.e('ds_read_b128 %s, v%d offset:%d' % (vr(SS + 4 * x, 4), vSw, 2048 + (x >> 2) * 256 + ((x >> 1) & 1) * 128 + (x & 1) * 16))
            a.e('s_waitcnt lgkmcnt(0)')
            eload(100)
            for t2 in range(4):
                for t in (2 * t2, 2 * t2 + 1):
                    for blk in range(2):
                        for j, r in enumerate(npairs(t, blk)):
                            a.e('v_pk_fma_f32 %s, %s, %s, %s' % (vr(r, 2), vr(r, 2), vr(SS + 8 * blk + 2 * j, 2), vr(SQ2 + 8 * blk + 2 * j, 2)))
                        x0 = acc(t, 2 * blk)
                        for j in range(4): a.e('v_cvt_pk_bf16_f32 v%d, v%d, v%d' % (x0 + j, x0 + 2 * j, x0 + 2 * j + 1))
                for t in (2 * t2, 2 * t2 + 1):
                    for blk in range(2): nstore(acc(t, 2 * blk), t, blk).emit(a)
        a.dense = False
        if F2:
            a.e('s_waitcnt vmcnt(%d)' % (16 if isg else 8))
            a.e('s_lshl_b32 s50, s%d, 6' % sWave)
            a.e('v_add_u32 v0, s50, v%d' % vLane)
            a.e('s_branch attn_body')
        elif STAMP: stamp_end(a, sWave)
    body(False)
    a.e('s_endpgm')
    a.label('%s_g' % name, reset=True)
    vq.__dict__.update(snap[0]); st.qs = snap[1]; st.issued = snap[2]; st.last = snap[3] + (a.clock - snap[4]); st.cur = []; st.due = st.last
    state['cons'] = -1; state['xsig'] = None; state['mok'] = not F3; state['qok'] = False
    body(True)
    a.label('%s_end' % name)
    a.e('s_endpgm')
    if F3: return None
    return dict(name=name, vgpr=512, sgpr=96, accum=256, grid=256, block=256, lds=163840 if F2 else 65536 + 4096)
```

```python
import math
from common import *
from attn16 import stamp_begin, stamp_mid, stamp_end

N_M, N_VO, N_RL, N_DW, N_TP = 128, 64, 40, 0, 12
P = 1040

def gen_prep(a, name='prep_kernel', cfg=None):
    cfg = cfg or {}
    STAMP = cfg.get('STAMP', False)
    total = N_M + N_VO + N_RL + N_DW + N_TP
    F3 = cfg.get('FUSE3', 0)
    LNP = cfg.get('LNP', 1) and not F3
    NX = 16 if (F3 or LNP) else 0
    def fin():
        if F3: a.e('s_branch in_body')
        else:
            if STAMP: stamp_end(a, 3, nw=8 if LNP else 4)
            a.e('s_endpgm')
    kernel_begin(a, name)
    a.e('s_cmp_ge_u32 s2, 256')
    a.e('s_cbranch_scc1 %s_end' % name)
    a.e('s_load_dwordx16 s[16:31], s[0:1], 0')
    a.e('s_load_dwordx2 s[4:5], s[0:1], 80')
    if F3: a.e('s_load_dwordx2 s[88:89], s[0:1], 72')
    if STAMP: stamp_begin(a)
    if cfg.get('CPF', 1):
        a.e('s_lshr_b32 s62, s2, 3')
        a.e('s_min_u32 s62, s62, 5')
        a.e('s_lshl_b32 s62, s62, 15')
        code_prefetch(a, name, 120, 121, 1, end=cfg.get('LAST_END', 'tail_kernel_end'), part_sgpr=62)
    a.e('v_lshrrev_b32 v1, 6, v0')
    a.e('v_and_b32 v2, 63, v0')
    a.e('v_readfirstlane_b32 s3, v1')
    a.e('v_lshlrev_b32 v3, 4, v2')
    a.e('v_lshrrev_b32 v4, 4, v2')
    a.e('v_and_b32 v5, 15, v2')
    a.e('s_waitcnt lgkmcnt(0)')
    make_srd(a, 8, 4, WS_BYTES)
    ws = 's[8:11]'
    if F3:
        a.e('s_lshr_b32 s85, s2, 4')
        a.e('s_lshl_b32 s85, s85, 3')
        a.e('s_and_b32 s56, s2, 7')
        a.e('s_or_b32 s85, s85, s56')
        a.e('s_bfe_u32 s57, s2, 0x10003')
        a.e('s_lshl_b32 s57, s57, 7')
        a.e('s_or_b32 s85, s85, s57')
        make_srd(a, 52, 16, 8192000)
        make_srd(a, 92, 88, 256)
        a.e('s_lshl_b32 s56, s56, 4')
        a.e('s_lshr_b32 s57, s2, 4')
        a.e('s_add_u32 s56, s56, s57')
        a.e('s_lshl_b32 s56, s56, 16')
        a.e('s_lshl_b32 s57, s3, 14')
        a.e('s_add_u32 s56, s56, s57')
        a.e('v_lshlrev_b32 v122, 10, v5')
        a.e('v_lshl_add_u32 v122, v4, 4, v122')
        a.e('v_cmp_ne_u32 vcc, 0, v2')
        a.e('v_mov_b32 v124, 0x40000000')
        a.e('v_cndmask_b32 v123, 0, v124, vcc')
        a.e('v_mov_b32 v124, 1')
        a.e('s_mov_b32 s87, %d' % (RC_OFF + 8 * 128))
        a.e('s_mov_b32 s91, 0x40000000')
    else:
        a.e('s_mov_b32 s85, s2')
    if LNP:
        a.e('s_cmp_lt_u32 s3, 4')
        a.e('s_cbranch_scc1 %s_role' % name)
        make_srd(a, 52, 16, 8192000)
        a.e('s_lshl_b32 s58, s2, 16')
        a.e('s_and_b32 s59, s3, 3')
        a.e('s_lshl_b32 s57, s59, 13')
        a.e('s_add_u32 s56, s58, s57')
        a.e('s_add_u32 s65, s56, 0x8000')
        assert XF_OFF == 0
        a.e('v_and_b32 v193, 7, v2')
        a.e('v_lshrrev_b32 v194, 3, v2')
        a.e('v_lshlrev_b32 v122, 10, v193')
        a.e('v_lshl_add_u32 v122, v194, 4, v122')
        a.e('s_lshl_b32 s57, s59, 3')
        a.e('v_add_u32 v193, s57, v193')
        a.e('v_and_b32 v192, 1, v194')
        a.e('v_mul_u32_u24 v192, 12, v192')
        a.e('v_xor_b32 v192, v192, v193')
        a.e('v_lshlrev_b32 v192, 4, v192')
        a.e('v_lshl_add_u32 v192, v194, 9, v192')
    def xload(m=False):
        if LNP: return 0
        for j in range(NX):
            a.e('buffer_load_dwordx4 %s, v122, s[52:55], s56 offen offset:%d' % (vr(128 + 4 * j, 4), 64 * j))
        return NX
    def ln_code(extra, tag):
        lx = '%s_lnx%s' % (name, tag)
        a.e('s_mov_b32 s90, 0xffff0000')
        T = 196
        p0, p1, nm = vr(T, 2), vr(T + 2, 2), vr(T + 4, 2)
        for XB in (128, 160):
            a.dense = True
            for j in range(8):
                a.e('s_waitcnt vmcnt(%d)' % (15 - j))
                for d in range(4):
                    a.e('v_lshlrev_b32 v%d, 16, v%d' % (8 * j + 2 * d, XB + 4 * j + d))
                    a.e('v_and_b32 v%d, s90, v%d' % (8 * j + 2 * d + 1, XB + 4 * j + d))
                if j == 0:
                    a.e('v_pk_add_f32 %s, %s, %s' % (p0, vr(0, 2), vr(2, 2))); a.e('v_pk_add_f32 %s, %s, %s' % (p1, vr(4, 2), vr(6, 2)))
                else:
                    for d in range(4): a.e('v_pk_add_f32 %s, %s, %s' % ((p0, p1)[d % 2], (p0, p1)[d % 2], vr(8 * j + 2 * d, 2)))
            a.e('v_pk_add_f32 %s, %s, %s' % (p0, p0, p1))
            a.e('v_add_f32 v%d, v%d, v%d' % (T, T, T + 1))
            a.e('v_add_f32_dpp v%d, v%d, v%d row_ror:8 row_mask:0xf bank_mask:0xf' % (T, T, T))
            quad_reduce(a, 'v_add_f32', T, T + 1)
            a.e('v_mul_f32 v%d, %s, v%d' % (T + 4, fhex(-1.0 / 512), T))
            for p in range(32):
                r = vr(2 * p, 2)
                a.e('v_pk_add_f32 %s, %s, %s op_sel_hi:[1,0]' % (r, r, nm))
                q = (p0, p1)[p % 2]
                if p < 2: a.e('v_pk_mul_f32 %s, %s, %s' % (q, r, r))
                else: a.e('v_pk_fma_f32 %s, %s, %s, %s' % (q, r, r, q))
            a.e('v_pk_add_f32 %s, %s, %s' % (p0, p0, p1))
            a.e('v_add_f32 v%d, v%d, v%d' % (T, T, T + 1))
            a.e('v_add_f32_dpp v%d, v%d, v%d row_ror:8 row_mask:0xf bank_mask:0xf' % (T, T, T))
            quad_reduce(a, 'v_add_f32', T, T + 1)
            a.e('v_mul_f32 v%d, %s, v%d' % (T, fhex(1.0 / 512), T))
            a.e('v_add_f32 v%d, %s, v%d' % (T, fhex(1e-5), T))
            a.e('v_rsq_f32 v%d, v%d' % (T + 4, T))
            for j in range(8):
                for d in range(4):
                    r = vr(8 * j + 2 * d, 2)
                    a.e('v_pk_mul_f32 %s, %s, %s op_sel_hi:[1,0]' % (r, r, nm))
                for d in range(4):
                    r = 8 * j + 2 * d
                    a.e('v_cvt_pk_bf16_f32 v%d, v%d, v%d' % (XB + 4 * j + d, r, r + 1))
                a.e('buffer_store_dwordx4 %s, v192, %s, s58 offen' % (vr(XB + 4 * j, 4), ws))
                a.e('s_add_u32 s58, s58, 0x1000')
            a.dense = False
        a.label(lx)
    if LNP:
        a.e('s_cmp_ge_u32 s2, 125')
        a.e('s_cbranch_scc1 %s_end' % name)
        for j in range(16):
            a.e('buffer_load_dwordx4 %s, v122, s[52:55], s%d offen offset:%d' % (vr(128 + 4 * j, 4), 56 if j < 8 else 65, 128 * (j % 8)))
        if cfg.get('LN_BAR', 1):
            a.e('s_cmp_ge_u32 s2, %d' % (N_M + N_VO))
            a.e('s_cbranch_scc1 %s_nb' % name)
            a.e('s_barrier')
            a.label('%s_nb' % name)
        ln_code(0, 'w')
        fin()
        a.label('%s_role' % name, reset=True)
    a.e('s_cmp_lt_u32 s85, %d' % N_M)
    a.e('s_cbranch_scc1 %s_m' % name)
    a.e('s_cmp_lt_u32 s85, %d' % (N_M + N_VO))
    a.e('s_cbranch_scc1 %s_vo' % name)
    a.e('s_cmp_lt_u32 s85, %d' % (N_M + N_VO + N_RL))
    a.e('s_cbranch_scc1 %s_rl' % name)
    a.e('s_cmp_lt_u32 s85, %d' % total)
    a.e('s_cbranch_scc1 %s_tp' % name)
    a.e('s_mov_b32 s87, 0x40000000')
    a.e('s_cmp_eq_u32 s85, %d' % total)
    a.e('s_cbranch_scc0 %s_xt' % name)
    a.e('s_mov_b32 s6, %d' % CNT_OFF)
    a.e('s_mov_b32 s91, 32')
    for r_ in range(8, 12): a.e('v_mov_b32 v%d, 0' % r_)
    a.e('v_lshlrev_b32 v6, 4, v0')
    for j in range(7):
        a.e('buffer_store_dwordx4 v[8:11], v6, %s, s6 offen' % ws)
        a.e('s_add_u32 s6, s6, 0x1000')
    a.e('s_branch %s_xt' % name)
    a.label('%s_tp' % name, reset=True)

    a.e('s_sub_u32 s6, s85, %d' % (N_M + N_VO + N_RL + N_DW))
    a.e('s_cmp_lt_u32 s6, 4')
    a.e('s_cselect_b32 s32, s24, s28')
    a.e('s_cselect_b32 s33, s25, s29')
    a.e('s_cselect_b32 s34, 1, 2')
    a.e('s_cselect_b32 s39, 0, 16')
    a.e('s_lshl_b32 s34, s34, 10')
    a.e('s_mul_i32 s35, s34, 31')
    make_srd(a, 12, 32, 0)
    a.e('s_mov_b32 s14, s35')
    a.e('s_lshl_b32 s36, s6, 2')
    a.e('s_add_u32 s36, s36, s3')
    a.e('s_mul_i32 s37, s36, 9216')
    a.e('s_add_u32 s37, s37, %d' % TPC_OFF)
    a.e('s_sub_u32 s36, s36, s39')
    a.e('s_lshl_b32 s36, s36, 6')
    a.e('v_and_b32 v6, 3, v2')
    a.e('v_add_u32 v6, 1, v6')
    a.e('v_mul_lo_u32 v6, v6, s34')
    a.e('v_lshrrev_b32 v7, 2, v2')
    a.e('v_lshlrev_b32 v7, 1, v7')
    a.e('v_add_u32 v7, s36, v7')
    a.e('v_sub_u32 v6, v7, v6')
    for h in range(36):
        m, hi = h // 2, h % 2
        for g2 in range(2):
            a.e('buffer_load_ushort v%d, v6, s[12:15], 0 offen offset:%d' % (16 + 36 * hi + 18 * g2 + m, 32 * g2))
        if h < 35: a.e('v_add_u32 v6, s34, v6')
    a.e('s_waitcnt vmcnt(%d)' % xload())
    for d in range(36):
        a.e('v_lshl_or_b32 v%d, v%d, 16, v%d' % (16 + d, 52 + d, 16 + d))
    for q in range(9):
        if q and q % 4 == 0: a.e('s_add_u32 s37, s37, 0x1000')
        a.e('buffer_store_dwordx4 %s, v3, %s, s37 offen offset:%d' % (vr(16 + 4 * q, 4), ws, (q % 4) * 1024))
    fin()
    def rows_dma(srd, nrows, s_src, s_lds):
        for r in range(nrows):
            a.e('s_add_u32 m0, s%d, %d' % (s_lds, r * P))
            a.e('s_add_u32 s45, s%d, %d' % (s_src, r * 3072))
            a.e('buffer_load_dwordx4 v3, %s, s45 offen lds' % srd)

    a.label('%s_m' % name, reset=True)
    make_srd(a, 12, 18, 512 * 1536 * 2)
    a.e('s_lshr_b32 s32, s85, 3')
    a.e('s_and_b32 s33, s85, 7')
    a.e('s_lshl_b32 s87, s33, 7')
    a.e('s_add_u32 s87, s87, %d' % RC_OFF)
    a.e('s_lshl_b32 s34, s32, 5'); a.e('s_lshl_b32 s35, s3, 3'); a.e('s_add_u32 s34, s34, s35'); a.e('s_mul_i32 s34, s34, 3072')
    a.e('s_mul_i32 s36, s3, %d' % (8 * P))
    rows_dma('s[12:15]', 8, 34, 36)
    a.e('s_lshl_b32 s34, s33, 6'); a.e('s_lshl_b32 s35, s3, 4'); a.e('s_add_u32 s34, s34, s35'); a.e('s_mul_i32 s34, s34, 3072')
    a.e('s_add_u32 s34, s34, 1024')
    a.e('s_mul_i32 s36, s3, %d' % (16 * P)); a.e('s_add_u32 s36, s36, %d' % (32 * P))
    rows_dma('s[12:15]', 16, 34, 36)
    a.e('v_lshrrev_b32 v6, 2, v5'); a.e('v_lshlrev_b32 v6, 3, v6'); a.e('v_and_b32 v7, 3, v5'); a.e('v_add_u32 v6, v6, v7')
    a.e('v_mul_u32_u24 v6, %d, v6' % P)
    a.e('v_lshl_add_u32 v6, v4, 4, v6')
    a.e('s_lshr_b32 s36, s3, 1'); a.e('s_lshl_b32 s36, s36, 3'); a.e('s_and_b32 s37, s3, 1'); a.e('s_add_u32 s36, s36, s37')
    a.e('s_mul_i32 s36, s36, %d' % (4 * P)); a.e('s_add_u32 s36, s36, %d' % (32 * P))
    a.e('v_add_u32 v7, s36, v6')
    a.e('s_mul_i32 s34, s33, 192')
    a.e('s_lshl_b32 s35, s32, 2')
    a.e('s_add_u32 s34, s34, s35')
    a.e('s_add_u32 s34, s34, s3')
    a.e('s_lshl_b32 s34, s34, 10')
    a.e('s_add_u32 s34, s34, %d' % (W1_OFF + 128 * 1024))
    a.e('s_mov_b32 s38, %s' % fhex(512 ** -0.5 * math.log2(math.e)))
    a.e('s_waitcnt vmcnt(%d)' % xload(True))
    a.e('s_barrier')
    if STAMP and not F3: stamp_mid(a, 0)
    lq = LgQ()
    def rd(kk):
        b = 32 + 12 * (kk % 5)
        a.e('ds_read_b128 %s, v6 offset:%d' % (vr(b, 4), kk * 64)); lq.issue()
        a.e('ds_read_b128 %s, v6 offset:%d' % (vr(b + 4, 4), kk * 64 + 4 * P)); lq.issue()
        a.e('ds_read_b128 %s, v7 offset:%d' % (vr(b + 8, 4), kk * 64)); lq.issue(kk)
    for kk in range(4): rd(kk)
    for kk in range(16):
        if kk + 4 < 16: rd(kk + 4)
        lq.wait(a, kk)
        b = 32 + 12 * (kk % 5)
        for e in range(2):
            a.e('%s %s, %s, %s, %s' % (MF, vr(16 + 4 * e, 4), vr(b + 4 * e, 4), vr(b + 8, 4), '0' if kk == 0 else vr(16 + 4 * e, 4)))
    for r in range(8):
        a.e('v_mul_f32 v%d, s38, v%d' % (16 + r, 16 + r))
    for d in range(4):
        a.e('v_cvt_pk_bf16_f32 v%d, v%d, v%d' % (24 + d, 16 + 2 * d, 17 + 2 * d))
    a.e('buffer_store_dwordx4 v[24:27], v3, %s, s34 offen' % ws)
    fin()

    def load_strip():
        a.e('v_lshrrev_b32 v7, 3, v2')
        a.e('v_bfe_u32 v8, v2, 4, 1')
        a.e('v_lshlrev_b32 v8, 2, v8')
        a.e('v_and_b32 v9, 7, v2')
        a.e('v_xor_b32 v8, v8, v9')
        a.e('v_mul_lo_u32 v7, v7, s42')
        a.e('v_lshl_add_u32 v7, v8, 4, v7')
        a.e('s_lshl_b32 s41, s42, 3')
        a.e('s_lshl_b32 s43, s3, 4')
        a.e('s_mul_i32 s43, s43, s41')
        a.e('s_add_u32 s40, s40, s43')
        a.e('s_lshl_b32 s44, s3, 14')
        for j in range(16):
            a.e('s_add_u32 m0, s44, %d' % (1024 * j))
            if j: a.e('s_add_u32 s40, s40, s41')
            a.e('buffer_load_dwordx4 v7, s[12:15], s40 offen lds')
        a.e('v_bfe_u32 v8, v2, 2, 2')
        a.e('v_lshl_add_u32 v9, v4, 3, v8')
        a.e('v_lshlrev_b32 v9, 7, v9')
        a.e('v_lshrrev_b32 v8, 1, v8')
        a.e('v_lshl_add_u32 v9, v8, 6, v9')
        a.e('v_and_b32 v8, 3, v2')
        a.e('v_lshlrev_b32 v8, s63, v8')
        a.e('v_add_u32 v8, v8, v9')
        a.e('v_xor_b32 v9, 64, v8')
        a.e('v_add_u32 v10, s59, v8')
        a.e('v_xor_b32 v11, 64, v10')

    a.label('%s_vo' % name, reset=True)
    a.e('s_sub_u32 s6, s85, %d' % N_M)
    a.e('s_lshr_b32 s33, s6, 3')
    a.e('s_and_b32 s32, s6, 7')
    make_srd(a, 12, 20, 512 * 512 * 2)
    make_srd(a, 48, 18, 512 * 1536 * 2)
    a.e('s_lshl_b32 s40, s33, 7')
    a.e('s_mov_b32 s42, 1024')
    a.e('s_mov_b32 s63, 3'); a.e('s_mov_b32 s59, 32')
    load_strip()
    a.e('s_lshl_b32 s34, s32, 6'); a.e('s_lshl_b32 s35, s3, 4'); a.e('s_add_u32 s34, s34, s35'); a.e('s_mul_i32 s34, s34, 3072')
    a.e('s_add_u32 s34, s34, 2048')
    a.e('s_mul_i32 s36, s3, %d' % (16 * P)); a.e('s_add_u32 s36, s36, 65536')
    rows_dma('s[48:51]', 16, 34, 36)
    a.e('s_bitcmp1_b32 s3, 0')
    a.e('s_cselect_b64 vcc, -1, 0')
    a.e('v_cndmask_b32 v8, v8, v9, vcc')
    a.e('v_cndmask_b32 v9, v10, v11, vcc')
    a.e('v_mul_u32_u24 v6, %d, v5' % P)
    a.e('v_lshl_add_u32 v6, v4, 4, v6')
    a.e('s_lshr_b32 s36, s3, 1')
    a.e('s_mul_i32 s37, s36, %d' % (32 * P)); a.e('s_add_u32 s37, s37, 65536')
    a.e('v_add_u32 v6, s37, v6')
    a.e('s_lshr_b32 s34, s33, 1')
    a.e('s_lshl_b32 s34, s34, 4')
    a.e('s_lshl_b32 s35, s32, 1'); a.e('s_add_u32 s35, s35, s36')
    a.e('s_add_u32 s34, s34, s35')
    a.e('s_lshl_b32 s34, s34, 3')
    a.e('s_and_b32 s35, s3, 1'); a.e('s_lshl_b32 s35, s35, 1')
    a.e('s_add_u32 s34, s34, s35')
    a.e('s_and_b32 s35, s33, 1'); a.e('s_lshl_b32 s35, s35, 2')
    a.e('s_add_u32 s34, s34, s35')
    a.e('s_lshl_b32 s34, s34, 10')
    a.e('s_add_u32 s34, s34, %d' % W2_OFF)
    a.e('s_waitcnt vmcnt(%d)' % xload())
    a.e('s_barrier')
    if STAMP and not F3: stamp_mid(a, 0)
    lq = LgQ()
    def rd2(kk):
        b = 32 + 16 * (kk % 3)
        for e in range(2):
            a.e('ds_read_b128 %s, v6 offset:%d' % (vr(b + 4 * e, 4), kk * 64 + 16 * P * e)); lq.issue()
        for o in range(2):
            a.e('ds_read_b64_tr_b16 %s, v%d offset:%d' % (vr(b + 8 + 4 * o, 2), 8 + o, kk * 4096)); lq.issue()
            a.e('ds_read_b64_tr_b16 %s, v%d offset:%d' % (vr(b + 8 + 4 * o + 2, 2), 8 + o, kk * 4096 + 512)); lq.issue(kk)
    rd2(0); rd2(1)
    for kk in range(16):
        if kk + 2 < 16: rd2(kk + 2)
        lq.wait(a, kk)
        b = 32 + 16 * (kk % 3)
        for o in range(2):
            for e in range(2):
                acc = vr(16 + 8 * o + 4 * e, 4)
                a.e('%s %s, %s, %s, %s' % (MF, acc, vr(b + 4 * e, 4), vr(b + 8 + 4 * o, 4), '0' if kk == 0 else acc))
    for o in range(2):
        for d in range(4):
            a.e('v_cvt_pk_bf16_f32 v%d, v%d, v%d' % (80 + 4 * o + d, 16 + 8 * o + 2 * d, 17 + 8 * o + 2 * d))
        a.e('buffer_store_dwordx4 %s, v3, %s, s34 offen offset:%d' % (vr(80 + 4 * o, 4), ws, 1024 * o))
    fin()

    a.label('%s_rl' % name, reset=True)
    a.e('s_sub_u32 s6, s85, %d' % (N_M + N_VO))
    a.e('s_mov_b32 s63, 4'); a.e('s_mov_b32 s59, 8')
    a.e('s_cmp_lt_u32 s6, 16')
    a.e('s_cbranch_scc1 %s_rl_mi' % name)
    a.e('s_cmp_lt_u32 s6, 24')
    a.e('s_cbranch_scc1 %s_rl_mo' % name)
    a.e('s_sub_u32 s6, s6, 24')
    a.e('s_lshr_b32 s36, s6, 3')
    a.e('s_and_b32 s33, s6, 7')
    make_srd(a, 12, 30, 1024 * 512 * 2)
    a.e('s_lshl_b32 s40, s33, 7')
    a.e('s_lshl_b32 s37, s36, 19')
    a.e('s_add_u32 s40, s40, s37')
    a.e('s_mov_b32 s42, 1024')
    a.e('s_lshr_b32 s34, s6, 1')
    a.e('s_lshl_b32 s34, s34, 17')
    a.e('s_xor_b32 s37, s6, s36')
    a.e('s_xor_b32 s37, s37, 1')
    a.e('s_and_b32 s37, s37, 1')
    a.e('s_lshl_b32 s37, s37, 16')
    a.e('s_add_u32 s34, s34, s37')
    a.e('s_add_u32 s34, s34, %d' % W3_OFF)
    a.e('s_mov_b32 s35, 4096')
    a.e('s_branch %s_rl_go' % name)
    a.label('%s_rl_mo' % name, reset=True)
    a.e('s_sub_u32 s33, s6, 16')
    a.e('s_mov_b32 s63, 3'); a.e('s_mov_b32 s59, 32')
    make_srd(a, 12, 26, 512 * 512 * 2)
    a.e('s_lshl_b32 s40, s33, 7')
    a.e('s_mov_b32 s42, 1024')
    a.e('s_lshr_b32 s34, s33, 1')
    a.e('s_lshl_b32 s34, s34, 17')
    a.e('s_and_b32 s37, s33, 1')
    a.e('s_lshl_b32 s37, s37, 12')
    a.e('s_add_u32 s34, s34, s37')
    a.e('s_add_u32 s34, s34, %d' % (W2_OFF + 512 * 1024))
    a.e('s_mov_b32 s35, 8192')
    a.e('s_branch %s_rl_go' % name)
    a.label('%s_rl_mi' % name, reset=True)
    make_srd(a, 12, 22, 512 * 1024 * 2)
    a.e('s_lshl_b32 s40, s6, 7')
    a.e('s_mov_b32 s42, 2048')
    a.e('s_xor_b32 s33, s6, 8')
    a.e('s_lshr_b32 s34, s33, 1')
    a.e('s_lshl_b32 s91, s34, 2')
    a.e('s_mov_b32 s87, 0x40000000')
    a.e('s_mul_i32 s34, s34, 192')
    a.e('s_and_b32 s37, s33, 1')
    a.e('s_lshl_b32 s37, s37, 6')
    a.e('s_add_u32 s34, s34, s37')
    a.e('s_lshl_b32 s34, s34, 10')
    a.e('s_add_u32 s34, s34, %d' % W1_OFF)
    a.e('s_mov_b32 s35, 4096')
    a.label('%s_rl_go' % name, reset=True)
    load_strip()
    nxr = xload(True) if LNP else 0
    for r_ in (8, 9, 10, 11): a.e('v_add_u32 v%d, s44, v%d' % (r_, r_))
    a.e('s_lshl_b32 s37, s3, 2')
    a.e('s_mul_i32 s37, s37, s35')
    a.e('s_add_u32 s34, s34, s37')
    for k4 in range(4):
        a.e('s_waitcnt vmcnt(%d)' % (12 + nxr))
        for q in range(4):
            b = 16 + 16 * k4 + 4 * q
            ad = 8 + (q >> 1) + 2 * (q & 1)
            a.e('ds_read_b64_tr_b16 %s, v%d offset:%d' % (vr(b, 2), ad, k4 * 4096))
            a.e('ds_read_b64_tr_b16 %s, v%d offset:%d' % (vr(b + 2, 2), ad, k4 * 4096 + 512))
        a.e('s_waitcnt lgkmcnt(0)')
        for q in range(4):
            a.e('buffer_store_dwordx4 %s, v3, %s, s34 offen offset:%d' % (vr(16 + 16 * k4 + 4 * q, 4), ws, 1024 * q))
        if k4 < 3: a.e('s_add_u32 s34, s34, s35')
    a.label('%s_xt' % name, reset=True)
    if F3:
        a.e('s_cmp_lt_u32 s91, 256')
        a.e('s_cbranch_scc0 %s_ns' % name)
        a.e('s_waitcnt vmcnt(0)')
        a.e('buffer_atomic_add v124, v123, s[92:95], s91 offen sc1')
        a.label('%s_ns' % name)
    xload()
    fin()
    a.label('%s_end' % name)
    a.e('s_endpgm')
    if F3: return dict(name=name, vgpr=512, sgpr=100, accum=256, grid=256, block=256, lds=163840)
    return dict(name=name, vgpr=208, sgpr=96, accum=208, grid=256, block=512 if LNP else 256, lds=65536 + 64 * P)

def chan_combine(a, P, n, cnt, oA, oB, tmp):
    a.e('v_add_f32 v%d, v%d, v%d' % (oB, P, P + 2))
    a.e('v_add_f32 v%d, v%d, v%d' % (oA, P + 1, P + 3))
    for i in range(2, n):
        a.e('v_add_f32 v%d, v%d, v%d' % (oB, oB, P + 2 * i))
        a.e('v_add_f32 v%d, v%d, v%d' % (oA, oA, P + 2 * i + 1))
    a.e('v_mul_f32 v%d, %s, v%d' % (oB, fhex(1.0 / n), oB))
    a.e('v_mov_b32 v%d, 0' % (tmp + 1))
    for i in range(n):
        a.e('v_sub_f32 v%d, v%d, v%d' % (tmp, P + 2 * i, oB))
        a.e('v_fmac_f32 v%d, v%d, v%d' % (tmp + 1, tmp, tmp))
    a.e('v_mul_f32 v%d, %s, v%d' % (tmp + 1, fhex(float(cnt)), tmp + 1))
    a.e('v_add_f32 v%d, v%d, v%d' % (oA, oA, tmp + 1))
    a.e('v_mul_f32 v%d, %s, v%d' % (oA, fhex(1.0 / (n * cnt)), oA))
    a.e('v_add_f32 v%d, %s, v%d' % (oA, fhex(1e-5), oA))
    a.e('v_rsq_f32 v%d, v%d' % (oA, oA))
    a.e('v_mul_f32 v%d, v%d, v%d' % (oB, oB, oA))
    a.e('v_sub_f32 v%d, 0, v%d' % (oB, oB))
```

```python
import copy
from asmlib import *
from layout import *

class LdsQ:
    def __init__(self):
        self.n = 0; self.done = 0; self.where = {}; self.pending = set()
    def issue(self, regs, check=True):
        self.n += 1
        for r in regs:
            if check: assert r not in self.pending, ('ring WAR', r)
            self.where[r] = self.n; self.pending.add(r)
    def consume(self, r):
        self.pending.discard(r); self.pending.discard(r + 1000)
    def need(self, regs):
        return max([self.where.get(r, 0) for r in regs] + [0])
    def wait_for(self, a, idx):
        if idx <= self.done: return
        N = min(self.n - idx, 15)
        a.e('s_waitcnt lgkmcnt(%d)' % N)
        self.done = self.n - N
    def drained(self):
        self.done = self.n
    def state(self):
        return (self.n - self.done, sorted((self.n - v, k) for k, v in self.where.items() if v > self.done), sorted(self.pending))

MF = 'v_mfma_f32_16x16x32_bf16'

KIDX = [0]
MIDR = {76: 80, 77: 81, 0: 80, 1: 81, 2: 82, 3: 83, 4: 84}
def stamp_begin(a):
    a.e('s_memrealtime s[66:67]')
    a.e('s_memtime s[72:73]')
    for r in range(80, 85): a.e('s_mov_b32 s%d, 0' % r)
    KIDX[0] += 1
CYC = [False]
def stamp_mid(a, reg):
    if CYC[0]:
        a.e('s_memtime s[78:79]')
        a.e('s_waitcnt lgkmcnt(0)')
        a.e('s_cselect_b32 s79, 1, 0')
        a.e('s_sub_u32 s78, s78, s72')
        a.e('s_add_u32 s%d, s78, s66' % MIDR[reg])
        a.e('s_cmp_eq_u32 s79, 1')
        return
    a.e('s_memrealtime s[78:79]')
    a.e('s_waitcnt lgkmcnt(0)')
    a.e('s_mov_b32 s%d, s78' % MIDR[reg])
def stamp_end(a, sWave, endlabel=None, nw=4):
    a.e('s_waitcnt vmcnt(0)')
    a.e('s_memrealtime s[68:69]')
    a.e('s_memtime s[74:75]')
    a.e('s_waitcnt lgkmcnt(0)')
    a.e('s_sub_u32 s74, s74, s72')
    a.e('s_getreg_b32 s71, hwreg(HW_REG_XCC_ID)')
    a.e('s_and_b32 s71, s71, 15')
    a.e('s_lshl_b32 s71, s71, 28')
    a.e('s_or_b32 s74, s74, s71')
    a.e('s_mul_i32 s70, s2, %d' % nw)
    a.e('s_add_u32 s70, s70, s%d' % sWave)
    a.e('s_lshl_b32 s70, s70, 5')
    a.e('s_add_u32 s70, s70, %d' % (TRACE_OFF + (KIDX[0] - 1) * TRACE_STRIDE))
    a.e('s_mov_b64 exec, 1')
    a.e('v_mov_b32 v0, s66'); a.e('v_mov_b32 v1, s68'); a.e('v_mov_b32 v2, s74'); a.e('v_mov_b32 v3, s80')
    a.e('v_mov_b32 v4, s81'); a.e('v_mov_b32 v5, s82'); a.e('v_mov_b32 v6, s83'); a.e('v_mov_b32 v7, s84')
    a.e('v_mov_b32 v8, s70')
    a.e('global_store_dwordx4 v8, v[0:3], s[4:5]')
    a.e('global_store_dwordx4 v8, v[4:7], s[4:5] offset:16')

def attn_salu(a):
    sWave = 40; sM0 = 41; sDma = 42; sQ = 43; sI = 16; sN2 = 17; sValid = 18; sOut = 19; sMl = 20; sT0 = 21; sT1 = 22; sT2 = 23
    a.e('s_and_b32 s%d, s2, 7' % sT0)
    a.e('s_lshr_b32 s%d, s2, 3' % sT1)
    a.e('s_and_b32 s%d, s%d, 3' % (sT2, sT1))
    a.e('s_lshr_b32 s%d, s%d, 2' % (sT1, sT1))
    a.e('s_and_b32 s24, s%d, 3' % sT0)
    a.e('s_lshl_b32 s24, s24, 3')
    a.e('s_add_u32 s24, s24, s%d' % sT1)
    a.e('s_lshl_b32 s24, s24, 2')
    a.e('s_add_u32 s24, s24, s%d' % sWave)
    a.e('s_cmp_lt_u32 s24, 125')
    a.e('s_cselect_b32 s%d, 1, 0' % sValid)
    a.e('s_min_u32 s24, s24, 124')
    a.e('s_lshr_b32 s25, s%d, 2' % sT0)
    a.e('s_mul_i32 s25, s25, 125')
    a.e('s_add_u32 s24, s24, s25')
    a.e('s_lshl_b32 s%d, s24, 15' % sQ)
    a.e('s_mul_i32 s26, s%d, 250' % sT2)
    a.e('s_add_u32 s26, s26, s24')
    a.e('s_lshl_b32 s%d, s24, 17' % sOut)
    a.e('s_lshl_b32 s27, s%d, 10' % sT2)
    a.e('s_add_u32 s%d, s%d, s27' % (sOut, sOut))
    a.e('s_add_u32 s%d, s%d, %d' % (sOut, sOut, OP_OFF))
    a.e('s_lshl_b32 s%d, s24, 9' % sMl)
    a.e('s_lshl_b32 s26, s%d, 7' % sT2)
    a.e('s_add_u32 s%d, s%d, s26' % (sMl, sMl))
    a.e('s_add_u32 s%d, s%d, %d' % (sMl, sMl, ML_OFF))
    a.e('s_add_u32 s%d, s%d, %d' % (sQ, sQ, QF_OFF))
    a.e('s_mul_i32 s27, s%d, 31' % sT2)
    a.e('s_min_u32 s28, s%d, 1' % sT2)
    a.e('s_add_u32 s27, s27, s28')
    a.e('s_add_u32 s27, s27, s25')
    a.e('s_lshl_b32 s%d, s27, 15' % sDma)
    if XF_OFF: a.e('s_add_u32 s%d, s%d, %d' % (sDma, sDma, XF_OFF))
    a.e('s_sub_u32 s%d, 31, s28' % sN2)
    a.e('s_lshl_b32 s%d, s%d, 13' % (sM0, sWave))

def attn_early_setup(a, sW_in, vLane, vLane16, T, qonly=False):
    a.e('s_mov_b32 s40, s%d' % sW_in)
    attn_salu(a)
    a.e('s_add_u32 s34, s27, s17')
    a.e('s_lshr_b32 s34, s34, 1')
    a.e('s_lshr_b32 s36, s27, 1')
    a.e('v_add_u32 v%d, s36, v%d' % (T, vLane))
    a.e('v_min_u32 v%d, s34, v%d' % (T, T))
    a.e('s_lshr_b32 s34, s24, 1')
    a.e('v_mov_b32 v%d, s34' % (T + 1))
    if qonly: a.e('v_mov_b32 v%d, v%d' % (T, T + 1))
    else:
        a.e('v_cmp_lt_u32 vcc, 31, v%d' % vLane)
        a.e('v_cndmask_b32 v%d, v%d, v%d, vcc' % (T, T, T + 1))
    a.e('v_lshlrev_b32 v%d, 7, v%d' % (T, T))
    a.e('v_add_u32 v%d, %d, v%d' % (T, TC_OFF, T))
    a.e('v_add_u32 v%d, s41, v%d' % (T + 2, vLane16))
    a.e('v_add_u32 v%d, 0x1000, v%d' % (T + 3, T + 2))
def attn_early_loads(vLane16, T):
    out = []
    def tile(stage):
        for j in range(8):
            g = []
            if j % 4 == 0: g += ['s_add_u32 m0, s41, %d' % (stage * 32768 + (j // 4) * 4096), 's_nop 0']
            g.append('buffer_load_dwordx4 v%d, s[8:11], s42 offen offset:%d lds' % (T + 2 if j < 4 else T + 3, (j % 4) * 1024))
            if j == 7: g.append('s_add_u32 s42, s42, 0x8000')
            out.append(g)
    tile(0)
    for f in range(32):
        g = ['s_add_u32 s43, s43, 0x1000'] if (f and f % 4 == 0) else []
        g.append('buffer_load_dwordx4 %s, v%d, s[8:11], s43 offen offset:%d sc1' % (ar(4 * f, 4), vLane16, (f % 4) * 1024))
        out.append(g)
    tile(1); tile(2)
    return out

def gen_attn(a, name='attn_kernel', cfg=None):
    cfg = cfg or {}
    DV = cfg.get('DV', 9)
    DK = cfg.get('DK', 7)
    BARPOS = cfg.get('BARPOS', 31 - DV + 4)
    WG = cfg.get('WAITGROUP', 4)
    DMA_SLOTS = cfg.get('DMA_SLOTS', [2, 6, 10, 14, 18, 22, 26, 30])
    NO_DMA = cfg.get('NO_DMA', False)
    NO_SM = cfg.get('NO_SM', False)
    STAMP = cfg.get('STAMP', False)
    FUSE = cfg.get('FUSE', 1)
    S = [0, 16]; P = 32; RING = 40; NR = 16
    NEGM = 104
    vK = [112, 113]; vV = [114, 115]
    vD0, vD1, vL0, vL1, vMx, vT0, vT1, vLane16 = 116, 117, 118, 119, 120, 121, 122, 123
    vL = [vL0, vL1]
    def Sreg(b, kt, qs): return S[b] + (kt * 2 + qs) * 4
    def Obase(dt, qs): return (dt * 2 + qs) * 4
    def Oreg(dt, qs):
        o = Obase(dt, qs)
        return vr(128 + o, 4) if o < 128 else ar(o, 4)
    def Qreg(ks, qs): return ar((ks * 2 + qs) * 4, 4)
    sSRD = 8; sWave = 40; sM0 = 41; sDma = 42; sQ = 43; sI = 16; sN2 = 17; sValid = 18; sOut = 19; sMl = 20; sT0 = 21; sT1 = 22; sT2 = 23
    srd = sr(sSRD, 4)

    F2 = cfg.get('FUSE2', 1)
    from common import poll
    if F2:
        a.raw('.p2align 8'); a.label(name, reset=True); a.label('attn_body')
        a.e('s_nop 1')
    else:
        kernel_begin(a, name)
        a.e('s_cmp_ge_u32 s2, 256')
        a.e('s_cbranch_scc1 %s_end' % name)
        a.e('s_load_dwordx2 s[4:5], s[0:1], 80')
        if STAMP: stamp_begin(a)
    if cfg.get('CPF', 1) and not F2:
        from common import code_prefetch
        code_prefetch(a, name, 124, 125, 1)
    a.e('v_lshrrev_b32 v1, 6, v0')
    a.e('v_and_b32 v2, 63, v0')
    if not F2: a.e('v_readfirstlane_b32 s%d, v1' % sWave)
    a.e('v_lshlrev_b32 v%d, 4, v2' % vLane16)
    if not F2: attn_salu(a)
    a.e('v_add_u32 v%d, s%d, v%d' % (vD0, sM0, vLane16))
    a.e('v_add_u32 v%d, 0x1000, v%d' % (vD1, vD0))
    sG, sRd0, sRd1 = 29, 30, 31
    a.e('s_and_b32 s%d, s%d, 3' % (sG, sT0))
    a.e('s_lshl_b32 s%d, s%d, 5' % (sG, sG))
    a.e('s_lshr_b32 s34, s2, 3')
    a.e('s_add_u32 s%d, s%d, s34' % (sG, sG))
    a.e('s_add_u32 s%d, s%d, s25' % (sG, sG))
    a.e('s_lshl_b32 s%d, s%d, 15' % (sG, sG))
    a.e('s_add_u32 s35, s%d, %d' % (sG, U_OFF))
    a.e('s_add_u32 s%d, s%d, %d' % (sG, sG, G_OFF))
    a.e('s_sub_u32 s%d, s%d, 3' % (sRd0, sN2))
    a.e('s_sub_u32 s%d, s%d, 2' % (sRd1, sN2))
    a.e('v_lshrrev_b32 v3, 4, v2')
    a.e('v_and_b32 v4, 15, v2')
    a.e('v_and_b32 v5, 1, v3')
    a.e('v_mul_u32_u24 v5, 12, v5')
    a.e('v_xor_b32 v5, v4, v5')
    a.e('v_lshlrev_b32 v5, 4, v5')
    a.e('v_lshl_add_u32 v%d, v3, 9, v5' % vK[0])
    a.e('v_add_u32 v%d, 0x10000, v%d' % (vK[1], vK[0]))
    a.e('v_lshrrev_b32 v4, 2, v2')
    a.e('v_bfe_u32 v5, v2, 1, 1')
    a.e('v_and_b32 v6, 1, v2')
    a.e('v_mul_u32_u24 v7, 12, v5')
    a.e('v_xor_b32 v4, v4, v7')
    a.e('v_lshlrev_b32 v4, 4, v4')
    a.e('v_lshl_add_u32 v4, v5, 9, v4')
    a.e('v_lshl_add_u32 v%d, v6, 3, v4' % vV[0])
    a.e('v_add_u32 v%d, 0x10000, v%d' % (vV[1], vV[0]))
    a.e('v_lshlrev_b32 v126, 7, v2')
    a.e('v_lshlrev_b32 v127, 7, v0')
    zl = ['v_mov_b32 v%d, 0' % r for r in range(128, 256)] + ['v_accvgpr_write_b32 a%d, 0' % r for r in range(128, 256)]
    def zero(n):
        for _ in range(n):
            if zl: a.e(zl.pop(0))
    if F2:
        a.e('v_cmp_ne_u32 vcc, 0, v2')
        a.e('v_mov_b32 v125, 0x40000000')
        a.e('v_cndmask_b32 v124, 0, v125, vcc')
        a.e('v_mov_b32 v125, 1')
        a.e('s_and_b32 s36, s2, 3')
        a.e('s_lshl_b32 s36, s36, 4')
        a.e('s_lshr_b32 s37, s2, 4')
        a.e('s_add_u32 s36, s36, s37')
        a.e('s_lshl_b32 s36, s36, 6')
        a.e('s_lshl_b32 s37, s25, 5')
        a.e('s_add_u32 s36, s36, s37')
        a.e('s_add_u32 s37, s36, 95')
        a.e('s_min_u32 s37, s37, 7999')
        a.e('s_lshr_b32 s37, s37, 6')
        a.e('s_max_u32 s36, s36, 32')
        a.e('s_sub_u32 s36, s36, 32')
        a.e('s_lshr_b32 s36, s36, 6')
        a.e('v_add_u32 v126, s36, v2')
        a.e('v_min_u32 v126, s37, v126')
        a.e('v_lshlrev_b32 v126, 7, v126')
        a.e('v_add_u32 v126, %d, v126' % TC_OFF)
        zero(cfg.get('AT_Z2', 150))
    else:
        zero(cfg.get('AT_Z0', 64))
        a.e('s_waitcnt lgkmcnt(0)')
        a.e('s_mov_b32 s%d, s4' % sSRD)
        a.e('s_and_b32 s%d, s5, 0xffff' % (sSRD + 1))
        a.e('s_mov_b32 s%d, %d' % (sSRD + 2, WS_BYTES))
        a.e('s_mov_b32 s%d, 0x00020000' % (sSRD + 3))

    def dma_piece(stage, j, redirect=False):
        out = []
        if j % 4 == 0:
            out.append('s_add_u32 m0, s%d, %d' % (sM0, stage * 32768 + (j // 4) * 4096))
        out.append('buffer_load_dwordx4 v%d, %s, s%d offen offset:%d lds' % (vD0 if j < 4 else vD1, srd, sDma, (j % 4) * 1024))
        if j == 7:
            out.append('s_add_u32 s%d, s%d, 0x8000' % (sDma, sDma))
            if redirect and cfg.get('AT_REDIR', 0):
                out.append('s_cmp_eq_u32 s%d, s%d' % (sI, sRd0))
                out.append('s_cselect_b32 s%d, s%d, s%d' % (sDma, sG, sDma))
                out.append('s_cmp_eq_u32 s%d, s%d' % (sI, sRd1))
                out.append('s_cselect_b32 s%d, s35, s%d' % (sDma, sDma))
        return out
    def dma_tile(stage, z=0):
        for j in range(8):
            for t in dma_piece(stage, j): a.e(t)
            zero(z)

    if cfg.get('AT_QT', 0):
        a.e('s_lshl_b32 s34, s%d, 13' % sT2)
        a.e('s_add_u32 s34, s34, s%d' % sQ)
        a.e('buffer_load_dword v125, v126, %s, s34 offen' % srd)
    if not F2:
        dma_tile(0)
        for f in range(32):
            if f and f % 4 == 0:
                a.e('s_add_u32 s%d, s%d, 0x1000' % (sQ, sQ))
            a.e('buffer_load_dwordx4 %s, v%d, %s, s%d offen offset:%d' % (ar(4 * f, 4), vLane16, srd, sQ, (f % 4) * 1024))
            zero(6)
        zero(1000)
    a.e('v_mov_b32 v%d, 0' % vL0)
    a.e('v_mov_b32 v%d, 0' % vL1)
    a.e('s_mov_b32 s%d, 0' % sI)

    q = LdsQ()
    def ring(n): return RING + 4 * ((n % 64) % NR)
    def kread(stage, n):
        reg = ring(n); ks, kt = n // 2, n % 2
        return [('ds', 'ds_read_b128 %s, v%d offset:%d' % (vr(reg, 4), vK[stage >> 1], (stage & 1) * 32768 + ks * 2048 + kt * 256), [reg])]
    def vread(stage, dt):
        reg = ring(32 + dt)
        off = (stage & 1) * 32768 + dt * 1024
        return [('ds', 'ds_read_b64_tr_b16 %s, v%d offset:%d' % (vr(reg, 2), vV[stage >> 1], off), [reg + 1000]),
                ('ds', 'ds_read_b64_tr_b16 %s, v%d offset:%d' % (vr(reg + 2, 2), vV[stage >> 1], off + 256), [reg])]
    chk = [True]
    def emit_item(it):
        if isinstance(it, tuple):
            a.e(it[1]); q.issue(it[2], chk[0])
        else:
            a.e(it)

    if not F2: a.e('s_waitcnt vmcnt(32)')
    a.e('s_barrier')
    if STAMP and cfg.get('S1') == 6: stamp_mid(a, 0)
    PD = 8
    for n in range(PD):
        for it in kread(0, n): emit_item(it)
    late = [] if F2 else [dma_piece(1, j) for j in range(8)] + [dma_piece(2, j) for j in range(8)]
    nl = 0
    for n in range(32):
        ks, kt = n // 2, n % 2
        if kt == 0 and not F2:
            a.e('s_waitcnt vmcnt(%d)' % (nl + 30 - 2 * ks))
        q.wait_for(a, q.need([ring(n)]))
        for qs in range(2):
            a.e('%s %s, %s, %s, %s' % (MF, vr(Sreg(0, kt, qs), 4), vr(ring(n), 4), Qreg(ks, qs), '0' if ks == 0 else vr(Sreg(0, kt, qs), 4)))
            if qs == 0 and n + PD < 32:
                for it in kread(0, n + PD): emit_item(it)
            zero(1 + qs)
        q.consume(ring(n))
        if (n < 8 or n % 2 == 1) and late:
            for t in late.pop(0): a.e(t)
            nl += 1
    assert not late
    zero(1000)
    if not F2:
        a.e('s_waitcnt vmcnt(8)')
        a.e('s_barrier')
    for r_ in range(4): a.e('v_mov_b32 v%d, -1' % (P + r_))
    if FUSE:
        a.e('s_lshl_b32 s34, s%d, 4' % sT0)
        a.e('s_lshr_b32 s36, s2, 4')
        a.e('s_add_u32 s34, s34, s36')
        a.e('s_lshl_b32 s34, s34, 16')
        a.e('s_add_u32 s34, s34, %d' % PO_OFF)
        a.e('s_add_u32 s36, s34, 0x8000')
        a.e('s_bitcmp%d_b32 s2, 3' % cfg.get('TSWAP', 1))
        a.e('s_cbranch_scc1 %s_nofill' % name)
        for j in range(16):
            a.e('buffer_store_dwordx4 %s, v%d, %s, s%d offen offset:%d' % (vr(P, 4), vD0 if j % 8 < 4 else vD1, srd, 34 if j < 8 else 36, (j % 4) * 1024))
        a.label('%s_nofill' % name)
    else:
        a.e('s_lshl_b32 s34, s2, 15')
        a.e('s_add_u32 s34, s34, %d' % PO_OFF)
        for j in range(8):
            a.e('buffer_store_dwordx4 %s, v%d, %s, s34 offen offset:%d' % (vr(P, 4), vD0 if j < 4 else vD1, srd, (j % 4) * 1024))

    if cfg.get('AT_DMA2', 0):
        for j in range(4):
            for t in dma_piece(3, j): a.e(t)
    n_tail = cfg.get('NTAIL', 8)
    for n in range(n_tail):
        for it in kread(1, n): emit_item(it)

    def head_wait():
        idx = max(q.need([ring(k2)]) for k2 in range(WG))
        assert idx > q.done
        q.wait_for(a, idx)
    def rowmax(b, qs, dst, tmp):
        r0, r1 = Sreg(b, 0, qs), Sreg(b, 1, qs)
        a.e('v_max3_f32 v%d, v%d, v%d, v%d' % (dst, r0, r0 + 1, r0 + 2))
        a.e('v_max3_f32 v%d, v%d, v%d, v%d' % (dst, dst, r0 + 3, r1))
        a.e('v_max3_f32 v%d, v%d, v%d, v%d' % (dst, dst, r1 + 1, r1 + 2))
        a.e('v_max_f32 v%d, v%d, v%d' % (dst, dst, r1 + 3))
        a.e('v_mov_b32 v%d, v%d' % (tmp, dst))
        a.e('v_permlane16_swap_b32 v%d, v%d' % (tmp, dst))
        a.e('v_max_f32 v%d, v%d, v%d' % (dst, dst, tmp))
        a.e('v_mov_b32 v%d, v%d' % (tmp, dst))
        a.e('v_permlane32_swap_b32 v%d, v%d' % (tmp, dst))
        a.e('v_max_f32 v%d, v%d, v%d' % (dst, dst, tmp))
    for qs in range(2):
        rowmax(0, qs, vMx, vT0)
        for kt in range(2):
            for r in range(4):
                a.e('v_sub_f32 v%d, v%d, v%d' % (Sreg(0, kt, qs) + r, Sreg(0, kt, qs) + r, vMx))
        for r in range(4):
            a.e('v_sub_f32 v%d, 0, v%d' % (NEGM + 4 * qs + r, vMx))

    def softmax_items(b):
        items = []
        for qs in range(2):
            for kt in range(2):
                for pr in range(2):
                    r0 = Sreg(b, kt, qs) + 2 * pr; r1 = r0 + 1
                    items.append('v_exp_f32 v%d, v%d' % (r0, r0))
                    items.append('v_exp_f32 v%d, v%d' % (r1, r1))
                    items.append('v_add_f32 v%d, v%d, v%d' % (vL[qs], vL[qs], r0))
                    items.append('v_cvt_pk_bf16_f32 v%d, v%d, v%d' % (P + 4 * qs + 2 * kt + pr, r0, r1))
                    items.append('v_add_f32 v%d, v%d, v%d' % (vL[qs], vL[qs], r1))
        return items

    LAT = cfg.get('LAT', 8)
    EARLY = cfg.get('EARLY', 22)
    BARG = cfg.get('BARG', 112)
    def body(u, final=False):
        bc, bn = u % 2, (u + 1) % 2
        stK, stV = (u + 1) % 4, u
        mf = [None] * 128
        need = [None] * 64
        for n in range(32):
            if final: break
            ks, kt = n // 2, n % 2
            for qs in range(2):
                pos = qs ^ (kt if cfg.get('AT_GRAY', 1) else 0)
                mf[2 * n + pos] = '%s %s, %s, %s, %s' % (MF, vr(Sreg(bn, kt, qs), 4), vr(ring(n), 4), Qreg(ks, qs), vr(NEGM + 4 * qs, 4) if ks == 0 else vr(Sreg(bn, kt, qs), 4))
            need[n] = ring(n)
        for dt in range(32):
            for qs in range(2):
                pos = qs ^ ((dt & 1) if cfg.get('AT_GRAY', 1) else 0)
                mf[64 + 2 * dt + pos] = '%s %s, %s, %s, %s' % (MF, Oreg(dt, qs), vr(ring(32 + dt), 4), vr(P + 4 * qs, 4), Oreg(dt, qs))
            need[32 + dt] = ring(32 + dt)
        pre = [[] for _ in range(129)]
        if final:
            sm = [] if NO_SM else softmax_items(bc)
            for dt in range(32):
                its = vread(stV, dt)
                sl = 32 + dt - 9
                pre[2 * sl] += [its[0]]; pre[2 * sl + 1] += [its[1]]
            for j, it in enumerate(sm):
                pre[2 * (32 - 9) + (j * 18) // len(sm)].append(it)
            waits = set(range(64, 128, 4))
        else:
            cap = [2] * 128
            def wgap(k):
                g = 2 * (k - k % WG)
                return g
            waits = set(wgap(k) for k in range(WG, 64) if not (BARG <= wgap(k) < 128))
            for g in waits: cap[g] -= 1
            cap[BARG] -= 2; pre[BARG].append(('bar',))
            cap[0] -= 1 if u == 1 else 2
            cap[127] -= 1
            if F2 and u == 0:
                pre[122].append('buffer_atomic_add v125, v124, %s, s86 offen offset:8 sc1' % srd); cap[122] -= 2
                pre[123].append('s_mov_b32 s86, 0x40000000'); cap[123] -= 1
            pre[125].append('s_add_u32 s%d, s%d, 1' % (sI, sI)); cap[125] -= 1
            if u in (1, 2):
                pre[126].append('s_cmp_eq_u32 s%d, s%d' % (sI, sN2)); cap[126] -= 1
            ds = []
            def ring_ok(k):
                return 2 * (k - NR) + 2
            for n in range(n_tail, 32):
                for it in kread(stK, n): ds.append((it, max(0, wgap(n) - EARLY, ring_ok(n)), wgap(n) - LAT))
            for dt in range(32):
                k = 32 + dt
                w = min(wgap(k), BARG)
                for it in vread(stV, dt): ds.append((it, max(w - EARLY, ring_ok(k)), w - LAT))
            for n in range(n_tail):
                for it in kread((u + 2) % 4, n): ds.append((it, max(BARG + 1, ring_ok(64 + n)), 120))
            dl = [d[2] for d in ds]
            for x in range(len(ds) - 2, -1, -1):
                dl[x] = min(dl[x], dl[x + 1] - 1)
            sm = [] if NO_SM else [(it, 2 if it.startswith('v_exp') else 1, 1) for it in softmax_items(bc)]
            Sn = S[bn]
            mx = ['v_max3_f32 v%d, v%d, v%d, v%d' % (vMx, Sn, Sn + 1, Sn + 2)]
            for r in range(3, 15, 2):
                mx.append('v_max3_f32 v%d, v%d, v%d, v%d' % (vMx, vMx, Sn + r, Sn + r + 1))
            mx.append('v_max_f32 v%d, v%d, v%d' % (vMx, vMx, Sn + 15))
            mx.append('v_cmp_lt_f32 vcc, 0x41000000, v%d' % vMx)
            sm += [(it, 1, cfg.get('MX_START', 70)) for it in mx]
            dm = []
            post = {}
            if cfg.get('AT_DMA2', 0):
                def place(stage, js, g0):
                    for x, j in enumerate(js):
                        for it in dma_piece(stage, j):
                            if it.startswith('s_add_u32 m0'): post.setdefault(g0 - 1, []).append(it); cap[g0 - 1] -= 1
                            elif it.startswith('buffer'): pre[g0 + x].append(it); cap[g0 + x] -= 2
                            else: post.setdefault(g0 + x + 1, []).append(it); cap[g0 + x + 1] -= 1
                place((u + 3) % 4, range(4, 8), BARG - 5)
                place(u, range(0, 4), 121)
            elif not NO_DMA:
                g0, gs = cfg.get('DMA_START', 66), cfg.get('DMA_STEP', 5)
                for j in range(8):
                    for x, it in enumerate(dma_piece((u + 3) % 4, j, True)):
                        dm.append((it, g0 + gs * j + (-1 if it.startswith('s_add_u32 m0') else 0)))
            di = si = mi = 0
            last_m0 = -9
            for g in range(128):
                used_ds = False
                while cap[g] > 0:
                    ds_ready = di < len(ds) and ds[di][1] <= g and not used_ds
                    ds_urgent = ds_ready and dl[di] <= g + cfg.get('URG', 0)
                    sm_ready = si < len(sm) and sm[si][2] <= g and sm[si][1] <= cap[g]
                    dm_ready = mi < len(dm) and dm[mi][1] <= g and not (dm[mi][0].startswith('buffer') and (last_m0 == g or (used_ds and cfg.get('DMA_EXCL'))))
                    if ds_urgent:
                        pre[g].append(ds[di][0]); di += 1; cap[g] -= 1; used_ds = True
                    elif sm_ready and sm[si][1] == 2:
                        pre[g].append(sm[si][0]); cap[g] -= 2; si += 1
                    elif dm_ready:
                        if dm[mi][0].startswith('s_add_u32 m0'): last_m0 = g
                        if dm[mi][0].startswith('buffer') and cfg.get('DMA_EXCL'): used_ds = True
                        pre[g].append(dm[mi][0]); mi += 1; cap[g] -= 1
                    elif ds_ready:
                        pre[g].append(ds[di][0]); di += 1; cap[g] -= 1; used_ds = True
                    elif sm_ready:
                        pre[g].append(sm[si][0]); cap[g] -= 1; si += 1
                    else:
                        break
                pre[g] += post.get(g, [])
                if g == 62: assert NO_SM or si >= 40, ('softmax not finished in phase A', si)
                if g == BARG - 1: assert mi == len(dm), 'dma not finished'
                if di < len(ds): assert ds[di][2] + 4 > g, ('ds late', di, g, ds[di])
            assert di == len(ds) and si == len(sm), (di, len(ds), si, len(sm))
            if u == 0 and cfg.get('SHOW'):
                for g in range(128):
                    print(g, 'W' if g in waits else ' ', [ (x[1] if len(x) > 1 else 'BAR').split()[0] if isinstance(x, tuple) else x.split()[0] for x in pre[g]])
        for pos in range(128):
            k = pos // 2
            for it in pre[pos]:
                if isinstance(it, tuple) and it[0] == 'bar':
                    a.e('s_waitcnt vmcnt(%d) lgkmcnt(0)' % (0 if NO_DMA else 8)); q.drained()
                    a.e('s_barrier')
                else:
                    emit_item(it)
            if mf[pos] is None: continue
            if pos == 127 and not final:
                head_wait()
            if pos in waits:
                idx = 0
                for k2 in range(k, min(64, k + (2 if final else WG))):
                    assert need[k2] in q.pending, ('not issued', k2, pos)
                    idx = max(idx, q.need([need[k2]]))
                q.wait_for(a, idx)
            assert q.need([need[k]]) <= q.done and need[k] in q.pending, ('uncovered', pos)
            a.e(mf[pos])
            if pos % 2 == 1: q.consume(need[k])

    def rare(u):
        bn = (u + 1) % 2
        a.label('%s_rare%d' % (name, u), reset=True)
        a.e('s_nop 15')
        for qs in range(2):
            rowmax(bn, qs, vMx, vT0)
            a.e('v_max_f32 v%d, 0, v%d' % (vMx, vMx))
            a.e('v_sub_f32 v%d, 0, v%d' % (vT0, vMx))
            a.e('v_exp_f32 v%d, v%d' % (vT0, vT0))
            for kt in range(2):
                for r in range(4):
                    a.e('v_sub_f32 v%d, v%d, v%d' % (Sreg(bn, kt, qs) + r, Sreg(bn, kt, qs) + r, vMx))
            for r in range(4):
                a.e('v_sub_f32 v%d, v%d, v%d' % (NEGM + 4 * qs + r, NEGM + 4 * qs + r, vMx))
            a.e('v_mul_f32 v%d, v%d, v%d' % (vL[qs], vL[qs], vT0))
            for dt in range(32):
                o = Obase(dt, qs)
                if o < 128:
                    for j in range(4): a.e('v_mul_f32 v%d, v%d, v%d' % (128 + o + j, 128 + o + j, vT0))
                else:
                    for j in range(4): a.e('v_accvgpr_read_b32 v%d, a%d' % (P + j, o + j))
                    for j in range(4): a.e('v_mul_f32 v%d, v%d, v%d' % (P + j, P + j, vT0))
                    for j in range(4): a.e('v_accvgpr_write_b32 a%d, v%d' % (o + j, P + j))
        a.e('s_nop 3')
        a.e('s_branch %s_back%d' % (name, u))

    head_wait()
    if STAMP and (not FUSE or cfg.get('S1') == 4): stamp_mid(a, 76)
    if STAMP and cfg.get('S1') == 6: stamp_mid(a, 1)
    a.raw('.p2align 6')
    a.label('%s_loop' % name)
    a.record = []
    qstate0 = q.state()
    saved = {}
    for u in range(4):
        body(u)
        a.e('s_cbranch_vccnz %s_rare%d' % (name, u))
        a.label('%s_back%d' % (name, u))
        if u in (1, 2):
            a.e('s_cbranch_scc1 %s_final%d' % (name, u + 1))
            saved[u + 1] = (copy.deepcopy(q), list(a.hist))
        assert q.state() == qstate0, (q.state(), qstate0)
    a.e('s_branch %s_loop' % name)
    rec = [x[1] for x in a.record if x[0] == 'ins']
    a.record = None
    viol = check_seq(rec + rec[:40])
    assert not viol, viol
    loop_len = len(rec)

    for u in (2, 3):
        a.label('%s_final%d' % (name, u))
        q.__dict__.update(saved[u][0].__dict__); a.hist = saved[u][1]
        q.pending = set()
        if F2: a.e('global_load_dword v127, v126, s[4:5] offset:8 sc1')
        if cfg.get('AT_TOUCH', 0):
            a.e('s_lshr_b32 s34, s2, 3')
            a.e('s_lshl_b32 s34, s34, 15')
            a.e('s_add_u32 s34, s34, %d' % W2_OFF)
            a.e('buffer_load_dword v125, v127, %s, s34 offen' % srd)
            a.e('s_sub_u32 s34, s34, %d' % W2_OFF)
            a.e('s_min_u32 s34, s34, %d' % (4 << 15))
            a.e('s_add_u32 s34, s34, %d' % TPC_OFF)
            a.e('buffer_load_dword v125, v127, %s, s34 offen' % srd)
            a.e('s_getpc_b64 s[60:61]')
            lbl = '%s_np%d' % (name, u)
            a.label(lbl)
            a.e('s_add_u32 s60, s60, tail_kernel-%s' % lbl)
            a.e('s_addc_u32 s61, s61, 0')
            a.e('v_min_u32 v124, tail_kernel_end-tail_kernel, v127')
            a.e('global_load_dword v125, v124, s[60:61]')
        body(u, final=True)
        if u == 2:
            a.e('s_branch %s_epi' % name)
    a.label('%s_epi' % name)
    if STAMP and (not FUSE or cfg.get('S1') == 4): stamp_mid(a, 77)
    if FUSE: a.e('s_waitcnt vmcnt(0)')
    if F2:
        assert not cfg.get('FUSE3', 0)
        a.e('v_cmp_gt_u32 vcc, 8, v127')
        a.e('s_cbranch_vccz %s_pg_ok' % name)
        poll(a, '%s_pg' % name, 126, 127, 8, 38, 8)
    a.e('s_cmp_eq_u32 s%d, 0' % sValid)
    a.e('s_cbranch_scc1 %s_%s' % (name, 'sig' if FUSE else 'end'))
    a.e('s_nop 15')
    for qs in range(2):
        l = vL[qs]
        a.e('v_mov_b32 v%d, v%d' % (vT0, l))
        a.e('v_permlane16_swap_b32 v%d, v%d' % (vT0, l))
        a.e('v_add_f32 v%d, v%d, v%d' % (l, l, vT0))
        a.e('v_mov_b32 v%d, v%d' % (vT0, l))
        a.e('v_permlane32_swap_b32 v%d, v%d' % (vT0, l))
        a.e('v_add_f32 v%d, v%d, v%d' % (l, l, vT0))
    a.e('v_cmp_gt_u32 vcc, 0x100, v%d' % vLane16)
    a.e('v_cndmask_b32 v0, v%d, v%d, vcc' % (NEGM + 4, NEGM))
    a.e('v_cndmask_b32 v1, v%d, v%d, vcc' % (vL1, vL0))
    a.e('v_log_f32 v1, v1')
    a.e('v_sub_f32 v0, v1, v0')
    a.e('v_lshrrev_b32 v2, 2, v%d' % vLane16)
    a.e('s_mov_b64 exec, 0xffffffff')
    a.e('buffer_store_dword v0, v2, %s, s%d offen' % (srd, sMl))
    a.e('s_mov_b64 exec, -1')
    a.e('v_rcp_f32 v4, v%d' % vL0)
    a.e('v_rcp_f32 v5, v%d' % vL1)
    a.dense = True
    sm0 = a.store_mod; a.store_mod = cfg.get('AT_SM', sm0)
    t = 0
    for D in range(16):
        for qs in range(2):
            f = D * 2 + qs
            tmp = RING + 4 * (t % 8); t += 1
            srcs = []
            for e in range(2):
                o = Obase(2 * D + e, qs)
                if o < 128:
                    srcs.append(128 + o)
                else:
                    s_ = 8 + 8 * (f % 3) + 4 * e
                    for j in range(4): a.e('v_accvgpr_read_b32 v%d, a%d' % (s_ + j, o + j))
                    srcs.append(s_)
            for e in range(2):
                for j in range(2):
                    r_ = vr(srcs[e] + 2 * j, 2)
                    a.e('v_pk_mul_f32 %s, %s, v[4:5] op_sel:[0,%d] op_sel_hi:[1,%d]' % (r_, r_, qs, qs))
            for e in range(2):
                for j in range(2):
                    a.e('v_cvt_pk_f16_f32 v%d, v%d, v%d' % (tmp + 2 * e + j, srcs[e] + 2 * j, srcs[e] + 2 * j + 1))
            if f: a.e('s_add_u32 s%d, s%d, 0x1000' % (sOut, sOut))
            a.e('buffer_store_dwordx4 %s, v%d, %s, s%d offen' % (vr(tmp, 4), vLane16, srd, sOut))
    a.store_mod = sm0
    a.dense = False
    if cfg.get('AT_BACK', 0):
        if cfg.get('AT_BACK31', 1):
            a.e('s_cmp_eq_u32 s%d, 31' % sN2)
            a.e('s_cbranch_scc1 %s_nb' % name)
        a.e('s_sub_u32 s%d, s%d, 0x7000' % (sOut, sOut))
        a.e('s_waitcnt vmcnt(%d)' % (32 - 8 * cfg['AT_BACK']))
        for j in range(cfg['AT_BACK']):
            a.e('buffer_load_dword v125, v126, %s, s%d offen' % (srd, sOut))
            a.e('s_add_u32 s%d, s%d, 0x2000' % (sOut, sOut))
        a.label('%s_nb' % name)
    if FUSE:
        a.label('%s_sig' % name, reset=True)
        a.e('s_lshl_b32 s34, s%d, 3' % sT0)
        a.e('s_add_u32 s34, s34, s%d' % sT1)
        a.e('s_lshl_b32 s34, s34, 7')
        a.e('s_add_u32 s34, s34, %d' % CNT_OFF)
        a.e('s_mov_b32 s87, s34')
        a.e('s_lshl_b32 s35, s%d, 6' % sWave)
        a.e('v_lshrrev_b32 v0, 4, v%d' % vLane16)
        a.e('v_add_u32 v0, s35, v0')
        if STAMP and cfg.get('S1') == 4: stamp_mid(a, 2)
        a.e('s_barrier')
        a.e('s_branch tail_body')
    else:
        if STAMP: stamp_end(a, sWave, '%s_end' % name)
    a.label('%s_end' % name)
    a.e('s_endpgm')
    for u in range(4):
        rare(u)
    if F2: return None
    return dict(name=name, vgpr=512, sgpr=96, accum=256, grid=256, block=256, lds=163840 if FUSE else 131072, loop_len=loop_len)
```

```python
from common import *
from convlib import tok_read_regs
from conv4 import *
from attn16 import stamp_begin, stamp_mid, stamp_end

def gen_tail(a, name='tail_kernel', cfg=None):
    cfg = cfg or {}
    STAMP = cfg.get('STAMP', False)
    TB = 208
    vLane, vLane16, vI, vQ4, TMP, NR = 244, 245, 246, 247, 248, 251
    STG = 98304
    sWave, sK, sW, sA, sB, sC, sU, sStg, sTy, sBt, sTok, sP, sF = 3, 6, 7, 32, 33, 34, 35, 36, 37, 38, 39, 40, 41
    ws = 's[8:11]'
    def acc1(t, f): return (t * 6 + f) * 4
    def srd_off(d, ptr, soff, nbytes):
        a.e('s_add_u32 s%d, s%d, s%d' % (d, ptr, soff))
        a.e('s_addc_u32 s%d, s%d, 0' % (d + 1, ptr + 1))
        a.e('s_and_b32 s%d, s%d, 0xffff' % (d + 1, d + 1))
        a.e('s_mov_b32 s%d, %d' % (d + 2, nbytes))
        a.e('s_mov_b32 s%d, 0x00020000' % (d + 3))

    def attn_signal(vq):
        a.e('v_mov_b32 v70, 1')
        a.e('v_mov_b32 v71, 0')
        a.e('s_waitcnt vmcnt(%d)' % min(63, vq.n))
        a.e('s_mov_b64 exec, 1')
        a.e('buffer_atomic_add v70, v71, %s, s87 offen sc1' % ws); vq.issue()
        a.e('s_mov_b64 exec, -1')
    FUSE = cfg.get('FUSE', 1)
    if FUSE:
        a.raw('.p2align 8'); a.label(name, reset=True); a.label('tail_body')
    else:
        kernel_begin(a, name)
    a.e('s_and_b32 s%d, s2, 3' % sK)
    a.e('s_lshl_b32 s%d, s%d, 4' % (sK, sK))
    a.e('s_lshr_b32 s%d, s2, 4' % sA)
    a.e('s_add_u32 s%d, s%d, s%d' % (sK, sK, sA))
    if not FUSE:
        a.e('s_cmp_ge_u32 s2, 256')
        a.e('s_cbranch_scc1 %s_end' % name)
    a.e('s_cmp_ge_u32 s%d, 63' % sK)
    a.e('s_cbranch_scc1 %s_%s' % (name, 'out' if FUSE else 'end'))
    if not FUSE: a.e('s_load_dwordx2 s[4:5], s[0:1], 80')
    a.e('s_load_dwordx2 s[52:53], s[0:1], 0')
    a.e('s_load_dwordx2 s[54:55], s[0:1], 64')
    if STAMP and not FUSE: stamp_begin(a)
    if FUSE and cfg.get('SIGE', 1): attn_signal(VmQ())
    if cfg.get('CPF', 1): code_prefetch(a, name, 60, 61, 2)
    a.e('s_bfe_u32 s%d, s2, 0x10003' % sTy)
    if FUSE and cfg.get('TSWAP', 0): a.e('s_xor_b32 s%d, s%d, 1' % (sTy, sTy))
    a.e('s_bfe_u32 s%d, s2, 0x10002' % sBt)
    a.e('s_mov_b32 s90, 0xffff0000')
    a.e('v_lshrrev_b32 v1, 6, v0')
    a.e('v_and_b32 v%d, 63, v0' % vLane)
    a.e('v_readfirstlane_b32 s%d, v1' % sWave)
    a.e('v_lshlrev_b32 v%d, 4, v%d' % (vLane16, vLane))
    a.e('v_lshrrev_b32 v%d, 4, v%d' % (vQ4, vLane))
    a.e('v_and_b32 v%d, 15, v%d' % (vI, vLane))
    a.e('s_lshl_b32 s%d, s%d, 2' % (sW, sTy))
    a.e('s_add_u32 s%d, s%d, s%d' % (sW, sW, sWave))
    a.e('s_mul_i32 s46, s%d, %d' % (sW, 4 * 9216))
    a.e('s_add_u32 s46, s46, %d' % TPM_OFF)
    a.e('s_lshl_b32 s%d, s%d, 17' % (sW, sW))
    a.e('s_add_u32 s%d, s%d, %d' % (sW, sW, W2_OFF))
    a.e('s_lshl_b32 s%d, s%d, 14' % (sStg, sWave))
    a.e('s_add_u32 s%d, s%d, %d' % (sStg, sStg, STG))
    a.e('s_cmp_eq_u32 s%d, 0' % sK)
    a.e('s_cselect_b32 s%d, 0x40000000, 0' % sF)
    a.e('s_mul_i32 s47, s%d, 4096000' % sBt)
    if not FUSE:
        a.e('s_waitcnt lgkmcnt(0)')
        make_srd(a, 8, 4, WS_BYTES)

    def add_w(st, state, ringreg, RW, n0, n1, tw, qi=2, ready=None):
        for n in range(n0, n1):
            pre = []
            if n == 128: pre = ['s_add_u32 s%d, s%d, %d' % (sW, sW, W3_OFF - W2_OFF - 31 * 4096)]
            elif n and n % 4 == 0: pre = ['s_add_u32 s%d, s%d, 0x1000' % (sW, sW)]
            st.add(qi, tw(n), pre, 'buffer_load_dwordx4 %s, v%d, %s, s%d offen offset:%d' % (ringreg(n), vLane16, ws, sW, (n % 4) * 1024), ('w', n),
                   (lambda n=n: state['wcons'] >= n - RW) if ready is None else (lambda n=n: ready(n)))
    RW2 = 52; NPRE = 14
    SLOT2 = [80 + 4 * i for i in range(14)] + [4 * i for i in range(20)] + [136 + 4 * i for i in range(18)]
    def wreg(n): return ar(SLOT2[(n - 128) % RW2], 4)

    def stage1(tr, sc, lq, state, RW, produce):
        st = sc.st
        def tok_reads(ks):
            out = []
            for f in range(6):
                b = TB + ((ks % 2) * 6 + f) * 4
                hi = ks >= 8
                if tr:
                    off = (ks % 8) * 6144 + (f >> 1) * 64 + (f & 1) * 8
                    out.append(FD('ds_read_b64_tr_b16 %s, v%d offset:%d' % (ar(b, 2), NR + hi, off), lq))
                    out.append(FD('ds_read_b64_tr_b16 %s, v%d offset:%d' % (ar(b + 2, 2), NR + hi, off + 768), lq, ('t', ks, f)))
                else:
                    out.append(FD('ds_read_b128 %s, v%d offset:%d' % (ar(b, 4), NR + 2 * hi + ((ks ^ f) & 1), ((ks % 8) * 6 + (f & 6)) * 1024), lq, ('t', ks, f)))
            return out
        def spread(ds):
            q = sc.q; out = []
            while ds:
                out.append(ds.pop(0))
                if q: out.append(q.pop(0))
            sc.q[0:0] = out
        def barrier():
            st.flush(); lq.wait_all(a); a.e('s_barrier')
        BART = cfg.get('T1_BART', 3)
        def gemm(r, plan, midbar):
            for k4 in range(4):
                ks = 4 * r + k4
                blk, fl = plan[k4] if k4 < len(plan) else (None, [])
                if blk is not None:
                    sc.flush(); blk()
                lq.wait(a, ('t', ks, 5))
                sc.add(fl)
                if k4 < 3: spread(tok_reads(ks + 1))
                nxt_blk = min([k for k in range(k4 + 1, 4) if k < len(plan) and plan[k][0] is not None] + [9])
                for t in range(8):
                    n = ks * 8 + t
                    if k4 == 3 and t == BART and midbar:
                        sc.flush(); barrier()
                        sc.add(tok_reads(ks + 1))
                    if t % 2 == 0: st.wait(('w', n + 1))
                    for x, f in enumerate(range(6) if t % 2 == 0 else range(5, -1, -1)):
                        a.e('%s %s, %s, %s, %s' % (MF, vr(acc1(t, f), 4), ar(TB + ((ks % 2) * 6 + f) * 4, 4), ar(4 * (n % RW), 4), '0' if ks == 0 else vr(acc1(t, f), 4)))
                        if x == 5: state['wcons'] = n
                        pos = k4 * 48 + t * 6 + x + 1
                        end = min(nxt_blk * 48, 144 + BART * 6)
                        cap = 2
                        if x == 5 and t % 2 == 1: cap = 1 if t < 7 else 0
                        if midbar and pos < end and len(sc.q) > cfg.get('T1_PRESS', 1.45) * (end - pos): cap += 1
                        sc.gap(cap)
            sc.flush()
        a.dense = True
        for blk, fl in produce(0):
            if blk is not None: blk()
            sc.add(fl)
            while sc.q: sc.gap(6) or sc.gap(10**6, vm=False)
        a.dense = False
        barrier()
        if STAMP and cfg.get('S1') in (None, 1, 2): stamp_mid(a, 0)
        if STAMP and cfg.get('S1') == 4: stamp_mid(a, 4)
        for f in tok_reads(0): f.emit(a)
        st.pace = st.pace2 = cfg.get('T1_PACEL' if tr else 'T1_PACEG', 70 if tr else 64)
        for r in range(3):
            c0 = a.clock
            if r == cfg.get('T1_TOUCH', 9):
                st.flush()
                vt = 249 if tr else 244
                a.e('s_lshr_b32 s62, s2, 3')
                a.e('s_lshl_b32 s62, s62, 2')
                a.e('s_add_u32 s62, s62, s%d' % sWave)
                a.e('s_lshl_b32 s62, s62, 13')
                a.e('s_add_u32 s63, s62, %d' % W3_OFF)
                a.e('v_lshlrev_b32 v%d, 3, v%d' % (vt, vLane16))
                a.e('buffer_load_dword a207, v%d, %s, s63 offen' % (vt, ws)) if not tr else a.e('buffer_load_dword v249, v%d, %s, s63 offen' % (vt, ws))
                st.vq.issue()
                if not tr:
                    a.e('s_lshr_b32 s62, s2, 4')
                    a.e('s_lshl_b32 s62, s62, 2')
                    a.e('s_add_u32 s62, s62, s%d' % sWave)
                    a.e('s_min_u32 s62, s62, 35')
                    a.e('s_lshl_b32 s62, s62, 13')
                    a.e('s_add_u32 s63, s62, %d' % TPM_OFF)
                    a.e('buffer_load_dword a207, v%d, %s, s63 offen' % (vt, ws)); st.vq.issue()
                    a.e('v_lshlrev_b32 v%d, 6, v%d' % (vt, vLane16))
                    a.e('buffer_load_dword a207, v%d, s[24:27], s49 offen' % vt); st.vq.issue()
                    a.e('buffer_load_dword a207, v%d, s[24:27], s49 offen offset:128' % vt); st.vq.issue()
                    a.e('v_lshrrev_b32 v%d, 4, v%d' % (vLane, vLane16))
            gemm(r, produce(r + 1), True)
            if cfg.get('V'): print('  gemm round', a.clock - c0)
            if STAMP and cfg.get('S1') == 1: stamp_mid(a, r + 1); lq.done = lq.n
        state['last'] = True
        gemm(3, [], False)
        if STAMP and cfg.get('S1') == 1: stamp_mid(a, 4)
        if cfg.get('V'): print(name, tr, st.slack)

    def add_x(st, state):
        for k in range(8):
            ts, dd = k // 2, k % 2
            st.add(0, 900, ['s_add_u32 m0, s%d, %d' % (sStg, k * 1024), 's_add_u32 s50, s49, %d' % (ts * 16384 + dd * 64)],
                   'buffer_load_dwordx4 v%d, s[24:27], s50 offen lds' % TMP, ('x', k), lambda: state.get('last', False))
    def x_setup():
        a.e('s_waitcnt lgkmcnt(0)')
        srd_off(24, 52, 47, 0 if cfg.get('NOX') else 4096000)
        a.e('s_lshl_b32 s49, s%d, 16' % sK)
        a.e('s_lshl_b32 s50, s%d, 8' % sWave)
        a.e('s_add_u32 s49, s49, s50')
        a.e('s_lshl_b32 s50, s%d, 7' % sTy)
        a.e('s_add_u32 s49, s49, s50')
        a.e('v_lshlrev_b32 v%d, 10, v%d' % (TMP, vI))
        a.e('v_lshl_add_u32 v%d, v%d, 4, v%d' % (TMP, vQ4, TMP))

    TP2 = 136
    def add_taps2(st, state, pairs, need, ready):
        for p in pairs:
            for q in range(9):
                pre = ['s_add_u32 s43, s46, %d' % (p * 9216 + q * 1024)] if q % 4 == 0 else []
                st.add(1, need + p, pre, 'buffer_load_dwordx4 %s, v%d, %s, s43 offen offset:%d' % (ar(TP2 + 36 * (p % 2) + 4 * q, 4), vLane16, ws, (q % 4) * 1024), ('t2', p, q), (lambda p=p: ready(p)))

    a.e('s_cmp_eq_u32 s%d, 0' % sTy)
    a.e('s_cbranch_scc1 %s_glob' % name)

    RWL = 27; DATA = 108; TP = 136
    CD, UB, PKO, UT2, vS, vRd, vWr = 192, 216, 228, 240, 242, 243, 254
    vUo = [253, 255, 250]
    vq = VmQ(); lq = LgQ()
    st = GStream(a, vq, cfg.get('TL_PACE', 24), 4)
    st.look = cfg.get('TL_LOOK', 24); st.pace2 = cfg.get('TL_PACE2', 64)
    state = dict(wcons=-1, gdone=-1, gread=-1, edone=-1, uok=False)
    a.e('s_add_u32 s%d, s47, %d' % (sA, G_OFF - 32768))
    srd_off(12, 4, sA, 4096000 + 32768)
    a.e('v_lshrrev_b32 v8, 1, v%d' % vI)
    a.e('v_lshlrev_b32 v%d, 14, v8' % vS)
    a.e('v_lshl_add_u32 v%d, v%d, 5, v%d' % (vS, vQ4, vS))
    a.e('v_and_b32 v9, 1, v%d' % vI)
    a.e('v_lshl_add_u32 v%d, v9, 4, v%d' % (vS, vS))
    a.e('v_cmp_gt_u32 vcc, 2, v8')
    a.e('v_mov_b32 v9, s%d' % sF)
    a.e('v_cndmask_b32 v9, 0, v9, vcc')
    a.e('v_or_b32 v%d, v%d, v9' % (vS, vS))
    a.e('s_lshl_b32 s%d, s%d, 16' % (sA, sK))
    a.e('s_lshl_b32 s%d, s%d, 10' % (sB, sWave))
    a.e('s_add_u32 s%d, s%d, s%d' % (sA, sA, sB))
    a.e('s_mul_i32 s42, s%d, 9216' % sWave)
    a.e('s_add_u32 s42, s42, %d' % TPC_OFF)
    def tg(g): return g if g < 2 else 2 + (g - 2) * 4
    def tw(n): return 2 + n / 4.0 - 1
    for g in range(8):
        off = (g >> 1) * 4096 + (g & 1) * 512
        for d in range(4):
            st.add(0, tg(g) - cfg.get('TL_WINLEAD', 7), ['s_add_u32 m0, s%d, %d' % (sStg, (g % 3) * 4160 + d * 1040), 's_add_u32 s%d, s%d, %d' % (sC, sA, off + d * 128)],
                   'buffer_load_dwordx4 v%d, s[12:15], s%d offen sc1 lds' % (vS, sC), ('win', g, d), (lambda g=g: state['gread'] >= g - 3))
        for h in range(3):
            pre = ['s_add_u32 m0, s44, %d' % ((g >> 1) * 24576 + (g & 1) * 3072 + h * 1024), 's_add_u32 s45, s%d, %d' % (sA, off)]
            st.add(3, tg(g) - 3, pre, 'buffer_load_dwordx4 v%d, s[16:19], s45 offen sc1 lds' % vUo[h], ('u', g, h), (lambda: state['uok']))
    for p in range(4):
        for q in range(9):
            pre = ['s_add_u32 s43, s42, %d' % (p * 4 * 9216 + q * 1024)] if q % 4 == 0 else []
            st.add(1, tg(2 * p + (q > 4)) - 3, pre, 'buffer_load_dwordx4 %s, v%d, %s, s43 offen offset:%d' % (ar(TP + 36 * (p % 2) + 4 * q, 4), vLane16, ws, (q % 4) * 1024), ('tp', p, q),
                   (lambda p=p: state['gdone'] >= 2 * (p - 2) + 1))
    add_w(st, state, lambda n: ar(4 * (n % RWL), 4), RWL, 0, 128, tw)
    add_x(st, state)
    add_taps2(st, state, (0, 1), 1000, lambda p: ('x', 7) in st.issued)
    add_w(st, state, wreg, 0, 128, 128 + NPRE, lambda n: 2000, ready=lambda n: ('t2', 1, 8) in st.issued and (SLOT2[n - 128] >= 4 * RWL or state['wcons'] >= max(m_ for m_ in range(128) if m_ % RWL == SLOT2[n - 128] // 4)))
    st.burst(13)
    a.e('s_add_u32 s%d, s47, %d' % (sU, U_OFF - 16384))
    srd_off(16, 4, sU, 4096000 + 16384)
    a.e('v_and_b32 v8, 3, v%d' % vLane)
    a.e('v_mul_u32_u24 v8, 3, v8')
    a.e('v_lshrrev_b32 v9, 2, v%d' % vLane)
    a.e('s_mul_i32 s44, s%d, 6144' % sWave)
    for h in range(3):
        a.e('v_add_u32 v10, %d, v%d' % (64 * h, vLane))
        a.e('v_mul_u32_u24 v12, 0x1556, v10')
        a.e('v_lshrrev_b32 v12, 16, v12')
        a.e('v_mul_u32_u24 v11, 12, v12')
        a.e('v_sub_u32 v10, v10, v11')
        a.e('v_lshrrev_b32 v11, 1, v10')
        a.e('v_lshlrev_b32 v%d, 14, v11' % vUo[h])
        a.e('v_lshl_add_u32 v%d, v12, 5, v%d' % (vUo[h], vUo[h]))
        a.e('v_and_b32 v10, 1, v10')
        a.e('v_lshl_add_u32 v%d, v10, 4, v%d' % (vUo[h], vUo[h]))
        a.e('v_cmp_eq_u32 vcc, 0, v11')
        a.e('v_mov_b32 v10, s%d' % sF)
        a.e('v_cndmask_b32 v10, 0, v10, vcc')
        a.e('v_or_b32 v%d, v%d, v10' % (vUo[h], vUo[h]))
    state['uok'] = True
    a.e('v_lshlrev_b32 v8, 4, v8')
    a.e('v_lshl_add_u32 v%d, v9, 8, v8' % vRd)
    a.e('v_lshl_add_u32 v%d, v%d, 4, v%d' % (vRd, vQ4, vRd))
    a.e('v_add_u32 v%d, s%d, v%d' % (vRd, sStg, vRd))
    a.e('v_mul_u32_u24 v%d, 192, v9' % vWr)
    a.e('v_add_u32 v%d, v8, v%d' % (vWr, vWr))
    a.e('s_mul_i32 s%d, s%d, 6144' % (sB, sWave))
    a.e('v_add_u32 v%d, s%d, v%d' % (vWr, sB, vWr))
    a.e('v_bfe_u32 v8, v%d, 2, 2' % vLane)
    a.e('v_lshl_add_u32 v8, v%d, 3, v8' % vQ4)
    a.e('v_mul_u32_u24 v%d, 192, v8' % NR)
    a.e('v_and_b32 v8, 3, v%d' % vLane)
    a.e('v_lshl_add_u32 v%d, v8, 4, v%d' % (NR, NR))
    a.e('v_add_u32 v%d, %d, v%d' % (NR + 1, 49152, NR))
    x_setup()
    st.burst(cfg.get('TL_B1', 12))
    if FUSE and not cfg.get('SIGE', 1): attn_signal(vq)
    sc = Sched(a, st)
    def data_reads(g):
        return [FW(lambda: st.wait(('win', g, 3)))] + [FD('ds_read_b128 %s, v%d offset:%d' % (ar(DATA + 4 * m, 4), vRd, (g % 3) * 4160 + 16 * m), lq, ('d', g, m)) for m in range(7)]
    def ioff(g, h): return ((g >> 1) * 24576 + (g & 1) * 3072 + h * 16) % 49152
    def u_reads(g):
        out = [FW(lambda: st.wait(('u', g, 2)))]
        if g == 4: out.append(FV('v_add_u32 v%d, %d, v%d' % (vWr, 49152, vWr)))
        return out + [FD('ds_read_b128 %s, v%d offset:%d' % (vr(UB + 4 * h, 4), vWr, ioff(g, h)), lq, ('ur', g, h)) for h in range(3)]
    def conv_epi(g, d0, d1):
        out = []
        if d0 == 0: out.append(FW(lambda: lq.wait(a, ('ur', g, 2))))
        t = UT2
        for d in range(d0, d1):
            out.append(FV('v_lshlrev_b32 v%d, 16, v%d' % (t, UB + d)))
            out.append(FV('v_and_b32 v%d, s90, v%d' % (t + 1, UB + d)))
            out.append(FV('v_mul_f32 v%d, v%d, v%d' % (t, t, CD + 2 * d)))
            out.append(FV('v_mul_f32 v%d, v%d, v%d' % (t + 1, t + 1, CD + 2 * d + 1)))
            out.append(FV('v_cvt_pk_bf16_f32 v%d, v%d, v%d' % (PKO + d, t, t + 1)))
            if d % 4 == 3: out.append(FD('ds_write_b128 v%d, %s offset:%d' % (vWr, vr(PKO + d - 3, 4), ioff(g, d // 4)), lq))
        return out
    def conv_block(g):
        def blk():
            r = g // 2
            A0 = TP + 36 * (r % 2) + 18 * (g % 2); B = DATA
            if g == 0:
                for f in data_reads(0): f.emit(a)
            st.wait(('tp', r, 4 if g % 2 == 0 else 8))
            lq.wait(a, ('d', g, 6))
            state['gread'] = g
            sc.add(u_reads(g))
            sc.vmcap = 1
            for hf in range(2):
                for s_ in range(9):
                    for q in range(3 * hf, 3 * hf + 3):
                        ac = vr(CD + 4 * q, 4)
                        a.e('%s %s, %s, %s, %s' % (M4, ac, ar(A0 + 2 * s_, 2), ar(B + 2 * (q + s_), 2), '0' if s_ == 0 else ac))
                        if hf == 1 and s_ == 1 and q == 3: sc.add(conv_epi(g, 0, 4))
                        sc.gap(1)
            sc.vmcap = 2
            state['gdone'] = g
        return blk
    def loc_produce(r):
        if r == 0: return [(conv_block(0), data_reads(1) + conv_epi(0, 4, 12)), (conv_block(1), data_reads(2) + conv_epi(1, 4, 12))]
        return [(conv_block(2 * r), conv_epi(2 * r, 4, 12)), (None, data_reads(2 * r + 1)), (conv_block(2 * r + 1), conv_epi(2 * r + 1, 4, 12) + (data_reads(2 * r + 2) if r < 3 else []))]
    stage1(True, sc, lq, state, RWL, loc_produce)
    st.flush(); st.burst(100)
    assert st.empty()
    a.e('s_branch %s_s2' % name)

    a.label('%s_glob' % name, reset=True)
    RWG = cfg.get('TG_RW', 34)
    vq = VmQ(); lq = LgQ()
    st = GStream(a, vq, cfg.get('TG_PACE', 24), 4)
    st.look = cfg.get('TG_LOOK', 28); st.pace2 = cfg.get('TG_PACE2', 64)
    state = dict(wcons=-1, fread=-1)
    MLR = 0; WT = 192; PB = 216; CA, CU, PO = 232, 240, 128
    vWa, vSt, vS0 = 255, 250, 249
    a.e('s_mul_i32 s%d, s%d, 4000' % (sTok, sBt))
    a.e('s_lshl_b32 s%d, s%d, 6' % (sA, sK))
    a.e('s_add_u32 s%d, s%d, s%d' % (sTok, sTok, sA))
    a.e('v_lshlrev_b32 v%d, 2, v%d' % (TMP, vI))
    a.e('s_lshl_b32 s%d, s%d, 4' % (sA, sTok))
    a.e('s_add_u32 s%d, s%d, %d' % (sA, sA, ML_OFF - 512))
    a.e('s_lshl_b32 s%d, s%d, 12' % (sP, sTok))
    a.e('s_lshl_b32 s%d, s%d, 13' % (sB, sWave))
    a.e('s_add_u32 s%d, s%d, s%d' % (sP, sP, sB))
    a.e('s_add_u32 s%d, s%d, %d' % (sP, sP, OP_OFF - 131072))
    make_srd(a, 12, 4, 0); a.e('s_cmp_eq_u32 s%d, 0' % sK); a.e('s_cselect_b32 s14, 0, %d' % WS_BYTES)
    make_srd(a, 16, 4, 0); a.e('s_cmp_eq_u32 s%d, 62' % sK); a.e('s_cselect_b32 s18, 0, %d' % WS_BYTES)
    def tsrd(ts): return 's[12:15]' if ts == 0 else ('s[16:19]' if ts >= 3 else ws)
    NS = 5
    a.e('s_mul_i32 s44, s%d, 6144' % sWave)
    def tf(f): return f if f < 6 else 6 + (f - 6) // 6 * 16 + ((f - 6) % 6) * 2
    def twg(n): return 6 + n / 2.0 - cfg.get('TG_WLEAD', 6)
    XS = cfg.get('TG_XS', 1)
    def slot(f):
        if XS and f in (5, 6): return (True, f - 5, -1)
        g_ = f - 2 if (XS and f > 6) else f
        prev = f - NS
        if XS and 7 <= f < 12: prev = f - 7
        return (False, g_ % NS, prev)
    for f in range(24):
        r, ts = f // 6, f % 6
        off = ((ts + 1) >> 1) * 131072 + r * 32768 + ((ts + 1) & 1) * 4096
        st.add(3, tf(f) - cfg.get('TG_PLEAD0', 16), ['s_add_u32 m0, s44, %d' % (r * 24576 + ts * 1024), 's_add_u32 s45, s%d, %d' % (sP, off)],
               'buffer_load_dwordx4 v%d, %s, s45 offen sc1 lds' % (vLane16, tsrd(ts)), ('p', f, 0), (lambda r=r: r != 2 or not XS or state['fread'] >= 6))
        img, si, prev = slot(f)
        pre = ['s_add_u32 m0, s%d, %d' % (44 if img else sStg, (49152 if img else 0) + (si * 3 - 1) * 1024), 's_add_u32 s%d, s%d, %d' % (sC, sP, off),
               'buffer_load_dwordx4 v%d, %s, s%d offen offset:1024 sc1 lds' % (vLane16, tsrd(ts), sC), 'buffer_load_dwordx4 v%d, %s, s%d offen offset:2048 sc1 lds' % (vLane16, tsrd(ts), sC)]
        st.add(0, tf(f) - cfg.get('TG_PLEAD', 16), pre, 'buffer_load_dwordx4 v%d, %s, s%d offen offset:3072 sc1 lds' % (vLane16, tsrd(ts), sC), ('p', f, 3), (lambda prev=prev: state['fread'] >= prev))
    add_w(st, state, lambda n: ar(4 * (n % RWG), 4), RWG, 0, 128, twg)
    def gfree(reg):
        sl = reg // 4
        if sl >= RWG: return True
        lastn = max(n for n in range(128) if n % RWG == sl)
        return state['wcons'] >= lastn
    add_x(st, state)
    add_taps2(st, state, (0, 1), 1000, lambda p: ('x', 7) in st.issued and all(gfree(r_) for r_ in range(TP2, TP2 + 72, 4)))
    add_w(st, state, wreg, 0, 128, 128 + NPRE, lambda n: 2000, ready=lambda n: ('t2', 1, 8) in st.issued and gfree(SLOT2[n - 128]))
    if FUSE:
        for _ in range(cfg.get('TG_W0', 24)): st._issue(2)
        a.e('s_lshr_b32 s62, s%d, 1' % sK)
        a.e('s_and_b32 s63, s%d, 1' % sK)
        a.e('s_lshl_b32 s63, s63, 1')
        a.e('s_add_u32 s63, s63, s62')
        a.e('s_max_u32 s63, s63, 1')
        a.e('s_sub_u32 s63, s63, 1')
        a.e('s_min_u32 s63, s63, 31')
        a.e('s_lshl_b32 s59, s%d, 5' % sBt)
        a.e('s_add_u32 s62, s62, s59')
        a.e('s_add_u32 s63, s63, s59')
        a.e('s_lshl_b32 s62, s62, 7')
        a.e('s_lshl_b32 s63, s63, 7')
        a.e('s_add_u32 s62, s62, %d' % CNT_OFF)
        a.e('s_add_u32 s63, s63, %d' % CNT_OFF)
        a.e('v_mov_b32 v64, s62')
        a.e('v_mov_b32 v65, s63')
        a.e('s_mov_b32 s59, 0')
        if not cfg.get('SIGE', 1): attn_signal(vq)
        a.label('%s_wait' % name)
        a.e('global_load_dword v66, v64, s[4:5] sc1')
        a.e('global_load_dword v67, v65, s[4:5] sc1')
        a.e('s_waitcnt vmcnt(0)')
        a.e('v_min_u32 v66, v66, v67')
        a.e('v_readfirstlane_b32 s62, v66')
        a.e('s_cmp_ge_u32 s62, 16')
        a.e('s_cbranch_scc1 %s_ready' % name)
        a.e('s_sleep 1')
        a.e('s_add_u32 s59, s59, 1')
        a.e('s_cmp_lt_u32 s59, 0x80000')
        a.e('s_cbranch_scc1 %s_wait' % name)
        a.label('%s_ready' % name, reset=True)
        a.e('s_barrier')
        vq.done = vq.n
        if STAMP and cfg.get('S1') == 4: stamp_mid(a, 3)
    for ts in range(6):
        for s in range(4):
            a.e('buffer_load_dword v%d, v%d, %s, s%d offen offset:%d sc1' % (WT + ts * 4 + s, TMP, tsrd(ts), sA, ((ts + 1) >> 1) * 512 + s * 128 + ((ts + 1) & 1) * 64))
            vq.issue('ml')
        if ts == 0: st.burst(2)
    st.burst(cfg.get('TG_B2', 14))
    a.e('v_lshrrev_b32 v64, 2, v%d' % vI)
    a.e('v_lshlrev_b32 v64, 3, v64')
    a.e('v_and_b32 v65, 3, v%d' % vI)
    a.e('v_add_u32 v64, v64, v65')
    a.e('v_lshrrev_b32 v65, 4, v64')
    a.e('v_and_b32 v64, 15, v64')
    a.e('v_xor_b32 v64, v64, v%d' % vQ4)
    a.e('v_lshl_add_u32 v64, v%d, 4, v64' % vQ4)
    a.e('v_lshlrev_b32 v64, 4, v64')
    a.e('v_lshl_add_u32 v%d, v65, 10, v64' % NR)
    a.e('v_xor_b32 v%d, 64, v%d' % (NR + 1, NR))
    a.e('v_add_u32 v%d, 49152, v%d' % (NR + 2, NR))
    a.e('v_add_u32 v%d, 49152, v%d' % (NR + 3, NR + 1))
    tok_read_regs(a, 64, 65, vLane, 66)
    a.e('s_bitcmp1_b32 s%d, 0' % sWave)
    a.e('s_cselect_b64 vcc, -1, 0')
    a.e('v_cndmask_b32 v%d, v64, v65, vcc' % vWa)
    a.e('s_mul_i32 s%d, s%d, 6144' % (sB, sWave))
    a.e('v_add_u32 v%d, s%d, v%d' % (vWa, sB, vWa))
    a.e('v_add_u32 v%d, s%d, v%d' % (vSt, sStg, vLane16))
    a.e('v_add_u32 v%d, s%d, v%d' % (vS0, sB, vLane16))
    x_setup()
    vq.wait(a, 'ml')
    a.dense = True
    for ts in range(6):
        m = [WT + ts * 4 + s for s in range(4)]
        t = 64
        a.e('v_max3_f32 v%d, v%d, v%d, v%d' % (t, m[0], m[1], m[2]))
        a.e('v_max_f32 v%d, v%d, v%d' % (t, t, m[3]))
        for s in range(4): a.e('v_sub_f32 v%d, v%d, v%d' % (m[s], m[s], t))
        for s in range(4): a.e('v_exp_f32 v%d, v%d' % (m[s], m[s]))
        a.e('v_add_f32 v%d, v%d, v%d' % (t, m[0], m[1]))
        for s in range(2, 4): a.e('v_add_f32 v%d, v%d, v%d' % (t, t, m[s]))
        a.e('v_rcp_f32 v%d, v%d' % (t, t))
        for s in range(4): a.e('v_mul_f32 v%d, v%d, v%d' % (WT + ts * 4 + s, WT + ts * 4 + s, t))
    a.dense = False
    sc = Sched(a, st)
    def p_read(f, s):
        r, ts = f // 6, f % 6
        if s == 0:
            def w_(): st.wait(('p', f, 0)); st.wait(('p', f, 3))
            out = [FW(w_)]
            if f == 12: out.append(FV('v_add_u32 v%d, 49152, v%d' % (vS0, vS0)))
            return out + [FD('ds_read_b128 %s, v%d offset:%d' % (vr(PB, 4), vS0, (r % 2) * 24576 + ts * 1024), lq, ('pr', f, s))]
        img, si, prev = slot(f)
        return [FD('ds_read_b128 %s, v%d offset:%d' % (vr(PB + 4 * s, 4), vS0 if img else vSt, (49152 if img else 0) + (si * 3 + s - 1) * 1024), lq, ('pr', f, s))]
    def glob_produce(r):
        out = []
        if r == 0:
            for s in range(4): out += p_read(0, s)
        for ts in range(6):
            f = 6 * r + ts
            for s in range(4):
                def w_(f=f, s=s):
                    lq.wait(a, ('pr', f, s + 1))
                    if s == 2: state['fread'] = f
                if s % 2 == 0: out.append(FW(w_))
                p = PB + 4 * s; w = WT + ts * 4 + s
                for d in range(8):
                    out.append(FV('v_fma_mix_f32 v%d, v%d, v%d, %s op_sel:[%d,0,0] op_sel_hi:[1,0,0]' % (CA + d, p + d // 2, w, '0' if s == 0 else 'v%d' % (CA + d), d & 1)))
                if f < 23: out += p_read(f + 1, s)
            for d in range(4):
                out.append(FV('v_cvt_pk_bf16_f32 v%d, v%d, v%d' % (CU + d, CA + 2 * d, CA + 2 * d + 1)))
            if f == 12: out.append(FV('v_add_u32 v%d, 49152, v%d' % (vWa, vWa)))
            out.append(FD('ds_write_b128 v%d, %s offset:%d' % (vWa, vr(CU, 4), (r % 2) * 24576 + ts * 1024), lq))
        return [(None, out)]
    stage1(False, sc, lq, state, RWG, glob_produce)
    st.flush(); st.burst(100)
    assert st.empty()

    a.label('%s_s2' % name, reset=True)
    if STAMP and cfg.get('S1') in (None, 2): stamp_mid(a, 1)
    vq = VmQ(); lq = LgQ()
    pre_keys = [('t2', q // 9, q % 9) for q in range(18)] + [('w', 128 + n) for n in range(NPRE)]
    for k_ in pre_keys: vq.issue(k_)
    st = GStream(a, vq, cfg.get('T2_PACE', 48), 4)
    st.look = cfg.get('T2_LOOK', 60); st.pace2 = cfg.get('T2_PACE2', 64)
    st.issued = set(pre_keys)
    state = dict(wcons=127, gdone=-1, packed=0)
    def w2ready(n):
        i = n - 128
        if i >= RW2: return state['wcons'] >= n - RW2
        if i >= 43: return state['gdone'] >= 3
        if i >= 34: return state['gdone'] >= 1
        return True
    add_w(st, state, wreg, RW2, 128 + NPRE, 256, lambda n: 8 + (n - 128) / 5.0, ready=w2ready)
    for p in (2, 3):
        for q in range(9):
            pre = ['s_add_u32 s43, s46, %d' % (p * 9216 + q * 1024)] if q % 4 == 0 else []
            st.add(1, p, pre, 'buffer_load_dwordx4 %s, v%d, %s, s43 offen offset:%d' % (vr(36 * (p - 2) + 4 * q, 4), vLane16, ws, (q % 4) * 1024), ('t2', p, q),
                   (lambda p=p, q=q: state['packed'] * 24 >= 36 * (p - 2) + 4 * q + 4))
    vW1, vRd2, vWr2, vId, vRow, vR = 192, 193, 194, 196, 195, 198
    PK = 204
    srd_off(28, 54, 47, 4096000)
    a.e('v_mov_b32 v%d, v%d' % (vRow, TMP))
    a.e('s_mul_i32 s%d, s%d, 24576' % (sB, sWave))
    a.e('v_mul_u32_u24 v%d, 192, v%d' % (vW1, vI))
    a.e('v_bfe_u32 v%d, v%d, 1, 2' % (TMP, vI))
    a.e('v_xor_b32 v%d, v%d, v%d' % (TMP, TMP, vQ4))
    a.e('v_lshl_add_u32 v%d, v%d, 4, v%d' % (vW1, TMP, vW1))
    a.e('v_add_u32 v%d, s%d, v%d' % (vW1, sB, vW1))
    RD2 = [220 + m for m in range(6)]
    a.e('v_lshrrev_b32 v%d, 2, v%d' % (TMP, vLane))
    a.e('v_mul_u32_u24 v%d, 192, v%d' % (vRd2, TMP))
    a.e('v_add_u32 v%d, s%d, v%d' % (vRd2, sB, vRd2))
    a.e('v_bfe_u32 v%d, v%d, 3, 2' % (TMP + 1, vLane))
    a.e('v_and_b32 v%d, 3, v%d' % (TMP, vLane))
    a.e('v_lshlrev_b32 v%d, 1, v%d' % (TMP, TMP))
    for m in range(6):
        a.e('v_add_u32 v%d, %d, v%d' % (TMP + 2, m, TMP))
        a.e('v_xor_b32 v%d, v%d, v%d' % (TMP + 2, TMP + 2, TMP + 1))
        a.e('v_lshl_add_u32 v%d, v%d, 4, v%d' % (RD2[m], TMP + 2, vRd2))
    st.burst(4)
    a.e('s_barrier')
    if STAMP and cfg.get('S1') == 2: stamp_mid(a, 2)
    c2 = a.clock
    a.dense = True
    for t in range(8):
        for b3 in range(3):
            for d in range(4):
                r_ = acc1(t, 2 * b3) + 2 * d
                a.e('v_cvt_pk_bf16_f32 v%d, v%d, v%d' % (acc1(t, 2 * b3) + d, r_, r_ + 1))
        if t % 2 == 1:
            for t2 in (t - 1, t):
                for b3 in range(3):
                    a.e('ds_write_b128 v%d, %s offset:%d' % (vW1, vr(acc1(t2, 2 * b3), 4), t2 * 3072 + b3 * 64)); lq.issue(('w1', t2))
            state['packed'] = max(0, t - 1)
            st.burst(cfg.get('T2_PB', 3))
    state['packed'] = 8
    a.dense = False
    GACC, CD, DAT, PKO, TOK, XR = 0, 128, 208, 160, 208, 220
    def gacc(t, ts): return GACC + (t * 4 + ts) * 4
    img_write_reg(a, vWr2, vLane, TMP)
    a.e('s_lshl_b32 s%d, s%d, 14' % (sB, sWave))
    a.e('s_add_u32 s%d, s%d, %d' % (sB, sB, STG))
    a.e('v_add_u32 v%d, s%d, v%d' % (vWr2, sB, vWr2))
    img_read_regs(a, vR, vLane, TMP)
    for ts in range(4): a.e('v_add_u32 v%d, %d, v%d' % (vR + ts, STG, vR + ts))
    a.e('v_and_b32 v%d, 1, v%d' % (TMP, vLane))
    a.e('v_lshlrev_b32 v%d, 4, v%d' % (TMP, TMP))
    a.e('v_mov_b32 v%d, 0x3f80' % (TMP + 1))
    a.e('v_lshlrev_b32 v%d, v%d, v%d' % (TMP + 1, TMP, TMP + 1))
    a.e('v_and_b32 v%d, 2, v%d' % (TMP, vLane))
    a.e('v_cmp_eq_u32 vcc, 0, v%d' % TMP)
    a.e('v_cndmask_b32 v%d, 0, v%d, vcc' % (vId, TMP + 1))
    a.e('v_cndmask_b32 v%d, v%d, 0, vcc' % (vId + 1, TMP + 1))
    XL = 176
    def xreg(k): return (176 + 4 * k) if k < 4 else (226 + 4 * (k - 4))
    st.wait(('t2', 0, 0))
    a.e('v_add_u32 v%d, s%d, v%d' % (TMP, sStg, vLane16))
    for k in range(8):
        a.e('ds_read_b128 %s, v%d offset:%d' % (vr(xreg(k), 4), TMP, k * 1024)); lq.issue()
    a.e('s_lshl_b32 s51, s%d, 6' % sBt)
    a.e('s_add_u32 s51, s51, s%d' % sK)
    a.e('s_lshl_b32 s56, s51, 8')
    a.e('s_add_u32 s56, s56, %d' % CNT_OFF)
    sc = Sched(a, st)
    def d_reads(g):
        return [FD('ds_read_b128 %s, v%d offset:%d' % (ar(DAT + 24 * (g % 2) + 4 * m, 4), RD2[m], g * 3072), lq, ('d', g, m)) for m in range(6)]
    def c_epi(g):
        out = []
        D = CD + 16 * (g % 2); o = PKO + 8 * (g % 2)
        for d in range(8):
            out.append(FV('v_cvt_pk_bf16_f32 v%d, v%d, v%d' % (o + d, D + 2 * d, D + 2 * d + 1)))
            if d % 4 == 3: out.append(FD('ds_write_b128 v%d, %s offset:%d' % (vWr2, vr(o + d - 3, 4), g * 2048 + (d // 4) * 16), lq))
        return out
    if STAMP and cfg.get('S1') == 2: stamp_mid(a, 3); lq.done = lq.n
    if cfg.get('V'): print('pack end', a.clock - c2)
    for f in d_reads(0): f.emit(a)
    sc.vmcap = 1
    for g in range(8):
        p = g // 2
        A0 = (TP2 if p < 2 else 0) + 36 * (p % 2) + 18 * (g % 2); D = CD + 16 * (g % 2); B = DAT + 24 * (g % 2)
        AF = ar if p < 2 else vr
        st.wait(('t2', p, 4 if g % 2 == 0 else 8))
        lq.wait(a, ('d', g, 5))
        k = 0
        for s_ in list(range(9)) + ['I']:
            for q in range(4):
                ac = vr(D + 4 * q, 4)
                if s_ == 'I': a.e('%s %s, %s, %s, %s' % (M4, ac, vr(vId, 2), ar(B + 2 * (q + 4), 2), ac))
                else: a.e('%s %s, %s, %s, %s' % (M4, ac, AF(A0 + 2 * s_, 2), ar(B + 2 * (q + s_), 2), '0' if s_ == 0 else ac))
                k += 1
                if k == 1 and g < 7: sc.add(d_reads(g + 1))
                if k == 4 and g: sc.add(c_epi(g - 1))
                if k < 40: sc.gap(1)
        state['gdone'] = g
        sc.flush()
    sc.vmcap = 2
    sc.add(c_epi(7)); sc.flush(); st.flush()
    lq.wait_all(a)
    if cfg.get('V'): print('conv end', a.clock - c2)
    if STAMP and cfg.get('S1') == 2: stamp_mid(a, 4)
    a.e('s_barrier')
    if STAMP and not cfg.get('S1'): stamp_mid(a, 2)
    def t_reads(ks):
        return [FD('ds_read_b64_tr_b16 %s, v%d offset:%d' % (ar(TOK + ((ks % 3) * 4 + ts) * 4 + 2 * h, 2), vR + ts, (ks % 16) * 4096 + 512 * h), lq, ('t', ks, ts, h))
                for ts in range(4) for h in range(2)]
    for f in t_reads(0) + t_reads(1): f.emit(a)
    vOne, vZ, vFl, vFa = 204, 205, 206, 207
    LD, PKS = 128, 160
    a.e('s_lshl_b32 s57, s51, 16')
    a.e('s_lshl_b32 s%d, s%d, 13' % (sB, sWave))
    a.e('s_add_u32 s57, s57, s%d' % sB)
    a.e('s_add_u32 s57, s57, %d' % PO_OFF)
    a.e('s_lshl_b32 s%d, s%d, 15' % (sB, sTy))
    a.e('s_add_u32 s48, s57, s%d' % sB)
    a.e('s_xor_b32 s%d, s%d, 0x8000' % (sB, sB))
    a.e('s_add_u32 s57, s57, s%d' % sB)
    a.e('s_add_u32 s58, s57, 0x1000')
    def pub():
        out = []; k = 0
        for ts in range(4):
            for dd in range(2):
                o = PKS + 4 * (k % 4)
                for e in range(2):
                    for j in range(2):
                        r_ = gacc(2 * dd + e, ts) + 2 * j
                        out.append(FV('v_cvt_pk_bf16_f32 v%d, v%d, v%d' % (o + 2 * e + j, r_, r_ + 1)))
                        out.append(FV('v_min_u32 v%d, -2, v%d' % (o + 2 * e + j, o + 2 * e + j)))
                if k == 4: out.append(FS('s_add_u32 s48, s48, 0x1000'))
                out.append(FM('buffer_store_dwordx4 %s, v%d, %s, s48 offen offset:%d' % (vr(o, 4), vLane16, ws, (k % 4) * 1024), vq)); k += 1
        return out
    def part_loads():
        return [FM('buffer_load_dwordx4 %s, v%d, %s, s%d offen offset:%d sc1' % (vr(LD + 4 * k, 4), vLane16, ws, 57 + k // 4, (k % 4) * 1024), vq) for k in range(8)]
    def xadd():
        out = []
        for ts in range(4):
            for dd in range(2):
                pass
        return out
    KP = cfg.get('T2_KP', 30)
    for kk in range(32):
        h, ks = kk // 16, kk % 16
        if STAMP and cfg.get('S1') == 3 and kk in (0, 8, 16, 24): stamp_mid(a, kk // 8); lq.done = lq.n
        lq.wait(a, ('t', kk, 3, 1))
        if kk >= 17 and not state.get('pub') and (st.empty() or kk == cfg.get('T2_KPUB', 24)):
            sc.add(pub()); state['pub'] = kk
        if kk == KP: sc.add(part_loads())
        if kk < 30:
            ds = t_reads(kk + 2); q_ = sc.q; out = []
            while ds:
                out.append(ds.pop(0))
                if q_ and q_[0].kind == 'v': out.append(q_.pop(0))
            sc.q[0:0] = out
        st.wait(('w', 128 + kk * 4 + 3))
        for t4 in range(4):
            n = 128 + kk * 4 + t4; t = 4 * h + t4
            for x, ts in enumerate(range(4) if t4 % 2 == 0 else range(3, -1, -1)):
                a.e('%s %s, %s, %s, %s' % (MF, vr(gacc(t, ts), 4), wreg(n), ar(TOK + ((kk % 3) * 4 + ts) * 4, 4), '0' if ks == 0 else vr(gacc(t, ts), 4)))
                if x == 3: state['wcons'] = n
                sc.gap(0 if (x == 3 and t4 == 3) else 2)
    sc.flush()
    if cfg.get('V'): print(name, 's2', st.slack, state)
    if STAMP and not cfg.get('S1'): stamp_mid(a, 3)
    if STAMP and cfg.get('S1') == 3: stamp_mid(a, 4)
    a.dense = True
    U = 208
    def addin(src, ts, dd, pack):
        for e in range(2):
            for j in range(2):
                r_ = gacc(4 + 2 * dd + e, ts) + 2 * j
                u = U + 2 * ((2 * e + j) % 4)
                a.e('v_lshlrev_b32 v%d, 16, v%d' % (u, src + 2 * e + j))
                a.e('v_and_b32 v%d, s90, v%d' % (u + 1, src + 2 * e + j))
                a.e('v_pk_add_f32 %s, %s, %s' % (vr(r_, 2), vr(r_, 2), vr(u, 2)))
                if pack: a.e('v_cvt_pk_bf16_f32 v%d, v%d, v%d' % (src + 2 * e + j, r_, r_ + 1))
    for ts in range(4):
        for dd in range(2): addin(xreg(ts * 2 + dd), ts, dd, False)
    a.e('s_mov_b32 s59, 0')
    a.label('%s_poll' % name)
    a.e('s_waitcnt vmcnt(0)')
    a.e('v_max3_u32 v%d, v%d, v%d, v%d' % (vFl, LD, LD + 1, LD + 2))
    a.e('v_max3_u32 v%d, v%d, v%d, v%d' % (vFa, LD + 3, LD + 4, LD + 5))
    for j in range(6, 30, 4):
        a.e('v_max3_u32 v%d, v%d, v%d, v%d' % (vFl, vFl, LD + j, LD + j + 1))
        a.e('v_max3_u32 v%d, v%d, v%d, v%d' % (vFa, vFa, LD + j + 2, LD + j + 3))
    a.e('v_max3_u32 v%d, v%d, v%d, v%d' % (vFl, vFl, LD + 30, LD + 31))
    a.e('v_max_u32 v%d, v%d, v%d' % (vFl, vFl, vFa))
    a.e('v_cmp_eq_u32 vcc, -1, v%d' % vFl)
    a.e('s_cbranch_vccz %s_go' % name)
    for f in part_loads(): f.emit(a)
    a.e('s_add_u32 s59, s59, 1')
    a.e('s_cmp_lt_u32 s59, 0x40000')
    a.e('s_cbranch_scc1 %s_poll' % name)
    a.e('s_waitcnt vmcnt(0)')
    a.label('%s_go' % name, reset=True)
    if STAMP and not cfg.get('S1'): stamp_mid(a, 4)
    for ts in range(4):
        a.e('s_add_u32 s50, s49, %d' % (ts * 16384))
        for dd in range(2):
            x = LD + 4 * (ts * 2 + dd)
            addin(x, ts, dd, True)
            a.e('buffer_store_dwordx4 %s, v%d, s[28:31], s50 offen offset:%d' % (vr(x, 4), vRow, dd * 64))
    a.dense = False
    a.label('%s_fin' % name)
    if STAMP: stamp_end(a, sWave)
    a.e('s_endpgm')
    if FUSE:
        a.label('%s_out' % name, reset=True)
        attn_signal(VmQ())
    a.label('%s_end' % name)
    a.e('s_endpgm')
    if FUSE: return None
    return dict(name=name, vgpr=512, sgpr=96, accum=256, grid=256, block=256, lds=163840)
```

```python
import copy
from asmlib import *
from layout import *

class LdsQ:
    def __init__(self):
        self.n = 0; self.done = 0; self.where = {}; self.pending = set()
    def issue(self, regs, check=True):
        self.n += 1
        for r in regs:
            if check: assert r not in self.pending, ('ring WAR', r)
            self.where[r] = self.n; self.pending.add(r)
    def consume(self, r):
        self.pending.discard(r); self.pending.discard(r + 1000)
    def need(self, regs):
        return max([self.where.get(r, 0) for r in regs] + [0])
    def wait_for(self, a, idx):
        if idx <= self.done: return
        N = min(self.n - idx, 15)
        a.e('s_waitcnt lgkmcnt(%d)' % N)
        self.done = self.n - N
    def drained(self):
        self.done = self.n
    def state(self):
        return (self.n - self.done, sorted((self.n - v, k) for k, v in self.where.items() if v > self.done), sorted(self.pending))

MF = 'v_mfma_f32_16x16x32_bf16'

KIDX = [0]
MIDR = {76: 80, 77: 81, 0: 80, 1: 81, 2: 82, 3: 83, 4: 84}
def stamp_begin(a):
    a.e('s_memrealtime s[66:67]')
    a.e('s_memtime s[72:73]')
    for r in range(80, 85): a.e('s_mov_b32 s%d, 0' % r)
    KIDX[0] += 1
CYC = [False]
def stamp_mid(a, reg):
    if CYC[0]:
        a.e('s_memtime s[78:79]')
        a.e('s_waitcnt lgkmcnt(0)')
        a.e('s_cselect_b32 s79, 1, 0')
        a.e('s_sub_u32 s78, s78, s72')
        a.e('s_add_u32 s%d, s78, s66' % MIDR[reg])
        a.e('s_cmp_eq_u32 s79, 1')
        return
    a.e('s_memrealtime s[78:79]')
    a.e('s_waitcnt lgkmcnt(0)')
    a.e('s_mov_b32 s%d, s78' % MIDR[reg])
def stamp_end(a, sWave, endlabel=None, nw=4):
    a.e('s_waitcnt vmcnt(0)')
    a.e('s_memrealtime s[68:69]')
    a.e('s_memtime s[74:75]')
    a.e('s_waitcnt lgkmcnt(0)')
    a.e('s_sub_u32 s74, s74, s72')
    a.e('s_getreg_b32 s71, hwreg(HW_REG_XCC_ID)')
    a.e('s_and_b32 s71, s71, 15')
    a.e('s_lshl_b32 s71, s71, 28')
    a.e('s_or_b32 s74, s74, s71')
    a.e('s_mul_i32 s70, s2, %d' % nw)
    a.e('s_add_u32 s70, s70, s%d' % sWave)
    a.e('s_lshl_b32 s70, s70, 5')
    a.e('s_add_u32 s70, s70, %d' % (TRACE_OFF + (KIDX[0] - 1) * TRACE_STRIDE))
    a.e('s_mov_b64 exec, 1')
    a.e('v_mov_b32 v0, s66'); a.e('v_mov_b32 v1, s68'); a.e('v_mov_b32 v2, s74'); a.e('v_mov_b32 v3, s80')
    a.e('v_mov_b32 v4, s81'); a.e('v_mov_b32 v5, s82'); a.e('v_mov_b32 v6, s83'); a.e('v_mov_b32 v7, s84')
    a.e('v_mov_b32 v8, s70')
    a.e('global_store_dwordx4 v8, v[0:3], s[4:5]')
    a.e('global_store_dwordx4 v8, v[4:7], s[4:5] offset:16')

def attn_salu(a):
    sWave = 40; sM0 = 41; sDma = 42; sQ = 43; sI = 16; sN2 = 17; sValid = 18; sOut = 19; sMl = 20; sT0 = 21; sT1 = 22; sT2 = 23
    a.e('s_and_b32 s%d, s2, 7' % sT0)
    a.e('s_lshr_b32 s%d, s2, 3' % sT1)
    a.e('s_and_b32 s%d, s%d, 3' % (sT2, sT1))
    a.e('s_lshr_b32 s%d, s%d, 2' % (sT1, sT1))
    a.e('s_and_b32 s24, s%d, 3' % sT0)
    a.e('s_lshl_b32 s24, s24, 3')
    a.e('s_add_u32 s24, s24, s%d' % sT1)
    a.e('s_lshl_b32 s24, s24, 2')
    a.e('s_add_u32 s24, s24, s%d' % sWave)
    a.e('s_cmp_lt_u32 s24, 125')
    a.e('s_cselect_b32 s%d, 1, 0' % sValid)
    a.e('s_min_u32 s24, s24, 124')
    a.e('s_lshr_b32 s25, s%d, 2' % sT0)
    a.e('s_mul_i32 s25, s25, 125')
    a.e('s_add_u32 s24, s24, s25')
    a.e('s_lshl_b32 s%d, s24, 15' % sQ)
    a.e('s_mul_i32 s26, s%d, 250' % sT2)
    a.e('s_add_u32 s26, s26, s24')
    a.e('s_lshl_b32 s%d, s24, 17' % sOut)
    a.e('s_lshl_b32 s27, s%d, 10' % sT2)
    a.e('s_add_u32 s%d, s%d, s27' % (sOut, sOut))
    a.e('s_add_u32 s%d, s%d, %d' % (sOut, sOut, OP_OFF))
    a.e('s_lshl_b32 s%d, s24, 9' % sMl)
    a.e('s_lshl_b32 s26, s%d, 7' % sT2)
    a.e('s_add_u32 s%d, s%d, s26' % (sMl, sMl))
    a.e('s_add_u32 s%d, s%d, %d' % (sMl, sMl, ML_OFF))
    a.e('s_add_u32 s%d, s%d, %d' % (sQ, sQ, QF_OFF))
    a.e('s_mul_i32 s27, s%d, 31' % sT2)
    a.e('s_min_u32 s28, s%d, 1' % sT2)
    a.e('s_add_u32 s27, s27, s28')
    a.e('s_add_u32 s27, s27, s25')
    a.e('s_lshl_b32 s%d, s27, 15' % sDma)
    if XF_OFF: a.e('s_add_u32 s%d, s%d, %d' % (sDma, sDma, XF_OFF))
    a.e('s_sub_u32 s%d, 31, s28' % sN2)
    a.e('s_lshl_b32 s%d, s%d, 13' % (sM0, sWave))

def attn_early_setup(a, sW_in, vLane, vLane16, T, qonly=False):
    a.e('s_mov_b32 s40, s%d' % sW_in)
    attn_salu(a)
    a.e('s_add_u32 s34, s27, s17')
    a.e('s_lshr_b32 s34, s34, 1')
    a.e('s_lshr_b32 s36, s27, 1')
    a.e('v_add_u32 v%d, s36, v%d' % (T, vLane))
    a.e('v_min_u32 v%d, s34, v%d' % (T, T))
    a.e('s_lshr_b32 s34, s24, 1')
    a.e('v_mov_b32 v%d, s34' % (T + 1))
    if qonly: a.e('v_mov_b32 v%d, v%d' % (T, T + 1))
    else:
        a.e('v_cmp_lt_u32 vcc, 31, v%d' % vLane)
        a.e('v_cndmask_b32 v%d, v%d, v%d, vcc' % (T, T, T + 1))
    a.e('v_lshlrev_b32 v%d, 7, v%d' % (T, T))
    a.e('v_add_u32 v%d, %d, v%d' % (T, TC_OFF, T))
    a.e('v_add_u32 v%d, s41, v%d' % (T + 2, vLane16))
    a.e('v_add_u32 v%d, 0x1000, v%d' % (T + 3, T + 2))
def attn_early_loads(vLane16, T):
    out = []
    def tile(stage):
        for j in range(8):
            g = []
            if j % 4 == 0: g += ['s_add_u32 m0, s41, %d' % (stage * 32768 + (j // 4) * 4096), 's_nop 0']
            g.append('buffer_load_dwordx4 v%d, s[8:11], s42 offen offset:%d lds' % (T + 2 if j < 4 else T + 3, (j % 4) * 1024))
            if j == 7: g.append('s_add_u32 s42, s42, 0x8000')
            out.append(g)
    tile(0)
    for f in range(32):
        g = ['s_add_u32 s43, s43, 0x1000'] if (f and f % 4 == 0) else []
        g.append('buffer_load_dwordx4 %s, v%d, s[8:11], s43 offen offset:%d sc1' % (ar(4 * f, 4), vLane16, (f % 4) * 1024))
        out.append(g)
    tile(1); tile(2)
    return out

def gen_attn(a, name='attn_kernel', cfg=None):
    cfg = cfg or {}
    DV = cfg.get('DV', 9)
    DK = cfg.get('DK', 7)
    BARPOS = cfg.get('BARPOS', 31 - DV + 4)
    WG = cfg.get('WAITGROUP', 4)
    DMA_SLOTS = cfg.get('DMA_SLOTS', [2, 6, 10, 14, 18, 22, 26, 30])
    NO_DMA = cfg.get('NO_DMA', False)
    NO_SM = cfg.get('NO_SM', False)
    STAMP = cfg.get('STAMP', False)
    FUSE = cfg.get('FUSE', 1)
    S = [0, 16]; P = 32; RING = 40; NR = 16
    NEGM = 104
    vK = [112, 113]; vV = [114, 115]
    vD0, vD1, vL0, vL1, vMx, vT0, vT1, vLane16 = 116, 117, 118, 119, 120, 121, 122, 123
    vL = [vL0, vL1]
    def Sreg(b, kt, qs): return S[b] + (kt * 2 + qs) * 4
    def Obase(dt, qs): return (dt * 2 + qs) * 4
    def Oreg(dt, qs):
        o = Obase(dt, qs)
        return vr(128 + o, 4) if o < 128 else ar(o, 4)
    def Qreg(ks, qs): return ar((ks * 2 + qs) * 4, 4)
    sSRD = 8; sWave = 40; sM0 = 41; sDma = 42; sQ = 43; sI = 16; sN2 = 17; sValid = 18; sOut = 19; sMl = 20; sT0 = 21; sT1 = 22; sT2 = 23
    srd = sr(sSRD, 4)

    F2 = cfg.get('FUSE2', 1)
    from common import poll
    if F2:
        a.raw('.p2align 8'); a.label(name, reset=True); a.label('attn_body')
        a.e('s_nop 1')
    else:
        kernel_begin(a, name)
        a.e('s_cmp_ge_u32 s2, 256')
        a.e('s_cbranch_scc1 %s_end' % name)
        a.e('s_load_dwordx2 s[4:5], s[0:1], 80')
        if STAMP: stamp_begin(a)
    if cfg.get('CPF', 1) and not F2:
        from common import code_prefetch
        code_prefetch(a, name, 124, 125, 1)
    a.e('v_lshrrev_b32 v1, 6, v0')
    a.e('v_and_b32 v2, 63, v0')
    if not F2: a.e('v_readfirstlane_b32 s%d, v1' % sWave)
    a.e('v_lshlrev_b32 v%d, 4, v2' % vLane16)
    if not F2: attn_salu(a)
    a.e('v_add_u32 v%d, s%d, v%d' % (vD0, sM0, vLane16))
    a.e('v_add_u32 v%d, 0x1000, v%d' % (vD1, vD0))
    sG, sRd0, sRd1 = 29, 30, 31
    a.e('s_and_b32 s%d, s%d, 3' % (sG, sT0))
    a.e('s_lshl_b32 s%d, s%d, 5' % (sG, sG))
    a.e('s_lshr_b32 s34, s2, 3')
    a.e('s_add_u32 s%d, s%d, s34' % (sG, sG))
    a.e('s_add_u32 s%d, s%d, s25' % (sG, sG))
    a.e('s_lshl_b32 s%d, s%d, 15' % (sG, sG))
    a.e('s_add_u32 s35, s%d, %d' % (sG, U_OFF))
    a.e('s_add_u32 s%d, s%d, %d' % (sG, sG, G_OFF))
    a.e('s_sub_u32 s%d, s%d, 3' % (sRd0, sN2))
    a.e('s_sub_u32 s%d, s%d, 2' % (sRd1, sN2))
    a.e('v_lshrrev_b32 v3, 4, v2')
    a.e('v_and_b32 v4, 15, v2')
    a.e('v_and_b32 v5, 1, v3')
    a.e('v_mul_u32_u24 v5, 12, v5')
    a.e('v_xor_b32 v5, v4, v5')
    a.e('v_lshlrev_b32 v5, 4, v5')
    a.e('v_lshl_add_u32 v%d, v3, 9, v5' % vK[0])
    a.e('v_add_u32 v%d, 0x10000, v%d' % (vK[1], vK[0]))
    a.e('v_lshrrev_b32 v4, 2, v2')
    a.e('v_bfe_u32 v5, v2, 1, 1')
    a.e('v_and_b32 v6, 1, v2')
    a.e('v_mul_u32_u24 v7, 12, v5')
    a.e('v_xor_b32 v4, v4, v7')
    a.e('v_lshlrev_b32 v4, 4, v4')
    a.e('v_lshl_add_u32 v4, v5, 9, v4')
    a.e('v_lshl_add_u32 v%d, v6, 3, v4' % vV[0])
    a.e('v_add_u32 v%d, 0x10000, v%d' % (vV[1], vV[0]))
    a.e('v_lshlrev_b32 v126, 7, v2')
    a.e('v_lshlrev_b32 v127, 7, v0')
    zl = ['v_mov_b32 v%d, 0' % r for r in range(128, 256)] + ['v_accvgpr_write_b32 a%d, 0' % r for r in range(128, 256)]
    def zero(n):
        for _ in range(n):
            if zl: a.e(zl.pop(0))
    if F2:
        a.e('v_cmp_ne_u32 vcc, 0, v2')
        a.e('v_mov_b32 v125, 0x40000000')
        a.e('v_cndmask_b32 v124, 0, v125, vcc')
        a.e('v_mov_b32 v125, 1')
        a.e('s_and_b32 s36, s2, 3')
        a.e('s_lshl_b32 s36, s36, 4')
        a.e('s_lshr_b32 s37, s2, 4')
        a.e('s_add_u32 s36, s36, s37')
        a.e('s_lshl_b32 s36, s36, 6')
        a.e('s_add_u32 s37, s36, 95')
        a.e('s_min_u32 s37, s37, 3999')
        a.e('s_lshr_b32 s37, s37, 7')
        a.e('s_max_u32 s36, s36, 32')
        a.e('s_sub_u32 s36, s36, 32')
        a.e('s_lshr_b32 s36, s36, 7')
        a.e('v_add_u32 v126, s36, v2')
        a.e('v_min_u32 v126, s37, v126')
        a.e('s_and_b32 s36, s2, 4')
        a.e('s_lshl_b32 s36, s36, 3')
        a.e('v_add_u32 v126, s36, v126')
        a.e('v_lshlrev_b32 v126, 7, v126')
        a.e('v_add_u32 v126, %d, v126' % TC_OFF)
        zero(cfg.get('AT_Z2', 150))
    else:
        zero(cfg.get('AT_Z0', 64))
        a.e('s_waitcnt lgkmcnt(0)')
        a.e('s_mov_b32 s%d, s4' % sSRD)
        a.e('s_and_b32 s%d, s5, 0xffff' % (sSRD + 1))
        a.e('s_mov_b32 s%d, %d' % (sSRD + 2, WS_BYTES))
        a.e('s_mov_b32 s%d, 0x00020000' % (sSRD + 3))

    def dma_piece(stage, j, redirect=False):
        out = []
        if j % 4 == 0:
            out.append('s_add_u32 m0, s%d, %d' % (sM0, stage * 32768 + (j // 4) * 4096))
        out.append('buffer_load_dwordx4 v%d, %s, s%d offen offset:%d lds' % (vD0 if j < 4 else vD1, srd, sDma, (j % 4) * 1024))
        if j == 7:
            out.append('s_add_u32 s%d, s%d, 0x8000' % (sDma, sDma))
            if redirect and cfg.get('AT_REDIR', 0):
                out.append('s_cmp_eq_u32 s%d, s%d' % (sI, sRd0))
                out.append('s_cselect_b32 s%d, s%d, s%d' % (sDma, sG, sDma))
                out.append('s_cmp_eq_u32 s%d, s%d' % (sI, sRd1))
                out.append('s_cselect_b32 s%d, s35, s%d' % (sDma, sDma))
        return out
    def dma_tile(stage, z=0):
        for j in range(8):
            for t in dma_piece(stage, j): a.e(t)
            zero(z)

    if cfg.get('AT_QT', 0):
        a.e('s_lshl_b32 s34, s%d, 13' % sT2)
        a.e('s_add_u32 s34, s34, s%d' % sQ)
        a.e('buffer_load_dword v125, v126, %s, s34 offen' % srd)
    if not F2:
        dma_tile(0)
        for f in range(32):
            if f and f % 4 == 0:
                a.e('s_add_u32 s%d, s%d, 0x1000' % (sQ, sQ))
            a.e('buffer_load_dwordx4 %s, v%d, %s, s%d offen offset:%d' % (ar(4 * f, 4), vLane16, srd, sQ, (f % 4) * 1024))
            zero(6)
        zero(1000)
    a.e('v_mov_b32 v%d, 0' % vL0)
    a.e('v_mov_b32 v%d, 0' % vL1)
    a.e('s_mov_b32 s%d, 0' % sI)

    q = LdsQ()
    def ring(n): return RING + 4 * ((n % 64) % NR)
    def kread(stage, n):
        reg = ring(n); ks, kt = n // 2, n % 2
        return [('ds', 'ds_read_b128 %s, v%d offset:%d' % (vr(reg, 4), vK[stage >> 1], (stage & 1) * 32768 + ks * 2048 + kt * 256), [reg])]
    def vread(stage, dt):
        reg = ring(32 + dt)
        off = (stage & 1) * 32768 + dt * 1024
        return [('ds', 'ds_read_b64_tr_b16 %s, v%d offset:%d' % (vr(reg, 2), vV[stage >> 1], off), [reg + 1000]),
                ('ds', 'ds_read_b64_tr_b16 %s, v%d offset:%d' % (vr(reg + 2, 2), vV[stage >> 1], off + 256), [reg])]
    chk = [True]
    def emit_item(it):
        if isinstance(it, tuple):
            a.e(it[1]); q.issue(it[2], chk[0])
        else:
            a.e(it)

    if not F2: a.e('s_waitcnt vmcnt(32)')
    a.e('s_barrier')
    if STAMP and cfg.get('S1') == 6: stamp_mid(a, 0)
    PD = 8
    for n in range(PD):
        for it in kread(0, n): emit_item(it)
    late = [] if F2 else [dma_piece(1, j) for j in range(8)] + [dma_piece(2, j) for j in range(8)]
    nl = 0
    for n in range(32):
        ks, kt = n // 2, n % 2
        if kt == 0 and not F2:
            a.e('s_waitcnt vmcnt(%d)' % (nl + 30 - 2 * ks))
        q.wait_for(a, q.need([ring(n)]))
        for qs in range(2):
            a.e('%s %s, %s, %s, %s' % (MF, vr(Sreg(0, kt, qs), 4), vr(ring(n), 4), Qreg(ks, qs), '0' if ks == 0 else vr(Sreg(0, kt, qs), 4)))
            if qs == 0 and n + PD < 32:
                for it in kread(0, n + PD): emit_item(it)
            zero(1 + qs)
        q.consume(ring(n))
        if (n < 8 or n % 2 == 1) and late:
            for t in late.pop(0): a.e(t)
            nl += 1
    assert not late
    zero(1000)
    if not F2:
        a.e('s_waitcnt vmcnt(8)')
        a.e('s_barrier')
    for r_ in range(4): a.e('v_mov_b32 v%d, -1' % (P + r_))
    if FUSE:
        a.e('s_lshl_b32 s34, s%d, 4' % sT0)
        a.e('s_lshr_b32 s36, s2, 4')
        a.e('s_add_u32 s34, s34, s36')
        a.e('s_lshl_b32 s34, s34, 16')
        a.e('s_add_u32 s34, s34, %d' % PO_OFF)
        a.e('s_add_u32 s36, s34, 0x8000')
        a.e('s_bitcmp%d_b32 s2, 3' % cfg.get('TSWAP', 0))
        a.e('s_cbranch_scc1 %s_nofill' % name)
        for j in range(16):
            a.e('buffer_store_dwordx4 %s, v%d, %s, s%d offen offset:%d' % (vr(P, 4), vD0 if j % 8 < 4 else vD1, srd, 34 if j < 8 else 36, (j % 4) * 1024))
        a.label('%s_nofill' % name)
    else:
        a.e('s_lshl_b32 s34, s2, 15')
        a.e('s_add_u32 s34, s34, %d' % PO_OFF)
        for j in range(8):
            a.e('buffer_store_dwordx4 %s, v%d, %s, s34 offen offset:%d' % (vr(P, 4), vD0 if j < 4 else vD1, srd, (j % 4) * 1024))

    if cfg.get('AT_DMA2', 0):
        for j in range(4):
            for t in dma_piece(3, j): a.e(t)
    n_tail = cfg.get('NTAIL', 8)
    for n in range(n_tail):
        for it in kread(1, n): emit_item(it)

    def head_wait():
        idx = max(q.need([ring(k2)]) for k2 in range(WG))
        assert idx > q.done
        q.wait_for(a, idx)
    def rowmax(b, qs, dst, tmp):
        r0, r1 = Sreg(b, 0, qs), Sreg(b, 1, qs)
        a.e('v_max3_f32 v%d, v%d, v%d, v%d' % (dst, r0, r0 + 1, r0 + 2))
        a.e('v_max3_f32 v%d, v%d, v%d, v%d' % (dst, dst, r0 + 3, r1))
        a.e('v_max3_f32 v%d, v%d, v%d, v%d' % (dst, dst, r1 + 1, r1 + 2))
        a.e('v_max_f32 v%d, v%d, v%d' % (dst, dst, r1 + 3))
        a.e('v_mov_b32 v%d, v%d' % (tmp, dst))
        a.e('v_permlane16_swap_b32 v%d, v%d' % (tmp, dst))
        a.e('v_max_f32 v%d, v%d, v%d' % (dst, dst, tmp))
        a.e('v_mov_b32 v%d, v%d' % (tmp, dst))
        a.e('v_permlane32_swap_b32 v%d, v%d' % (tmp, dst))
        a.e('v_max_f32 v%d, v%d, v%d' % (dst, dst, tmp))
    for qs in range(2):
        rowmax(0, qs, vMx, vT0)
        for kt in range(2):
            for r in range(4):
                a.e('v_sub_f32 v%d, v%d, v%d' % (Sreg(0, kt, qs) + r, Sreg(0, kt, qs) + r, vMx))
        for r in range(4):
            a.e('v_sub_f32 v%d, 0, v%d' % (NEGM + 4 * qs + r, vMx))

    def softmax_items(b):
        items = []
        for qs in range(2):
            for kt in range(2):
                for pr in range(2):
                    r0 = Sreg(b, kt, qs) + 2 * pr; r1 = r0 + 1
                    items.append('v_exp_f32 v%d, v%d' % (r0, r0))
                    items.append('v_exp_f32 v%d, v%d' % (r1, r1))
                    items.append('v_add_f32 v%d, v%d, v%d' % (vL[qs], vL[qs], r0))
                    items.append('v_cvt_pk_bf16_f32 v%d, v%d, v%d' % (P + 4 * qs + 2 * kt + pr, r0, r1))
                    items.append('v_add_f32 v%d, v%d, v%d' % (vL[qs], vL[qs], r1))
        return items

    LAT = cfg.get('LAT', 8)
    EARLY = cfg.get('EARLY', 22)
    BARG = cfg.get('BARG', 112)
    def body(u, final=False):
        bc, bn = u % 2, (u + 1) % 2
        stK, stV = (u + 1) % 4, u
        mf = [None] * 128
        need = [None] * 64
        for n in range(32):
            if final: break
            ks, kt = n // 2, n % 2
            for qs in range(2):
                pos = qs ^ (kt if cfg.get('AT_GRAY', 1) else 0)
                mf[2 * n + pos] = '%s %s, %s, %s, %s' % (MF, vr(Sreg(bn, kt, qs), 4), vr(ring(n), 4), Qreg(ks, qs), vr(NEGM + 4 * qs, 4) if ks == 0 else vr(Sreg(bn, kt, qs), 4))
            need[n] = ring(n)
        for dt in range(32):
            for qs in range(2):
                pos = qs ^ ((dt & 1) if cfg.get('AT_GRAY', 1) else 0)
                mf[64 + 2 * dt + pos] = '%s %s, %s, %s, %s' % (MF, Oreg(dt, qs), vr(ring(32 + dt), 4), vr(P + 4 * qs, 4), Oreg(dt, qs))
            need[32 + dt] = ring(32 + dt)
        pre = [[] for _ in range(129)]
        if final:
            sm = [] if NO_SM else softmax_items(bc)
            for dt in range(32):
                its = vread(stV, dt)
                sl = 32 + dt - 9
                pre[2 * sl] += [its[0]]; pre[2 * sl + 1] += [its[1]]
            for j, it in enumerate(sm):
                pre[2 * (32 - 9) + (j * 18) // len(sm)].append(it)
            waits = set(range(64, 128, 4))
        else:
            cap = [2] * 128
            def wgap(k):
                g = 2 * (k - k % WG)
                return g
            waits = set(wgap(k) for k in range(WG, 64) if not (BARG <= wgap(k) < 128))
            for g in waits: cap[g] -= 1
            cap[BARG] -= 2; pre[BARG].append(('bar',))
            cap[0] -= 1 if u == 1 else 2
            cap[127] -= 1
            if F2 and u == 0:
                pre[122].append('buffer_atomic_add v125, v124, %s, s86 offen offset:8 sc1' % srd); cap[122] -= 2
                pre[123].append('s_mov_b32 s86, 0x40000000'); cap[123] -= 1
            pre[125].append('s_add_u32 s%d, s%d, 1' % (sI, sI)); cap[125] -= 1
            if u in (1, 2):
                pre[126].append('s_cmp_eq_u32 s%d, s%d' % (sI, sN2)); cap[126] -= 1
            ds = []
            def ring_ok(k):
                return 2 * (k - NR) + 2
            for n in range(n_tail, 32):
                for it in kread(stK, n): ds.append((it, max(0, wgap(n) - EARLY, ring_ok(n)), wgap(n) - LAT))
            for dt in range(32):
                k = 32 + dt
                w = min(wgap(k), BARG)
                for it in vread(stV, dt): ds.append((it, max(w - EARLY, ring_ok(k)), w - LAT))
            for n in range(n_tail):
                for it in kread((u + 2) % 4, n): ds.append((it, max(BARG + 1, ring_ok(64 + n)), 120))
            dl = [d[2] for d in ds]
            for x in range(len(ds) - 2, -1, -1):
                dl[x] = min(dl[x], dl[x + 1] - 1)
            sm = [] if NO_SM else [(it, 2 if it.startswith('v_exp') else 1, 1) for it in softmax_items(bc)]
            Sn = S[bn]
            mx = ['v_max3_f32 v%d, v%d, v%d, v%d' % (vMx, Sn, Sn + 1, Sn + 2)]
            for r in range(3, 15, 2):
                mx.append('v_max3_f32 v%d, v%d, v%d, v%d' % (vMx, vMx, Sn + r, Sn + r + 1))
            mx.append('v_max_f32 v%d, v%d, v%d' % (vMx, vMx, Sn + 15))
            mx.append('v_cmp_lt_f32 vcc, 0x41000000, v%d' % vMx)
            sm += [(it, 1, cfg.get('MX_START', 70)) for it in mx]
            dm = []
            post = {}
            if cfg.get('AT_DMA2', 0):
                def place(stage, js, g0):
                    for x, j in enumerate(js):
                        for it in dma_piece(stage, j):
                            if it.startswith('s_add_u32 m0'): post.setdefault(g0 - 1, []).append(it); cap[g0 - 1] -= 1
                            elif it.startswith('buffer'): pre[g0 + x].append(it); cap[g0 + x] -= 2
                            else: post.setdefault(g0 + x + 1, []).append(it); cap[g0 + x + 1] -= 1
                place((u + 3) % 4, range(4, 8), BARG - 5)
                place(u, range(0, 4), 121)
            elif not NO_DMA:
                g0, gs = cfg.get('DMA_START', 66), cfg.get('DMA_STEP', 5)
                for j in range(8):
                    for x, it in enumerate(dma_piece((u + 3) % 4, j, True)):
                        dm.append((it, g0 + gs * j + (-1 if it.startswith('s_add_u32 m0') else 0)))
            di = si = mi = 0
            last_m0 = -9
            for g in range(128):
                used_ds = False
                while cap[g] > 0:
                    ds_ready = di < len(ds) and ds[di][1] <= g and not used_ds
                    ds_urgent = ds_ready and dl[di] <= g + cfg.get('URG', 0)
                    sm_ready = si < len(sm) and sm[si][2] <= g and sm[si][1] <= cap[g]
                    dm_ready = mi < len(dm) and dm[mi][1] <= g and not (dm[mi][0].startswith('buffer') and (last_m0 == g or (used_ds and cfg.get('DMA_EXCL'))))
                    if ds_urgent:
                        pre[g].append(ds[di][0]); di += 1; cap[g] -= 1; used_ds = True
                    elif sm_ready and sm[si][1] == 2:
                        pre[g].append(sm[si][0]); cap[g] -= 2; si += 1
                    elif dm_ready:
                        if dm[mi][0].startswith('s_add_u32 m0'): last_m0 = g
                        if dm[mi][0].startswith('buffer') and cfg.get('DMA_EXCL'): used_ds = True
                        pre[g].append(dm[mi][0]); mi += 1; cap[g] -= 1
                    elif ds_ready:
                        pre[g].append(ds[di][0]); di += 1; cap[g] -= 1; used_ds = True
                    elif sm_ready:
                        pre[g].append(sm[si][0]); cap[g] -= 1; si += 1
                    else:
                        break
                pre[g] += post.get(g, [])
                if g == 62: assert NO_SM or si >= 40, ('softmax not finished in phase A', si)
                if g == BARG - 1: assert mi == len(dm), 'dma not finished'
                if di < len(ds): assert ds[di][2] + 4 > g, ('ds late', di, g, ds[di])
            assert di == len(ds) and si == len(sm), (di, len(ds), si, len(sm))
            if u == 0 and cfg.get('SHOW'):
                for g in range(128):
                    print(g, 'W' if g in waits else ' ', [ (x[1] if len(x) > 1 else 'BAR').split()[0] if isinstance(x, tuple) else x.split()[0] for x in pre[g]])
        for pos in range(128):
            k = pos // 2
            for it in pre[pos]:
                if isinstance(it, tuple) and it[0] == 'bar':
                    a.e('s_waitcnt vmcnt(%d) lgkmcnt(0)' % (0 if NO_DMA else 8)); q.drained()
                    a.e('s_barrier')
                else:
                    emit_item(it)
            if mf[pos] is None: continue
            if pos == 127 and not final:
                head_wait()
            if pos in waits:
                idx = 0
                for k2 in range(k, min(64, k + (2 if final else WG))):
                    assert need[k2] in q.pending, ('not issued', k2, pos)
                    idx = max(idx, q.need([need[k2]]))
                q.wait_for(a, idx)
            assert q.need([need[k]]) <= q.done and need[k] in q.pending, ('uncovered', pos)
            a.e(mf[pos])
            if pos % 2 == 1: q.consume(need[k])

    def rare(u):
        bn = (u + 1) % 2
        a.label('%s_rare%d' % (name, u), reset=True)
        a.e('s_nop 15')
        for qs in range(2):
            rowmax(bn, qs, vMx, vT0)
            a.e('v_max_f32 v%d, 0, v%d' % (vMx, vMx))
            a.e('v_sub_f32 v%d, 0, v%d' % (vT0, vMx))
            a.e('v_exp_f32 v%d, v%d' % (vT0, vT0))
            for kt in range(2):
                for r in range(4):
                    a.e('v_sub_f32 v%d, v%d, v%d' % (Sreg(bn, kt, qs) + r, Sreg(bn, kt, qs) + r, vMx))
            for r in range(4):
                a.e('v_sub_f32 v%d, v%d, v%d' % (NEGM + 4 * qs + r, NEGM + 4 * qs + r, vMx))
            a.e('v_mul_f32 v%d, v%d, v%d' % (vL[qs], vL[qs], vT0))
            for dt in range(32):
                o = Obase(dt, qs)
                if o < 128:
                    for j in range(4): a.e('v_mul_f32 v%d, v%d, v%d' % (128 + o + j, 128 + o + j, vT0))
                else:
                    for j in range(4): a.e('v_accvgpr_read_b32 v%d, a%d' % (P + j, o + j))
                    for j in range(4): a.e('v_mul_f32 v%d, v%d, v%d' % (P + j, P + j, vT0))
                    for j in range(4): a.e('v_accvgpr_write_b32 a%d, v%d' % (o + j, P + j))
        a.e('s_nop 3')
        a.e('s_branch %s_back%d' % (name, u))

    head_wait()
    if STAMP and (not FUSE or cfg.get('S1') == 4): stamp_mid(a, 76)
    if STAMP and cfg.get('S1') == 6: stamp_mid(a, 1)
    a.raw('.p2align 6')
    a.label('%s_loop' % name)
    a.record = []
    qstate0 = q.state()
    saved = {}
    for u in range(4):
        body(u)
        a.e('s_cbranch_vccnz %s_rare%d' % (name, u))
        a.label('%s_back%d' % (name, u))
        if u in (1, 2):
            a.e('s_cbranch_scc1 %s_final%d' % (name, u + 1))
            saved[u + 1] = (copy.deepcopy(q), list(a.hist))
        assert q.state() == qstate0, (q.state(), qstate0)
    a.e('s_branch %s_loop' % name)
    rec = [x[1] for x in a.record if x[0] == 'ins']
    a.record = None
    viol = check_seq(rec + rec[:40])
    assert not viol, viol
    loop_len = len(rec)

    for u in (2, 3):
        a.label('%s_final%d' % (name, u))
        q.__dict__.update(saved[u][0].__dict__); a.hist = saved[u][1]
        q.pending = set()
        if F2: a.e('global_load_dword v127, v126, s[4:5] offset:8 sc1')
        if cfg.get('AT_TOUCH', 0):
            a.e('s_lshr_b32 s34, s2, 3')
            a.e('s_lshl_b32 s34, s34, 15')
            a.e('s_add_u32 s34, s34, %d' % W2_OFF)
            a.e('buffer_load_dword v125, v127, %s, s34 offen' % srd)
            a.e('s_sub_u32 s34, s34, %d' % W2_OFF)
            a.e('s_min_u32 s34, s34, %d' % (4 << 15))
            a.e('s_add_u32 s34, s34, %d' % TPC_OFF)
            a.e('buffer_load_dword v125, v127, %s, s34 offen' % srd)
            a.e('s_getpc_b64 s[60:61]')
            lbl = '%s_np%d' % (name, u)
            a.label(lbl)
            a.e('s_add_u32 s60, s60, tail_kernel-%s' % lbl)
            a.e('s_addc_u32 s61, s61, 0')
            a.e('v_min_u32 v124, tail_kernel_end-tail_kernel, v127')
            a.e('global_load_dword v125, v124, s[60:61]')
        body(u, final=True)
        if u == 2:
            a.e('s_branch %s_epi' % name)
    a.label('%s_epi' % name)
    if STAMP and (not FUSE or cfg.get('S1') == 4): stamp_mid(a, 77)
    if FUSE: a.e('s_waitcnt vmcnt(0)')
    if F2:
        assert not cfg.get('FUSE3', 0)
        a.e('v_cmp_gt_u32 vcc, 16, v127')
        a.e('s_cbranch_vccz %s_pg_ok' % name)
        poll(a, '%s_pg' % name, 126, 127, 16, 38, 8)
    a.e('s_cmp_eq_u32 s%d, 0' % sValid)
    a.e('s_cbranch_scc1 %s_%s' % (name, 'sig' if FUSE else 'end'))
    a.e('s_nop 15')
    for qs in range(2):
        l = vL[qs]
        a.e('v_mov_b32 v%d, v%d' % (vT0, l))
        a.e('v_permlane16_swap_b32 v%d, v%d' % (vT0, l))
        a.e('v_add_f32 v%d, v%d, v%d' % (l, l, vT0))
        a.e('v_mov_b32 v%d, v%d' % (vT0, l))
        a.e('v_permlane32_swap_b32 v%d, v%d' % (vT0, l))
        a.e('v_add_f32 v%d, v%d, v%d' % (l, l, vT0))
    a.e('v_cmp_gt_u32 vcc, 0x100, v%d' % vLane16)
    a.e('v_cndmask_b32 v0, v%d, v%d, vcc' % (NEGM + 4, NEGM))
    a.e('v_cndmask_b32 v1, v%d, v%d, vcc' % (vL1, vL0))
    a.e('v_log_f32 v1, v1')
    a.e('v_sub_f32 v0, v1, v0')
    a.e('v_lshrrev_b32 v2, 2, v%d' % vLane16)
    a.e('s_mov_b64 exec, 0xffffffff')
    a.e('buffer_store_dword v0, v2, %s, s%d offen' % (srd, sMl))
    a.e('s_mov_b64 exec, -1')
    a.e('v_rcp_f32 v4, v%d' % vL0)
    a.e('v_rcp_f32 v5, v%d' % vL1)
    a.dense = True
    sm0 = a.store_mod; a.store_mod = cfg.get('AT_SM', sm0)
    t = 0
    for D in range(16):
        for qs in range(2):
            f = D * 2 + qs
            tmp = RING + 4 * (t % 8); t += 1
            srcs = []
            for e in range(2):
                o = Obase(2 * D + e, qs)
                if o < 128:
                    srcs.append(128 + o)
                else:
                    s_ = 8 + 8 * (f % 3) + 4 * e
                    for j in range(4): a.e('v_accvgpr_read_b32 v%d, a%d' % (s_ + j, o + j))
                    srcs.append(s_)
            for e in range(2):
                for j in range(2):
                    r_ = vr(srcs[e] + 2 * j, 2)
                    a.e('v_pk_mul_f32 %s, %s, v[4:5] op_sel:[0,%d] op_sel_hi:[1,%d]' % (r_, r_, qs, qs))
            for e in range(2):
                for j in range(2):
                    a.e('v_cvt_pk_f16_f32 v%d, v%d, v%d' % (tmp + 2 * e + j, srcs[e] + 2 * j, srcs[e] + 2 * j + 1))
            if f: a.e('s_add_u32 s%d, s%d, 0x1000' % (sOut, sOut))
            a.e('buffer_store_dwordx4 %s, v%d, %s, s%d offen' % (vr(tmp, 4), vLane16, srd, sOut))
    a.store_mod = sm0
    a.dense = False
    if cfg.get('AT_BACK', 0):
        if cfg.get('AT_BACK31', 1):
            a.e('s_cmp_eq_u32 s%d, 31' % sN2)
            a.e('s_cbranch_scc1 %s_nb' % name)
        a.e('s_sub_u32 s%d, s%d, 0x7000' % (sOut, sOut))
        a.e('s_waitcnt vmcnt(%d)' % (32 - 8 * cfg['AT_BACK']))
        for j in range(cfg['AT_BACK']):
            a.e('buffer_load_dword v125, v126, %s, s%d offen' % (srd, sOut))
            a.e('s_add_u32 s%d, s%d, 0x2000' % (sOut, sOut))
        a.label('%s_nb' % name)
    if FUSE:
        a.label('%s_sig' % name, reset=True)
        a.e('s_lshl_b32 s34, s%d, 3' % sT0)
        a.e('s_add_u32 s34, s34, s%d' % sT1)
        a.e('s_lshl_b32 s34, s34, 7')
        a.e('s_add_u32 s34, s34, %d' % CNT_OFF)
        a.e('s_mov_b32 s87, s34')
        a.e('s_lshl_b32 s35, s%d, 6' % sWave)
        a.e('v_lshrrev_b32 v0, 4, v%d' % vLane16)
        a.e('v_add_u32 v0, s35, v0')
        if STAMP and cfg.get('S1') == 4: stamp_mid(a, 2)
        a.e('s_barrier')
        a.e('s_branch tail_body')
    else:
        if STAMP: stamp_end(a, sWave, '%s_end' % name)
    a.label('%s_end' % name)
    a.e('s_endpgm')
    for u in range(4):
        rare(u)
    if F2: return None
    return dict(name=name, vgpr=512, sgpr=96, accum=256, grid=256, block=256, lds=163840 if FUSE else 131072, loop_len=loop_len)
```

```python
import math
from common import *
from attn16 import stamp_begin, stamp_mid, stamp_end, attn_salu, attn_early_loads

def gen_in(a, name='in_kernel', cfg=None):
    cfg = cfg or {}
    STAMP = cfg.get('STAMP', False)
    ST2 = STAMP and cfg.get('S1') == 5
    RW = 48; NW = 96; TB = 192; NS = 2
    QA, GA, UA = 0, 64, 128
    vLane, vLane16, vK0, vK1, vRow, vI, vQ4, vOob, vOne, vPa, vD0, vD1 = range(192, 204)
    C1, C2, G, ONE, SS = 204, 206, 208, 216, 224
    vPv, vSx, vSy, vSz = 218, 219, 220, 221
    sWave, sW, sA, sB, sC = 3, 12, 13, 14, 15
    IB = 32768
    ws = 's[8:11]'
    def qa(t, ts): return QA + (ts * 2 + t) * 4
    def ha(base, t, ts): return base + (t * 8 + ts) * 4

    kernel_begin(a, name)
    a.e('s_cmp_ge_u32 s2, 256')
    a.e('s_cbranch_scc1 %s_end' % name)
    a.e('s_load_dwordx2 s[4:5], s[0:1], 80')
    if STAMP: stamp_begin(a)
    a.e('v_lshrrev_b32 v1, 6, v0')
    a.e('v_and_b32 v%d, 63, v0' % vLane)
    a.e('v_readfirstlane_b32 s%d, v1' % sWave)
    a.e('v_lshlrev_b32 v%d, 4, v%d' % (vLane16, vLane))
    a.e('s_mov_b32 s40, s%d' % sWave)
    attn_salu(a)
    a.e('s_lshl_b32 s44, s21, 3')
    a.e('s_add_u32 s44, s44, s22')
    a.e('s_and_b32 s45, s44, 31')
    a.e('s_lshl_b32 s45, s45, 2')
    a.e('s_add_u32 s%d, s45, s25' % sA)
    a.e('s_add_u32 s%d, s%d, s%d' % (sB, sA, sWave))
    a.e('s_lshl_b32 s%d, s%d, 15' % (sB, sB))
    a.e('s_lshl_b32 s%d, s%d, 15' % (sC, sWave))
    a.e('s_lshl_b32 s46, s23, 2')
    a.e('s_add_u32 s46, s46, s%d' % sWave)
    a.e('s_mul_i32 s%d, s46, %d' % (sW, NW * 1024))
    a.e('s_add_u32 s%d, s%d, %d' % (sW, sW, W1_OFF))
    a.e('s_lshl_b32 s86, s44, 7')
    a.e('s_add_u32 s86, s86, %d' % TC_OFF)
    a.e('s_waitcnt lgkmcnt(0)')
    make_srd(a, 8, 4, WS_BYTES)
    vq = VmQ()
    st = GStream(a, vq, cfg.get('IN_PACE', 64), 2)
    st.look = 100; st.pace2 = 56
    state = dict(cons=-1)
    for p in range(32):
        pre = ['s_add_u32 m0, s%d, %d' % (sC, IB + p * 1024), 's_add_u32 s57, s%d, %d' % (sB, p * 1024)] if p % 4 == 0 else []
        st.add(1, (p // 4) * 8 - 12, pre, 'buffer_load_dwordx4 v%d, %s, s57 offen offset:%d lds' % (vLane16, ws, (p % 4) * 1024), ('img', p))
    for n in range(NW):
        pre = ['s_add_u32 s%d, s%d, 0x1000' % (sW, sW)] if (n and n % 4 == 0) else []
        st.add(0, n, pre, 'buffer_load_dwordx4 %s, v%d, %s, s%d offen offset:%d' % (ar(4 * (n % RW), 4), vLane16, ws, sW, (n % 4) * 1024), ('w', n),
               (lambda nn=n: state['cons'] >= nn - RW))
    st.burst(cfg.get('IN_B0', 20))
    if cfg.get('CPF', 1):
        code_prefetch(a, name, 250, 251, 2, end='attn_kernel_end'); vq.issue(); vq.issue()
    def srd_b(d, off):
        a.e('s_lshl_b32 s57, s25, 15')
        a.e('s_add_u32 s57, s57, %d' % off)
        a.e('s_add_u32 s%d, s4, s57' % d)
        a.e('s_addc_u32 s%d, s5, 0' % (d + 1))
        a.e('s_and_b32 s%d, s%d, 0xffff' % (d + 1, d + 1))
        a.e('s_mov_b32 s%d, 4096000' % (d + 2))
        a.e('s_mov_b32 s%d, 0x00020000' % (d + 3))
    st.flush()
    a.e('s_mov_b32 s59, s57')
    srd_b(48, QF_OFF); srd_b(52, G_OFF); srd_b(60, U_OFF)
    a.e('s_mov_b32 s57, s59')
    a.e('s_mov_b32 s90, 0xffff0000')
    a.e('v_lshrrev_b32 v%d, 4, v%d' % (vQ4, vLane))
    a.e('v_and_b32 v%d, 15, v%d' % (vI, vLane))
    a.e('v_and_b32 v%d, 1, v%d' % (vK0, vQ4))
    a.e('v_lshlrev_b32 v%d, 14, v%d' % (vRow, vK0))
    a.e('v_mul_u32_u24 v%d, 12, v%d' % (vK0, vK0))
    a.e('v_xor_b32 v%d, v%d, v%d' % (vK0, vK0, vI))
    a.e('v_lshlrev_b32 v%d, 4, v%d' % (vK0, vK0))
    a.e('v_lshl_add_u32 v%d, v%d, 9, v%d' % (vK0, vQ4, vK0))
    a.e('v_add_u32 v%d, %d, v%d' % (vK0, IB, vK0))
    a.e('v_add_u32 v%d, 0x10000, v%d' % (vK1, vK0))
    a.e('v_lshl_add_u32 v%d, v%d, 5, v%d' % (vRow, vI, vRow))
    a.e('v_lshrrev_b32 v%d, 1, v%d' % (vPa, vQ4))
    a.e('v_lshl_add_u32 v%d, v%d, 4, v%d' % (vRow, vPa, vRow))
    a.e('v_cmp_ne_u32 vcc, 0, v%d' % vLane)
    a.e('v_mov_b32 v%d, 0x40000000' % vOne)
    a.e('v_cndmask_b32 v%d, 0, v%d, vcc' % (vOob, vOne))
    a.e('v_mov_b32 v%d, 1' % vOne)
    a.e('v_mov_b32 v%d, s86' % vPa)
    a.e('v_add_u32 v%d, s41, v%d' % (vD0, vLane16))
    a.e('v_add_u32 v%d, 0x1000, v%d' % (vD1, vD0))
    c1 = -2.0 * math.log2(math.e) * math.sqrt(2.0 / math.pi); c2 = c1 * 0.044715
    for r, v in ((C1, c1), (C2, c2), (ONE, 1.0)):
        a.e('v_mov_b32 v%d, %s' % (r, fhex(v))); a.e('v_mov_b32 v%d, %s' % (r + 1, fhex(v)))
    a.e('s_lshl_b32 s47, s45, 15')
    a.e('s_lshl_b32 s56, s46, 11')
    a.e('s_add_u32 s56, s56, s47')
    a.e('s_lshl_b32 s58, s46, 10')
    a.e('s_add_u32 s47, s47, s58')
    a.e('s_lshl_b32 s64, s44, 12')
    a.e('s_add_u32 s64, s64, %d' % SX_OFF)
    st.burst(cfg.get('IN_B1', 8))

    lq = LgQ(); sc = Sched(a, st)
    def treads(kk):
        ks = kk % 16
        return [FD('ds_read_b128 %s, v%d offset:%d' % (ar(TB + ((kk % NS) * 8 + ts) * 4, 4), vK1 if ts >= 4 else vK0, ((ts >> 1) & 1) * 32768 + ks * 2048 + (ts & 1) * 256), lq, (kk, ts)) for ts in range(8)]
    def chunk_regs(base, c): return base + 8 * c
    def poly(x0):
        g = [vr(G + 2 * j, 2) for j in range(4)]; x = [vr(x0 + 2 * j, 2) for j in range(4)]
        for j in range(4): a.e('v_pk_mul_f32 %s, %s, %s' % (g[j], x[j], x[j]))
        for j in range(4): a.e('v_pk_fma_f32 %s, %s, %s, %s' % (g[j], g[j], vr(C2, 2), vr(C1, 2)))
        for j in range(4): a.e('v_pk_mul_f32 %s, %s, %s' % (g[j], g[j], x[j]))
    def rest(x0):
        out = []
        for j in range(8): out.append(F('x', 'v_exp_f32 v%d, v%d' % (G + j, G + j)))
        for j in range(8): out.append(FV('v_add_f32 v%d, 1.0, v%d' % (G + j, G + j)))
        for j in range(8): out.append(F('x', 'v_rcp_f32 v%d, v%d' % (G + j, G + j)))
        for j in range(8): out.append(FV('v_mul_f32 v%d, v%d, v%d' % (x0 + j, x0 + j, G + j)))
        return out
    def pack_store(x0, c, srd):
        t, pr = c >> 2, c & 3
        for j in range(4): a.e('v_cvt_pk_bf16_f32 v%d, v%d, v%d' % (x0 + j, x0 + 2 * j, x0 + 2 * j + 1))
        a.e('s_add_u32 s58, s47, %d' % (pr * 32768))
        a.e('v_permlane16_swap_b32 v%d, v%d' % (x0, x0 + 2))
        a.e('v_permlane16_swap_b32 v%d, v%d' % (x0 + 1, x0 + 3))
        return 'buffer_store_dwordx4 %s, v%d, %s, s58 offen offset:%d' % (vr(x0, 4), vRow, srd, t * 512)
    qf = []
    for ts in range(8):
        o = qa(0, ts)
        for j in range(4): qf.append(FV('v_cvt_pk_bf16_f32 v%d, v%d, v%d' % (o + j, o + 2 * j, o + 2 * j + 1)))
        if ts % 2 == 0: qf.append(FS('s_add_u32 s59, s56, %d' % ((ts >> 1) * 32768)))
        qf.append(FM('buffer_store_dwordx4 %s, v%d, s[48:51], s59 offen offset:%d' % (vr(o, 4), vLane16, (ts & 1) * 1024), vq, 'q'))

    def imgbar(p):
        st.wait(('img', p)); a.e('s_barrier')
    imgbar(7)
    if ST2: stamp_mid(a, 0)
    for f in treads(0): f.emit(a)
    early = attn_early_loads(vLane16, vD0 - 2)
    n = 0
    for kk in range(32):
        part, ks = kk // 16, kk % 16
        if ST2 and kk == 16: stamp_mid(a, 1); lq.done = lq.n
        if kk in (3, 7, 11): sc.flush(); st.flush(); imgbar(2 * kk + 9)
        if kk >= 16 and kk % 2 == 0:
            c = (kk - 16) // 2
            if kk > 16: sc.flush()
            st.flush()
            a.dense = True; poly(chunk_regs(GA, c)); a.dense = False
            sc.add(rest(chunk_regs(GA, c)))
            if kk <= 18: sc.add(qf[:22]); qf = qf[22:]
        lq.wait(a, (kk, 7))
        nt = 4 if part == 0 else 2
        st.wait(('w', n + nt - 1))
        if kk < 31:
            ds = treads(kk + 1); out = []
            while ds:
                out.append(ds.pop(0))
                if sc.q and sc.q[0].kind == 'v': out.append(sc.q.pop(0))
            sc.q[0:0] = out
        if kk == 13:
            carry = []
            for x_, g_ in enumerate(early[:40]):
                vm = [t_ for t_ in g_ if t_.startswith('buffer')][0]
                pre_ = carry + [t_ for t_ in g_[:g_.index(vm)] if not t_.startswith('s_nop')]; carry = g_[g_.index(vm) + 1:]
                st.add(1, 1000, pre_, vm, ('e', x_), None if x_ < 8 else (lambda sl=x_ - 8: state.get('qok') and state['cons'] >= sl + RW))
            early = early[40:]
        if kk == cfg.get('IN_KSIG', 24):
            vq.wait(a, 'q')
            sc.add([FM('buffer_atomic_add v%d, v%d, %s, s86 offen sc1' % (vOne, vOob, ws), vq)], front=True)
        if kk == cfg.get('IN_KPOLL', 27):
            sc.add([FM('global_load_dword v%d, v%d, s[4:5] sc1' % (vPv, vPa), vq, 'poll')], front=True)
        if kk == cfg.get('IN_KPOLL', 27) + 2:
            st.flush()
            lb = '%s_pe' % name
            vq.wait(a, 'poll')
            a.e('v_cmp_gt_u32 vcc, 16, v%d' % vPv)
            a.e('s_cbranch_vccz %s_ok' % lb)
            poll(a, lb, vPa, vPv, 16, 34)
            a.e('s_barrier')
            state['qok'] = True
        for t in range(nt):
            for x, ts in enumerate(range(8) if t % 2 == 0 else range(7, -1, -1)):
                wv, tv = ar(4 * (n % RW), 4), ar(TB + ((kk % NS) * 8 + ts) * 4, 4)
                if part == 0 and t < 2: ac, ops = qa(t, ts), (wv, tv)
                else: ac, ops = ha(GA if part == 0 else UA, t % 2, ts), (tv, wv)
                a.e('%s %s, %s, %s, %s' % (MF, vr(ac, 4), ops[0], ops[1], '0' if ks == 0 else vr(ac, 4)))
                if x == 7: state['cons'] = n
                cap = 0 if (x == 7 and t == nt - 1) else 2
                left = (1 - kk % 2) * 16 + (nt - 1 - t) * 8 + 7 - x
                units = sum(2 if f.kind in 'xm' else 1 for f in sc.q) + (1 - kk % 2) * 8
                if part == 1 and cap and units > cfg.get('IN_PRESS', 1.7) * left: cap += 1
                sc.gap(cap)
            n += 1
    sc.flush(); st.flush()
    assert not qf
    if cfg.get('V'): print('in3', [x[1] for x in st.slack], a.clock, 'left', len(st.qs[1]))
    if ST2: stamp_mid(a, 2)
    st.burst(cfg.get('IN_E2', 6))
    a.dense = True
    for p in range(16):
        x0, x1 = vr(GA + 2 * p, 2), vr(GA + 32 + 2 * p, 2)
        a.e('v_pk_add_f32 %s, %s, %s' % (vr(2 * p, 2), x0, x1))
        a.e('v_pk_mul_f32 %s, %s, %s' % (vr(32 + 2 * p, 2), x0, x0))
        a.e('v_pk_fma_f32 %s, %s, %s, %s' % (vr(32 + 2 * p, 2), x1, x1, vr(32 + 2 * p, 2)))
    st.burst(4)
    for p in range(32): a.e('v_add_f32_dpp v%d, v%d, v%d row_ror:8 row_mask:0xf bank_mask:0x3' % (SS + p, p, p))
    for p in range(32): a.e('v_add_f32_dpp v%d, v%d, v%d row_ror:8 row_mask:0xf bank_mask:0xc' % (SS + p, 32 + p, 32 + p))
    st.burst(4)
    for p in range(16): a.e('v_add_f32_dpp v%d, v%d, v%d row_half_mirror row_mask:0xf bank_mask:0x5' % (p, SS + p, SS + p))
    for p in range(16): a.e('v_add_f32_dpp v%d, v%d, v%d row_half_mirror row_mask:0xf bank_mask:0xa' % (p, SS + 16 + p, SS + 16 + p))
    for qp in ('[1,0,3,2]', '[2,3,0,1]'):
        for p in range(16):
            a.e('v_add_f32_dpp v%d, v%d, v%d quad_perm:%s row_mask:0xf bank_mask:0xf' % (p, p, p, qp))
    a.e('v_lshrrev_b32 v%d, 2, v%d' % (vSx, vI))
    a.e('v_lshlrev_b32 v%d, 8, v%d' % (vSx, vSx))
    a.e('v_lshl_add_u32 v%d, v%d, 4, v%d' % (vSx, vQ4, vSx))
    a.e('s_lshl_b32 s58, s%d, 10' % sWave)
    a.e('s_add_u32 s58, s58, 131072')
    a.e('v_add_u32 v%d, s58, v%d' % (vSx, vSx))
    for j in range(4): a.e('ds_write_b128 v%d, %s offset:%d' % (vSx, vr(4 * j, 4), 64 * j))
    a.e('v_lshlrev_b32 v%d, 2, v%d' % (vSy, vLane))
    a.e('s_lshl_b32 s58, s%d, 8' % sWave)
    a.e('v_add_u32 v%d, s58, v%d' % (vSy, vSy))
    a.e('s_waitcnt lgkmcnt(0)')
    a.e('s_barrier')
    a.e('v_add_u32 v%d, 131072, v%d' % (vSx, vSy))
    for w in range(4): a.e('ds_read_b32 v%d, v%d offset:%d' % (16 + w, vSx, 1024 * w))
    a.e('s_lshl_b32 s58, s23, 10')
    a.e('s_add_u32 s58, s58, s64')
    a.e('s_waitcnt lgkmcnt(0)')
    a.e('v_add_f32 v16, v16, v17'); a.e('v_add_f32 v18, v18, v19'); a.e('v_add_f32 v16, v16, v18')
    a.e('v_min_u32 v16, -2, v16')
    a.e('buffer_store_dword v16, v%d, %s, s58 offen' % (vSy, ws)); vq.issue()
    def eload(n_):
        for _ in range(n_):
            if not st.empty(): st.burst(1)
            elif early:
                for t_ in early.pop(0): a.e(t_)
    eload(cfg.get('IN_E0', 6))
    ust = []
    a.e('v_lshlrev_b32 v%d, 3, v%d' % (vSz, vLane))
    def sx_loads():
        for c4 in range(4):
            for s_ in range(2):
                a.e('buffer_load_dwordx2 %s, v%d, %s, s64 offen offset:%d sc1' % (vr(16 + 4 * c4 + 2 * s_, 2), vSz, ws, c4 * 1024 + s_ * 512))
    for c in range(8):
        x0 = chunk_regs(UA, c)
        poly(x0)
        g = [vr(G + 2 * j, 2) for j in range(4)]
        for j in range(8): a.e('v_exp_f32 v%d, v%d' % (G + j, G + j))
        for j in range(4): a.e('v_pk_add_f32 %s, %s, %s' % (g[j], g[j], vr(ONE, 2)))
        for j in range(8): a.e('v_rcp_f32 v%d, v%d' % (G + j, G + j))
        for j in range(4): a.e('v_pk_mul_f32 %s, %s, %s' % (vr(x0 + 2 * j, 2), vr(x0 + 2 * j, 2), g[j]))
        eload(cfg.get('IN_E1', 4))
    eload(100)
    sx_loads()
    for c in range(8): a.e(pack_store(chunk_regs(UA, c), c, 's[60:63]'))
    a.e('s_waitcnt vmcnt(8)')
    a.e('s_mov_b32 s34, 0')
    a.label('%s_sx' % name)
    a.e('v_max3_u32 v32, v16, v17, v18')
    for j in range(19, 31, 2): a.e('v_max3_u32 v32, v32, v%d, v%d' % (j, j + 1))
    a.e('v_max_u32 v32, v32, v31')
    a.e('v_cmp_eq_u32 vcc, -1, v32')
    a.e('s_cbranch_vccz %s_sxok' % name)
    sx_loads()
    a.e('s_waitcnt vmcnt(0)')
    a.e('s_add_u32 s34, s34, 1')
    a.e('s_cmp_lt_u32 s34, 0x40000')
    a.e('s_cbranch_scc1 %s_sx' % name)
    a.label('%s_sxok' % name, reset=True)
    if ST2: stamp_mid(a, 3)
    for s_ in range(2):
        r = [vr(16 + 4 * c4 + 2 * s_, 2) for c4 in range(4)]
        a.e('v_pk_add_f32 %s, %s, %s' % (r[0], r[0], r[1])); a.e('v_pk_add_f32 %s, %s, %s' % (r[2], r[2], r[3])); a.e('v_pk_add_f32 %s, %s, %s' % (r[0], r[0], r[2]))
    for j in range(2):
        m, v = 16 + j, 18 + j
        a.e('v_mul_f32 v%d, %s, v%d' % (m, fhex(1.0 / 512), m))
        a.e('v_mul_f32 v%d, %s, v%d' % (v, fhex(1.0 / 512), v))
        a.e('v_fma_f32 v%d, -v%d, v%d, v%d' % (v, m, m, v))
        a.e('v_max_f32 v%d, 0, v%d' % (v, v))
        a.e('v_add_f32 v%d, %s, v%d' % (v, fhex(1e-5), v))
        a.e('v_rsq_f32 v%d, v%d' % (v, v))
        a.e('v_mul_f32 v%d, -v%d, v%d' % (m, m, v))
    a.e('s_lshl_b32 s58, s%d, 10' % sWave)
    a.e('s_add_u32 s58, s58, %d' % (131072 + 4096))
    a.e('v_add_u32 v%d, s58, v%d' % (vSz, vSz))
    a.e('v_lshlrev_b32 v%d, 4, v%d' % (vSx, vQ4))
    a.e('v_add_u32 v%d, s58, v%d' % (vSx, vSx))
    a.e('ds_write_b64 v%d, v[18:19]' % vSz)
    a.e('ds_write_b64 v%d, v[16:17] offset:512' % vSz)
    a.e('s_waitcnt lgkmcnt(0)')
    for j in range(16): a.e('ds_read_b128 %s, v%d offset:%d' % (vr(4 * j, 4), vSx, 64 * j))
    a.e('s_waitcnt lgkmcnt(0)')
    for c in range(8):
        x0 = chunk_regs(GA, c); p0 = 8 * (c & 3)
        for j in range(4):
            a.e('v_pk_fma_f32 %s, %s, %s, %s' % (vr(x0 + 2 * j, 2), vr(x0 + 2 * j, 2), vr(p0 + 2 * j, 2), vr(32 + p0 + 2 * j, 2)))
        a.e(pack_store(x0, c, 's[52:55]'))
    a.dense = False
    a.e('s_lshl_b32 s50, s%d, 6' % sWave)
    a.e('v_add_u32 v0, s50, v%d' % vLane)
    a.e('s_branch attn_body')
    a.label('%s_end' % name)
    a.e('s_endpgm')
    return dict(name=name, vgpr=512, sgpr=96, accum=256, grid=256, block=256, lds=163840)
```

```python
import math
from common import *
from attn16 import stamp_begin, stamp_mid, stamp_end

N_M, N_VO, N_RL, N_DW, N_TP = 128, 64, 40, 0, 12
P = 1040

def gen_prep(a, name='prep_kernel', cfg=None):
    cfg = cfg or {}
    STAMP = cfg.get('STAMP', False)
    total = N_M + N_VO + N_RL + N_DW + N_TP
    F3 = cfg.get('FUSE3', 0)
    LNP = cfg.get('LNP', 1) and not F3
    NX = 16 if (F3 or LNP) else 0
    def fin():
        if F3: a.e('s_branch in_body')
        else:
            if STAMP: stamp_end(a, 3, nw=8 if LNP else 4)
            a.e('s_endpgm')
    kernel_begin(a, name)
    a.e('s_cmp_ge_u32 s2, 256')
    a.e('s_cbranch_scc1 %s_end' % name)
    a.e('s_load_dwordx16 s[16:31], s[0:1], 0')
    a.e('s_load_dwordx2 s[4:5], s[0:1], 80')
    if F3: a.e('s_load_dwordx2 s[88:89], s[0:1], 72')
    if STAMP: stamp_begin(a)
    if cfg.get('CPF', 1):
        a.e('s_lshr_b32 s62, s2, 3')
        a.e('s_min_u32 s62, s62, 5')
        a.e('s_lshl_b32 s62, s62, 15')
        code_prefetch(a, name, 120, 121, 1, end=cfg.get('LAST_END', 'tail_kernel_end'), part_sgpr=62)
    a.e('v_lshrrev_b32 v1, 6, v0')
    a.e('v_and_b32 v2, 63, v0')
    a.e('v_readfirstlane_b32 s3, v1')
    a.e('v_lshlrev_b32 v3, 4, v2')
    a.e('v_lshrrev_b32 v4, 4, v2')
    a.e('v_and_b32 v5, 15, v2')
    a.e('s_waitcnt lgkmcnt(0)')
    make_srd(a, 8, 4, WS_BYTES)
    ws = 's[8:11]'
    if F3:
        a.e('s_lshr_b32 s85, s2, 4')
        a.e('s_lshl_b32 s85, s85, 3')
        a.e('s_and_b32 s56, s2, 7')
        a.e('s_or_b32 s85, s85, s56')
        a.e('s_bfe_u32 s57, s2, 0x10003')
        a.e('s_lshl_b32 s57, s57, 7')
        a.e('s_or_b32 s85, s85, s57')
        make_srd(a, 52, 16, 8192000)
        make_srd(a, 92, 88, 256)
        a.e('s_lshl_b32 s56, s56, 4')
        a.e('s_lshr_b32 s57, s2, 4')
        a.e('s_add_u32 s56, s56, s57')
        a.e('s_lshl_b32 s56, s56, 16')
        a.e('s_lshl_b32 s57, s3, 14')
        a.e('s_add_u32 s56, s56, s57')
        a.e('v_lshlrev_b32 v122, 10, v5')
        a.e('v_lshl_add_u32 v122, v4, 4, v122')
        a.e('v_cmp_ne_u32 vcc, 0, v2')
        a.e('v_mov_b32 v124, 0x40000000')
        a.e('v_cndmask_b32 v123, 0, v124, vcc')
        a.e('v_mov_b32 v124, 1')
        a.e('s_mov_b32 s87, %d' % (RC_OFF + 8 * 128))
        a.e('s_mov_b32 s91, 0x40000000')
    else:
        a.e('s_mov_b32 s85, s2')
    if LNP:
        a.e('s_cmp_lt_u32 s3, 4')
        a.e('s_cbranch_scc1 %s_role' % name)
        make_srd(a, 52, 16, 8192000)
        a.e('s_lshl_b32 s58, s2, 16')
        a.e('s_and_b32 s59, s3, 3')
        a.e('s_lshl_b32 s57, s59, 13')
        a.e('s_add_u32 s56, s58, s57')
        a.e('s_add_u32 s65, s56, 0x8000')
        assert XF_OFF == 0
        a.e('v_and_b32 v193, 7, v2')
        a.e('v_lshrrev_b32 v194, 3, v2')
        a.e('v_lshlrev_b32 v122, 10, v193')
        a.e('v_lshl_add_u32 v122, v194, 4, v122')
        a.e('s_lshl_b32 s57, s59, 3')
        a.e('v_add_u32 v193, s57, v193')
        a.e('v_and_b32 v192, 1, v194')
        a.e('v_mul_u32_u24 v192, 12, v192')
        a.e('v_xor_b32 v192, v192, v193')
        a.e('v_lshlrev_b32 v192, 4, v192')
        a.e('v_lshl_add_u32 v192, v194, 9, v192')
    def xload(m=False):
        if LNP: return 0
        for j in range(NX):
            a.e('buffer_load_dwordx4 %s, v122, s[52:55], s56 offen offset:%d' % (vr(128 + 4 * j, 4), 64 * j))
        return NX
    def ln_code(extra, tag):
        lx = '%s_lnx%s' % (name, tag)
        a.e('s_mov_b32 s90, 0xffff0000')
        T = 196
        p0, p1, nm = vr(T, 2), vr(T + 2, 2), vr(T + 4, 2)
        for XB in (128, 160):
            a.dense = True
            for j in range(8):
                a.e('s_waitcnt vmcnt(%d)' % (15 - j))
                for d in range(4):
                    a.e('v_lshlrev_b32 v%d, 16, v%d' % (8 * j + 2 * d, XB + 4 * j + d))
                    a.e('v_and_b32 v%d, s90, v%d' % (8 * j + 2 * d + 1, XB + 4 * j + d))
                if j == 0:
                    a.e('v_pk_add_f32 %s, %s, %s' % (p0, vr(0, 2), vr(2, 2))); a.e('v_pk_add_f32 %s, %s, %s' % (p1, vr(4, 2), vr(6, 2)))
                else:
                    for d in range(4): a.e('v_pk_add_f32 %s, %s, %s' % ((p0, p1)[d % 2], (p0, p1)[d % 2], vr(8 * j + 2 * d, 2)))
            a.e('v_pk_add_f32 %s, %s, %s' % (p0, p0, p1))
            a.e('v_add_f32 v%d, v%d, v%d' % (T, T, T + 1))
            a.e('v_add_f32_dpp v%d, v%d, v%d row_ror:8 row_mask:0xf bank_mask:0xf' % (T, T, T))
            quad_reduce(a, 'v_add_f32', T, T + 1)
            a.e('v_mul_f32 v%d, %s, v%d' % (T + 4, fhex(-1.0 / 512), T))
            for p in range(32):
                r = vr(2 * p, 2)
                a.e('v_pk_add_f32 %s, %s, %s op_sel_hi:[1,0]' % (r, r, nm))
                q = (p0, p1)[p % 2]
                if p < 2: a.e('v_pk_mul_f32 %s, %s, %s' % (q, r, r))
                else: a.e('v_pk_fma_f32 %s, %s, %s, %s' % (q, r, r, q))
            a.e('v_pk_add_f32 %s, %s, %s' % (p0, p0, p1))
            a.e('v_add_f32 v%d, v%d, v%d' % (T, T, T + 1))
            a.e('v_add_f32_dpp v%d, v%d, v%d row_ror:8 row_mask:0xf bank_mask:0xf' % (T, T, T))
            quad_reduce(a, 'v_add_f32', T, T + 1)
            a.e('v_mul_f32 v%d, %s, v%d' % (T, fhex(1.0 / 512), T))
            a.e('v_add_f32 v%d, %s, v%d' % (T, fhex(1e-5), T))
            a.e('v_rsq_f32 v%d, v%d' % (T + 4, T))
            for j in range(8):
                for d in range(4):
                    r = vr(8 * j + 2 * d, 2)
                    a.e('v_pk_mul_f32 %s, %s, %s op_sel_hi:[1,0]' % (r, r, nm))
                for d in range(4):
                    r = 8 * j + 2 * d
                    a.e('v_cvt_pk_bf16_f32 v%d, v%d, v%d' % (XB + 4 * j + d, r, r + 1))
                a.e('buffer_store_dwordx4 %s, v192, %s, s58 offen' % (vr(XB + 4 * j, 4), ws))
                a.e('s_add_u32 s58, s58, 0x1000')
            a.dense = False
        a.label(lx)
    if LNP:
        a.e('s_cmp_ge_u32 s2, 125')
        a.e('s_cbranch_scc1 %s_end' % name)
        for j in range(16):
            a.e('buffer_load_dwordx4 %s, v122, s[52:55], s%d offen offset:%d' % (vr(128 + 4 * j, 4), 56 if j < 8 else 65, 128 * (j % 8)))
        if cfg.get('LN_BAR', 1):
            a.e('s_cmp_ge_u32 s2, %d' % (N_M + N_VO))
            a.e('s_cbranch_scc1 %s_nb' % name)
            a.e('s_barrier')
            a.label('%s_nb' % name)
        ln_code(0, 'w')
        fin()
        a.label('%s_role' % name, reset=True)
    a.e('s_cmp_lt_u32 s85, %d' % N_M)
    a.e('s_cbranch_scc1 %s_m' % name)
    a.e('s_cmp_lt_u32 s85, %d' % (N_M + N_VO))
    a.e('s_cbranch_scc1 %s_vo' % name)
    a.e('s_cmp_lt_u32 s85, %d' % (N_M + N_VO + N_RL))
    a.e('s_cbranch_scc1 %s_rl' % name)
    a.e('s_cmp_lt_u32 s85, %d' % total)
    a.e('s_cbranch_scc1 %s_tp' % name)
    a.e('s_mov_b32 s87, 0x40000000')
    a.e('s_sub_u32 s6, s85, %d' % total)
    a.e('s_cmp_gt_u32 s6, 8')
    a.e('s_cbranch_scc1 %s_xt' % name)
    a.e('s_cmp_eq_u32 s6, 0')
    a.e('s_cselect_b32 s7, 0, -1')
    a.e('s_cselect_b32 s32, 0, 1')
    a.e('s_add_u32 s6, s6, s32')
    a.e('s_lshl_b32 s6, s6, 15')
    a.e('s_add_u32 s6, s6, %d' % CNT_OFF)
    for r_ in range(8, 12): a.e('v_mov_b32 v%d, s7' % r_)
    a.e('v_lshlrev_b32 v6, 4, v0')
    for j in range(8):
        a.e('buffer_store_dwordx4 v[8:11], v6, %s, s6 offen' % ws)
        a.e('s_add_u32 s6, s6, 0x1000')
    a.e('s_branch %s_xt' % name)
    a.label('%s_tp' % name, reset=True)

    a.e('s_sub_u32 s6, s85, %d' % (N_M + N_VO + N_RL + N_DW))
    a.e('s_cmp_lt_u32 s6, 4')
    a.e('s_cselect_b32 s32, s24, s28')
    a.e('s_cselect_b32 s33, s25, s29')
    a.e('s_cselect_b32 s34, 1, 2')
    a.e('s_cselect_b32 s39, 0, 16')
    a.e('s_lshl_b32 s34, s34, 10')
    a.e('s_mul_i32 s35, s34, 31')
    make_srd(a, 12, 32, 0)
    a.e('s_mov_b32 s14, s35')
    a.e('s_lshl_b32 s36, s6, 2')
    a.e('s_add_u32 s36, s36, s3')
    a.e('s_mul_i32 s37, s36, 9216')
    a.e('s_add_u32 s37, s37, %d' % TPC_OFF)
    a.e('s_sub_u32 s36, s36, s39')
    a.e('s_lshl_b32 s36, s36, 6')
    a.e('v_and_b32 v6, 3, v2')
    a.e('v_add_u32 v6, 1, v6')
    a.e('v_mul_lo_u32 v6, v6, s34')
    a.e('v_lshrrev_b32 v7, 2, v2')
    a.e('v_lshlrev_b32 v7, 1, v7')
    a.e('v_add_u32 v7, s36, v7')
    a.e('v_sub_u32 v6, v7, v6')
    for h in range(36):
        m, hi = h // 2, h % 2
        for g2 in range(2):
            a.e('buffer_load_ushort v%d, v6, s[12:15], 0 offen offset:%d' % (16 + 36 * hi + 18 * g2 + m, 32 * g2))
        if h < 35: a.e('v_add_u32 v6, s34, v6')
    a.e('s_waitcnt vmcnt(%d)' % xload())
    for d in range(36):
        a.e('v_lshl_or_b32 v%d, v%d, 16, v%d' % (16 + d, 52 + d, 16 + d))
    for q in range(9):
        if q and q % 4 == 0: a.e('s_add_u32 s37, s37, 0x1000')
        a.e('buffer_store_dwordx4 %s, v3, %s, s37 offen offset:%d' % (vr(16 + 4 * q, 4), ws, (q % 4) * 1024))
    fin()
    def rows_dma(srd, nrows, s_src, s_lds):
        for r in range(nrows):
            a.e('s_add_u32 m0, s%d, %d' % (s_lds, r * P))
            a.e('s_add_u32 s45, s%d, %d' % (s_src, r * 3072))
            a.e('buffer_load_dwordx4 v3, %s, s45 offen lds' % srd)

    a.label('%s_m' % name, reset=True)
    make_srd(a, 12, 18, 512 * 1536 * 2)
    a.e('s_lshr_b32 s32, s85, 3')
    a.e('s_and_b32 s33, s85, 7')
    a.e('s_lshl_b32 s87, s33, 7')
    a.e('s_add_u32 s87, s87, %d' % RC_OFF)
    a.e('s_lshl_b32 s34, s32, 5'); a.e('s_lshl_b32 s35, s3, 3'); a.e('s_add_u32 s34, s34, s35'); a.e('s_mul_i32 s34, s34, 3072')
    a.e('s_mul_i32 s36, s3, %d' % (8 * P))
    rows_dma('s[12:15]', 8, 34, 36)
    a.e('s_lshl_b32 s34, s33, 6'); a.e('s_lshl_b32 s35, s3, 4'); a.e('s_add_u32 s34, s34, s35'); a.e('s_mul_i32 s34, s34, 3072')
    a.e('s_add_u32 s34, s34, 1024')
    a.e('s_mul_i32 s36, s3, %d' % (16 * P)); a.e('s_add_u32 s36, s36, %d' % (32 * P))
    rows_dma('s[12:15]', 16, 34, 36)
    a.e('v_lshrrev_b32 v6, 2, v5'); a.e('v_lshlrev_b32 v6, 3, v6'); a.e('v_and_b32 v7, 3, v5'); a.e('v_add_u32 v6, v6, v7')
    a.e('v_mul_u32_u24 v6, %d, v6' % P)
    a.e('v_lshl_add_u32 v6, v4, 4, v6')
    a.e('s_lshr_b32 s36, s3, 1'); a.e('s_lshl_b32 s36, s36, 3'); a.e('s_and_b32 s37, s3, 1'); a.e('s_add_u32 s36, s36, s37')
    a.e('s_mul_i32 s36, s36, %d' % (4 * P)); a.e('s_add_u32 s36, s36, %d' % (32 * P))
    a.e('v_add_u32 v7, s36, v6')
    a.e('s_lshl_b32 s34, s33, 1')
    a.e('s_lshr_b32 s35, s3, 1')
    a.e('s_add_u32 s34, s34, s35')
    a.e('s_mul_i32 s34, s34, 96')
    a.e('s_lshl_b32 s35, s32, 2')
    a.e('s_add_u32 s34, s34, s35')
    a.e('s_and_b32 s35, s3, 1')
    a.e('s_add_u32 s34, s34, s35')
    a.e('s_lshl_b32 s34, s34, 10')
    a.e('s_add_u32 s34, s34, %d' % W1_OFF)
    a.e('s_mov_b32 s38, %s' % fhex(512 ** -0.5 * math.log2(math.e)))
    a.e('s_waitcnt vmcnt(%d)' % xload(True))
    a.e('s_barrier')
    if STAMP and not F3: stamp_mid(a, 0)
    lq = LgQ()
    def rd(kk):
        b = 32 + 12 * (kk % 5)
        a.e('ds_read_b128 %s, v6 offset:%d' % (vr(b, 4), kk * 64)); lq.issue()
        a.e('ds_read_b128 %s, v6 offset:%d' % (vr(b + 4, 4), kk * 64 + 4 * P)); lq.issue()
        a.e('ds_read_b128 %s, v7 offset:%d' % (vr(b + 8, 4), kk * 64)); lq.issue(kk)
    for kk in range(4): rd(kk)
    for kk in range(16):
        if kk + 4 < 16: rd(kk + 4)
        lq.wait(a, kk)
        b = 32 + 12 * (kk % 5)
        for e in range(2):
            a.e('%s %s, %s, %s, %s' % (MF, vr(16 + 4 * e, 4), vr(b + 4 * e, 4), vr(b + 8, 4), '0' if kk == 0 else vr(16 + 4 * e, 4)))
    for r in range(8):
        a.e('v_mul_f32 v%d, s38, v%d' % (16 + r, 16 + r))
    for d in range(4):
        a.e('v_cvt_pk_bf16_f32 v%d, v%d, v%d' % (24 + d, 16 + 2 * d, 17 + 2 * d))
    a.e('buffer_store_dwordx4 v[24:27], v3, %s, s34 offen' % ws)
    fin()

    def load_strip():
        a.e('v_lshrrev_b32 v7, 3, v2')
        a.e('v_bfe_u32 v8, v2, 4, 1')
        a.e('v_lshlrev_b32 v8, 2, v8')
        a.e('v_and_b32 v9, 7, v2')
        a.e('v_xor_b32 v8, v8, v9')
        a.e('v_mul_lo_u32 v7, v7, s42')
        a.e('v_lshl_add_u32 v7, v8, 4, v7')
        a.e('s_lshl_b32 s41, s42, 3')
        a.e('s_lshl_b32 s43, s3, 4')
        a.e('s_mul_i32 s43, s43, s41')
        a.e('s_add_u32 s40, s40, s43')
        a.e('s_lshl_b32 s44, s3, 14')
        for j in range(16):
            a.e('s_add_u32 m0, s44, %d' % (1024 * j))
            if j: a.e('s_add_u32 s40, s40, s41')
            a.e('buffer_load_dwordx4 v7, s[12:15], s40 offen lds')
        a.e('v_bfe_u32 v8, v2, 2, 2')
        a.e('v_lshl_add_u32 v9, v4, 3, v8')
        a.e('v_lshlrev_b32 v9, 7, v9')
        a.e('v_lshrrev_b32 v8, 1, v8')
        a.e('v_lshl_add_u32 v9, v8, 6, v9')
        a.e('v_and_b32 v8, 3, v2')
        a.e('v_lshlrev_b32 v8, s63, v8')
        a.e('v_add_u32 v8, v8, v9')
        a.e('v_xor_b32 v9, 64, v8')
        a.e('v_add_u32 v10, s59, v8')
        a.e('v_xor_b32 v11, 64, v10')

    a.label('%s_vo' % name, reset=True)
    a.e('s_sub_u32 s6, s85, %d' % N_M)
    a.e('s_lshr_b32 s33, s6, 3')
    a.e('s_and_b32 s32, s6, 7')
    make_srd(a, 12, 20, 512 * 512 * 2)
    make_srd(a, 48, 18, 512 * 1536 * 2)
    a.e('s_lshl_b32 s40, s33, 7')
    a.e('s_mov_b32 s42, 1024')
    a.e('s_mov_b32 s63, 3'); a.e('s_mov_b32 s59, 32')
    load_strip()
    a.e('s_lshl_b32 s34, s32, 6'); a.e('s_lshl_b32 s35, s3, 4'); a.e('s_add_u32 s34, s34, s35'); a.e('s_mul_i32 s34, s34, 3072')
    a.e('s_add_u32 s34, s34, 2048')
    a.e('s_mul_i32 s36, s3, %d' % (16 * P)); a.e('s_add_u32 s36, s36, 65536')
    rows_dma('s[48:51]', 16, 34, 36)
    a.e('s_bitcmp1_b32 s3, 0')
    a.e('s_cselect_b64 vcc, -1, 0')
    a.e('v_cndmask_b32 v8, v8, v9, vcc')
    a.e('v_cndmask_b32 v9, v10, v11, vcc')
    a.e('v_mul_u32_u24 v6, %d, v5' % P)
    a.e('v_lshl_add_u32 v6, v4, 4, v6')
    a.e('s_lshr_b32 s36, s3, 1')
    a.e('s_mul_i32 s37, s36, %d' % (32 * P)); a.e('s_add_u32 s37, s37, 65536')
    a.e('v_add_u32 v6, s37, v6')
    a.e('s_lshr_b32 s34, s33, 1')
    a.e('s_lshl_b32 s34, s34, 4')
    a.e('s_lshl_b32 s35, s32, 1'); a.e('s_add_u32 s35, s35, s36')
    a.e('s_add_u32 s34, s34, s35')
    a.e('s_lshl_b32 s34, s34, 3')
    a.e('s_and_b32 s35, s3, 1'); a.e('s_lshl_b32 s35, s35, 1')
    a.e('s_add_u32 s34, s34, s35')
    a.e('s_and_b32 s35, s33, 1'); a.e('s_lshl_b32 s35, s35, 2')
    a.e('s_add_u32 s34, s34, s35')
    a.e('s_lshl_b32 s34, s34, 10')
    a.e('s_add_u32 s34, s34, %d' % W2_OFF)
    a.e('s_waitcnt vmcnt(%d)' % xload())
    a.e('s_barrier')
    if STAMP and not F3: stamp_mid(a, 0)
    lq = LgQ()
    def rd2(kk):
        b = 32 + 16 * (kk % 3)
        for e in range(2):
            a.e('ds_read_b128 %s, v6 offset:%d' % (vr(b + 4 * e, 4), kk * 64 + 16 * P * e)); lq.issue()
        for o in range(2):
            a.e('ds_read_b64_tr_b16 %s, v%d offset:%d' % (vr(b + 8 + 4 * o, 2), 8 + o, kk * 4096)); lq.issue()
            a.e('ds_read_b64_tr_b16 %s, v%d offset:%d' % (vr(b + 8 + 4 * o + 2, 2), 8 + o, kk * 4096 + 512)); lq.issue(kk)
    rd2(0); rd2(1)
    for kk in range(16):
        if kk + 2 < 16: rd2(kk + 2)
        lq.wait(a, kk)
        b = 32 + 16 * (kk % 3)
        for o in range(2):
            for e in range(2):
                acc = vr(16 + 8 * o + 4 * e, 4)
                a.e('%s %s, %s, %s, %s' % (MF, acc, vr(b + 4 * e, 4), vr(b + 8 + 4 * o, 4), '0' if kk == 0 else acc))
    for o in range(2):
        for d in range(4):
            a.e('v_cvt_pk_bf16_f32 v%d, v%d, v%d' % (80 + 4 * o + d, 16 + 8 * o + 2 * d, 17 + 8 * o + 2 * d))
        a.e('buffer_store_dwordx4 %s, v3, %s, s34 offen offset:%d' % (vr(80 + 4 * o, 4), ws, 1024 * o))
    fin()

    a.label('%s_rl' % name, reset=True)
    a.e('s_sub_u32 s6, s85, %d' % (N_M + N_VO))
    a.e('s_mov_b32 s63, 4'); a.e('s_mov_b32 s59, 8'); a.e('s_mov_b32 s38, 2048')
    a.e('s_cmp_lt_u32 s6, 16')
    a.e('s_cbranch_scc1 %s_rl_mi' % name)
    a.e('s_cmp_lt_u32 s6, 24')
    a.e('s_cbranch_scc1 %s_rl_mo' % name)
    a.e('s_sub_u32 s6, s6, 24')
    a.e('s_lshr_b32 s36, s6, 3')
    a.e('s_and_b32 s33, s6, 7')
    make_srd(a, 12, 30, 1024 * 512 * 2)
    a.e('s_lshl_b32 s40, s33, 7')
    a.e('s_lshl_b32 s37, s36, 19')
    a.e('s_add_u32 s40, s40, s37')
    a.e('s_mov_b32 s42, 1024')
    a.e('s_lshr_b32 s34, s6, 1')
    a.e('s_lshl_b32 s34, s34, 17')
    a.e('s_xor_b32 s37, s6, s36')
    a.e('s_xor_b32 s37, s37, 1')
    a.e('s_and_b32 s37, s37, 1')
    a.e('s_lshl_b32 s37, s37, 16')
    a.e('s_add_u32 s34, s34, s37')
    a.e('s_add_u32 s34, s34, %d' % W3_OFF)
    a.e('s_mov_b32 s35, 4096')
    a.e('s_branch %s_rl_go' % name)
    a.label('%s_rl_mo' % name, reset=True)
    a.e('s_sub_u32 s33, s6, 16')
    a.e('s_mov_b32 s63, 3'); a.e('s_mov_b32 s59, 32')
    make_srd(a, 12, 26, 512 * 512 * 2)
    a.e('s_lshl_b32 s40, s33, 7')
    a.e('s_mov_b32 s42, 1024')
    a.e('s_lshr_b32 s34, s33, 1')
    a.e('s_lshl_b32 s34, s34, 17')
    a.e('s_and_b32 s37, s33, 1')
    a.e('s_lshl_b32 s37, s37, 12')
    a.e('s_add_u32 s34, s34, s37')
    a.e('s_add_u32 s34, s34, %d' % (W2_OFF + 512 * 1024))
    a.e('s_mov_b32 s35, 8192')
    a.e('s_branch %s_rl_go' % name)
    a.label('%s_rl_mi' % name, reset=True)
    make_srd(a, 12, 22, 512 * 1024 * 2)
    a.e('s_lshl_b32 s40, s6, 7')
    a.e('s_mov_b32 s42, 2048')
    a.e('s_mov_b32 s63, 3'); a.e('s_mov_b32 s59, 32')
    a.e('s_and_b32 s33, s6, 7')
    a.e('s_mul_i32 s34, s33, 192')
    a.e('s_cmp_lt_u32 s6, 8')
    a.e('s_cselect_b32 s37, 64, 2')
    a.e('s_cselect_b32 s35, 2, 4')
    a.e('s_add_u32 s34, s34, s37')
    a.e('s_lshl_b32 s34, s34, 10')
    a.e('s_add_u32 s34, s34, %d' % W1_OFF)
    a.e('s_lshl_b32 s35, s35, 10')
    a.e('s_mov_b32 s38, %d' % (96 * 1024))
    a.label('%s_rl_go' % name, reset=True)
    load_strip()
    nxr = xload(True) if LNP else 0
    for r_ in (8, 9, 10, 11): a.e('v_add_u32 v%d, s44, v%d' % (r_, r_))
    a.e('s_lshl_b32 s37, s3, 2')
    a.e('s_mul_i32 s37, s37, s35')
    a.e('s_add_u32 s34, s34, s37')
    for k4 in range(4):
        a.e('s_waitcnt vmcnt(%d)' % (12 + nxr))
        for q in range(4):
            b = 16 + 16 * k4 + 4 * q
            ad = 8 + (q >> 1) + 2 * (q & 1)
            a.e('ds_read_b64_tr_b16 %s, v%d offset:%d' % (vr(b, 2), ad, k4 * 4096))
            a.e('ds_read_b64_tr_b16 %s, v%d offset:%d' % (vr(b + 2, 2), ad, k4 * 4096 + 512))
        a.e('s_waitcnt lgkmcnt(0)')
        a.e('s_add_u32 s39, s34, s38')
        for q in range(4):
            a.e('buffer_store_dwordx4 %s, v3, %s, s%d offen offset:%d' % (vr(16 + 16 * k4 + 4 * q, 4), ws, 34 if q < 2 else 39, 1024 * (q & 1)))
        if k4 < 3: a.e('s_add_u32 s34, s34, s35')
    a.label('%s_xt' % name, reset=True)
    if F3:
        a.e('s_cmp_lt_u32 s91, 256')
        a.e('s_cbranch_scc0 %s_ns' % name)
        a.e('s_waitcnt vmcnt(0)')
        a.e('buffer_atomic_add v124, v123, s[92:95], s91 offen sc1')
        a.label('%s_ns' % name)
    xload()
    fin()
    a.label('%s_end' % name)
    a.e('s_endpgm')
    if F3: return dict(name=name, vgpr=512, sgpr=100, accum=256, grid=256, block=256, lds=163840)
    return dict(name=name, vgpr=208, sgpr=96, accum=208, grid=256, block=512 if LNP else 256, lds=65536 + 64 * P)

def chan_combine(a, P, n, cnt, oA, oB, tmp):
    a.e('v_add_f32 v%d, v%d, v%d' % (oB, P, P + 2))
    a.e('v_add_f32 v%d, v%d, v%d' % (oA, P + 1, P + 3))
    for i in range(2, n):
        a.e('v_add_f32 v%d, v%d, v%d' % (oB, oB, P + 2 * i))
        a.e('v_add_f32 v%d, v%d, v%d' % (oA, oA, P + 2 * i + 1))
    a.e('v_mul_f32 v%d, %s, v%d' % (oB, fhex(1.0 / n), oB))
    a.e('v_mov_b32 v%d, 0' % (tmp + 1))
    for i in range(n):
        a.e('v_sub_f32 v%d, v%d, v%d' % (tmp, P + 2 * i, oB))
        a.e('v_fmac_f32 v%d, v%d, v%d' % (tmp + 1, tmp, tmp))
    a.e('v_mul_f32 v%d, %s, v%d' % (tmp + 1, fhex(float(cnt)), tmp + 1))
    a.e('v_add_f32 v%d, v%d, v%d' % (oA, oA, tmp + 1))
    a.e('v_mul_f32 v%d, %s, v%d' % (oA, fhex(1.0 / (n * cnt)), oA))
    a.e('v_add_f32 v%d, %s, v%d' % (oA, fhex(1e-5), oA))
    a.e('v_rsq_f32 v%d, v%d' % (oA, oA))
    a.e('v_mul_f32 v%d, v%d, v%d' % (oB, oB, oA))
    a.e('v_sub_f32 v%d, 0, v%d' % (oB, oB))
```

```python
import copy
from asmlib import *
from layout import *

class LdsQ:
    def __init__(self):
        self.n = 0; self.done = 0; self.where = {}; self.pending = set()
    def issue(self, regs, check=True):
        self.n += 1
        for r in regs:
            if check: assert r not in self.pending, ('ring WAR', r)
            self.where[r] = self.n; self.pending.add(r)
    def consume(self, r):
        self.pending.discard(r); self.pending.discard(r + 1000)
    def need(self, regs):
        return max([self.where.get(r, 0) for r in regs] + [0])
    def wait_for(self, a, idx):
        if idx <= self.done: return
        N = min(self.n - idx, 15)
        a.e('s_waitcnt lgkmcnt(%d)' % N)
        self.done = self.n - N
    def drained(self):
        self.done = self.n
    def state(self):
        return (self.n - self.done, sorted((self.n - v, k) for k, v in self.where.items() if v > self.done), sorted(self.pending))

MF = 'v_mfma_f32_16x16x32_bf16'

KIDX = [0]
MIDR = {76: 80, 77: 81, 0: 80, 1: 81, 2: 82, 3: 83, 4: 84}
def stamp_begin(a):
    a.e('s_memrealtime s[66:67]')
    a.e('s_memtime s[72:73]')
    for r in range(80, 85): a.e('s_mov_b32 s%d, 0' % r)
    KIDX[0] += 1
CYC = [False]
def stamp_mid(a, reg):
    if CYC[0]:
        a.e('s_memtime s[78:79]')
        a.e('s_waitcnt lgkmcnt(0)')
        a.e('s_cselect_b32 s79, 1, 0')
        a.e('s_sub_u32 s78, s78, s72')
        a.e('s_add_u32 s%d, s78, s66' % MIDR[reg])
        a.e('s_cmp_eq_u32 s79, 1')
        return
    a.e('s_memrealtime s[78:79]')
    a.e('s_waitcnt lgkmcnt(0)')
    a.e('s_mov_b32 s%d, s78' % MIDR[reg])
def stamp_end(a, sWave, endlabel=None, nw=4):
    a.e('s_waitcnt vmcnt(0)')
    a.e('s_memrealtime s[68:69]')
    a.e('s_memtime s[74:75]')
    a.e('s_waitcnt lgkmcnt(0)')
    a.e('s_sub_u32 s74, s74, s72')
    a.e('s_getreg_b32 s71, hwreg(HW_REG_XCC_ID)')
    a.e('s_and_b32 s71, s71, 15')
    a.e('s_lshl_b32 s71, s71, 28')
    a.e('s_or_b32 s74, s74, s71')
    a.e('s_mul_i32 s70, s2, %d' % nw)
    a.e('s_add_u32 s70, s70, s%d' % sWave)
    a.e('s_lshl_b32 s70, s70, 5')
    a.e('s_add_u32 s70, s70, %d' % (TRACE_OFF + (KIDX[0] - 1) * TRACE_STRIDE))
    a.e('s_mov_b64 exec, 1')
    a.e('v_mov_b32 v0, s66'); a.e('v_mov_b32 v1, s68'); a.e('v_mov_b32 v2, s74'); a.e('v_mov_b32 v3, s80')
    a.e('v_mov_b32 v4, s81'); a.e('v_mov_b32 v5, s82'); a.e('v_mov_b32 v6, s83'); a.e('v_mov_b32 v7, s84')
    a.e('v_mov_b32 v8, s70')
    a.e('global_store_dwordx4 v8, v[0:3], s[4:5]')
    a.e('global_store_dwordx4 v8, v[4:7], s[4:5] offset:16')

def attn_salu(a):
    sWave = 40; sM0 = 41; sDma = 42; sQ = 43; sI = 16; sN2 = 17; sValid = 18; sOut = 19; sMl = 20; sT0 = 21; sT1 = 22; sT2 = 23
    a.e('s_and_b32 s%d, s2, 7' % sT0)
    a.e('s_lshr_b32 s%d, s2, 3' % sT1)
    a.e('s_and_b32 s%d, s%d, 3' % (sT2, sT1))
    a.e('s_lshr_b32 s%d, s%d, 2' % (sT1, sT1))
    a.e('s_and_b32 s24, s%d, 3' % sT0)
    a.e('s_lshl_b32 s24, s24, 3')
    a.e('s_add_u32 s24, s24, s%d' % sT1)
    a.e('s_lshl_b32 s24, s24, 2')
    a.e('s_add_u32 s24, s24, s%d' % sWave)
    a.e('s_cmp_lt_u32 s24, 125')
    a.e('s_cselect_b32 s%d, 1, 0' % sValid)
    a.e('s_min_u32 s24, s24, 124')
    a.e('s_lshr_b32 s25, s%d, 2' % sT0)
    a.e('s_mul_i32 s25, s25, 125')
    a.e('s_add_u32 s24, s24, s25')
    a.e('s_lshl_b32 s%d, s24, 15' % sQ)
    a.e('s_mul_i32 s26, s%d, 250' % sT2)
    a.e('s_add_u32 s26, s26, s24')
    a.e('s_lshl_b32 s%d, s24, 17' % sOut)
    a.e('s_lshl_b32 s27, s%d, 10' % sT2)
    a.e('s_add_u32 s%d, s%d, s27' % (sOut, sOut))
    a.e('s_add_u32 s%d, s%d, %d' % (sOut, sOut, OP_OFF))
    a.e('s_lshl_b32 s%d, s24, 9' % sMl)
    a.e('s_lshl_b32 s26, s%d, 7' % sT2)
    a.e('s_add_u32 s%d, s%d, s26' % (sMl, sMl))
    a.e('s_add_u32 s%d, s%d, %d' % (sMl, sMl, ML_OFF))
    a.e('s_add_u32 s%d, s%d, %d' % (sQ, sQ, QF_OFF))
    a.e('s_mul_i32 s27, s%d, 31' % sT2)
    a.e('s_min_u32 s28, s%d, 1' % sT2)
    a.e('s_add_u32 s27, s27, s28')
    a.e('s_add_u32 s27, s27, s25')
    a.e('s_lshl_b32 s%d, s27, 15' % sDma)
    if XF_OFF: a.e('s_add_u32 s%d, s%d, %d' % (sDma, sDma, XF_OFF))
    a.e('s_sub_u32 s%d, 31, s28' % sN2)
    a.e('s_lshl_b32 s%d, s%d, 13' % (sM0, sWave))

def attn_early_setup(a, sW_in, vLane, vLane16, T, qonly=False):
    a.e('s_mov_b32 s40, s%d' % sW_in)
    attn_salu(a)
    a.e('s_add_u32 s34, s27, s17')
    a.e('s_lshr_b32 s34, s34, 1')
    a.e('s_lshr_b32 s36, s27, 1')
    a.e('v_add_u32 v%d, s36, v%d' % (T, vLane))
    a.e('v_min_u32 v%d, s34, v%d' % (T, T))
    a.e('s_lshr_b32 s34, s24, 1')
    a.e('v_mov_b32 v%d, s34' % (T + 1))
    if qonly: a.e('v_mov_b32 v%d, v%d' % (T, T + 1))
    else:
        a.e('v_cmp_lt_u32 vcc, 31, v%d' % vLane)
        a.e('v_cndmask_b32 v%d, v%d, v%d, vcc' % (T, T, T + 1))
    a.e('v_lshlrev_b32 v%d, 7, v%d' % (T, T))
    a.e('v_add_u32 v%d, %d, v%d' % (T, TC_OFF, T))
    a.e('v_add_u32 v%d, s41, v%d' % (T + 2, vLane16))
    a.e('v_add_u32 v%d, 0x1000, v%d' % (T + 3, T + 2))
def attn_early_loads(vLane16, T):
    out = []
    def tile(stage):
        for j in range(8):
            g = []
            if j % 4 == 0: g += ['s_add_u32 m0, s41, %d' % (stage * 32768 + (j // 4) * 4096), 's_nop 0']
            g.append('buffer_load_dwordx4 v%d, s[8:11], s42 offen offset:%d lds' % (T + 2 if j < 4 else T + 3, (j % 4) * 1024))
            if j == 7: g.append('s_add_u32 s42, s42, 0x8000')
            out.append(g)
    tile(0)
    for f in range(32):
        g = ['s_add_u32 s43, s43, 0x1000'] if (f and f % 4 == 0) else []
        g.append('buffer_load_dwordx4 %s, v%d, s[8:11], s43 offen offset:%d sc1' % (ar(4 * f, 4), vLane16, (f % 4) * 1024))
        out.append(g)
    tile(1); tile(2)
    return out

def gen_attn(a, name='attn_kernel', cfg=None):
    cfg = cfg or {}
    DV = cfg.get('DV', 9)
    DK = cfg.get('DK', 7)
    BARPOS = cfg.get('BARPOS', 31 - DV + 4)
    WG = cfg.get('WAITGROUP', 4)
    DMA_SLOTS = cfg.get('DMA_SLOTS', [2, 6, 10, 14, 18, 22, 26, 30])
    NO_DMA = cfg.get('NO_DMA', False)
    NO_SM = cfg.get('NO_SM', False)
    STAMP = cfg.get('STAMP', False)
    FUSE = cfg.get('FUSE', 1)
    S = [0, 16]; P = 32; RING = 40; NR = 16
    NEGM = 104
    vK = [112, 113]; vV = [114, 115]
    vD0, vD1, vL0, vL1, vMx, vT0, vT1, vLane16 = 116, 117, 118, 119, 120, 121, 122, 123
    vL = [vL0, vL1]
    def Sreg(b, kt, qs): return S[b] + (kt * 2 + qs) * 4
    def Obase(dt, qs): return (dt * 2 + qs) * 4
    def Oreg(dt, qs):
        o = Obase(dt, qs)
        return vr(128 + o, 4) if o < 128 else ar(o, 4)
    def Qreg(ks, qs): return ar((ks * 2 + qs) * 4, 4)
    sSRD = 8; sWave = 40; sM0 = 41; sDma = 42; sQ = 43; sI = 16; sN2 = 17; sValid = 18; sOut = 19; sMl = 20; sT0 = 21; sT1 = 22; sT2 = 23
    srd = sr(sSRD, 4)

    F2 = cfg.get('FUSE2', 1)
    from common import poll
    if F2:
        a.raw('.p2align 8'); a.label(name, reset=True); a.label('attn_body')
        a.e('s_nop 1')
    else:
        kernel_begin(a, name)
        a.e('s_cmp_ge_u32 s2, 256')
        a.e('s_cbranch_scc1 %s_end' % name)
        a.e('s_load_dwordx2 s[4:5], s[0:1], 80')
        if STAMP: stamp_begin(a)
    if cfg.get('CPF', 1) and not F2:
        from common import code_prefetch
        code_prefetch(a, name, 124, 125, 1)
    a.e('v_lshrrev_b32 v1, 6, v0')
    a.e('v_and_b32 v2, 63, v0')
    if not F2: a.e('v_readfirstlane_b32 s%d, v1' % sWave)
    a.e('v_lshlrev_b32 v%d, 4, v2' % vLane16)
    if not F2: attn_salu(a)
    a.e('v_add_u32 v%d, s%d, v%d' % (vD0, sM0, vLane16))
    a.e('v_add_u32 v%d, 0x1000, v%d' % (vD1, vD0))
    sG, sRd0, sRd1 = 29, 30, 31
    a.e('s_and_b32 s%d, s%d, 3' % (sG, sT0))
    a.e('s_lshl_b32 s%d, s%d, 5' % (sG, sG))
    a.e('s_lshr_b32 s34, s2, 3')
    a.e('s_add_u32 s%d, s%d, s34' % (sG, sG))
    a.e('s_add_u32 s%d, s%d, s25' % (sG, sG))
    a.e('s_lshl_b32 s%d, s%d, 15' % (sG, sG))
    a.e('s_add_u32 s35, s%d, %d' % (sG, U_OFF))
    a.e('s_add_u32 s%d, s%d, %d' % (sG, sG, G_OFF))
    a.e('s_sub_u32 s%d, s%d, 3' % (sRd0, sN2))
    a.e('s_sub_u32 s%d, s%d, 2' % (sRd1, sN2))
    a.e('v_lshrrev_b32 v3, 4, v2')
    a.e('v_and_b32 v4, 15, v2')
    a.e('v_and_b32 v5, 1, v3')
    a.e('v_mul_u32_u24 v5, 12, v5')
    a.e('v_xor_b32 v5, v4, v5')
    a.e('v_lshlrev_b32 v5, 4, v5')
    a.e('v_lshl_add_u32 v%d, v3, 9, v5' % vK[0])
    a.e('v_add_u32 v%d, 0x10000, v%d' % (vK[1], vK[0]))
    a.e('v_lshrrev_b32 v4, 2, v2')
    a.e('v_bfe_u32 v5, v2, 1, 1')
    a.e('v_and_b32 v6, 1, v2')
    a.e('v_mul_u32_u24 v7, 12, v5')
    a.e('v_xor_b32 v4, v4, v7')
    a.e('v_lshlrev_b32 v4, 4, v4')
    a.e('v_lshl_add_u32 v4, v5, 9, v4')
    a.e('v_lshl_add_u32 v%d, v6, 3, v4' % vV[0])
    a.e('v_add_u32 v%d, 0x10000, v%d' % (vV[1], vV[0]))
    a.e('v_lshlrev_b32 v126, 7, v2')
    a.e('v_lshlrev_b32 v127, 7, v0')
    zl = ['v_mov_b32 v%d, 0' % r for r in range(128, 256)] + ['v_accvgpr_write_b32 a%d, 0' % r for r in range(128, 256)]
    def zero(n):
        for _ in range(n):
            if zl: a.e(zl.pop(0))
    if F2:
        a.e('v_cmp_ne_u32 vcc, 0, v2')
        a.e('v_mov_b32 v125, 0x40000000')
        a.e('v_cndmask_b32 v124, 0, v125, vcc')
        a.e('v_mov_b32 v125, 1')
        a.e('s_and_b32 s36, s2, 3')
        a.e('s_lshl_b32 s36, s36, 4')
        a.e('s_lshr_b32 s37, s2, 4')
        a.e('s_add_u32 s36, s36, s37')
        a.e('s_lshl_b32 s36, s36, 6')
        a.e('s_add_u32 s37, s36, 95')
        a.e('s_min_u32 s37, s37, 3999')
        a.e('s_lshr_b32 s37, s37, 7')
        a.e('s_max_u32 s36, s36, 32')
        a.e('s_sub_u32 s36, s36, 32')
        a.e('s_lshr_b32 s36, s36, 7')
        a.e('v_add_u32 v126, s36, v2')
        a.e('v_min_u32 v126, s37, v126')
        a.e('s_and_b32 s36, s2, 4')
        a.e('s_lshl_b32 s36, s36, 3')
        a.e('v_add_u32 v126, s36, v126')
        a.e('v_lshlrev_b32 v126, 7, v126')
        a.e('v_add_u32 v126, %d, v126' % TC_OFF)
        zero(cfg.get('AT_Z2', 150))
    else:
        zero(cfg.get('AT_Z0', 64))
        a.e('s_waitcnt lgkmcnt(0)')
        a.e('s_mov_b32 s%d, s4' % sSRD)
        a.e('s_and_b32 s%d, s5, 0xffff' % (sSRD + 1))
        a.e('s_mov_b32 s%d, %d' % (sSRD + 2, WS_BYTES))
        a.e('s_mov_b32 s%d, 0x00020000' % (sSRD + 3))

    def dma_piece(stage, j, redirect=False):
        out = []
        if j % 4 == 0:
            out.append('s_add_u32 m0, s%d, %d' % (sM0, stage * 32768 + (j // 4) * 4096))
        out.append('buffer_load_dwordx4 v%d, %s, s%d offen offset:%d lds' % (vD0 if j < 4 else vD1, srd, sDma, (j % 4) * 1024))
        if j == 7:
            out.append('s_add_u32 s%d, s%d, 0x8000' % (sDma, sDma))
            if redirect and cfg.get('AT_REDIR', 0):
                out.append('s_cmp_eq_u32 s%d, s%d' % (sI, sRd0))
                out.append('s_cselect_b32 s%d, s%d, s%d' % (sDma, sG, sDma))
                out.append('s_cmp_eq_u32 s%d, s%d' % (sI, sRd1))
                out.append('s_cselect_b32 s%d, s35, s%d' % (sDma, sDma))
        return out
    def dma_tile(stage, z=0):
        for j in range(8):
            for t in dma_piece(stage, j): a.e(t)
            zero(z)

    if cfg.get('AT_QT', 0):
        a.e('s_lshl_b32 s34, s%d, 13' % sT2)
        a.e('s_add_u32 s34, s34, s%d' % sQ)
        a.e('buffer_load_dword v125, v126, %s, s34 offen' % srd)
    if not F2:
        dma_tile(0)
        for f in range(32):
            if f and f % 4 == 0:
                a.e('s_add_u32 s%d, s%d, 0x1000' % (sQ, sQ))
            a.e('buffer_load_dwordx4 %s, v%d, %s, s%d offen offset:%d' % (ar(4 * f, 4), vLane16, srd, sQ, (f % 4) * 1024))
            zero(6)
        zero(1000)
    a.e('v_mov_b32 v%d, 0' % vL0)
    a.e('v_mov_b32 v%d, 0' % vL1)
    a.e('s_mov_b32 s%d, 0' % sI)

    q = LdsQ()
    def ring(n): return RING + 4 * ((n % 64) % NR)
    def kread(stage, n):
        reg = ring(n); ks, kt = n // 2, n % 2
        return [('ds', 'ds_read_b128 %s, v%d offset:%d' % (vr(reg, 4), vK[stage >> 1], (stage & 1) * 32768 + ks * 2048 + kt * 256), [reg])]
    def vread(stage, dt):
        reg = ring(32 + dt)
        off = (stage & 1) * 32768 + dt * 1024
        return [('ds', 'ds_read_b64_tr_b16 %s, v%d offset:%d' % (vr(reg, 2), vV[stage >> 1], off), [reg + 1000]),
                ('ds', 'ds_read_b64_tr_b16 %s, v%d offset:%d' % (vr(reg + 2, 2), vV[stage >> 1], off + 256), [reg])]
    chk = [True]
    def emit_item(it):
        if isinstance(it, tuple):
            a.e(it[1]); q.issue(it[2], chk[0])
        else:
            a.e(it)

    if not F2: a.e('s_waitcnt vmcnt(32)')
    a.e('s_barrier')
    if STAMP and cfg.get('S1') == 6: stamp_mid(a, 0)
    PD = 8
    for n in range(PD):
        for it in kread(0, n): emit_item(it)
    late = [] if F2 else [dma_piece(1, j) for j in range(8)] + [dma_piece(2, j) for j in range(8)]
    nl = 0
    for n in range(32):
        ks, kt = n // 2, n % 2
        if kt == 0 and not F2:
            a.e('s_waitcnt vmcnt(%d)' % (nl + 30 - 2 * ks))
        q.wait_for(a, q.need([ring(n)]))
        for qs in range(2):
            a.e('%s %s, %s, %s, %s' % (MF, vr(Sreg(0, kt, qs), 4), vr(ring(n), 4), Qreg(ks, qs), '0' if ks == 0 else vr(Sreg(0, kt, qs), 4)))
            if qs == 0 and n + PD < 32:
                for it in kread(0, n + PD): emit_item(it)
            zero(1 + qs)
        q.consume(ring(n))
        if (n < 8 or n % 2 == 1) and late:
            for t in late.pop(0): a.e(t)
            nl += 1
    assert not late
    zero(1000)
    if not F2:
        a.e('s_waitcnt vmcnt(8)')
        a.e('s_barrier')
    for r_ in range(4): a.e('v_mov_b32 v%d, -1' % (P + r_))
    if FUSE:
        a.e('s_lshl_b32 s34, s%d, 4' % sT0)
        a.e('s_lshr_b32 s36, s2, 4')
        a.e('s_add_u32 s34, s34, s36')
        a.e('s_lshl_b32 s34, s34, 16')
        a.e('s_bfe_u32 s36, s2, 0x10003')
        if cfg.get('TSWAP', 1): a.e('s_xor_b32 s36, s36, 1')
        a.e('s_lshl_b32 s36, s36, 15')
        a.e('s_add_u32 s34, s34, s36')
        a.e('s_add_u32 s36, s34, %d' % HX_OFF)
        a.e('s_add_u32 s34, s34, %d' % PO_OFF)
        for j in range(16):
            a.e('buffer_store_dwordx4 %s, v%d, %s, s%d offen offset:%d' % (vr(P, 4), vD0 if j % 8 < 4 else vD1, srd, 34 if j < 8 else 36, (j % 4) * 1024))
    else:
        a.e('s_lshl_b32 s34, s2, 15')
        a.e('s_add_u32 s34, s34, %d' % PO_OFF)
        for j in range(8):
            a.e('buffer_store_dwordx4 %s, v%d, %s, s34 offen offset:%d' % (vr(P, 4), vD0 if j < 4 else vD1, srd, (j % 4) * 1024))

    if cfg.get('AT_DMA2', 0):
        for j in range(4):
            for t in dma_piece(3, j): a.e(t)
    n_tail = cfg.get('NTAIL', 8)
    for n in range(n_tail):
        for it in kread(1, n): emit_item(it)

    def head_wait():
        idx = max(q.need([ring(k2)]) for k2 in range(WG))
        assert idx > q.done
        q.wait_for(a, idx)
    def rowmax(b, qs, dst, tmp):
        r0, r1 = Sreg(b, 0, qs), Sreg(b, 1, qs)
        a.e('v_max3_f32 v%d, v%d, v%d, v%d' % (dst, r0, r0 + 1, r0 + 2))
        a.e('v_max3_f32 v%d, v%d, v%d, v%d' % (dst, dst, r0 + 3, r1))
        a.e('v_max3_f32 v%d, v%d, v%d, v%d' % (dst, dst, r1 + 1, r1 + 2))
        a.e('v_max_f32 v%d, v%d, v%d' % (dst, dst, r1 + 3))
        a.e('v_mov_b32 v%d, v%d' % (tmp, dst))
        a.e('v_permlane16_swap_b32 v%d, v%d' % (tmp, dst))
        a.e('v_max_f32 v%d, v%d, v%d' % (dst, dst, tmp))
        a.e('v_mov_b32 v%d, v%d' % (tmp, dst))
        a.e('v_permlane32_swap_b32 v%d, v%d' % (tmp, dst))
        a.e('v_max_f32 v%d, v%d, v%d' % (dst, dst, tmp))
    for qs in range(2):
        rowmax(0, qs, vMx, vT0)
        for kt in range(2):
            for r in range(4):
                a.e('v_sub_f32 v%d, v%d, v%d' % (Sreg(0, kt, qs) + r, Sreg(0, kt, qs) + r, vMx))
        for r in range(4):
            a.e('v_sub_f32 v%d, 0, v%d' % (NEGM + 4 * qs + r, vMx))

    def softmax_items(b):
        items = []
        for qs in range(2):
            for kt in range(2):
                for pr in range(2):
                    r0 = Sreg(b, kt, qs) + 2 * pr; r1 = r0 + 1
                    items.append('v_exp_f32 v%d, v%d' % (r0, r0))
                    items.append('v_exp_f32 v%d, v%d' % (r1, r1))
                    items.append('v_add_f32 v%d, v%d, v%d' % (vL[qs], vL[qs], r0))
                    items.append('v_cvt_pk_bf16_f32 v%d, v%d, v%d' % (P + 4 * qs + 2 * kt + pr, r0, r1))
                    items.append('v_add_f32 v%d, v%d, v%d' % (vL[qs], vL[qs], r1))
        return items

    LAT = cfg.get('LAT', 8)
    EARLY = cfg.get('EARLY', 22)
    BARG = cfg.get('BARG', 112)
    def body(u, final=False):
        bc, bn = u % 2, (u + 1) % 2
        stK, stV = (u + 1) % 4, u
        mf = [None] * 128
        need = [None] * 64
        for n in range(32):
            if final: break
            ks, kt = n // 2, n % 2
            for qs in range(2):
                pos = qs ^ (kt if cfg.get('AT_GRAY', 1) else 0)
                mf[2 * n + pos] = '%s %s, %s, %s, %s' % (MF, vr(Sreg(bn, kt, qs), 4), vr(ring(n), 4), Qreg(ks, qs), vr(NEGM + 4 * qs, 4) if ks == 0 else vr(Sreg(bn, kt, qs), 4))
            need[n] = ring(n)
        for dt in range(32):
            for qs in range(2):
                pos = qs ^ ((dt & 1) if cfg.get('AT_GRAY', 1) else 0)
                mf[64 + 2 * dt + pos] = '%s %s, %s, %s, %s' % (MF, Oreg(dt, qs), vr(ring(32 + dt), 4), vr(P + 4 * qs, 4), Oreg(dt, qs))
            need[32 + dt] = ring(32 + dt)
        pre = [[] for _ in range(129)]
        if final:
            sm = [] if NO_SM else softmax_items(bc)
            for dt in range(32):
                its = vread(stV, dt)
                sl = 32 + dt - 9
                pre[2 * sl] += [its[0]]; pre[2 * sl + 1] += [its[1]]
            for j, it in enumerate(sm):
                pre[2 * (32 - 9) + (j * 18) // len(sm)].append(it)
            waits = set(range(64, 128, 4))
        else:
            cap = [2] * 128
            def wgap(k):
                g = 2 * (k - k % WG)
                return g
            waits = set(wgap(k) for k in range(WG, 64) if not (BARG <= wgap(k) < 128))
            for g in waits: cap[g] -= 1
            cap[BARG] -= 2; pre[BARG].append(('bar',))
            cap[0] -= 1 if u == 1 else 2
            cap[127] -= 1
            if F2 and u == 0:
                pre[122].append('buffer_atomic_add v125, v124, %s, s86 offen offset:8 sc1' % srd); cap[122] -= 2
                pre[123].append('s_mov_b32 s86, 0x40000000'); cap[123] -= 1
            pre[125].append('s_add_u32 s%d, s%d, 1' % (sI, sI)); cap[125] -= 1
            if u in (1, 2):
                pre[126].append('s_cmp_eq_u32 s%d, s%d' % (sI, sN2)); cap[126] -= 1
            ds = []
            def ring_ok(k):
                return 2 * (k - NR) + 2
            for n in range(n_tail, 32):
                for it in kread(stK, n): ds.append((it, max(0, wgap(n) - EARLY, ring_ok(n)), wgap(n) - LAT))
            for dt in range(32):
                k = 32 + dt
                w = min(wgap(k), BARG)
                for it in vread(stV, dt): ds.append((it, max(w - EARLY, ring_ok(k)), w - LAT))
            for n in range(n_tail):
                for it in kread((u + 2) % 4, n): ds.append((it, max(BARG + 1, ring_ok(64 + n)), 120))
            dl = [d[2] for d in ds]
            for x in range(len(ds) - 2, -1, -1):
                dl[x] = min(dl[x], dl[x + 1] - 1)
            sm = [] if NO_SM else [(it, 2 if it.startswith('v_exp') else 1, 1) for it in softmax_items(bc)]
            Sn = S[bn]
            mx = ['v_max3_f32 v%d, v%d, v%d, v%d' % (vMx, Sn, Sn + 1, Sn + 2)]
            for r in range(3, 15, 2):
                mx.append('v_max3_f32 v%d, v%d, v%d, v%d' % (vMx, vMx, Sn + r, Sn + r + 1))
            mx.append('v_max_f32 v%d, v%d, v%d' % (vMx, vMx, Sn + 15))
            mx.append('v_cmp_lt_f32 vcc, 0x41000000, v%d' % vMx)
            sm += [(it, 1, cfg.get('MX_START', 70)) for it in mx]
            dm = []
            post = {}
            if cfg.get('AT_DMA2', 0):
                def place(stage, js, g0):
                    for x, j in enumerate(js):
                        for it in dma_piece(stage, j):
                            if it.startswith('s_add_u32 m0'): post.setdefault(g0 - 1, []).append(it); cap[g0 - 1] -= 1
                            elif it.startswith('buffer'): pre[g0 + x].append(it); cap[g0 + x] -= 2
                            else: post.setdefault(g0 + x + 1, []).append(it); cap[g0 + x + 1] -= 1
                place((u + 3) % 4, range(4, 8), BARG - 5)
                place(u, range(0, 4), 121)
            elif not NO_DMA:
                g0, gs = cfg.get('DMA_START', 66), cfg.get('DMA_STEP', 5)
                for j in range(8):
                    for x, it in enumerate(dma_piece((u + 3) % 4, j, True)):
                        dm.append((it, g0 + gs * j + (-1 if it.startswith('s_add_u32 m0') else 0)))
            di = si = mi = 0
            last_m0 = -9
            for g in range(128):
                used_ds = False
                while cap[g] > 0:
                    ds_ready = di < len(ds) and ds[di][1] <= g and not used_ds
                    ds_urgent = ds_ready and dl[di] <= g + cfg.get('URG', 0)
                    sm_ready = si < len(sm) and sm[si][2] <= g and sm[si][1] <= cap[g]
                    dm_ready = mi < len(dm) and dm[mi][1] <= g and not (dm[mi][0].startswith('buffer') and (last_m0 == g or (used_ds and cfg.get('DMA_EXCL'))))
                    if ds_urgent:
                        pre[g].append(ds[di][0]); di += 1; cap[g] -= 1; used_ds = True
                    elif sm_ready and sm[si][1] == 2:
                        pre[g].append(sm[si][0]); cap[g] -= 2; si += 1
                    elif dm_ready:
                        if dm[mi][0].startswith('s_add_u32 m0'): last_m0 = g
                        if dm[mi][0].startswith('buffer') and cfg.get('DMA_EXCL'): used_ds = True
                        pre[g].append(dm[mi][0]); mi += 1; cap[g] -= 1
                    elif ds_ready:
                        pre[g].append(ds[di][0]); di += 1; cap[g] -= 1; used_ds = True
                    elif sm_ready:
                        pre[g].append(sm[si][0]); cap[g] -= 1; si += 1
                    else:
                        break
                pre[g] += post.get(g, [])
                if g == 62: assert NO_SM or si >= 40, ('softmax not finished in phase A', si)
                if g == BARG - 1: assert mi == len(dm), 'dma not finished'
                if di < len(ds): assert ds[di][2] + 4 > g, ('ds late', di, g, ds[di])
            assert di == len(ds) and si == len(sm), (di, len(ds), si, len(sm))
            if u == 0 and cfg.get('SHOW'):
                for g in range(128):
                    print(g, 'W' if g in waits else ' ', [ (x[1] if len(x) > 1 else 'BAR').split()[0] if isinstance(x, tuple) else x.split()[0] for x in pre[g]])
        for pos in range(128):
            k = pos // 2
            for it in pre[pos]:
                if isinstance(it, tuple) and it[0] == 'bar':
                    a.e('s_waitcnt vmcnt(%d) lgkmcnt(0)' % (0 if NO_DMA else 8)); q.drained()
                    a.e('s_barrier')
                else:
                    emit_item(it)
            if mf[pos] is None: continue
            if pos == 127 and not final:
                head_wait()
            if pos in waits:
                idx = 0
                for k2 in range(k, min(64, k + (2 if final else WG))):
                    assert need[k2] in q.pending, ('not issued', k2, pos)
                    idx = max(idx, q.need([need[k2]]))
                q.wait_for(a, idx)
            assert q.need([need[k]]) <= q.done and need[k] in q.pending, ('uncovered', pos)
            a.e(mf[pos])
            if pos % 2 == 1: q.consume(need[k])

    def rare(u):
        bn = (u + 1) % 2
        a.label('%s_rare%d' % (name, u), reset=True)
        a.e('s_nop 15')
        for qs in range(2):
            rowmax(bn, qs, vMx, vT0)
            a.e('v_max_f32 v%d, 0, v%d' % (vMx, vMx))
            a.e('v_sub_f32 v%d, 0, v%d' % (vT0, vMx))
            a.e('v_exp_f32 v%d, v%d' % (vT0, vT0))
            for kt in range(2):
                for r in range(4):
                    a.e('v_sub_f32 v%d, v%d, v%d' % (Sreg(bn, kt, qs) + r, Sreg(bn, kt, qs) + r, vMx))
            for r in range(4):
                a.e('v_sub_f32 v%d, v%d, v%d' % (NEGM + 4 * qs + r, NEGM + 4 * qs + r, vMx))
            a.e('v_mul_f32 v%d, v%d, v%d' % (vL[qs], vL[qs], vT0))
            for dt in range(32):
                o = Obase(dt, qs)
                if o < 128:
                    for j in range(4): a.e('v_mul_f32 v%d, v%d, v%d' % (128 + o + j, 128 + o + j, vT0))
                else:
                    for j in range(4): a.e('v_accvgpr_read_b32 v%d, a%d' % (P + j, o + j))
                    for j in range(4): a.e('v_mul_f32 v%d, v%d, v%d' % (P + j, P + j, vT0))
                    for j in range(4): a.e('v_accvgpr_write_b32 a%d, v%d' % (o + j, P + j))
        a.e('s_nop 3')
        a.e('s_branch %s_back%d' % (name, u))

    head_wait()
    if STAMP and (not FUSE or cfg.get('S1') == 4): stamp_mid(a, 76)
    if STAMP and cfg.get('S1') == 6: stamp_mid(a, 1)
    a.raw('.p2align 6')
    a.label('%s_loop' % name)
    a.record = []
    qstate0 = q.state()
    saved = {}
    for u in range(4):
        body(u)
        a.e('s_cbranch_vccnz %s_rare%d' % (name, u))
        a.label('%s_back%d' % (name, u))
        if u in (1, 2):
            a.e('s_cbranch_scc1 %s_final%d' % (name, u + 1))
            saved[u + 1] = (copy.deepcopy(q), list(a.hist))
        assert q.state() == qstate0, (q.state(), qstate0)
    a.e('s_branch %s_loop' % name)
    rec = [x[1] for x in a.record if x[0] == 'ins']
    a.record = None
    viol = check_seq(rec + rec[:40])
    assert not viol, viol
    loop_len = len(rec)

    for u in (2, 3):
        a.label('%s_final%d' % (name, u))
        q.__dict__.update(saved[u][0].__dict__); a.hist = saved[u][1]
        q.pending = set()
        if F2: a.e('global_load_dword v127, v126, s[4:5] offset:8 sc1')
        if cfg.get('AT_TOUCH', 0):
            a.e('s_lshr_b32 s34, s2, 3')
            a.e('s_lshl_b32 s34, s34, 15')
            a.e('s_add_u32 s34, s34, %d' % W2_OFF)
            a.e('buffer_load_dword v125, v127, %s, s34 offen' % srd)
            a.e('s_sub_u32 s34, s34, %d' % W2_OFF)
            a.e('s_min_u32 s34, s34, %d' % (4 << 15))
            a.e('s_add_u32 s34, s34, %d' % TPC_OFF)
            a.e('buffer_load_dword v125, v127, %s, s34 offen' % srd)
            a.e('s_getpc_b64 s[60:61]')
            lbl = '%s_np%d' % (name, u)
            a.label(lbl)
            a.e('s_add_u32 s60, s60, tail_kernel-%s' % lbl)
            a.e('s_addc_u32 s61, s61, 0')
            a.e('v_min_u32 v124, tail_kernel_end-tail_kernel, v127')
            a.e('global_load_dword v125, v124, s[60:61]')
        body(u, final=True)
        if u == 2:
            a.e('s_branch %s_epi' % name)
    a.label('%s_epi' % name)
    if STAMP and (not FUSE or cfg.get('S1') == 4): stamp_mid(a, 77)
    if FUSE: a.e('s_waitcnt vmcnt(0)')
    if F2:
        assert not cfg.get('FUSE3', 0)
        a.e('v_cmp_gt_u32 vcc, 16, v127')
        a.e('s_cbranch_vccz %s_pg_ok' % name)
        poll(a, '%s_pg' % name, 126, 127, 16, 38, 8)
    a.e('s_cmp_eq_u32 s%d, 0' % sValid)
    a.e('s_cbranch_scc1 %s_%s' % (name, 'sig' if FUSE else 'end'))
    a.e('s_nop 15')
    for qs in range(2):
        l = vL[qs]
        a.e('v_mov_b32 v%d, v%d' % (vT0, l))
        a.e('v_permlane16_swap_b32 v%d, v%d' % (vT0, l))
        a.e('v_add_f32 v%d, v%d, v%d' % (l, l, vT0))
        a.e('v_mov_b32 v%d, v%d' % (vT0, l))
        a.e('v_permlane32_swap_b32 v%d, v%d' % (vT0, l))
        a.e('v_add_f32 v%d, v%d, v%d' % (l, l, vT0))
    a.e('v_cmp_gt_u32 vcc, 0x100, v%d' % vLane16)
    a.e('v_cndmask_b32 v0, v%d, v%d, vcc' % (NEGM + 4, NEGM))
    a.e('v_cndmask_b32 v1, v%d, v%d, vcc' % (vL1, vL0))
    a.e('v_log_f32 v1, v1')
    a.e('v_sub_f32 v0, v1, v0')
    a.e('v_lshrrev_b32 v2, 2, v%d' % vLane16)
    a.e('s_mov_b64 exec, 0xffffffff')
    a.e('buffer_store_dword v0, v2, %s, s%d offen' % (srd, sMl))
    a.e('s_mov_b64 exec, -1')
    a.e('v_rcp_f32 v4, v%d' % vL0)
    a.e('v_rcp_f32 v5, v%d' % vL1)
    a.dense = True
    sm0 = a.store_mod; a.store_mod = cfg.get('AT_SM', sm0)
    t = 0
    for D in range(16):
        for qs in range(2):
            f = D * 2 + qs
            tmp = RING + 4 * (t % 8); t += 1
            srcs = []
            for e in range(2):
                o = Obase(2 * D + e, qs)
                if o < 128:
                    srcs.append(128 + o)
                else:
                    s_ = 8 + 8 * (f % 3) + 4 * e
                    for j in range(4): a.e('v_accvgpr_read_b32 v%d, a%d' % (s_ + j, o + j))
                    srcs.append(s_)
            for e in range(2):
                for j in range(2):
                    r_ = vr(srcs[e] + 2 * j, 2)
                    a.e('v_pk_mul_f32 %s, %s, v[4:5] op_sel:[0,%d] op_sel_hi:[1,%d]' % (r_, r_, qs, qs))
            for e in range(2):
                for j in range(2):
                    a.e('v_cvt_pk_f16_f32 v%d, v%d, v%d' % (tmp + 2 * e + j, srcs[e] + 2 * j, srcs[e] + 2 * j + 1))
            if f: a.e('s_add_u32 s%d, s%d, 0x1000' % (sOut, sOut))
            a.e('buffer_store_dwordx4 %s, v%d, %s, s%d offen' % (vr(tmp, 4), vLane16, srd, sOut))
    a.store_mod = sm0
    a.dense = False
    if cfg.get('AT_BACK', 0):
        if cfg.get('AT_BACK31', 1):
            a.e('s_cmp_eq_u32 s%d, 31' % sN2)
            a.e('s_cbranch_scc1 %s_nb' % name)
        a.e('s_sub_u32 s%d, s%d, 0x7000' % (sOut, sOut))
        a.e('s_waitcnt vmcnt(%d)' % (32 - 8 * cfg['AT_BACK']))
        for j in range(cfg['AT_BACK']):
            a.e('buffer_load_dword v125, v126, %s, s%d offen' % (srd, sOut))
            a.e('s_add_u32 s%d, s%d, 0x2000' % (sOut, sOut))
        a.label('%s_nb' % name)
    if FUSE:
        a.label('%s_sig' % name, reset=True)
        a.e('s_lshl_b32 s34, s%d, 3' % sT0)
        a.e('s_add_u32 s34, s34, s%d' % sT1)
        a.e('s_lshl_b32 s34, s34, 7')
        a.e('s_add_u32 s34, s34, %d' % CNT_OFF)
        a.e('s_mov_b32 s87, s34')
        a.e('s_lshl_b32 s35, s%d, 6' % sWave)
        a.e('v_lshrrev_b32 v0, 4, v%d' % vLane16)
        a.e('v_add_u32 v0, s35, v0')
        if STAMP and cfg.get('S1') == 4: stamp_mid(a, 2)
        a.e('s_barrier')
        a.e('s_branch tail_body')
    else:
        if STAMP: stamp_end(a, sWave, '%s_end' % name)
    a.label('%s_end' % name)
    a.e('s_endpgm')
    for u in range(4):
        rare(u)
    if F2: return None
    return dict(name=name, vgpr=512, sgpr=96, accum=256, grid=256, block=256, lds=163840 if FUSE else 131072, loop_len=loop_len)
```

```python
import math
from common import *
from attn16 import stamp_begin, stamp_mid, stamp_end, attn_salu, attn_early_loads

def gen_in(a, name='in_kernel', cfg=None):
    cfg = cfg or {}
    STAMP = cfg.get('STAMP', False)
    ST2 = STAMP and cfg.get('S1') == 5
    RW = 48; NW = 96; TB = 192; NS = 2
    QA, GA, UA = 0, 64, 128
    vLane, vLane16, vK0, vK1, vRow, vI, vQ4, vOob, vOne, vPa, vD0, vD1 = range(192, 204)
    C1, C2, G, ONE, SS = 204, 206, 208, 216, 224
    vPv, vSx, vSy, vSz = 218, 219, 220, 221
    sWave, sW, sA, sB, sC = 3, 12, 13, 14, 15
    IB = 32768
    ws = 's[8:11]'
    def qa(t, ts): return QA + (ts * 2 + t) * 4
    def ha(base, t, ts): return base + (t * 8 + ts) * 4

    kernel_begin(a, name)
    a.e('s_cmp_ge_u32 s2, 256')
    a.e('s_cbranch_scc1 %s_end' % name)
    a.e('s_load_dwordx2 s[4:5], s[0:1], 80')
    if STAMP: stamp_begin(a)
    a.e('v_lshrrev_b32 v1, 6, v0')
    a.e('v_and_b32 v%d, 63, v0' % vLane)
    a.e('v_readfirstlane_b32 s%d, v1' % sWave)
    a.e('v_lshlrev_b32 v%d, 4, v%d' % (vLane16, vLane))
    a.e('s_mov_b32 s40, s%d' % sWave)
    attn_salu(a)
    a.e('s_lshl_b32 s44, s21, 3')
    a.e('s_add_u32 s44, s44, s22')
    a.e('s_and_b32 s45, s44, 31')
    a.e('s_lshl_b32 s45, s45, 2')
    a.e('s_add_u32 s%d, s45, s25' % sA)
    a.e('s_add_u32 s%d, s%d, s%d' % (sB, sA, sWave))
    a.e('s_lshl_b32 s%d, s%d, 15' % (sB, sB))
    a.e('s_lshl_b32 s%d, s%d, 15' % (sC, sWave))
    a.e('s_lshl_b32 s46, s23, 2')
    a.e('s_add_u32 s46, s46, s%d' % sWave)
    a.e('s_mul_i32 s%d, s46, %d' % (sW, NW * 1024))
    a.e('s_add_u32 s%d, s%d, %d' % (sW, sW, W1_OFF))
    a.e('s_lshl_b32 s86, s44, 7')
    a.e('s_add_u32 s86, s86, %d' % TC_OFF)
    a.e('s_waitcnt lgkmcnt(0)')
    make_srd(a, 8, 4, WS_BYTES)
    make_srd(a, 36, 4, 0)
    a.e('s_add_u32 s38, s25, 125')
    a.e('s_lshl_b32 s38, s38, 15')
    assert XF_OFF == 0
    vq = VmQ()
    st = GStream(a, vq, cfg.get('IN_PACE', 64), 2)
    st.look = 100; st.pace2 = 56
    state = dict(cons=-1)
    for p in range(32):
        pre = ['s_add_u32 m0, s%d, %d' % (sC, IB + p * 1024), 's_add_u32 s57, s%d, %d' % (sB, p * 1024)] if p % 4 == 0 else []
        st.add(1, (p // 4) * 8 - 12, pre, 'buffer_load_dwordx4 v%d, s[36:39], s57 offen offset:%d lds' % (vLane16, (p % 4) * 1024), ('img', p))
    for n in range(NW):
        pre = ['s_add_u32 s%d, s%d, 0x1000' % (sW, sW)] if (n and n % 4 == 0) else []
        st.add(0, n, pre, 'buffer_load_dwordx4 %s, v%d, %s, s%d offen offset:%d' % (ar(4 * (n % RW), 4), vLane16, ws, sW, (n % 4) * 1024), ('w', n),
               (lambda nn=n: state['cons'] >= nn - RW))
    st.burst(cfg.get('IN_B0', 20))
    if cfg.get('CPF', 1):
        code_prefetch(a, name, 250, 251, 2, end='attn_kernel_end'); vq.issue(); vq.issue()
    def srd_b(d, off):
        a.e('s_lshl_b32 s57, s25, 15')
        a.e('s_add_u32 s57, s57, %d' % off)
        a.e('s_add_u32 s%d, s4, s57' % d)
        a.e('s_addc_u32 s%d, s5, 0' % (d + 1))
        a.e('s_and_b32 s%d, s%d, 0xffff' % (d + 1, d + 1))
        a.e('s_mov_b32 s%d, 4096000' % (d + 2))
        a.e('s_mov_b32 s%d, 0x00020000' % (d + 3))
    st.flush()
    a.e('s_mov_b32 s59, s57')
    srd_b(48, QF_OFF); srd_b(52, G_OFF); srd_b(60, U_OFF)
    a.e('s_mov_b32 s57, s59')
    a.e('s_mov_b32 s90, 0xffff0000')
    a.e('v_lshrrev_b32 v%d, 4, v%d' % (vQ4, vLane))
    a.e('v_and_b32 v%d, 15, v%d' % (vI, vLane))
    a.e('v_and_b32 v%d, 1, v%d' % (vK0, vQ4))
    a.e('v_lshlrev_b32 v%d, 14, v%d' % (vRow, vK0))
    a.e('v_mul_u32_u24 v%d, 12, v%d' % (vK0, vK0))
    a.e('v_xor_b32 v%d, v%d, v%d' % (vK0, vK0, vI))
    a.e('v_lshlrev_b32 v%d, 4, v%d' % (vK0, vK0))
    a.e('v_lshl_add_u32 v%d, v%d, 9, v%d' % (vK0, vQ4, vK0))
    a.e('v_add_u32 v%d, %d, v%d' % (vK0, IB, vK0))
    a.e('v_add_u32 v%d, 0x10000, v%d' % (vK1, vK0))
    a.e('v_lshl_add_u32 v%d, v%d, 5, v%d' % (vRow, vI, vRow))
    a.e('v_lshrrev_b32 v%d, 1, v%d' % (vPa, vQ4))
    a.e('v_lshl_add_u32 v%d, v%d, 4, v%d' % (vRow, vPa, vRow))
    a.e('v_cmp_ne_u32 vcc, 0, v%d' % vLane)
    a.e('v_mov_b32 v%d, 0x40000000' % vOne)
    a.e('v_cndmask_b32 v%d, 0, v%d, vcc' % (vOob, vOne))
    a.e('v_mov_b32 v%d, 1' % vOne)
    a.e('v_mov_b32 v%d, s86' % vPa)
    a.e('v_add_u32 v%d, s41, v%d' % (vD0, vLane16))
    a.e('v_add_u32 v%d, 0x1000, v%d' % (vD1, vD0))
    c1 = -2.0 * math.log2(math.e) * math.sqrt(2.0 / math.pi); c2 = c1 * 0.044715
    for r, v in ((C1, c1), (C2, c2), (ONE, 1.0)):
        a.e('v_mov_b32 v%d, %s' % (r, fhex(v))); a.e('v_mov_b32 v%d, %s' % (r + 1, fhex(v)))
    a.e('s_lshl_b32 s47, s45, 15')
    a.e('s_lshl_b32 s56, s46, 11')
    a.e('s_add_u32 s56, s56, s47')
    a.e('s_lshl_b32 s58, s46, 10')
    a.e('s_add_u32 s47, s47, s58')
    a.e('s_lshl_b32 s64, s44, 12')
    a.e('s_add_u32 s64, s64, %d' % SX_OFF)
    st.burst(cfg.get('IN_B1', 8))

    lq = LgQ(); sc = Sched(a, st)
    def treads(kk):
        ks = kk % 16
        return [FD('ds_read_b128 %s, v%d offset:%d' % (ar(TB + ((kk % NS) * 8 + ts) * 4, 4), vK1 if ts >= 4 else vK0, ((ts >> 1) & 1) * 32768 + ks * 2048 + (ts & 1) * 256), lq, (kk, ts)) for ts in range(8)]
    def chunk_regs(base, c): return base + 8 * c
    def poly(x0):
        g = [vr(G + 2 * j, 2) for j in range(4)]; x = [vr(x0 + 2 * j, 2) for j in range(4)]
        for j in range(4): a.e('v_pk_mul_f32 %s, %s, %s' % (g[j], x[j], x[j]))
        for j in range(4): a.e('v_pk_fma_f32 %s, %s, %s, %s' % (g[j], g[j], vr(C2, 2), vr(C1, 2)))
        for j in range(4): a.e('v_pk_mul_f32 %s, %s, %s' % (g[j], g[j], x[j]))
    def rest(x0):
        out = []
        for j in range(8): out.append(F('x', 'v_exp_f32 v%d, v%d' % (G + j, G + j)))
        for j in range(8): out.append(FV('v_add_f32 v%d, 1.0, v%d' % (G + j, G + j)))
        for j in range(8): out.append(F('x', 'v_rcp_f32 v%d, v%d' % (G + j, G + j)))
        for j in range(8): out.append(FV('v_mul_f32 v%d, v%d, v%d' % (x0 + j, x0 + j, G + j)))
        return out
    def pack_store(x0, c, srd):
        t, pr = c >> 2, c & 3
        for j in range(4): a.e('v_cvt_pk_bf16_f32 v%d, v%d, v%d' % (x0 + j, x0 + 2 * j, x0 + 2 * j + 1))
        a.e('s_add_u32 s58, s47, %d' % (pr * 32768))
        a.e('v_permlane16_swap_b32 v%d, v%d' % (x0, x0 + 2))
        a.e('v_permlane16_swap_b32 v%d, v%d' % (x0 + 1, x0 + 3))
        return 'buffer_store_dwordx4 %s, v%d, %s, s58 offen offset:%d' % (vr(x0, 4), vRow, srd, t * 512)
    qf = []
    for ts in range(8):
        o = qa(0, ts)
        for j in range(4): qf.append(FV('v_cvt_pk_bf16_f32 v%d, v%d, v%d' % (o + j, o + 2 * j, o + 2 * j + 1)))
        if ts % 2 == 0: qf.append(FS('s_add_u32 s59, s56, %d' % ((ts >> 1) * 32768)))
        qf.append(FM('buffer_store_dwordx4 %s, v%d, s[48:51], s59 offen offset:%d' % (vr(o, 4), vLane16, (ts & 1) * 1024), vq, 'q'))

    def imgbar(p):
        st.wait(('img', p)); a.e('s_barrier')
    imgbar(7)
    if ST2: stamp_mid(a, 0)
    for f in treads(0): f.emit(a)
    early = attn_early_loads(vLane16, vD0 - 2)
    n = 0
    for kk in range(32):
        part, ks = kk // 16, kk % 16
        if ST2 and kk == 16: stamp_mid(a, 1); lq.done = lq.n
        if kk in (3, 7, 11): sc.flush(); st.flush(); imgbar(2 * kk + 9)
        if kk >= 16 and kk % 2 == 0:
            c = (kk - 16) // 2
            if kk > 16: sc.flush()
            st.flush()
            a.dense = True; poly(chunk_regs(GA, c)); a.dense = False
            sc.add(rest(chunk_regs(GA, c)))
            if kk <= 18: sc.add(qf[:22]); qf = qf[22:]
        lq.wait(a, (kk, 7))
        nt = 4 if part == 0 else 2
        st.wait(('w', n + nt - 1))
        if kk < 31:
            ds = treads(kk + 1); out = []
            while ds:
                out.append(ds.pop(0))
                if sc.q and sc.q[0].kind == 'v': out.append(sc.q.pop(0))
            sc.q[0:0] = out
        if kk == 13:
            carry = []
            for x_, g_ in enumerate(early[:40]):
                vm = [t_ for t_ in g_ if t_.startswith('buffer')][0]
                pre_ = carry + [t_ for t_ in g_[:g_.index(vm)] if not t_.startswith('s_nop')]; carry = g_[g_.index(vm) + 1:]
                st.add(1, 1000, pre_, vm, ('e', x_), None if x_ < 8 else (lambda sl=x_ - 8: state.get('qok') and state['cons'] >= sl + RW))
            early = early[40:]
        if kk == cfg.get('IN_KSIG', 24):
            vq.wait(a, 'q')
            sc.add([FM('buffer_atomic_add v%d, v%d, %s, s86 offen sc1' % (vOne, vOob, ws), vq)], front=True)
        if kk == cfg.get('IN_KPOLL', 27):
            sc.add([FM('global_load_dword v%d, v%d, s[4:5] sc1' % (vPv, vPa), vq, 'poll')], front=True)
        if kk == cfg.get('IN_KPOLL', 27) + 2:
            st.flush()
            lb = '%s_pe' % name
            vq.wait(a, 'poll')
            a.e('v_cmp_gt_u32 vcc, 16, v%d' % vPv)
            a.e('s_cbranch_vccz %s_ok' % lb)
            poll(a, lb, vPa, vPv, 16, 34)
            a.e('s_barrier')
            state['qok'] = True
        for t in range(nt):
            for x, ts in enumerate(range(8) if t % 2 == 0 else range(7, -1, -1)):
                wv, tv = ar(4 * (n % RW), 4), ar(TB + ((kk % NS) * 8 + ts) * 4, 4)
                if part == 0 and t < 2: ac, ops = qa(t, ts), (wv, tv)
                else: ac, ops = ha(GA if part == 0 else UA, t % 2, ts), (tv, wv)
                a.e('%s %s, %s, %s, %s' % (MF, vr(ac, 4), ops[0], ops[1], '0' if ks == 0 else vr(ac, 4)))
                if x == 7: state['cons'] = n
                cap = 0 if (x == 7 and t == nt - 1) else 2
                left = (1 - kk % 2) * 16 + (nt - 1 - t) * 8 + 7 - x
                units = sum(2 if f.kind in 'xm' else 1 for f in sc.q) + (1 - kk % 2) * 8
                if part == 1 and cap and units > cfg.get('IN_PRESS', 1.7) * left: cap += 1
                sc.gap(cap)
            n += 1
    sc.flush(); st.flush()
    assert not qf
    if cfg.get('V'): print('in3', [x[1] for x in st.slack], a.clock, 'left', len(st.qs[1]))
    if ST2: stamp_mid(a, 2)
    st.burst(cfg.get('IN_E2', 6))
    a.dense = True
    for p in range(16):
        x0, x1 = vr(GA + 2 * p, 2), vr(GA + 32 + 2 * p, 2)
        a.e('v_pk_add_f32 %s, %s, %s' % (vr(2 * p, 2), x0, x1))
        a.e('v_pk_mul_f32 %s, %s, %s' % (vr(32 + 2 * p, 2), x0, x0))
        a.e('v_pk_fma_f32 %s, %s, %s, %s' % (vr(32 + 2 * p, 2), x1, x1, vr(32 + 2 * p, 2)))
    st.burst(4)
    for p in range(32): a.e('v_add_f32_dpp v%d, v%d, v%d row_ror:8 row_mask:0xf bank_mask:0x3' % (SS + p, p, p))
    for p in range(32): a.e('v_add_f32_dpp v%d, v%d, v%d row_ror:8 row_mask:0xf bank_mask:0xc' % (SS + p, 32 + p, 32 + p))
    st.burst(4)
    for p in range(16): a.e('v_add_f32_dpp v%d, v%d, v%d row_half_mirror row_mask:0xf bank_mask:0x5' % (p, SS + p, SS + p))
    for p in range(16): a.e('v_add_f32_dpp v%d, v%d, v%d row_half_mirror row_mask:0xf bank_mask:0xa' % (p, SS + 16 + p, SS + 16 + p))
    for qp in ('[1,0,3,2]', '[2,3,0,1]'):
        for p in range(16):
            a.e('v_add_f32_dpp v%d, v%d, v%d quad_perm:%s row_mask:0xf bank_mask:0xf' % (p, p, p, qp))
    a.e('v_lshrrev_b32 v%d, 2, v%d' % (vSx, vI))
    a.e('v_lshlrev_b32 v%d, 8, v%d' % (vSx, vSx))
    a.e('v_lshl_add_u32 v%d, v%d, 4, v%d' % (vSx, vQ4, vSx))
    a.e('s_lshl_b32 s58, s%d, 10' % sWave)
    a.e('s_add_u32 s58, s58, 131072')
    a.e('v_add_u32 v%d, s58, v%d' % (vSx, vSx))
    for j in range(4): a.e('ds_write_b128 v%d, %s offset:%d' % (vSx, vr(4 * j, 4), 64 * j))
    a.e('v_lshlrev_b32 v%d, 2, v%d' % (vSy, vLane))
    a.e('s_lshl_b32 s58, s%d, 8' % sWave)
    a.e('v_add_u32 v%d, s58, v%d' % (vSy, vSy))
    a.e('s_waitcnt lgkmcnt(0)')
    a.e('s_barrier')
    a.e('v_add_u32 v%d, 131072, v%d' % (vSx, vSy))
    for w in range(4): a.e('ds_read_b32 v%d, v%d offset:%d' % (16 + w, vSx, 1024 * w))
    a.e('s_lshl_b32 s58, s23, 10')
    a.e('s_add_u32 s58, s58, s64')
    a.e('s_waitcnt lgkmcnt(0)')
    a.e('v_add_f32 v16, v16, v17'); a.e('v_add_f32 v18, v18, v19'); a.e('v_add_f32 v16, v16, v18')
    a.e('v_min_u32 v16, -2, v16')
    a.e('buffer_store_dword v16, v%d, %s, s58 offen' % (vSy, ws)); vq.issue()
    def eload(n_):
        for _ in range(n_):
            if not st.empty(): st.burst(1)
            elif early:
                for t_ in early.pop(0): a.e(t_)
    eload(cfg.get('IN_E0', 6))
    ust = []
    a.e('v_lshlrev_b32 v%d, 3, v%d' % (vSz, vLane))
    def sx_loads():
        for c4 in range(4):
            for s_ in range(2):
                a.e('buffer_load_dwordx2 %s, v%d, %s, s64 offen offset:%d sc1' % (vr(16 + 4 * c4 + 2 * s_, 2), vSz, ws, c4 * 1024 + s_ * 512))
    for c in range(8):
        x0 = chunk_regs(UA, c)
        poly(x0)
        g = [vr(G + 2 * j, 2) for j in range(4)]
        for j in range(8): a.e('v_exp_f32 v%d, v%d' % (G + j, G + j))
        for j in range(4): a.e('v_pk_add_f32 %s, %s, %s' % (g[j], g[j], vr(ONE, 2)))
        for j in range(8): a.e('v_rcp_f32 v%d, v%d' % (G + j, G + j))
        for j in range(4): a.e('v_pk_mul_f32 %s, %s, %s' % (vr(x0 + 2 * j, 2), vr(x0 + 2 * j, 2), g[j]))
        eload(cfg.get('IN_E1', 4))
    eload(100)
    sx_loads()
    for c in range(8): a.e(pack_store(chunk_regs(UA, c), c, 's[60:63]'))
    a.e('s_waitcnt vmcnt(8)')
    a.e('s_mov_b32 s34, 0')
    a.label('%s_sx' % name)
    a.e('v_max3_u32 v32, v16, v17, v18')
    for j in range(19, 31, 2): a.e('v_max3_u32 v32, v32, v%d, v%d' % (j, j + 1))
    a.e('v_max_u32 v32, v32, v31')
    a.e('v_cmp_eq_u32 vcc, -1, v32')
    a.e('s_cbranch_vccz %s_sxok' % name)
    sx_loads()
    a.e('s_waitcnt vmcnt(0)')
    a.e('s_add_u32 s34, s34, 1')
    a.e('s_cmp_lt_u32 s34, 0x40000')
    a.e('s_cbranch_scc1 %s_sx' % name)
    a.label('%s_sxok' % name, reset=True)
    if ST2: stamp_mid(a, 3)
    for s_ in range(2):
        r = [vr(16 + 4 * c4 + 2 * s_, 2) for c4 in range(4)]
        a.e('v_pk_add_f32 %s, %s, %s' % (r[0], r[0], r[1])); a.e('v_pk_add_f32 %s, %s, %s' % (r[2], r[2], r[3])); a.e('v_pk_add_f32 %s, %s, %s' % (r[0], r[0], r[2]))
    for j in range(2):
        m, v = 16 + j, 18 + j
        a.e('v_mul_f32 v%d, %s, v%d' % (m, fhex(1.0 / 512), m))
        a.e('v_mul_f32 v%d, %s, v%d' % (v, fhex(1.0 / 512), v))
        a.e('v_fma_f32 v%d, -v%d, v%d, v%d' % (v, m, m, v))
        a.e('v_max_f32 v%d, 0, v%d' % (v, v))
        a.e('v_add_f32 v%d, %s, v%d' % (v, fhex(1e-5), v))
        a.e('v_rsq_f32 v%d, v%d' % (v, v))
        a.e('v_mul_f32 v%d, -v%d, v%d' % (m, m, v))
    a.e('s_lshl_b32 s58, s%d, 10' % sWave)
    a.e('s_add_u32 s58, s58, %d' % (131072 + 4096))
    a.e('v_add_u32 v%d, s58, v%d' % (vSz, vSz))
    a.e('v_lshlrev_b32 v%d, 4, v%d' % (vSx, vQ4))
    a.e('v_add_u32 v%d, s58, v%d' % (vSx, vSx))
    a.e('ds_write_b64 v%d, v[18:19]' % vSz)
    a.e('ds_write_b64 v%d, v[16:17] offset:512' % vSz)
    a.e('s_waitcnt lgkmcnt(0)')
    for j in range(16): a.e('ds_read_b128 %s, v%d offset:%d' % (vr(4 * j, 4), vSx, 64 * j))
    a.e('s_waitcnt lgkmcnt(0)')
    for c in range(8):
        x0 = chunk_regs(GA, c); p0 = 8 * (c & 3)
        for j in range(4):
            a.e('v_pk_fma_f32 %s, %s, %s, %s' % (vr(x0 + 2 * j, 2), vr(x0 + 2 * j, 2), vr(p0 + 2 * j, 2), vr(32 + p0 + 2 * j, 2)))
        a.e(pack_store(x0, c, 's[52:55]'))
    a.dense = False
    a.e('s_lshl_b32 s50, s%d, 6' % sWave)
    a.e('v_add_u32 v0, s50, v%d' % vLane)
    a.e('s_branch attn_body')
    a.label('%s_end' % name)
    a.e('s_endpgm')
    return dict(name=name, vgpr=512, sgpr=96, accum=256, grid=256, block=256, lds=163840)
```

```python
import math
from common import *
from attn16 import stamp_begin, stamp_mid, stamp_end

N_M, N_VO, N_RL, N_DW, N_TP = 128, 64, 40, 0, 12
P = 1040

def gen_prep(a, name='prep_kernel', cfg=None):
    cfg = cfg or {}
    STAMP = cfg.get('STAMP', False)
    total = N_M + N_VO + N_RL + N_DW + N_TP
    F3 = cfg.get('FUSE3', 0)
    LNP = cfg.get('LNP', 1) and not F3
    NX = 16 if (F3 or LNP) else 0
    def fin():
        if F3: a.e('s_branch in_body')
        else:
            if STAMP: stamp_end(a, 3, nw=8 if LNP else 4)
            a.e('s_endpgm')
    kernel_begin(a, name)
    a.e('s_cmp_ge_u32 s2, 256')
    a.e('s_cbranch_scc1 %s_end' % name)
    a.e('s_load_dwordx16 s[16:31], s[0:1], 0')
    a.e('s_load_dwordx2 s[4:5], s[0:1], 80')
    if F3: a.e('s_load_dwordx2 s[88:89], s[0:1], 72')
    if STAMP: stamp_begin(a)
    if cfg.get('CPF', 1):
        a.e('s_lshr_b32 s62, s2, 3')
        a.e('s_min_u32 s62, s62, 5')
        a.e('s_lshl_b32 s62, s62, 15')
        code_prefetch(a, name, 120, 121, 1, end=cfg.get('LAST_END', 'tail_kernel_end'), part_sgpr=62)
    a.e('v_lshrrev_b32 v1, 6, v0')
    a.e('v_and_b32 v2, 63, v0')
    a.e('v_readfirstlane_b32 s3, v1')
    a.e('v_lshlrev_b32 v3, 4, v2')
    a.e('v_lshrrev_b32 v4, 4, v2')
    a.e('v_and_b32 v5, 15, v2')
    a.e('s_waitcnt lgkmcnt(0)')
    make_srd(a, 8, 4, WS_BYTES)
    ws = 's[8:11]'
    if F3:
        a.e('s_lshr_b32 s85, s2, 4')
        a.e('s_lshl_b32 s85, s85, 3')
        a.e('s_and_b32 s56, s2, 7')
        a.e('s_or_b32 s85, s85, s56')
        a.e('s_bfe_u32 s57, s2, 0x10003')
        a.e('s_lshl_b32 s57, s57, 7')
        a.e('s_or_b32 s85, s85, s57')
        make_srd(a, 52, 16, 8192000)
        make_srd(a, 92, 88, 256)
        a.e('s_lshl_b32 s56, s56, 4')
        a.e('s_lshr_b32 s57, s2, 4')
        a.e('s_add_u32 s56, s56, s57')
        a.e('s_lshl_b32 s56, s56, 16')
        a.e('s_lshl_b32 s57, s3, 14')
        a.e('s_add_u32 s56, s56, s57')
        a.e('v_lshlrev_b32 v122, 10, v5')
        a.e('v_lshl_add_u32 v122, v4, 4, v122')
        a.e('v_cmp_ne_u32 vcc, 0, v2')
        a.e('v_mov_b32 v124, 0x40000000')
        a.e('v_cndmask_b32 v123, 0, v124, vcc')
        a.e('v_mov_b32 v124, 1')
        a.e('s_mov_b32 s87, %d' % (RC_OFF + 8 * 128))
        a.e('s_mov_b32 s91, 0x40000000')
    else:
        a.e('s_mov_b32 s85, s2')
    if LNP:
        a.e('s_cmp_lt_u32 s3, 4')
        a.e('s_cbranch_scc1 %s_role' % name)
        make_srd(a, 52, 16, 8192000)
        a.e('s_lshl_b32 s58, s2, 16')
        a.e('s_and_b32 s59, s3, 3')
        a.e('s_lshl_b32 s57, s59, 13')
        a.e('s_add_u32 s56, s58, s57')
        a.e('s_add_u32 s65, s56, 0x8000')
        assert XF_OFF == 0
        a.e('v_and_b32 v193, 7, v2')
        a.e('v_lshrrev_b32 v194, 3, v2')
        a.e('v_lshlrev_b32 v122, 10, v193')
        a.e('v_lshl_add_u32 v122, v194, 4, v122')
        a.e('s_lshl_b32 s57, s59, 3')
        a.e('v_add_u32 v193, s57, v193')
        a.e('v_and_b32 v192, 1, v194')
        a.e('v_mul_u32_u24 v192, 12, v192')
        a.e('v_xor_b32 v192, v192, v193')
        a.e('v_lshlrev_b32 v192, 4, v192')
        a.e('v_lshl_add_u32 v192, v194, 9, v192')
    def xload(m=False):
        if LNP: return 0
        for j in range(NX):
            a.e('buffer_load_dwordx4 %s, v122, s[52:55], s56 offen offset:%d' % (vr(128 + 4 * j, 4), 64 * j))
        return NX
    def ln_code(extra, tag):
        lx = '%s_lnx%s' % (name, tag)
        a.e('s_mov_b32 s90, 0xffff0000')
        T = 196
        p0, p1, nm = vr(T, 2), vr(T + 2, 2), vr(T + 4, 2)
        for XB in (128, 160):
            a.dense = True
            for j in range(8):
                a.e('s_waitcnt vmcnt(%d)' % (15 - j))
                for d in range(4):
                    a.e('v_lshlrev_b32 v%d, 16, v%d' % (8 * j + 2 * d, XB + 4 * j + d))
                    a.e('v_and_b32 v%d, s90, v%d' % (8 * j + 2 * d + 1, XB + 4 * j + d))
                if j == 0:
                    a.e('v_pk_add_f32 %s, %s, %s' % (p0, vr(0, 2), vr(2, 2))); a.e('v_pk_add_f32 %s, %s, %s' % (p1, vr(4, 2), vr(6, 2)))
                else:
                    for d in range(4): a.e('v_pk_add_f32 %s, %s, %s' % ((p0, p1)[d % 2], (p0, p1)[d % 2], vr(8 * j + 2 * d, 2)))
            a.e('v_pk_add_f32 %s, %s, %s' % (p0, p0, p1))
            a.e('v_add_f32 v%d, v%d, v%d' % (T, T, T + 1))
            a.e('v_add_f32_dpp v%d, v%d, v%d row_ror:8 row_mask:0xf bank_mask:0xf' % (T, T, T))
            quad_reduce(a, 'v_add_f32', T, T + 1)
            a.e('v_mul_f32 v%d, %s, v%d' % (T + 4, fhex(-1.0 / 512), T))
            for p in range(32):
                r = vr(2 * p, 2)
                a.e('v_pk_add_f32 %s, %s, %s op_sel_hi:[1,0]' % (r, r, nm))
                q = (p0, p1)[p % 2]
                if p < 2: a.e('v_pk_mul_f32 %s, %s, %s' % (q, r, r))
                else: a.e('v_pk_fma_f32 %s, %s, %s, %s' % (q, r, r, q))
            a.e('v_pk_add_f32 %s, %s, %s' % (p0, p0, p1))
            a.e('v_add_f32 v%d, v%d, v%d' % (T, T, T + 1))
            a.e('v_add_f32_dpp v%d, v%d, v%d row_ror:8 row_mask:0xf bank_mask:0xf' % (T, T, T))
            quad_reduce(a, 'v_add_f32', T, T + 1)
            a.e('v_mul_f32 v%d, %s, v%d' % (T, fhex(1.0 / 512), T))
            a.e('v_add_f32 v%d, %s, v%d' % (T, fhex(1e-5), T))
            a.e('v_rsq_f32 v%d, v%d' % (T + 4, T))
            for j in range(8):
                for d in range(4):
                    r = vr(8 * j + 2 * d, 2)
                    a.e('v_pk_mul_f32 %s, %s, %s op_sel_hi:[1,0]' % (r, r, nm))
                for d in range(4):
                    r = 8 * j + 2 * d
                    a.e('v_cvt_pk_bf16_f32 v%d, v%d, v%d' % (XB + 4 * j + d, r, r + 1))
                a.e('buffer_store_dwordx4 %s, v192, %s, s58 offen' % (vr(XB + 4 * j, 4), ws))
                a.e('s_add_u32 s58, s58, 0x1000')
            a.dense = False
        a.label(lx)
    if LNP:
        a.e('s_cmp_ge_u32 s2, 125')
        a.e('s_cbranch_scc1 %s_end' % name)
        for j in range(16):
            a.e('buffer_load_dwordx4 %s, v122, s[52:55], s%d offen offset:%d' % (vr(128 + 4 * j, 4), 56 if j < 8 else 65, 128 * (j % 8)))
        if cfg.get('LN_BAR', 1):
            a.e('s_cmp_ge_u32 s2, %d' % (N_M + N_VO))
            a.e('s_cbranch_scc1 %s_nb' % name)
            a.e('s_barrier')
            a.label('%s_nb' % name)
        ln_code(0, 'w')
        fin()
        a.label('%s_role' % name, reset=True)
    a.e('s_cmp_lt_u32 s85, %d' % N_M)
    a.e('s_cbranch_scc1 %s_m' % name)
    a.e('s_cmp_lt_u32 s85, %d' % (N_M + N_VO))
    a.e('s_cbranch_scc1 %s_vo' % name)
    a.e('s_cmp_lt_u32 s85, %d' % (N_M + N_VO + N_RL))
    a.e('s_cbranch_scc1 %s_rl' % name)
    a.e('s_cmp_lt_u32 s85, %d' % total)
    a.e('s_cbranch_scc1 %s_tp' % name)
    a.e('s_mov_b32 s87, 0x40000000')
    a.e('s_sub_u32 s6, s85, %d' % total)
    a.e('s_cmp_gt_u32 s6, 8')
    a.e('s_cbranch_scc1 %s_xt' % name)
    a.e('s_cmp_eq_u32 s6, 0')
    a.e('s_cselect_b32 s7, 0, -1')
    a.e('s_cselect_b32 s32, 0, 1')
    a.e('s_add_u32 s6, s6, s32')
    a.e('s_lshl_b32 s6, s6, 15')
    a.e('s_add_u32 s6, s6, %d' % CNT_OFF)
    for r_ in range(8, 12): a.e('v_mov_b32 v%d, s7' % r_)
    a.e('v_lshlrev_b32 v6, 4, v0')
    for j in range(8):
        a.e('buffer_store_dwordx4 v[8:11], v6, %s, s6 offen' % ws)
        a.e('s_add_u32 s6, s6, 0x1000')
    a.e('s_branch %s_xt' % name)
    a.label('%s_tp' % name, reset=True)

    a.e('s_sub_u32 s6, s85, %d' % (N_M + N_VO + N_RL + N_DW))
    a.e('s_cmp_lt_u32 s6, 4')
    a.e('s_cselect_b32 s32, s24, s28')
    a.e('s_cselect_b32 s33, s25, s29')
    a.e('s_cselect_b32 s34, 1, 2')
    a.e('s_cselect_b32 s39, 0, 16')
    a.e('s_lshl_b32 s34, s34, 10')
    a.e('s_mul_i32 s35, s34, 31')
    make_srd(a, 12, 32, 0)
    a.e('s_mov_b32 s14, s35')
    a.e('s_lshl_b32 s36, s6, 2')
    a.e('s_add_u32 s36, s36, s3')
    a.e('s_mul_i32 s37, s36, 9216')
    a.e('s_add_u32 s37, s37, %d' % TPC_OFF)
    a.e('s_sub_u32 s36, s36, s39')
    a.e('s_lshl_b32 s36, s36, 6')
    a.e('v_and_b32 v6, 3, v2')
    a.e('v_add_u32 v6, 1, v6')
    a.e('v_mul_lo_u32 v6, v6, s34')
    a.e('v_lshrrev_b32 v7, 2, v2')
    a.e('v_lshlrev_b32 v7, 1, v7')
    a.e('v_add_u32 v7, s36, v7')
    a.e('v_sub_u32 v6, v7, v6')
    for h in range(36):
        m, hi = h // 2, h % 2
        for g2 in range(2):
            a.e('buffer_load_ushort v%d, v6, s[12:15], 0 offen offset:%d' % (16 + 36 * hi + 18 * g2 + m, 32 * g2))
        if h < 35: a.e('v_add_u32 v6, s34, v6')
    a.e('s_waitcnt vmcnt(%d)' % xload())
    for d in range(36):
        a.e('v_lshl_or_b32 v%d, v%d, 16, v%d' % (16 + d, 52 + d, 16 + d))
    for q in range(9):
        if q and q % 4 == 0: a.e('s_add_u32 s37, s37, 0x1000')
        a.e('buffer_store_dwordx4 %s, v3, %s, s37 offen offset:%d' % (vr(16 + 4 * q, 4), ws, (q % 4) * 1024))
    fin()
    def rows_dma(srd, nrows, s_src, s_lds):
        for r in range(nrows):
            a.e('s_add_u32 m0, s%d, %d' % (s_lds, r * P))
            a.e('s_add_u32 s45, s%d, %d' % (s_src, r * 3072))
            a.e('buffer_load_dwordx4 v3, %s, s45 offen lds' % srd)

    a.label('%s_m' % name, reset=True)
    make_srd(a, 12, 18, 512 * 1536 * 2)
    a.e('s_lshr_b32 s32, s85, 3')
    a.e('s_and_b32 s33, s85, 7')
    a.e('s_lshl_b32 s87, s33, 7')
    a.e('s_add_u32 s87, s87, %d' % RC_OFF)
    a.e('s_lshl_b32 s34, s32, 5'); a.e('s_lshl_b32 s35, s3, 3'); a.e('s_add_u32 s34, s34, s35'); a.e('s_mul_i32 s34, s34, 3072')
    a.e('s_mul_i32 s36, s3, %d' % (8 * P))
    rows_dma('s[12:15]', 8, 34, 36)
    a.e('s_lshl_b32 s34, s33, 6'); a.e('s_lshl_b32 s35, s3, 4'); a.e('s_add_u32 s34, s34, s35'); a.e('s_mul_i32 s34, s34, 3072')
    a.e('s_add_u32 s34, s34, 1024')
    a.e('s_mul_i32 s36, s3, %d' % (16 * P)); a.e('s_add_u32 s36, s36, %d' % (32 * P))
    rows_dma('s[12:15]', 16, 34, 36)
    a.e('v_lshrrev_b32 v6, 2, v5'); a.e('v_lshlrev_b32 v6, 3, v6'); a.e('v_and_b32 v7, 3, v5'); a.e('v_add_u32 v6, v6, v7')
    a.e('v_mul_u32_u24 v6, %d, v6' % P)
    a.e('v_lshl_add_u32 v6, v4, 4, v6')
    a.e('s_lshr_b32 s36, s3, 1'); a.e('s_lshl_b32 s36, s36, 3'); a.e('s_and_b32 s37, s3, 1'); a.e('s_add_u32 s36, s36, s37')
    a.e('s_mul_i32 s36, s36, %d' % (4 * P)); a.e('s_add_u32 s36, s36, %d' % (32 * P))
    a.e('v_add_u32 v7, s36, v6')
    a.e('s_lshl_b32 s34, s33, 1')
    a.e('s_lshr_b32 s35, s3, 1')
    a.e('s_add_u32 s34, s34, s35')
    a.e('s_mul_i32 s34, s34, 96')
    a.e('s_lshl_b32 s35, s32, 2')
    a.e('s_add_u32 s34, s34, s35')
    a.e('s_and_b32 s35, s3, 1')
    a.e('s_add_u32 s34, s34, s35')
    a.e('s_lshl_b32 s34, s34, 10')
    a.e('s_add_u32 s34, s34, %d' % W1_OFF)
    a.e('s_mov_b32 s38, %s' % fhex(512 ** -0.5 * math.log2(math.e)))
    a.e('s_waitcnt vmcnt(%d)' % xload(True))
    a.e('s_barrier')
    if STAMP and not F3: stamp_mid(a, 0)
    lq = LgQ()
    def rd(kk):
        b = 32 + 12 * (kk % 5)
        a.e('ds_read_b128 %s, v6 offset:%d' % (vr(b, 4), kk * 64)); lq.issue()
        a.e('ds_read_b128 %s, v6 offset:%d' % (vr(b + 4, 4), kk * 64 + 4 * P)); lq.issue()
        a.e('ds_read_b128 %s, v7 offset:%d' % (vr(b + 8, 4), kk * 64)); lq.issue(kk)
    for kk in range(4): rd(kk)
    for kk in range(16):
        if kk + 4 < 16: rd(kk + 4)
        lq.wait(a, kk)
        b = 32 + 12 * (kk % 5)
        for e in range(2):
            a.e('%s %s, %s, %s, %s' % (MF, vr(16 + 4 * e, 4), vr(b + 4 * e, 4), vr(b + 8, 4), '0' if kk == 0 else vr(16 + 4 * e, 4)))
    for r in range(8):
        a.e('v_mul_f32 v%d, s38, v%d' % (16 + r, 16 + r))
    for d in range(4):
        a.e('v_cvt_pk_bf16_f32 v%d, v%d, v%d' % (24 + d, 16 + 2 * d, 17 + 2 * d))
    a.e('buffer_store_dwordx4 v[24:27], v3, %s, s34 offen' % ws)
    fin()

    def load_strip():
        a.e('v_lshrrev_b32 v7, 3, v2')
        a.e('v_bfe_u32 v8, v2, 4, 1')
        a.e('v_lshlrev_b32 v8, 2, v8')
        a.e('v_and_b32 v9, 7, v2')
        a.e('v_xor_b32 v8, v8, v9')
        a.e('v_mul_lo_u32 v7, v7, s42')
        a.e('v_lshl_add_u32 v7, v8, 4, v7')
        a.e('s_lshl_b32 s41, s42, 3')
        a.e('s_lshl_b32 s43, s3, 4')
        a.e('s_mul_i32 s43, s43, s41')
        a.e('s_add_u32 s40, s40, s43')
        a.e('s_lshl_b32 s44, s3, 14')
        for j in range(16):
            a.e('s_add_u32 m0, s44, %d' % (1024 * j))
            if j: a.e('s_add_u32 s40, s40, s41')
            a.e('buffer_load_dwordx4 v7, s[12:15], s40 offen lds')
        a.e('v_bfe_u32 v8, v2, 2, 2')
        a.e('v_lshl_add_u32 v9, v4, 3, v8')
        a.e('v_lshlrev_b32 v9, 7, v9')
        a.e('v_lshrrev_b32 v8, 1, v8')
        a.e('v_lshl_add_u32 v9, v8, 6, v9')
        a.e('v_and_b32 v8, 3, v2')
        a.e('v_lshlrev_b32 v8, s63, v8')
        a.e('v_add_u32 v8, v8, v9')
        a.e('v_xor_b32 v9, 64, v8')
        a.e('v_add_u32 v10, s59, v8')
        a.e('v_xor_b32 v11, 64, v10')

    a.label('%s_vo' % name, reset=True)
    a.e('s_sub_u32 s6, s85, %d' % N_M)
    a.e('s_lshr_b32 s33, s6, 3')
    a.e('s_and_b32 s32, s6, 7')
    make_srd(a, 12, 20, 512 * 512 * 2)
    make_srd(a, 48, 18, 512 * 1536 * 2)
    a.e('s_lshl_b32 s40, s33, 7')
    a.e('s_mov_b32 s42, 1024')
    a.e('s_mov_b32 s63, 3'); a.e('s_mov_b32 s59, 32')
    load_strip()
    a.e('s_lshl_b32 s34, s32, 6'); a.e('s_lshl_b32 s35, s3, 4'); a.e('s_add_u32 s34, s34, s35'); a.e('s_mul_i32 s34, s34, 3072')
    a.e('s_add_u32 s34, s34, 2048')
    a.e('s_mul_i32 s36, s3, %d' % (16 * P)); a.e('s_add_u32 s36, s36, 65536')
    rows_dma('s[48:51]', 16, 34, 36)
    a.e('s_bitcmp1_b32 s3, 0')
    a.e('s_cselect_b64 vcc, -1, 0')
    a.e('v_cndmask_b32 v8, v8, v9, vcc')
    a.e('v_cndmask_b32 v9, v10, v11, vcc')
    a.e('v_mul_u32_u24 v6, %d, v5' % P)
    a.e('v_lshl_add_u32 v6, v4, 4, v6')
    a.e('s_lshr_b32 s36, s3, 1')
    a.e('s_mul_i32 s37, s36, %d' % (32 * P)); a.e('s_add_u32 s37, s37, 65536')
    a.e('v_add_u32 v6, s37, v6')
    a.e('s_lshl_b32 s34, s33, 4')
    a.e('s_lshl_b32 s35, s32, 1'); a.e('s_add_u32 s35, s35, s36')
    a.e('s_add_u32 s34, s34, s35')
    a.e('s_lshl_b32 s34, s34, 2')
    a.e('s_and_b32 s35, s3, 1'); a.e('s_lshl_b32 s35, s35, 1')
    a.e('s_add_u32 s34, s34, s35')
    a.e('s_lshl_b32 s34, s34, 10')
    a.e('s_add_u32 s34, s34, %d' % W2_OFF)
    a.e('s_waitcnt vmcnt(%d)' % xload())
    a.e('s_barrier')
    if STAMP and not F3: stamp_mid(a, 0)
    lq = LgQ()
    def rd2(kk):
        b = 32 + 16 * (kk % 3)
        for e in range(2):
            a.e('ds_read_b128 %s, v6 offset:%d' % (vr(b + 4 * e, 4), kk * 64 + 16 * P * e)); lq.issue()
        for o in range(2):
            a.e('ds_read_b64_tr_b16 %s, v%d offset:%d' % (vr(b + 8 + 4 * o, 2), 8 + o, kk * 4096)); lq.issue()
            a.e('ds_read_b64_tr_b16 %s, v%d offset:%d' % (vr(b + 8 + 4 * o + 2, 2), 8 + o, kk * 4096 + 512)); lq.issue(kk)
    rd2(0); rd2(1)
    for kk in range(16):
        if kk + 2 < 16: rd2(kk + 2)
        lq.wait(a, kk)
        b = 32 + 16 * (kk % 3)
        for o in range(2):
            for e in range(2):
                acc = vr(16 + 8 * o + 4 * e, 4)
                a.e('%s %s, %s, %s, %s' % (MF, acc, vr(b + 4 * e, 4), vr(b + 8 + 4 * o, 4), '0' if kk == 0 else acc))
    for o in range(2):
        for d in range(4):
            a.e('v_cvt_pk_bf16_f32 v%d, v%d, v%d' % (80 + 4 * o + d, 16 + 8 * o + 2 * d, 17 + 8 * o + 2 * d))
        a.e('buffer_store_dwordx4 %s, v3, %s, s34 offen offset:%d' % (vr(80 + 4 * o, 4), ws, 1024 * o))
    fin()

    a.label('%s_rl' % name, reset=True)
    a.e('s_sub_u32 s6, s85, %d' % (N_M + N_VO))
    a.e('s_mov_b32 s63, 4'); a.e('s_mov_b32 s59, 8'); a.e('s_mov_b32 s38, 2048')
    a.e('s_cmp_lt_u32 s6, 16')
    a.e('s_cbranch_scc1 %s_rl_mi' % name)
    a.e('s_cmp_lt_u32 s6, 24')
    a.e('s_cbranch_scc1 %s_rl_mo' % name)
    a.e('s_sub_u32 s6, s6, 24')
    a.e('s_lshr_b32 s36, s6, 3')
    a.e('s_and_b32 s33, s6, 7')
    make_srd(a, 12, 30, 1024 * 512 * 2)
    a.e('s_lshl_b32 s40, s33, 7')
    a.e('s_lshl_b32 s37, s36, 19')
    a.e('s_add_u32 s40, s40, s37')
    a.e('s_mov_b32 s42, 1024')
    a.e('s_lshr_b32 s34, s6, 1')
    a.e('s_lshl_b32 s34, s34, 17')
    a.e('s_xor_b32 s37, s6, s36')
    a.e('s_xor_b32 s37, s37, 1')
    a.e('s_and_b32 s37, s37, 1')
    a.e('s_lshl_b32 s37, s37, 16')
    a.e('s_add_u32 s34, s34, s37')
    a.e('s_add_u32 s34, s34, %d' % W3_OFF)
    a.e('s_mov_b32 s35, 4096')
    a.e('s_branch %s_rl_go' % name)
    a.label('%s_rl_mo' % name, reset=True)
    a.e('s_sub_u32 s33, s6, 16')
    a.e('s_mov_b32 s63, 3'); a.e('s_mov_b32 s59, 32')
    make_srd(a, 12, 26, 512 * 512 * 2)
    a.e('s_lshl_b32 s40, s33, 7')
    a.e('s_mov_b32 s42, 1024')
    a.e('s_lshl_b32 s34, s33, 16')
    a.e('s_add_u32 s34, s34, %d' % (W2_OFF + 512 * 1024))
    a.e('s_mov_b32 s35, 4096')
    a.e('s_branch %s_rl_go' % name)
    a.label('%s_rl_mi' % name, reset=True)
    make_srd(a, 12, 22, 512 * 1024 * 2)
    a.e('s_lshl_b32 s40, s6, 7')
    a.e('s_mov_b32 s42, 2048')
    a.e('s_mov_b32 s63, 3'); a.e('s_mov_b32 s59, 32')
    a.e('s_and_b32 s33, s6, 7')
    a.e('s_mul_i32 s34, s33, 192')
    a.e('s_cmp_lt_u32 s6, 8')
    a.e('s_cselect_b32 s37, 64, 2')
    a.e('s_cselect_b32 s35, 2, 4')
    a.e('s_add_u32 s34, s34, s37')
    a.e('s_lshl_b32 s34, s34, 10')
    a.e('s_add_u32 s34, s34, %d' % W1_OFF)
    a.e('s_lshl_b32 s35, s35, 10')
    a.e('s_mov_b32 s38, %d' % (96 * 1024))
    a.label('%s_rl_go' % name, reset=True)
    load_strip()
    nxr = xload(True) if LNP else 0
    for r_ in (8, 9, 10, 11): a.e('v_add_u32 v%d, s44, v%d' % (r_, r_))
    a.e('s_lshl_b32 s37, s3, 2')
    a.e('s_mul_i32 s37, s37, s35')
    a.e('s_add_u32 s34, s34, s37')
    for k4 in range(4):
        a.e('s_waitcnt vmcnt(%d)' % (12 + nxr))
        for q in range(4):
            b = 16 + 16 * k4 + 4 * q
            ad = 8 + (q >> 1) + 2 * (q & 1)
            a.e('ds_read_b64_tr_b16 %s, v%d offset:%d' % (vr(b, 2), ad, k4 * 4096))
            a.e('ds_read_b64_tr_b16 %s, v%d offset:%d' % (vr(b + 2, 2), ad, k4 * 4096 + 512))
        a.e('s_waitcnt lgkmcnt(0)')
        a.e('s_add_u32 s39, s34, s38')
        for q in range(4):
            a.e('buffer_store_dwordx4 %s, v3, %s, s%d offen offset:%d' % (vr(16 + 16 * k4 + 4 * q, 4), ws, 34 if q < 2 else 39, 1024 * (q & 1)))
        if k4 < 3: a.e('s_add_u32 s34, s34, s35')
    a.label('%s_xt' % name, reset=True)
    if F3:
        a.e('s_cmp_lt_u32 s91, 256')
        a.e('s_cbranch_scc0 %s_ns' % name)
        a.e('s_waitcnt vmcnt(0)')
        a.e('buffer_atomic_add v124, v123, s[92:95], s91 offen sc1')
        a.label('%s_ns' % name)
    xload()
    fin()
    a.label('%s_end' % name)
    a.e('s_endpgm')
    if F3: return dict(name=name, vgpr=512, sgpr=100, accum=256, grid=256, block=256, lds=163840)
    return dict(name=name, vgpr=208, sgpr=96, accum=208, grid=256, block=512 if LNP else 256, lds=65536 + 64 * P)

def chan_combine(a, P, n, cnt, oA, oB, tmp):
    a.e('v_add_f32 v%d, v%d, v%d' % (oB, P, P + 2))
    a.e('v_add_f32 v%d, v%d, v%d' % (oA, P + 1, P + 3))
    for i in range(2, n):
        a.e('v_add_f32 v%d, v%d, v%d' % (oB, oB, P + 2 * i))
        a.e('v_add_f32 v%d, v%d, v%d' % (oA, oA, P + 2 * i + 1))
    a.e('v_mul_f32 v%d, %s, v%d' % (oB, fhex(1.0 / n), oB))
    a.e('v_mov_b32 v%d, 0' % (tmp + 1))
    for i in range(n):
        a.e('v_sub_f32 v%d, v%d, v%d' % (tmp, P + 2 * i, oB))
        a.e('v_fmac_f32 v%d, v%d, v%d' % (tmp + 1, tmp, tmp))
    a.e('v_mul_f32 v%d, %s, v%d' % (tmp + 1, fhex(float(cnt)), tmp + 1))
    a.e('v_add_f32 v%d, v%d, v%d' % (oA, oA, tmp + 1))
    a.e('v_mul_f32 v%d, %s, v%d' % (oA, fhex(1.0 / (n * cnt)), oA))
    a.e('v_add_f32 v%d, %s, v%d' % (oA, fhex(1e-5), oA))
    a.e('v_rsq_f32 v%d, v%d' % (oA, oA))
    a.e('v_mul_f32 v%d, v%d, v%d' % (oB, oB, oA))
    a.e('v_sub_f32 v%d, 0, v%d' % (oB, oB))
```

```python
from common import *
from convlib import tok_read_regs
from conv4 import *
from attn16 import stamp_begin, stamp_mid, stamp_end

def gen_tail(a, name='tail_kernel', cfg=None):
    cfg = cfg or {}
    STAMP = cfg.get('STAMP', False)
    TB = 208
    vLane, vLane16, vI, vQ4, TMP, NR = 244, 245, 246, 247, 248, 251
    STG = 65536
    sWave, sK, sW, sA, sB, sC, sU, sStg, sTy, sBt, sTok, sP, sF = 3, 6, 7, 32, 33, 34, 35, 36, 37, 38, 39, 40, 41
    ws = 's[8:11]'
    def acc1(t, f): return (t * 4 + f) * 4
    def srd_off(d, ptr, soff, nbytes):
        a.e('s_add_u32 s%d, s%d, s%d' % (d, ptr, soff))
        a.e('s_addc_u32 s%d, s%d, 0' % (d + 1, ptr + 1))
        a.e('s_and_b32 s%d, s%d, 0xffff' % (d + 1, d + 1))
        a.e('s_mov_b32 s%d, %d' % (d + 2, nbytes))
        a.e('s_mov_b32 s%d, 0x00020000' % (d + 3))

    def attn_signal(vq):
        a.e('v_mov_b32 v70, 1')
        a.e('v_mov_b32 v71, 0')
        a.e('s_waitcnt vmcnt(%d)' % min(63, vq.n))
        a.e('s_mov_b64 exec, 1')
        a.e('buffer_atomic_add v70, v71, %s, s87 offen sc1' % ws); vq.issue()
        a.e('s_mov_b64 exec, -1')
    FUSE = cfg.get('FUSE', 1)
    if FUSE:
        a.raw('.p2align 8'); a.label(name, reset=True); a.label('tail_body')
    else:
        kernel_begin(a, name)
    a.e('s_and_b32 s%d, s2, 3' % sK)
    a.e('s_lshl_b32 s%d, s%d, 4' % (sK, sK))
    a.e('s_lshr_b32 s%d, s2, 4' % sA)
    a.e('s_add_u32 s%d, s%d, s%d' % (sK, sK, sA))
    if not FUSE:
        a.e('s_cmp_ge_u32 s2, 256')
        a.e('s_cbranch_scc1 %s_end' % name)
    a.e('s_cmp_ge_u32 s%d, 63' % sK)
    a.e('s_cbranch_scc1 %s_%s' % (name, 'out' if FUSE else 'end'))
    if not FUSE: a.e('s_load_dwordx2 s[4:5], s[0:1], 80')
    a.e('s_load_dwordx2 s[52:53], s[0:1], 0')
    a.e('s_load_dwordx2 s[54:55], s[0:1], 64')
    if STAMP and not FUSE: stamp_begin(a)
    if FUSE and cfg.get('SIGE', 1): attn_signal(VmQ())
    if cfg.get('CPF', 1): code_prefetch(a, name, 60, 61, 2)
    a.e('s_bfe_u32 s%d, s2, 0x10003' % sTy)
    if FUSE and cfg.get('TSWAP', 1): a.e('s_xor_b32 s%d, s%d, 1' % (sTy, sTy))
    a.e('s_bfe_u32 s%d, s2, 0x10002' % sBt)
    a.e('s_mov_b32 s90, 0xffff0000')
    a.e('v_lshrrev_b32 v1, 6, v0')
    a.e('v_and_b32 v%d, 63, v0' % vLane)
    a.e('v_readfirstlane_b32 s%d, v1' % sWave)
    a.e('v_lshlrev_b32 v%d, 4, v%d' % (vLane16, vLane))
    a.e('v_lshrrev_b32 v%d, 4, v%d' % (vQ4, vLane))
    a.e('v_and_b32 v%d, 15, v%d' % (vI, vLane))
    a.e('s_lshl_b32 s%d, s%d, 2' % (sW, sTy))
    a.e('s_add_u32 s%d, s%d, s%d' % (sW, sW, sWave))
    a.e('s_mul_i32 s46, s%d, %d' % (sW, 4 * 9216))
    a.e('s_add_u32 s46, s46, %d' % TPM_OFF)
    a.e('s_lshl_b32 s%d, s%d, 17' % (sW, sW))
    a.e('s_add_u32 s%d, s%d, %d' % (sW, sW, W2_OFF))
    a.e('s_mul_i32 s%d, s%d, 24576' % (sStg, sWave))
    a.e('s_add_u32 s%d, s%d, %d' % (sStg, sStg, STG))
    a.e('s_cmp_eq_u32 s%d, 0' % sK)
    a.e('s_cselect_b32 s%d, 0x40000000, 0' % sF)
    a.e('s_mul_i32 s47, s%d, 4096000' % sBt)
    if not FUSE:
        a.e('s_waitcnt lgkmcnt(0)')
        make_srd(a, 8, 4, WS_BYTES)

    def add_w(st, state, ringreg, RW, n0, n1, tw, qi=2, ready=None):
        for n in range(n0, n1):
            pre = []
            if n == 128: pre = ['s_add_u32 s%d, s%d, %d' % (sW, sW, W3_OFF - W2_OFF - 31 * 4096)]
            elif n and n % 4 == 0: pre = ['s_add_u32 s%d, s%d, 0x1000' % (sW, sW)]
            st.add(qi, tw(n), pre, 'buffer_load_dwordx4 %s, v%d, %s, s%d offen offset:%d' % (ringreg(n), vLane16, ws, sW, (n % 4) * 1024), ('w', n),
                   (lambda n=n: state['wcons'] >= n - RW) if ready is None else (lambda n=n: ready(n)))
    RW2 = 52; NPRE = cfg.get('T2_NPRE', 12); RW1 = 22
    SLOT2 = [88 + 4 * i for i in range(12)] + [4 * i for i in range(22)] + [136 + 4 * i for i in range(18)]
    def wreg(n): return ar(SLOT2[(n - 128) % RW2], 4)
    TP2 = 136
    XL, HR = 200, 128
    vW1, vHs, vHr, vRow = 232, 233, 234, 235

    def common_setup(vq):
        a.e('s_waitcnt lgkmcnt(0)')
        srd_off(24, 52, 47, 4096000)
        srd_off(28, 54, 47, 4096000)
        a.e('s_lshl_b32 s49, s%d, 16' % sK)
        a.e('s_lshl_b32 s50, s%d, 8' % sWave)
        a.e('s_add_u32 s49, s49, s50')
        a.e('s_lshl_b32 s50, s%d, 7' % sTy)
        a.e('s_add_u32 s49, s49, s50')
        a.e('v_lshlrev_b32 v%d, 10, v%d' % (vRow, vI))
        a.e('v_lshl_add_u32 v%d, v%d, 4, v%d' % (vRow, vQ4, vRow))
        a.e('v_mul_u32_u24 v%d, 192, v%d' % (vW1, vI))
        a.e('v_bfe_u32 v%d, v%d, 1, 2' % (TMP, vI))
        a.e('v_xor_b32 v%d, v%d, v%d' % (TMP, TMP, vQ4))
        a.e('v_lshl_add_u32 v%d, v%d, 4, v%d' % (vW1, TMP, vW1))
        a.e('v_add_u32 v%d, s%d, v%d' % (vW1, sStg, vW1))
        a.e('s_lshl_b32 s51, s%d, 6' % sBt)
        a.e('s_add_u32 s51, s51, s%d' % sK)
        a.e('s_lshl_b32 s65, s51, 16')
        a.e('s_lshl_b32 s50, s%d, 15' % sTy)
        a.e('s_add_u32 s65, s65, s50')
        a.e('s_lshl_b32 s50, s%d, 13' % sWave)
        a.e('s_add_u32 s65, s65, s50')
        a.e('s_add_u32 s65, s65, %d' % HX_OFF)
        a.e('s_sub_u32 s64, s65, 0x10000')
        a.e('s_cmp_eq_u32 s%d, 62' % sK)
        a.e('s_cselect_b32 s50, 0x40000000, 0')
        a.e('s_add_u32 s50, s50, 0x20000')
        a.e('v_mov_b32 v%d, s50' % TMP)
        a.e('v_mov_b32 v%d, s%d' % (TMP + 1, sF))
        a.e('v_cmp_gt_u32 s[22:23], 32, v%d' % vLane)
        a.e('v_cndmask_b32 v%d, v%d, v%d, s[22:23]' % (vHr, TMP + 1, TMP))
        a.e('v_add_u32 v%d, v%d, v%d' % (vHr, vHr, vLane16))
    def x_loads(vq):
        for k in range(8):
            if k % 2 == 0: a.e('s_add_u32 s50, s49, %d' % ((k // 2) * 16384))
            a.e('buffer_load_dwordx4 %s, v%d, s[24:27], s50 offen offset:%d' % (vr(XL + 4 * k, 4), vRow, (k % 2) * 64)); vq.issue()
    def pack_half(h, lq, vq):
        out = []
        if h == 1: out.append(FS('s_add_u32 s65, s65, 0x1000'))
        for t in range(4 * h, 4 * h + 4):
            r0, r1 = acc1(t, 0), acc1(t, 2)
            for r_ in (r0, r1):
                for d in range(4): out.append(FV('v_cvt_pk_bf16_f32 v%d, v%d, v%d' % (r_ + d, r_ + 2 * d, r_ + 2 * d + 1)))
            for d in range(4): out.append(FV('v_cndmask_b32 v%d, v%d, v%d, s[22:23]' % (r0 + 4 + d, r1 + d, r0 + d)))
            for d in range(4): out.append(FV('v_min_u32 v%d, -2, v%d' % (r0 + 4 + d, r0 + 4 + d)))
            out.append(FM('buffer_store_dwordx4 %s, v%d, %s, s65 offen offset:%d' % (vr(r0 + 4, 4), vLane16, ws, (t % 4) * 1024), vq))
            out.append(FD('ds_write_b128 v%d, %s offset:%d' % (vW1, vr(r0, 4), t * 3072), lq))
            out.append(FD('ds_write_b128 v%d, %s offset:%d' % (vW1, vr(r1, 4), t * 3072 + 64), lq))
        return out
    def halo_ld(t): return 'buffer_load_dwordx4 %s, v%d, %s, s64 offen offset:%d sc1' % (vr(HR + 4 * t, 4), vHr, ws, (t % 4) * 1024)
    def add_late(st, state, free):
        for p in (0, 1):
            for q in range(9):
                pre = ['s_add_u32 s43, s46, %d' % (p * 9216 + q * 1024)] if q % 4 == 0 else []
                st.add(1, 1000, pre, 'buffer_load_dwordx4 %s, v%d, %s, s43 offen offset:%d' % (ar(TP2 + 36 * p + 4 * q, 4), vLane16, ws, (q % 4) * 1024), ('t2', p, q), (lambda r_=TP2 + 36 * p + 4 * q: state.get('last') and free(r_)))
        for k in range(8):
            st.add(2, 1500, ['s_add_u32 s50, s49, %d' % ((k // 2) * 16384)] if k % 2 == 0 else [],
                   'buffer_load_dwordx4 %s, v%d, s[24:27], s50 offen offset:%d' % (vr(XL + 4 * k, 4), vRow, (k % 2) * 64), ('x', k), lambda: ('t2', 1, 8) in st.issued)
        add_w(st, state, wreg, 0, 128, 128 + NPRE, lambda n: 2000, ready=lambda n: ('t2', 1, 8) in st.issued and free(SLOT2[n - 128]))
        for t in range(4):
            st.add(1, 3000, [], halo_ld(t), ('h', t), lambda: ('w', 127 + NPRE) in st.issued and state.get('hok'))

    def stage1(tr, sc, lq, state, produce, w1reg):
        st = sc.st
        def tok_reads(kk):
            ks = kk % 16; out = []
            for f in range(4):
                b = TB + ((kk % 3) * 4 + f) * 4
                if tr:
                    out.append(FD('ds_read_b64_tr_b16 %s, v%d offset:%d' % (ar(b, 2), NR + f, ks * 4096), lq))
                    out.append(FD('ds_read_b64_tr_b16 %s, v%d offset:%d' % (ar(b + 2, 2), NR + f, ks * 4096 + 512), lq, ('t', kk, f)))
                else:
                    out.append(FD('ds_read_b128 %s, v%d offset:%d' % (ar(b, 4), NR + ((ks ^ f) & 1), (ks * 4 + (f & 2)) * 1024), lq, ('t', kk, f)))
            return out
        def spread(ds):
            q = sc.q; out = []
            while ds:
                out.append(ds.pop(0))
                if q and q[0].kind == 'v': out.append(q.pop(0))
            sc.q[0:0] = out
        def barrier():
            st.flush(); lq.wait_all(a); a.e('s_barrier')
        def kstep(kk, press_end):
            h, ks = kk // 16, kk % 16
            lq.wait(a, ('t', kk, 3))
            st.wait(('w', kk * 4 + 3))
            for t4 in range(4):
                n = kk * 4 + t4; t = 4 * h + t4
                for x, f in enumerate(range(4) if t4 % 2 == 0 else range(3, -1, -1)):
                    a.e('%s %s, %s, %s, %s' % (MF, vr(acc1(t, f), 4), ar(TB + ((kk % 3) * 4 + f) * 4, 4), w1reg(n), '0' if ks == 0 else vr(acc1(t, f), 4)))
                    if x == 3: state['wcons'] = n
                    cap = 0 if (x == 3 and t4 == 3) else 2
                    left = press_end * 16 - (kk * 16 + t4 * 4 + x + 1)
                    if cap and left > 0: cap = max(2, min(6, int(len(sc.q) / left + 1.3)))
                    sc.gap(cap)
        a.dense = True
        for blk, fl in produce(0):
            if blk is not None: blk()
            sc.add(fl)
            while sc.q: sc.gap(6) or sc.gap(10**6, vm=False)
        a.dense = False
        barrier()
        if STAMP and cfg.get('S1') in (None, 1, 2): stamp_mid(a, 0)
        if STAMP and cfg.get('S1') == 4: stamp_mid(a, 4)
        for f in tok_reads(0) + tok_reads(1): f.emit(a)
        st.pace = st.pace2 = cfg.get('T1_PACEL' if tr else 'T1_PACEG', 44)
        for kk in range(32):
            r, k4 = kk // 4, kk % 4
            if kk < 12:
                plan = produce(r + 1) if k4 == 0 else plan
                if k4 < len(plan):
                    blk, fl = plan[k4]
                    if blk is not None: sc.flush(); blk()
                    sc.add(fl)
                if k4 < 2: spread(tok_reads(kk + 2))
                if k4 == 3:
                    sc.flush(); barrier()
                    sc.add(tok_reads(kk + 1) + tok_reads(kk + 2))
                    if STAMP and cfg.get('S1') == 1: stamp_mid(a, r + 1)
                nb = [k for k in range(k4 + 1, 3) if k < len(plan) and plan[k][0] is not None]
                kstep(kk, 4 * r + (nb[0] if nb else 3))
                if k4 == 3: sc.flush()
            else:
                if kk == 12: state['last'] = True; st.pace = st.pace2 = cfg.get('T1_PACEB', 60)
                if kk == 17: sc.add(pack_half(0, lq, st.vq))
                if kk == cfg.get('T1_HK', 29): state['hok'] = True
                if kk < 30: spread(tok_reads(kk + 2))
                kstep(kk, 0)
        sc.flush(); st.flush(); st.burst(100)
        assert st.empty()
        if STAMP and cfg.get('S1') == 1: stamp_mid(a, 4)
        if cfg.get('V'): print(name, tr, [x[1] for x in st.slack])

    a.e('s_cmp_eq_u32 s%d, 0' % sTy)
    a.e('s_cbranch_scc1 %s_glob' % name)

    DATA = 88; TP = 136
    CD, PKO, UB, UT2 = 128, 160, 168, 236
    vS, vWr, vUo = 16, 238, 239
    RD = [240, 241, 242, 243, 255, 250]; VS = [157, 158, 159]
    CD = 128
    vq = VmQ(); lq = LgQ()
    st = GStream(a, vq, cfg.get('TL_PACE', 24), 4)
    st.look = cfg.get('TL_LOOK', 24); st.pace2 = cfg.get('TL_PACE2', 64)
    state = dict(wcons=-1, gdone=-1, edone=-1, uok=False)
    a.e('s_add_u32 s%d, s47, %d' % (sA, G_OFF - 16384))
    srd_off(12, 4, sA, 4096000 + 16384)
    win_regs(a, VS[0], 16, vLane, 16384, sF, 8)
    a.e('s_lshl_b32 s%d, s%d, 16' % (sA, sK))
    a.e('s_lshl_b32 s%d, s%d, 10' % (sB, sWave))
    a.e('s_add_u32 s%d, s%d, s%d' % (sA, sA, sB))
    a.e('s_mul_i32 s42, s%d, 9216' % sWave)
    a.e('s_add_u32 s42, s42, %d' % TPC_OFF)
    def tg(g): return g if g < 2 else 2 + (g - 2) * 2
    def tw(n): return 1 + n / 4.0
    for g in range(8):
        off = (g >> 1) * 4096 + (g & 1) * 512
        for d in range(3):
            st.add(0, tg(g) - 3, ['s_add_u32 m0, s%d, %d' % (sStg, g * 3072 + d * 1024), 's_add_u32 s%d, s%d, %d' % (sC, sA, off)],
                   'buffer_load_dwordx4 v%d, s[12:15], s%d offen sc1 lds' % (VS[d], sC), ('win', g, d))
        for h in range(2):
            st.add(3, tg(g) - 1.5, ['s_add_u32 s45, s%d, %d' % (sA, off)] if h == 0 else [], 'buffer_load_dwordx4 %s, v%d, s[16:19], s45 offen offset:%d sc1' % (vr(UB + 8 * (g % 4) + 4 * h, 4), vUo, 16 * h), ('u', g, h),
                   (lambda g=g: state['uok'] and state['edone'] >= g - 4))
    for p in range(4):
        for q in range(9):
            pre = ['s_add_u32 s43, s42, %d' % (p * 4 * 9216 + q * 1024)] if q % 4 == 0 else []
            st.add(1, tg(2 * p + (q > 4)) - 2, pre, 'buffer_load_dwordx4 %s, v%d, %s, s43 offen offset:%d' % (ar(TP + 36 * (p % 2) + 4 * q, 4), vLane16, ws, (q % 4) * 1024), ('tp', p, q),
                   (lambda p=p: state['gdone'] >= 2 * (p - 2) + 1))
    NV = cfg.get('TL_NV', 16)
    def lreg(n):
        if RW1 <= n < RW1 + NV: return vr(64 + 4 * (n - RW1), 4)
        return ar(4 * ((n if n < RW1 else n - NV) % RW1), 4)
    def lready(n):
        if n < RW1 + NV: return True
        p_ = n - RW1
        if p_ < RW1 + NV: p_ -= NV
        return state['wcons'] >= p_
    add_w(st, state, lreg, RW1, 0, 128, tw, ready=lready)
    add_late(st, state, lambda r_: True)
    st.burst(11)
    a.e('s_add_u32 s%d, s47, %d' % (sU, U_OFF))
    srd_off(16, 4, sU, 4096000)
    a.e('v_and_b32 v8, 3, v%d' % vLane)
    a.e('v_lshlrev_b32 v%d, 14, v8' % vUo)
    a.e('v_lshrrev_b32 v8, 2, v%d' % vLane)
    a.e('v_lshl_add_u32 v%d, v8, 5, v%d' % (vUo, vUo))
    state['uok'] = True
    img_write_reg(a, vWr, vLane, 8)
    a.e('s_lshl_b32 s%d, s%d, 12' % (sB, sWave))
    a.e('v_add_u32 v%d, s%d, v%d' % (vWr, sB, vWr))
    img_read_regs(a, NR, vLane, 8, nform=True)
    common_setup(vq)
    for m in range(6): a.e('v_add_u32 v%d, s%d, v%d' % (RD[m], sStg, 16 + m))
    st.burst(cfg.get('TL_B1', 14))
    sc = Sched(a, st)
    def data_reads(g):
        return [FW(lambda: st.wait(('win', g, 2)))] + [FD('ds_read_b128 %s, v%d offset:%d' % (ar(DATA + 24 * (g % 2) + 4 * m, 4), RD[m], g * 3072), lq, ('d', g, m)) for m in range(6)]
    def conv_epi(g):
        out = [FW(lambda: st.wait(('u', g, 1)))]
        U = UB + 8 * (g % 4); t = UT2
        for d in range(8):
            out.append(FV('v_lshlrev_b32 v%d, 16, v%d' % (t, U + d)))
            out.append(FV('v_and_b32 v%d, s90, v%d' % (t + 1, U + d)))
            out.append(FV('v_mul_f32 v%d, v%d, v%d' % (t, t, CD + 2 * d)))
            out.append(FV('v_mul_f32 v%d, v%d, v%d' % (t + 1, t + 1, CD + 2 * d + 1)))
            out.append(FV('v_cvt_pk_bf16_f32 v%d, v%d, v%d' % (PKO + d, t, t + 1)))
            if d % 4 == 3: out.append(FD('ds_write_b128 v%d, %s offset:%d' % (vWr, vr(PKO + d - 3, 4), (g >> 1) * 16384 + (g & 1) * 2048 + (d // 4) * 16), lq))
        def done(): state['edone'] = g
        out.append(FW(done))
        return out
    def conv_block(g):
        def blk():
            r = g // 2
            A0 = TP + 36 * (r % 2) + 18 * (g % 2); B = DATA + 24 * (g % 2)
            if g == 0:
                for f in data_reads(0): f.emit(a)
            st.wait(('tp', r, 4 if g % 2 == 0 else 8))
            lq.wait(a, ('d', g, 5))
            if g < 7: sc.add(data_reads(g + 1))
            sc.vmcap = 1
            for s_ in range(9):
                for q in range(4):
                    ac = vr(CD + 4 * q, 4)
                    a.e('%s %s, %s, %s, %s' % (M4, ac, ar(A0 + 2 * s_, 2), ar(B + 2 * (q + s_), 2), '0' if s_ == 0 else ac))
                    sc.gap(1)
            sc.vmcap = 2
            state['gdone'] = g
        return blk
    def loc_produce(r):
        return [(conv_block(2 * r), conv_epi(2 * r)), (conv_block(2 * r + 1), conv_epi(2 * r + 1))]
    stage1(True, sc, lq, state, loc_produce, lreg)
    a.e('s_branch %s_s2' % name)

    a.label('%s_glob' % name, reset=True)
    vq = VmQ(); lq = LgQ()
    st = GStream(a, vq, cfg.get('TG_PACE', 24), 4)
    st.look = cfg.get('TG_LOOK', 36); st.pace2 = cfg.get('TG_PACE2', 64)
    state = dict(wcons=-1, fread=-1)
    WT, PB, CA, CU = 160, 176, 192, 236
    vWa, vSt, vS0 = 255, 240, 241
    NS = 8
    a.e('s_mul_i32 s%d, s%d, 4000' % (sTok, sBt))
    a.e('s_lshl_b32 s%d, s%d, 6' % (sA, sK))
    a.e('s_add_u32 s%d, s%d, s%d' % (sTok, sTok, sA))
    a.e('s_lshl_b32 s%d, s%d, 4' % (sA, sTok))
    a.e('s_add_u32 s%d, s%d, %d' % (sA, sA, ML_OFF))
    a.e('s_lshl_b32 s%d, s%d, 12' % (sP, sTok))
    a.e('s_lshl_b32 s%d, s%d, 13' % (sB, sWave))
    a.e('s_add_u32 s%d, s%d, s%d' % (sP, sP, sB))
    a.e('s_add_u32 s%d, s%d, %d' % (sP, sP, OP_OFF))
    make_srd(a, 16, 4, 0); a.e('s_cmp_eq_u32 s%d, 62' % sK); a.e('s_cselect_b32 s18, 0, %d' % WS_BYTES)
    def tsrd(ts): return 's[16:19]' if ts >= 2 else ws
    a.e('s_lshl_b32 s44, s%d, 12' % sWave)
    for f in range(16):
        r, ts = f // 4, f % 4
        off = (ts >> 1) * 131072 + r * 32768 + (ts & 1) * 4096
        st.add(3, f - 10, ['s_add_u32 m0, s44, %d' % (r * 16384 + ts * 1024), 's_add_u32 s45, s%d, %d' % (sP, off)],
               'buffer_load_dwordx4 v%d, %s, s45 offen sc1 lds' % (vLane16, tsrd(ts)), ('p', f, 0))
        pre = ['s_add_u32 m0, s%d, %d' % (sStg, ((f % NS) * 3 - 1) * 1024), 's_add_u32 s%d, s%d, %d' % (sC, sP, off),
               'buffer_load_dwordx4 v%d, %s, s%d offen offset:1024 sc1 lds' % (vLane16, tsrd(ts), sC), 'buffer_load_dwordx4 v%d, %s, s%d offen offset:2048 sc1 lds' % (vLane16, tsrd(ts), sC)]
        st.add(0, f - 10, pre, 'buffer_load_dwordx4 v%d, %s, s%d offen offset:3072 sc1 lds' % (vLane16, tsrd(ts), sC), ('p', f, 3), (lambda f=f: state['fread'] >= f - NS))
    RWG = cfg.get('TG_RW', 52)
    def greg(n): return ar(4 * ((n + 128 * RWG - 128 + 22) % RWG), 4)
    def gfree(r_):
        us = [n for n in range(128) if 4 * ((n + 128 * RWG - 128 + 22) % RWG) == r_]
        return not us or state['wcons'] >= max(us)
    add_w(st, state, greg, RWG, 0, 128, lambda n: n / 4.0 - 1)
    add_late(st, state, gfree)
    for _ in range(cfg.get('TG_W0', 44)): st._issue(2)
    common_setup(vq)
    a.e('v_lshrrev_b32 v64, 2, v%d' % vI)
    a.e('v_lshlrev_b32 v64, 3, v64')
    a.e('v_and_b32 v65, 3, v%d' % vI)
    a.e('v_add_u32 v64, v64, v65')
    a.e('v_lshrrev_b32 v65, 4, v64')
    a.e('v_and_b32 v64, 15, v64')
    a.e('v_xor_b32 v64, v64, v%d' % vQ4)
    a.e('v_lshl_add_u32 v64, v%d, 4, v64' % vQ4)
    a.e('v_lshlrev_b32 v64, 4, v64')
    a.e('v_lshl_add_u32 v%d, v65, 10, v64' % NR)
    a.e('v_xor_b32 v%d, 64, v%d' % (NR + 1, NR))
    tok_read_regs(a, 64, 65, vLane, 66)
    a.e('s_bitcmp1_b32 s%d, 0' % sWave)
    a.e('s_cselect_b64 vcc, -1, 0')
    a.e('v_cndmask_b32 v%d, v64, v65, vcc' % vWa)
    a.e('v_add_u32 v%d, s44, v%d' % (vWa, vWa))
    a.e('v_add_u32 v%d, s%d, v%d' % (vSt, sStg, vLane16))
    a.e('v_add_u32 v%d, s44, v%d' % (vS0, vLane16))
    a.e('v_lshlrev_b32 v%d, 2, v%d' % (TMP, vI))
    a.e('v_mov_b32 v64, s87')
    poll(a, '%s_wait' % name, 64, 66, 16, 59)
    a.e('s_barrier')
    vq.done = vq.n
    if STAMP and cfg.get('S1') == 4: stamp_mid(a, 3)
    st.burst(2)
    for ts in range(4):
        for s in range(4):
            a.e('buffer_load_dword v%d, v%d, %s, s%d offen offset:%d sc1' % (WT + ts * 4 + s, TMP, tsrd(ts), sA, (ts >> 1) * 512 + s * 128 + (ts & 1) * 64))
            vq.issue('ml')
    st.burst(cfg.get('TG_B2', 14))
    vq.wait(a, 'ml')
    a.dense = True
    for ts in range(4):
        m = [WT + ts * 4 + s for s in range(4)]
        t = 64
        a.e('v_max3_f32 v%d, v%d, v%d, v%d' % (t, m[0], m[1], m[2]))
        a.e('v_max_f32 v%d, v%d, v%d' % (t, t, m[3]))
        for s in range(4): a.e('v_sub_f32 v%d, v%d, v%d' % (m[s], m[s], t))
        for s in range(4): a.e('v_exp_f32 v%d, v%d' % (m[s], m[s]))
        a.e('v_add_f32 v%d, v%d, v%d' % (t, m[0], m[1]))
        for s in range(2, 4): a.e('v_add_f32 v%d, v%d, v%d' % (t, t, m[s]))
        a.e('v_rcp_f32 v%d, v%d' % (t, t))
        for s in range(4): a.e('v_mul_f32 v%d, v%d, v%d' % (m[s], m[s], t))
    a.dense = False
    sc = Sched(a, st)
    def p_read(f, s):
        r, ts = f // 4, f % 4
        if s == 0:
            def w_(): st.wait(('p', f, 0)); st.wait(('p', f, 3))
            return [FW(w_), FD('ds_read_b128 %s, v%d offset:%d' % (vr(PB, 4), vS0, r * 16384 + ts * 1024), lq, ('pr', f, s))]
        return [FD('ds_read_b128 %s, v%d offset:%d' % (vr(PB + 4 * s, 4), vSt, ((f % NS) * 3 + s - 1) * 1024), lq, ('pr', f, s))]
    def glob_produce(r):
        out = []
        if r == 0:
            for s in range(4): out += p_read(0, s)
        for ts in range(4):
            f = 4 * r + ts
            for s in range(4):
                def w_(f=f, s=s):
                    lq.wait(a, ('pr', f, s + 1))
                    if s == 2: state['fread'] = f
                if s % 2 == 0: out.append(FW(w_))
                p = PB + 4 * s; w = WT + ts * 4 + s
                for d in range(8):
                    out.append(FV('v_fma_mix_f32 v%d, v%d, v%d, %s op_sel:[%d,0,0] op_sel_hi:[1,0,0]' % (CA + d, p + d // 2, w, '0' if s == 0 else 'v%d' % (CA + d), d & 1)))
                if f < 15: out += p_read(f + 1, s)
            for d in range(4):
                out.append(FV('v_cvt_pk_bf16_f32 v%d, v%d, v%d' % (CU + d, CA + 2 * d, CA + 2 * d + 1)))
            out.append(FD('ds_write_b128 v%d, %s offset:%d' % (vWa, vr(CU, 4), r * 16384 + ts * 1024), lq))
        return [(None, out)]
    stage1(False, sc, lq, state, glob_produce, greg)

    a.label('%s_s2' % name, reset=True)
    if STAMP and cfg.get('S1') in (None, 2): stamp_mid(a, 1)
    vq = VmQ(); lq = LgQ()
    pre_keys = [('t2', q // 9, q % 9) for q in range(18)] + [('x', k) for k in range(8)] + [('w', 128 + n) for n in range(NPRE)] + [('h', t) for t in range(4)]
    for k_ in pre_keys: vq.issue(k_)
    st = GStream(a, vq, cfg.get('T2_PACE', 48), 4)
    st.look = cfg.get('T2_LOOK', 60); st.pace2 = cfg.get('T2_PACE2', 64)
    st.issued = set(pre_keys)
    state = dict(wcons=127, gdone=-1)
    def w2ready(n):
        i = n - 128
        if i >= RW2: return state['wcons'] >= n - RW2
        if i >= 43: return state['gdone'] >= 3
        if i >= 34: return state['gdone'] >= 1
        return True
    add_w(st, state, wreg, RW2, 128 + NPRE, 256, lambda n: 8 + (n - 128) / 5.0, ready=w2ready)
    for p in (2, 3):
        for q in range(9):
            pre = ['s_add_u32 s43, s46, %d' % (p * 9216 + q * 1024)] if q % 4 == 0 else []
            st.add(1, p, pre, 'buffer_load_dwordx4 %s, v%d, %s, s43 offen offset:%d' % (vr(36 * (p - 2) + 4 * q, 4), vLane16, ws, (q % 4) * 1024), ('t2', p, q))
    for t in range(4, 8):
        st.add(0, 0, ['s_add_u32 s64, s64, 0x1000'] if t == 4 else [], halo_ld(t), ('h', t), lambda: state['gdone'] >= cfg.get('T2_HG', 1))
    vWr2, vId, vR = 236, 238, 240
    RD2 = [192 + m for m in range(6)]
    sc = Sched(a, st)
    a.e('s_nop 7')
    a.dense = True
    sc.add(pack_half(1, lq, vq)); sc.flush()
    a.dense = False
    a.e('s_barrier')
    GACC, CD, DAT, PKO, TOK = 0, 160, 208, 72, 208
    def gacc(t, ts): return GACC + (t * 4 + ts) * 4
    a.e('v_lshrrev_b32 v%d, 2, v%d' % (TMP, vLane))
    a.e('v_mul_u32_u24 v198, 192, v%d' % TMP)
    a.e('v_add_u32 v198, s%d, v198' % sStg)
    a.e('v_bfe_u32 v%d, v%d, 3, 2' % (TMP + 1, vLane))
    a.e('v_and_b32 v%d, 3, v%d' % (TMP, vLane))
    a.e('v_lshlrev_b32 v%d, 1, v%d' % (TMP, TMP))
    for m in range(6):
        a.e('v_add_u32 v%d, %d, v%d' % (TMP + 2, m + 10, TMP))
        a.e('v_subrev_u32 v199, 12, v%d' % (TMP + 2))
        a.e('v_min_u32 v%d, v199, v%d' % (TMP + 2, TMP + 2))
        a.e('v_xor_b32 v%d, v%d, v%d' % (TMP + 2, TMP + 2, TMP + 1))
        a.e('v_lshl_add_u32 v%d, v%d, 4, v198' % (RD2[m], TMP + 2))
    img_write_reg(a, vWr2, vLane, TMP)
    a.e('s_lshl_b32 s%d, s%d, 14' % (sB, sWave))
    a.e('v_add_u32 v%d, s%d, v%d' % (vWr2, sB, vWr2))
    img_read_regs(a, vR, vLane, TMP)
    a.e('v_and_b32 v%d, 1, v%d' % (TMP, vLane))
    a.e('v_lshlrev_b32 v%d, 4, v%d' % (TMP, TMP))
    a.e('v_mov_b32 v%d, 0x3f80' % (TMP + 1))
    a.e('v_lshlrev_b32 v%d, v%d, v%d' % (TMP + 1, TMP, TMP + 1))
    a.e('v_and_b32 v%d, 2, v%d' % (TMP, vLane))
    a.e('v_cmp_eq_u32 vcc, 0, v%d' % TMP)
    a.e('v_cndmask_b32 v%d, 0, v%d, vcc' % (vId, TMP + 1))
    a.e('v_cndmask_b32 v%d, v%d, 0, vcc' % (vId + 1, TMP + 1))
    def xreg(k): return XL + 4 * k
    def halo_in(h):
        st.flush(); st.wait(('h', 4 * h + 3))
        R = HR + 16 * h; lb = '%s_h%d' % (name, h)
        a.e('s_mov_b32 s59, 0')
        a.label(lb)
        a.e('v_max3_u32 v%d, v%d, v%d, v%d' % (TMP, R, R + 1, R + 2))
        for j in range(3, 15, 2): a.e('v_max3_u32 v%d, v%d, v%d, v%d' % (TMP, TMP, R + j, R + j + 1))
        a.e('v_max_u32 v%d, v%d, v%d' % (TMP, TMP, R + 15))
        a.e('v_cmp_eq_u32 vcc, -1, v%d' % TMP)
        a.e('s_cbranch_vccz %s_ok' % lb)
        for t in range(4 * h, 4 * h + 4): a.e(halo_ld(t))
        a.e('s_waitcnt vmcnt(0)')
        a.e('s_add_u32 s59, s59, 1')
        a.e('s_cmp_lt_u32 s59, 0x40000')
        a.e('s_cbranch_scc1 %s' % lb)
        a.label(lb + '_ok')
        for t in range(4 * h, 4 * h + 4):
            a.e('ds_write_b128 v%d, %s offset:%d' % (vW1, vr(HR + 4 * t, 4), t * 3072 + 128)); lq.issue()
    def d_reads(g):
        return [FD('ds_read_b128 %s, v%d offset:%d' % (ar(DAT + 24 * (g % 2) + 4 * m, 4), RD2[m], g * 3072), lq, ('d', g, m)) for m in range(6)]
    def c_epi(g):
        out = []
        D = CD + 16 * (g % 2); o = PKO + 8 * (g % 2)
        for d in range(8):
            out.append(FV('v_cvt_pk_bf16_f32 v%d, v%d, v%d' % (o + d, D + 2 * d, D + 2 * d + 1)))
            if d % 4 == 3: out.append(FD('ds_write_b128 v%d, %s offset:%d' % (vWr2, vr(o + d - 3, 4), g * 2048 + (d // 4) * 16), lq))
        return out
    halo_in(0)
    if STAMP and cfg.get('S1') == 2: stamp_mid(a, 3); lq.done = lq.n
    for f in d_reads(0): f.emit(a)
    sc.vmcap = 1
    for g in range(8):
        p = g // 2
        A0 = (TP2 if p < 2 else 0) + 36 * (p % 2) + 18 * (g % 2); D = CD + 16 * (g % 2); B = DAT + 24 * (g % 2)
        AF = ar if p < 2 else vr
        st.wait(('t2', p, 4 if g % 2 == 0 else 8))
        lq.wait(a, ('d', g, 5))
        k = 0
        for s_ in list(range(9)) + ['I']:
            for q in range(4):
                ac = vr(D + 4 * q, 4)
                if s_ == 'I': a.e('%s %s, %s, %s, %s' % (M4, ac, vr(vId, 2), ar(B + 2 * (q + 4), 2), ac))
                else: a.e('%s %s, %s, %s, %s' % (M4, ac, AF(A0 + 2 * s_, 2), ar(B + 2 * (q + s_), 2), '0' if s_ == 0 else ac))
                k += 1
                if k == 1 and g < 7 and g != 3: sc.add(d_reads(g + 1))
                if k == 4 and g: sc.add(c_epi(g - 1))
                if k == 24 and g == 3:
                    sc.flush(); halo_in(1); sc.add(d_reads(4))
                if k < 40: sc.gap(1)
        state['gdone'] = g
        sc.flush()
    sc.vmcap = 2
    sc.add(c_epi(7)); sc.flush(); st.flush()
    lq.wait_all(a)
    if STAMP and cfg.get('S1') == 2: stamp_mid(a, 4)
    a.e('s_barrier')
    if STAMP and not cfg.get('S1'): stamp_mid(a, 2)
    def t_reads(ks):
        return [FD('ds_read_b64_tr_b16 %s, v%d offset:%d' % (ar(TOK + ((ks % 3) * 4 + ts) * 4 + 2 * h, 2), vR + ts, (ks % 16) * 4096 + 512 * h), lq, ('t', ks, ts, h))
                for ts in range(4) for h in range(2)]
    for f in t_reads(0) + t_reads(1): f.emit(a)
    vOne, vZ, vFl, vFa = 192, 193, 194, 195
    LD, PKS = 128, 160
    a.e('s_lshl_b32 s57, s51, 16')
    a.e('s_lshl_b32 s%d, s%d, 13' % (sB, sWave))
    a.e('s_add_u32 s57, s57, s%d' % sB)
    a.e('s_add_u32 s57, s57, %d' % PO_OFF)
    a.e('s_lshl_b32 s%d, s%d, 15' % (sB, sTy))
    a.e('s_add_u32 s48, s57, s%d' % sB)
    a.e('s_xor_b32 s%d, s%d, 0x8000' % (sB, sB))
    a.e('s_add_u32 s57, s57, s%d' % sB)
    a.e('s_add_u32 s58, s57, 0x1000')
    def pub():
        out = []; k = 0
        for ts in range(4):
            for dd in range(2):
                o = PKS + 4 * (k % 4)
                for e in range(2):
                    for j in range(2):
                        r_ = gacc(2 * dd + e, ts) + 2 * j
                        out.append(FV('v_cvt_pk_bf16_f32 v%d, v%d, v%d' % (o + 2 * e + j, r_, r_ + 1)))
                        out.append(FV('v_min_u32 v%d, -2, v%d' % (o + 2 * e + j, o + 2 * e + j)))
                if k == 4: out.append(FS('s_add_u32 s48, s48, 0x1000'))
                out.append(FM('buffer_store_dwordx4 %s, v%d, %s, s48 offen offset:%d' % (vr(o, 4), vLane16, ws, (k % 4) * 1024), vq)); k += 1
        return out
    def part_loads():
        return [FM('buffer_load_dwordx4 %s, v%d, %s, s%d offen offset:%d sc1' % (vr(LD + 4 * k, 4), vLane16, ws, 57 + k // 4, (k % 4) * 1024), vq) for k in range(8)]
    def xadd():
        out = []
        for ts in range(4):
            for dd in range(2):
                pass
        return out
    KP = cfg.get('T2_KP', 30)
    for kk in range(32):
        h, ks = kk // 16, kk % 16
        if STAMP and cfg.get('S1') == 3 and kk in (0, 8, 16, 24): stamp_mid(a, kk // 8); lq.done = lq.n
        lq.wait(a, ('t', kk, 3, 1))
        if kk >= 17 and not state.get('pub') and (st.empty() or kk == cfg.get('T2_KPUB', 24)):
            sc.add(pub()); state['pub'] = kk
        if kk == KP: sc.add(part_loads())
        if kk < 30:
            ds = t_reads(kk + 2); q_ = sc.q; out = []
            while ds:
                out.append(ds.pop(0))
                if q_ and q_[0].kind == 'v': out.append(q_.pop(0))
            sc.q[0:0] = out
        st.wait(('w', 128 + kk * 4 + 3))
        for t4 in range(4):
            n = 128 + kk * 4 + t4; t = 4 * h + t4
            for x, ts in enumerate(range(4) if t4 % 2 == 0 else range(3, -1, -1)):
                a.e('%s %s, %s, %s, %s' % (MF, vr(gacc(t, ts), 4), wreg(n), ar(TOK + ((kk % 3) * 4 + ts) * 4, 4), '0' if ks == 0 else vr(gacc(t, ts), 4)))
                if x == 3: state['wcons'] = n
                sc.gap(0 if (x == 3 and t4 == 3) else 2)
    sc.flush()
    if cfg.get('V'): print(name, 's2', st.slack, state)
    if STAMP and not cfg.get('S1'): stamp_mid(a, 3)
    if STAMP and cfg.get('S1') == 3: stamp_mid(a, 4)
    a.dense = True
    U = 176
    def addin(src, ts, dd, pack):
        for e in range(2):
            for j in range(2):
                r_ = gacc(4 + 2 * dd + e, ts) + 2 * j
                u = U + 2 * ((2 * e + j) % 4)
                a.e('v_lshlrev_b32 v%d, 16, v%d' % (u, src + 2 * e + j))
                a.e('v_and_b32 v%d, s90, v%d' % (u + 1, src + 2 * e + j))
                a.e('v_pk_add_f32 %s, %s, %s' % (vr(r_, 2), vr(r_, 2), vr(u, 2)))
                if pack: a.e('v_cvt_pk_bf16_f32 v%d, v%d, v%d' % (src + 2 * e + j, r_, r_ + 1))
    for ts in range(4):
        for dd in range(2): addin(xreg(ts * 2 + dd), ts, dd, False)
    a.e('s_mov_b32 s59, 0')
    a.label('%s_poll' % name)
    a.e('s_waitcnt vmcnt(0)')
    a.e('v_max3_u32 v%d, v%d, v%d, v%d' % (vFl, LD, LD + 1, LD + 2))
    a.e('v_max3_u32 v%d, v%d, v%d, v%d' % (vFa, LD + 3, LD + 4, LD + 5))
    for j in range(6, 30, 4):
        a.e('v_max3_u32 v%d, v%d, v%d, v%d' % (vFl, vFl, LD + j, LD + j + 1))
        a.e('v_max3_u32 v%d, v%d, v%d, v%d' % (vFa, vFa, LD + j + 2, LD + j + 3))
    a.e('v_max3_u32 v%d, v%d, v%d, v%d' % (vFl, vFl, LD + 30, LD + 31))
    a.e('v_max_u32 v%d, v%d, v%d' % (vFl, vFl, vFa))
    a.e('v_cmp_eq_u32 vcc, -1, v%d' % vFl)
    a.e('s_cbranch_vccz %s_go' % name)
    for f in part_loads(): f.emit(a)
    a.e('s_add_u32 s59, s59, 1')
    a.e('s_cmp_lt_u32 s59, 0x40000')
    a.e('s_cbranch_scc1 %s_poll' % name)
    a.e('s_waitcnt vmcnt(0)')
    a.label('%s_go' % name, reset=True)
    if STAMP and not cfg.get('S1'): stamp_mid(a, 4)
    for ts in range(4):
        a.e('s_add_u32 s50, s49, %d' % (ts * 16384))
        for dd in range(2):
            x = LD + 4 * (ts * 2 + dd)
            addin(x, ts, dd, True)
            a.e('buffer_store_dwordx4 %s, v%d, s[28:31], s50 offen offset:%d' % (vr(x, 4), vRow, dd * 64))
    a.dense = False
    a.label('%s_fin' % name)
    if STAMP: stamp_end(a, sWave)
    a.e('s_endpgm')
    if FUSE:
        a.label('%s_out' % name, reset=True)
        attn_signal(VmQ())
    a.label('%s_end' % name)
    a.e('s_endpgm')
    if FUSE: return None
    return dict(name=name, vgpr=512, sgpr=96, accum=256, grid=256, block=256, lds=163840)
```
